```python
import torch

def _softmax(x, axis=-1):
    return torch.softmax(x, dim=axis)
def _gelu(x):
    return torch.nn.functional.gelu(x, approximate="tanh")
def _silu(x):
    return torch.nn.functional.silu(x)
def _sigmoid(x):
    return torch.sigmoid(x)
def _layernorm(x, axis=-1, eps=1e-5):
    m = x.mean(dim=axis, keepdim=True)
    v = x.var(dim=axis, keepdim=True, unbiased=False)
    return (x - m) / torch.sqrt(v + eps)
def _scatter_add(tgt, idx, src, axis=0):
    return tgt.clone().index_add_(axis, idx, src)
def _segment_sum(src, seg, n):
    out = torch.zeros((n,) + src.shape[1:], dtype=src.dtype)
    return out.index_add_(0, seg, src)
def _pad(x, pw):
    flat = tuple(v for pair in reversed(pw) for v in pair)
    return torch.nn.functional.pad(x, flat)

kernel_name = 'concat_heads__mha_block_cached__mha_block_cached__near_ridge'

def setup_inputs():

    _w = (lambda a: (lambda t: t.to(torch.bfloat16) if t.is_floating_point() else t)(torch.as_tensor(a)))
    def _A_setup():
        B, Sq, D = 8, 112, 512
        H, Sk, Dh = 32, 512, 128
        return {
            "x": _w((lambda *s: torch.randn(*s, dtype=torch.bfloat16) * 0.8)(B, Sq, D)),
            "k_cache": _w((lambda *s: torch.randn(*s, dtype=torch.bfloat16) * 0.8)(B, H, Sk, Dh)),
            "v_cache": _w((lambda *s: torch.randn(*s, dtype=torch.bfloat16) * 0.05)(B, H, Sk, Dh)),
            "wq": _w((lambda *s: torch.randn(*s, dtype=torch.bfloat16) * 0.8)(D, H * Dh) * (D ** -0.5)),
            "wo": _w((lambda *s: torch.randn(*s, dtype=torch.bfloat16) * 0.05)(H * Dh, D) * ((H * Dh) ** -0.5)),
        }
    _A_in = _A_setup()

    def _B_setup():
        B, Sq, D = 8, 112, 512
        H, Sk, Dh = 32, 512, 128
        return {
            "x": _w((lambda *s: torch.randn(*s, dtype=torch.bfloat16) * 0.8)(B, Sq, D)),
            "k_cache": _w((lambda *s: torch.randn(*s, dtype=torch.bfloat16) * 0.8)(B, H, Sk, Dh)),
            "v_cache": _w((lambda *s: torch.randn(*s, dtype=torch.bfloat16) * 0.05)(B, H, Sk, Dh)),
            "wq": _w((lambda *s: torch.randn(*s, dtype=torch.bfloat16) * 0.8)(D, H * Dh) * (D ** -0.5)),
            "wo": _w((lambda *s: torch.randn(*s, dtype=torch.bfloat16) * 0.05)(H * Dh, D) * ((H * Dh) ** -0.5)),
        }
    _B_in = _B_setup()

    return {
        "A_x": _A_in["x"],
        "A_k_cache": _A_in["k_cache"],
        "A_v_cache": _A_in["v_cache"],
        "A_wq": _A_in["wq"],
        "A_wo": _A_in["wo"],
        "B_x": _B_in["x"],
        "B_k_cache": _B_in["k_cache"],
        "B_v_cache": _B_in["v_cache"],
        "B_wq": _B_in["wq"],
        "B_wo": _B_in["wo"],
    }

def reference(A_x, A_k_cache, A_v_cache, A_wq, A_wo, B_x, B_k_cache, B_v_cache, B_wq, B_wo):
    def _A_ref(x, k_cache, v_cache, wq, wo):
        B, Sq, D = x.shape
        H, Dh = 32, 128
        q = (lambda x, *d: x.permute(*d))((x @ wq).reshape(B, Sq, H, Dh), 0, 2, 1, 3)
        scores = torch.einsum("bhqd,bhkd->bhqk", q, k_cache) * (Dh ** -0.5)
        p = _softmax(scores, axis=-1)
        o = torch.einsum("bhqk,bhkd->bhqd", p, v_cache)
        return (lambda x, *d: x.permute(*d))(o, 0, 2, 1, 3).reshape(B, Sq, H * Dh) @ wo

    def _B_ref(x, k_cache, v_cache, wq, wo):
        B, Sq, D = x.shape
        H, Dh = 32, 128
        q = (lambda x, *d: x.permute(*d))((x @ wq).reshape(B, Sq, H, Dh), 0, 2, 1, 3)
        scores = torch.einsum("bhqd,bhkd->bhqk", q, k_cache) * (Dh ** -0.5)
        p = _softmax(scores, axis=-1)
        o = torch.einsum("bhqk,bhkd->bhqd", p, v_cache)
        return (lambda x, *d: x.permute(*d))(o, 0, 2, 1, 3).reshape(B, Sq, H * Dh) @ wo

    a = _A_ref(A_x, A_k_cache, A_v_cache, A_wq, A_wo)
    b = _B_ref(B_x, B_k_cache, B_v_cache, B_wq, B_wo)
    return torch.concatenate([a, b], axis=-1)
```

```python
import re

def _regs(tok):
    tok = tok.strip()
    neg = tok.lstrip('-')
    if neg.startswith('abs(') and neg.endswith(')'): neg = neg[4:-1]
    if neg.startswith('|') and neg.endswith('|'): neg = neg[1:-1]
    m = re.fullmatch(r'([vsa])(\d+)', neg)
    if m: return [(m.group(1), int(m.group(2)))]
    m = re.fullmatch(r'([vsa])\[(\d+):(\d+)\]', neg)
    if m: return [(m.group(1), i) for i in range(int(m.group(2)), int(m.group(3)) + 1)]
    if neg == 'vcc': return [('s', 106), ('s', 107)]
    if neg == 'vcc_lo': return [('s', 106)]
    if neg == 'vcc_hi': return [('s', 107)]
    if neg == 'exec': return [('s', 126), ('s', 127)]
    if neg == 'exec_lo': return [('s', 126)]
    if neg == 'exec_hi': return [('s', 127)]
    if neg == 'm0': return [('s', 124)]
    if neg == 'scc': return []
    return []

TRANS = ('v_exp_f32', 'v_log_f32', 'v_rcp_f32', 'v_rsq_f32', 'v_sqrt_f32', 'v_sin_f32', 'v_cos_f32')
MFMA_PASSES = {'v_mfma_f32_32x32x16_bf16': 8, 'v_mfma_f32_16x16x32_bf16': 4}

class Inst:
    __slots__ = ('text', 'op', 'ops', 'mods', 'kind', 'rd', 'wr', 'label', 'dpp', 'note', 'passes', 'srcC', 'lds', 'nbytes')
    def __repr__(self): return self.text

def split_ops(s):
    out = []; depth = 0; cur = ''
    for ch in s:
        if ch in '[(': depth += 1
        if ch in '])': depth -= 1
        if ch == ',' and depth == 0: out.append(cur.strip()); cur = ''
        else: cur += ch
    if cur.strip(): out.append(cur.strip())
    return out

def parse(line):
    I = Inst(); I.text = line; I.label = None; I.dpp = False; I.note = ''; I.passes = 0; I.srcC = []; I.lds = False
    code = line.split(';')[0].strip()
    if ';' in line: I.note = line.split(';', 1)[1]
    I.rd = []; I.wr = []; I.ops = []; I.mods = ''; I.op = ''
    if not code: I.kind = 'empty'; return I
    if code.endswith(':'): I.kind = 'label'; I.label = code[:-1]; return I
    if code.startswith('.'): I.kind = 'directive'; return I
    parts = code.split(None, 1); op = parts[0]; rest = parts[1] if len(parts) > 1 else ''
    I.op = op
    ops = split_ops(rest)
    if ops:
        last = ops[-1].split()
        ops[-1] = last[0]; I.mods = ' '.join(last[1:])
    I.ops = ops
    base = re.sub(r'_(e32|e64|dpp|sdwa)$', '', op)
    R = lambda t: _regs(t)
    if 'quad_perm' in I.mods or 'row_' in I.mods or op.endswith('_dpp') or 'row_' in rest or 'quad_perm' in rest: I.dpp = True
    if op.startswith('v_mfma'):
        I.kind = 'mfma'; I.passes = MFMA_PASSES[op]
        I.wr = R(ops[0]); I.rd = R(ops[1]) + R(ops[2]) + R(ops[3]); I.srcC = R(ops[3])
    elif op.startswith('v_cmp'):
        I.kind = 'valu'; I.wr = R(ops[0]); I.rd = sum((R(o) for o in ops[1:]), [])
    elif base in ('v_readfirstlane_b32', 'v_readlane_b32'):
        I.kind = 'valu'; I.wr = R(ops[0]); I.rd = sum((R(o) for o in ops[1:]), [])
    elif base.startswith('v_permlane') and 'swap' in base:
        I.kind = 'valu'; I.wr = R(ops[0]) + R(ops[1]); I.rd = R(ops[0]) + R(ops[1])
    elif base in ('v_add_co_u32', 'v_sub_co_u32'):
        I.kind = 'valu'; I.wr = R(ops[0]) + R(ops[1]); I.rd = sum((R(o) for o in ops[2:]), [])
    elif base in ('v_addc_co_u32',):
        I.kind = 'valu'; I.wr = R(ops[0]) + R(ops[1]); I.rd = sum((R(o) for o in ops[2:]), [])
    elif op.startswith('v_'):
        I.kind = 'valu'; I.wr = R(ops[0]); I.rd = sum((R(o) for o in ops[1:]), [])
        if base in ('v_fmac_f32', 'v_pk_fmac_f32', 'v_writelane_b32'): I.rd += R(ops[0])
        if base == 'v_cndmask_b32' and len(ops) == 3: I.rd += R('vcc')
        if base == 'v_nop': I.wr = []; I.rd = []
    elif op.startswith('ds_read') or op.startswith('ds_bpermute') or op.startswith('ds_swizzle'):
        I.kind = 'ds_read'; I.wr = R(ops[0]); I.rd = sum((R(o) for o in ops[1:]), [])
    elif op.startswith('ds_write') or op.startswith('ds_add'):
        I.kind = 'ds_write'; I.rd = sum((R(o) for o in ops), [])
    elif op.startswith('buffer_load') or op.startswith('global_load'):
        if ' lds' in (' ' + I.mods) or 'load_lds' in op:
            I.kind = 'vm_dma'; I.lds = True; I.rd = sum((R(o) for o in ops), []) + R('m0')
        else:
            I.kind = 'vm_load'; I.wr = R(ops[0]); I.rd = sum((R(o) for o in ops[1:]), [])
    elif op.startswith('buffer_store') or op.startswith('global_store'):
        I.kind = 'vm_store'; I.rd = sum((R(o) for o in ops), [])
    elif op.startswith('buffer_atomic') or op.startswith('global_atomic'):
        I.kind = 'vm_store'; I.rd = sum((R(o) for o in ops), [])
        if 'sc0' in I.mods: I.kind = 'vm_load'; I.wr = R(ops[0])
    elif op.startswith('buffer_inv') or op.startswith('buffer_wbl2'):
        I.kind = 'vm_store'
    elif op.startswith('s_load') or op.startswith('s_memrealtime') or op.startswith('s_memtime') or op.startswith('s_buffer_load'):
        I.kind = 'smem'; I.wr = R(ops[0]); I.rd = sum((R(o) for o in ops[1:]), [])
    elif op == 's_waitcnt': I.kind = 'waitcnt'; I.mods = rest
    elif op == 's_nop': I.kind = 'nop'
    elif op == 's_barrier': I.kind = 'barrier'
    elif op == 's_endpgm': I.kind = 'end'
    elif op.startswith('s_cbranch') or op == 's_branch': I.kind = 'branch'
    elif op.startswith('s_cmp') or op.startswith('s_bitcmp'):
        I.kind = 'salu'; I.rd = sum((R(o) for o in ops), [])
    elif op in ('s_setprio', 's_sleep', 's_setreg_b32', 's_setreg_imm32_b32'): I.kind = 'salu'
    elif op.startswith('s_'):
        I.kind = 'salu'; I.wr = R(ops[0]); I.rd = sum((R(o) for o in ops[1:]), [])
        if op in ('s_addk_i32', 's_mulk_i32'): I.rd += R(ops[0])
        if op.endswith('saveexec_b64'): I.wr += R('exec'); I.rd += R('exec')
    else:
        raise ValueError('unknown instruction: ' + line)
    return I

M32 = 0xffffffff
def _imm(tok):
    tok = tok.strip()
    try:
        if tok.startswith('0x') or tok.startswith('-0x'): return int(tok, 16) & M32
        return int(tok) & M32
    except ValueError:
        pass
    fl = {'1.0': 0x3f800000, '0.5': 0x3f000000, '2.0': 0x40000000, '4.0': 0x40800000, '-1.0': 0xbf800000}
    if tok in fl: return fl[tok]
    return None

class Trace:
    pass

def run_trace(insts, labels, init_s, hooks=None, maxn=2000000):
    S = dict(init_s); scc = None; pc = 0; out = []
    hooks = hooks or {}
    def val(tok):
        r = _regs(tok)
        if r:
            if r[0][0] != 's': return None
            if len(r) == 1: return S.get(r[0][1])
            lo, hi = S.get(r[0][1]), S.get(r[1][1])
            return None if lo is None or hi is None else lo | (hi << 32)
        return _imm(tok)
    def put(tok, v):
        r = _regs(tok)
        if len(r) == 1: S[r[0][1]] = None if v is None else v & M32
        elif len(r) == 2:
            S[r[0][1]] = None if v is None else v & M32; S[r[1][1]] = None if v is None else (v >> 32) & M32
        else:
            for x in r: S[x[1]] = None
    n = 0
    while True:
        n += 1
        if n > maxn: raise RuntimeError('trace too long')
        I = insts[pc]
        if I.kind in ('empty', 'label', 'directive'): pc += 1; continue
        out.append(pc)
        op = I.op; o = I.ops
        if I.kind == 'end': break
        if I.kind == 'branch':
            tgt = labels[o[0]]
            if op == 's_branch': pc = tgt; continue
            if op in ('s_cbranch_scc0', 's_cbranch_scc1'):
                mh_ = re.search(r'@hook=(\w+)', I.note)
                if mh_: t = bool(hooks.get(mh_.group(1)))
                elif '@taken' in I.note: t = True
                elif '@nottaken' in I.note: t = False
                elif scc is None: raise RuntimeError('branch on unknown scc: ' + I.text + f' at {pc}')
                else: t = (scc == 1) == op.endswith('1')
            else:
                m_ = re.search(r'@takenif=(\d+):(0x[0-9a-f]+)', I.note)
                if m_: t = bool(hooks.get('ALLRESC')) or S.get(int(m_.group(1))) == int(m_.group(2), 16)
                elif '@taken' in I.note: t = True
                elif '@nottaken' in I.note or op in ('s_cbranch_execz',): t = False
                else: raise RuntimeError('branch needs hint: ' + I.text)
            pc = tgt if t else pc + 1; continue
        if I.kind == 'smem':
            for x in I.wr: S[x[1]] = None
        elif I.kind == 'valu':
            for x in I.wr:
                if x[0] == 's': S[x[1]] = None
            m = re.search(r'@val=(\w+)', I.note)
            if m and I.wr and I.wr[0][0] == 's': S[I.wr[0][1]] = hooks[m.group(1)]
        elif I.kind == 'salu':
            a = val(o[1]) if len(o) > 1 else None; b = val(o[2]) if len(o) > 2 else None
            def bin(f, sccf=None):
                nonlocal scc
                if a is None or b is None: put(o[0], None); scc = None if sccf else scc
                else:
                    r = f(a, b); put(o[0], r)
                    if sccf: scc = sccf(r)
            if op in ('s_mov_b32', 's_mov_b64', 's_movk_i32'):
                v = val(o[1])
                if op == 's_mov_b64' and not _regs(o[1]) and v is not None and o[1].strip().startswith('-'): v = v | (M32 << 32)
                put(o[0], v)
            elif op in ('s_add_u32', 's_add_i32'): bin(lambda x, y: x + y, lambda r: 1 if r > M32 else 0)
            elif op == 's_addc_u32': put(o[0], None if (a is None or b is None or scc is None) else a + b + scc); scc = None
            elif op in ('s_sub_u32', 's_sub_i32'): bin(lambda x, y: x - y, lambda r: 1 if r < 0 else 0)
            elif op == 's_mul_i32': bin(lambda x, y: x * y)
            elif op == 's_lshl_b32': bin(lambda x, y: (x << (y & 31)) & M32, lambda r: 1 if r else 0)
            elif op == 's_lshr_b32': bin(lambda x, y: x >> (y & 31), lambda r: 1 if r else 0)
            elif op in ('s_and_b32', 's_and_b64'): bin(lambda x, y: x & y, lambda r: 1 if r else 0)
            elif op in ('s_or_b32', 's_or_b64'): bin(lambda x, y: x | y, lambda r: 1 if r else 0)
            elif op in ('s_xor_b32', 's_xor_b64'): bin(lambda x, y: x ^ y, lambda r: 1 if r else 0)
            elif op == 's_min_u32': bin(min, None); scc = None
            elif op == 's_max_u32': bin(max, None); scc = None
            elif op == 's_addk_i32':
                x = val(o[0]); y = val(o[1]); put(o[0], None if x is None else x + y); scc = None
            elif op == 's_cselect_b32' or op == 's_cselect_b64':
                put(o[0], None if scc is None else (a if scc else b))
            elif op.startswith('s_cmp'):
                x = val(o[0]); y = val(o[1])
                if x is None or y is None: scc = None
                else:
                    c = op.split('_')[2]; sg = op.endswith('i32')
                    if sg:
                        x = x - (1 << 32) if x & 0x80000000 else x; y = y - (1 << 32) if y & 0x80000000 else y
                    scc = int({'eq': x == y, 'lg': x != y, 'lt': x < y, 'le': x <= y, 'gt': x > y, 'ge': x >= y}[c])
            elif op.startswith('s_bitcmp'):
                x = val(o[0]); y = val(o[1])
                scc = None if x is None or y is None else int(((x >> y) & 1) == (1 if 'bitcmp1' in op else 0))
            elif op.endswith('saveexec_b64'):
                put(o[0], None); scc = None
            elif op in ('s_setprio', 's_sleep'): pass
            elif op in ('s_getreg_b32', 's_getpc_b64'): put(o[0], None)
            else:
                if o: put(o[0], None)
                scc = None
        pc += 1
    return out

def _states(I):
    if I.kind == 'nop': return int(I.ops[0], 0) + 1
    return 1

def hazard_need(P, C):
    need = 0
    Pw = set(P.wr); Cr = set(C.rd); Cw = set(C.wr)
    Pwv = {x for x in Pw if x[0] in 'va'}; Pws = {x for x in Pw if x[0] == 's'}
    if P.kind == 'valu':
        if C.kind == 'mfma' and Pwv & Cr: need = max(need, 2)
        if C.kind == 'valu':
            if C.dpp and Pwv & {x for x in Cr}: need = max(need, 2)
            cb = re.sub(r'_(e32|e64|dpp|sdwa)$', '', C.op)
            if cb.startswith('v_permlane') and Pwv & (Cr | Cw): need = max(need, 2)
            if cb in ('v_readfirstlane_b32', 'v_readlane_b32') and Pwv & Cr: need = max(need, 1)
            pb = re.sub(r'_(e32|e64|dpp|sdwa)$', '', P.op)
            if pb in TRANS and C.op.replace('_e32', '').replace('_e64', '') not in TRANS and Pwv & Cr: need = max(need, 1)
            if Pws & Cr: need = max(need, 2)
        if C.kind == 'mfma':
            pb = re.sub(r'_(e32|e64|dpp|sdwa)$', '', P.op)
        if C.kind in ('vm_load', 'vm_store', 'vm_dma') and Pws & Cr: need = max(need, 5)
        if C.kind in ('salu', 'branch') and Pws & Cr: need = max(need, 1)
    if P.kind == 'mfma':
        n = {4: 8, 8: 12}[P.passes]
        if C.kind == 'mfma':
            srcAB = set(C.rd) - set(C.srcC)
            ab = set(_regs(C.ops[1]) + _regs(C.ops[2]))
            if Pw & ab: need = max(need, n)
            if Pw & set(C.srcC):
                if not (set(C.srcC) == Pw and C.passes == P.passes): need = max(need, {4: 6, 8: 10}[P.passes])
            if Pw & Cw and not (Cw == Pw and set(C.srcC) == Pw):
                need = max(need, {4: 6, 8: 10}[P.passes])
        elif C.kind in ('valu', 'ds_read', 'ds_write', 'vm_load', 'vm_store', 'vm_dma'):
            if Pw & (Cr | Cw): need = max(need, n)
        if C.kind in ('valu', 'ds_read', 'vm_load') and set(P.srcC) & Cw: need = max(need, {4: 3, 8: 7}[P.passes])
    if P.kind == 'salu' and ('s', 124) in Pw and C.kind == 'vm_dma': need = max(need, 1)
    if P.kind == 'vm_store' and ('x4' in P.op or 'x3' in P.op):
        data = set(_regs(P.ops[0])) if P.op.startswith('buffer') else set(_regs(P.ops[1]))
        if data & Cw: need = max(need, 2 if C.kind == 'valu' else 1)
    return need

MAXWIN = 14
def check_trace_hazards(insts, tr):
    fix = {}
    n = len(tr)
    for k in range(n):
        C = insts[tr[k]]
        if C.kind in ('nop', 'waitcnt', 'barrier', 'end'): continue
        dist = 0; j = k - 1
        while j >= 0 and dist < MAXWIN:
            P = insts[tr[j]]
            need = hazard_need(P, C)
            if need > dist:
                fix[tr[k]] = max(fix.get(tr[k], 0), need - dist)
            dist += _states(P); j -= 1
    return fix

def check_trace_waits(insts, tr, name=''):
    errs = []; lg = []; vm = []; nb = 0
    smem_out = []
    for k in tr:
        I = insts[k]
        touched = set(I.rd) | set(I.wr)
        if I.kind == 'waitcnt':
            m = re.search(r'vmcnt\((\d+)\)', I.mods)
            if m:
                N = int(m.group(1));
                while len(vm) > N: vm.pop(0)
            m = re.search(r'lgkmcnt\((\d+)\)', I.mods)
            if m:
                N = int(m.group(1))
                if smem_out and N != 0: pass
                while len(lg) > N: lg.pop(0)
                if N == 0: smem_out = []
            continue
        if I.kind == 'barrier': nb += 1
        for (dst, src) in lg + vm:
            if dst & touched and not ('@dummy' in I.note and '@dummy' in src.note):
                errs.append(f'{name}: "{I.text.strip()}" touches regs of outstanding "{src.text.strip()}"')
        for (dst, src) in smem_out:
            if dst & touched: errs.append(f'{name}: "{I.text.strip()}" touches regs of outstanding smem "{src.text.strip()}"')
        if I.kind == 'ds_read': lg.append((set(I.wr), I))
        elif I.kind == 'ds_write': lg.append((set(), I))
        elif I.kind == 'smem': smem_out.append((set(I.wr), I)); lg.append((set(), I))
        elif I.kind == 'vm_load': vm.append((set(I.wr), I))
        elif I.kind in ('vm_store', 'vm_dma'): vm.append((set(), I))
        if len(vm) > 63: errs.append(f'{name}: vmcnt overflow at {I.text}')
    return errs, nb

def finalize(lines, configs, verbose=True):
    lines = list(lines)
    for it in range(50):
        insts = [parse(l) for l in lines]
        labels = {I.label: i for i, I in enumerate(insts) if I.kind == 'label'}
        fixes = {}
        traces = []
        for name, init_s, hooks in configs:
            tr = run_trace(insts, labels, init_s, hooks); traces.append((name, tr))
            for k, v in check_trace_hazards(insts, tr).items(): fixes[k] = max(fixes.get(k, 0), v)
        if not fixes: break
        for k in sorted(fixes, reverse=True):
            v = fixes[k]
            ins = []
            while v > 0:
                t = min(v, 16); ins.append(f'  s_nop {t-1} ; hz'); v -= t
            lines[k:k] = ins
    else:
        raise RuntimeError('hazard fixing did not converge')
    allerr = []
    for name, tr in traces:
        errs, nb = check_trace_waits(insts, tr, name)
        cnt = {}
        for k in tr: cnt[insts[k].kind] = cnt.get(insts[k].kind, 0) + 1
        if verbose: print(f'  trace {name}: {len(tr)} insts, barriers={nb}, ' + ', '.join(f'{a}={b}' for a, b in sorted(cnt.items())))
        allerr += errs
    seen = set()
    for e in allerr:
        if e not in seen: print('WAITERR', e); seen.add(e)
    if allerr: raise RuntimeError('waitcnt errors')
    return lines
```

```python
NAME = "concat_heads__mha_block_cached__mha_block_cached__near_ridge"
HDR_COMMENT = """; Kernarg layout (104 bytes, ptrs only, base s[0:1]):
"""
def kernel_text(label, body, vgpr=256, sgpr=102, accum=None, agpr=0):
    if accum is None: accum = (vgpr + 3) // 4 * 4
    nfv = accum + agpr if agpr else vgpr
    return f""".text
.globl {label}
.p2align 8
.type {label},@function
{label}:
{body}
.section .rodata,"a"
.p2align 6
.amdhsa_kernel {label}
  .amdhsa_next_free_vgpr {nfv}
  .amdhsa_next_free_sgpr {sgpr}
  .amdhsa_accum_offset {accum}
  .amdhsa_group_segment_fixed_size 0
  .amdhsa_kernarg_size 104
  .amdhsa_user_sgpr_count 2
  .amdhsa_user_sgpr_kernarg_segment_ptr 1
  .amdhsa_system_sgpr_workgroup_id_x 1
.end_amdhsa_kernel
"""
def file_text(launch_lines, kernels):
    s = HDR_COMMENT
    for l in launch_lines: s += l + "\n"
    s += '.amdgcn_target "amdgcn-amd-amdhsa--gfx950"\n'
    for k in kernels: s += k
    return s
```

```python
import sys, argparse, struct
from gen_common import *
import asmlib

P = [0, 32768, 65536]
W = [98304, 114688, 131072, 147456]
UNIT = 28672
PART_BASE = 16 << 20
PSZ = 14336
STAMP_BASE = 128 << 20
THR = 12.0

sK, sV, sWQ, sX, sWS, sWO, sOUT, sDBG = 4, 8, 12, 16, 20, 24, 28, 32
sWAVE, sW, sBR, sHG, sB, sHP, sH0, sKV = 62, 63, 64, 65, 66, 67, 68, 69
sXB, sPEND = 72, 73
sEV, sTHR, sPAT = 74, 75, 76
sSTEP, sROT, sNEG, sOBASE = 77, 78, 79, 80
sW4K, sWQB, sKVW, sWOB, sGRP, sMYB = 81, 82, 83, 84, 85, 86
sSPIN = 87
sEXLO, sEXHI = 88, 89
sPOS = 3
sWP, sOP = 54, 58
STAMP_REGS = [90, 92, 94, 96, 98, 100] + list(range(36, 54, 2))

def srd(r): return f"s[{r}:{r+3}]"
def vr(a, n=1): return f"v{a}" if n == 1 else f"v[{a}:{a+n-1}]"
def fbits(x): return struct.unpack('<I', struct.pack('<f', x))[0]
CSCALE = (128 ** -0.5) * 1.4426950408889634

class Q:
    def __init__(s, maxn): s.q = []; s.maxn = maxn
    def issue(s, tag):
        s.q.append(tag)
        assert len(s.q) <= s.maxn, ("counter overflow", s.q)
    def wait(s, tags):
        if isinstance(tags, str): tags = [tags]
        last = -1
        for i, t in enumerate(s.q):
            if t in tags: last = i
        if last < 0: return None
        n = len(s.q) - 1 - last
        s.q = s.q[last + 1:]
        return n
    def drain(s): s.q = []

def spread(slots, items, start=0, end=None):
    if end is None: end = len(slots)
    n = end - start
    m = len(items)
    for i, it in enumerate(items):
        k = start + (i * n) // m
        slots[k].extend(it)

class Gen:
    def __init__(s, opt):
        s.L = []; s.opt = opt
    def A(s, t): s.L.append("  " + t)
    def lab(s, n): s.L.append(n + ":")
    def emit(s, lines):
        for l in lines:
            if l.endswith(":"): s.L.append(l)
            else: s.L.append("  " + l)
    def stamp_lines(s, name, cyc=False):
        if not s.opt.stamp: return []
        names = s.opt.stamps.split(",")
        if name not in names: return []
        r = STAMP_REGS[names.index(name)]
        cyc = cyc or s.opt.cyc
        return [f"s_mem{'time' if cyc else 'realtime'} s[{r}:{r+1}]"]
    def stamp(s, name, cyc=False): s.emit(s.stamp_lines(name, cyc))
    def ast(s, i):
        return [f"s_memtime s[{36+2*i}:{37+2*i}]"] if s.opt.astamp >= 0 else []

    def common(s):
        A = s.A
        A("s_cmp_ge_u32 s2, 256")
        A("s_cbranch_scc1 L_end")
        s.stamp("start"); s.stamp("cstart", True)
        A("s_load_dwordx16 s[36:51], s[0:1], 0")
        A("s_load_dwordx8 s[52:59], s[0:1], 64")
        A("s_load_dwordx2 s[60:61], s[0:1], 96")
        A("v_lshrrev_b32 v1, 6, v0")
        A("s_and_b32 s70, s2, 7")
        A("s_lshr_b32 s71, s2, 3")
        A(f"v_readfirstlane_b32 s{sWAVE}, v1 ; @val=WAVE")
        A(f"s_lshr_b32 s{sBR}, s70, 2")
        A(f"s_and_b32 s{sHG}, s70, 3")
        A(f"s_and_b32 s{sB}, s71, 7")
        A(f"s_lshr_b32 s{sHP}, s71, 3")
        A(f"s_lshl_b32 s{sH0}, s{sHG}, 3")
        A(f"s_lshl_b32 s70, s{sHP}, 1")
        A(f"s_add_u32 s{sH0}, s{sH0}, s70")
        A(f"s_add_u32 s{sROT}, s{sB}, s70")
        if not s.opt.rot: A(f"s_mov_b32 s{sROT}, 0")
        A(f"s_and_b32 s{sW}, s{sWAVE}, 3")
        A(f"s_lshl_b32 s{sW4K}, s{sW}, 12")
        A("v_and_b32 v1, 63, v0")
        A("v_lshrrev_b32 v19, 4, v1")
        A("v_and_b32 v20, 15, v1")
        A("v_lshlrev_b32 v21, 2, v19")
        A("v_xor_b32 v21, v20, v21")
        A("v_lshlrev_b32 v21, 4, v21")
        A("v_lshrrev_b32 v17, 5, v1")
        A("v_and_b32 v18, 3, v1")
        A("v_lshlrev_b32 v2, 13, v19")
        A("v_add_u32 v2, v2, v21")
        A("v_lshrrev_b32 v22, 3, v1")
        A("v_lshlrev_b32 v22, 10, v22")
        A("v_and_b32 v23, 7, v1")
        A("v_xor_b32 v23, v23, v19")
        A("v_lshlrev_b32 v24, 4, v23")
        A("v_add_u32 v3, v22, v24")
        A("v_xor_b32 v24, 64, v24")
        A("v_add_u32 v4, v22, v24")
        for r, sz in ((sK, 33554432), (sV, 33554432), (sWQ, 4194304), (sWS, 268435456), (sWO, 4194304), (sOUT, 1835008), (sDBG, 256)):
            A(f"s_mov_b32 s{r+2}, {sz}")
            A(f"s_mov_b32 s{r+3}, 0x20000")
        A(f"s_mov_b32 s{sX+3}, 0x20000")
        A(f"s_lshl_b32 s70, s{sW}, 17")
        A(f"s_lshl_b32 s71, s{sH0}, 8")
        A(f"s_add_u32 s{sWQB}, s70, s71")
        A(f"s_mul_i32 s70, s{sB}, 112")
        A(f"s_add_u32 s71, s70, 112")
        A(f"s_lshl_b32 s{sX+2}, s71, 10")
        A(f"s_lshl_b32 s71, s{sW}, 5")
        A("s_add_u32 s70, s70, s71")
        A(f"s_lshl_b32 s{sXB}, s70, 10")
        A(f"s_lshl_b32 s70, s{sB}, 5")
        A(f"s_add_u32 s70, s70, s{sH0}")
        A(f"s_lshl_b32 s{sKV}, s70, 17")
        A(f"s_add_u32 s{sKVW}, s{sKV}, s{sW4K}")
        A(f"s_cmp_eq_u32 s{sBR}, 0")
        A("s_waitcnt lgkmcnt(0)")
        s.stamp("k")
        for r, a, b in ((sX, 36, 46), (sWQ, 42, 52), (sK, 38, 48), (sV, 40, 50), (sWO, 44, 54)):
            A(f"s_cselect_b32 s{r}, s{a}, s{b}")
            A(f"s_cselect_b32 s{r+1}, s{a+1}, s{b+1}")
        for r, a in ((sOUT, 56), (sDBG, 58), (sWS, 60)):
            A(f"s_mov_b32 s{r}, s{a}")
            A(f"s_mov_b32 s{r+1}, s{a+1}")
        A(f"s_cmp_ge_u32 s{sWAVE}, 4")
        A("s_cbranch_scc1 L_B")

    def late_scalars(s):
        A = s.A
        A(f"s_lshl_b32 s70, s{sBR}, 3")
        A(f"s_add_u32 s70, s70, s{sB}")
        A(f"s_lshl_b32 s71, s70, 5")
        A(f"s_add_u32 s71, s71, s{sH0}")
        A(f"s_mul_i32 s{sOBASE}, s71, {UNIT}")
        A(f"s_lshl_b32 s71, s70, 2")
        A(f"s_add_u32 s71, s71, s{sHG}")
        A(f"s_lshl_b32 s{sGRP}, s71, 2")
        A(f"s_add_u32 s{sMYB}, s{sGRP}, s{sHP}")
        A(f"s_cmp_eq_u32 s{sW}, 3")
        A(f"s_cselect_b32 s{sEXLO}, 0xffff, -1")
        A(f"s_mov_b32 s{sEXHI}, s{sEXLO}")

    def kv_voffs(s, vK, vV):
        A = s.A
        A("v_lshlrev_b32 v22, 8, v19")
        A(f"v_add_u32 v{vV}, v22, v21")
        for t in range(4):
            A(f"v_add_u32 v23, {4*t}, v19")
            A(f"v_xor_b32 v23, v20, v23")
            A(f"v_lshlrev_b32 v23, 4, v23")
            A(f"v_add_u32 v{vK+t}, v22, v23")

    def flag_store(s, val, vtmp):
        A = s.A
        A(f"v_mov_b32 v{vtmp}, {val}")
        A("s_mov_b64 exec, 1")
        A(f"buffer_store_byte v{vtmp}, off, {srd(sDBG)}, s{sMYB} sc1")
        A("s_mov_b64 exec, -1")

    def dma_k(s, j, vK, nt, tag):
        g = []
        for t in range(4):
            pre = [f"s_add_u32 m0, s{sW4K}, {P[j%3]}", f"s_add_u32 s70, s{sKVW}, {j*16384}"] if t == 0 else []
            g.append((tag, pre + [f"buffer_load_dwordx4 v{vK+t}, {srd(sK)}, s70 offen offset:{t*1024}{nt} lds"]))
        return g
    def dma_v(s, j, vV, nt, tag):
        g = []
        for t in range(4):
            pre = [f"s_add_u32 m0, s{sW4K}, {P[j%3]+16384}", f"s_add_u32 s70, s{sKVW}, {(j-1)*16384}"] if t == 0 else []
            g.append((tag, pre + [f"buffer_load_dwordx4 v{vV}, {srd(sV)}, s70 offen offset:{t*1024}{nt} lds"]))
        return g
    def kc_lines(s, c, dst):
        return [f"s_add_u32 s{dst}, s{sROT}, {c}", f"s_and_b32 s{dst}, s{dst}, 7"]
    def dma_wq(s, c, slot, vW, tag, extra, tmp):
        g = []
        for t in range(4):
            pre = []
            if t == 0:
                pre = s.kc_lines(c, tmp) + [f"s_lshl_b32 s{tmp}, s{tmp}, 19", f"s_add_u32 s{tmp}, s{tmp}, s{sWQB}",
                                            f"s_add_u32 m0, s{sW4K}, {slot}"]
            g.append((tag, pre + [f"s_add_u32 s71, s{tmp}, {extra + t*31744}",
                                  f"buffer_load_dwordx4 v{vW}, {srd(sWQ)}, s71 offen offset:{t*1024} lds"]))
        return g

    def waveA(s):
        A = s.A; o = s.opt
        nt = " nt" if o.nt else ""
        Q_, SB, Pr, O, WIN, NM = 0, [32, 64], 96, 112, 176, 208
        KA, VA, QA, OV, RL = 224, 232, 236, 237, 238
        LS, AL, T = 240, 242, 244
        vK, vV = 5, 9
        q = Q(63)
        PX = [P[1], P[2], W[0], W[2]]
        def dma_x(c):
            g = []
            for t in range(4):
                pre = []
                if t == 0:
                    pre = s.kc_lines(c, 87) + ["s_lshl_b32 s87, s87, 7", f"s_add_u32 s87, s87, s{sXB}", f"s_add_u32 m0, s{sW4K}, {PX[c%4]}"]
                g.append((f"C{c}", pre + [f"s_add_u32 s71, s87, {t*7168}",
                                          f"buffer_load_dwordx4 v{3 + (t&1)}, {srd(sX)}, s71 offen offset:{t*1024} lds"]))
            return g
        def issue(groups):
            for tag, ins in groups:
                q.issue(tag); s.emit(ins)
        def chunk(c): return dma_x(c) + s.dma_wq(c, PX[c % 4] + 16384, 2, f"C{c}", 0, 87)
        issue(chunk(0))
        s.stamp("a0")
        issue(chunk(1))
        s.late_scalars()
        s.kv_voffs(vK, vV)
        A("v_and_b32 v10, 31, v1")
        A("v_lshlrev_b32 v10, 8, v10")
        A("v_xor_b32 v11, v17, v20")
        for k in range(8):
            A(f"v_xor_b32 v12, {2*k}, v11")
            A(f"v_lshlrev_b32 v12, 4, v12")
            A(f"v_add_u32 v{KA+k}, v10, v12")
        A("v_lshrrev_b32 v10, 2, v20")
        A("v_and_b32 v11, 1, v19")
        A("v_lshlrev_b32 v12, 10, v17")
        A("v_lshlrev_b32 v13, 8, v10")
        A("v_add_u32 v12, v12, v13")
        A("v_lshlrev_b32 v13, 5, v11")
        A("v_add_u32 v12, v12, v13")
        A("v_and_b32 v13, 1, v18")
        A("v_lshlrev_b32 v13, 4, v13")
        A("v_add_u32 v12, v12, v13")
        A("v_lshrrev_b32 v13, 1, v18")
        A("v_lshlrev_b32 v13, 3, v13")
        A("v_add_u32 v12, v12, v13")
        A("v_add_u32 v12, 16384, v12")
        for D in range(4):
            A(f"v_xor_b32 v13, {D}, v10")
            A(f"v_lshlrev_b32 v13, 6, v13")
            A(f"v_add_u32 v{VA+D}, v12, v13")
        A(f"s_lshl_b32 s70, s{sW}, 13")
        A(f"s_add_u32 s70, s70, {W[0]}")
        A(f"v_lshlrev_b32 v{QA}, 4, v1")
        A(f"v_add_u32 v{QA}, s70, v{QA}")
        A(f"v_mul_u32_u24 v{OV}, 112, v17")
        A(f"v_and_b32 v12, 31, v1")
        A(f"v_add_u32 v{OV}, v{OV}, v12")
        A(f"s_lshl_b32 s70, s{sW}, 5")
        A(f"v_add_u32 v{OV}, s70, v{OV}")
        A(f"v_lshlrev_b32 v{OV}, 4, v{OV}")
        for i in range(8): A(f"v_mov_b64 {vr(NM+2*i,2)}, 0")
        A(f"v_mov_b64 {vr(LS,2)}, 0")
        A(f"s_mov_b32 s{sEV}, {hex((1<<0)|(1<<8)|(1<<1)|(1<<7))}")
        A(f"s_mov_b32 s{sPAT}, {hex(sum(1 << i for i in range(2, 17, 3)))}")
        A(f"s_mov_b32 s{sNEG}, 0xffff0000")
        A(f"s_mov_b32 s{sPOS}, 32768")
        A(f"s_mov_b32 s{sTHR}, {hex(fbits(THR))}")
        A(f"s_mov_b32 s{sSTEP}, 0")
        A(f"s_mov_b32 s{sPEND}, 0")
        A(f"s_add_u32 s{sOBASE}, s{sOBASE}, {UNIT}")
        for k in range(8):
            n = q.wait(f"C{k}")
            if n is not None: A(f"s_waitcnt vmcnt({n})")
            s.stamp(f"aw{k}")
            A("s_barrier")
            if k + 2 < 8: issue(chunk(k + 2))
            if k == o.k0at: issue(s.dma_k(0, vK, nt, "K0"))
            if k == 5: issue(s.dma_wq(0, P[0] + 16384, 2, "Q0", 256, 87))
            if k == 6: issue(s.dma_k(1, vK, nt, "KV1") + s.dma_v(1, vV, nt, "KV1"))
        n0 = q.wait(["K0", "Q0"])
        assert n0 == 8, n0
        if o.prioA: A(f"s_setprio {o.prioA}")

        U = T + 4
        def fin_D(D, dst):
            L = [f"v_mul_f32 v{O+16*D+i}, v{AL}, v{O+16*D+i}" for i in range(16)]
            L += [f"v_cvt_pk_bf16_f32 v{dst+8*D+i}, v{O+16*D+2*i}, v{O+16*D+2*i+1}" for i in range(8)]
            return L
        def step(par, last=False):
            cur, prev = SB[par], SB[1 - par]
            lq = Q(15)
            L = []
            def wl(tags):
                n = lq.wait(tags)
                return [f"s_waitcnt lgkmcnt({n})"] if n is not None else []
            def kread(i):
                T_, k = divmod(i, 8); lq.issue(f"K{i}")
                return [f"ds_read_b128 {vr(WIN + 4*(i % 8), 4)}, v{KA+k} offset:{T_*8192}"]
            vorder = [divmod(f, 4) for f in range(16)] if not last else [(t, D) for D in range(4) for t in range(4)]
            def vread(f):
                t, D = vorder[f]; r = []
                for a in range(2):
                    lq.issue(f"V{f}")
                    r.append(f"ds_read_b64_tr_b16 {vr(WIN + 4*(f % 8) + 2*a, 2)}, v{VA+D} offset:{t*4096 + a*2048}")
                return r
            exp = lambda r: [f"v_exp_f32 v{r}, v{r}"]
            add = lambda r: [f"v_add_f32 v{LS + (r & 1)}, v{LS + (r & 1)}, v{r}"]
            cvt = lambda t, i: [f"v_cvt_pk_bf16_f32 v{Pr+4*t+i}, v{prev+8*t+2*i}, v{prev+8*t+2*i+1}"]
            mx = lambda d, a, b, c: [f"v_max3_f32 v{d}, v{a}, v{b}, v{c}"]
            bub = []
            for i in range(4): bub += [cvt(0, i), add(prev + 2*i), add(prev + 2*i + 1)]
            for i in range(4): bub += [cvt(1, i), add(prev + 8 + 2*i), add(prev + 8 + 2*i + 1)]
            F1 = []
            e = [exp(prev + 16 + i) for i in range(16)]
            a_ = [add(prev + 16 + i) for i in range(16)]
            c2 = [cvt(2, i) for i in range(4)]; c3 = [cvt(3, i) for i in range(4)]
            F1 += [e[0], e[1], e[2]]
            for i in range(3, 16):
                F1 += [e[i], a_[i - 3]]
                if i in (5, 7, 9, 11): F1.append(c2[(i - 5) // 2])
                if i in (13, 15): F1.append(c3[(i - 13) // 2])
            F1 += [a_[13], c3[2], a_[14], a_[15], c3[3]]
            def maxT(base, d0, d1):
                return [mx(d0, base, base+1, base+2), mx(d1, base+8, base+9, base+10),
                        mx(d0, d0, base+3, base+4), mx(d1, d1, base+11, base+12),
                        mx(d0, d0, base+5, base+6), mx(d1, d1, base+13, base+14),
                        mx(d0, d0, base+7, base+15)]
            M0 = maxT(cur, U, U+1)
            M1 = maxT(cur+16, U+2, U+3)
            fin = [mx(U, U, U+1, U+2), [f"v_max_f32 v{U}, v{U}, v{U+3}"]]
            tagp = "e" if par == 0 else "o"
            chk = [f"v_cmp_lt_f32 vcc, s{sTHR}, v{U}",
                   f"s_nop 0",
                   f"s_cbranch_vccnz A_resc{tagp} ; @takenif={sTHR}:0xff800000",
                   f"A_resc{tagp}r:"]
            advK = [[f"v_add_u32 v{KA+k}, s70, v{KA+k}"] for k in range(8)]
            advV = [[f"v_add_u32 v{VA+D}, s70, v{VA+D}"] for D in range(4)]
            exps1 = [exp(cur+i) for i in range(16)]

            L += s.ast(1)
            if not last:
                for i in range(8): L += kread(i)
                for it in bub: L += it
                nb = o.nbub
                for it in F1[:nb]: L += it
                gaps = [[] for _ in range(16)]
                spread(gaps, F1[nb:], 0, 14)
                spread(gaps, M0, 10, 16)
                for i in range(16):
                    T_, k = divmod(i, 8)
                    if i % 2 == 0: L += wl([f"K{i}", f"K{i+1}"])
                    srcC = vr(NM, 16) if k == 0 else vr(cur + 16*T_, 16)
                    L.append(f"v_mfma_f32_32x32x16_bf16 {vr(cur+16*T_,16)}, {vr(WIN+4*(i%8),4)}, {vr(Q_+4*k,4)}, {srcC}")
                    if i + 8 < 16: L += kread(i + 8)
                    if i >= 9: L += vread(i - 9)
                    L += gaps[i]
                    if i == 7: L += s.ast(2)
                L += s.ast(3)
                vissued = 7
                gaps = [[] for _ in range(16)]
                spread(gaps, advK[:4], 0, 2)
                spread(gaps, M1 + fin, 2, 5)
                gaps[5] += chk
                spread(gaps, exps1, 5, 16)
                spread(gaps, advK[4:], 6, 10)
                spread(gaps, advV, 10, 14)
                L += [f"s_bitcmp1_b32 s{sPAT}, s{sSTEP}", f"s_cselect_b32 s70, s{sNEG}, s{sPOS}"]
            else:
                for f in range(7): L += vread(f)
                vissued = 7
                for it in bub: L += it
                for it in F1: L += it
                L += rl_lines(AL)
                L.append(f"v_add_u32 v{QA}, {hex((P[0] - W[1]) & 0xffffffff)}, v{QA}")
                gaps = [[] for _ in range(16)]
                for D in range(3):
                    items = [[x] for x in fin_D(D, cur)] + [out_D(D, cur)]
                    spread(gaps, items, 4*D + 6 if D < 2 else 14, 4*D + 10 if D < 2 else 16)
            for f in range(16):
                t, D = vorder[f]
                if f % 2 == 0: L += wl([f"V{f}", f"V{f+1}"])
                L.append(f"v_mfma_f32_32x32x16_bf16 {vr(O+16*D,16)}, {vr(WIN+4*(f%8),4)}, {vr(Pr+4*t,4)}, {vr(O+16*D,16)}")
                if vissued < 16:
                    L += vread(vissued); vissued += 1
                L += gaps[f]
                if f == 6 and not last: L += s.ast(4)
            if not last:
                L += s.ast(5)
                L += [f"s_cmp_lg_u32 s{sPEND}, 0", f"s_cbranch_scc1 A_pend{tagp}", f"A_pend{tagp}r:"]
                L += s.ast(6)
                if s.opt.astamp >= 0:
                    L += ["s_waitcnt lgkmcnt(0)", f"s_cmp_eq_u32 s{sSTEP}, {s.opt.astamp}"]
                    L += [f"s_cselect_b32 s{50+i}, s{36+2*i}, s{50+i}" for i in range(7)]
            else:
                L += fin_D(3, cur) + out_D(3, cur)
            return L
        def out_D(D, src):
            L = []
            for h in range(2):
                L.append(f"ds_write_b128 v{QA}, {vr(src+8*D+4*h,4)} offset:{(2*D+h)*1024}")
            L.append(f"s_mov_b64 exec, s[{sEXLO}:{sEXHI}]")
            for h in range(2):
                L.append(f"s_add_u32 s71, s{sOBASE}, {(4*D+2*h)*1792}")
                L.append(f"buffer_store_dwordx4 {vr(src+8*D+4*h,4)}, v{OV}, {srd(sWS)}, s71 offen sc1")
            L.append("s_mov_b64 exec, -1")
            return L
        def rl_lines(dst):
            return [f"v_add_f32 v{T}, v{LS}, v{LS+1}", f"v_mov_b32 v{T+1}, v{T}", f"v_permlane32_swap_b32 v{T}, v{T+1}",
                    f"v_add_f32 v{T}, v{T}, v{T+1}", f"v_rcp_f32 v{dst}, v{T}"]

        s.lab("A_loop")
        for par in range(2):
            tagp = "e" if par == 0 else "o"
            s.emit(s.ast(0))
            A(f"s_bitcmp1_b32 s{sEV}, s{sSTEP}")
            A(f"s_cbranch_scc1 A_top{tagp}")
            A("s_barrier")
            s.lab(f"A_top{tagp}r")
            s.emit(step(par))
            A(f"s_add_u32 s{sSTEP}, s{sSTEP}, 1")
        A(f"s_cmp_lt_u32 s{sSTEP}, 16")
        A("s_cbranch_scc1 A_loop")
        A("s_barrier")
        s.emit(step(0, last=True))
        A("s_waitcnt lgkmcnt(0)")
        A("s_barrier")
        A("s_waitcnt vmcnt(0)")
        A("s_barrier")
        A(f"s_cmp_lg_u32 s{sW}, 0")
        A("s_cbranch_scc1 L_end")
        s.flag_store(2, T)
        if o.astamp >= 0:
            A("s_lshl_b32 s70, s2, 8")
            A(f"s_add_u32 s70, s70, {STAMP_BASE + 65536}")
            A("s_mov_b64 exec, 1")
            for i in range(7):
                A(f"v_mov_b32 v32, s{50+i}")
                A(f"buffer_store_dword v32, off, {srd(sWS)}, s70 offset:{4*i}")
                A("s_nop 1")
        A("s_endpgm")
        s.lab("A_tope")
        A(f"s_cmp_eq_u32 s{sSTEP}, 0")
        A("s_cbranch_scc0 A_top8")
        A(f"s_waitcnt vmcnt({n0})")
        A("s_barrier")
        for i in range(8):
            A(f"ds_read_b128 {vr(Q_+4*i,4)}, v{QA} offset:{i*1024}")
        A(f"v_add_u32 v{QA}, 16384, v{QA}")
        A("s_branch A_top8b")
        s.lab("A_top8")
        A("s_barrier")
        for i in range(8):
            A(f"ds_read_b128 {vr(Q_+4*i,4)}, v{QA} offset:{i*1024}")
        s.lab("A_top8b")
        A(f"s_mov_b32 s{sTHR}, 0xff800000")
        A("s_waitcnt lgkmcnt(0)")
        A("s_branch A_toper")
        s.lab("A_topo")
        A(f"s_cmp_eq_u32 s{sSTEP}, 1")
        A("s_cbranch_scc0 A_top7")
        A("s_waitcnt vmcnt(0)")
        A("s_barrier")
        A("s_branch A_topor")
        s.lab("A_top7")
        A(f"s_or_b32 s{sPEND}, s{sPEND}, 4")
        A("s_barrier")
        A("s_branch A_topor")
        for par in range(2):
            tagp = "e" if par == 0 else "o"; cur = SB[par]
            s.lab(f"A_resc{tagp}")
            A(f"v_mov_b32 v{U+1}, v{U}")
            A(f"v_permlane32_swap_b32 v{U}, v{U+1}")
            A(f"v_max_f32 v{U}, v{U}, v{U+1}")
            if par == 0:
                A(f"s_and_b32 s71, s{sSTEP}, 7")
                A("s_cmp_eq_u32 s71, 0")
                A("s_cbranch_scc1 A_hsw")
            A(f"v_max_f32 v{U}, 0, v{U}")
            A(f"v_sub_f32 v{U+1}, 0, v{U}")
            A(f"v_exp_f32 v{AL}, v{U+1}")
            A(f"s_or_b32 s{sPEND}, s{sPEND}, 1")
            A(f"v_mul_f32 v{LS}, v{AL}, v{LS}")
            A(f"v_mul_f32 v{LS+1}, v{AL}, v{LS+1}")
            if par == 0: s.lab("A_hswj")
            for i in range(32): A(f"v_sub_f32 v{cur+i}, v{cur+i}, v{U}")
            for i in range(16): A(f"v_sub_f32 v{NM+i}, v{NM+i}, v{U}")
            A(f"s_branch A_resc{tagp}r")
        s.lab("A_hsw")
        s.emit(rl_lines(RL))
        A(f"v_mov_b64 {vr(LS,2)}, 0")
        A(f"s_mov_b32 s{sTHR}, {hex(fbits(THR))}")
        A(f"s_lshr_b32 s{sPEND}, s{sSTEP}, 3")
        A(f"s_add_u32 s{sPEND}, s{sPEND}, 2")
        A(f"s_lshl_b32 s{sPEND}, s{sPEND}, 3")
        A("s_branch A_hswj")
        for par in range(2):
            tagp = "e" if par == 0 else "o"
            s.lab(f"A_pend{tagp}")
            if par == 0:
                A(f"s_cmp_ge_u32 s{sPEND}, 16")
                A("s_cbranch_scc1 A_pz")
            A(f"s_bitcmp1_b32 s{sPEND}, 0")
            A(f"s_cbranch_scc0 A_pn{tagp}")
            for i in range(32):
                A(f"v_pk_mul_f32 {vr(O+2*i,2)}, {vr(O+2*i,2)}, {vr(AL,2)} op_sel_hi:[1,0]")
            s.lab(f"A_pn{tagp}")
            if par == 1:
                A(f"s_bitcmp1_b32 s{sPEND}, 2")
                A(f"s_cbranch_scc0 A_pm{tagp}")
                for i in range(8): A(f"v_mov_b64 {vr(NM+2*i,2)}, 0")
                s.lab(f"A_pm{tagp}")
            A(f"s_mov_b32 s{sPEND}, 0")
            A(f"s_branch A_pend{tagp}r")
        s.lab("A_pz")
        A(f"s_cmp_eq_u32 s{sPEND}, 24")
        A("s_cbranch_scc0 A_pz2")
        A(f"v_mov_b32 v{AL}, v{RL}")
        for D in range(4):
            s.emit(fin_D(D, WIN))
            for h in range(2):
                A(f"ds_write_b128 v{QA}, {vr(WIN+8*D+4*h,4)} offset:{(2*D+h)*1024}")
        A("s_waitcnt lgkmcnt(0)")
        s.lab("A_pz2")
        for i in range(32): A(f"v_mov_b64 {vr(O+2*i,2)}, 0")
        A(f"s_mov_b32 s{sPEND}, 0")
        A(f"s_branch A_pender")

    def waveB(s):
        A = s.A; o = s.opt
        vV, vW, vK, WA, vWO, vO, vQW, vWB = 2, 3, 4, 8, 12, 13, 14, 15
        Y, vR, vOL, VP = 16, 17, 18, 20
        XA = 24
        WIN, X, ACC = 32, 64, 192
        q = Q(63)
        nt = " nt" if o.nt else ""
        PX = [P[1], P[2], W[0], W[2]]
        s.lab("L_B")
        s.stamp("b0")
        A(f"v_mov_b32 v{vW}, v2")
        s.late_scalars()
        s.kv_voffs(vK, vV)
        A("v_lshlrev_b32 v23, 10, v19")
        A(f"v_add_u32 v{vWO}, v23, v21")
        A("v_lshrrev_b32 v22, 2, v20")
        A("v_and_b32 v23, 1, v19")
        A("v_lshlrev_b32 v28, 13, v17")
        A("v_lshlrev_b32 v29, 8, v22")
        A("v_add_u32 v28, v28, v29")
        A("v_lshlrev_b32 v29, 5, v23")
        A("v_add_u32 v28, v28, v29")
        A("v_and_b32 v29, 1, v18")
        A("v_lshlrev_b32 v29, 4, v29")
        A("v_add_u32 v28, v28, v29")
        A("v_lshrrev_b32 v29, 1, v18")
        A("v_lshlrev_b32 v29, 3, v29")
        A(f"v_add_u32 v{vWB}, v28, v29")
        A(f"v_add_u32 v28, {P[1]}, v{vWB}")
        for D in range(4):
            A(f"v_xor_b32 v29, {D}, v22")
            A(f"v_lshlrev_b32 v29, 6, v29")
            A(f"v_add_u32 v{WA+D}, v28, v29")
        A("v_and_b32 v28, 31, v1")
        A("v_lshrrev_b32 v29, 1, v28")
        A("v_and_b32 v29, 7, v29")
        A("v_lshlrev_b32 v30, 2, v17")
        A("v_xor_b32 v29, v29, v30")
        A("v_lshlrev_b32 v28, 7, v28")
        A(f"s_add_u32 s70, s{sW4K}, {P[1]}")
        A("v_add_u32 v28, s70, v28")
        for j in range(4):
            A(f"v_xor_b32 v30, {j}, v29")
            A(f"v_lshlrev_b32 v30, 4, v30")
            A(f"v_add_u32 v{XA+j}, v28, v30")
        A(f"v_mul_u32_u24 v{vO}, 448, v17")
        A("v_and_b32 v29, 31, v1")
        A(f"v_add_u32 v{vO}, v{vO}, v29")
        A(f"s_lshl_b32 s70, s{sW}, 5")
        A(f"v_add_u32 v{vO}, s70, v{vO}")
        A(f"v_lshlrev_b32 v{vO}, 4, v{vO}")
        A(f"s_lshl_b32 s70, s{sW}, 13")
        A(f"s_add_u32 s70, s70, {W[0]}")
        A(f"v_lshlrev_b32 v{vQW}, 4, v1")
        A(f"v_add_u32 v{vQW}, s70, v{vQW}")
        A(f"v_lshlrev_b32 v30, 11, v17")
        A(f"v_lshlrev_b32 v29, 4, v29")
        A(f"v_add_u32 v30, v30, v29")
        A(f"s_add_u32 s70, s70, 16384")
        A(f"v_add_u32 v31, s70, v30")
        A(f"v_mov_b32 v{vOL}, v31")
        A(f"v_mov_b32 v{vR}, v22")
        A(f"v_add_u32 v{Y}, 3584, v{vO}")
        A(f"s_lshl_b32 s70, s{sHG}, 20")
        A(f"s_lshl_b32 s71, s{sW}, 14")
        A("s_add_u32 s70, s70, s71")
        A(f"s_lshl_b32 s71, s{sHP}, 8")
        A(f"s_add_u32 s{sWOB}, s70, s71")
        A(f"s_lshl_b32 s70, s{sBR}, 3")
        A(f"s_add_u32 s70, s70, s{sB}")
        A(f"s_lshl_b32 s70, s70, 5")
        A(f"s_lshl_b32 s71, s{sHG}, 3")
        A(f"s_add_u32 s70, s70, s71")
        A(f"s_mul_i32 s73, s70, {UNIT}")
        for p in range(4):
            A(f"s_add_u32 s70, s{sHP}, {p}")
            A("s_and_b32 s70, s70, 3")
            A(f"s_lshl_b32 s71, s70, 18")
            A(f"s_add_u32 s{sWP+p}, s{sWOB}, s71")
            A(f"s_mul_i32 s71, s70, {2*UNIT}")
            A(f"s_add_u32 s{sOP+p}, s73, s71")
        A(f"s_mov_b32 s74, {hex(fbits(CSCALE))}")
        sCS = 74

        def wait_vm(tags):
            n = q.wait(tags)
            if n is not None: A(f"s_waitcnt vmcnt({n})")
        def mat(groups):
            out = []
            for tag, ins in groups:
                q.issue(tag); out.append(ins)
            return out
        def dma_wo(rr, p, half, slot):
            g = []
            for t in range(4):
                pre = [f"s_add_u32 m0, s{sW4K}, {slot}"] if t == 0 else []
                g.append((f"O{rr}{p}{half}", pre + [f"s_add_u32 s71, s{sWP+p}, {(rr*128 + 64*half)*1024 + t*3072}",
                          f"buffer_load_dwordx4 v{vWO}, {srd(sWO)}, s71 offen offset:{t*1024} lds"]))
            return g
        def of_mem(rr, p, half, tag, store=False):
            g = []
            xb = 2*p + half
            for jj in range(2):
                va = vO if jj == 0 else Y
                ins = [f"s_add_u32 s72, s{sOP+p}, {rr*UNIT + half*8*1792}", f"s_mov_b64 exec, s[{sEXLO}:{sEXHI}]"]
                for j in (2*jj, 2*jj+1):
                    op = "buffer_store_dwordx4" if store else "buffer_load_dwordx4"
                    ins.append(f"{op} {vr(X+16*xb+4*j,4)}, v{va}, {srd(sWS)}, s72 offen offset:{(j&1)*1792} sc1")
                ins.append("s_mov_b64 exec, -1")
                g.append(((tag, tag), ins))
            return g
        def mat2(groups):
            out = []
            for tag, ins in groups:
                if isinstance(tag, tuple):
                    for t_ in tag: q.issue(t_)
                else: q.issue(tag)
                out.append(ins)
            return out

        s.wbase = P[1]; s.xbase = P[1]
        def rebase_lines(regs, cur, nb):
            d = (nb - cur) & 0xffffffff
            return [f"v_add_u32 v{r}, {hex(d)}, v{r}" for r in regs]
        def base_for(slot, cur):
            if 0 <= slot - cur <= 49152: return cur
            for b in (P[1], W[0], P[0], P[2]):
                if 0 <= slot - b <= 49152: return b
            raise ValueError
        LA = o.la
        def frags_c(lst):
            fr = []
            for ci, (slot, xb, first) in enumerate(lst):
                fr += [(slot, xb, first and j == 0, j, D, ci) for j in range(4) for D in range(4)]
            return fr
        def stream(fr, fillers=None, prologue=False, gapfill=None):
            n = len(fr)
            lq = Q(15)
            def xrd(ci, j):
                slot = PX[ci % 4]; r = []
                nb = base_for(slot, s.xbase)
                if nb != s.xbase:
                    r += rebase_lines(range(XA, XA+4), s.xbase, nb); s.xbase = nb
                lq.issue(f"X{ci}_{j}")
                r.append(f"ds_read_b128 {vr(X+16*ci+4*j,4)}, v{XA+j} offset:{slot - s.xbase}")
                return r
            def rd(f):
                slot, xb, zero, j, D, ci = fr[f]; r = []
                if prologue and j == 0 and D == 0 and ci > 0:
                    r += s.stamp_lines(f"x{ci}")
                    r.append("s_barrier")
                    r += s.stamp_lines(f"p{ci}")
                nb = base_for(slot, s.wbase)
                if nb != s.wbase:
                    r += rebase_lines(range(WA, WA+4), s.wbase, nb); s.wbase = nb
                if prologue and D == 0: r += xrd(ci, j)
                for a in range(2):
                    lq.issue(f)
                    r.append(f"ds_read_b64_tr_b16 {vr(WIN+4*(f%8)+2*a,2)}, v{WA+D} offset:{slot-s.wbase + j*2048 + a*1024}")
                return r
            gaps = gapfill if gapfill is not None else [[] for _ in range(n)]
            if fillers: spread(gaps, fillers, 0, n)
            for f in range(min(LA, n)): s.emit(rd(f))
            issued = min(LA, n)
            for f in range(n):
                slot, xb, zero, j, D, ci = fr[f]
                k = lq.wait([f, f + 1] if (f % 2 == 0 and f + 1 < issued) else [f])
                if k is not None: A(f"s_waitcnt lgkmcnt({k})")
                srcC = "0" if zero else vr(ACC+16*D, 16)
                A(f"v_mfma_f32_32x32x16_bf16 {vr(ACC+16*D,16)}, {vr(WIN+4*(f%8),4)}, {vr(X+16*xb+4*j,4)}, {srcC}")
                if issued < n:
                    s.emit(rd(issued)); issued += 1
                s.emit(gaps[f])
        def write_q(base_off):
            for D in range(4):
                for i in range(16):
                    A(f"v_mul_f32 v{ACC+16*D+i}, s{sCS}, v{ACC+16*D+i}")
                for h in range(2):
                    f = 2*D + h
                    for i in range(4):
                        A(f"v_cvt_pk_bf16_f32 v{WIN+4*f+i}, v{ACC+16*D+8*h+2*i}, v{ACC+16*D+8*h+2*i+1}")
                    A(f"ds_write_b128 v{vQW}, {vr(WIN+4*f,4)} offset:{base_off + f*1024}")
            A("s_waitcnt lgkmcnt(0)")
        def pair(j):
            a = s.dma_k(j, vK, nt, f"KV{j}") if j <= 15 else []
            b = s.dma_v(j, vV, nt, f"KV{j}") if j >= 1 else []
            return a + b
        def own_frags():
            for half in range(2):
                for j in range(4):
                    A(f"ds_read_b128 {vr(X+16*half+4*j,4)}, v{vOL} offset:{half*4096 + j*512}")
            A("s_waitcnt lgkmcnt(0)")

        s.stamp("x0")
        A("s_barrier")
        s.stamp("p0")
        stream(frags_c([(PX[c % 4] + 16384, c, c == 0) for c in range(8)]), None, prologue=True)
        write_q(0)
        s.stamp("pro")
        def poll_check(vsrc, shift):
            A(f"v_readfirstlane_b32 s70, v{vsrc} ; @val=POLL")
            if shift == 0:
                A("s_lshr_b32 s71, s70, 1"); A("s_or_b32 s70, s70, s71")
            else:
                A(f"s_lshr_b32 s70, s70, {shift}")
            A("s_and_b32 s70, s70, 0x01010101")
            A("s_cmp_eq_u32 s70, 0x01010101")
        wq_slot = lambda c: (P[0] + 16384) if c == 0 else W[(c + 1) % 4]
        wq_issue = {0: [1, 2], 1: [3], 2: [4], 3: [5], 4: [6], 5: [7]}
        wo0_slot = {(0,0): W[3], (0,1): W[0], (1,0): W[1], (1,1): W[2], (2,0): W[3], (2,1): W[0], (3,0): W[1], (3,1): W[2]}
        wo0_issue = {7: [(0,0)], 8: [(0,1)], 10: [(1,0), (1,1), (2,0)], 11: [(2,1)], 14: [(3,0), (3,1)]}
        wo0_use = {9: [(0,0)], 10: [(0,1)], 13: [(1,0), (1,1)], 14: [(2,0), (2,1)], 15: [(3,0), (3,1)]}
        of0_issue = {12: [1, 2], 13: [3]}
        wo1_slot = {(0,0): P[1], (0,1): W[0], (1,0): W[3], (1,1): P[2], (2,0): P[2] + 16384, (2,1): W[1], (3,0): W[2], (3,1): P[1] + 16384}
        wo1_issue = {14: [(0,0)], 15: [(0,1), (1,0), (1,1), (2,0)], 16: [(2,1), (3,0)]}
        for st in range(17):
            s.stamp(f"c{st}")
            tags = [f"KV{st}"]
            if 1 <= st <= 7: tags.append(f"Q{st}")
            for (p, h) in wo0_use.get(st, []):
                tags += [f"O0{p}{h}", f"F{p}"]
            if st == 10: tags.append("S0")
            if st == 12: tags.append("POLL")
            wait_vm(tags)
            s.stamp(f"w{st}")
            A("s_barrier")
            s.stamp(f"s{st}")
            if st == 8:
                for d in range(4):
                    A(f"s_add_u32 s70, s{sHG}, {1 + d}")
                    A("s_and_b32 s70, s70, 3")
                    A(f"v_xor_b32 v29, s70, v{vR}")
                    A("v_lshlrev_b32 v29, 6, v29")
                    A(f"v_add_u32 v29, v29, v{vWB}")
                    A(f"v_add_u32 v{WA+d}, {s.wbase}, v29")
            pre_groups = []
            if st == 9:
                own_frags()
                pre_groups = of_mem(0, 0, 0, "S0", store=True) + of_mem(0, 0, 1, "S0", store=True)
            if st == 10:
                A(f"s_cmp_lg_u32 s{sW}, 0")
                A("s_cbranch_scc1 B_nf1")
                s.flag_store(1, 21)
                s.lab("B_nf1")
                q.issue("FL1w0")
                q.q.pop()
            if st == 11:
                A(f"buffer_load_dword v{VP}, off, {srd(sDBG)}, s{sGRP} sc1"); q.issue("POLL")
            if st == 12:
                poll_check(VP, 0)
                A("s_cbranch_scc0 B_slow0 ; @nottaken")
                s.lab("B_slow0r")
            g_kv = pair(st + 2) if st + 2 <= 16 else []
            g_w = []
            for c in wq_issue.get(st, []): g_w += s.dma_wq(c, wq_slot(c), vW, f"Q{c}", 256, 72)
            for (p, h) in wo0_issue.get(st, []): g_w += dma_wo(0, p, h, wo0_slot[(p, h)])
            g_f = []
            for p in of0_issue.get(st, []): g_f += of_mem(0, p, 0, f"F{p}") + of_mem(0, p, 1, f"F{p}")
            g_1 = []
            for (p, h) in wo1_issue.get(st, []): g_1 += dma_wo(1, p, h, wo1_slot[(p, h)])
            groups = pre_groups + g_f + g_kv + g_w + g_1
            mem = mat2(groups)
            use = ([(wq_slot(st), st, st == 0)] if st <= 7 else []) + \
                  [(wo0_slot[(p, h)], 2*p + h, (p, h) == (0, 0)) for (p, h) in wo0_use.get(st, [])]
            if use:
                stream(frags_c(use), mem)
                if st == 7: write_q(16384)
            else:
                for g_ in mem: s.emit(g_)
            s.stamp(f"d{st}")
        wait_vm(["O100", "O101", "O110", "O111"])
        A(f"v_add_u32 v{vOL}, {hex((P[0] - W[1]) & 0xffffffff)}, v{vOL}")
        A("s_barrier")
        s.stamp("E")
        for g_ in mat2(dma_wo(1, 3, 1, wo1_slot[(3, 1)])): s.emit(g_)
        own_frags()
        stream(frags_c([(wo1_slot[(0, 0)], 0, False), (wo1_slot[(0, 1)], 1, False)]))
        wait_vm(["O120", "O121", "O130"])
        s.stamp("own")
        A("s_barrier")
        A(f"s_mov_b32 s{sSPIN}, 0")
        s.lab("B_poll1")
        A(f"buffer_load_dword v{VP}, off, {srd(sDBG)}, s{sGRP} sc1")
        A("s_waitcnt vmcnt(0)")
        q.drain()
        poll_check(VP, 1)
        A("s_cbranch_scc1 B_poll1d ; @taken")
        A(f"s_add_u32 s{sSPIN}, s{sSPIN}, 1")
        A(f"s_cmp_lt_u32 s{sSPIN}, {o.spin}")
        A("s_cbranch_scc1 B_poll1")
        s.lab("B_poll1d")
        s.stamp("poll1")
        for p in (1, 2, 3):
            for g_ in mat2(of_mem(1, p, 0, f"G{p}") + of_mem(1, p, 1, f"G{p}")): s.emit(g_)
        A("v_lshrrev_b32 v17, 5, v1")
        A("v_mul_u32_u24 v16, 112, v17")
        A("v_and_b32 v18, 31, v1")
        A("v_add_u32 v16, v16, v18")
        A(f"s_lshl_b32 s70, s{sW}, 5")
        A("v_add_u32 v16, s70, v16")
        A("v_add_u32 v19, s70, v18")
        A("v_lshlrev_b32 v16, 4, v16")
        A(f"s_lshl_b32 s70, s{sBR}, 3")
        A(f"s_add_u32 s70, s70, s{sB}")
        A(f"s_lshl_b32 s70, s70, 2")
        A(f"s_add_u32 s70, s70, s{sHP}")
        A(f"s_mul_i32 s73, s70, {12*PSZ}")
        A(f"s_add_u32 s73, s73, {PART_BASE}")
        for d in range(3):
            A(f"s_add_u32 s70, s{sHG}, {1 + d}")
            A("s_and_b32 s70, s70, 3")
            A(f"s_mul_i32 s70, s70, {3*PSZ}")
            A(f"s_add_u32 s70, s70, s73")
            A(f"s_add_u32 s{sWP+d}, s70, {(2-d)*PSZ}")
        A("v_lshlrev_b32 v19, 11, v19")
        A("v_lshlrev_b32 v17, 4, v17")
        A("v_add_u32 v19, v19, v17")
        for p in (1, 2):
            wait_vm(f"G{p}")
            stream(frags_c([(wo1_slot[(p, 0)], 2*p, False), (wo1_slot[(p, 1)], 2*p + 1, False)]))
        wait_vm("G3")
        A("s_barrier")
        fr = []
        for d in range(4):
            for half in range(2):
                for j in range(4):
                    fr.append((wo1_slot[(3, half)], 6 + half, False, j, d, half))
        gaps = [[] for _ in range(32)]
        def pub(d):
            r = []
            for rq in range(4):
                r.append([f"s_add_u32 s70, s{sWP+d}, {rq*3584}", f"s_mov_b64 exec, s[{sEXLO}:{sEXHI}]",
                          f"buffer_store_dwordx4 {vr(ACC+16*d+4*rq,4)}, v16, {srd(sWS)}, s70 offen sc1", "s_mov_b64 exec, -1"])
            return r
        for d in range(3):
            spread(gaps, pub(d), 8*d + 8 + 3, 8*d + 8 + 7)
        stream(fr, None, gapfill=gaps)
        s.stamp("oproj")
        A("s_waitcnt vmcnt(0)")
        s.stamp("pst")
        A("s_barrier")
        A(f"s_cmp_lg_u32 s{sW}, 0")
        A("s_cbranch_scc1 B_nf3")
        s.flag_store(3, 20)
        s.lab("B_nf3")
        A(f"s_and_b32 s71, s{sGRP}, {hex(0xfffffff0)}")
        A(f"s_mov_b32 s{sSPIN}, 0")
        A(f"s_lshl_b32 s72, s{sHP}, 3")
        s.lab("B_poll2")
        A(f"buffer_load_dwordx4 v[20:23], off, {srd(sDBG)}, s71 sc1")
        A("s_waitcnt vmcnt(0)")
        A(f"v_and_b32 v20, v20, v21")
        A(f"v_and_b32 v22, v22, v23")
        A(f"v_and_b32 v20, v20, v22")
        A(f"v_readfirstlane_b32 s70, v20 ; @val=POLL3")
        A(f"s_lshr_b32 s70, s70, s72")
        A("s_and_b32 s70, s70, 3")
        A("s_cmp_eq_u32 s70, 3")
        A("s_cbranch_scc1 B_poll2d ; @taken")
        A(f"s_add_u32 s{sSPIN}, s{sSPIN}, 1")
        A(f"s_cmp_lt_u32 s{sSPIN}, {o.spin}")
        A("s_cbranch_scc1 B_poll2")
        s.lab("B_poll2d")
        s.stamp("poll2")
        A(f"s_mul_i32 s71, s{sHG}, {3*PSZ}")
        A("s_add_u32 s73, s73, s71")
        R = 64
        A(f"s_mov_b64 exec, s[{sEXLO}:{sEXHI}]")
        for src in range(3):
            for rq in range(4):
                A(f"s_add_u32 s70, s73, {src*PSZ + rq*3584}")
                A(f"buffer_load_dwordx4 {vr(R+16*src+4*rq,4)}, v16, {srd(sWS)}, s70 offen sc1")
        A(f"s_mul_i32 s70, s{sB}, {112*2048}")
        A(f"s_lshl_b32 s71, s{sBR}, 10")
        A("s_add_u32 s70, s70, s71")
        A(f"s_lshl_b32 s71, s{sHP}, 8")
        A("s_add_u32 s70, s70, s71")
        A(f"s_lshl_b32 s71, s{sHG}, 6")
        A("s_add_u32 s70, s70, s71")
        OWN = ACC + 48
        A("s_waitcnt vmcnt(8)")
        for i in range(8): A(f"v_pk_add_f32 {vr(OWN+2*i,2)}, {vr(OWN+2*i,2)}, {vr(R+2*i,2)}")
        A("s_waitcnt vmcnt(4)")
        for i in range(8): A(f"v_pk_add_f32 {vr(OWN+2*i,2)}, {vr(OWN+2*i,2)}, {vr(R+16+2*i,2)}")
        A("s_waitcnt vmcnt(0)")
        for i in range(8): A(f"v_pk_add_f32 {vr(OWN+2*i,2)}, {vr(OWN+2*i,2)}, {vr(R+32+2*i,2)}")
        for i in range(8):
            A(f"v_cvt_pk_bf16_f32 v{32+i}, v{OWN+2*i}, v{OWN+2*i+1}")
        for h in range(2):
            A(f"buffer_store_dwordx4 {vr(32+4*h,4)}, v19, {srd(sOUT)}, s70 offen offset:{h*32}")
        A("s_mov_b64 exec, -1")
        if o.stamp:
            A("s_waitcnt vmcnt(0)")
            A(f"s_cmp_lg_u32 s{sW}, 0")
            A("s_cbranch_scc1 L_end")
            s.stamp("end"); s.stamp("cend", True)
            A("s_waitcnt lgkmcnt(0)")
            n = len(o.stamps.split(","))
            assert n <= len(STAMP_REGS)
            A("s_lshl_b32 s70, s2, 8")
            A(f"s_add_u32 s70, s70, {STAMP_BASE}")
            A("s_mov_b64 exec, 1")
            for i in range(n):
                r = STAMP_REGS[i]
                A(f"v_mov_b32 v32, s{r}"); A(f"v_mov_b32 v33, s{r+1}")
                A(f"buffer_store_dwordx2 v[32:33], off, {srd(sWS)}, s70 offset:{8*i}")
                A("s_nop 1")
        A("s_endpgm")
        s.lab("B_slow0")
        A(f"s_mov_b32 s{sSPIN}, 0")
        s.lab("B_slow0l")
        A(f"buffer_load_dword v{VP}, off, {srd(sDBG)}, s{sGRP} sc1")
        A("s_waitcnt vmcnt(0)")
        poll_check(VP, 0)
        A("s_cbranch_scc1 B_slow0r ; @taken")
        A(f"s_add_u32 s{sSPIN}, s{sSPIN}, 1")
        A(f"s_cmp_lt_u32 s{sSPIN}, {o.spin}")
        A("s_cbranch_scc1 B_slow0l")
        A("s_branch B_slow0r")

    def build(s):
        s.common()
        s.waveA()
        s.waveB()
        s.lab("L_end")
        s.A("s_endpgm")
        lines = [l for l in s.L if l is not None]
        cfgs = []
        for wave in (0, 1, 3, 4, 5, 7):
            cfgs.append((f"wg5w{wave}", {2: 5}, {"WAVE": wave, "POLL": 0x03030303, "POLL3": 0x03030303}))
        cfgs.append(("allresc", {2: 5}, {"WAVE": 1, "ALLRESC": 1}))
        cfgs.append(("extra", {2: 256}, {"WAVE": 0}))
        lines = asmlib.finalize(lines, cfgs, verbose=True)
        return "\n".join(lines)

if __name__ == "__main__":
    ap = argparse.ArgumentParser()
    ap.add_argument("-o", default="k4.s")
    ap.add_argument("--stamp", action="store_true")
    ap.add_argument("--cyc", action="store_true")
    ap.add_argument("--stamps", default="start,pro,s8,E,poll1,oproj,pst,poll2,end")
    ap.add_argument("--nt", type=int, default=1)
    ap.add_argument("--prioA", type=int, default=0)
    ap.add_argument("--astamp", type=int, default=-1)
    ap.add_argument("--la", type=int, default=6)
    ap.add_argument("--nbub", type=int, default=3)
    ap.add_argument("--rot", type=int, default=1)
    ap.add_argument("--k0at", type=int, default=5)
    ap.add_argument("--spin", type=int, default=0x8000)
    o = ap.parse_args()
    g = Gen(o)
    body = g.build()
    k = kernel_text(NAME + "_kernel", body, vgpr=256)
    hdr = ["; @launch grid=(256,1,1) block=(512,1,1) lds=163840"]
    if o.stamp: hdr.append("; STAMPS " + o.stamps)
    if o.astamp >= 0: hdr.append("; ASTAMP")
    if o.cyc: hdr.append("; STAMPCYC")
    open(o.o, "w").write(file_text(hdr, [k]))
    print("wrote", o.o, len(body.splitlines()), "lines")
```

```python
import sys, argparse, struct
from gen_common import *
import asmlib

P = [0, 32768, 65536]
W = [98304, 114688, 131072, 147456]
UNIT = 28672
PART_BASE = 16 << 20
PSZ = 14336
STAMP_BASE = 128 << 20
FLAG_BASE = 32 << 20
THR = 12.0

sK, sV, sWQ, sX, sWS, sWO, sOUT, sDBG = 4, 8, 12, 16, 20, 24, 28, 32
sWAVE, sW, sBR, sHG, sB, sHP, sH0, sKV = 62, 63, 64, 65, 66, 67, 68, 69
sXB, sPEND = 72, 73
sEV, sTHR, sPAT = 74, 75, 76
sSTEP, sROT, sNEG, sOBASE = 77, 78, 79, 80
sW4K, sWQB, sKVW, sWOB, sGRP, sMYB = 81, 82, 83, 84, 85, 86
sSPIN = 87
sEXLO, sEXHI = 88, 89
sPOS = 3
sWP, sOP = 54, 58
STAMP_REGS = [90, 92, 94, 96, 98, 100] + list(range(36, 54, 2))

def srd(r): return f"s[{r}:{r+3}]"
def vr(a, n=1): return f"v{a}" if n == 1 else f"v[{a}:{a+n-1}]"
def fbits(x): return struct.unpack('<I', struct.pack('<f', x))[0]
CSCALE = (128 ** -0.5) * 1.4426950408889634

class Q:
    def __init__(s, maxn): s.q = []; s.maxn = maxn
    def issue(s, tag):
        s.q.append(tag)
        assert len(s.q) <= s.maxn, ("counter overflow", s.q)
    def wait(s, tags):
        if isinstance(tags, str): tags = [tags]
        last = -1
        for i, t in enumerate(s.q):
            if t in tags: last = i
        if last < 0: return None
        n = len(s.q) - 1 - last
        s.q = s.q[last + 1:]
        return n
    def drain(s): s.q = []

def spread(slots, items, start=0, end=None):
    if end is None: end = len(slots)
    n = end - start
    m = len(items)
    for i, it in enumerate(items):
        k = start + (i * n) // m
        slots[k].extend(it)

class Gen:
    def __init__(s, opt):
        s.L = []; s.opt = opt
        f = lambda b: " nt" if b else ""
        s.ntw, s.ntx, s.nto, s.nths, s.nthl = f(opt.ntw), f(opt.ntx), f(opt.nto), f(opt.nths), f(opt.nthl)
    def A(s, t): s.L.append("  " + t)
    def lab(s, n): s.L.append(n + ":")
    def emit(s, lines):
        for l in lines:
            if l.endswith(":"): s.L.append(l)
            else: s.L.append("  " + l)
    def stamp_lines(s, name, cyc=False):
        if not s.opt.stamp: return []
        names = s.opt.stamps.split(",")
        if name not in names: return []
        r = STAMP_REGS[names.index(name)]
        cyc = cyc or s.opt.cyc
        return [f"s_mem{'time' if cyc else 'realtime'} s[{r}:{r+1}]"]
    def stamp(s, name, cyc=False): s.emit(s.stamp_lines(name, cyc))
    def ast(s, i):
        return [f"s_memtime s[{36+2*i}:{37+2*i}]"] if s.opt.astamp >= 0 else []

    def common(s):
        A = s.A
        A("s_cmp_ge_u32 s2, 256")
        A("s_cbranch_scc1 L_end")
        s.stamp("start"); s.stamp("cstart", True)
        A("s_load_dwordx16 s[36:51], s[0:1], 0")
        A("s_load_dwordx8 s[52:59], s[0:1], 64")
        A("s_load_dwordx2 s[60:61], s[0:1], 96")
        A("v_lshrrev_b32 v1, 6, v0")
        A("s_and_b32 s70, s2, 7")
        A("s_lshr_b32 s71, s2, 3")
        A(f"v_readfirstlane_b32 s{sWAVE}, v1 ; @val=WAVE")
        A(f"s_lshr_b32 s{sBR}, s70, 2")
        A(f"s_and_b32 s{sHG}, s70, 3")
        A(f"s_and_b32 s{sB}, s71, 7")
        A(f"s_lshr_b32 s{sHP}, s71, 3")
        A(f"s_lshl_b32 s{sH0}, s{sHG}, 3")
        A(f"s_lshl_b32 s70, s{sHP}, 1")
        A(f"s_add_u32 s{sH0}, s{sH0}, s70")
        A(f"s_add_u32 s{sROT}, s{sB}, s70")
        if not s.opt.rot: A(f"s_mov_b32 s{sROT}, 0")
        A(f"s_and_b32 s{sW}, s{sWAVE}, 3")
        A(f"s_lshl_b32 s{sW4K}, s{sW}, 12")
        A("v_and_b32 v1, 63, v0")
        A("v_lshrrev_b32 v19, 4, v1")
        A("v_and_b32 v20, 15, v1")
        A("v_lshlrev_b32 v21, 2, v19")
        A("v_xor_b32 v21, v20, v21")
        A("v_lshlrev_b32 v21, 4, v21")
        A("v_lshrrev_b32 v17, 5, v1")
        A("v_and_b32 v18, 3, v1")
        A("v_lshlrev_b32 v2, 13, v19")
        A("v_add_u32 v2, v2, v21")
        A("v_lshrrev_b32 v22, 3, v1")
        A("v_lshlrev_b32 v22, 10, v22")
        A("v_and_b32 v23, 7, v1")
        A("v_xor_b32 v23, v23, v19")
        A("v_lshlrev_b32 v24, 4, v23")
        A("v_add_u32 v3, v22, v24")
        A("v_xor_b32 v24, 64, v24")
        A("v_add_u32 v4, v22, v24")
        for r, sz in ((sK, 33554432), (sV, 33554432), (sWQ, 4194304), (sWS, 268435456), (sWO, 4194304), (sOUT, 1835008), (sDBG, 256)):
            A(f"s_mov_b32 s{r+2}, {sz}")
            A(f"s_mov_b32 s{r+3}, 0x20000")
        A(f"s_mov_b32 s{sX+3}, 0x20000")
        A(f"s_lshl_b32 s70, s{sW}, 17")
        A(f"s_lshl_b32 s71, s{sH0}, 8")
        A(f"s_add_u32 s{sWQB}, s70, s71")
        A(f"s_mul_i32 s70, s{sB}, 112")
        A(f"s_add_u32 s71, s70, 112")
        A(f"s_lshl_b32 s{sX+2}, s71, 10")
        A(f"s_lshl_b32 s71, s{sW}, 5")
        A("s_add_u32 s70, s70, s71")
        A(f"s_lshl_b32 s{sXB}, s70, 10")
        A(f"s_lshl_b32 s70, s{sB}, 5")
        A(f"s_add_u32 s70, s70, s{sH0}")
        A(f"s_lshl_b32 s{sKV}, s70, 17")
        A(f"s_add_u32 s{sKVW}, s{sKV}, s{sW4K}")
        A(f"s_cmp_eq_u32 s{sBR}, 0")
        A("s_waitcnt lgkmcnt(0)")
        s.stamp("k")
        for r, a, b in ((sX, 36, 46), (sWQ, 42, 52), (sK, 38, 48), (sV, 40, 50), (sWO, 44, 54)):
            A(f"s_cselect_b32 s{r}, s{a}, s{b}")
            A(f"s_cselect_b32 s{r+1}, s{a+1}, s{b+1}")
        for r, a in ((sOUT, 56), (sDBG, 58), (sWS, 60)):
            A(f"s_mov_b32 s{r}, s{a}")
            A(f"s_mov_b32 s{r+1}, s{a+1}")
        A(f"s_cmp_ge_u32 s{sWAVE}, 4")
        A("s_cbranch_scc1 L_B")

    def late_scalars(s):
        A = s.A
        A(f"s_lshl_b32 s70, s{sBR}, 3")
        A(f"s_add_u32 s70, s70, s{sB}")
        A(f"s_lshl_b32 s71, s70, 5")
        A(f"s_add_u32 s71, s71, s{sH0}")
        A(f"s_mul_i32 s{sOBASE}, s71, {UNIT}")
        A(f"s_lshl_b32 s71, s70, 2")
        A(f"s_add_u32 s71, s71, s{sHG}")
        A(f"s_lshl_b32 s{sGRP}, s71, 2")
        A(f"s_add_u32 s{sMYB}, s{sGRP}, s{sHP}")
        A(f"s_cmp_eq_u32 s{sW}, 3")
        A(f"s_cselect_b32 s{sEXLO}, 0xffff, -1")
        A(f"s_mov_b32 s{sEXHI}, s{sEXLO}")

    def kv_voffs(s, vK, vV):
        A = s.A
        A("v_lshlrev_b32 v22, 8, v19")
        A(f"v_add_u32 v{vV}, v22, v21")
        for t in range(4):
            A(f"v_add_u32 v23, {4*t}, v19")
            A(f"v_xor_b32 v23, v20, v23")
            A(f"v_lshlrev_b32 v23, 4, v23")
            A(f"v_add_u32 v{vK+t}, v22, v23")

    def flag_store(s, val, vtmp):
        A = s.A
        A(f"v_mov_b32 v{vtmp}, {val}")
        A("s_mov_b64 exec, 1")
        A(f"buffer_store_byte v{vtmp}, off, {srd(sDBG)}, s{sMYB} sc1")
        A("s_mov_b64 exec, -1")

    def dma_k(s, j, vK, nt, tag):
        g = []
        for t in range(4):
            pre = [f"s_add_u32 m0, s{sW4K}, {P[j%3]}", f"s_add_u32 s70, s{sKVW}, {j*16384}"] if t == 0 else []
            g.append((tag, pre + [f"buffer_load_dwordx4 v{vK+t}, {srd(sK)}, s70 offen offset:{t*1024}{nt} lds"]))
        return g
    def dma_v(s, j, vV, nt, tag):
        g = []
        for t in range(4):
            pre = [f"s_add_u32 m0, s{sW4K}, {P[j%3]+16384}", f"s_add_u32 s70, s{sKVW}, {(j-1)*16384}"] if t == 0 else []
            g.append((tag, pre + [f"buffer_load_dwordx4 v{vV}, {srd(sV)}, s70 offen offset:{t*1024}{nt} lds"]))
        return g
    def kc_lines(s, c, dst):
        return [f"s_add_u32 s{dst}, s{sROT}, {c}", f"s_and_b32 s{dst}, s{dst}, 7"]
    def dma_wq(s, c, slot, vW, tag, extra, tmp):
        g = []
        for t in range(4):
            pre = []
            if t == 0:
                pre = s.kc_lines(c, tmp) + [f"s_lshl_b32 s{tmp}, s{tmp}, 19", f"s_add_u32 s{tmp}, s{tmp}, s{sWQB}",
                                            f"s_add_u32 m0, s{sW4K}, {slot}"]
            g.append((tag, pre + [f"s_add_u32 s71, s{tmp}, {extra + t*31744}",
                                  f"buffer_load_dwordx4 v{vW}, {srd(sWQ)}, s71 offen offset:{t*1024}{s.ntw} lds"]))
        return g

    def waveA(s):
        A = s.A; o = s.opt
        nt = " nt" if o.nt else ""
        Q_, SB, Pr, O, WIN, NM = 0, [32, 64], 96, 112, 176, 208
        KA, VA, QA, OV, RL = 224, 232, 236, 237, 238
        LS, AL, T = 240, 242, 244
        vK, vV = 5, 9
        q = Q(63)
        PX = [P[1], P[2], W[0], W[2]]
        def dma_x(c):
            g = []
            for t in range(4):
                pre = []
                if t == 0:
                    pre = s.kc_lines(c, 87) + ["s_lshl_b32 s87, s87, 7", f"s_add_u32 s87, s87, s{sXB}", f"s_add_u32 m0, s{sW4K}, {PX[c%4]}"]
                g.append((f"C{c}", pre + [f"s_add_u32 s71, s87, {t*7168}",
                                          f"buffer_load_dwordx4 v{3 + (t&1)}, {srd(sX)}, s71 offen offset:{t*1024}{s.ntx} lds"]))
            return g
        def issue(groups):
            for tag, ins in groups:
                q.issue(tag); s.emit(ins)
        def chunk(c): return dma_x(c) + s.dma_wq(c, PX[c % 4] + 16384, 2, f"C{c}", 0, 87)
        issue(chunk(0))
        s.stamp("a0")
        issue(chunk(1))
        s.late_scalars()
        s.kv_voffs(vK, vV)
        A("v_and_b32 v10, 31, v1")
        A("v_lshlrev_b32 v10, 8, v10")
        A("v_xor_b32 v11, v17, v20")
        for k in range(8):
            A(f"v_xor_b32 v12, {2*k}, v11")
            A(f"v_lshlrev_b32 v12, 4, v12")
            A(f"v_add_u32 v{KA+k}, v10, v12")
        A("v_lshrrev_b32 v10, 2, v20")
        A("v_and_b32 v11, 1, v19")
        A("v_lshlrev_b32 v12, 10, v17")
        A("v_lshlrev_b32 v13, 8, v10")
        A("v_add_u32 v12, v12, v13")
        A("v_lshlrev_b32 v13, 5, v11")
        A("v_add_u32 v12, v12, v13")
        A("v_and_b32 v13, 1, v18")
        A("v_lshlrev_b32 v13, 4, v13")
        A("v_add_u32 v12, v12, v13")
        A("v_lshrrev_b32 v13, 1, v18")
        A("v_lshlrev_b32 v13, 3, v13")
        A("v_add_u32 v12, v12, v13")
        A("v_add_u32 v12, 16384, v12")
        for D in range(4):
            A(f"v_xor_b32 v13, {D}, v10")
            A(f"v_lshlrev_b32 v13, 6, v13")
            A(f"v_add_u32 v{VA+D}, v12, v13")
        A(f"s_lshl_b32 s70, s{sW}, 13")
        A(f"s_add_u32 s70, s70, {W[0]}")
        A(f"v_lshlrev_b32 v{QA}, 4, v1")
        A(f"v_add_u32 v{QA}, s70, v{QA}")
        A(f"v_mul_u32_u24 v{OV}, 112, v17")
        A(f"v_and_b32 v12, 31, v1")
        A(f"v_add_u32 v{OV}, v{OV}, v12")
        A(f"s_lshl_b32 s70, s{sW}, 5")
        A(f"v_add_u32 v{OV}, s70, v{OV}")
        A(f"v_lshlrev_b32 v{OV}, 4, v{OV}")
        for i in range(8): A(f"v_mov_b64 {vr(NM+2*i,2)}, 0")
        A(f"v_mov_b64 {vr(LS,2)}, 0")
        A(f"s_mov_b32 s{sEV}, {hex((1<<0)|(1<<8)|(1<<1)|(1<<7))}")
        A(f"s_mov_b32 s{sPAT}, {hex(sum(1 << i for i in range(2, 17, 3)))}")
        A(f"s_mov_b32 s{sNEG}, 0xffff0000")
        A(f"s_mov_b32 s{sPOS}, 32768")
        A(f"s_mov_b32 s{sTHR}, {hex(fbits(THR))}")
        A(f"s_mov_b32 s{sSTEP}, 0")
        A(f"s_mov_b32 s{sPEND}, 0")
        A(f"s_add_u32 s{sOBASE}, s{sOBASE}, {UNIT}")
        for k in range(8):
            n = q.wait(f"C{k}")
            if n is not None: A(f"s_waitcnt vmcnt({n})")
            s.stamp(f"aw{k}")
            A("s_barrier")
            if k + 2 < 8: issue(chunk(k + 2))
            if k == o.k0at: issue(s.dma_k(0, vK, nt, "K0"))
            if k == 5: issue(s.dma_wq(0, P[0] + 16384, 2, "Q0", 256, 87))
            if k == 6: issue(s.dma_k(1, vK, nt, "KV1") + s.dma_v(1, vV, nt, "KV1"))
        n0 = q.wait(["K0", "Q0"])
        assert n0 == 8, n0
        if o.prioA: A(f"s_setprio {o.prioA}")

        U = T + 4
        def fin_D(D, dst):
            L = [f"v_mul_f32 v{O+16*D+i}, v{AL}, v{O+16*D+i}" for i in range(16)]
            L += [f"v_cvt_pk_bf16_f32 v{dst+8*D+i}, v{O+16*D+2*i}, v{O+16*D+2*i+1}" for i in range(8)]
            return L
        def step(par, last=False):
            cur, prev = SB[par], SB[1 - par]
            lq = Q(15)
            L = []
            def wl(tags):
                n = lq.wait(tags)
                return [f"s_waitcnt lgkmcnt({n})"] if n is not None else []
            def kread(i):
                T_, k = divmod(i, 8); lq.issue(f"K{i}")
                return [f"ds_read_b128 {vr(WIN + 4*(i % 8), 4)}, v{KA+k} offset:{T_*8192}"]
            vorder = [divmod(f, 4) for f in range(16)] if not last else [(t, D) for D in range(4) for t in range(4)]
            def vread(f):
                t, D = vorder[f]; r = []
                for a in range(2):
                    lq.issue(f"V{f}")
                    r.append(f"ds_read_b64_tr_b16 {vr(WIN + 4*(f % 8) + 2*a, 2)}, v{VA+D} offset:{t*4096 + a*2048}")
                return r
            exp = lambda r: [f"v_exp_f32 v{r}, v{r}"]
            add = lambda r: [f"v_add_f32 v{LS + (r & 1)}, v{LS + (r & 1)}, v{r}"]
            cvt = lambda t, i: [f"v_cvt_pk_bf16_f32 v{Pr+4*t+i}, v{prev+8*t+2*i}, v{prev+8*t+2*i+1}"]
            mx = lambda d, a, b, c: [f"v_max3_f32 v{d}, v{a}, v{b}, v{c}"]
            bub = []
            for i in range(4): bub += [cvt(0, i), add(prev + 2*i), add(prev + 2*i + 1)]
            for i in range(4): bub += [cvt(1, i), add(prev + 8 + 2*i), add(prev + 8 + 2*i + 1)]
            F1 = []
            e = [exp(prev + 16 + i) for i in range(16)]
            a_ = [add(prev + 16 + i) for i in range(16)]
            c2 = [cvt(2, i) for i in range(4)]; c3 = [cvt(3, i) for i in range(4)]
            F1 += [e[0], e[1], e[2]]
            for i in range(3, 16):
                F1 += [e[i], a_[i - 3]]
                if i in (5, 7, 9, 11): F1.append(c2[(i - 5) // 2])
                if i in (13, 15): F1.append(c3[(i - 13) // 2])
            F1 += [a_[13], c3[2], a_[14], a_[15], c3[3]]
            def maxT(base, d0, d1):
                return [mx(d0, base, base+1, base+2), mx(d1, base+8, base+9, base+10),
                        mx(d0, d0, base+3, base+4), mx(d1, d1, base+11, base+12),
                        mx(d0, d0, base+5, base+6), mx(d1, d1, base+13, base+14),
                        mx(d0, d0, base+7, base+15)]
            M0 = maxT(cur, U, U+1)
            M1 = maxT(cur+16, U+2, U+3)
            fin = [mx(U, U, U+1, U+2), [f"v_max_f32 v{U}, v{U}, v{U+3}"]]
            tagp = "e" if par == 0 else "o"
            chk = [f"v_cmp_lt_f32 vcc, s{sTHR}, v{U}",
                   f"s_nop 0",
                   f"s_cbranch_vccnz A_resc{tagp} ; @takenif={sTHR}:0xff800000",
                   f"A_resc{tagp}r:"]
            advK = [[f"v_add_u32 v{KA+k}, s70, v{KA+k}"] for k in range(8)]
            advV = [[f"v_add_u32 v{VA+D}, s70, v{VA+D}"] for D in range(4)]
            exps1 = [exp(cur+i) for i in range(16)]

            L += s.ast(1)
            if not last:
                for i in range(8): L += kread(i)
                for it in bub: L += it
                nb = o.nbub
                for it in F1[:nb]: L += it
                gaps = [[] for _ in range(16)]
                spread(gaps, F1[nb:], 0, 14)
                spread(gaps, M0, 10, 16)
                for i in range(16):
                    T_, k = divmod(i, 8)
                    if i % 2 == 0: L += wl([f"K{i}", f"K{i+1}"])
                    srcC = vr(NM, 16) if k == 0 else vr(cur + 16*T_, 16)
                    L.append(f"v_mfma_f32_32x32x16_bf16 {vr(cur+16*T_,16)}, {vr(WIN+4*(i%8),4)}, {vr(Q_+4*k,4)}, {srcC}")
                    if i + 8 < 16: L += kread(i + 8)
                    if i >= 9: L += vread(i - 9)
                    L += gaps[i]
                    if i == 7: L += s.ast(2)
                L += s.ast(3)
                vissued = 7
                gaps = [[] for _ in range(16)]
                spread(gaps, advK[:4], 0, 2)
                spread(gaps, M1 + fin, 2, 5)
                gaps[5] += chk
                spread(gaps, exps1, 5, 16)
                spread(gaps, advK[4:], 6, 10)
                spread(gaps, advV, 10, 14)
                L += [f"s_bitcmp1_b32 s{sPAT}, s{sSTEP}", f"s_cselect_b32 s70, s{sNEG}, s{sPOS}"]
            else:
                for f in range(7): L += vread(f)
                vissued = 7
                for it in bub: L += it
                for it in F1: L += it
                L += rl_lines(AL)
                L.append(f"v_add_u32 v{QA}, {hex((P[0] - W[1]) & 0xffffffff)}, v{QA}")
                gaps = [[] for _ in range(16)]
                for D in range(3):
                    items = [[x] for x in fin_D(D, cur)] + [out_D(D, cur)]
                    spread(gaps, items, 4*D + 6 if D < 2 else 14, 4*D + 10 if D < 2 else 16)
            for f in range(16):
                t, D = vorder[f]
                if f % 2 == 0: L += wl([f"V{f}", f"V{f+1}"])
                L.append(f"v_mfma_f32_32x32x16_bf16 {vr(O+16*D,16)}, {vr(WIN+4*(f%8),4)}, {vr(Pr+4*t,4)}, {vr(O+16*D,16)}")
                if vissued < 16:
                    L += vread(vissued); vissued += 1
                L += gaps[f]
                if f == 6 and not last: L += s.ast(4)
            if not last:
                L += s.ast(5)
                L += [f"s_cmp_lg_u32 s{sPEND}, 0", f"s_cbranch_scc1 A_pend{tagp}", f"A_pend{tagp}r:"]
                L += s.ast(6)
                if s.opt.astamp >= 0:
                    L += ["s_waitcnt lgkmcnt(0)", f"s_cmp_eq_u32 s{sSTEP}, {s.opt.astamp}"]
                    L += [f"s_cselect_b32 s{50+i}, s{36+2*i}, s{50+i}" for i in range(7)]
            else:
                L += fin_D(3, cur) + out_D(3, cur)
            return L
        def out_D(D, src):
            L = []
            for h in range(2):
                L.append(f"ds_write_b128 v{QA}, {vr(src+8*D+4*h,4)} offset:{(2*D+h)*1024}")
            L.append(f"s_mov_b64 exec, s[{sEXLO}:{sEXHI}]")
            for h in range(2):
                L.append(f"s_add_u32 s71, s{sOBASE}, {(4*D+2*h)*1792}")
                L.append(f"buffer_store_dwordx4 {vr(src+8*D+4*h,4)}, v{OV}, {srd(sWS)}, s71 offen sc1{s.nths}")
            L.append("s_mov_b64 exec, -1")
            return L
        def rl_lines(dst):
            return [f"v_add_f32 v{T}, v{LS}, v{LS+1}", f"v_mov_b32 v{T+1}, v{T}", f"v_permlane32_swap_b32 v{T}, v{T+1}",
                    f"v_add_f32 v{T}, v{T}, v{T+1}", f"v_rcp_f32 v{dst}, v{T}"]

        s.lab("A_loop")
        for par in range(2):
            tagp = "e" if par == 0 else "o"
            s.emit(s.ast(0))
            A(f"s_bitcmp1_b32 s{sEV}, s{sSTEP}")
            A(f"s_cbranch_scc1 A_top{tagp}")
            A("s_barrier")
            s.lab(f"A_top{tagp}r")
            s.emit(step(par))
            A(f"s_add_u32 s{sSTEP}, s{sSTEP}, 1")
        A(f"s_cmp_lt_u32 s{sSTEP}, 16")
        A("s_cbranch_scc1 A_loop")
        A("s_barrier")
        s.emit(step(0, last=True))
        A("s_waitcnt lgkmcnt(0)")
        A("s_barrier")
        A(f"s_lshl_b32 s70, s{sMYB}, 7")
        A(f"s_add_u32 s70, s70, {FLAG_BASE}")
        A(f"s_lshl_b32 s71, s{sW}, 2")
        A("s_add_u32 s70, s70, s71")
        A(f"v_mov_b32 v{T}, 1")
        A("s_waitcnt vmcnt(0)")
        A("s_mov_b64 exec, 1")
        A(f"buffer_store_dword v{T}, off, {srd(sWS)}, s70 sc1")
        A("s_mov_b64 exec, -1")
        if o.astamp >= 0:
            A(f"s_cmp_lg_u32 s{sW}, 0")
            A("s_cbranch_scc1 L_end")
            A("s_lshl_b32 s70, s2, 8")
            A(f"s_add_u32 s70, s70, {STAMP_BASE + 65536}")
            A("s_mov_b64 exec, 1")
            for i in range(7):
                A(f"v_mov_b32 v32, s{50+i}")
                A(f"buffer_store_dword v32, off, {srd(sWS)}, s70 offset:{4*i}")
                A("s_nop 1")
        A("s_endpgm")
        s.lab("A_tope")
        A(f"s_cmp_eq_u32 s{sSTEP}, 0")
        A("s_cbranch_scc0 A_top8")
        A(f"s_waitcnt vmcnt({n0})")
        A("s_barrier")
        for i in range(8):
            A(f"ds_read_b128 {vr(Q_+4*i,4)}, v{QA} offset:{i*1024}")
        A(f"v_add_u32 v{QA}, 16384, v{QA}")
        A("s_branch A_top8b")
        s.lab("A_top8")
        A("s_barrier")
        for i in range(8):
            A(f"ds_read_b128 {vr(Q_+4*i,4)}, v{QA} offset:{i*1024}")
        s.lab("A_top8b")
        A(f"s_mov_b32 s{sTHR}, 0xff800000")
        A("s_waitcnt lgkmcnt(0)")
        A("s_branch A_toper")
        s.lab("A_topo")
        A(f"s_cmp_eq_u32 s{sSTEP}, 1")
        A("s_cbranch_scc0 A_top7")
        A("s_waitcnt vmcnt(0)")
        A("s_barrier")
        A("s_branch A_topor")
        s.lab("A_top7")
        A(f"s_or_b32 s{sPEND}, s{sPEND}, 4")
        A("s_barrier")
        A("s_branch A_topor")
        for par in range(2):
            tagp = "e" if par == 0 else "o"; cur = SB[par]
            s.lab(f"A_resc{tagp}")
            A(f"v_mov_b32 v{U+1}, v{U}")
            A(f"v_permlane32_swap_b32 v{U}, v{U+1}")
            A(f"v_max_f32 v{U}, v{U}, v{U+1}")
            if par == 0:
                A(f"s_and_b32 s71, s{sSTEP}, 7")
                A("s_cmp_eq_u32 s71, 0")
                A("s_cbranch_scc1 A_hsw")
            A(f"v_max_f32 v{U}, 0, v{U}")
            A(f"v_sub_f32 v{U+1}, 0, v{U}")
            A(f"v_exp_f32 v{AL}, v{U+1}")
            A(f"s_or_b32 s{sPEND}, s{sPEND}, 1")
            A(f"v_mul_f32 v{LS}, v{AL}, v{LS}")
            A(f"v_mul_f32 v{LS+1}, v{AL}, v{LS+1}")
            if par == 0: s.lab("A_hswj")
            for i in range(32): A(f"v_sub_f32 v{cur+i}, v{cur+i}, v{U}")
            for i in range(16): A(f"v_sub_f32 v{NM+i}, v{NM+i}, v{U}")
            A(f"s_branch A_resc{tagp}r")
        s.lab("A_hsw")
        s.emit(rl_lines(RL))
        A(f"v_mov_b64 {vr(LS,2)}, 0")
        A(f"s_mov_b32 s{sTHR}, {hex(fbits(THR))}")
        A(f"s_lshr_b32 s{sPEND}, s{sSTEP}, 3")
        A(f"s_add_u32 s{sPEND}, s{sPEND}, 2")
        A(f"s_lshl_b32 s{sPEND}, s{sPEND}, 3")
        A("s_branch A_hswj")
        for par in range(2):
            tagp = "e" if par == 0 else "o"
            s.lab(f"A_pend{tagp}")
            if par == 0:
                A(f"s_cmp_ge_u32 s{sPEND}, 16")
                A("s_cbranch_scc1 A_pz")
            A(f"s_bitcmp1_b32 s{sPEND}, 0")
            A(f"s_cbranch_scc0 A_pn{tagp}")
            for i in range(32):
                A(f"v_pk_mul_f32 {vr(O+2*i,2)}, {vr(O+2*i,2)}, {vr(AL,2)} op_sel_hi:[1,0]")
            s.lab(f"A_pn{tagp}")
            if par == 1:
                A(f"s_bitcmp1_b32 s{sPEND}, 2")
                A(f"s_cbranch_scc0 A_pm{tagp}")
                for i in range(8): A(f"v_mov_b64 {vr(NM+2*i,2)}, 0")
                s.lab(f"A_pm{tagp}")
            A(f"s_mov_b32 s{sPEND}, 0")
            A(f"s_branch A_pend{tagp}r")
        s.lab("A_pz")
        A(f"s_cmp_eq_u32 s{sPEND}, 24")
        A("s_cbranch_scc0 A_pz2")
        A(f"v_mov_b32 v{AL}, v{RL}")
        for D in range(4):
            s.emit(fin_D(D, WIN))
            for h in range(2):
                A(f"ds_write_b128 v{QA}, {vr(WIN+8*D+4*h,4)} offset:{(2*D+h)*1024}")
        A("s_waitcnt lgkmcnt(0)")
        s.lab("A_pz2")
        for i in range(32): A(f"v_mov_b64 {vr(O+2*i,2)}, 0")
        A(f"s_mov_b32 s{sPEND}, 0")
        A(f"s_branch A_pender")

    def waveB(s):
        A = s.A; o = s.opt
        vV, vW, vK, WA, vWO, vO, vQW, vWB = 2, 3, 4, 8, 12, 13, 14, 15
        Y, vR, vOL, VP = 16, 17, 18, 20
        XA = 24
        WIN, X, ACC = 32, 64, 192
        q = Q(63)
        nt = " nt" if o.nt else ""
        PX = [P[1], P[2], W[0], W[2]]
        s.lab("L_B")
        s.stamp("b0")
        A(f"v_mov_b32 v{vW}, v2")
        s.late_scalars()
        A(f"s_cmp_lg_u32 s{sW}, 0")
        A("s_cbranch_scc1 B_nclr")
        A("v_mov_b32 v28, 0")
        A("v_lshlrev_b32 v29, 2, v1")
        A(f"s_lshl_b32 s70, s{sMYB}, 7")
        A(f"s_add_u32 s70, s70, {FLAG_BASE}")
        A("s_mov_b64 exec, 0xff")
        A(f"buffer_store_dword v28, v29, {srd(sWS)}, s70 offen sc1")
        A("s_mov_b64 exec, -1")
        s.lab("B_nclr")
        s.kv_voffs(vK, vV)
        A("v_lshlrev_b32 v23, 10, v19")
        A(f"v_add_u32 v{vWO}, v23, v21")
        A("v_lshrrev_b32 v22, 2, v20")
        A("v_and_b32 v23, 1, v19")
        A("v_lshlrev_b32 v28, 13, v17")
        A("v_lshlrev_b32 v29, 8, v22")
        A("v_add_u32 v28, v28, v29")
        A("v_lshlrev_b32 v29, 5, v23")
        A("v_add_u32 v28, v28, v29")
        A("v_and_b32 v29, 1, v18")
        A("v_lshlrev_b32 v29, 4, v29")
        A("v_add_u32 v28, v28, v29")
        A("v_lshrrev_b32 v29, 1, v18")
        A("v_lshlrev_b32 v29, 3, v29")
        A(f"v_add_u32 v{vWB}, v28, v29")
        A(f"v_add_u32 v28, {P[1]}, v{vWB}")
        for D in range(4):
            A(f"v_xor_b32 v29, {D}, v22")
            A(f"v_lshlrev_b32 v29, 6, v29")
            A(f"v_add_u32 v{WA+D}, v28, v29")
        A("v_and_b32 v28, 31, v1")
        A("v_lshrrev_b32 v29, 1, v28")
        A("v_and_b32 v29, 7, v29")
        A("v_lshlrev_b32 v30, 2, v17")
        A("v_xor_b32 v29, v29, v30")
        A("v_lshlrev_b32 v28, 7, v28")
        A(f"s_add_u32 s70, s{sW4K}, {P[1]}")
        A("v_add_u32 v28, s70, v28")
        for j in range(4):
            A(f"v_xor_b32 v30, {j}, v29")
            A(f"v_lshlrev_b32 v30, 4, v30")
            A(f"v_add_u32 v{XA+j}, v28, v30")
        A(f"v_mul_u32_u24 v{vO}, 448, v17")
        A("v_and_b32 v29, 31, v1")
        A(f"v_add_u32 v{vO}, v{vO}, v29")
        A(f"s_lshl_b32 s70, s{sW}, 5")
        A(f"v_add_u32 v{vO}, s70, v{vO}")
        A(f"v_lshlrev_b32 v{vO}, 4, v{vO}")
        A(f"s_lshl_b32 s70, s{sW}, 13")
        A(f"s_add_u32 s70, s70, {W[0]}")
        A(f"v_lshlrev_b32 v{vQW}, 4, v1")
        A(f"v_add_u32 v{vQW}, s70, v{vQW}")
        A(f"v_lshlrev_b32 v30, 11, v17")
        A(f"v_lshlrev_b32 v29, 4, v29")
        A(f"v_add_u32 v30, v30, v29")
        A(f"s_add_u32 s70, s70, 16384")
        A(f"v_add_u32 v31, s70, v30")
        A(f"v_mov_b32 v{vOL}, v31")
        A(f"v_mov_b32 v{vR}, v22")
        A(f"v_add_u32 v{Y}, 3584, v{vO}")
        A(f"s_lshl_b32 s70, s{sHG}, 20")
        A(f"s_lshl_b32 s71, s{sW}, 14")
        A("s_add_u32 s70, s70, s71")
        A(f"s_lshl_b32 s71, s{sHP}, 8")
        A(f"s_add_u32 s{sWOB}, s70, s71")
        A(f"s_lshl_b32 s70, s{sBR}, 3")
        A(f"s_add_u32 s70, s70, s{sB}")
        A(f"s_lshl_b32 s70, s70, 5")
        A(f"s_lshl_b32 s71, s{sHG}, 3")
        A(f"s_add_u32 s70, s70, s71")
        A(f"s_mul_i32 s73, s70, {UNIT}")
        for p in range(4):
            A(f"s_add_u32 s70, s{sHP}, {p}")
            A("s_and_b32 s70, s70, 3")
            A(f"s_lshl_b32 s71, s70, 18")
            A(f"s_add_u32 s{sWP+p}, s{sWOB}, s71")
            A(f"s_mul_i32 s71, s70, {2*UNIT}")
            A(f"s_add_u32 s{sOP+p}, s73, s71")
        A(f"s_mov_b32 s74, {hex(fbits(CSCALE))}")
        sCS = 74

        def wait_vm(tags):
            n = q.wait(tags)
            if n is not None: A(f"s_waitcnt vmcnt({n})")
        def mat(groups):
            out = []
            for tag, ins in groups:
                q.issue(tag); out.append(ins)
            return out
        def dma_wo(rr, p, half, slot):
            g = []
            for t in range(4):
                pre = [f"s_add_u32 m0, s{sW4K}, {slot}"] if t == 0 else []
                g.append((f"O{rr}{p}{half}", pre + [f"s_add_u32 s71, s{sWP+p}, {(rr*128 + 64*half)*1024 + t*3072}",
                          f"buffer_load_dwordx4 v{vWO}, {srd(sWO)}, s71 offen offset:{t*1024}{s.nto} lds"]))
            return g
        def of_mem(rr, p, half, tag, store=False):
            g = []
            xb = 2*p + half
            for jj in range(2):
                va = vO if jj == 0 else Y
                ins = [f"s_add_u32 s72, s{sOP+p}, {rr*UNIT + half*8*1792}", f"s_mov_b64 exec, s[{sEXLO}:{sEXHI}]"]
                for j in (2*jj, 2*jj+1):
                    op = "buffer_store_dwordx4" if store else "buffer_load_dwordx4"
                    ins.append(f"{op} {vr(X+16*xb+4*j,4)}, v{va}, {srd(sWS)}, s72 offen offset:{(j&1)*1792} sc1{s.nths if store else s.nthl}")
                ins.append("s_mov_b64 exec, -1")
                g.append(((tag, tag), ins))
            return g
        def mat2(groups):
            out = []
            for tag, ins in groups:
                if isinstance(tag, tuple):
                    for t_ in tag: q.issue(t_)
                else: q.issue(tag)
                out.append(ins)
            return out

        s.wbase = P[1]; s.xbase = P[1]
        def rebase_lines(regs, cur, nb):
            d = (nb - cur) & 0xffffffff
            return [f"v_add_u32 v{r}, {hex(d)}, v{r}" for r in regs]
        def base_for(slot, cur):
            if 0 <= slot - cur <= 49152: return cur
            for b in (P[1], W[0], P[0], P[2]):
                if 0 <= slot - b <= 49152: return b
            raise ValueError
        LA = o.la
        def frags_c(lst):
            fr = []
            for ci, (slot, xb, first) in enumerate(lst):
                fr += [(slot, xb, first and j == 0, j, D, ci) for j in range(4) for D in range(4)]
            return fr
        def stream(fr, fillers=None, prologue=False, gapfill=None):
            n = len(fr)
            lq = Q(15)
            def xrd(ci, j):
                slot = PX[ci % 4]; r = []
                nb = base_for(slot, s.xbase)
                if nb != s.xbase:
                    r += rebase_lines(range(XA, XA+4), s.xbase, nb); s.xbase = nb
                lq.issue(f"X{ci}_{j}")
                r.append(f"ds_read_b128 {vr(X+16*ci+4*j,4)}, v{XA+j} offset:{slot - s.xbase}")
                return r
            def rd(f):
                slot, xb, zero, j, D, ci = fr[f]; r = []
                if prologue and j == 0 and D == 0 and ci > 0:
                    r += s.stamp_lines(f"x{ci}")
                    r.append("s_barrier")
                    r += s.stamp_lines(f"p{ci}")
                nb = base_for(slot, s.wbase)
                if nb != s.wbase:
                    r += rebase_lines(range(WA, WA+4), s.wbase, nb); s.wbase = nb
                if prologue and D == 0: r += xrd(ci, j)
                for a in range(2):
                    lq.issue(f)
                    r.append(f"ds_read_b64_tr_b16 {vr(WIN+4*(f%8)+2*a,2)}, v{WA+D} offset:{slot-s.wbase + j*2048 + a*1024}")
                return r
            gaps = gapfill if gapfill is not None else [[] for _ in range(n)]
            if fillers: spread(gaps, fillers, 0, n)
            for f in range(min(LA, n)): s.emit(rd(f))
            issued = min(LA, n)
            for f in range(n):
                slot, xb, zero, j, D, ci = fr[f]
                k = lq.wait([f, f + 1] if (f % 2 == 0 and f + 1 < issued) else [f])
                if k is not None: A(f"s_waitcnt lgkmcnt({k})")
                srcC = "0" if zero else vr(ACC+16*D, 16)
                A(f"v_mfma_f32_32x32x16_bf16 {vr(ACC+16*D,16)}, {vr(WIN+4*(f%8),4)}, {vr(X+16*xb+4*j,4)}, {srcC}")
                if issued < n:
                    s.emit(rd(issued)); issued += 1
                s.emit(gaps[f])
        def write_q(base_off):
            for D in range(4):
                for i in range(16):
                    A(f"v_mul_f32 v{ACC+16*D+i}, s{sCS}, v{ACC+16*D+i}")
                for h in range(2):
                    f = 2*D + h
                    for i in range(4):
                        A(f"v_cvt_pk_bf16_f32 v{WIN+4*f+i}, v{ACC+16*D+8*h+2*i}, v{ACC+16*D+8*h+2*i+1}")
                    A(f"ds_write_b128 v{vQW}, {vr(WIN+4*f,4)} offset:{base_off + f*1024}")
            A("s_waitcnt lgkmcnt(0)")
        def pair(j):
            a = s.dma_k(j, vK, nt, f"KV{j}") if j <= 15 else []
            b = s.dma_v(j, vV, nt, f"KV{j}") if j >= 1 else []
            return a + b
        def own_frags():
            for half in range(2):
                for j in range(4):
                    A(f"ds_read_b128 {vr(X+16*half+4*j,4)}, v{vOL} offset:{half*4096 + j*512}")
            A("s_waitcnt lgkmcnt(0)")

        s.stamp("x0")
        A("s_barrier")
        s.stamp("p0")
        stream(frags_c([(PX[c % 4] + 16384, c, c == 0) for c in range(8)]), None, prologue=True)
        write_q(0)
        s.stamp("pro")
        def poll_check(vsrc, shift):
            A(f"v_readfirstlane_b32 s70, v{vsrc} ; @val=POLL")
            if shift == 0:
                A("s_lshr_b32 s71, s70, 1"); A("s_or_b32 s70, s70, s71")
            else:
                A(f"s_lshr_b32 s70, s70, {shift}")
            A("s_and_b32 s70, s70, 0x01010101")
            A("s_cmp_eq_u32 s70, 0x01010101")
        def mid_poll():
            return [f"buffer_load_dword v{VP}, off, {srd(sDBG)}, s{sGRP} sc1",
                    f"s_and_b32 s71, s{sGRP}, {hex(0xfffffff0)}",
                    f"buffer_load_dwordx4 v[24:27], off, {srd(sDBG)}, s71 sc1"]
        def mid_check():
            return [f"v_and_b32 v24, v24, v25", f"v_and_b32 v26, v26, v27", f"v_lshrrev_b32 v25, 1, v{VP}",
                    f"v_and_b32 v24, v24, v26", f"v_and_b32 v24, v24, v25",
                    "s_nop 0",
                    f"v_readfirstlane_b32 s70, v24 ; @val=POLL",
                    "s_and_b32 s70, s70, 0x01010101", "s_cmp_eq_u32 s70, 0x01010101"]
        def wave_poll(vaddr, nm):
            A(f"s_mov_b32 s{sSPIN}, 0")
            A("s_mov_b64 exec, 7")
            s.lab(f"B_{nm}")
            A(f"buffer_load_dword v{VP}, v{vaddr}, {srd(sWS)}, s72 offen sc1")
            A("s_waitcnt vmcnt(0)")
            A(f"v_cmp_ne_u32 vcc, 0, v{VP}")
            A("s_cmp_eq_u32 vcc_lo, 7")
            A(f"s_cbranch_scc1 B_{nm}d ; @taken")
            A(f"s_add_u32 s{sSPIN}, s{sSPIN}, 1")
            A(f"s_cmp_lt_u32 s{sSPIN}, {o.spin}")
            A(f"s_cbranch_scc1 B_{nm}")
            s.lab(f"B_{nm}d")
            A("s_mov_b64 exec, -1")
            q.drain()
        wq_slot = lambda c: (P[0] + 16384) if c == 0 else W[(c + 1) % 4]
        wq_issue = {0: [1, 2], 1: [3], 2: [4], 3: [5], 4: [6], 5: [7]}
        wo0_slot = {(0,0): W[3], (0,1): W[0], (1,0): W[1], (1,1): W[2], (2,0): W[3], (2,1): W[0], (3,0): W[1], (3,1): W[2]}
        wo0_issue = {7: [(0,0)], 8: [(0,1)], 10: [(1,0), (1,1), (2,0)], 11: [(2,1)], 14: [(3,0), (3,1)]}
        wo0_use = {9: [(0,0)], 10: [(0,1)], 13: [(1,0), (1,1)], 14: [(2,0), (2,1)], 15: [(3,0), (3,1)]}
        of0_issue = {12: [1, 2], 13: [3]}
        wo1_slot = {(0,0): P[1], (0,1): W[0], (1,0): W[3], (1,1): P[2], (2,0): P[2] + 16384, (2,1): W[1], (3,0): W[2], (3,1): P[1] + 16384}
        wo1_issue = {14: [(0,0)], 15: [(0,1), (1,0), (1,1), (2,0)], 16: [(2,1), (3,0)]}
        for st in range(17):
            s.stamp(f"c{st}")
            tags = [f"KV{st}"]
            if 1 <= st <= 7: tags.append(f"Q{st}")
            for (p, h) in wo0_use.get(st, []):
                tags += [f"O0{p}{h}", f"F{p}"]
            if st == 10: tags.append("S0")
            if st == 12: tags.append("POLL")
            wait_vm(tags)
            s.stamp(f"w{st}")
            A("s_barrier")
            s.stamp(f"s{st}")
            if st == 8:
                for d in range(4):
                    A(f"s_add_u32 s70, s{sHG}, {1 + d}")
                    A("s_and_b32 s70, s70, 3")
                    A(f"v_xor_b32 v29, s70, v{vR}")
                    A("v_lshlrev_b32 v29, 6, v29")
                    A(f"v_add_u32 v29, v29, v{vWB}")
                    A(f"v_add_u32 v{WA+d}, {s.wbase}, v29")
            pre_groups = []
            if st == 9:
                own_frags()
                pre_groups = of_mem(0, 0, 0, "S0", store=True) + of_mem(0, 0, 1, "S0", store=True)
            if st in (2, 10):
                A(f"s_cmp_lg_u32 s{sW}, 0")
                A(f"s_cbranch_scc1 B_nf{st}")
                s.flag_store(1 if st == 2 else 3, 21)
                s.lab(f"B_nf{st}")
            if st == 11:
                s.emit(mid_poll()); q.issue("POLL"); q.issue("POLL")
            if st == 12:
                s.emit(mid_check())
                A("s_cbranch_scc0 B_slow0 ; @nottaken")
                s.lab("B_slow0r")
            g_kv = pair(st + 2) if st + 2 <= 16 else []
            g_w = []
            for c in wq_issue.get(st, []): g_w += s.dma_wq(c, wq_slot(c), vW, f"Q{c}", 256, 72)
            for (p, h) in wo0_issue.get(st, []): g_w += dma_wo(0, p, h, wo0_slot[(p, h)])
            g_f = []
            for p in of0_issue.get(st, []): g_f += of_mem(0, p, 0, f"F{p}") + of_mem(0, p, 1, f"F{p}")
            g_1 = []
            for (p, h) in wo1_issue.get(st, []): g_1 += dma_wo(1, p, h, wo1_slot[(p, h)])
            groups = pre_groups + g_f + g_kv + g_w + g_1
            mem = mat2(groups)
            use = ([(wq_slot(st), st, st == 0)] if st <= 7 else []) + \
                  [(wo0_slot[(p, h)], 2*p + h, (p, h) == (0, 0)) for (p, h) in wo0_use.get(st, [])]
            if use:
                stream(frags_c(use), mem)
                if st == 7: write_q(16384)
            else:
                for g_ in mem: s.emit(g_)
            s.stamp(f"d{st}")
        wait_vm(["O100", "O101", "O110", "O111"])
        A(f"v_add_u32 v{vOL}, {hex((P[0] - W[1]) & 0xffffffff)}, v{vOL}")
        A("s_barrier")
        s.stamp("E")
        for g_ in mat2(dma_wo(1, 3, 1, wo1_slot[(3, 1)])): s.emit(g_)
        own_frags()
        A(f"v_add_u32 v21, s{sHP}, v1")
        A("v_add_u32 v21, 1, v21")
        A("v_and_b32 v21, 3, v21")
        A(f"v_add_u32 v21, s{sGRP}, v21")
        A("v_lshlrev_b32 v21, 7, v21")
        A(f"v_add_u32 v22, s{sHG}, v1")
        A("v_add_u32 v22, 1, v22")
        A("v_and_b32 v22, 3, v22")
        A("v_lshlrev_b32 v22, 2, v22")
        A(f"s_and_b32 s71, s{sGRP}, {hex(0xfffffff0)}")
        A(f"s_add_u32 s71, s71, s{sHP}")
        A("v_add_u32 v22, s71, v22")
        A("v_lshlrev_b32 v22, 7, v22")
        stream(frags_c([(wo1_slot[(0, 0)], 0, False), (wo1_slot[(0, 1)], 1, False)]))
        s.stamp("own")
        A(f"s_lshl_b32 s72, s{sW}, 2")
        A(f"s_add_u32 s72, s72, {FLAG_BASE}")
        wave_poll(21, "poll1")
        s.stamp("poll1")
        for p in (1, 2, 3):
            for g_ in mat2(of_mem(1, p, 0, f"G{p}") + of_mem(1, p, 1, f"G{p}")): s.emit(g_)
        A("v_lshrrev_b32 v17, 5, v1")
        A("v_mul_u32_u24 v16, 112, v17")
        A("v_and_b32 v18, 31, v1")
        A("v_add_u32 v16, v16, v18")
        A(f"s_lshl_b32 s70, s{sW}, 5")
        A("v_add_u32 v16, s70, v16")
        A("v_add_u32 v19, s70, v18")
        A("v_lshlrev_b32 v16, 4, v16")
        A(f"s_lshl_b32 s70, s{sBR}, 3")
        A(f"s_add_u32 s70, s70, s{sB}")
        A(f"s_lshl_b32 s70, s70, 2")
        A(f"s_add_u32 s70, s70, s{sHP}")
        A(f"s_mul_i32 s73, s70, {12*PSZ}")
        A(f"s_add_u32 s73, s73, {PART_BASE}")
        for d in range(3):
            A(f"s_add_u32 s70, s{sHG}, {1 + d}")
            A("s_and_b32 s70, s70, 3")
            A(f"s_mul_i32 s70, s70, {3*PSZ}")
            A(f"s_add_u32 s70, s70, s73")
            A(f"s_add_u32 s{sWP+d}, s70, {(2-d)*PSZ}")
        A("v_lshlrev_b32 v19, 11, v19")
        A("v_lshlrev_b32 v17, 4, v17")
        A("v_add_u32 v19, v19, v17")
        A("s_barrier")
        for p in (1, 2):
            wait_vm(f"G{p}")
            stream(frags_c([(wo1_slot[(p, 0)], 2*p, False), (wo1_slot[(p, 1)], 2*p + 1, False)]))
        wait_vm("G3")
        fr = []
        for d in range(4):
            for half in range(2):
                for j in range(4):
                    fr.append((wo1_slot[(3, half)], 6 + half, False, j, d, half))
        gaps = [[] for _ in range(32)]
        def pub(d):
            r = []
            for rq in range(4):
                r.append([f"s_add_u32 s70, s{sWP+d}, {rq*3584}", f"s_mov_b64 exec, s[{sEXLO}:{sEXHI}]",
                          f"buffer_store_dwordx4 {vr(ACC+16*d+4*rq,4)}, v16, {srd(sWS)}, s70 offen sc1{s.nths}", "s_mov_b64 exec, -1"])
            return r
        for d in range(3):
            spread(gaps, pub(d), 8*d + 8 + 3, 8*d + 8 + 7)
        stream(fr, None, gapfill=gaps)
        s.stamp("oproj")
        A(f"s_lshl_b32 s70, s{sMYB}, 7")
        A(f"s_lshl_b32 s72, s{sW}, 2")
        A(f"s_add_u32 s72, s72, {FLAG_BASE + 16}")
        A("s_add_u32 s70, s70, s72")
        A("v_mov_b32 v20, 1")
        A("s_waitcnt vmcnt(0)")
        s.stamp("pst")
        A("s_mov_b64 exec, 1")
        A(f"buffer_store_dword v20, off, {srd(sWS)}, s70 sc1")
        wave_poll(22, "poll2")
        s.stamp("poll2")
        A(f"s_mul_i32 s71, s{sHG}, {3*PSZ}")
        A("s_add_u32 s73, s73, s71")
        R = 64
        A(f"s_mov_b64 exec, s[{sEXLO}:{sEXHI}]")
        for src in range(3):
            for rq in range(4):
                A(f"s_add_u32 s70, s73, {src*PSZ + rq*3584}")
                A(f"buffer_load_dwordx4 {vr(R+16*src+4*rq,4)}, v16, {srd(sWS)}, s70 offen sc1{s.nthl}")
        A(f"s_mul_i32 s70, s{sB}, {112*2048}")
        A(f"s_lshl_b32 s71, s{sBR}, 10")
        A("s_add_u32 s70, s70, s71")
        A(f"s_lshl_b32 s71, s{sHP}, 8")
        A("s_add_u32 s70, s70, s71")
        A(f"s_lshl_b32 s71, s{sHG}, 6")
        A("s_add_u32 s70, s70, s71")
        OWN = ACC + 48
        A("s_waitcnt vmcnt(8)")
        for i in range(8): A(f"v_pk_add_f32 {vr(OWN+2*i,2)}, {vr(OWN+2*i,2)}, {vr(R+2*i,2)}")
        A("s_waitcnt vmcnt(4)")
        for i in range(8): A(f"v_pk_add_f32 {vr(OWN+2*i,2)}, {vr(OWN+2*i,2)}, {vr(R+16+2*i,2)}")
        A("s_waitcnt vmcnt(0)")
        for i in range(8): A(f"v_pk_add_f32 {vr(OWN+2*i,2)}, {vr(OWN+2*i,2)}, {vr(R+32+2*i,2)}")
        for i in range(8):
            A(f"v_cvt_pk_bf16_f32 v{32+i}, v{OWN+2*i}, v{OWN+2*i+1}")
        for h in range(2):
            A(f"buffer_store_dwordx4 {vr(32+4*h,4)}, v19, {srd(sOUT)}, s70 offen offset:{h*32}")
        A("s_mov_b64 exec, -1")
        if o.stamp:
            A("s_waitcnt vmcnt(0)")
            A(f"s_cmp_lg_u32 s{sW}, 0")
            A("s_cbranch_scc1 L_end")
            s.stamp("end"); s.stamp("cend", True)
            A("s_waitcnt lgkmcnt(0)")
            n = len(o.stamps.split(","))
            assert n <= len(STAMP_REGS)
            A("s_lshl_b32 s70, s2, 8")
            A(f"s_add_u32 s70, s70, {STAMP_BASE}")
            A("s_mov_b64 exec, 1")
            for i in range(n):
                r = STAMP_REGS[i]
                A(f"v_mov_b32 v32, s{r}"); A(f"v_mov_b32 v33, s{r+1}")
                A(f"buffer_store_dwordx2 v[32:33], off, {srd(sWS)}, s70 offset:{8*i}")
                A("s_nop 1")
        A("s_endpgm")
        s.lab("B_slow0")
        A(f"s_mov_b32 s{sSPIN}, 0")
        s.lab("B_slow0l")
        s.emit(mid_poll())
        A("s_waitcnt vmcnt(0)")
        s.emit(mid_check())
        A("s_cbranch_scc1 B_slow0r ; @taken")
        A(f"s_add_u32 s{sSPIN}, s{sSPIN}, 1")
        A(f"s_cmp_lt_u32 s{sSPIN}, {o.spin}")
        A("s_cbranch_scc1 B_slow0l")
        A("s_branch B_slow0r")

    def build(s):
        s.common()
        s.waveA()
        s.waveB()
        s.lab("L_end")
        s.A("s_endpgm")
        lines = [l for l in s.L if l is not None]
        cfgs = []
        for wave in (0, 1, 3, 4, 5, 7):
            cfgs.append((f"wg5w{wave}", {2: 5}, {"WAVE": wave, "POLL": 0x03030303, "POLL3": 0x03030303}))
        cfgs.append(("allresc", {2: 5}, {"WAVE": 1, "ALLRESC": 1}))
        cfgs.append(("extra", {2: 256}, {"WAVE": 0}))
        lines = asmlib.finalize(lines, cfgs, verbose=True)
        return "\n".join(lines)

if __name__ == "__main__":
    ap = argparse.ArgumentParser()
    ap.add_argument("-o", default="k5.s")
    ap.add_argument("--stamp", action="store_true")
    ap.add_argument("--cyc", action="store_true")
    ap.add_argument("--stamps", default="start,pro,s8,E,poll1,oproj,pst,poll2,end")
    ap.add_argument("--nt", type=int, default=1)
    ap.add_argument("--prioA", type=int, default=0)
    for n_ in ("ntw", "ntx", "nto", "nths", "nthl"): ap.add_argument("--" + n_, type=int, default=0)
    ap.add_argument("--astamp", type=int, default=-1)
    ap.add_argument("--la", type=int, default=6)
    ap.add_argument("--nbub", type=int, default=3)
    ap.add_argument("--rot", type=int, default=1)
    ap.add_argument("--k0at", type=int, default=5)
    ap.add_argument("--spin", type=int, default=0x8000)
    o = ap.parse_args()
    g = Gen(o)
    body = g.build()
    k = kernel_text(NAME + "_kernel", body, vgpr=256)
    hdr = ["; @launch grid=(256,1,1) block=(512,1,1) lds=163840"]
    if o.stamp: hdr.append("; STAMPS " + o.stamps)
    if o.astamp >= 0: hdr.append("; ASTAMP")
    if o.cyc: hdr.append("; STAMPCYC")
    open(o.o, "w").write(file_text(hdr, [k]))
    print("wrote", o.o, len(body.splitlines()), "lines")
```

```python
import sys, argparse, struct
from gen_common import *
import asmlib

P = [0, 32768, 65536]
W = [98304, 114688, 131072, 147456]
UNIT = 28672
PART_BASE = 16 << 20
PSZ = 14336
STAMP_BASE = 128 << 20
FLAG_BASE = 32 << 20
THR = 12.0

sK, sV, sWQ, sX, sWS, sWO, sOUT, sDBG = 4, 8, 12, 16, 20, 24, 28, 32
sWAVE, sW, sBR, sHG, sB, sHP, sH0, sKV = 62, 63, 64, 65, 66, 67, 68, 69
sXB, sPEND = 72, 73
sEV, sTHR, sPAT = 74, 75, 76
sSTEP, sROT, sNEG, sOBASE = 77, 78, 79, 80
sW4K, sWQB, sKVW, sWOB, sGRP, sMYB = 81, 82, 83, 84, 85, 86
sSPIN = 87
sEXLO, sEXHI = 88, 89
sPOS = 3
sWP, sOP = 54, 58
STAMP_REGS = [90, 92, 94, 96, 98, 100] + list(range(36, 54, 2))

def srd(r): return f"s[{r}:{r+3}]"
def vr(a, n=1): return f"v{a}" if n == 1 else f"v[{a}:{a+n-1}]"
def fbits(x): return struct.unpack('<I', struct.pack('<f', x))[0]
CSCALE = (128 ** -0.5) * 1.4426950408889634

class Q:
    def __init__(s, maxn): s.q = []; s.maxn = maxn
    def issue(s, tag):
        s.q.append(tag)
        assert len(s.q) <= s.maxn, ("counter overflow", s.q)
    def wait(s, tags):
        if isinstance(tags, str): tags = [tags]
        last = -1
        for i, t in enumerate(s.q):
            if t in tags: last = i
        if last < 0: return None
        n = len(s.q) - 1 - last
        s.q = s.q[last + 1:]
        return n
    def drain(s): s.q = []

def spread(slots, items, start=0, end=None):
    if end is None: end = len(slots)
    n = end - start
    m = len(items)
    for i, it in enumerate(items):
        k = start + (i * n) // m
        slots[k].extend(it)

class Gen:
    def __init__(s, opt):
        s.L = []; s.opt = opt
        f = lambda b: " nt" if b else ""
        s.ntw, s.ntx, s.nto, s.nths, s.nthl = f(opt.ntw), f(opt.ntx), f(opt.nto), f(opt.nths), f(opt.nthl)
    def A(s, t): s.L.append("  " + t)
    def lab(s, n): s.L.append(n + ":")
    def emit(s, lines):
        for l in lines:
            if l.endswith(":"): s.L.append(l)
            else: s.L.append("  " + l)
    def stamp_lines(s, name, cyc=False):
        if not s.opt.stamp: return []
        names = s.opt.stamps.split(",")
        if name not in names: return []
        r = STAMP_REGS[names.index(name)]
        cyc = cyc or s.opt.cyc
        return [f"s_mem{'time' if cyc else 'realtime'} s[{r}:{r+1}]"]
    def stamp(s, name, cyc=False): s.emit(s.stamp_lines(name, cyc))
    def ast(s, i):
        return [f"s_memtime s[{36+2*i}:{37+2*i}]"] if s.opt.astamp >= 0 else []

    def common(s):
        A = s.A
        A("s_cmp_ge_u32 s2, 256")
        A("s_cbranch_scc1 L_end")
        s.stamp("start"); s.stamp("cstart", True)
        A("s_load_dwordx16 s[36:51], s[0:1], 0")
        A("s_load_dwordx8 s[52:59], s[0:1], 64")
        A("s_load_dwordx2 s[60:61], s[0:1], 96")
        A("v_lshrrev_b32 v1, 6, v0")
        A("s_and_b32 s70, s2, 7")
        A("s_lshr_b32 s71, s2, 3")
        A(f"v_readfirstlane_b32 s{sWAVE}, v1 ; @val=WAVE")
        A(f"s_lshr_b32 s{sBR}, s70, 2")
        A(f"s_and_b32 s{sHG}, s70, 3")
        A(f"s_and_b32 s{sB}, s71, 7")
        A(f"s_lshr_b32 s{sHP}, s71, 3")
        A(f"s_lshl_b32 s{sH0}, s{sHG}, 3")
        A(f"s_lshl_b32 s70, s{sHP}, 1")
        A(f"s_add_u32 s{sH0}, s{sH0}, s70")
        A(f"s_add_u32 s{sROT}, s{sB}, s70")
        if not s.opt.rot: A(f"s_mov_b32 s{sROT}, 0")
        A(f"s_and_b32 s{sW}, s{sWAVE}, 3")
        A(f"s_lshl_b32 s{sW4K}, s{sW}, 12")
        A("v_and_b32 v1, 63, v0")
        A("v_lshrrev_b32 v19, 4, v1")
        A("v_and_b32 v20, 15, v1")
        A("v_lshlrev_b32 v21, 2, v19")
        A("v_xor_b32 v21, v20, v21")
        A("v_lshlrev_b32 v21, 4, v21")
        A("v_lshrrev_b32 v17, 5, v1")
        A("v_and_b32 v18, 3, v1")
        A("v_lshlrev_b32 v2, 13, v19")
        A("v_add_u32 v2, v2, v21")
        A("v_lshrrev_b32 v22, 3, v1")
        A("v_lshlrev_b32 v22, 10, v22")
        A("v_and_b32 v23, 7, v1")
        A("v_xor_b32 v23, v23, v19")
        A("v_lshlrev_b32 v24, 4, v23")
        A("v_add_u32 v3, v22, v24")
        A("v_xor_b32 v24, 64, v24")
        A("v_add_u32 v4, v22, v24")
        for r, sz in ((sK, 33554432), (sV, 33554432), (sWQ, 4194304), (sWS, 268435456), (sWO, 4194304), (sOUT, 1835008), (sDBG, 256)):
            A(f"s_mov_b32 s{r+2}, {sz}")
            A(f"s_mov_b32 s{r+3}, 0x20000")
        A(f"s_mov_b32 s{sX+3}, 0x20000")
        A(f"s_lshl_b32 s70, s{sW}, 17")
        A(f"s_lshl_b32 s71, s{sH0}, 8")
        A(f"s_add_u32 s{sWQB}, s70, s71")
        A(f"s_mul_i32 s70, s{sB}, 112")
        A(f"s_add_u32 s71, s70, 112")
        A(f"s_lshl_b32 s{sX+2}, s71, 10")
        A(f"s_lshl_b32 s71, s{sW}, 5")
        A("s_add_u32 s70, s70, s71")
        A(f"s_lshl_b32 s{sXB}, s70, 10")
        A(f"s_lshl_b32 s70, s{sB}, 5")
        A(f"s_add_u32 s70, s70, s{sH0}")
        A(f"s_lshl_b32 s{sKV}, s70, 17")
        A(f"s_add_u32 s{sKVW}, s{sKV}, s{sW4K}")
        A(f"s_cmp_eq_u32 s{sBR}, 0")
        A("s_waitcnt lgkmcnt(0)")
        s.stamp("k")
        for r, a, b in ((sX, 36, 46), (sWQ, 42, 52), (sK, 38, 48), (sV, 40, 50), (sWO, 44, 54)):
            A(f"s_cselect_b32 s{r}, s{a}, s{b}")
            A(f"s_cselect_b32 s{r+1}, s{a+1}, s{b+1}")
        for r, a in ((sOUT, 56), (sDBG, 58), (sWS, 60)):
            A(f"s_mov_b32 s{r}, s{a}")
            A(f"s_mov_b32 s{r+1}, s{a+1}")
        A(f"s_cmp_ge_u32 s{sWAVE}, 4")
        A("s_cbranch_scc1 L_B")

    def late_scalars(s):
        A = s.A
        A(f"s_lshl_b32 s70, s{sBR}, 3")
        A(f"s_add_u32 s70, s70, s{sB}")
        A(f"s_lshl_b32 s71, s70, 5")
        A(f"s_add_u32 s71, s71, s{sH0}")
        A(f"s_mul_i32 s{sOBASE}, s71, {UNIT}")
        A(f"s_lshl_b32 s71, s70, 2")
        A(f"s_add_u32 s71, s71, s{sHG}")
        A(f"s_lshl_b32 s{sGRP}, s71, 2")
        A(f"s_add_u32 s{sMYB}, s{sGRP}, s{sHP}")
        A(f"s_cmp_eq_u32 s{sW}, 3")
        A(f"s_cselect_b32 s{sEXLO}, 0xffff, -1")
        A(f"s_mov_b32 s{sEXHI}, s{sEXLO}")

    def kv_voffs(s, vK, vV):
        A = s.A
        A("v_lshlrev_b32 v22, 8, v19")
        A(f"v_add_u32 v{vV}, v22, v21")
        for t in range(4):
            A(f"v_add_u32 v23, {4*t}, v19")
            A(f"v_xor_b32 v23, v20, v23")
            A(f"v_lshlrev_b32 v23, 4, v23")
            A(f"v_add_u32 v{vK+t}, v22, v23")

    def flag_store(s, val, vtmp):
        A = s.A
        A(f"v_mov_b32 v{vtmp}, {val}")
        A("s_mov_b64 exec, 1")
        A(f"buffer_store_byte v{vtmp}, off, {srd(sDBG)}, s{sMYB} sc1")
        A("s_mov_b64 exec, -1")

    def dma_k(s, j, vK, nt, tag):
        g = []
        for t in range(4):
            pre = [f"s_add_u32 m0, s{sW4K}, {P[j%3]}", f"s_add_u32 s70, s{sKVW}, {j*16384}"] if t == 0 else []
            g.append((tag, pre + [f"buffer_load_dwordx4 v{vK+t}, {srd(sK)}, s70 offen offset:{t*1024}{nt} lds"]))
        return g
    def dma_v(s, j, vV, nt, tag):
        g = []
        for t in range(4):
            pre = [f"s_add_u32 m0, s{sW4K}, {P[j%3]+16384}", f"s_add_u32 s70, s{sKVW}, {(j-1)*16384}"] if t == 0 else []
            g.append((tag, pre + [f"buffer_load_dwordx4 v{vV}, {srd(sV)}, s70 offen offset:{t*1024}{nt} lds"]))
        return g
    def kc_lines(s, c, dst):
        return [f"s_add_u32 s{dst}, s{sROT}, {c}", f"s_and_b32 s{dst}, s{dst}, 7"]
    def dma_wq(s, c, slot, vW, tag, extra, tmp):
        g = []
        for t in range(4):
            pre = []
            if t == 0:
                pre = s.kc_lines(c, tmp) + [f"s_lshl_b32 s{tmp}, s{tmp}, 19", f"s_add_u32 s{tmp}, s{tmp}, s{sWQB}",
                                            f"s_add_u32 m0, s{sW4K}, {slot}"]
            g.append((tag, pre + [f"s_add_u32 s71, s{tmp}, {extra + t*31744}",
                                  f"buffer_load_dwordx4 v{vW}, {srd(sWQ)}, s71 offen offset:{t*1024}{s.ntw} lds"]))
        return g

    def waveA(s):
        A = s.A; o = s.opt
        nt = " nt" if o.nt else ""
        Q_, SB, Pr, O, WIN, NM = 0, [32, 64], 96, 112, 176, 208
        KA, VA, QA, OV, RL = 224, 232, 236, 237, 238
        LS, AL, T = 240, 242, 244
        vK, vV = 5, 9
        q = Q(63)
        PX = [P[1], P[2], W[0], W[2]]
        def dma_x(c):
            g = []
            for t in range(4):
                pre = []
                if t == 0:
                    pre = s.kc_lines(c, 87) + ["s_lshl_b32 s87, s87, 7", f"s_add_u32 s87, s87, s{sXB}", f"s_add_u32 m0, s{sW4K}, {PX[c%4]}"]
                g.append((f"C{c}", pre + [f"s_add_u32 s71, s87, {t*7168}",
                                          f"buffer_load_dwordx4 v{3 + (t&1)}, {srd(sX)}, s71 offen offset:{t*1024}{s.ntx} lds"]))
            return g
        def issue(groups):
            for tag, ins in groups:
                q.issue(tag); s.emit(ins)
        def chunk(c): return dma_x(c) + s.dma_wq(c, PX[c % 4] + 16384, 2, f"C{c}", 0, 87)
        issue(chunk(0))
        s.stamp("a0")
        issue(chunk(1))
        s.late_scalars()
        s.kv_voffs(vK, vV)
        A("v_and_b32 v10, 31, v1")
        A("v_lshlrev_b32 v10, 8, v10")
        A("v_xor_b32 v11, v17, v20")
        for k in range(8):
            A(f"v_xor_b32 v12, {2*k}, v11")
            A(f"v_lshlrev_b32 v12, 4, v12")
            A(f"v_add_u32 v{KA+k}, v10, v12")
        A("v_lshrrev_b32 v10, 2, v20")
        A("v_and_b32 v11, 1, v19")
        A("v_lshlrev_b32 v12, 10, v17")
        A("v_lshlrev_b32 v13, 8, v10")
        A("v_add_u32 v12, v12, v13")
        A("v_lshlrev_b32 v13, 5, v11")
        A("v_add_u32 v12, v12, v13")
        A("v_and_b32 v13, 1, v18")
        A("v_lshlrev_b32 v13, 4, v13")
        A("v_add_u32 v12, v12, v13")
        A("v_lshrrev_b32 v13, 1, v18")
        A("v_lshlrev_b32 v13, 3, v13")
        A("v_add_u32 v12, v12, v13")
        A("v_add_u32 v12, 16384, v12")
        for D in range(4):
            A(f"v_xor_b32 v13, {D}, v10")
            A(f"v_lshlrev_b32 v13, 6, v13")
            A(f"v_add_u32 v{VA+D}, v12, v13")
        A(f"s_lshl_b32 s70, s{sW}, 13")
        A(f"s_add_u32 s70, s70, {W[0]}")
        A(f"v_lshlrev_b32 v{QA}, 4, v1")
        A(f"v_add_u32 v{QA}, s70, v{QA}")
        A(f"v_mul_u32_u24 v{OV}, 112, v17")
        A(f"v_and_b32 v12, 31, v1")
        A(f"v_add_u32 v{OV}, v{OV}, v12")
        A(f"s_lshl_b32 s70, s{sW}, 5")
        A(f"v_add_u32 v{OV}, s70, v{OV}")
        A(f"v_lshlrev_b32 v{OV}, 4, v{OV}")
        for i in range(8): A(f"v_mov_b64 {vr(NM+2*i,2)}, 0")
        A(f"v_mov_b64 {vr(LS,2)}, 0")
        A(f"s_mov_b32 s{sEV}, {hex((1<<0)|(1<<8)|(1<<1)|(1<<7))}")
        A(f"s_mov_b32 s{sPAT}, {hex(sum(1 << i for i in range(2, 17, 3)))}")
        A(f"s_mov_b32 s{sNEG}, 0xffff0000")
        A(f"s_mov_b32 s{sPOS}, 32768")
        A(f"s_mov_b32 s{sTHR}, {hex(fbits(THR))}")
        A(f"s_mov_b32 s{sSTEP}, 0")
        A(f"s_mov_b32 s{sPEND}, 0")
        A(f"s_add_u32 s{sOBASE}, s{sOBASE}, {UNIT}")
        for k in range(8):
            n = q.wait(f"C{k}")
            if n is not None: A(f"s_waitcnt vmcnt({n})")
            s.stamp(f"aw{k}")
            A("s_barrier")
            if k + 2 < 8: issue(chunk(k + 2))
            if k == o.k0at: issue(s.dma_k(0, vK, nt, "K0"))
            if k == 5: issue(s.dma_wq(0, P[0] + 16384, 2, "Q0", 256, 87))
            if k == o.p1at: issue(s.dma_k(1, vK, nt, "KV1") + s.dma_v(1, vV, nt, "KV1"))
        n0 = q.wait(["K0", "Q0"])
        assert n0 == 8, n0
        if o.prioA: A(f"s_setprio {o.prioA}")

        U = T + 4
        def fin_D(D, dst):
            L = [f"v_mul_f32 v{O+16*D+i}, v{AL}, v{O+16*D+i}" for i in range(16)]
            L += [f"v_cvt_pk_bf16_f32 v{dst+8*D+i}, v{O+16*D+2*i}, v{O+16*D+2*i+1}" for i in range(8)]
            return L
        def step(par, last=False):
            cur, prev = SB[par], SB[1 - par]
            lq = Q(15)
            L = []
            def wl(tags):
                n = lq.wait(tags)
                return [f"s_waitcnt lgkmcnt({n})"] if n is not None else []
            def kread(i):
                T_, k = divmod(i, 8); lq.issue(f"K{i}")
                return [f"ds_read_b128 {vr(WIN + 4*(i % 8), 4)}, v{KA+k} offset:{T_*8192}"]
            vorder = [divmod(f, 4) for f in range(16)] if not last else [(t, D) for D in range(4) for t in range(4)]
            def vread(f):
                t, D = vorder[f]; r = []
                for a in range(2):
                    lq.issue(f"V{f}")
                    r.append(f"ds_read_b64_tr_b16 {vr(WIN + 4*(f % 8) + 2*a, 2)}, v{VA+D} offset:{t*4096 + a*2048}")
                return r
            exp = lambda r: [f"v_exp_f32 v{r}, v{r}"]
            add = lambda r: [f"v_add_f32 v{LS + (r & 1)}, v{LS + (r & 1)}, v{r}"]
            cvt = lambda t, i: [f"v_cvt_pk_bf16_f32 v{Pr+4*t+i}, v{prev+8*t+2*i}, v{prev+8*t+2*i+1}"]
            mx = lambda d, a, b, c: [f"v_max3_f32 v{d}, v{a}, v{b}, v{c}"]
            bub = []
            for i in range(4): bub += [cvt(0, i), add(prev + 2*i), add(prev + 2*i + 1)]
            for i in range(4): bub += [cvt(1, i), add(prev + 8 + 2*i), add(prev + 8 + 2*i + 1)]
            F1 = []
            e = [exp(prev + 16 + i) for i in range(16)]
            a_ = [add(prev + 16 + i) for i in range(16)]
            c2 = [cvt(2, i) for i in range(4)]; c3 = [cvt(3, i) for i in range(4)]
            F1 += [e[0], e[1], e[2]]
            for i in range(3, 16):
                F1 += [e[i], a_[i - 3]]
                if i in (5, 7, 9, 11): F1.append(c2[(i - 5) // 2])
                if i in (13, 15): F1.append(c3[(i - 13) // 2])
            F1 += [a_[13], c3[2], a_[14], a_[15], c3[3]]
            def maxT(base, d0, d1):
                return [mx(d0, base, base+1, base+2), mx(d1, base+8, base+9, base+10),
                        mx(d0, d0, base+3, base+4), mx(d1, d1, base+11, base+12),
                        mx(d0, d0, base+5, base+6), mx(d1, d1, base+13, base+14),
                        mx(d0, d0, base+7, base+15)]
            M0 = maxT(cur, U, U+1)
            M1 = maxT(cur+16, U+2, U+3)
            fin = [mx(U, U, U+1, U+2), [f"v_max_f32 v{U}, v{U}, v{U+3}"]]
            tagp = "e" if par == 0 else "o"
            chk = [f"v_cmp_lt_f32 vcc, s{sTHR}, v{U}",
                   f"s_nop 0",
                   f"s_cbranch_vccnz A_resc{tagp} ; @takenif={sTHR}:0xff800000",
                   f"A_resc{tagp}r:"]
            advK = [[f"v_add_u32 v{KA+k}, s70, v{KA+k}"] for k in range(8)]
            advV = [[f"v_add_u32 v{VA+D}, s70, v{VA+D}"] for D in range(4)]
            exps1 = [exp(cur+i) for i in range(16)]

            L += s.ast(1)
            if not last:
                for i in range(8): L += kread(i)
                for it in bub: L += it
                nb = o.nbub
                for it in F1[:nb]: L += it
                gaps = [[] for _ in range(16)]
                spread(gaps, F1[nb:], 0, 14)
                spread(gaps, M0, 10, 16)
                for i in range(16):
                    T_, k = divmod(i, 8)
                    if i % 2 == 0: L += wl([f"K{i}", f"K{i+1}"])
                    srcC = vr(NM, 16) if k == 0 else vr(cur + 16*T_, 16)
                    L.append(f"v_mfma_f32_32x32x16_bf16 {vr(cur+16*T_,16)}, {vr(WIN+4*(i%8),4)}, {vr(Q_+4*k,4)}, {srcC}")
                    if i + 8 < 16: L += kread(i + 8)
                    if i >= 9: L += vread(i - 9)
                    L += gaps[i]
                    if i == 7: L += s.ast(2)
                L += s.ast(3)
                vissued = 7
                gaps = [[] for _ in range(16)]
                spread(gaps, advK[:4], 0, 2)
                spread(gaps, M1 + fin, 2, 5)
                gaps[5] += chk
                spread(gaps, exps1, 5, 16)
                spread(gaps, advK[4:], 6, 10)
                spread(gaps, advV, 10, 14)
                L += [f"s_bitcmp1_b32 s{sPAT}, s{sSTEP}", f"s_cselect_b32 s70, s{sNEG}, s{sPOS}"]
            else:
                for f in range(7): L += vread(f)
                vissued = 7
                for it in bub: L += it
                for it in F1: L += it
                L += rl_lines(AL)
                L.append(f"v_add_u32 v{QA}, {hex((P[0] - W[1]) & 0xffffffff)}, v{QA}")
                gaps = [[] for _ in range(16)]
                for D in range(3):
                    items = [[x] for x in fin_D(D, cur)] + [out_D(D, cur)]
                    spread(gaps, items, 4*D + 6 if D < 2 else 14, 4*D + 10 if D < 2 else 16)
            for f in range(16):
                t, D = vorder[f]
                if f % 2 == 0: L += wl([f"V{f}", f"V{f+1}"])
                L.append(f"v_mfma_f32_32x32x16_bf16 {vr(O+16*D,16)}, {vr(WIN+4*(f%8),4)}, {vr(Pr+4*t,4)}, {vr(O+16*D,16)}")
                if vissued < 16:
                    L += vread(vissued); vissued += 1
                L += gaps[f]
                if f == 6 and not last: L += s.ast(4)
            if not last:
                L += s.ast(5)
                L += [f"s_cmp_lg_u32 s{sPEND}, 0", f"s_cbranch_scc1 A_pend{tagp}", f"A_pend{tagp}r:"]
                L += s.ast(6)
                if s.opt.astamp >= 0:
                    L += ["s_waitcnt lgkmcnt(0)", f"s_cmp_eq_u32 s{sSTEP}, {s.opt.astamp}"]
                    L += [f"s_cselect_b32 s{50+i}, s{36+2*i}, s{50+i}" for i in range(7)]
            else:
                L += fin_D(3, cur) + out_D(3, cur)
            return L
        def out_D(D, src):
            L = []
            for h in range(2):
                L.append(f"ds_write_b128 v{QA}, {vr(src+8*D+4*h,4)} offset:{(2*D+h)*1024}")
            L.append(f"s_mov_b64 exec, s[{sEXLO}:{sEXHI}]")
            for h in range(2):
                L.append(f"s_add_u32 s71, s{sOBASE}, {(4*D+2*h)*1792}")
                L.append(f"buffer_store_dwordx4 {vr(src+8*D+4*h,4)}, v{OV}, {srd(sWS)}, s71 offen sc1{s.nths}")
            L.append("s_mov_b64 exec, -1")
            return L
        def rl_lines(dst):
            return [f"v_add_f32 v{T}, v{LS}, v{LS+1}", f"v_mov_b32 v{T+1}, v{T}", f"v_permlane32_swap_b32 v{T}, v{T+1}",
                    f"v_add_f32 v{T}, v{T}, v{T+1}", f"v_rcp_f32 v{dst}, v{T}"]

        s.lab("A_loop")
        for par in range(2):
            tagp = "e" if par == 0 else "o"
            s.emit(s.ast(0))
            A(f"s_bitcmp1_b32 s{sEV}, s{sSTEP}")
            A(f"s_cbranch_scc1 A_top{tagp}")
            A("s_barrier")
            s.lab(f"A_top{tagp}r")
            s.emit(step(par))
            A(f"s_add_u32 s{sSTEP}, s{sSTEP}, 1")
        A(f"s_cmp_lt_u32 s{sSTEP}, 16")
        A("s_cbranch_scc1 A_loop")
        A("s_barrier")
        s.emit(step(0, last=True))
        A("s_waitcnt lgkmcnt(0)")
        A("s_barrier")
        A(f"s_lshl_b32 s70, s{sMYB}, 7")
        A(f"s_add_u32 s70, s70, {FLAG_BASE}")
        A(f"s_lshl_b32 s71, s{sW}, 2")
        A("s_add_u32 s70, s70, s71")
        A(f"v_mov_b32 v{T}, 1")
        A("s_waitcnt vmcnt(0)")
        A("s_mov_b64 exec, 1")
        A(f"buffer_store_dword v{T}, off, {srd(sWS)}, s70 sc1")
        A("s_mov_b64 exec, -1")
        if o.astamp >= 0:
            A(f"s_cmp_lg_u32 s{sW}, 0")
            A("s_cbranch_scc1 L_end")
            A("s_lshl_b32 s70, s2, 8")
            A(f"s_add_u32 s70, s70, {STAMP_BASE + 65536}")
            A("s_mov_b64 exec, 1")
            for i in range(7):
                A(f"v_mov_b32 v32, s{50+i}")
                A(f"buffer_store_dword v32, off, {srd(sWS)}, s70 offset:{4*i}")
                A("s_nop 1")
        A("s_endpgm")
        s.lab("A_tope")
        A(f"s_cmp_eq_u32 s{sSTEP}, 0")
        A("s_cbranch_scc0 A_top8")
        A(f"s_waitcnt vmcnt({n0})")
        A("s_barrier")
        for i in range(8):
            A(f"ds_read_b128 {vr(Q_+4*i,4)}, v{QA} offset:{i*1024}")
        A(f"v_add_u32 v{QA}, 16384, v{QA}")
        A("s_branch A_top8b")
        s.lab("A_top8")
        A("s_barrier")
        for i in range(8):
            A(f"ds_read_b128 {vr(Q_+4*i,4)}, v{QA} offset:{i*1024}")
        s.lab("A_top8b")
        A(f"s_mov_b32 s{sTHR}, 0xff800000")
        A("s_waitcnt lgkmcnt(0)")
        A("s_branch A_toper")
        s.lab("A_topo")
        A(f"s_cmp_eq_u32 s{sSTEP}, 1")
        A("s_cbranch_scc0 A_top7")
        A("s_waitcnt vmcnt(0)")
        A("s_barrier")
        A("s_branch A_topor")
        s.lab("A_top7")
        A(f"s_or_b32 s{sPEND}, s{sPEND}, 4")
        A("s_barrier")
        A("s_branch A_topor")
        for par in range(2):
            tagp = "e" if par == 0 else "o"; cur = SB[par]
            s.lab(f"A_resc{tagp}")
            A(f"v_mov_b32 v{U+1}, v{U}")
            A(f"v_permlane32_swap_b32 v{U}, v{U+1}")
            A(f"v_max_f32 v{U}, v{U}, v{U+1}")
            if par == 0:
                A(f"s_and_b32 s71, s{sSTEP}, 7")
                A("s_cmp_eq_u32 s71, 0")
                A("s_cbranch_scc1 A_hsw")
            A(f"v_max_f32 v{U}, 0, v{U}")
            A(f"v_sub_f32 v{U+1}, 0, v{U}")
            A(f"v_exp_f32 v{AL}, v{U+1}")
            A(f"s_or_b32 s{sPEND}, s{sPEND}, 1")
            A(f"v_mul_f32 v{LS}, v{AL}, v{LS}")
            A(f"v_mul_f32 v{LS+1}, v{AL}, v{LS+1}")
            if par == 0: s.lab("A_hswj")
            for i in range(32): A(f"v_sub_f32 v{cur+i}, v{cur+i}, v{U}")
            for i in range(16): A(f"v_sub_f32 v{NM+i}, v{NM+i}, v{U}")
            A(f"s_branch A_resc{tagp}r")
        s.lab("A_hsw")
        s.emit(rl_lines(RL))
        A(f"v_mov_b64 {vr(LS,2)}, 0")
        A(f"s_mov_b32 s{sTHR}, {hex(fbits(THR))}")
        A(f"s_lshr_b32 s{sPEND}, s{sSTEP}, 3")
        A(f"s_add_u32 s{sPEND}, s{sPEND}, 2")
        A(f"s_lshl_b32 s{sPEND}, s{sPEND}, 3")
        A("s_branch A_hswj")
        for par in range(2):
            tagp = "e" if par == 0 else "o"
            s.lab(f"A_pend{tagp}")
            if par == 0:
                A(f"s_cmp_ge_u32 s{sPEND}, 16")
                A("s_cbranch_scc1 A_pz")
            A(f"s_bitcmp1_b32 s{sPEND}, 0")
            A(f"s_cbranch_scc0 A_pn{tagp}")
            for i in range(32):
                A(f"v_pk_mul_f32 {vr(O+2*i,2)}, {vr(O+2*i,2)}, {vr(AL,2)} op_sel_hi:[1,0]")
            s.lab(f"A_pn{tagp}")
            if par == 1:
                A(f"s_bitcmp1_b32 s{sPEND}, 2")
                A(f"s_cbranch_scc0 A_pm{tagp}")
                for i in range(8): A(f"v_mov_b64 {vr(NM+2*i,2)}, 0")
                s.lab(f"A_pm{tagp}")
            A(f"s_mov_b32 s{sPEND}, 0")
            A(f"s_branch A_pend{tagp}r")
        s.lab("A_pz")
        A(f"s_cmp_eq_u32 s{sPEND}, 24")
        A("s_cbranch_scc0 A_pz2")
        A(f"v_mov_b32 v{AL}, v{RL}")
        for D in range(4):
            s.emit(fin_D(D, WIN))
            for h in range(2):
                A(f"ds_write_b128 v{QA}, {vr(WIN+8*D+4*h,4)} offset:{(2*D+h)*1024}")
        A("s_waitcnt lgkmcnt(0)")
        s.lab("A_pz2")
        for i in range(32): A(f"v_mov_b64 {vr(O+2*i,2)}, 0")
        A(f"s_mov_b32 s{sPEND}, 0")
        A(f"s_branch A_pender")

    def waveB(s):
        A = s.A; o = s.opt
        vV, vW, vK, WA, vWO, vO, vQW, vWB = 2, 3, 4, 8, 12, 13, 14, 15
        Y, vR, vOL, VP = 16, 17, 18, 20
        XA = 24
        WIN, X, ACC = 32, 64, 192
        q = Q(63)
        nt = " nt" if o.nt else ""
        PX = [P[1], P[2], W[0], W[2]]
        s.lab("L_B")
        s.stamp("b0")
        A(f"v_mov_b32 v{vW}, v2")
        s.late_scalars()
        A(f"s_cmp_lg_u32 s{sW}, 0")
        A("s_cbranch_scc1 B_nclr")
        A("v_mov_b32 v28, 0")
        A("v_lshlrev_b32 v29, 2, v1")
        A(f"s_lshl_b32 s70, s{sMYB}, 7")
        A(f"s_add_u32 s70, s70, {FLAG_BASE}")
        A("s_mov_b64 exec, 0xfff")
        A(f"buffer_store_dword v28, v29, {srd(sWS)}, s70 offen sc1")
        A("s_mov_b64 exec, -1")
        s.lab("B_nclr")
        s.kv_voffs(vK, vV)
        A("v_lshlrev_b32 v23, 10, v19")
        A(f"v_add_u32 v{vWO}, v23, v21")
        A("v_lshrrev_b32 v22, 2, v20")
        A("v_and_b32 v23, 1, v19")
        A("v_lshlrev_b32 v28, 13, v17")
        A("v_lshlrev_b32 v29, 8, v22")
        A("v_add_u32 v28, v28, v29")
        A("v_lshlrev_b32 v29, 5, v23")
        A("v_add_u32 v28, v28, v29")
        A("v_and_b32 v29, 1, v18")
        A("v_lshlrev_b32 v29, 4, v29")
        A("v_add_u32 v28, v28, v29")
        A("v_lshrrev_b32 v29, 1, v18")
        A("v_lshlrev_b32 v29, 3, v29")
        A(f"v_add_u32 v{vWB}, v28, v29")
        A(f"v_add_u32 v28, {P[1]}, v{vWB}")
        for D in range(4):
            A(f"v_xor_b32 v29, {D}, v22")
            A(f"v_lshlrev_b32 v29, 6, v29")
            A(f"v_add_u32 v{WA+D}, v28, v29")
        A("v_and_b32 v28, 31, v1")
        A("v_lshrrev_b32 v29, 1, v28")
        A("v_and_b32 v29, 7, v29")
        A("v_lshlrev_b32 v30, 2, v17")
        A("v_xor_b32 v29, v29, v30")
        A("v_lshlrev_b32 v28, 7, v28")
        A(f"s_add_u32 s70, s{sW4K}, {P[1]}")
        A("v_add_u32 v28, s70, v28")
        for j in range(4):
            A(f"v_xor_b32 v30, {j}, v29")
            A(f"v_lshlrev_b32 v30, 4, v30")
            A(f"v_add_u32 v{XA+j}, v28, v30")
        A(f"v_mul_u32_u24 v{vO}, 448, v17")
        A("v_and_b32 v29, 31, v1")
        A(f"v_add_u32 v{vO}, v{vO}, v29")
        A(f"s_lshl_b32 s70, s{sW}, 5")
        A(f"v_add_u32 v{vO}, s70, v{vO}")
        A(f"v_lshlrev_b32 v{vO}, 4, v{vO}")
        A(f"s_lshl_b32 s70, s{sW}, 13")
        A(f"s_add_u32 s70, s70, {W[0]}")
        A(f"v_lshlrev_b32 v{vQW}, 4, v1")
        A(f"v_add_u32 v{vQW}, s70, v{vQW}")
        A(f"v_lshlrev_b32 v30, 11, v17")
        A(f"v_lshlrev_b32 v29, 4, v29")
        A(f"v_add_u32 v30, v30, v29")
        A(f"s_add_u32 s70, s70, 16384")
        A(f"v_add_u32 v31, s70, v30")
        A(f"v_mov_b32 v{vOL}, v31")
        A(f"v_mov_b32 v{vR}, v22")
        A(f"v_add_u32 v{Y}, 3584, v{vO}")
        A(f"s_lshl_b32 s70, s{sHG}, 20")
        A(f"s_lshl_b32 s71, s{sW}, 14")
        A("s_add_u32 s70, s70, s71")
        A(f"s_lshl_b32 s71, s{sHP}, 8")
        A(f"s_add_u32 s{sWOB}, s70, s71")
        A(f"s_lshl_b32 s70, s{sBR}, 3")
        A(f"s_add_u32 s70, s70, s{sB}")
        A(f"s_lshl_b32 s70, s70, 5")
        A(f"s_lshl_b32 s71, s{sHG}, 3")
        A(f"s_add_u32 s70, s70, s71")
        A(f"s_mul_i32 s73, s70, {UNIT}")
        for p in range(4):
            A(f"s_add_u32 s70, s{sHP}, {p}")
            A("s_and_b32 s70, s70, 3")
            A(f"s_lshl_b32 s71, s70, 18")
            A(f"s_add_u32 s{sWP+p}, s{sWOB}, s71")
            A(f"s_mul_i32 s71, s70, {2*UNIT}")
            A(f"s_add_u32 s{sOP+p}, s73, s71")
        A(f"s_mov_b32 s74, {hex(fbits(CSCALE))}")
        sCS = 74
        sPF = 75

        def wait_vm(tags):
            n = q.wait(tags)
            if n is not None: A(f"s_waitcnt vmcnt({n})")
        def mat(groups):
            out = []
            for tag, ins in groups:
                q.issue(tag); out.append(ins)
            return out
        def dma_wo(rr, p, half, slot):
            g = []
            for t in range(4):
                pre = [f"s_add_u32 m0, s{sW4K}, {slot}"] if t == 0 else []
                g.append((f"O{rr}{p}{half}", pre + [f"s_add_u32 s71, s{sWP+p}, {(rr*128 + 64*half)*1024 + t*3072}",
                          f"buffer_load_dwordx4 v{vWO}, {srd(sWO)}, s71 offen offset:{t*1024}{s.nto} lds"]))
            return g
        def of_mem(rr, p, half, tag, store=False):
            g = []
            xb = 2*p + half
            for jj in range(2):
                va = vO if jj == 0 else Y
                ins = [f"s_add_u32 s72, s{sOP+p}, {rr*UNIT + half*8*1792}", f"s_mov_b64 exec, s[{sEXLO}:{sEXHI}]"]
                for j in (2*jj, 2*jj+1):
                    op = "buffer_store_dwordx4" if store else "buffer_load_dwordx4"
                    ins.append(f"{op} {vr(X+16*xb+4*j,4)}, v{va}, {srd(sWS)}, s72 offen offset:{(j&1)*1792} sc1{s.nths if store else s.nthl}")
                ins.append("s_mov_b64 exec, -1")
                g.append(((tag, tag), ins))
            return g
        def mat2(groups):
            out = []
            for tag, ins in groups:
                if isinstance(tag, tuple):
                    for t_ in tag: q.issue(t_)
                else: q.issue(tag)
                out.append(ins)
            return out

        s.wbase = P[1]; s.xbase = P[1]
        def rebase_lines(regs, cur, nb):
            d = (nb - cur) & 0xffffffff
            return [f"v_add_u32 v{r}, {hex(d)}, v{r}" for r in regs]
        def base_for(slot, cur):
            if 0 <= slot - cur <= 49152: return cur
            for b in (P[1], W[0], P[0], P[2]):
                if 0 <= slot - b <= 49152: return b
            raise ValueError
        LA = o.la
        def frags_c(lst):
            fr = []
            for ci, (slot, xb, first) in enumerate(lst):
                fr += [(slot, xb, first and j == 0, j, D, ci) for j in range(4) for D in range(4)]
            return fr
        def stream(fr, fillers=None, prologue=False, gapfill=None):
            n = len(fr)
            lq = Q(15)
            def xrd(ci, j):
                slot = PX[ci % 4]; r = []
                nb = base_for(slot, s.xbase)
                if nb != s.xbase:
                    r += rebase_lines(range(XA, XA+4), s.xbase, nb); s.xbase = nb
                lq.issue(f"X{ci}_{j}")
                r.append(f"ds_read_b128 {vr(X+16*ci+4*j,4)}, v{XA+j} offset:{slot - s.xbase}")
                return r
            def rd(f):
                slot, xb, zero, j, D, ci = fr[f]; r = []
                if prologue and j == 0 and D == 0 and ci > 0:
                    r += s.stamp_lines(f"x{ci}")
                    r.append("s_barrier")
                    r += s.stamp_lines(f"p{ci}")
                nb = base_for(slot, s.wbase)
                if nb != s.wbase:
                    r += rebase_lines(range(WA, WA+4), s.wbase, nb); s.wbase = nb
                if prologue and D == 0: r += xrd(ci, j)
                for a in range(2):
                    lq.issue(f)
                    r.append(f"ds_read_b64_tr_b16 {vr(WIN+4*(f%8)+2*a,2)}, v{WA+D} offset:{slot-s.wbase + j*2048 + a*1024}")
                return r
            gaps = gapfill if gapfill is not None else [[] for _ in range(n)]
            if fillers: spread(gaps, fillers, 0, n)
            for f in range(min(LA, n)): s.emit(rd(f))
            issued = min(LA, n)
            for f in range(n):
                slot, xb, zero, j, D, ci = fr[f]
                k = lq.wait([f, f + 1] if (f % 2 == 0 and f + 1 < issued) else [f])
                if k is not None: A(f"s_waitcnt lgkmcnt({k})")
                srcC = "0" if zero else vr(ACC+16*D, 16)
                A(f"v_mfma_f32_32x32x16_bf16 {vr(ACC+16*D,16)}, {vr(WIN+4*(f%8),4)}, {vr(X+16*xb+4*j,4)}, {srcC}")
                if issued < n:
                    s.emit(rd(issued)); issued += 1
                s.emit(gaps[f])
        def write_q(base_off):
            for D in range(4):
                for i in range(16):
                    A(f"v_mul_f32 v{ACC+16*D+i}, s{sCS}, v{ACC+16*D+i}")
                for h in range(2):
                    f = 2*D + h
                    for i in range(4):
                        A(f"v_cvt_pk_bf16_f32 v{WIN+4*f+i}, v{ACC+16*D+8*h+2*i}, v{ACC+16*D+8*h+2*i+1}")
                    A(f"ds_write_b128 v{vQW}, {vr(WIN+4*f,4)} offset:{base_off + f*1024}")
            A("s_waitcnt lgkmcnt(0)")
        def pair(j):
            a = s.dma_k(j, vK, nt, f"KV{j}") if j <= 15 else []
            b = s.dma_v(j, vV, nt, f"KV{j}") if j >= 1 else []
            return a + b
        def own_frags():
            for half in range(2):
                for j in range(4):
                    A(f"ds_read_b128 {vr(X+16*half+4*j,4)}, v{vOL} offset:{half*4096 + j*512}")
            A("s_waitcnt lgkmcnt(0)")

        A(f"v_add_u32 v21, s{sHP}, v1")
        A("v_add_u32 v21, 1, v21")
        A("v_and_b32 v21, 3, v21")
        A(f"v_add_u32 v21, s{sGRP}, v21")
        A("v_lshlrev_b32 v21, 7, v21")
        A(f"v_add_u32 v22, s{sHG}, v1")
        A("v_add_u32 v22, 1, v22")
        A("v_and_b32 v22, 3, v22")
        A("v_lshlrev_b32 v22, 2, v22")
        A(f"s_and_b32 s71, s{sGRP}, {hex(0xfffffff0)}")
        A(f"s_add_u32 s71, s71, s{sHP}")
        A("v_add_u32 v22, s71, v22")
        A("v_lshlrev_b32 v22, 7, v22")
        A("v_lshlrev_b32 v23, 4, v1")
        A(f"s_lshl_b32 s{sPF}, s{sHG}, 20")
        A("s_lshr_b32 s70, s2, 3")
        A("s_lshl_b32 s70, s70, 15")
        A(f"s_add_u32 s{sPF}, s{sPF}, s70")
        A(f"s_lshl_b32 s70, s{sW}, 13")
        A(f"s_add_u32 s{sPF}, s{sPF}, s70")
        s.stamp("x0")
        A("s_barrier")
        s.stamp("p0")
        stream(frags_c([(PX[c % 4] + 16384, c, c == 0) for c in range(8)]), None, prologue=True)
        write_q(0)
        s.stamp("pro")
        def poll_check(vsrc, shift):
            A(f"v_readfirstlane_b32 s70, v{vsrc} ; @val=POLL")
            if shift == 0:
                A("s_lshr_b32 s71, s70, 1"); A("s_or_b32 s70, s70, s71")
            else:
                A(f"s_lshr_b32 s70, s70, {shift}")
            A("s_and_b32 s70, s70, 0x01010101")
            A("s_cmp_eq_u32 s70, 0x01010101")
        def mid_poll():
            return [f"s_and_b32 s71, s{sGRP}, {hex(0xfffffff0)}",
                    f"buffer_load_dwordx4 v[24:27], off, {srd(sDBG)}, s71 sc1"]
        def mid_check():
            return [f"v_and_b32 v24, v24, v25", f"v_and_b32 v26, v26, v27",
                    f"v_and_b32 v24, v24, v26",
                    "s_nop 0",
                    f"v_readfirstlane_b32 s70, v24 ; @val=POLL",
                    "s_and_b32 s70, s70, 0x01010101", "s_cmp_eq_u32 s70, 0x01010101"]
        def wave_poll(vaddr, nm, drain=True):
            A(f"s_mov_b32 s{sSPIN}, 0")
            A("s_mov_b64 exec, 7")
            s.lab(f"B_{nm}")
            A(f"buffer_load_dword v{VP}, v{vaddr}, {srd(sWS)}, s72 offen sc1")
            A("s_waitcnt vmcnt(0)")
            A(f"v_cmp_ne_u32 vcc, 0, v{VP}")
            A("s_cmp_eq_u32 vcc_lo, 7")
            A(f"s_cbranch_scc1 B_{nm}d ; @taken")
            A(f"s_add_u32 s{sSPIN}, s{sSPIN}, 1")
            A(f"s_cmp_lt_u32 s{sSPIN}, {o.spin}")
            A(f"s_cbranch_scc1 B_{nm}")
            s.lab(f"B_{nm}d")
            A("s_mov_b64 exec, -1")
            if drain: q.drain()
        wq_slot = lambda c: (P[0] + 16384) if c == 0 else W[(c + 1) % 4]
        wq_issue = {0: [1, 2], 1: [3], 2: [4], 3: [5], 4: [6], 5: [7]}
        wo0_slot = {(0,0): W[3], (0,1): W[0], (1,0): W[0], (1,1): W[1], (2,0): W[2], (2,1): W[3], (3,0): P[1], (3,1): P[2]}
        wo0_issue = {7: [(0,0)], 8: [(0,1)], 11: [(1,0)], 12: [(1,1), (2,0)], 13: [(2,1)], 14: [(3,0)], 15: [(3,1)]}
        wo0_use = {9: [(0,0)], 10: [(0,1)]}
        of0_issue = eval(o.f0)
        pf_issue = {1: [0, 1], 2: [2, 3], 3: [4], 4: [5], 5: [6], 6: [7]}
        wo1_slot = {(0,0): P[2] + 16384, (0,1): P[1] + 16384, (1,0): W[0], (1,1): W[1], (2,0): W[2], (2,1): W[3], (3,0): P[1], (3,1): P[2]}
        wo1_issue = {15: [(0,0)]}
        PO0 = o.po0
        for st in range(17):
            s.stamp(f"c{st}")
            tags = [f"KV{st}"]
            if 1 <= st <= 7: tags.append(f"Q{st}")
            for (p, h) in wo0_use.get(st, []):
                tags += [f"O0{p}{h}", f"F{p}"]
            if st == 10: tags.append("S0")
            if st == PO0 + 1: tags.append("POLL")
            if st == 9: tags.append("POLL0")
            if st == 8: tags.append("PF")
            wait_vm(tags)
            s.stamp(f"w{st}")
            A("s_barrier")
            s.stamp(f"s{st}")
            if st == 8:
                for d in range(4):
                    A(f"s_add_u32 s70, s{sHG}, {1 + d}")
                    A("s_and_b32 s70, s70, 3")
                    A(f"v_xor_b32 v29, s70, v{vR}")
                    A("v_lshlrev_b32 v29, 6, v29")
                    A(f"v_add_u32 v29, v29, v{vWB}")
                    A(f"v_add_u32 v{WA+d}, {s.wbase}, v29")
            pre_groups = []
            if st == 9:
                own_frags()
                pre_groups = of_mem(0, 0, 0, "S0", store=True) + of_mem(0, 0, 1, "S0", store=True)
            if st == 2:
                A(f"s_cmp_lg_u32 s{sW}, 0")
                A(f"s_cbranch_scc1 B_nf{st}")
                s.flag_store(1, 28)
                s.lab(f"B_nf{st}")
            if st == 8:
                s.emit(mid_poll()); q.issue("POLL0")
            if st == 9:
                s.emit(mid_check())
                A("s_cbranch_scc0 B_slow0 ; @nottaken")
                s.lab("B_slow0r")
            if st == 10:
                A(f"s_lshl_b32 s70, s{sMYB}, 7")
                A(f"s_lshl_b32 s71, s{sW}, 2")
                A(f"s_add_u32 s71, s71, {FLAG_BASE + 32}")
                A("s_add_u32 s70, s70, s71")
                A("v_mov_b32 v28, 1")
                A("s_mov_b64 exec, 1")
                A(f"buffer_store_dword v28, off, {srd(sWS)}, s70 sc1")
                A("s_mov_b64 exec, -1")
                q.issue("FL0")
            if st == PO0:
                A(f"s_lshl_b32 s72, s{sW}, 2")
                A(f"s_add_u32 s72, s72, {FLAG_BASE + 32}")
                A("s_mov_b64 exec, 7")
                A(f"buffer_load_dword v{VP}, v21, {srd(sWS)}, s72 offen sc1"); q.issue("POLL")
                A("s_mov_b64 exec, -1")
            if st == PO0 + 1:
                A("s_mov_b64 exec, 7")
                A(f"v_cmp_ne_u32 vcc, 0, v{VP}")
                A("s_mov_b64 exec, -1")
                A("s_cmp_eq_u32 vcc_lo, 7")
                A("s_cbranch_scc0 B_slow1 ; @nottaken")
                s.lab("B_slow1r")
            g_kv = pair(st + 2) if st + 2 <= 16 else []
            g_w = []
            for c in wq_issue.get(st, []): g_w += s.dma_wq(c, wq_slot(c), vW, f"Q{c}", 256, 72)
            for (p, h) in wo0_issue.get(st, []): g_w += dma_wo(0, p, h, wo0_slot[(p, h)])
            g_f = []
            for p in of0_issue.get(st, []): g_f += of_mem(0, p, 0, f"F{p}") + of_mem(0, p, 1, f"F{p}")
            g_1 = []
            for (p, h) in wo1_issue.get(st, []): g_1 += dma_wo(1, p, h, wo1_slot[(p, h)])
            g_p = []
            if o.pf:
                for t in pf_issue.get(st, []):
                    g_p.append(("PF", [f"s_add_u32 s71, s{sPF}, {t*1024}",
                                       f"buffer_load_dwordx4 v[24:27], v23, {srd(sWO)}, s71 offen ; @dummy"]))
            gm = {"w": g_w + g_1, "f": g_f, "k": g_kv, "p": g_p}
            groups = pre_groups + sum((gm[c] for c in o.order), [])
            mem = mat2(groups)
            use = ([(wq_slot(st), st, st == 0)] if st <= 7 else []) + \
                  [(wo0_slot[(p, h)], 2*p + h, (p, h) == (0, 0)) for (p, h) in wo0_use.get(st, [])]
            if use:
                stream(frags_c(use), mem)
                if st == 7: write_q(16384)
            else:
                for g_ in mem: s.emit(g_)
            s.stamp(f"d{st}")
        wait_vm(["O010", "O011", "O020", "O021", "O030", "O031", "O100", "F1"])
        A(f"v_add_u32 v{vOL}, {hex((P[0] - W[1]) & 0xffffffff)}, v{vOL}")
        A("s_barrier")
        s.stamp("E")
        for g_ in mat2(dma_wo(1, 0, 1, wo1_slot[(0, 1)])): s.emit(g_)
        for p in (1, 2):
            wait_vm(f"F{p}")
            stream(frags_c([(wo0_slot[(p, 0)], 2*p, False), (wo0_slot[(p, 1)], 2*p + 1, False)]))
        wait_vm("O101")
        A("s_barrier")
        s.stamp("Ta")
        wait_vm("F3")
        fl = mat2(sum((dma_wo(1, p, h, wo1_slot[(p, h)]) for (p, h) in ((1, 0), (1, 1), (2, 0), (2, 1))), []))
        stream(frags_c([(wo0_slot[(3, 0)], 6, False), (wo0_slot[(3, 1)], 7, False)]), fl)
        own_frags()
        s.stamp("own")
        A(f"s_lshl_b32 s72, s{sW}, 2")
        A(f"s_add_u32 s72, s72, {FLAG_BASE}")
        wave_poll(21, "poll1")
        s.stamp("poll1")
        gl = lambda p: of_mem(1, p, 0, f"G{p}") + of_mem(1, p, 1, f"G{p}")
        for g_ in mat2(gl(1)): s.emit(g_)
        A("s_barrier")
        A("v_lshrrev_b32 v17, 5, v1")
        A("v_mul_u32_u24 v23, 112, v17")
        A("v_and_b32 v18, 31, v1")
        A("v_add_u32 v23, v23, v18")
        A(f"s_lshl_b32 s70, s{sW}, 5")
        A("v_add_u32 v23, s70, v23")
        A("v_add_u32 v19, s70, v18")
        A("v_lshlrev_b32 v23, 4, v23")
        A(f"s_lshl_b32 s70, s{sBR}, 3")
        A(f"s_add_u32 s70, s70, s{sB}")
        A(f"s_lshl_b32 s70, s70, 2")
        A(f"s_add_u32 s70, s70, s{sHP}")
        A(f"s_mul_i32 s73, s70, {12*PSZ}")
        A(f"s_add_u32 s73, s73, {PART_BASE}")
        for d in range(3):
            A(f"s_add_u32 s70, s{sHG}, {1 + d}")
            A("s_and_b32 s70, s70, 3")
            A(f"s_mul_i32 s70, s70, {3*PSZ}")
            A(f"s_add_u32 s70, s70, s73")
            A(f"s_add_u32 s{sWP+d}, s70, {(2-d)*PSZ}")
        A("v_lshlrev_b32 v19, 11, v19")
        A("v_lshlrev_b32 v17, 4, v17")
        A("v_add_u32 v19, v19, v17")
        fl = mat2(gl(2) + dma_wo(1, 3, 0, wo1_slot[(3, 0)]) + dma_wo(1, 3, 1, wo1_slot[(3, 1)]))
        fo = frags_c([(wo1_slot[(0, 0)], 0, False), (wo1_slot[(0, 1)], 1, False)])
        gp = [[] for _ in fo]
        spread(gp, fl, o.g2at, len(fo))
        stream(fo, None, gapfill=gp)
        s.stamp("own1")
        ND = 3 if o.defer else 4
        for p in (1, 2):
            wait_vm(f"G{p}")
            fl = mat2(gl(3)) if p == 1 else None
            stream([f for f in frags_c([(wo1_slot[(p, 0)], 2*p, False), (wo1_slot[(p, 1)], 2*p + 1, False)]) if f[4] < ND], fl)
        wait_vm(["G3", "O130", "O131"])
        A("s_barrier")
        fr = []
        for d in range(ND):
            for half in range(2):
                for j in range(4):
                    fr.append((wo1_slot[(3, half)], 6 + half, False, j, d, half))
        for p in ((1, 2, 3) if o.defer else ()):
            for half in range(2):
                for j in range(4):
                    fr.append((wo1_slot[(p, half)], 2*p + half, False, j, 3, half))
        gaps = [[] for _ in range(len(fr))]
        def pub(d):
            r = []
            for rq in range(4):
                r.append([f"s_add_u32 s70, s{sWP+d}, {rq*3584}", f"s_mov_b64 exec, s[{sEXLO}:{sEXHI}]",
                          f"buffer_store_dwordx4 {vr(ACC+16*d+4*rq,4)}, v23, {srd(sWS)}, s70 offen sc1{s.nths}", "s_mov_b64 exec, -1"])
            return r
        for d in range(3):
            spread(gaps, pub(d), 8*d + 8 + 3, 8*d + 8 + 7)
        stream(fr, None, gapfill=gaps)
        s.stamp("oproj")
        A(f"s_lshl_b32 s70, s{sMYB}, 7")
        A(f"s_lshl_b32 s72, s{sW}, 2")
        A(f"s_add_u32 s72, s72, {FLAG_BASE + 16}")
        A("s_add_u32 s70, s70, s72")
        A("v_mov_b32 v20, 1")
        A("s_waitcnt vmcnt(0)")
        s.stamp("pst")
        A("s_mov_b64 exec, 1")
        A(f"buffer_store_dword v20, off, {srd(sWS)}, s70 sc1")
        wave_poll(22, "poll2")
        s.stamp("poll2")
        A(f"s_mul_i32 s71, s{sHG}, {3*PSZ}")
        A("s_add_u32 s73, s73, s71")
        R = 64
        A(f"s_mov_b64 exec, s[{sEXLO}:{sEXHI}]")
        for src in range(3):
            for rq in range(4):
                A(f"s_add_u32 s70, s73, {src*PSZ + rq*3584}")
                A(f"buffer_load_dwordx4 {vr(R+16*src+4*rq,4)}, v23, {srd(sWS)}, s70 offen sc1{s.nthl}")
        A(f"s_mul_i32 s70, s{sB}, {112*2048}")
        A(f"s_lshl_b32 s71, s{sBR}, 10")
        A("s_add_u32 s70, s70, s71")
        A(f"s_lshl_b32 s71, s{sHP}, 8")
        A("s_add_u32 s70, s70, s71")
        A(f"s_lshl_b32 s71, s{sHG}, 6")
        A("s_add_u32 s70, s70, s71")
        OWN = ACC + 48
        A("s_waitcnt vmcnt(8)")
        for i in range(8): A(f"v_pk_add_f32 {vr(OWN+2*i,2)}, {vr(OWN+2*i,2)}, {vr(R+2*i,2)}")
        A("s_waitcnt vmcnt(4)")
        for i in range(8): A(f"v_pk_add_f32 {vr(OWN+2*i,2)}, {vr(OWN+2*i,2)}, {vr(R+16+2*i,2)}")
        A("s_waitcnt vmcnt(0)")
        for i in range(8): A(f"v_pk_add_f32 {vr(OWN+2*i,2)}, {vr(OWN+2*i,2)}, {vr(R+32+2*i,2)}")
        for i in range(8):
            A(f"v_cvt_pk_bf16_f32 v{32+i}, v{OWN+2*i}, v{OWN+2*i+1}")
        for h in range(2):
            A(f"buffer_store_dwordx4 {vr(32+4*h,4)}, v19, {srd(sOUT)}, s70 offen offset:{h*32}")
        A("s_mov_b64 exec, -1")
        if o.stamp:
            A("s_waitcnt vmcnt(0)")
            A(f"s_cmp_lg_u32 s{sW}, 0")
            A("s_cbranch_scc1 L_end")
            s.stamp("end"); s.stamp("cend", True)
            A("s_waitcnt lgkmcnt(0)")
            n = len(o.stamps.split(","))
            assert n <= len(STAMP_REGS)
            A("s_lshl_b32 s70, s2, 8")
            A(f"s_add_u32 s70, s70, {STAMP_BASE}")
            A("s_mov_b64 exec, 1")
            for i in range(n):
                r = STAMP_REGS[i]
                A(f"v_mov_b32 v32, s{r}"); A(f"v_mov_b32 v33, s{r+1}")
                A(f"buffer_store_dwordx2 v[32:33], off, {srd(sWS)}, s70 offset:{8*i}")
                A("s_nop 1")
        A("s_endpgm")
        s.lab("B_slow0")
        A(f"s_mov_b32 s{sSPIN}, 0")
        s.lab("B_slow0l")
        s.emit(mid_poll())
        A("s_waitcnt vmcnt(0)")
        s.emit(mid_check())
        A("s_cbranch_scc1 B_slow0r ; @taken")
        A(f"s_add_u32 s{sSPIN}, s{sSPIN}, 1")
        A(f"s_cmp_lt_u32 s{sSPIN}, {o.spin}")
        A("s_cbranch_scc1 B_slow0l")
        A("s_branch B_slow0r")
        s.lab("B_slow1")
        A(f"s_lshl_b32 s72, s{sW}, 2")
        A(f"s_add_u32 s72, s72, {FLAG_BASE + 32}")
        wave_poll(21, "slow1l", drain=False)
        A("s_branch B_slow1r")

    def build(s):
        s.common()
        s.waveA()
        s.waveB()
        s.lab("L_end")
        s.A("s_endpgm")
        lines = [l for l in s.L if l is not None]
        cfgs = []
        for wave in (0, 1, 3, 4, 5, 7):
            cfgs.append((f"wg5w{wave}", {2: 5}, {"WAVE": wave, "POLL": 0x03030303, "POLL3": 0x03030303}))
        cfgs.append(("allresc", {2: 5}, {"WAVE": 1, "ALLRESC": 1}))
        cfgs.append(("extra", {2: 256}, {"WAVE": 0}))
        lines = asmlib.finalize(lines, cfgs, verbose=True)
        return "\n".join(lines)

if __name__ == "__main__":
    ap = argparse.ArgumentParser()
    ap.add_argument("-o", default="k6.s")
    ap.add_argument("--stamp", action="store_true")
    ap.add_argument("--cyc", action="store_true")
    ap.add_argument("--stamps", default="start,pro,s8,E,poll1,oproj,pst,poll2,end")
    ap.add_argument("--nt", type=int, default=1)
    ap.add_argument("--prioA", type=int, default=0)
    for n_ in ("ntw", "ntx", "nto", "nths", "nthl"): ap.add_argument("--" + n_, type=int, default=0)
    ap.add_argument("--astamp", type=int, default=-1)
    ap.add_argument("--la", type=int, default=6)
    ap.add_argument("--nbub", type=int, default=3)
    ap.add_argument("--rot", type=int, default=1)
    ap.add_argument("--k0at", type=int, default=5)
    ap.add_argument("--p1at", type=int, default=7)
    ap.add_argument("--pf", type=int, default=0)
    ap.add_argument("--f0", default="{14: [1], 15: [2], 16: [3]}")
    ap.add_argument("--po0", type=int, default=12)
    ap.add_argument("--defer", type=int, default=1)
    ap.add_argument("--g2at", type=int, default=8)
    ap.add_argument("--order", default="wfkp")
    ap.add_argument("--spin", type=int, default=0x8000)
    o = ap.parse_args()
    g = Gen(o)
    body = g.build()
    k = kernel_text(NAME + "_kernel", body, vgpr=256)
    hdr = ["; @launch grid=(256,1,1) block=(512,1,1) lds=163840"]
    if o.stamp: hdr.append("; STAMPS " + o.stamps)
    if o.astamp >= 0: hdr.append("; ASTAMP")
    if o.cyc: hdr.append("; STAMPCYC")
    open(o.o, "w").write(file_text(hdr, [k]))
    print("wrote", o.o, len(body.splitlines()), "lines")
```

```python
import sys, argparse, struct
from gen_common import *
import asmlib

P = [0, 32768, 65536]
W = [98304, 114688, 131072, 147456]
UNIT = 28672
PART_BASE = 16 << 20
PSZ = 14336
STAMP_BASE = 128 << 20
FLAG_BASE = 32 << 20
THR = 12.0

sK, sV, sWQ, sX, sWS, sWO, sOUT, sDBG = 4, 8, 12, 16, 20, 24, 28, 32
sWAVE, sW, sBR, sHG, sB, sHP, sH0, sKV = 62, 63, 64, 65, 66, 67, 68, 69
sXB, sPEND = 72, 73
sEV, sTHR, sPAT = 74, 75, 76
sSTEP, sROT, sNEG, sOBASE = 77, 78, 79, 80
sW4K, sWQB, sKVW, sWOB, sGRP, sMYB = 81, 82, 83, 84, 85, 86
sSPIN = 87
sEXLO, sEXHI = 88, 89
sPOS = 3
sWP, sOP = 54, 58
STAMP_REGS = [90, 92, 94, 96, 98, 100] + list(range(36, 54, 2))

def srd(r): return f"s[{r}:{r+3}]"
def vr(a, n=1): return f"v{a}" if n == 1 else f"v[{a}:{a+n-1}]"
def fbits(x): return struct.unpack('<I', struct.pack('<f', x))[0]
CSCALE = (128 ** -0.5) * 1.4426950408889634

class Q:
    def __init__(s, maxn): s.q = []; s.maxn = maxn
    def issue(s, tag):
        s.q.append(tag)
        assert len(s.q) <= s.maxn, ("counter overflow", s.q)
    def wait(s, tags):
        if isinstance(tags, str): tags = [tags]
        last = -1
        for i, t in enumerate(s.q):
            if t in tags: last = i
        if last < 0: return None
        n = len(s.q) - 1 - last
        s.q = s.q[last + 1:]
        return n
    def drain(s): s.q = []

def spread(slots, items, start=0, end=None):
    if end is None: end = len(slots)
    n = end - start
    m = len(items)
    for i, it in enumerate(items):
        k = start + (i * n) // m
        slots[k].extend(it)

class Gen:
    def __init__(s, opt):
        s.L = []; s.opt = opt
        f = lambda b: " nt" if b else ""
        s.ntw, s.ntx, s.nto, s.nths, s.nthl = f(opt.ntw), f(opt.ntx), f(opt.nto), f(opt.nths), f(opt.nthl)
    def A(s, t): s.L.append("  " + t)
    def lab(s, n): s.L.append(n + ":")
    def emit(s, lines):
        for l in lines:
            if l.endswith(":"): s.L.append(l)
            else: s.L.append("  " + l)
    def stamp_lines(s, name, cyc=False):
        if not s.opt.stamp: return []
        names = s.opt.stamps.split(",")
        if name not in names: return []
        r = STAMP_REGS[names.index(name)]
        cyc = cyc or s.opt.cyc or (s.opt.dbgst and name not in ("start", "end"))
        return [f"s_mem{'time' if cyc else 'realtime'} s[{r}:{r+1}]"]
    def stamp(s, name, cyc=False): s.emit(s.stamp_lines(name, cyc))
    def ast(s, i):
        return [f"s_memtime s[{36+2*i}:{37+2*i}]"] if s.opt.astamp >= 0 else []

    def common(s):
        A = s.A
        A("s_cmp_ge_u32 s2, 256")
        A("s_cbranch_scc1 L_end")
        s.stamp("start"); s.stamp("cstart", True)
        A("s_load_dwordx16 s[36:51], s[0:1], 0")
        A("s_load_dwordx8 s[52:59], s[0:1], 64")
        A("s_load_dwordx2 s[60:61], s[0:1], 96")
        A("v_lshrrev_b32 v1, 6, v0")
        A("s_and_b32 s70, s2, 7")
        A("s_lshr_b32 s71, s2, 3")
        A(f"v_readfirstlane_b32 s{sWAVE}, v1 ; @val=WAVE")
        A(f"s_lshr_b32 s{sBR}, s70, 2")
        A(f"s_and_b32 s{sHG}, s70, 3")
        A(f"s_and_b32 s{sB}, s71, 7")
        A(f"s_lshr_b32 s{sHP}, s71, 3")
        A(f"s_lshl_b32 s{sH0}, s{sHG}, 3")
        A(f"s_lshl_b32 s70, s{sHP}, 1")
        A(f"s_add_u32 s{sH0}, s{sH0}, s70")
        A(f"s_add_u32 s{sROT}, s{sB}, s70")
        if not s.opt.rot: A(f"s_mov_b32 s{sROT}, 0")
        A(f"s_and_b32 s{sW}, s{sWAVE}, 3")
        A(f"s_lshl_b32 s{sW4K}, s{sW}, 12")
        A("v_and_b32 v1, 63, v0")
        A("v_lshrrev_b32 v19, 4, v1")
        A("v_and_b32 v20, 15, v1")
        A("v_lshlrev_b32 v21, 2, v19")
        A("v_xor_b32 v21, v20, v21")
        A("v_lshlrev_b32 v21, 4, v21")
        A("v_lshrrev_b32 v17, 5, v1")
        A("v_and_b32 v18, 3, v1")
        A("v_lshlrev_b32 v2, 13, v19")
        A("v_add_u32 v2, v2, v21")
        A("v_lshrrev_b32 v22, 3, v1")
        A("v_lshlrev_b32 v22, 10, v22")
        A("v_and_b32 v23, 7, v1")
        A("v_xor_b32 v23, v23, v19")
        A("v_lshlrev_b32 v24, 4, v23")
        A("v_add_u32 v3, v22, v24")
        A("v_xor_b32 v24, 64, v24")
        A("v_add_u32 v4, v22, v24")
        for r, sz in ((sK, 33554432), (sV, 33554432), (sWQ, 4194304), (sWS, 268435456), (sWO, 4194304), (sOUT, 1835008), (sDBG, 256)):
            A(f"s_mov_b32 s{r+2}, {sz}")
            A(f"s_mov_b32 s{r+3}, 0x20000")
        A(f"s_mov_b32 s{sX+3}, 0x20000")
        A(f"s_lshl_b32 s70, s{sW}, 17")
        A(f"s_lshl_b32 s71, s{sH0}, 8")
        A(f"s_add_u32 s{sWQB}, s70, s71")
        A(f"s_mul_i32 s70, s{sB}, 112")
        A(f"s_add_u32 s71, s70, 112")
        A(f"s_lshl_b32 s{sX+2}, s71, 10")
        A(f"s_lshl_b32 s71, s{sW}, 5")
        A("s_add_u32 s70, s70, s71")
        A(f"s_lshl_b32 s{sXB}, s70, 10")
        A(f"s_lshl_b32 s70, s{sB}, 5")
        A(f"s_add_u32 s70, s70, s{sH0}")
        A(f"s_lshl_b32 s{sKV}, s70, 17")
        A(f"s_add_u32 s{sKVW}, s{sKV}, s{sW4K}")
        A(f"s_cmp_eq_u32 s{sBR}, 0")
        A("s_waitcnt lgkmcnt(0)")
        s.stamp("k")
        for r, a, b in ((sX, 36, 46), (sWQ, 42, 52), (sK, 38, 48), (sV, 40, 50), (sWO, 44, 54)):
            A(f"s_cselect_b32 s{r}, s{a}, s{b}")
            A(f"s_cselect_b32 s{r+1}, s{a+1}, s{b+1}")
        for r, a in ((sOUT, 56), (sDBG, 58), (sWS, 60)):
            A(f"s_mov_b32 s{r}, s{a}")
            A(f"s_mov_b32 s{r+1}, s{a+1}")
        A(f"s_cmp_ge_u32 s{sWAVE}, 4")
        A("s_cbranch_scc1 L_B")

    def late_scalars(s):
        A = s.A
        A(f"s_lshl_b32 s70, s{sBR}, 3")
        A(f"s_add_u32 s70, s70, s{sB}")
        A(f"s_lshl_b32 s71, s70, 5")
        A(f"s_add_u32 s71, s71, s{sH0}")
        A(f"s_mul_i32 s{sOBASE}, s71, {UNIT}")
        A(f"s_lshl_b32 s71, s70, 2")
        A(f"s_add_u32 s71, s71, s{sHG}")
        A(f"s_lshl_b32 s{sGRP}, s71, 2")
        A(f"s_add_u32 s{sMYB}, s{sGRP}, s{sHP}")
        A(f"s_cmp_eq_u32 s{sW}, 3")
        A(f"s_cselect_b32 s{sEXLO}, 0xffff, -1")
        A(f"s_mov_b32 s{sEXHI}, s{sEXLO}")

    def kv_voffs(s, vK, vV):
        A = s.A
        A("v_lshlrev_b32 v22, 8, v19")
        A(f"v_add_u32 v{vV}, v22, v21")
        for t in range(4):
            A(f"v_add_u32 v23, {4*t}, v19")
            A(f"v_xor_b32 v23, v20, v23")
            A(f"v_lshlrev_b32 v23, 4, v23")
            A(f"v_add_u32 v{vK+t}, v22, v23")

    def flag_store(s, val, vtmp):
        A = s.A
        A(f"v_mov_b32 v{vtmp}, {val}")
        A("s_mov_b64 exec, 1")
        A(f"buffer_store_byte v{vtmp}, off, {srd(sDBG)}, s{sMYB} sc1")
        A("s_mov_b64 exec, -1")

    def dma_k(s, j, vK, nt, tag):
        g = []
        for t in range(4):
            pre = [f"s_add_u32 m0, s{sW4K}, {P[j%3]}", f"s_add_u32 s70, s{sKVW}, {j*16384}"] if t == 0 else []
            g.append((tag, pre + [f"buffer_load_dwordx4 v{vK+t}, {srd(sK)}, s70 offen offset:{t*1024}{nt} lds"]))
        return g
    def dma_v(s, j, vV, nt, tag):
        g = []
        for t in range(4):
            pre = [f"s_add_u32 m0, s{sW4K}, {P[j%3]+16384}", f"s_add_u32 s70, s{sKVW}, {(j-1)*16384}"] if t == 0 else []
            g.append((tag, pre + [f"buffer_load_dwordx4 v{vV}, {srd(sV)}, s70 offen offset:{t*1024}{nt} lds"]))
        return g
    def kc_lines(s, c, dst):
        return [f"s_add_u32 s{dst}, s{sROT}, {c}", f"s_and_b32 s{dst}, s{dst}, 7"]
    def dma_wq(s, c, slot, vW, tag, extra, tmp):
        g = []
        for t in range(4):
            pre = []
            if t == 0:
                pre = s.kc_lines(c, tmp) + [f"s_lshl_b32 s{tmp}, s{tmp}, 19", f"s_add_u32 s{tmp}, s{tmp}, s{sWQB}",
                                            f"s_add_u32 m0, s{sW4K}, {slot}"]
            g.append((tag, pre + [f"s_add_u32 s71, s{tmp}, {extra + t*31744}",
                                  f"buffer_load_dwordx4 v{vW}, {srd(sWQ)}, s71 offen offset:{t*1024}{s.ntw} lds"]))
        return g

    def waveA(s):
        A = s.A; o = s.opt
        nt = " nt" if o.nt else ""
        Q_, SB, Pr, O, WIN, NM = 0, [32, 64], 96, 112, 176, 208
        KA, VA, QA, OV, RL = 224, 232, 236, 237, 238
        LS, AL, T = 240, 242, 244
        vK, vV = 5, 9
        q = Q(63)
        PX = [P[1], P[2], W[0], W[2]]
        def dma_x(c):
            g = []
            for t in range(4):
                pre = []
                if t == 0:
                    pre = s.kc_lines(c, 87) + ["s_lshl_b32 s87, s87, 7", f"s_add_u32 s87, s87, s{sXB}", f"s_add_u32 m0, s{sW4K}, {PX[c%4]}"]
                g.append((f"C{c}", pre + [f"s_add_u32 s71, s87, {t*7168}",
                                          f"buffer_load_dwordx4 v{3 + (t&1)}, {srd(sX)}, s71 offen offset:{t*1024}{s.ntx} lds"]))
            return g
        def issue(groups):
            for tag, ins in groups:
                q.issue(tag); s.emit(ins)
        def chunk(c): return dma_x(c) + s.dma_wq(c, PX[c % 4] + 16384, 2, f"C{c}", 0, 87)
        issue(chunk(0))
        s.stamp("a0")
        issue(chunk(1))
        s.late_scalars()
        s.kv_voffs(vK, vV)
        A("v_and_b32 v10, 31, v1")
        A("v_lshlrev_b32 v10, 8, v10")
        A("v_xor_b32 v11, v17, v20")
        for k in range(8):
            A(f"v_xor_b32 v12, {2*k}, v11")
            A(f"v_lshlrev_b32 v12, 4, v12")
            A(f"v_add_u32 v{KA+k}, v10, v12")
        A("v_lshrrev_b32 v10, 2, v20")
        A("v_and_b32 v11, 1, v19")
        A("v_lshlrev_b32 v12, 10, v17")
        A("v_lshlrev_b32 v13, 8, v10")
        A("v_add_u32 v12, v12, v13")
        A("v_lshlrev_b32 v13, 5, v11")
        A("v_add_u32 v12, v12, v13")
        A("v_and_b32 v13, 1, v18")
        A("v_lshlrev_b32 v13, 4, v13")
        A("v_add_u32 v12, v12, v13")
        A("v_lshrrev_b32 v13, 1, v18")
        A("v_lshlrev_b32 v13, 3, v13")
        A("v_add_u32 v12, v12, v13")
        A("v_add_u32 v12, 16384, v12")
        for D in range(4):
            A(f"v_xor_b32 v13, {D}, v10")
            A(f"v_lshlrev_b32 v13, 6, v13")
            A(f"v_add_u32 v{VA+D}, v12, v13")
        A(f"s_lshl_b32 s70, s{sW}, 13")
        A(f"s_add_u32 s70, s70, {W[0]}")
        A(f"v_lshlrev_b32 v{QA}, 4, v1")
        A(f"v_add_u32 v{QA}, s70, v{QA}")
        A(f"v_mul_u32_u24 v{OV}, 112, v17")
        A(f"v_and_b32 v12, 31, v1")
        A(f"v_add_u32 v{OV}, v{OV}, v12")
        A(f"s_lshl_b32 s70, s{sW}, 5")
        A(f"v_add_u32 v{OV}, s70, v{OV}")
        A(f"v_lshlrev_b32 v{OV}, 4, v{OV}")
        for i in range(8): A(f"v_mov_b64 {vr(NM+2*i,2)}, 0")
        A(f"v_mov_b64 {vr(LS,2)}, 0")
        A(f"s_mov_b32 s{sEV}, {hex((1<<0)|(1<<8)|(1<<1)|(1<<7))}")
        A(f"s_mov_b32 s{sPAT}, {hex(sum(1 << i for i in range(2, 17, 3)))}")
        A(f"s_mov_b32 s{sNEG}, 0xffff0000")
        A(f"s_mov_b32 s{sPOS}, 32768")
        A(f"s_mov_b32 s{sTHR}, {hex(fbits(THR))}")
        A(f"s_mov_b32 s{sSTEP}, 0")
        A(f"s_mov_b32 s{sPEND}, 0")
        A(f"s_add_u32 s{sOBASE}, s{sOBASE}, {UNIT}")
        for k in range(8):
            n = q.wait(f"C{k}")
            if n is not None: A(f"s_waitcnt vmcnt({n})")
            s.stamp(f"aw{k}")
            A("s_barrier")
            if k + 2 < 8: issue(chunk(k + 2))
            if k == o.k0at: issue(s.dma_k(0, vK, nt, "K0"))
            if k == 5: issue(s.dma_wq(0, P[0] + 16384, 2, "Q0", 256, 87))
            if k == o.p1at: issue(s.dma_k(1, vK, nt, "KV1") + s.dma_v(1, vV, nt, "KV1"))
        n0 = q.wait(["K0", "Q0"])
        assert n0 == 8, n0
        if o.prioA: A(f"s_setprio {o.prioA}")

        U = T + 4
        def fin_D(D, dst):
            L = [f"v_mul_f32 v{O+16*D+i}, v{AL}, v{O+16*D+i}" for i in range(16)]
            L += [f"v_cvt_pk_bf16_f32 v{dst+8*D+i}, v{O+16*D+2*i}, v{O+16*D+2*i+1}" for i in range(8)]
            return L
        def step(par, last=False):
            cur, prev = SB[par], SB[1 - par]
            lq = Q(15)
            L = []
            def wl(tags):
                n = lq.wait(tags)
                return [f"s_waitcnt lgkmcnt({n})"] if n is not None else []
            def kread(i):
                T_, k = divmod(i, 8); lq.issue(f"K{i}")
                return [f"ds_read_b128 {vr(WIN + 4*(i % 8), 4)}, v{KA+k} offset:{T_*8192}"]
            vorder = [divmod(f, 4) for f in range(16)] if not last else [(t, D) for D in range(4) for t in range(4)]
            def vread(f):
                t, D = vorder[f]; r = []
                for a in range(2):
                    lq.issue(f"V{f}")
                    r.append(f"ds_read_b64_tr_b16 {vr(WIN + 4*(f % 8) + 2*a, 2)}, v{VA+D} offset:{t*4096 + a*2048}")
                return r
            exp = lambda r: [f"v_exp_f32 v{r}, v{r}"]
            add = lambda r: [f"v_add_f32 v{LS + (r & 1)}, v{LS + (r & 1)}, v{r}"]
            cvt = lambda t, i: [f"v_cvt_pk_bf16_f32 v{Pr+4*t+i}, v{prev+8*t+2*i}, v{prev+8*t+2*i+1}"]
            mx = lambda d, a, b, c: [f"v_max3_f32 v{d}, v{a}, v{b}, v{c}"]
            bub = []
            for i in range(4): bub += [cvt(0, i), add(prev + 2*i), add(prev + 2*i + 1)]
            for i in range(4): bub += [cvt(1, i), add(prev + 8 + 2*i), add(prev + 8 + 2*i + 1)]
            F1 = []
            e = [exp(prev + 16 + i) for i in range(16)]
            a_ = [add(prev + 16 + i) for i in range(16)]
            c2 = [cvt(2, i) for i in range(4)]; c3 = [cvt(3, i) for i in range(4)]
            F1 += [e[0], e[1], e[2]]
            for i in range(3, 16):
                F1 += [e[i], a_[i - 3]]
                if i in (5, 7, 9, 11): F1.append(c2[(i - 5) // 2])
                if i in (13, 15): F1.append(c3[(i - 13) // 2])
            F1 += [a_[13], c3[2], a_[14], a_[15], c3[3]]
            def maxT(base, d0, d1):
                return [mx(d0, base, base+1, base+2), mx(d1, base+8, base+9, base+10),
                        mx(d0, d0, base+3, base+4), mx(d1, d1, base+11, base+12),
                        mx(d0, d0, base+5, base+6), mx(d1, d1, base+13, base+14),
                        mx(d0, d0, base+7, base+15)]
            M0 = maxT(cur, U, U+1)
            M1 = maxT(cur+16, U+2, U+3)
            fin = [mx(U, U, U+1, U+2), [f"v_max_f32 v{U}, v{U}, v{U+3}"]]
            tagp = "e" if par == 0 else "o"
            chk = [f"v_cmp_lt_f32 vcc, s{sTHR}, v{U}",
                   f"s_nop 0",
                   f"s_cbranch_vccnz A_resc{tagp} ; @takenif={sTHR}:0xff800000",
                   f"A_resc{tagp}r:"]
            advK = [[f"v_add_u32 v{KA+k}, s70, v{KA+k}"] for k in range(8)]
            advV = [[f"v_add_u32 v{VA+D}, s70, v{VA+D}"] for D in range(4)]
            exps1 = [exp(cur+i) for i in range(16)]

            L += s.ast(1)
            if not last:
                for i in range(8): L += kread(i)
                for it in bub: L += it
                nb = o.nbub
                for it in F1[:nb]: L += it
                gaps = [[] for _ in range(16)]
                spread(gaps, F1[nb:], 0, 14)
                spread(gaps, M0, 10, 16)
                for i in range(16):
                    T_, k = divmod(i, 8)
                    if i % 2 == 0: L += wl([f"K{i}", f"K{i+1}"])
                    srcC = vr(NM, 16) if k == 0 else vr(cur + 16*T_, 16)
                    L.append(f"v_mfma_f32_32x32x16_bf16 {vr(cur+16*T_,16)}, {vr(WIN+4*(i%8),4)}, {vr(Q_+4*k,4)}, {srcC}")
                    if i + 8 < 16: L += kread(i + 8)
                    if i >= 9: L += vread(i - 9)
                    L += gaps[i]
                    if i == 7: L += s.ast(2)
                L += s.ast(3)
                vissued = 7
                gaps = [[] for _ in range(16)]
                spread(gaps, advK[:4], 0, 2)
                spread(gaps, M1 + fin, 2, 5)
                gaps[5] += chk
                spread(gaps, exps1, 5, 16)
                spread(gaps, advK[4:], 6, 10)
                spread(gaps, advV, 10, 14)
                L += [f"s_bitcmp1_b32 s{sPAT}, s{sSTEP}", f"s_cselect_b32 s70, s{sNEG}, s{sPOS}"]
            else:
                for f in range(7): L += vread(f)
                vissued = 7
                for it in bub: L += it
                for it in F1: L += it
                L += rl_lines(AL)
                L.append(f"v_add_u32 v{QA}, {hex((P[0] - W[1]) & 0xffffffff)}, v{QA}")
                gaps = [[] for _ in range(16)]
                for D in range(3):
                    items = [[x] for x in fin_D(D, cur)] + [out_D(D, cur)]
                    spread(gaps, items, 4*D + 6 if D < 2 else 14, 4*D + 10 if D < 2 else 16)
            for f in range(16):
                t, D = vorder[f]
                if f % 2 == 0: L += wl([f"V{f}", f"V{f+1}"])
                L.append(f"v_mfma_f32_32x32x16_bf16 {vr(O+16*D,16)}, {vr(WIN+4*(f%8),4)}, {vr(Pr+4*t,4)}, {vr(O+16*D,16)}")
                if vissued < 16:
                    L += vread(vissued); vissued += 1
                L += gaps[f]
                if f == 6 and not last: L += s.ast(4)
            if not last:
                L += s.ast(5)
                L += [f"s_cmp_lg_u32 s{sPEND}, 0", f"s_cbranch_scc1 A_pend{tagp}", f"A_pend{tagp}r:"]
                L += s.ast(6)
                if s.opt.astamp >= 0:
                    L += ["s_waitcnt lgkmcnt(0)", f"s_cmp_eq_u32 s{sSTEP}, {s.opt.astamp}"]
                    L += [f"s_cselect_b32 s{50+i}, s{36+2*i}, s{50+i}" for i in range(7)]
            else:
                L += fin_D(3, cur) + out_D(3, cur)
            return L
        def out_D(D, src):
            L = []
            for h in range(2):
                L.append(f"ds_write_b128 v{QA}, {vr(src+8*D+4*h,4)} offset:{(2*D+h)*1024}")
            L.append(f"s_mov_b64 exec, s[{sEXLO}:{sEXHI}]")
            for h in range(2):
                L.append(f"s_add_u32 s71, s{sOBASE}, {(4*D+2*h)*1792}")
                L.append(f"buffer_store_dwordx4 {vr(src+8*D+4*h,4)}, v{OV}, {srd(sWS)}, s71 offen sc1{s.nths}")
            L.append("s_mov_b64 exec, -1")
            return L
        def rl_lines(dst):
            return [f"v_add_f32 v{T}, v{LS}, v{LS+1}", f"v_mov_b32 v{T+1}, v{T}", f"v_permlane32_swap_b32 v{T}, v{T+1}",
                    f"v_add_f32 v{T}, v{T}, v{T+1}", f"v_rcp_f32 v{dst}, v{T}"]

        s.lab("A_loop")
        for par in range(2):
            tagp = "e" if par == 0 else "o"
            s.emit(s.ast(0))
            A(f"s_bitcmp1_b32 s{sEV}, s{sSTEP}")
            A(f"s_cbranch_scc1 A_top{tagp}")
            A("s_barrier")
            s.lab(f"A_top{tagp}r")
            s.emit(step(par))
            A(f"s_add_u32 s{sSTEP}, s{sSTEP}, 1")
        A(f"s_cmp_lt_u32 s{sSTEP}, 16")
        A("s_cbranch_scc1 A_loop")
        A("s_barrier")
        s.emit(step(0, last=True))
        A("s_waitcnt lgkmcnt(0)")
        A("s_barrier")
        A(f"s_lshl_b32 s70, s{sMYB}, 7")
        A(f"s_add_u32 s70, s70, {FLAG_BASE}")
        A(f"s_lshl_b32 s71, s{sW}, 2")
        A("s_add_u32 s70, s70, s71")
        A(f"v_mov_b32 v{T}, 1")
        A("s_waitcnt vmcnt(0)")
        A("s_mov_b64 exec, 1")
        A(f"buffer_store_dword v{T}, off, {srd(sWS)}, s70 sc1")
        A("s_mov_b64 exec, -1")
        if o.astamp >= 0:
            A(f"s_cmp_lg_u32 s{sW}, 0")
            A("s_cbranch_scc1 L_end")
            A("s_lshl_b32 s70, s2, 8")
            A(f"s_add_u32 s70, s70, {STAMP_BASE + 65536}")
            A("s_mov_b64 exec, 1")
            for i in range(7):
                A(f"v_mov_b32 v32, s{50+i}")
                A(f"buffer_store_dword v32, off, {srd(sWS)}, s70 offset:{4*i}")
                A("s_nop 1")
        A("s_endpgm")
        s.lab("A_tope")
        A(f"s_cmp_eq_u32 s{sSTEP}, 0")
        A("s_cbranch_scc0 A_top8")
        A(f"s_waitcnt vmcnt({n0})")
        A("s_barrier")
        for i in range(8):
            A(f"ds_read_b128 {vr(Q_+4*i,4)}, v{QA} offset:{i*1024}")
        A(f"v_add_u32 v{QA}, 16384, v{QA}")
        A("s_branch A_top8b")
        s.lab("A_top8")
        A("s_barrier")
        for i in range(8):
            A(f"ds_read_b128 {vr(Q_+4*i,4)}, v{QA} offset:{i*1024}")
        s.lab("A_top8b")
        A(f"s_mov_b32 s{sTHR}, 0xff800000")
        A("s_waitcnt lgkmcnt(0)")
        A("s_branch A_toper")
        s.lab("A_topo")
        A(f"s_cmp_eq_u32 s{sSTEP}, 1")
        A("s_cbranch_scc0 A_top7")
        A("s_waitcnt vmcnt(0)")
        A("s_barrier")
        A("s_branch A_topor")
        s.lab("A_top7")
        A(f"s_or_b32 s{sPEND}, s{sPEND}, 4")
        A("s_barrier")
        A("s_branch A_topor")
        for par in range(2):
            tagp = "e" if par == 0 else "o"; cur = SB[par]
            s.lab(f"A_resc{tagp}")
            A(f"v_mov_b32 v{U+1}, v{U}")
            A(f"v_permlane32_swap_b32 v{U}, v{U+1}")
            A(f"v_max_f32 v{U}, v{U}, v{U+1}")
            if par == 0:
                A(f"s_and_b32 s71, s{sSTEP}, 7")
                A("s_cmp_eq_u32 s71, 0")
                A("s_cbranch_scc1 A_hsw")
            A(f"v_max_f32 v{U}, 0, v{U}")
            A(f"v_sub_f32 v{U+1}, 0, v{U}")
            A(f"v_exp_f32 v{AL}, v{U+1}")
            A(f"s_or_b32 s{sPEND}, s{sPEND}, 1")
            A(f"v_mul_f32 v{LS}, v{AL}, v{LS}")
            A(f"v_mul_f32 v{LS+1}, v{AL}, v{LS+1}")
            if par == 0: s.lab("A_hswj")
            for i in range(32): A(f"v_sub_f32 v{cur+i}, v{cur+i}, v{U}")
            for i in range(16): A(f"v_sub_f32 v{NM+i}, v{NM+i}, v{U}")
            A(f"s_branch A_resc{tagp}r")
        s.lab("A_hsw")
        s.emit(rl_lines(RL))
        A(f"v_mov_b64 {vr(LS,2)}, 0")
        A(f"s_mov_b32 s{sTHR}, {hex(fbits(THR))}")
        A(f"s_lshr_b32 s{sPEND}, s{sSTEP}, 3")
        A(f"s_add_u32 s{sPEND}, s{sPEND}, 2")
        A(f"s_lshl_b32 s{sPEND}, s{sPEND}, 3")
        A("s_branch A_hswj")
        for par in range(2):
            tagp = "e" if par == 0 else "o"
            s.lab(f"A_pend{tagp}")
            if par == 0:
                A(f"s_cmp_ge_u32 s{sPEND}, 16")
                A("s_cbranch_scc1 A_pz")
            A(f"s_bitcmp1_b32 s{sPEND}, 0")
            A(f"s_cbranch_scc0 A_pn{tagp}")
            for i in range(32):
                A(f"v_pk_mul_f32 {vr(O+2*i,2)}, {vr(O+2*i,2)}, {vr(AL,2)} op_sel_hi:[1,0]")
            s.lab(f"A_pn{tagp}")
            if par == 1:
                A(f"s_bitcmp1_b32 s{sPEND}, 2")
                A(f"s_cbranch_scc0 A_pm{tagp}")
                for i in range(8): A(f"v_mov_b64 {vr(NM+2*i,2)}, 0")
                s.lab(f"A_pm{tagp}")
            A(f"s_mov_b32 s{sPEND}, 0")
            A(f"s_branch A_pend{tagp}r")
        s.lab("A_pz")
        A(f"s_cmp_eq_u32 s{sPEND}, 24")
        A("s_cbranch_scc0 A_pz2")
        A(f"v_mov_b32 v{AL}, v{RL}")
        for D in range(4):
            s.emit(fin_D(D, WIN))
            for h in range(2):
                A(f"ds_write_b128 v{QA}, {vr(WIN+8*D+4*h,4)} offset:{(2*D+h)*1024}")
        A("s_waitcnt lgkmcnt(0)")
        s.lab("A_pz2")
        for i in range(32): A(f"v_mov_b64 {vr(O+2*i,2)}, 0")
        A(f"s_mov_b32 s{sPEND}, 0")
        A(f"s_branch A_pender")

    def waveB(s):
        A = s.A; o = s.opt
        vV, vW, vK, WA, vWO, vO, vQW, vWB = 2, 3, 4, 8, 12, 13, 14, 15
        Y, vR, vOL, VP = 16, 17, 18, 20
        XA = 24
        WIN, X, ACC = 32, 64, 192
        q = Q(63)
        nt = " nt" if o.nt else ""
        PX = [P[1], P[2], W[0], W[2]]
        s.lab("L_B")
        s.stamp("b0")
        A(f"v_mov_b32 v{vW}, v2")
        s.late_scalars()
        A(f"s_cmp_lg_u32 s{sW}, 0")
        A("s_cbranch_scc1 B_nclr")
        A("v_mov_b32 v28, 0")
        A("v_lshlrev_b32 v29, 2, v1")
        A(f"s_lshl_b32 s70, s{sMYB}, 7")
        A(f"s_add_u32 s70, s70, {FLAG_BASE}")
        A("s_mov_b64 exec, 0xfff")
        A(f"buffer_store_dword v28, v29, {srd(sWS)}, s70 offen sc1")
        A("s_mov_b64 exec, -1")
        s.lab("B_nclr")
        s.kv_voffs(vK, vV)
        A("v_lshlrev_b32 v23, 10, v19")
        A(f"v_add_u32 v{vWO}, v23, v21")
        A("v_lshrrev_b32 v22, 2, v20")
        A("v_and_b32 v23, 1, v19")
        A("v_lshlrev_b32 v28, 13, v17")
        A("v_lshlrev_b32 v29, 8, v22")
        A("v_add_u32 v28, v28, v29")
        A("v_lshlrev_b32 v29, 5, v23")
        A("v_add_u32 v28, v28, v29")
        A("v_and_b32 v29, 1, v18")
        A("v_lshlrev_b32 v29, 4, v29")
        A("v_add_u32 v28, v28, v29")
        A("v_lshrrev_b32 v29, 1, v18")
        A("v_lshlrev_b32 v29, 3, v29")
        A(f"v_add_u32 v{vWB}, v28, v29")
        A(f"v_add_u32 v28, {P[1]}, v{vWB}")
        for D in range(4):
            A(f"v_xor_b32 v29, {D}, v22")
            A(f"v_lshlrev_b32 v29, 6, v29")
            A(f"v_add_u32 v{WA+D}, v28, v29")
        A("v_and_b32 v28, 31, v1")
        A("v_lshrrev_b32 v29, 1, v28")
        A("v_and_b32 v29, 7, v29")
        A("v_lshlrev_b32 v30, 2, v17")
        A("v_xor_b32 v29, v29, v30")
        A("v_lshlrev_b32 v28, 7, v28")
        A(f"s_add_u32 s70, s{sW4K}, {P[1]}")
        A("v_add_u32 v28, s70, v28")
        for j in range(4):
            A(f"v_xor_b32 v30, {j}, v29")
            A(f"v_lshlrev_b32 v30, 4, v30")
            A(f"v_add_u32 v{XA+j}, v28, v30")
        A(f"v_mul_u32_u24 v{vO}, 448, v17")
        A("v_and_b32 v29, 31, v1")
        A(f"v_add_u32 v{vO}, v{vO}, v29")
        A(f"s_lshl_b32 s70, s{sW}, 5")
        A(f"v_add_u32 v{vO}, s70, v{vO}")
        A(f"v_lshlrev_b32 v{vO}, 4, v{vO}")
        A(f"s_lshl_b32 s70, s{sW}, 13")
        A(f"s_add_u32 s70, s70, {W[0]}")
        A(f"v_lshlrev_b32 v{vQW}, 4, v1")
        A(f"v_add_u32 v{vQW}, s70, v{vQW}")
        A(f"v_lshlrev_b32 v30, 11, v17")
        A(f"v_lshlrev_b32 v29, 4, v29")
        A(f"v_add_u32 v30, v30, v29")
        A(f"s_add_u32 s70, s70, 16384")
        A(f"v_add_u32 v31, s70, v30")
        A(f"v_mov_b32 v{vOL}, v31")
        A(f"v_mov_b32 v{vR}, v22")
        A(f"v_add_u32 v{Y}, 3584, v{vO}")
        A(f"s_lshl_b32 s70, s{sHG}, 20")
        A(f"s_lshl_b32 s71, s{sW}, 14")
        A("s_add_u32 s70, s70, s71")
        A(f"s_lshl_b32 s71, s{sHP}, 8")
        A(f"s_add_u32 s{sWOB}, s70, s71")
        A(f"s_lshl_b32 s70, s{sBR}, 3")
        A(f"s_add_u32 s70, s70, s{sB}")
        A(f"s_lshl_b32 s70, s70, 5")
        A(f"s_lshl_b32 s71, s{sHG}, 3")
        A(f"s_add_u32 s70, s70, s71")
        A(f"s_mul_i32 s73, s70, {UNIT}")
        for p in range(4):
            A(f"s_add_u32 s70, s{sHP}, {p}")
            A("s_and_b32 s70, s70, 3")
            A(f"s_lshl_b32 s71, s70, 18")
            A(f"s_add_u32 s{sWP+p}, s{sWOB}, s71")
            A(f"s_mul_i32 s71, s70, {2*UNIT}")
            A(f"s_add_u32 s{sOP+p}, s73, s71")
        A(f"s_mov_b32 s74, {hex(fbits(CSCALE))}")
        sCS = 74
        sPF = 75

        def wait_vm(tags):
            n = q.wait(tags)
            if n is not None: A(f"s_waitcnt vmcnt({n})")
        def mat(groups):
            out = []
            for tag, ins in groups:
                q.issue(tag); out.append(ins)
            return out
        def dma_wo(rr, p, half, slot):
            g = []
            for t in range(4):
                pre = [f"s_add_u32 m0, s{sW4K}, {slot}"] if t == 0 else []
                g.append((f"O{rr}{p}{half}", pre + [f"s_add_u32 s71, s{sWP+p}, {(rr*128 + 64*half)*1024 + t*3072}",
                          f"buffer_load_dwordx4 v{vWO}, {srd(sWO)}, s71 offen offset:{t*1024}{s.nto} lds"]))
            return g
        def of_mem(rr, p, half, tag, store=False):
            g = []
            xb = 2*p + half
            for jj in range(2):
                va = vO if jj == 0 else Y
                ins = [f"s_add_u32 s72, s{sOP+p}, {rr*UNIT + half*8*1792}", f"s_mov_b64 exec, s[{sEXLO}:{sEXHI}]"]
                for j in (2*jj, 2*jj+1):
                    op = "buffer_store_dwordx4" if store else "buffer_load_dwordx4"
                    ins.append(f"{op} {vr(X+16*xb+4*j,4)}, v{va}, {srd(sWS)}, s72 offen offset:{(j&1)*1792} sc1{s.nths if store else s.nthl}")
                ins.append("s_mov_b64 exec, -1")
                g.append(((tag, tag), ins))
            return g
        def mat2(groups):
            out = []
            for tag, ins in groups:
                if isinstance(tag, tuple):
                    for t_ in tag: q.issue(t_)
                else: q.issue(tag)
                out.append(ins)
            return out

        s.wbase = P[1]; s.xbase = P[1]
        def rebase_lines(regs, cur, nb):
            d = (nb - cur) & 0xffffffff
            return [f"v_add_u32 v{r}, {hex(d)}, v{r}" for r in regs]
        def base_for(slot, cur):
            if 0 <= slot - cur <= 49152: return cur
            for b in (P[1], W[0], P[0], P[2]):
                if 0 <= slot - b <= 49152: return b
            raise ValueError
        LA = o.la
        def frags_c(lst):
            fr = []
            for ci, (slot, xb, first) in enumerate(lst):
                fr += [(slot, xb, first and j == 0, j, D, ci) for j in range(4) for D in range(4)]
            return fr
        def stream(fr, fillers=None, prologue=False, gapfill=None):
            n = len(fr)
            lq = Q(15)
            def xrd(ci, j):
                slot = PX[ci % 4]; r = []
                nb = base_for(slot, s.xbase)
                if nb != s.xbase:
                    r += rebase_lines(range(XA, XA+4), s.xbase, nb); s.xbase = nb
                lq.issue(f"X{ci}_{j}")
                r.append(f"ds_read_b128 {vr(X+16*ci+4*j,4)}, v{XA+j} offset:{slot - s.xbase}")
                return r
            def rd(f):
                slot, xb, zero, j, D, ci = fr[f]; r = []
                if prologue and j == 0 and D == 0 and ci > 0:
                    r += s.stamp_lines(f"x{ci}")
                    r.append("s_barrier")
                    r += s.stamp_lines(f"p{ci}")
                nb = base_for(slot, s.wbase)
                if nb != s.wbase:
                    r += rebase_lines(range(WA, WA+4), s.wbase, nb); s.wbase = nb
                if prologue and D == 0: r += xrd(ci, j)
                for a in range(2):
                    lq.issue(f)
                    r.append(f"ds_read_b64_tr_b16 {vr(WIN+4*(f%8)+2*a,2)}, v{WA+D} offset:{slot-s.wbase + j*2048 + a*1024}")
                return r
            gaps = gapfill if gapfill is not None else [[] for _ in range(n)]
            if fillers: spread(gaps, fillers, 0, n)
            for f in range(min(LA, n)): s.emit(rd(f))
            issued = min(LA, n)
            for f in range(n):
                slot, xb, zero, j, D, ci = fr[f]
                k = lq.wait([f, f + 1] if (f % 2 == 0 and f + 1 < issued) else [f])
                if k is not None: A(f"s_waitcnt lgkmcnt({k})")
                srcC = "0" if zero else vr(ACC+16*D, 16)
                A(f"v_mfma_f32_32x32x16_bf16 {vr(ACC+16*D,16)}, {vr(WIN+4*(f%8),4)}, {vr(X+16*xb+4*j,4)}, {srcC}")
                if issued < n:
                    s.emit(rd(issued)); issued += 1
                s.emit(gaps[f])
        def write_q(base_off):
            for D in range(4):
                for i in range(16):
                    A(f"v_mul_f32 v{ACC+16*D+i}, s{sCS}, v{ACC+16*D+i}")
                for h in range(2):
                    f = 2*D + h
                    for i in range(4):
                        A(f"v_cvt_pk_bf16_f32 v{WIN+4*f+i}, v{ACC+16*D+8*h+2*i}, v{ACC+16*D+8*h+2*i+1}")
                    A(f"ds_write_b128 v{vQW}, {vr(WIN+4*f,4)} offset:{base_off + f*1024}")
            A("s_waitcnt lgkmcnt(0)")
        def pair(j):
            a = s.dma_k(j, vK, nt, f"KV{j}") if j <= 15 else []
            b = s.dma_v(j, vV, nt, f"KV{j}") if j >= 1 else []
            return a + b
        def own_frags():
            for half in range(2):
                for j in range(4):
                    A(f"ds_read_b128 {vr(X+16*half+4*j,4)}, v{vOL} offset:{half*4096 + j*512}")
            A("s_waitcnt lgkmcnt(0)")

        A(f"v_add_u32 v21, s{sHP}, v1")
        A("v_add_u32 v21, 1, v21")
        A("v_and_b32 v21, 3, v21")
        A(f"v_add_u32 v21, s{sGRP}, v21")
        A("v_lshlrev_b32 v21, 7, v21")
        A(f"v_add_u32 v22, s{sHG}, v1")
        A("v_add_u32 v22, 1, v22")
        A("v_and_b32 v22, 3, v22")
        A("v_lshlrev_b32 v22, 2, v22")
        A(f"s_and_b32 s71, s{sGRP}, {hex(0xfffffff0)}")
        A(f"s_add_u32 s71, s71, s{sHP}")
        A("v_add_u32 v22, s71, v22")
        A("v_lshlrev_b32 v22, 7, v22")
        A("v_lshlrev_b32 v23, 4, v1")
        A(f"s_lshl_b32 s{sPF}, s{sHG}, 20")
        A("s_lshr_b32 s70, s2, 3")
        A("s_lshl_b32 s70, s70, 15")
        A(f"s_add_u32 s{sPF}, s{sPF}, s70")
        A(f"s_lshl_b32 s70, s{sW}, 13")
        A(f"s_add_u32 s{sPF}, s{sPF}, s70")
        s.stamp("x0")
        A("s_barrier")
        s.stamp("p0")
        stream(frags_c([(PX[c % 4] + 16384, c, c == 0) for c in range(8)]), None, prologue=True)
        write_q(0)
        s.stamp("pro")
        def poll_check(vsrc, shift):
            A(f"v_readfirstlane_b32 s70, v{vsrc} ; @val=POLL")
            if shift == 0:
                A("s_lshr_b32 s71, s70, 1"); A("s_or_b32 s70, s70, s71")
            else:
                A(f"s_lshr_b32 s70, s70, {shift}")
            A("s_and_b32 s70, s70, 0x01010101")
            A("s_cmp_eq_u32 s70, 0x01010101")
        def mid_poll():
            return [f"s_and_b32 s71, s{sGRP}, {hex(0xfffffff0)}",
                    f"buffer_load_dwordx4 v[24:27], off, {srd(sDBG)}, s71 sc1"]
        def mid_check():
            return [f"v_and_b32 v24, v24, v25", f"v_and_b32 v26, v26, v27",
                    f"v_and_b32 v24, v24, v26",
                    "s_nop 0",
                    f"v_readfirstlane_b32 s70, v24 ; @val=POLL",
                    "s_and_b32 s70, s70, 0x01010101", "s_cmp_eq_u32 s70, 0x01010101"]
        def wave_poll(vaddr, nm, drain=True):
            A(f"s_mov_b32 s{sSPIN}, 0")
            A("s_mov_b64 exec, 7")
            s.lab(f"B_{nm}")
            A(f"buffer_load_dword v{VP}, v{vaddr}, {srd(sWS)}, s72 offen sc1")
            A("s_waitcnt vmcnt(0)")
            A(f"v_cmp_ne_u32 vcc, 0, v{VP}")
            A("s_cmp_eq_u32 vcc_lo, 7")
            A(f"s_cbranch_scc1 B_{nm}d ; @taken")
            A(f"s_add_u32 s{sSPIN}, s{sSPIN}, 1")
            A(f"s_cmp_lt_u32 s{sSPIN}, {o.spin}")
            A(f"s_cbranch_scc1 B_{nm}")
            s.lab(f"B_{nm}d")
            A("s_mov_b64 exec, -1")
            if drain: q.drain()
        wq_slot = lambda c: (P[0] + 16384) if c == 0 else W[(c + 1) % 4]
        wq_issue = {0: [1, 2], 1: [3], 2: [4], 3: [5], 4: [6], 5: [7]}
        wo0_slot = {(0,0): W[3], (0,1): W[0], (1,0): W[0], (1,1): W[1], (2,0): W[2], (2,1): W[3], (3,0): P[1], (3,1): P[2]}
        wo0_issue = {7: [(0,0)], 8: [(0,1)], 11: [(1,0)], 12: [(1,1), (2,0)], 13: [(2,1)], 14: [(3,0)], 15: [(3,1)]}
        wo0_use = {9: [(0,0)], 10: [(0,1)]}
        of0_issue = eval(o.f0)
        pf_issue = {1: [0, 1], 2: [2, 3], 3: [4], 4: [5], 5: [6], 6: [7]}
        wo1_slot = {(0,0): P[2] + 16384, (0,1): P[1] + 16384, (1,0): W[0], (1,1): W[1], (2,0): W[2], (2,1): W[3], (3,0): P[1], (3,1): P[2]}
        wo1_issue = {15: [(0,0)]}
        PO0 = o.po0
        for st in range(17):
            s.stamp(f"c{st}")
            tags = [f"KV{st}"]
            if 1 <= st <= 7: tags.append(f"Q{st}")
            for (p, h) in wo0_use.get(st, []):
                tags += [f"O0{p}{h}", f"F{p}"]
            if st == 10: tags.append("S0")
            if st == PO0 + 1: tags.append("POLL")
            if st == 9: tags.append("POLL0")
            if st == 8: tags.append("PF")
            wait_vm(tags)
            s.stamp(f"w{st}")
            A("s_barrier")
            s.stamp(f"s{st}")
            if st == 8:
                for d in range(4):
                    A(f"s_add_u32 s70, s{sHG}, {1 + d}")
                    A("s_and_b32 s70, s70, 3")
                    A(f"v_xor_b32 v29, s70, v{vR}")
                    A("v_lshlrev_b32 v29, 6, v29")
                    A(f"v_add_u32 v29, v29, v{vWB}")
                    A(f"v_add_u32 v{WA+d}, {s.wbase}, v29")
            pre_groups = []
            if st == 9:
                own_frags()
                pre_groups = of_mem(0, 0, 0, "S0", store=True) + of_mem(0, 0, 1, "S0", store=True)
            if st == 2:
                A(f"s_cmp_lg_u32 s{sW}, 0")
                A(f"s_cbranch_scc1 B_nf{st}")
                s.flag_store(1, 28)
                s.lab(f"B_nf{st}")
            if st == 8:
                s.emit(mid_poll()); q.issue("POLL0")
            if st == 9:
                s.emit(mid_check())
                A("s_cbranch_scc0 B_slow0 ; @nottaken")
                s.lab("B_slow0r")
            if st == 10:
                A(f"s_lshl_b32 s70, s{sMYB}, 7")
                A(f"s_lshl_b32 s71, s{sW}, 2")
                A(f"s_add_u32 s71, s71, {FLAG_BASE + 32}")
                A("s_add_u32 s70, s70, s71")
                A("v_mov_b32 v28, 1")
                A("s_mov_b64 exec, 1")
                A(f"buffer_store_dword v28, off, {srd(sWS)}, s70 sc1")
                A("s_mov_b64 exec, -1")
                q.issue("FL0")
            if st == PO0:
                A(f"s_lshl_b32 s72, s{sW}, 2")
                A(f"s_add_u32 s72, s72, {FLAG_BASE + 32}")
                A("s_mov_b64 exec, 7")
                A(f"buffer_load_dword v{VP}, v21, {srd(sWS)}, s72 offen sc1"); q.issue("POLL")
                A("s_mov_b64 exec, -1")
            if st == PO0 + 1:
                A("s_mov_b64 exec, 7")
                A(f"v_cmp_ne_u32 vcc, 0, v{VP}")
                A("s_mov_b64 exec, -1")
                A("s_cmp_eq_u32 vcc_lo, 7")
                A("s_cbranch_scc0 B_slow1 ; @nottaken")
                s.lab("B_slow1r")
            g_kv = pair(st + 2) if st + 2 <= 16 else []
            g_w = []
            for c in wq_issue.get(st, []): g_w += s.dma_wq(c, wq_slot(c), vW, f"Q{c}", 256, 72)
            for (p, h) in wo0_issue.get(st, []): g_w += dma_wo(0, p, h, wo0_slot[(p, h)])
            g_f = []
            for p in of0_issue.get(st, []): g_f += of_mem(0, p, 0, f"F{p}") + of_mem(0, p, 1, f"F{p}")
            g_1 = []
            for (p, h) in wo1_issue.get(st, []): g_1 += dma_wo(1, p, h, wo1_slot[(p, h)])
            g_p = []
            if o.pf:
                for t in pf_issue.get(st, []):
                    g_p.append(("PF", [f"s_add_u32 s71, s{sPF}, {t*1024}",
                                       f"buffer_load_dwordx4 v[24:27], v23, {srd(sWO)}, s71 offen ; @dummy"]))
            gm = {"w": g_w + g_1, "f": g_f, "k": g_kv, "p": g_p}
            groups = pre_groups + sum((gm[c] for c in o.order), [])
            mem = mat2(groups)
            use = ([(wq_slot(st), st, st == 0)] if st <= 7 else []) + \
                  [(wo0_slot[(p, h)], 2*p + h, (p, h) == (0, 0)) for (p, h) in wo0_use.get(st, [])]
            if use:
                stream(frags_c(use), mem)
                if st == 7: write_q(16384)
            else:
                for g_ in mem: s.emit(g_)
            s.stamp(f"d{st}")
        wait_vm(["O010", "O011", "O020", "O021", "O030", "O031", "O100", "F1"])
        A(f"v_add_u32 v{vOL}, {hex((P[0] - W[1]) & 0xffffffff)}, v{vOL}")
        A("s_barrier")
        s.stamp("E")
        for g_ in mat2(dma_wo(1, 0, 1, wo1_slot[(0, 1)])): s.emit(g_)
        for p in (1, 2):
            wait_vm(f"F{p}")
            stream(frags_c([(wo0_slot[(p, 0)], 2*p, False), (wo0_slot[(p, 1)], 2*p + 1, False)]))
        wait_vm("O101")
        A("s_barrier")
        s.stamp("Ta")
        wait_vm("F3")
        fl = mat2(sum((dma_wo(1, p, h, wo1_slot[(p, h)]) for (p, h) in ((1, 0), (1, 1), (2, 0), (2, 1))), []))
        stream(frags_c([(wo0_slot[(3, 0)], 6, False), (wo0_slot[(3, 1)], 7, False)]), fl)
        own_frags()
        s.stamp("own")
        A(f"s_lshl_b32 s72, s{sW}, 2")
        A(f"s_add_u32 s72, s72, {FLAG_BASE}")
        wave_poll(21, "poll1")
        s.stamp("poll1")
        gl = lambda p: of_mem(1, p, 0, f"G{p}") + of_mem(1, p, 1, f"G{p}")
        for g_ in mat2(gl(1)): s.emit(g_)
        A("s_barrier")
        A("v_lshrrev_b32 v17, 5, v1")
        A("v_mul_u32_u24 v23, 112, v17")
        A("v_and_b32 v18, 31, v1")
        A("v_add_u32 v23, v23, v18")
        A(f"s_lshl_b32 s70, s{sW}, 5")
        A("v_add_u32 v23, s70, v23")
        A("v_add_u32 v19, s70, v18")
        A("v_lshlrev_b32 v23, 4, v23")
        A(f"s_lshl_b32 s70, s{sBR}, 3")
        A(f"s_add_u32 s70, s70, s{sB}")
        A(f"s_lshl_b32 s70, s70, 2")
        A(f"s_add_u32 s70, s70, s{sHP}")
        A(f"s_mul_i32 s73, s70, {12*PSZ}")
        A(f"s_add_u32 s73, s73, {PART_BASE}")
        for d in range(3):
            A(f"s_add_u32 s70, s{sHG}, {1 + d}")
            A("s_and_b32 s70, s70, 3")
            A(f"s_mul_i32 s70, s70, {3*PSZ}")
            A(f"s_add_u32 s70, s70, s73")
            A(f"s_add_u32 s{sWP+d}, s70, {(2-d)*PSZ}")
        A("v_lshlrev_b32 v19, 11, v19")
        A("v_lshlrev_b32 v17, 4, v17")
        A("v_add_u32 v19, v19, v17")
        fl = mat2(gl(2) + dma_wo(1, 3, 0, wo1_slot[(3, 0)]) + dma_wo(1, 3, 1, wo1_slot[(3, 1)]))
        fo = frags_c([(wo1_slot[(0, 0)], 0, False), (wo1_slot[(0, 1)], 1, False)])
        gp = [[] for _ in fo]
        spread(gp, fl, o.g2at, len(fo))
        stream(fo, None, gapfill=gp)
        s.stamp("own1")
        ND = 3 if o.defer else 4
        for p in (1, 2):
            wait_vm(f"G{p}")
            fl = mat2(gl(3)) if p == 1 else None
            stream([f for f in frags_c([(wo1_slot[(p, 0)], 2*p, False), (wo1_slot[(p, 1)], 2*p + 1, False)]) if f[4] < ND], fl)
        wait_vm(["G3", "O130", "O131"])
        A("s_barrier")
        fr = []
        for d in range(ND):
            for half in range(2):
                for j in range(4):
                    fr.append((wo1_slot[(3, half)], 6 + half, False, j, d, half))
        for p in ((1, 2, 3) if o.defer else ()):
            for half in range(2):
                for j in range(4):
                    fr.append((wo1_slot[(p, half)], 2*p + half, False, j, 3, half))
        gaps = [[] for _ in range(len(fr))]
        def pub(d):
            r = []
            for rq in range(4):
                r.append([f"s_add_u32 s70, s{sWP+d}, {rq*3584}", f"s_mov_b64 exec, s[{sEXLO}:{sEXHI}]",
                          f"buffer_store_dwordx4 {vr(ACC+16*d+4*rq,4)}, v23, {srd(sWS)}, s70 offen sc1{s.nths}", "s_mov_b64 exec, -1"])
            return r
        for d in range(3):
            spread(gaps, pub(d), 8*d + 8 + 3, 8*d + 8 + 7)
        stream(fr, None, gapfill=gaps)
        s.stamp("oproj")
        A(f"s_lshl_b32 s70, s{sMYB}, 7")
        A(f"s_lshl_b32 s72, s{sW}, 2")
        A(f"s_add_u32 s72, s72, {FLAG_BASE + 16}")
        A("s_add_u32 s70, s70, s72")
        A("v_mov_b32 v20, 1")
        A("s_waitcnt vmcnt(0)")
        s.stamp("pst")
        A("s_mov_b64 exec, 1")
        A(f"buffer_store_dword v20, off, {srd(sWS)}, s70 sc1")
        wave_poll(22, "poll2")
        s.stamp("poll2")
        A(f"s_mul_i32 s71, s{sHG}, {3*PSZ}")
        A("s_add_u32 s73, s73, s71")
        R = 64
        A(f"s_mov_b64 exec, s[{sEXLO}:{sEXHI}]")
        for src in range(3):
            for rq in range(4):
                A(f"s_add_u32 s70, s73, {src*PSZ + rq*3584}")
                A(f"buffer_load_dwordx4 {vr(R+16*src+4*rq,4)}, v23, {srd(sWS)}, s70 offen sc1{s.nthl}")
        A(f"s_mul_i32 s70, s{sB}, {112*2048}")
        A(f"s_lshl_b32 s71, s{sBR}, 10")
        A("s_add_u32 s70, s70, s71")
        A(f"s_lshl_b32 s71, s{sHP}, 8")
        A("s_add_u32 s70, s70, s71")
        A(f"s_lshl_b32 s71, s{sHG}, 6")
        A("s_add_u32 s70, s70, s71")
        OWN = ACC + 48
        A("s_waitcnt vmcnt(8)")
        for i in range(8): A(f"v_pk_add_f32 {vr(OWN+2*i,2)}, {vr(OWN+2*i,2)}, {vr(R+2*i,2)}")
        A("s_waitcnt vmcnt(4)")
        for i in range(8): A(f"v_pk_add_f32 {vr(OWN+2*i,2)}, {vr(OWN+2*i,2)}, {vr(R+16+2*i,2)}")
        A("s_waitcnt vmcnt(0)")
        for i in range(8): A(f"v_pk_add_f32 {vr(OWN+2*i,2)}, {vr(OWN+2*i,2)}, {vr(R+32+2*i,2)}")
        for i in range(8):
            A(f"v_cvt_pk_bf16_f32 v{32+i}, v{OWN+2*i}, v{OWN+2*i+1}")
        for h in range(2):
            A(f"buffer_store_dwordx4 {vr(32+4*h,4)}, v19, {srd(sOUT)}, s70 offen offset:{h*32}")
        A("s_mov_b64 exec, -1")
        if o.dbgst:
            A("s_waitcnt vmcnt(0)")
            A(f"s_or_b32 s70, s{sW}, s{sHG}")
            A(f"s_or_b32 s70, s70, s{sHP}")
            A("s_cmp_lg_u32 s70, 0")
            A("s_cbranch_scc1 L_end")
            s.stamp("end"); s.stamp("cend", True)
            A("s_waitcnt lgkmcnt(0)")
            r = STAMP_REGS
            A(f"s_sub_u32 s70, s{r[5]}, s{r[1]}")
            A(f"s_sub_u32 s71, s{r[4]}, s{r[0]}")
            A(f"s_sub_u32 s72, s{r[2]}, s{r[1]}")
            A(f"s_sub_u32 s73, s{r[3]}, s{r[1]}")
            for i in range(4): A(f"v_mov_b32 v{32+i}, s{70+i}")
            A(f"s_and_b32 s71, s{sGRP}, {hex(0xfffffff0)}")
            A("s_mov_b64 exec, 1")
            A(f"buffer_store_dwordx4 v[32:35], off, {srd(sDBG)}, s71 sc1")
            A("s_endpgm")
        if o.stamp and not o.dbgst:
            A("s_waitcnt vmcnt(0)")
            A(f"s_cmp_lg_u32 s{sW}, 0")
            A("s_cbranch_scc1 L_end")
            s.stamp("end"); s.stamp("cend", True)
            A("s_waitcnt lgkmcnt(0)")
            n = len(o.stamps.split(","))
            assert n <= len(STAMP_REGS)
            A("s_lshl_b32 s70, s2, 8")
            A(f"s_add_u32 s70, s70, {STAMP_BASE}")
            A("s_mov_b64 exec, 1")
            for i in range(n):
                r = STAMP_REGS[i]
                A(f"v_mov_b32 v32, s{r}"); A(f"v_mov_b32 v33, s{r+1}")
                A(f"buffer_store_dwordx2 v[32:33], off, {srd(sWS)}, s70 offset:{8*i}")
                A("s_nop 1")
        A("s_endpgm")
        s.lab("B_slow0")
        A(f"s_mov_b32 s{sSPIN}, 0")
        s.lab("B_slow0l")
        s.emit(mid_poll())
        A("s_waitcnt vmcnt(0)")
        s.emit(mid_check())
        A("s_cbranch_scc1 B_slow0r ; @taken")
        A(f"s_add_u32 s{sSPIN}, s{sSPIN}, 1")
        A(f"s_cmp_lt_u32 s{sSPIN}, {o.spin}")
        A("s_cbranch_scc1 B_slow0l")
        A("s_branch B_slow0r")
        s.lab("B_slow1")
        A(f"s_lshl_b32 s72, s{sW}, 2")
        A(f"s_add_u32 s72, s72, {FLAG_BASE + 32}")
        wave_poll(21, "slow1l", drain=False)
        A("s_branch B_slow1r")

    def build(s):
        s.common()
        s.waveA()
        s.waveB()
        s.lab("L_end")
        s.A("s_endpgm")
        lines = [l for l in s.L if l is not None]
        cfgs = []
        for wave in (0, 1, 3, 4, 5, 7):
            cfgs.append((f"wg5w{wave}", {2: 5}, {"WAVE": wave, "POLL": 0x03030303, "POLL3": 0x03030303}))
        cfgs.append(("allresc", {2: 5}, {"WAVE": 1, "ALLRESC": 1}))
        cfgs.append(("extra", {2: 256}, {"WAVE": 0}))
        lines = asmlib.finalize(lines, cfgs, verbose=True)
        return "\n".join(lines)

if __name__ == "__main__":
    ap = argparse.ArgumentParser()
    ap.add_argument("-o", default="k6.s")
    ap.add_argument("--stamp", action="store_true")
    ap.add_argument("--cyc", action="store_true")
    ap.add_argument("--stamps", default="start,pro,s8,E,poll1,oproj,pst,poll2,end")
    ap.add_argument("--nt", type=int, default=1)
    ap.add_argument("--prioA", type=int, default=0)
    for n_ in ("ntw", "ntx", "nto", "nths", "nthl"): ap.add_argument("--" + n_, type=int, default=0)
    ap.add_argument("--astamp", type=int, default=-1)
    ap.add_argument("--la", type=int, default=6)
    ap.add_argument("--nbub", type=int, default=3)
    ap.add_argument("--rot", type=int, default=1)
    ap.add_argument("--k0at", type=int, default=5)
    ap.add_argument("--p1at", type=int, default=7)
    ap.add_argument("--pf", type=int, default=0)
    ap.add_argument("--f0", default="{14: [1], 15: [2], 16: [3]}")
    ap.add_argument("--po0", type=int, default=12)
    ap.add_argument("--defer", type=int, default=1)
    ap.add_argument("--dbgst", type=int, default=0)
    ap.add_argument("--g2at", type=int, default=8)
    ap.add_argument("--order", default="wfkp")
    ap.add_argument("--spin", type=int, default=0x8000)
    o = ap.parse_args()
    g = Gen(o)
    body = g.build()
    k = kernel_text(NAME + "_kernel", body, vgpr=256)
    hdr = ["; @launch grid=(256,1,1) block=(512,1,1) lds=163840"]
    if o.stamp and not o.dbgst: hdr.append("; STAMPS " + o.stamps)
    if o.astamp >= 0: hdr.append("; ASTAMP")
    if o.cyc: hdr.append("; STAMPCYC")
    open(o.o, "w").write(file_text(hdr, [k]))
    print("wrote", o.o, len(body.splitlines()), "lines")
```

```python
import sys, argparse, struct
from gen_common import *
import asmlib

P = [0, 32768, 65536]
W = [98304, 114688, 131072, 147456]
UNIT = 28672
PART_BASE = 16 << 20
PSZ = 14336
STAMP_BASE = 128 << 20
FLAG_BASE = 32 << 20
THR = 12.0

sK, sV, sWQ, sX, sWS, sWO, sOUT, sDBG = 4, 8, 12, 16, 20, 24, 28, 32
sWAVE, sW, sBR, sHG, sB, sHP, sH0, sKV = 62, 63, 64, 65, 66, 67, 68, 69
sXB, sPEND = 72, 73
sEV, sTHR, sPAT = 74, 75, 76
sSTEP, sROT, sNEG, sOBASE = 77, 78, 79, 80
sW4K, sWQB, sKVW, sWOB, sGRP, sMYB = 81, 82, 83, 84, 85, 86
sSPIN = 87
sEXLO, sEXHI = 88, 89
sPOS = 3
sWP, sOP = 54, 58
STAMP_REGS = [90, 92, 94, 96, 98, 100] + list(range(36, 54, 2))

def srd(r): return f"s[{r}:{r+3}]"
def vr(a, n=1): return f"v{a}" if n == 1 else f"v[{a}:{a+n-1}]"
def fbits(x): return struct.unpack('<I', struct.pack('<f', x))[0]
CSCALE = (128 ** -0.5) * 1.4426950408889634

class Q:
    def __init__(s, maxn): s.q = []; s.maxn = maxn
    def issue(s, tag):
        s.q.append(tag)
        assert len(s.q) <= s.maxn, ("counter overflow", s.q)
    def wait(s, tags):
        if isinstance(tags, str): tags = [tags]
        last = -1
        for i, t in enumerate(s.q):
            if t in tags: last = i
        if last < 0: return None
        n = len(s.q) - 1 - last
        s.q = s.q[last + 1:]
        return n
    def drain(s): s.q = []

def spread(slots, items, start=0, end=None):
    if end is None: end = len(slots)
    n = end - start
    m = len(items)
    for i, it in enumerate(items):
        k = start + (i * n) // m
        slots[k].extend(it)

class Gen:
    def __init__(s, opt):
        s.L = []; s.opt = opt
        f = lambda b: " nt" if b else ""
        s.ntw, s.ntx, s.nto, s.nths, s.nthl = f(opt.ntw), f(opt.ntx), f(opt.nto), f(opt.nths), f(opt.nthl)
    def A(s, t): s.L.append("  " + t)
    def lab(s, n): s.L.append(n + ":")
    def emit(s, lines):
        for l in lines:
            if l.endswith(":"): s.L.append(l)
            else: s.L.append("  " + l)
    def stamp_lines(s, name, cyc=False):
        if not s.opt.stamp: return []
        names = s.opt.stamps.split(",")
        if name not in names: return []
        r = STAMP_REGS[names.index(name)]
        cyc = cyc or s.opt.cyc or (s.opt.dbgst and name not in ("start", "end"))
        return [f"s_mem{'time' if cyc else 'realtime'} s[{r}:{r+1}]"]
    def stamp(s, name, cyc=False): s.emit(s.stamp_lines(name, cyc))
    def ast(s, i):
        return [f"s_memtime s[{36+2*i}:{37+2*i}]"] if s.opt.astamp >= 0 else []

    def common(s):
        A = s.A
        A("s_cmp_ge_u32 s2, 256")
        A("s_cbranch_scc1 L_end")
        s.stamp("start"); s.stamp("cstart", True)
        A("s_load_dwordx16 s[36:51], s[0:1], 0")
        A("s_load_dwordx8 s[52:59], s[0:1], 64")
        A("s_load_dwordx2 s[60:61], s[0:1], 96")
        A("v_lshrrev_b32 v1, 6, v0")
        A("s_and_b32 s70, s2, 7")
        A("s_lshr_b32 s71, s2, 3")
        if s.opt.cpf:
            KN = NAME + "_kernel"
            A("s_getpc_b64 s[84:85]")
            s.lab("L_pc")
            A(f"s_sub_u32 s84, s84, L_pc-{KN}")
            A("s_subb_u32 s85, s85, 0")
            A("v_lshlrev_b32 v2, 7, v1")
            A("v_and_b32 v3, 31, v0")
            A("v_lshlrev_b32 v3, 2, v3")
            A("v_add_u32 v2, v2, v3")
            A("s_lshl_b32 s72, s71, 10")
            A("v_add_u32 v2, s72, v2")
            A(f"v_min_u32 v2, L_end-{KN}, v2")
            A("global_load_dword v63, v2, s[84:85]")
        A(f"v_readfirstlane_b32 s{sWAVE}, v1 ; @val=WAVE")
        A(f"s_lshr_b32 s{sBR}, s70, 2")
        A(f"s_and_b32 s{sHG}, s70, 3")
        A(f"s_and_b32 s{sB}, s71, 7")
        A(f"s_lshr_b32 s{sHP}, s71, 3")
        A(f"s_lshl_b32 s{sH0}, s{sHG}, 3")
        A(f"s_lshl_b32 s70, s{sHP}, 1")
        A(f"s_add_u32 s{sH0}, s{sH0}, s70")
        A(f"s_add_u32 s{sROT}, s{sB}, s70")
        if not s.opt.rot: A(f"s_mov_b32 s{sROT}, 0")
        A(f"s_and_b32 s{sW}, s{sWAVE}, 3")
        A(f"s_lshl_b32 s{sW4K}, s{sW}, 12")
        A("v_and_b32 v1, 63, v0")
        A("v_lshrrev_b32 v19, 4, v1")
        A("v_and_b32 v20, 15, v1")
        A("v_lshlrev_b32 v21, 2, v19")
        A("v_xor_b32 v21, v20, v21")
        A("v_lshlrev_b32 v21, 4, v21")
        A("v_lshrrev_b32 v17, 5, v1")
        A("v_and_b32 v18, 3, v1")
        A("v_lshlrev_b32 v2, 13, v19")
        A("v_add_u32 v2, v2, v21")
        A("v_lshrrev_b32 v22, 3, v1")
        A("v_lshlrev_b32 v22, 10, v22")
        A("v_and_b32 v23, 7, v1")
        A("v_xor_b32 v23, v23, v19")
        A("v_lshlrev_b32 v24, 4, v23")
        A("v_add_u32 v3, v22, v24")
        A("v_xor_b32 v24, 64, v24")
        A("v_add_u32 v4, v22, v24")
        for r, sz in ((sK, 33554432), (sV, 33554432), (sWQ, 4194304), (sWS, 268435456), (sWO, 4194304), (sOUT, 1835008), (sDBG, 256)):
            A(f"s_mov_b32 s{r+2}, {sz}")
            A(f"s_mov_b32 s{r+3}, 0x20000")
        A(f"s_mov_b32 s{sX+3}, 0x20000")
        A(f"s_lshl_b32 s70, s{sW}, 17")
        A(f"s_lshl_b32 s71, s{sH0}, 8")
        A(f"s_add_u32 s{sWQB}, s70, s71")
        A(f"s_mul_i32 s70, s{sB}, 112")
        A(f"s_add_u32 s71, s70, 112")
        A(f"s_lshl_b32 s{sX+2}, s71, 10")
        A(f"s_lshl_b32 s71, s{sW}, 5")
        A("s_add_u32 s70, s70, s71")
        A(f"s_lshl_b32 s{sXB}, s70, 10")
        A(f"s_lshl_b32 s70, s{sB}, 5")
        A(f"s_add_u32 s70, s70, s{sH0}")
        A(f"s_lshl_b32 s{sKV}, s70, 17")
        A(f"s_add_u32 s{sKVW}, s{sKV}, s{sW4K}")
        A(f"s_cmp_eq_u32 s{sBR}, 0")
        A("s_waitcnt lgkmcnt(0)")
        s.stamp("k")
        for r, a, b in ((sX, 36, 46), (sWQ, 42, 52), (sK, 38, 48), (sV, 40, 50), (sWO, 44, 54)):
            A(f"s_cselect_b32 s{r}, s{a}, s{b}")
            A(f"s_cselect_b32 s{r+1}, s{a+1}, s{b+1}")
        for r, a in ((sOUT, 56), (sDBG, 58), (sWS, 60)):
            A(f"s_mov_b32 s{r}, s{a}")
            A(f"s_mov_b32 s{r+1}, s{a+1}")
        A(f"s_cmp_ge_u32 s{sWAVE}, 4")
        A("s_cbranch_scc1 L_B")

    def late_scalars(s):
        A = s.A
        A(f"s_lshl_b32 s70, s{sBR}, 3")
        A(f"s_add_u32 s70, s70, s{sB}")
        A(f"s_lshl_b32 s71, s70, 5")
        A(f"s_add_u32 s71, s71, s{sH0}")
        A(f"s_mul_i32 s{sOBASE}, s71, {UNIT}")
        A(f"s_lshl_b32 s71, s70, 2")
        A(f"s_add_u32 s71, s71, s{sHG}")
        A(f"s_lshl_b32 s{sGRP}, s71, 2")
        A(f"s_add_u32 s{sMYB}, s{sGRP}, s{sHP}")
        A(f"s_cmp_eq_u32 s{sW}, 3")
        A(f"s_cselect_b32 s{sEXLO}, 0xffff, -1")
        A(f"s_mov_b32 s{sEXHI}, s{sEXLO}")

    def kv_voffs(s, vK, vV):
        A = s.A
        A("v_lshlrev_b32 v22, 8, v19")
        A(f"v_add_u32 v{vV}, v22, v21")
        for t in range(4):
            A(f"v_add_u32 v23, {4*t}, v19")
            A(f"v_xor_b32 v23, v20, v23")
            A(f"v_lshlrev_b32 v23, 4, v23")
            A(f"v_add_u32 v{vK+t}, v22, v23")

    def flag_store(s, val, vtmp):
        A = s.A
        A(f"v_mov_b32 v{vtmp}, {val}")
        A("s_mov_b64 exec, 1")
        A(f"buffer_store_byte v{vtmp}, off, {srd(sDBG)}, s{sMYB} sc1")
        A("s_mov_b64 exec, -1")

    def dma_k(s, j, vK, nt, tag):
        g = []
        for t in range(4):
            pre = [f"s_add_u32 m0, s{sW4K}, {P[j%3]}", f"s_add_u32 s70, s{sKVW}, {j*16384}"] if t == 0 else []
            g.append((tag, pre + [f"buffer_load_dwordx4 v{vK+t}, {srd(sK)}, s70 offen offset:{t*1024}{nt} lds"]))
        return g
    def dma_v(s, j, vV, nt, tag):
        g = []
        for t in range(4):
            pre = [f"s_add_u32 m0, s{sW4K}, {P[j%3]+16384}", f"s_add_u32 s70, s{sKVW}, {(j-1)*16384}"] if t == 0 else []
            g.append((tag, pre + [f"buffer_load_dwordx4 v{vV}, {srd(sV)}, s70 offen offset:{t*1024}{nt} lds"]))
        return g
    def kc_lines(s, c, dst):
        return [f"s_add_u32 s{dst}, s{sROT}, {c}", f"s_and_b32 s{dst}, s{dst}, 7"]
    def dma_wq(s, c, slot, vW, tag, extra, tmp):
        g = []
        for t in range(4):
            pre = []
            if t == 0:
                pre = s.kc_lines(c, tmp) + [f"s_lshl_b32 s{tmp}, s{tmp}, 19", f"s_add_u32 s{tmp}, s{tmp}, s{sWQB}",
                                            f"s_add_u32 m0, s{sW4K}, {slot}"]
            g.append((tag, pre + [f"s_add_u32 s71, s{tmp}, {extra + t*31744}",
                                  f"buffer_load_dwordx4 v{vW}, {srd(sWQ)}, s71 offen offset:{t*1024}{s.ntw} lds"]))
        return g

    def waveA(s):
        A = s.A; o = s.opt
        nt = " nt" if o.nt else ""
        Q_, SB, Pr, O, WIN, NM = 0, [32, 64], 96, 112, 176, 208
        KA, VA, QA, OV, RL = 224, 232, 236, 237, 238
        LS, AL, T = 240, 242, 244
        vK, vV = 5, 9
        q = Q(63)
        PX = [P[1], P[2], W[0], W[2]]
        def dma_x(c):
            g = []
            for t in range(4):
                pre = []
                if t == 0:
                    pre = s.kc_lines(c, 87) + ["s_lshl_b32 s87, s87, 7", f"s_add_u32 s87, s87, s{sXB}", f"s_add_u32 m0, s{sW4K}, {PX[c%4]}"]
                g.append((f"C{c}", pre + [f"s_add_u32 s71, s87, {t*7168}",
                                          f"buffer_load_dwordx4 v{3 + (t&1)}, {srd(sX)}, s71 offen offset:{t*1024}{s.ntx} lds"]))
            return g
        def issue(groups):
            for tag, ins in groups:
                q.issue(tag); s.emit(ins)
        def chunk(c): return dma_x(c) + s.dma_wq(c, PX[c % 4] + 16384, 2, f"C{c}", 0, 87)
        issue(chunk(0))
        s.stamp("a0")
        issue(chunk(1))
        s.late_scalars()
        s.kv_voffs(vK, vV)
        A("v_and_b32 v10, 31, v1")
        A("v_lshlrev_b32 v10, 8, v10")
        A("v_xor_b32 v11, v17, v20")
        for k in range(8):
            A(f"v_xor_b32 v12, {2*k}, v11")
            A(f"v_lshlrev_b32 v12, 4, v12")
            A(f"v_add_u32 v{KA+k}, v10, v12")
        A("v_lshrrev_b32 v10, 2, v20")
        A("v_and_b32 v11, 1, v19")
        A("v_lshlrev_b32 v12, 10, v17")
        A("v_lshlrev_b32 v13, 8, v10")
        A("v_add_u32 v12, v12, v13")
        A("v_lshlrev_b32 v13, 5, v11")
        A("v_add_u32 v12, v12, v13")
        A("v_and_b32 v13, 1, v18")
        A("v_lshlrev_b32 v13, 4, v13")
        A("v_add_u32 v12, v12, v13")
        A("v_lshrrev_b32 v13, 1, v18")
        A("v_lshlrev_b32 v13, 3, v13")
        A("v_add_u32 v12, v12, v13")
        A("v_add_u32 v12, 16384, v12")
        for D in range(4):
            A(f"v_xor_b32 v13, {D}, v10")
            A(f"v_lshlrev_b32 v13, 6, v13")
            A(f"v_add_u32 v{VA+D}, v12, v13")
        A(f"s_lshl_b32 s70, s{sW}, 13")
        A(f"s_add_u32 s70, s70, {W[0]}")
        A(f"v_lshlrev_b32 v{QA}, 4, v1")
        A(f"v_add_u32 v{QA}, s70, v{QA}")
        A(f"v_mul_u32_u24 v{OV}, 112, v17")
        A(f"v_and_b32 v12, 31, v1")
        A(f"v_add_u32 v{OV}, v{OV}, v12")
        A(f"s_lshl_b32 s70, s{sW}, 5")
        A(f"v_add_u32 v{OV}, s70, v{OV}")
        A(f"v_lshlrev_b32 v{OV}, 4, v{OV}")
        for i in range(8): A(f"v_mov_b64 {vr(NM+2*i,2)}, 0")
        A(f"v_mov_b64 {vr(LS,2)}, 0")
        A(f"s_mov_b32 s{sEV}, {hex((1<<0)|(1<<8)|(1<<1)|(1<<7))}")
        A(f"s_mov_b32 s{sPAT}, {hex(sum(1 << i for i in range(2, 17, 3)))}")
        A(f"s_mov_b32 s{sNEG}, 0xffff0000")
        A(f"s_mov_b32 s{sPOS}, 32768")
        A(f"s_mov_b32 s{sTHR}, {hex(fbits(THR))}")
        A(f"s_mov_b32 s{sSTEP}, 0")
        A(f"s_mov_b32 s{sPEND}, 0")
        A(f"s_add_u32 s{sOBASE}, s{sOBASE}, {UNIT}")
        for k in range(8):
            n = q.wait(f"C{k}")
            if n is not None: A(f"s_waitcnt vmcnt({n})")
            s.stamp(f"aw{k}")
            A("s_barrier")
            if k + 2 < 8: issue(chunk(k + 2))
            if k == o.k0at: issue(s.dma_k(0, vK, nt, "K0"))
            if k == 5: issue(s.dma_wq(0, P[0] + 16384, 2, "Q0", 256, 87))
            if k == o.p1at: issue(s.dma_k(1, vK, nt, "KV1") + s.dma_v(1, vV, nt, "KV1"))
        n0 = q.wait(["K0", "Q0"])
        assert n0 == 8, n0
        if o.prioA: A(f"s_setprio {o.prioA}")

        U = T + 4
        def fin_D(D, dst):
            L = [f"v_mul_f32 v{O+16*D+i}, v{AL}, v{O+16*D+i}" for i in range(16)]
            L += [f"v_cvt_pk_bf16_f32 v{dst+8*D+i}, v{O+16*D+2*i}, v{O+16*D+2*i+1}" for i in range(8)]
            return L
        def step(par, last=False):
            cur, prev = SB[par], SB[1 - par]
            lq = Q(15)
            L = []
            def wl(tags):
                n = lq.wait(tags)
                return [f"s_waitcnt lgkmcnt({n})"] if n is not None else []
            def kread(i):
                T_, k = divmod(i, 8); lq.issue(f"K{i}")
                return [f"ds_read_b128 {vr(WIN + 4*(i % 8), 4)}, v{KA+k} offset:{T_*8192}"]
            vorder = [divmod(f, 4) for f in range(16)] if not last else [(t, D) for D in range(4) for t in range(4)]
            def vread(f):
                t, D = vorder[f]; r = []
                for a in range(2):
                    lq.issue(f"V{f}")
                    r.append(f"ds_read_b64_tr_b16 {vr(WIN + 4*(f % 8) + 2*a, 2)}, v{VA+D} offset:{t*4096 + a*2048}")
                return r
            exp = lambda r: [f"v_exp_f32 v{r}, v{r}"]
            add = lambda r: [f"v_add_f32 v{LS + (r & 1)}, v{LS + (r & 1)}, v{r}"]
            cvt = lambda t, i: [f"v_cvt_pk_bf16_f32 v{Pr+4*t+i}, v{prev+8*t+2*i}, v{prev+8*t+2*i+1}"]
            mx = lambda d, a, b, c: [f"v_max3_f32 v{d}, v{a}, v{b}, v{c}"]
            bub = []
            for i in range(4): bub += [cvt(0, i), add(prev + 2*i), add(prev + 2*i + 1)]
            for i in range(4): bub += [cvt(1, i), add(prev + 8 + 2*i), add(prev + 8 + 2*i + 1)]
            F1 = []
            e = [exp(prev + 16 + i) for i in range(16)]
            a_ = [add(prev + 16 + i) for i in range(16)]
            c2 = [cvt(2, i) for i in range(4)]; c3 = [cvt(3, i) for i in range(4)]
            F1 += [e[0], e[1], e[2]]
            for i in range(3, 16):
                F1 += [e[i], a_[i - 3]]
                if i in (5, 7, 9, 11): F1.append(c2[(i - 5) // 2])
                if i in (13, 15): F1.append(c3[(i - 13) // 2])
            F1 += [a_[13], c3[2], a_[14], a_[15], c3[3]]
            def maxT(base, d0, d1):
                return [mx(d0, base, base+1, base+2), mx(d1, base+8, base+9, base+10),
                        mx(d0, d0, base+3, base+4), mx(d1, d1, base+11, base+12),
                        mx(d0, d0, base+5, base+6), mx(d1, d1, base+13, base+14),
                        mx(d0, d0, base+7, base+15)]
            M0 = maxT(cur, U, U+1)
            M1 = maxT(cur+16, U+2, U+3)
            fin = [mx(U, U, U+1, U+2), [f"v_max_f32 v{U}, v{U}, v{U+3}"]]
            tagp = "e" if par == 0 else "o"
            chk = [f"v_cmp_lt_f32 vcc, s{sTHR}, v{U}",
                   f"s_nop 0",
                   f"s_cbranch_vccnz A_resc{tagp} ; @takenif={sTHR}:0xff800000",
                   f"A_resc{tagp}r:"]
            advK = [[f"v_add_u32 v{KA+k}, s70, v{KA+k}"] for k in range(8)]
            advV = [[f"v_add_u32 v{VA+D}, s70, v{VA+D}"] for D in range(4)]
            exps1 = [exp(cur+i) for i in range(16)]

            L += s.ast(1)
            if not last:
                for i in range(8): L += kread(i)
                for it in bub: L += it
                nb = o.nbub
                for it in F1[:nb]: L += it
                gaps = [[] for _ in range(16)]
                spread(gaps, F1[nb:], 0, 14)
                spread(gaps, M0, 10, 16)
                for i in range(16):
                    T_, k = divmod(i, 8)
                    if i % 2 == 0: L += wl([f"K{i}", f"K{i+1}"])
                    srcC = vr(NM, 16) if k == 0 else vr(cur + 16*T_, 16)
                    L.append(f"v_mfma_f32_32x32x16_bf16 {vr(cur+16*T_,16)}, {vr(WIN+4*(i%8),4)}, {vr(Q_+4*k,4)}, {srcC}")
                    if i + 8 < 16: L += kread(i + 8)
                    if i >= 9: L += vread(i - 9)
                    L += gaps[i]
                    if i == 7: L += s.ast(2)
                L += s.ast(3)
                vissued = 7
                gaps = [[] for _ in range(16)]
                spread(gaps, advK[:4], 0, 2)
                spread(gaps, M1 + fin, 2, 5)
                gaps[5] += chk
                spread(gaps, exps1, 5, 16)
                spread(gaps, advK[4:], 6, 10)
                spread(gaps, advV, 10, 14)
                L += [f"s_bitcmp1_b32 s{sPAT}, s{sSTEP}", f"s_cselect_b32 s70, s{sNEG}, s{sPOS}"]
            else:
                for f in range(7): L += vread(f)
                vissued = 7
                for it in bub: L += it
                for it in F1: L += it
                L += rl_lines(AL)
                L.append(f"v_add_u32 v{QA}, {hex((P[0] - W[1]) & 0xffffffff)}, v{QA}")
                gaps = [[] for _ in range(16)]
                for D in range(3):
                    items = [[x] for x in fin_D(D, cur)] + [out_D(D, cur)]
                    spread(gaps, items, 4*D + 6 if D < 2 else 14, 4*D + 10 if D < 2 else 16)
            for f in range(16):
                t, D = vorder[f]
                if f % 2 == 0: L += wl([f"V{f}", f"V{f+1}"])
                L.append(f"v_mfma_f32_32x32x16_bf16 {vr(O+16*D,16)}, {vr(WIN+4*(f%8),4)}, {vr(Pr+4*t,4)}, {vr(O+16*D,16)}")
                if vissued < 16:
                    L += vread(vissued); vissued += 1
                L += gaps[f]
                if f == 6 and not last: L += s.ast(4)
            if not last:
                L += s.ast(5)
                L += [f"s_cmp_lg_u32 s{sPEND}, 0", f"s_cbranch_scc1 A_pend{tagp}", f"A_pend{tagp}r:"]
                L += s.ast(6)
                if s.opt.astamp >= 0:
                    L += ["s_waitcnt lgkmcnt(0)", f"s_cmp_eq_u32 s{sSTEP}, {s.opt.astamp}"]
                    L += [f"s_cselect_b32 s{50+i}, s{36+2*i}, s{50+i}" for i in range(7)]
            else:
                L += fin_D(3, cur) + out_D(3, cur)
            return L
        def out_D(D, src):
            L = []
            for h in range(2):
                L.append(f"ds_write_b128 v{QA}, {vr(src+8*D+4*h,4)} offset:{(2*D+h)*1024}")
            L.append(f"s_mov_b64 exec, s[{sEXLO}:{sEXHI}]")
            for h in range(2):
                L.append(f"s_add_u32 s71, s{sOBASE}, {(4*D+2*h)*1792}")
                L.append(f"buffer_store_dwordx4 {vr(src+8*D+4*h,4)}, v{OV}, {srd(sWS)}, s71 offen sc1{s.nths}")
            L.append("s_mov_b64 exec, -1")
            return L
        def rl_lines(dst):
            return [f"v_add_f32 v{T}, v{LS}, v{LS+1}", f"v_mov_b32 v{T+1}, v{T}", f"v_permlane32_swap_b32 v{T}, v{T+1}",
                    f"v_add_f32 v{T}, v{T}, v{T+1}", f"v_rcp_f32 v{dst}, v{T}"]

        s.lab("A_loop")
        for par in range(2):
            tagp = "e" if par == 0 else "o"
            s.emit(s.ast(0))
            A(f"s_bitcmp1_b32 s{sEV}, s{sSTEP}")
            A(f"s_cbranch_scc1 A_top{tagp}")
            A("s_barrier")
            s.lab(f"A_top{tagp}r")
            s.emit(step(par))
            A(f"s_add_u32 s{sSTEP}, s{sSTEP}, 1")
        A(f"s_cmp_lt_u32 s{sSTEP}, 16")
        A("s_cbranch_scc1 A_loop")
        A("s_barrier")
        s.emit(step(0, last=True))
        A("s_waitcnt lgkmcnt(0)")
        A("s_barrier")
        A(f"s_lshl_b32 s70, s{sMYB}, 7")
        A(f"s_add_u32 s70, s70, {FLAG_BASE}")
        A(f"s_lshl_b32 s71, s{sW}, 2")
        A("s_add_u32 s70, s70, s71")
        A(f"v_mov_b32 v{T}, 1")
        A("s_waitcnt vmcnt(0)")
        A("s_mov_b64 exec, 1")
        A(f"buffer_store_dword v{T}, off, {srd(sWS)}, s70 sc1")
        A("s_mov_b64 exec, -1")
        if o.astamp >= 0:
            A(f"s_cmp_lg_u32 s{sW}, 0")
            A("s_cbranch_scc1 L_end")
            A("s_lshl_b32 s70, s2, 8")
            A(f"s_add_u32 s70, s70, {STAMP_BASE + 65536}")
            A("s_mov_b64 exec, 1")
            for i in range(7):
                A(f"v_mov_b32 v32, s{50+i}")
                A(f"buffer_store_dword v32, off, {srd(sWS)}, s70 offset:{4*i}")
                A("s_nop 1")
        A("s_endpgm")
        s.lab("A_tope")
        A(f"s_cmp_eq_u32 s{sSTEP}, 0")
        A("s_cbranch_scc0 A_top8")
        A(f"s_waitcnt vmcnt({n0})")
        A("s_barrier")
        for i in range(8):
            A(f"ds_read_b128 {vr(Q_+4*i,4)}, v{QA} offset:{i*1024}")
        A(f"v_add_u32 v{QA}, 16384, v{QA}")
        A("s_branch A_top8b")
        s.lab("A_top8")
        A("s_barrier")
        for i in range(8):
            A(f"ds_read_b128 {vr(Q_+4*i,4)}, v{QA} offset:{i*1024}")
        s.lab("A_top8b")
        A(f"s_mov_b32 s{sTHR}, 0xff800000")
        A("s_waitcnt lgkmcnt(0)")
        A("s_branch A_toper")
        s.lab("A_topo")
        A(f"s_cmp_eq_u32 s{sSTEP}, 1")
        A("s_cbranch_scc0 A_top7")
        A("s_waitcnt vmcnt(0)")
        A("s_barrier")
        A("s_branch A_topor")
        s.lab("A_top7")
        A(f"s_or_b32 s{sPEND}, s{sPEND}, 4")
        A("s_barrier")
        A("s_branch A_topor")
        for par in range(2):
            tagp = "e" if par == 0 else "o"; cur = SB[par]
            s.lab(f"A_resc{tagp}")
            A(f"v_mov_b32 v{U+1}, v{U}")
            A(f"v_permlane32_swap_b32 v{U}, v{U+1}")
            A(f"v_max_f32 v{U}, v{U}, v{U+1}")
            if par == 0:
                A(f"s_and_b32 s71, s{sSTEP}, 7")
                A("s_cmp_eq_u32 s71, 0")
                A("s_cbranch_scc1 A_hsw")
            A(f"v_max_f32 v{U}, 0, v{U}")
            A(f"v_sub_f32 v{U+1}, 0, v{U}")
            A(f"v_exp_f32 v{AL}, v{U+1}")
            A(f"s_or_b32 s{sPEND}, s{sPEND}, 1")
            A(f"v_mul_f32 v{LS}, v{AL}, v{LS}")
            A(f"v_mul_f32 v{LS+1}, v{AL}, v{LS+1}")
            if par == 0: s.lab("A_hswj")
            for i in range(32): A(f"v_sub_f32 v{cur+i}, v{cur+i}, v{U}")
            for i in range(16): A(f"v_sub_f32 v{NM+i}, v{NM+i}, v{U}")
            A(f"s_branch A_resc{tagp}r")
        s.lab("A_hsw")
        s.emit(rl_lines(RL))
        A(f"v_mov_b64 {vr(LS,2)}, 0")
        A(f"s_mov_b32 s{sTHR}, {hex(fbits(THR))}")
        A(f"s_lshr_b32 s{sPEND}, s{sSTEP}, 3")
        A(f"s_add_u32 s{sPEND}, s{sPEND}, 2")
        A(f"s_lshl_b32 s{sPEND}, s{sPEND}, 3")
        A("s_branch A_hswj")
        for par in range(2):
            tagp = "e" if par == 0 else "o"
            s.lab(f"A_pend{tagp}")
            if par == 0:
                A(f"s_cmp_ge_u32 s{sPEND}, 16")
                A("s_cbranch_scc1 A_pz")
            A(f"s_bitcmp1_b32 s{sPEND}, 0")
            A(f"s_cbranch_scc0 A_pn{tagp}")
            for i in range(32):
                A(f"v_pk_mul_f32 {vr(O+2*i,2)}, {vr(O+2*i,2)}, {vr(AL,2)} op_sel_hi:[1,0]")
            s.lab(f"A_pn{tagp}")
            if par == 1:
                A(f"s_bitcmp1_b32 s{sPEND}, 2")
                A(f"s_cbranch_scc0 A_pm{tagp}")
                for i in range(8): A(f"v_mov_b64 {vr(NM+2*i,2)}, 0")
                s.lab(f"A_pm{tagp}")
            A(f"s_mov_b32 s{sPEND}, 0")
            A(f"s_branch A_pend{tagp}r")
        s.lab("A_pz")
        A(f"s_cmp_eq_u32 s{sPEND}, 24")
        A("s_cbranch_scc0 A_pz2")
        A(f"v_mov_b32 v{AL}, v{RL}")
        for D in range(4):
            s.emit(fin_D(D, WIN))
            for h in range(2):
                A(f"ds_write_b128 v{QA}, {vr(WIN+8*D+4*h,4)} offset:{(2*D+h)*1024}")
        A("s_waitcnt lgkmcnt(0)")
        s.lab("A_pz2")
        for i in range(32): A(f"v_mov_b64 {vr(O+2*i,2)}, 0")
        A(f"s_mov_b32 s{sPEND}, 0")
        A(f"s_branch A_pender")

    def waveB(s):
        A = s.A; o = s.opt
        vV, vW, vK, WA, vWO, vO, vQW, vWB = 2, 3, 4, 8, 12, 13, 14, 15
        Y, vR, vOL, VP = 16, 17, 18, 20
        XA = 24
        WIN, X, ACC = 32, 64, 192
        q = Q(63)
        nt = " nt" if o.nt else ""
        PX = [P[1], P[2], W[0], W[2]]
        s.lab("L_B")
        s.stamp("b0")
        A(f"v_mov_b32 v{vW}, v2")
        s.late_scalars()
        A(f"s_cmp_lg_u32 s{sW}, 0")
        A("s_cbranch_scc1 B_nclr")
        A("v_mov_b32 v28, 0")
        A("v_lshlrev_b32 v29, 2, v1")
        A(f"s_lshl_b32 s70, s{sMYB}, 7")
        A(f"s_add_u32 s70, s70, {FLAG_BASE}")
        A("s_mov_b64 exec, 0xfff")
        A(f"buffer_store_dword v28, v29, {srd(sWS)}, s70 offen sc1")
        A("s_mov_b64 exec, -1")
        s.lab("B_nclr")
        s.kv_voffs(vK, vV)
        A("v_lshlrev_b32 v23, 10, v19")
        A(f"v_add_u32 v{vWO}, v23, v21")
        A("v_lshrrev_b32 v22, 2, v20")
        A("v_and_b32 v23, 1, v19")
        A("v_lshlrev_b32 v28, 13, v17")
        A("v_lshlrev_b32 v29, 8, v22")
        A("v_add_u32 v28, v28, v29")
        A("v_lshlrev_b32 v29, 5, v23")
        A("v_add_u32 v28, v28, v29")
        A("v_and_b32 v29, 1, v18")
        A("v_lshlrev_b32 v29, 4, v29")
        A("v_add_u32 v28, v28, v29")
        A("v_lshrrev_b32 v29, 1, v18")
        A("v_lshlrev_b32 v29, 3, v29")
        A(f"v_add_u32 v{vWB}, v28, v29")
        A(f"v_add_u32 v28, {P[1]}, v{vWB}")
        for D in range(4):
            A(f"v_xor_b32 v29, {D}, v22")
            A(f"v_lshlrev_b32 v29, 6, v29")
            A(f"v_add_u32 v{WA+D}, v28, v29")
        A("v_and_b32 v28, 31, v1")
        A("v_lshrrev_b32 v29, 1, v28")
        A("v_and_b32 v29, 7, v29")
        A("v_lshlrev_b32 v30, 2, v17")
        A("v_xor_b32 v29, v29, v30")
        A("v_lshlrev_b32 v28, 7, v28")
        A(f"s_add_u32 s70, s{sW4K}, {P[1]}")
        A("v_add_u32 v28, s70, v28")
        for j in range(4):
            A(f"v_xor_b32 v30, {j}, v29")
            A(f"v_lshlrev_b32 v30, 4, v30")
            A(f"v_add_u32 v{XA+j}, v28, v30")
        A(f"v_mul_u32_u24 v{vO}, 448, v17")
        A("v_and_b32 v29, 31, v1")
        A(f"v_add_u32 v{vO}, v{vO}, v29")
        A(f"s_lshl_b32 s70, s{sW}, 5")
        A(f"v_add_u32 v{vO}, s70, v{vO}")
        A(f"v_lshlrev_b32 v{vO}, 4, v{vO}")
        A(f"s_lshl_b32 s70, s{sW}, 13")
        A(f"s_add_u32 s70, s70, {W[0]}")
        A(f"v_lshlrev_b32 v{vQW}, 4, v1")
        A(f"v_add_u32 v{vQW}, s70, v{vQW}")
        A(f"v_lshlrev_b32 v30, 11, v17")
        A(f"v_lshlrev_b32 v29, 4, v29")
        A(f"v_add_u32 v30, v30, v29")
        A(f"s_add_u32 s70, s70, 16384")
        A(f"v_add_u32 v31, s70, v30")
        A(f"v_mov_b32 v{vOL}, v31")
        A(f"v_mov_b32 v{vR}, v22")
        A(f"v_add_u32 v{Y}, 3584, v{vO}")
        A(f"s_lshl_b32 s70, s{sHG}, 20")
        A(f"s_lshl_b32 s71, s{sW}, 14")
        A("s_add_u32 s70, s70, s71")
        A(f"s_lshl_b32 s71, s{sHP}, 8")
        A(f"s_add_u32 s{sWOB}, s70, s71")
        A(f"s_lshl_b32 s70, s{sBR}, 3")
        A(f"s_add_u32 s70, s70, s{sB}")
        A(f"s_lshl_b32 s70, s70, 5")
        A(f"s_lshl_b32 s71, s{sHG}, 3")
        A(f"s_add_u32 s70, s70, s71")
        A(f"s_mul_i32 s73, s70, {UNIT}")
        for p in range(4):
            A(f"s_add_u32 s70, s{sHP}, {p}")
            A("s_and_b32 s70, s70, 3")
            A(f"s_lshl_b32 s71, s70, 18")
            A(f"s_add_u32 s{sWP+p}, s{sWOB}, s71")
            A(f"s_mul_i32 s71, s70, {2*UNIT}")
            A(f"s_add_u32 s{sOP+p}, s73, s71")
        A(f"s_mov_b32 s74, {hex(fbits(CSCALE))}")
        sCS = 74
        sPF = 75

        def wait_vm(tags):
            n = q.wait(tags)
            if n is not None: A(f"s_waitcnt vmcnt({n})")
        def mat(groups):
            out = []
            for tag, ins in groups:
                q.issue(tag); out.append(ins)
            return out
        def dma_wo(rr, p, half, slot):
            g = []
            for t in range(4):
                pre = [f"s_add_u32 m0, s{sW4K}, {slot}"] if t == 0 else []
                g.append((f"O{rr}{p}{half}", pre + [f"s_add_u32 s71, s{sWP+p}, {(rr*128 + 64*half)*1024 + t*3072}",
                          f"buffer_load_dwordx4 v{vWO}, {srd(sWO)}, s71 offen offset:{t*1024}{s.nto} lds"]))
            return g
        def of_mem(rr, p, half, tag, store=False):
            g = []
            xb = 2*p + half
            for jj in range(2):
                va = vO if jj == 0 else Y
                ins = [f"s_add_u32 s72, s{sOP+p}, {rr*UNIT + half*8*1792}", f"s_mov_b64 exec, s[{sEXLO}:{sEXHI}]"]
                for j in (2*jj, 2*jj+1):
                    op = "buffer_store_dwordx4" if store else "buffer_load_dwordx4"
                    ins.append(f"{op} {vr(X+16*xb+4*j,4)}, v{va}, {srd(sWS)}, s72 offen offset:{(j&1)*1792} sc1{s.nths if store else s.nthl}")
                ins.append("s_mov_b64 exec, -1")
                g.append(((tag, tag), ins))
            return g
        def mat2(groups):
            out = []
            for tag, ins in groups:
                if isinstance(tag, tuple):
                    for t_ in tag: q.issue(t_)
                else: q.issue(tag)
                out.append(ins)
            return out

        s.wbase = P[1]; s.xbase = P[1]
        def rebase_lines(regs, cur, nb):
            d = (nb - cur) & 0xffffffff
            return [f"v_add_u32 v{r}, {hex(d)}, v{r}" for r in regs]
        def base_for(slot, cur):
            if 0 <= slot - cur <= 49152: return cur
            for b in (P[1], W[0], P[0], P[2]):
                if 0 <= slot - b <= 49152: return b
            raise ValueError
        LA = o.la
        def frags_c(lst):
            fr = []
            for ci, (slot, xb, first) in enumerate(lst):
                fr += [(slot, xb, first and j == 0, j, D, ci) for j in range(4) for D in range(4)]
            return fr
        def stream(fr, fillers=None, prologue=False, gapfill=None):
            n = len(fr)
            lq = Q(15)
            def xrd(ci, j):
                slot = PX[ci % 4]; r = []
                nb = base_for(slot, s.xbase)
                if nb != s.xbase:
                    r += rebase_lines(range(XA, XA+4), s.xbase, nb); s.xbase = nb
                lq.issue(f"X{ci}_{j}")
                r.append(f"ds_read_b128 {vr(X+16*ci+4*j,4)}, v{XA+j} offset:{slot - s.xbase}")
                return r
            def rd(f):
                slot, xb, zero, j, D, ci = fr[f]; r = []
                if prologue and j == 0 and D == 0 and ci > 0:
                    r += s.stamp_lines(f"x{ci}")
                    r.append("s_barrier")
                    r += s.stamp_lines(f"p{ci}")
                nb = base_for(slot, s.wbase)
                if nb != s.wbase:
                    r += rebase_lines(range(WA, WA+4), s.wbase, nb); s.wbase = nb
                if prologue and D == 0: r += xrd(ci, j)
                for a in range(2):
                    lq.issue(f)
                    r.append(f"ds_read_b64_tr_b16 {vr(WIN+4*(f%8)+2*a,2)}, v{WA+D} offset:{slot-s.wbase + j*2048 + a*1024}")
                return r
            gaps = gapfill if gapfill is not None else [[] for _ in range(n)]
            if fillers: spread(gaps, fillers, 0, n)
            for f in range(min(LA, n)): s.emit(rd(f))
            issued = min(LA, n)
            for f in range(n):
                slot, xb, zero, j, D, ci = fr[f]
                k = lq.wait([f, f + 1] if (f % 2 == 0 and f + 1 < issued) else [f])
                if k is not None: A(f"s_waitcnt lgkmcnt({k})")
                srcC = "0" if zero else vr(ACC+16*D, 16)
                A(f"v_mfma_f32_32x32x16_bf16 {vr(ACC+16*D,16)}, {vr(WIN+4*(f%8),4)}, {vr(X+16*xb+4*j,4)}, {srcC}")
                if issued < n:
                    s.emit(rd(issued)); issued += 1
                s.emit(gaps[f])
        def write_q(base_off):
            for D in range(4):
                for i in range(16):
                    A(f"v_mul_f32 v{ACC+16*D+i}, s{sCS}, v{ACC+16*D+i}")
                for h in range(2):
                    f = 2*D + h
                    for i in range(4):
                        A(f"v_cvt_pk_bf16_f32 v{WIN+4*f+i}, v{ACC+16*D+8*h+2*i}, v{ACC+16*D+8*h+2*i+1}")
                    A(f"ds_write_b128 v{vQW}, {vr(WIN+4*f,4)} offset:{base_off + f*1024}")
            A("s_waitcnt lgkmcnt(0)")
        def pair(j):
            a = s.dma_k(j, vK, nt, f"KV{j}") if j <= 15 else []
            b = s.dma_v(j, vV, nt, f"KV{j}") if j >= 1 else []
            return a + b
        def own_frags():
            for half in range(2):
                for j in range(4):
                    A(f"ds_read_b128 {vr(X+16*half+4*j,4)}, v{vOL} offset:{half*4096 + j*512}")
            A("s_waitcnt lgkmcnt(0)")

        A(f"v_add_u32 v21, s{sHP}, v1")
        A("v_add_u32 v21, 1, v21")
        A("v_and_b32 v21, 3, v21")
        A(f"v_add_u32 v21, s{sGRP}, v21")
        A("v_lshlrev_b32 v21, 7, v21")
        A(f"v_add_u32 v22, s{sHG}, v1")
        A("v_add_u32 v22, 1, v22")
        A("v_and_b32 v22, 3, v22")
        A("v_lshlrev_b32 v22, 2, v22")
        A(f"s_and_b32 s71, s{sGRP}, {hex(0xfffffff0)}")
        A(f"s_add_u32 s71, s71, s{sHP}")
        A("v_add_u32 v22, s71, v22")
        A("v_lshlrev_b32 v22, 7, v22")
        A("v_lshlrev_b32 v23, 4, v1")
        A(f"s_lshl_b32 s{sPF}, s{sHG}, 20")
        A("s_lshr_b32 s70, s2, 3")
        A("s_lshl_b32 s70, s70, 15")
        A(f"s_add_u32 s{sPF}, s{sPF}, s70")
        A(f"s_lshl_b32 s70, s{sW}, 13")
        A(f"s_add_u32 s{sPF}, s{sPF}, s70")
        A("s_waitcnt vmcnt(0)")
        s.stamp("x0")
        A("s_barrier")
        s.stamp("p0")
        stream(frags_c([(PX[c % 4] + 16384, c, c == 0) for c in range(8)]), None, prologue=True)
        write_q(0)
        s.stamp("pro")
        def poll_check(vsrc, shift):
            A(f"v_readfirstlane_b32 s70, v{vsrc} ; @val=POLL")
            if shift == 0:
                A("s_lshr_b32 s71, s70, 1"); A("s_or_b32 s70, s70, s71")
            else:
                A(f"s_lshr_b32 s70, s70, {shift}")
            A("s_and_b32 s70, s70, 0x01010101")
            A("s_cmp_eq_u32 s70, 0x01010101")
        def mid_poll():
            return [f"s_and_b32 s71, s{sGRP}, {hex(0xfffffff0)}",
                    f"buffer_load_dwordx4 v[24:27], off, {srd(sDBG)}, s71 sc1"]
        def mid_check():
            return [f"v_and_b32 v24, v24, v25", f"v_and_b32 v26, v26, v27",
                    f"v_and_b32 v24, v24, v26",
                    "s_nop 0",
                    f"v_readfirstlane_b32 s70, v24 ; @val=POLL",
                    "s_and_b32 s70, s70, 0x01010101", "s_cmp_eq_u32 s70, 0x01010101"]
        def wave_poll(vaddr, nm, drain=True):
            A(f"s_mov_b32 s{sSPIN}, 0")
            A("s_mov_b64 exec, 7")
            s.lab(f"B_{nm}")
            A(f"buffer_load_dword v{VP}, v{vaddr}, {srd(sWS)}, s72 offen sc1")
            A("s_waitcnt vmcnt(0)")
            A(f"v_cmp_ne_u32 vcc, 0, v{VP}")
            A("s_cmp_eq_u32 vcc_lo, 7")
            A(f"s_cbranch_scc1 B_{nm}d ; @taken")
            A(f"s_add_u32 s{sSPIN}, s{sSPIN}, 1")
            A(f"s_cmp_lt_u32 s{sSPIN}, {o.spin}")
            A(f"s_cbranch_scc1 B_{nm}")
            s.lab(f"B_{nm}d")
            A("s_mov_b64 exec, -1")
            if drain: q.drain()
        wq_slot = lambda c: (P[0] + 16384) if c == 0 else W[(c + 1) % 4]
        wq_issue = {0: [1, 2], 1: [3], 2: [4], 3: [5], 4: [6], 5: [7]}
        wo0_slot = {(0,0): W[3], (0,1): W[0], (1,0): W[0], (1,1): W[1], (2,0): W[2], (2,1): W[3], (3,0): P[1], (3,1): P[2]}
        wo0_issue = {7: [(0,0)], 8: [(0,1)], 11: [(1,0)], 12: [(1,1), (2,0)], 13: [(2,1)], 14: [(3,0)], 15: [(3,1)]}
        wo0_use = {9: [(0,0)], 10: [(0,1)], 15: [(1,0), (1,1)], 16: [(2,0), (2,1)]}
        of0_issue = eval(o.f0)
        pf_issue = {1: [0, 1], 2: [2, 3], 3: [4], 4: [5], 5: [6], 6: [7]}
        wo1_slot = {(0,0): P[2] + 16384, (0,1): P[1] + 16384, (1,0): W[0], (1,1): W[1], (2,0): W[2], (2,1): W[3], (3,0): P[1], (3,1): P[2]}
        wo1_issue = {15: [(0,0)], 16: [(1,0), (1,1)]}
        PO0 = o.po0
        for st in range(17):
            s.stamp(f"c{st}")
            tags = [f"KV{st}"]
            if 1 <= st <= 7: tags.append(f"Q{st}")
            for (p, h) in wo0_use.get(st, []):
                tags += [f"O0{p}{h}", f"F{p}"]
            if st == 10: tags.append("S0")
            if st == PO0 + 1: tags.append("POLL")
            if st == 9: tags.append("POLL0")
            if st == 8: tags.append("PF")
            wait_vm(tags)
            s.stamp(f"w{st}")
            A("s_barrier")
            s.stamp(f"s{st}")
            if st == 8:
                for d in range(4):
                    A(f"s_add_u32 s70, s{sHG}, {1 + d}")
                    A("s_and_b32 s70, s70, 3")
                    A(f"v_xor_b32 v29, s70, v{vR}")
                    A("v_lshlrev_b32 v29, 6, v29")
                    A(f"v_add_u32 v29, v29, v{vWB}")
                    A(f"v_add_u32 v{WA+d}, {s.wbase}, v29")
            pre_groups = []
            if st == 9:
                own_frags()
                pre_groups = of_mem(0, 0, 0, "S0", store=True) + of_mem(0, 0, 1, "S0", store=True)
            if st == 2:
                A(f"s_cmp_lg_u32 s{sW}, 0")
                A(f"s_cbranch_scc1 B_nf{st}")
                s.flag_store(1, 28)
                s.lab(f"B_nf{st}")
            if st == 8:
                s.emit(mid_poll()); q.issue("POLL0")
            if st == 9:
                s.emit(mid_check())
                A("s_cbranch_scc0 B_slow0 ; @nottaken")
                s.lab("B_slow0r")
            if st == 10:
                A(f"s_lshl_b32 s70, s{sMYB}, 7")
                A(f"s_lshl_b32 s71, s{sW}, 2")
                A(f"s_add_u32 s71, s71, {FLAG_BASE + 32}")
                A("s_add_u32 s70, s70, s71")
                A("v_mov_b32 v28, 1")
                A("s_mov_b64 exec, 1")
                A(f"buffer_store_dword v28, off, {srd(sWS)}, s70 sc1")
                A("s_mov_b64 exec, -1")
                q.issue("FL0")
            if st == PO0:
                A(f"s_lshl_b32 s72, s{sW}, 2")
                A(f"s_add_u32 s72, s72, {FLAG_BASE + 32}")
                A("s_mov_b64 exec, 7")
                A(f"buffer_load_dword v{VP}, v21, {srd(sWS)}, s72 offen sc1"); q.issue("POLL")
                A("s_mov_b64 exec, -1")
            if st == PO0 + 1:
                A("s_mov_b64 exec, 7")
                A(f"v_cmp_ne_u32 vcc, 0, v{VP}")
                A("s_mov_b64 exec, -1")
                A("s_cmp_eq_u32 vcc_lo, 7")
                A("s_cbranch_scc0 B_slow1 ; @nottaken")
                s.lab("B_slow1r")
            g_kv = pair(st + 2) if st + 2 <= 16 else []
            g_w = []
            for c in wq_issue.get(st, []): g_w += s.dma_wq(c, wq_slot(c), vW, f"Q{c}", 256, 72)
            for (p, h) in wo0_issue.get(st, []): g_w += dma_wo(0, p, h, wo0_slot[(p, h)])
            g_f = []
            for p in of0_issue.get(st, []): g_f += of_mem(0, p, 0, f"F{p}") + of_mem(0, p, 1, f"F{p}")
            g_1 = []
            for (p, h) in wo1_issue.get(st, []): g_1 += dma_wo(1, p, h, wo1_slot[(p, h)])
            g_p = []
            if o.pf:
                for t in pf_issue.get(st, []):
                    g_p.append(("PF", [f"s_add_u32 s71, s{sPF}, {t*1024}",
                                       f"buffer_load_dwordx4 v[24:27], v23, {srd(sWO)}, s71 offen ; @dummy"]))
            gm = {"w": g_w + g_1, "f": g_f, "k": g_kv, "p": g_p}
            groups = pre_groups + sum((gm[c] for c in o.order), [])
            mem = mat2(groups)
            use = ([(wq_slot(st), st, st == 0)] if st <= 7 else []) + \
                  [(wo0_slot[(p, h)], 2*p + h, (p, h) == (0, 0)) for (p, h) in wo0_use.get(st, [])]
            if use:
                stream(frags_c(use), mem)
                if st == 7: write_q(16384)
            else:
                for g_ in mem: s.emit(g_)
            s.stamp(f"d{st}")
        wait_vm(["O030", "O031", "O100", "F3"])
        A(f"v_add_u32 v{vOL}, {hex((P[0] - W[1]) & 0xffffffff)}, v{vOL}")
        A("s_barrier")
        s.stamp("E")
        fl = mat2(sum((dma_wo(1, p, h, wo1_slot[(p, h)]) for (p, h) in ((0, 1), (2, 0), (2, 1))), []))
        stream(frags_c([(wo0_slot[(3, 0)], 6, False), (wo0_slot[(3, 1)], 7, False)]), fl)
        own_frags()
        wait_vm("O101")
        A("s_barrier")
        s.stamp("Ta")
        fl = mat2(dma_wo(1, 3, 0, wo1_slot[(3, 0)]) + dma_wo(1, 3, 1, wo1_slot[(3, 1)]))
        stream(frags_c([(wo1_slot[(0, 0)], 0, False), (wo1_slot[(0, 1)], 1, False)]), fl)
        s.stamp("own")
        A("v_lshrrev_b32 v17, 5, v1")
        A("v_mul_u32_u24 v23, 112, v17")
        A("v_and_b32 v18, 31, v1")
        A("v_add_u32 v23, v23, v18")
        A(f"s_lshl_b32 s70, s{sW}, 5")
        A("v_add_u32 v23, s70, v23")
        A("v_add_u32 v19, s70, v18")
        A("v_lshlrev_b32 v23, 4, v23")
        A(f"s_lshl_b32 s70, s{sBR}, 3")
        A(f"s_add_u32 s70, s70, s{sB}")
        A(f"s_lshl_b32 s70, s70, 2")
        A(f"s_add_u32 s70, s70, s{sHP}")
        A(f"s_mul_i32 s73, s70, {12*PSZ}")
        A(f"s_add_u32 s73, s73, {PART_BASE}")
        for d in range(3):
            A(f"s_add_u32 s70, s{sHG}, {1 + d}")
            A("s_and_b32 s70, s70, 3")
            A(f"s_mul_i32 s70, s70, {3*PSZ}")
            A(f"s_add_u32 s70, s70, s73")
            A(f"s_add_u32 s{sWP+d}, s70, {(2-d)*PSZ}")
        A("v_lshlrev_b32 v19, 11, v19")
        A("v_lshlrev_b32 v17, 4, v17")
        A("v_add_u32 v19, v19, v17")
        A(f"s_lshl_b32 s72, s{sW}, 2")
        A(f"s_add_u32 s72, s72, {FLAG_BASE}")
        wave_poll(21, "poll1")
        s.stamp("poll1")
        gl = lambda p: of_mem(1, p, 0, f"G{p}") + of_mem(1, p, 1, f"G{p}")
        for g_ in mat2(gl(1) + gl(2)): s.emit(g_)
        A("s_barrier")
        ND = 3 if o.defer else 4
        for p in (1, 2):
            wait_vm(f"G{p}")
            if p == 1: s.stamp("g1")
            fl = mat2(gl(3)) if p == 1 else None
            stream([f for f in frags_c([(wo1_slot[(p, 0)], 2*p, False), (wo1_slot[(p, 1)], 2*p + 1, False)]) if f[4] < ND], fl)
        wait_vm("G3")
        fr = []
        for d in range(ND):
            for half in range(2):
                for j in range(4):
                    fr.append((wo1_slot[(3, half)], 6 + half, False, j, d, half))
        for p in ((1, 2, 3) if o.defer else ()):
            for half in range(2):
                for j in range(4):
                    fr.append((wo1_slot[(p, half)], 2*p + half, False, j, 3, half))
        gaps = [[] for _ in range(len(fr))]
        def pub(d):
            r = []
            for rq in range(4):
                r.append([f"s_add_u32 s70, s{sWP+d}, {rq*3584}", f"s_mov_b64 exec, s[{sEXLO}:{sEXHI}]",
                          f"buffer_store_dwordx4 {vr(ACC+16*d+4*rq,4)}, v23, {srd(sWS)}, s70 offen sc1{s.nths}", "s_mov_b64 exec, -1"])
            return r
        for d in range(3):
            spread(gaps, pub(d), 8*d + 8 + 3, 8*d + 8 + 7)
        stream(fr, None, gapfill=gaps)
        s.stamp("oproj")
        A(f"s_lshl_b32 s70, s{sMYB}, 7")
        A(f"s_lshl_b32 s72, s{sW}, 2")
        A(f"s_add_u32 s72, s72, {FLAG_BASE + 16}")
        A("s_add_u32 s70, s70, s72")
        A("v_mov_b32 v20, 1")
        A("s_waitcnt vmcnt(0)")
        s.stamp("pst")
        A("s_mov_b64 exec, 1")
        A(f"buffer_store_dword v20, off, {srd(sWS)}, s70 sc1")
        wave_poll(22, "poll2")
        s.stamp("poll2")
        A(f"s_mul_i32 s71, s{sHG}, {3*PSZ}")
        A("s_add_u32 s73, s73, s71")
        R = 64
        A(f"s_mov_b64 exec, s[{sEXLO}:{sEXHI}]")
        for src in range(3):
            for rq in range(4):
                A(f"s_add_u32 s70, s73, {src*PSZ + rq*3584}")
                A(f"buffer_load_dwordx4 {vr(R+16*src+4*rq,4)}, v23, {srd(sWS)}, s70 offen sc1{s.nthl}")
        A(f"s_mul_i32 s70, s{sB}, {112*2048}")
        A(f"s_lshl_b32 s71, s{sBR}, 10")
        A("s_add_u32 s70, s70, s71")
        A(f"s_lshl_b32 s71, s{sHP}, 8")
        A("s_add_u32 s70, s70, s71")
        A(f"s_lshl_b32 s71, s{sHG}, 6")
        A("s_add_u32 s70, s70, s71")
        OWN = ACC + 48
        A("s_waitcnt vmcnt(8)")
        for i in range(8): A(f"v_pk_add_f32 {vr(OWN+2*i,2)}, {vr(OWN+2*i,2)}, {vr(R+2*i,2)}")
        A("s_waitcnt vmcnt(4)")
        for i in range(8): A(f"v_pk_add_f32 {vr(OWN+2*i,2)}, {vr(OWN+2*i,2)}, {vr(R+16+2*i,2)}")
        A("s_waitcnt vmcnt(0)")
        for i in range(8): A(f"v_pk_add_f32 {vr(OWN+2*i,2)}, {vr(OWN+2*i,2)}, {vr(R+32+2*i,2)}")
        for i in range(8):
            A(f"v_cvt_pk_bf16_f32 v{32+i}, v{OWN+2*i}, v{OWN+2*i+1}")
        for h in range(2):
            A(f"buffer_store_dwordx4 {vr(32+4*h,4)}, v19, {srd(sOUT)}, s70 offen offset:{h*32}")
        A("s_mov_b64 exec, -1")
        if o.dbgst:
            A("s_waitcnt vmcnt(0)")
            A(f"s_or_b32 s70, s{sW}, s{sHG}")
            A(f"s_or_b32 s70, s70, s{sHP}")
            A("s_cmp_lg_u32 s70, 0")
            A("s_cbranch_scc1 L_end")
            s.stamp("end"); s.stamp("cend", True)
            A("s_waitcnt lgkmcnt(0)")
            r = STAMP_REGS
            A(f"s_sub_u32 s70, s{r[5]}, s{r[1]}")
            A(f"s_sub_u32 s71, s{r[4]}, s{r[0]}")
            A(f"s_sub_u32 s72, s{r[2]}, s{r[1]}")
            A(f"s_sub_u32 s73, s{r[3]}, s{r[1]}")
            for i in range(4): A(f"v_mov_b32 v{32+i}, s{70+i}")
            A(f"s_and_b32 s71, s{sGRP}, {hex(0xfffffff0)}")
            A("s_mov_b64 exec, 1")
            A(f"buffer_store_dwordx4 v[32:35], off, {srd(sDBG)}, s71 sc1")
            A("s_endpgm")
        if o.stamp and not o.dbgst:
            A("s_waitcnt vmcnt(0)")
            A(f"s_cmp_lg_u32 s{sW}, 0")
            A("s_cbranch_scc1 L_end")
            s.stamp("end"); s.stamp("cend", True)
            A("s_waitcnt lgkmcnt(0)")
            n = len(o.stamps.split(","))
            assert n <= len(STAMP_REGS)
            A("s_lshl_b32 s70, s2, 8")
            A(f"s_add_u32 s70, s70, {STAMP_BASE}")
            A("s_mov_b64 exec, 1")
            for i in range(n):
                r = STAMP_REGS[i]
                A(f"v_mov_b32 v32, s{r}"); A(f"v_mov_b32 v33, s{r+1}")
                A(f"buffer_store_dwordx2 v[32:33], off, {srd(sWS)}, s70 offset:{8*i}")
                A("s_nop 1")
        A("s_endpgm")
        s.lab("B_slow0")
        A(f"s_mov_b32 s{sSPIN}, 0")
        s.lab("B_slow0l")
        s.emit(mid_poll())
        A("s_waitcnt vmcnt(0)")
        s.emit(mid_check())
        A("s_cbranch_scc1 B_slow0r ; @taken")
        A(f"s_add_u32 s{sSPIN}, s{sSPIN}, 1")
        A(f"s_cmp_lt_u32 s{sSPIN}, {o.spin}")
        A("s_cbranch_scc1 B_slow0l")
        A("s_branch B_slow0r")
        s.lab("B_slow1")
        A(f"s_lshl_b32 s72, s{sW}, 2")
        A(f"s_add_u32 s72, s72, {FLAG_BASE + 32}")
        wave_poll(21, "slow1l", drain=False)
        A("s_branch B_slow1r")

    def build(s):
        s.common()
        s.waveA()
        s.waveB()
        s.lab("L_end")
        s.A("s_endpgm")
        lines = [l for l in s.L if l is not None]
        cfgs = []
        for wave in (0, 1, 3, 4, 5, 7):
            cfgs.append((f"wg5w{wave}", {2: 5}, {"WAVE": wave, "POLL": 0x03030303, "POLL3": 0x03030303}))
        cfgs.append(("allresc", {2: 5}, {"WAVE": 1, "ALLRESC": 1}))
        cfgs.append(("extra", {2: 256}, {"WAVE": 0}))
        lines = asmlib.finalize(lines, cfgs, verbose=True)
        return "\n".join(lines)

if __name__ == "__main__":
    ap = argparse.ArgumentParser()
    ap.add_argument("-o", default="k7.s")
    ap.add_argument("--stamp", action="store_true")
    ap.add_argument("--cyc", action="store_true")
    ap.add_argument("--stamps", default="start,pro,s8,E,poll1,oproj,pst,poll2,end")
    ap.add_argument("--nt", type=int, default=1)
    ap.add_argument("--prioA", type=int, default=0)
    for n_ in ("ntw", "ntx", "nto", "nths", "nthl"): ap.add_argument("--" + n_, type=int, default=0)
    ap.add_argument("--astamp", type=int, default=-1)
    ap.add_argument("--la", type=int, default=6)
    ap.add_argument("--nbub", type=int, default=3)
    ap.add_argument("--rot", type=int, default=1)
    ap.add_argument("--k0at", type=int, default=5)
    ap.add_argument("--p1at", type=int, default=7)
    ap.add_argument("--pf", type=int, default=0)
    ap.add_argument("--f0", default="{13: [1], 14: [2], 15: [3]}")
    ap.add_argument("--po0", type=int, default=11)
    ap.add_argument("--defer", type=int, default=1)
    ap.add_argument("--cpf", type=int, default=1)
    ap.add_argument("--dbgst", type=int, default=0)
    ap.add_argument("--g2at", type=int, default=8)
    ap.add_argument("--order", default="wfkp")
    ap.add_argument("--spin", type=int, default=0x8000)
    o = ap.parse_args()
    g = Gen(o)
    body = g.build()
    k = kernel_text(NAME + "_kernel", body, vgpr=256)
    hdr = ["; @launch grid=(256,1,1) block=(512,1,1) lds=163840"]
    if o.stamp and not o.dbgst: hdr.append("; STAMPS " + o.stamps)
    if o.astamp >= 0: hdr.append("; ASTAMP")
    if o.cyc: hdr.append("; STAMPCYC")
    open(o.o, "w").write(file_text(hdr, [k]))
    print("wrote", o.o, len(body.splitlines()), "lines")
```

```python
import sys, argparse, struct
from gen_common import *
import asmlib

P = [0, 32768, 65536]
W = [98304, 114688, 131072, 147456]
UNIT = 28672
PART_BASE = 16 << 20
PSZ = 14336
STAMP_BASE = 128 << 20
FLAG_BASE = 32 << 20
THR = 12.0

sK, sV, sWQ, sX, sWS, sWO, sOUT, sDBG = 4, 8, 12, 16, 20, 24, 28, 32
sWAVE, sW, sBR, sHG, sB, sHP, sH0, sKV = 62, 63, 64, 65, 66, 67, 68, 69
sXB, sPEND = 72, 73
sEV, sTHR, sPAT = 74, 75, 76
sSTEP, sROT, sNEG, sOBASE = 77, 78, 79, 80
sW4K, sWQB, sKVW, sWOB, sGRP, sMYB = 81, 82, 83, 84, 85, 86
sSPIN = 87
sEXLO, sEXHI = 88, 89
sPOS = 3
sWP, sOP = 54, 58
STAMP_REGS = [90, 92, 94, 96, 98, 100] + list(range(36, 54, 2))

def srd(r): return f"s[{r}:{r+3}]"
def vr(a, n=1): return f"v{a}" if n == 1 else f"v[{a}:{a+n-1}]"
def fbits(x): return struct.unpack('<I', struct.pack('<f', x))[0]
CSCALE = (128 ** -0.5) * 1.4426950408889634

class Q:
    def __init__(s, maxn): s.q = []; s.maxn = maxn
    def issue(s, tag):
        s.q.append(tag)
        assert len(s.q) <= s.maxn, ("counter overflow", s.q)
    def wait(s, tags):
        if isinstance(tags, str): tags = [tags]
        last = -1
        for i, t in enumerate(s.q):
            if t in tags: last = i
        if last < 0: return None
        n = len(s.q) - 1 - last
        s.q = s.q[last + 1:]
        return n
    def drain(s): s.q = []

def spread(slots, items, start=0, end=None):
    if end is None: end = len(slots)
    n = end - start
    m = len(items)
    for i, it in enumerate(items):
        k = start + (i * n) // m
        slots[k].extend(it)

class Gen:
    def __init__(s, opt):
        s.L = []; s.opt = opt
        f = lambda b: " nt" if b else ""
        s.ntw, s.ntx, s.nto, s.nths, s.nthl = f(opt.ntw), f(opt.ntx), f(opt.nto), f(opt.nths), f(opt.nthl)
        c = lambda b: " sc1" if b else ""
        s.ost0, s.ost1, s.ofl0, s.ofl1 = c(opt.osc & 1), c(opt.osc & 2), c(opt.osc & 4), c(opt.osc & 8)
    def A(s, t): s.L.append("  " + t)
    def lab(s, n): s.L.append(n + ":")
    def emit(s, lines):
        for l in lines:
            if l.endswith(":"): s.L.append(l)
            else: s.L.append("  " + l)
    def stamp_lines(s, name, cyc=False):
        if not s.opt.stamp: return []
        names = s.opt.stamps.split(",")
        if name not in names: return []
        r = STAMP_REGS[names.index(name)]
        cyc = cyc or s.opt.cyc or (s.opt.dbgst and name not in ("start", "end"))
        return [f"s_mem{'time' if cyc else 'realtime'} s[{r}:{r+1}]"]
    def stamp(s, name, cyc=False): s.emit(s.stamp_lines(name, cyc))
    def ast(s, i):
        return [f"s_memtime s[{36+2*i}:{37+2*i}]"] if s.opt.astamp >= 0 else []

    def common(s):
        A = s.A
        A("s_cmp_ge_u32 s2, 256")
        A("s_cbranch_scc1 L_end")
        s.stamp("start"); s.stamp("cstart", True)
        A("s_load_dwordx16 s[36:51], s[0:1], 0")
        A("s_load_dwordx8 s[52:59], s[0:1], 64")
        A("s_load_dwordx2 s[60:61], s[0:1], 96")
        A("v_lshrrev_b32 v1, 6, v0")
        A("s_and_b32 s70, s2, 7")
        A("s_lshr_b32 s71, s2, 3")
        if s.opt.cpf:
            KN = NAME + "_kernel"
            A("s_getpc_b64 s[84:85]")
            s.lab("L_pc")
            A(f"s_sub_u32 s84, s84, L_pc-{KN}")
            A("s_subb_u32 s85, s85, 0")
            A("v_lshlrev_b32 v2, 7, v1")
            A("v_and_b32 v3, 31, v0")
            A("v_lshlrev_b32 v3, 2, v3")
            A("v_add_u32 v2, v2, v3")
            A("s_lshl_b32 s72, s71, 10")
            A("v_add_u32 v2, s72, v2")
            A(f"v_min_u32 v2, L_end-{KN}, v2")
            A("global_load_dword v63, v2, s[84:85]")
        A(f"v_readfirstlane_b32 s{sWAVE}, v1 ; @val=WAVE")
        A(f"s_lshr_b32 s{sBR}, s70, 2")
        A(f"s_and_b32 s{sHG}, s70, 3")
        A(f"s_and_b32 s{sB}, s71, 7")
        A(f"s_lshr_b32 s{sHP}, s71, 3")
        A(f"s_lshl_b32 s{sH0}, s{sHG}, 3")
        A(f"s_lshl_b32 s70, s{sHP}, 1")
        A(f"s_add_u32 s{sH0}, s{sH0}, s70")
        A(f"s_add_u32 s{sROT}, s{sB}, s70")
        if not s.opt.rot: A(f"s_mov_b32 s{sROT}, 0")
        A(f"s_and_b32 s{sW}, s{sWAVE}, 3")
        A(f"s_lshl_b32 s{sW4K}, s{sW}, 12")
        A("v_and_b32 v1, 63, v0")
        A("v_lshrrev_b32 v19, 4, v1")
        A("v_and_b32 v20, 15, v1")
        A("v_lshlrev_b32 v21, 2, v19")
        A("v_xor_b32 v21, v20, v21")
        A("v_lshlrev_b32 v21, 4, v21")
        A("v_lshrrev_b32 v17, 5, v1")
        A("v_and_b32 v18, 3, v1")
        A("v_lshlrev_b32 v2, 13, v19")
        A("v_add_u32 v2, v2, v21")
        A("v_lshrrev_b32 v22, 3, v1")
        A("v_lshlrev_b32 v22, 10, v22")
        A("v_and_b32 v23, 7, v1")
        A("v_xor_b32 v23, v23, v19")
        A("v_lshlrev_b32 v24, 4, v23")
        A("v_add_u32 v3, v22, v24")
        A("v_xor_b32 v24, 64, v24")
        A("v_add_u32 v4, v22, v24")
        for r, sz in ((sK, 33554432), (sV, 33554432), (sWQ, 4194304), (sWS, 268435456), (sWO, 4194304), (sOUT, 1835008), (sDBG, 256)):
            A(f"s_mov_b32 s{r+2}, {sz}")
            A(f"s_mov_b32 s{r+3}, 0x20000")
        A(f"s_mov_b32 s{sX+3}, 0x20000")
        A(f"s_lshl_b32 s70, s{sW}, 17")
        A(f"s_lshl_b32 s71, s{sH0}, 8")
        A(f"s_add_u32 s{sWQB}, s70, s71")
        A(f"s_mul_i32 s70, s{sB}, 112")
        A(f"s_add_u32 s71, s70, 112")
        A(f"s_lshl_b32 s{sX+2}, s71, 10")
        A(f"s_lshl_b32 s71, s{sW}, 5")
        A("s_add_u32 s70, s70, s71")
        A(f"s_lshl_b32 s{sXB}, s70, 10")
        A(f"s_lshl_b32 s70, s{sB}, 5")
        A(f"s_add_u32 s70, s70, s{sH0}")
        A(f"s_lshl_b32 s{sKV}, s70, 17")
        A(f"s_add_u32 s{sKVW}, s{sKV}, s{sW4K}")
        A(f"s_cmp_eq_u32 s{sBR}, 0")
        A("s_waitcnt lgkmcnt(0)")
        s.stamp("k")
        for r, a, b in ((sX, 36, 46), (sWQ, 42, 52), (sK, 38, 48), (sV, 40, 50), (sWO, 44, 54)):
            A(f"s_cselect_b32 s{r}, s{a}, s{b}")
            A(f"s_cselect_b32 s{r+1}, s{a+1}, s{b+1}")
        for r, a in ((sOUT, 56), (sDBG, 58), (sWS, 60)):
            A(f"s_mov_b32 s{r}, s{a}")
            A(f"s_mov_b32 s{r+1}, s{a+1}")
        A(f"s_cmp_ge_u32 s{sWAVE}, 4")
        A("s_cbranch_scc1 L_B")

    def late_scalars(s):
        A = s.A
        A(f"s_lshl_b32 s70, s{sBR}, 3")
        A(f"s_add_u32 s70, s70, s{sB}")
        A(f"s_lshl_b32 s71, s70, 5")
        A(f"s_add_u32 s71, s71, s{sH0}")
        A(f"s_mul_i32 s{sOBASE}, s71, {UNIT}")
        A(f"s_lshl_b32 s71, s70, 2")
        A(f"s_add_u32 s71, s71, s{sHG}")
        A(f"s_lshl_b32 s{sGRP}, s71, 2")
        A(f"s_add_u32 s{sMYB}, s{sGRP}, s{sHP}")
        A(f"s_cmp_eq_u32 s{sW}, 3")
        A(f"s_cselect_b32 s{sEXLO}, 0xffff, -1")
        A(f"s_mov_b32 s{sEXHI}, s{sEXLO}")

    def kv_voffs(s, vK, vV):
        A = s.A
        A("v_lshlrev_b32 v22, 8, v19")
        A(f"v_add_u32 v{vV}, v22, v21")
        for t in range(4):
            A(f"v_add_u32 v23, {4*t}, v19")
            A(f"v_xor_b32 v23, v20, v23")
            A(f"v_lshlrev_b32 v23, 4, v23")
            A(f"v_add_u32 v{vK+t}, v22, v23")

    def flag_store(s, val, vtmp):
        A = s.A
        A(f"v_mov_b32 v{vtmp}, {val}")
        A("s_mov_b64 exec, 1")
        A(f"buffer_store_byte v{vtmp}, off, {srd(sDBG)}, s{sMYB} sc1")
        A("s_mov_b64 exec, -1")

    def dma_k(s, j, vK, nt, tag):
        g = []
        for t in range(4):
            pre = [f"s_add_u32 m0, s{sW4K}, {P[j%3]}", f"s_add_u32 s70, s{sKVW}, {j*16384}"] if t == 0 else []
            if t and s.opt.ilv: pre = [f"s_add_u32 m0, s{sW4K}, {P[j%3]}", "s_nop 0"]
            g.append((tag, pre + [f"buffer_load_dwordx4 v{vK+t}, {srd(sK)}, s70 offen offset:{t*1024}{nt} lds"]))
        return g
    def dma_v(s, j, vV, nt, tag):
        g = []
        for t in range(4):
            pre = [f"s_add_u32 m0, s{sW4K}, {P[j%3]+16384}", f"s_add_u32 s70, s{sKVW}, {(j-1)*16384}"] if t == 0 else []
            if t and s.opt.ilv: pre = [f"s_add_u32 m0, s{sW4K}, {P[j%3]+16384}", "s_nop 0"]
            g.append((tag, pre + [f"buffer_load_dwordx4 v{vV}, {srd(sV)}, s70 offen offset:{t*1024}{nt} lds"]))
        return g
    def kc_lines(s, c, dst):
        return [f"s_add_u32 s{dst}, s{sROT}, {c}", f"s_and_b32 s{dst}, s{dst}, 7"]
    def dma_wq(s, c, slot, vW, tag, extra, tmp):
        g = []
        for t in range(4):
            pre = []
            if t == 0:
                pre = s.kc_lines(c, tmp) + [f"s_lshl_b32 s{tmp}, s{tmp}, 19", f"s_add_u32 s{tmp}, s{tmp}, s{sWQB}",
                                            f"s_add_u32 m0, s{sW4K}, {slot}"]
            elif s.opt.ilv: pre = [f"s_add_u32 m0, s{sW4K}, {slot}"]
            g.append((tag, pre + [f"s_add_u32 s71, s{tmp}, {extra + t*31744}",
                                  f"buffer_load_dwordx4 v{vW}, {srd(sWQ)}, s71 offen offset:{t*1024}{s.ntw} lds"]))
        return g

    def waveA(s):
        A = s.A; o = s.opt
        nt = " nt" if o.nt else ""
        Q_, SB, Pr, O, WIN, NM = 0, [32, 64], 96, 112, 176, 208
        KA, VA, QA, OV, RL = 224, 232, 236, 237, 238
        LS, AL, T = 240, 242, 244
        vK, vV = 5, 9
        q = Q(63)
        PX = [P[1], P[2], W[0], W[2]]
        def dma_x(c):
            g = []
            for t in range(4):
                pre = []
                if t == 0:
                    pre = s.kc_lines(c, 87) + ["s_lshl_b32 s87, s87, 7", f"s_add_u32 s87, s87, s{sXB}", f"s_add_u32 m0, s{sW4K}, {PX[c%4]}"]
                g.append((f"C{c}", pre + [f"s_add_u32 s71, s87, {t*7168}",
                                          f"buffer_load_dwordx4 v{3 + (t&1)}, {srd(sX)}, s71 offen offset:{t*1024}{s.ntx} lds"]))
            return g
        def issue(groups):
            for tag, ins in groups:
                q.issue(tag); s.emit(ins)
        def chunk(c): return dma_x(c) + s.dma_wq(c, PX[c % 4] + 16384, 2, f"C{c}", 0, 87)
        issue(chunk(0))
        s.stamp("a0")
        issue(chunk(1))
        s.late_scalars()
        s.kv_voffs(vK, vV)
        A("v_and_b32 v10, 31, v1")
        A("v_lshlrev_b32 v10, 8, v10")
        A("v_xor_b32 v11, v17, v20")
        for k in range(8):
            A(f"v_xor_b32 v12, {2*k}, v11")
            A(f"v_lshlrev_b32 v12, 4, v12")
            A(f"v_add_u32 v{KA+k}, v10, v12")
        A("v_lshrrev_b32 v10, 2, v20")
        A("v_and_b32 v11, 1, v19")
        A("v_lshlrev_b32 v12, 10, v17")
        A("v_lshlrev_b32 v13, 8, v10")
        A("v_add_u32 v12, v12, v13")
        A("v_lshlrev_b32 v13, 5, v11")
        A("v_add_u32 v12, v12, v13")
        A("v_and_b32 v13, 1, v18")
        A("v_lshlrev_b32 v13, 4, v13")
        A("v_add_u32 v12, v12, v13")
        A("v_lshrrev_b32 v13, 1, v18")
        A("v_lshlrev_b32 v13, 3, v13")
        A("v_add_u32 v12, v12, v13")
        A("v_add_u32 v12, 16384, v12")
        for D in range(4):
            A(f"v_xor_b32 v13, {D}, v10")
            A(f"v_lshlrev_b32 v13, 6, v13")
            A(f"v_add_u32 v{VA+D}, v12, v13")
        A(f"s_lshl_b32 s70, s{sW}, 13")
        A(f"s_add_u32 s70, s70, {W[0]}")
        A(f"v_lshlrev_b32 v{QA}, 4, v1")
        A(f"v_add_u32 v{QA}, s70, v{QA}")
        A(f"v_mul_u32_u24 v{OV}, 112, v17")
        A(f"v_and_b32 v12, 31, v1")
        A(f"v_add_u32 v{OV}, v{OV}, v12")
        A(f"s_lshl_b32 s70, s{sW}, 5")
        A(f"v_add_u32 v{OV}, s70, v{OV}")
        A(f"v_lshlrev_b32 v{OV}, 4, v{OV}")
        for i in range(8): A(f"v_mov_b64 {vr(NM+2*i,2)}, 0")
        A(f"v_mov_b64 {vr(LS,2)}, 0")
        A(f"s_mov_b32 s{sEV}, {hex((1<<0)|(1<<8)|(1<<1)|(1<<7))}")
        A(f"s_mov_b32 s{sPAT}, {hex(sum(1 << i for i in range(2, 17, 3)))}")
        A(f"s_mov_b32 s{sNEG}, 0xffff0000")
        A(f"s_mov_b32 s{sPOS}, 32768")
        A(f"s_mov_b32 s{sTHR}, {hex(fbits(THR))}")
        A(f"s_mov_b32 s{sSTEP}, 0")
        A(f"s_mov_b32 s{sPEND}, 0")
        A(f"s_add_u32 s{sOBASE}, s{sOBASE}, {UNIT}")
        for k in range(8):
            n = q.wait(f"C{k}")
            if n is not None: A(f"s_waitcnt vmcnt({n})")
            s.stamp(f"aw{k}")
            A("s_barrier")
            if k + 2 < 8: issue(chunk(k + 2))
            if k == o.k0at: issue(s.dma_k(0, vK, nt, "K0"))
            if k == 5: issue(s.dma_wq(0, P[0] + 16384, 2, "Q0", 256, 87))
            if k == o.p1at: issue(s.dma_k(1, vK, nt, "KV1") + s.dma_v(1, vV, nt, "KV1"))
        n0 = q.wait(["K0", "Q0"])
        assert n0 == 8, n0
        if o.prioA: A(f"s_setprio {o.prioA}")

        U = T + 4
        def fin_D(D, dst):
            L = [f"v_mul_f32 v{O+16*D+i}, v{AL}, v{O+16*D+i}" for i in range(16)]
            L += [f"v_cvt_pk_bf16_f32 v{dst+8*D+i}, v{O+16*D+2*i}, v{O+16*D+2*i+1}" for i in range(8)]
            return L
        def step(par, last=False):
            cur, prev = SB[par], SB[1 - par]
            lq = Q(15)
            L = []
            def wl(tags):
                n = lq.wait(tags)
                return [f"s_waitcnt lgkmcnt({n})"] if n is not None else []
            def kread(i):
                T_, k = divmod(i, 8); lq.issue(f"K{i}")
                return [f"ds_read_b128 {vr(WIN + 4*(i % 8), 4)}, v{KA+k} offset:{T_*8192}"]
            vorder = [divmod(f, 4) for f in range(16)] if not last else [(t, D) for D in range(4) for t in range(4)]
            def vread(f):
                t, D = vorder[f]; r = []
                for a in range(2):
                    lq.issue(f"V{f}")
                    r.append(f"ds_read_b64_tr_b16 {vr(WIN + 4*(f % 8) + 2*a, 2)}, v{VA+D} offset:{t*4096 + a*2048}")
                return r
            exp = lambda r: [f"v_exp_f32 v{r}, v{r}"]
            add = lambda r: [f"v_add_f32 v{LS + (r & 1)}, v{LS + (r & 1)}, v{r}"]
            cvt = lambda t, i: [f"v_cvt_pk_bf16_f32 v{Pr+4*t+i}, v{prev+8*t+2*i}, v{prev+8*t+2*i+1}"]
            mx = lambda d, a, b, c: [f"v_max3_f32 v{d}, v{a}, v{b}, v{c}"]
            bub = []
            for i in range(4): bub += [cvt(0, i), add(prev + 2*i), add(prev + 2*i + 1)]
            for i in range(4): bub += [cvt(1, i), add(prev + 8 + 2*i), add(prev + 8 + 2*i + 1)]
            F1 = []
            e = [exp(prev + 16 + i) for i in range(16)]
            a_ = [add(prev + 16 + i) for i in range(16)]
            c2 = [cvt(2, i) for i in range(4)]; c3 = [cvt(3, i) for i in range(4)]
            F1 += [e[0], e[1], e[2]]
            for i in range(3, 16):
                F1 += [e[i], a_[i - 3]]
                if i in (5, 7, 9, 11): F1.append(c2[(i - 5) // 2])
                if i in (13, 15): F1.append(c3[(i - 13) // 2])
            F1 += [a_[13], c3[2], a_[14], a_[15], c3[3]]
            def maxT(base, d0, d1):
                return [mx(d0, base, base+1, base+2), mx(d1, base+8, base+9, base+10),
                        mx(d0, d0, base+3, base+4), mx(d1, d1, base+11, base+12),
                        mx(d0, d0, base+5, base+6), mx(d1, d1, base+13, base+14),
                        mx(d0, d0, base+7, base+15)]
            M0 = maxT(cur, U, U+1)
            M1 = maxT(cur+16, U+2, U+3)
            fin = [mx(U, U, U+1, U+2), [f"v_max_f32 v{U}, v{U}, v{U+3}"]]
            tagp = "e" if par == 0 else "o"
            chk = [f"v_cmp_lt_f32 vcc, s{sTHR}, v{U}",
                   f"s_nop 0",
                   f"s_cbranch_vccnz A_resc{tagp} ; @takenif={sTHR}:0xff800000",
                   f"A_resc{tagp}r:"]
            advK = [[f"v_add_u32 v{KA+k}, s70, v{KA+k}"] for k in range(8)]
            advV = [[f"v_add_u32 v{VA+D}, s70, v{VA+D}"] for D in range(4)]
            exps1 = [exp(cur+i) for i in range(16)]

            L += s.ast(1)
            if not last:
                for i in range(8): L += kread(i)
                for it in bub: L += it
                nb = o.nbub
                for it in F1[:nb]: L += it
                gaps = [[] for _ in range(16)]
                spread(gaps, F1[nb:], 0, 14)
                spread(gaps, M0, 10, 16)
                for i in range(16):
                    T_, k = divmod(i, 8)
                    if i % 2 == 0: L += wl([f"K{i}", f"K{i+1}"])
                    srcC = vr(NM, 16) if k == 0 else vr(cur + 16*T_, 16)
                    L.append(f"v_mfma_f32_32x32x16_bf16 {vr(cur+16*T_,16)}, {vr(WIN+4*(i%8),4)}, {vr(Q_+4*k,4)}, {srcC}")
                    if i + 8 < 16: L += kread(i + 8)
                    if i >= 9: L += vread(i - 9)
                    L += gaps[i]
                    if i == 7: L += s.ast(2)
                L += s.ast(3)
                vissued = 7
                gaps = [[] for _ in range(16)]
                spread(gaps, advK[:4], 0, 2)
                spread(gaps, M1 + fin, 2, 5)
                gaps[5] += chk
                spread(gaps, exps1, 5, 16)
                spread(gaps, advK[4:], 6, 10)
                spread(gaps, advV, 10, 14)
                L += [f"s_bitcmp1_b32 s{sPAT}, s{sSTEP}", f"s_cselect_b32 s70, s{sNEG}, s{sPOS}"]
            else:
                for f in range(7): L += vread(f)
                vissued = 7
                for it in bub: L += it
                for it in F1: L += it
                L += rl_lines(AL)
                L.append(f"v_add_u32 v{QA}, {hex((P[0] - W[1]) & 0xffffffff)}, v{QA}")
                gaps = [[] for _ in range(16)]
                for D in range(3):
                    items = [[x] for x in fin_D(D, cur)] + [out_D(D, cur)]
                    spread(gaps, items, 4*D + 6 if D < 2 else 14, 4*D + 10 if D < 2 else 16)
            for f in range(16):
                t, D = vorder[f]
                if f % 2 == 0: L += wl([f"V{f}", f"V{f+1}"])
                L.append(f"v_mfma_f32_32x32x16_bf16 {vr(O+16*D,16)}, {vr(WIN+4*(f%8),4)}, {vr(Pr+4*t,4)}, {vr(O+16*D,16)}")
                if vissued < 16:
                    L += vread(vissued); vissued += 1
                L += gaps[f]
                if f == 6 and not last: L += s.ast(4)
            if not last:
                L += s.ast(5)
                L += [f"s_cmp_lg_u32 s{sPEND}, 0", f"s_cbranch_scc1 A_pend{tagp}", f"A_pend{tagp}r:"]
                L += s.ast(6)
                if s.opt.astamp >= 0:
                    L += ["s_waitcnt lgkmcnt(0)", f"s_cmp_eq_u32 s{sSTEP}, {s.opt.astamp}"]
                    L += [f"s_cselect_b32 s{50+i}, s{36+2*i}, s{50+i}" for i in range(7)]
            else:
                L += fin_D(3, cur) + out_D(3, cur)
            return L
        def out_D(D, src):
            L = []
            for h in range(2):
                L.append(f"ds_write_b128 v{QA}, {vr(src+8*D+4*h,4)} offset:{(2*D+h)*1024}")
            L.append(f"s_mov_b64 exec, s[{sEXLO}:{sEXHI}]")
            for h in range(2):
                L.append(f"s_add_u32 s71, s{sOBASE}, {(4*D+2*h)*1792}")
                L.append(f"buffer_store_dwordx4 {vr(src+8*D+4*h,4)}, v{OV}, {srd(sWS)}, s71 offen{s.ost1}{s.nths}")
            L.append("s_mov_b64 exec, -1")
            return L
        def rl_lines(dst):
            return [f"v_add_f32 v{T}, v{LS}, v{LS+1}", f"v_mov_b32 v{T+1}, v{T}", f"v_permlane32_swap_b32 v{T}, v{T+1}",
                    f"v_add_f32 v{T}, v{T}, v{T+1}", f"v_rcp_f32 v{dst}, v{T}"]

        s.lab("A_loop")
        for par in range(2):
            tagp = "e" if par == 0 else "o"
            s.emit(s.ast(0))
            A(f"s_bitcmp1_b32 s{sEV}, s{sSTEP}")
            A(f"s_cbranch_scc1 A_top{tagp}")
            A("s_barrier")
            s.lab(f"A_top{tagp}r")
            s.emit(step(par))
            A(f"s_add_u32 s{sSTEP}, s{sSTEP}, 1")
        A(f"s_cmp_lt_u32 s{sSTEP}, 16")
        A("s_cbranch_scc1 A_loop")
        A("s_barrier")
        s.emit(step(0, last=True))
        A("s_waitcnt lgkmcnt(0)")
        A("s_barrier")
        A(f"s_lshl_b32 s70, s{sMYB}, 7")
        A(f"s_add_u32 s70, s70, {FLAG_BASE}")
        A(f"s_lshl_b32 s71, s{sW}, 2")
        A("s_add_u32 s70, s70, s71")
        A(f"v_mov_b32 v{T}, 1")
        A("s_waitcnt vmcnt(0)")
        A("s_mov_b64 exec, 1")
        A(f"buffer_store_dword v{T}, off, {srd(sWS)}, s70{s.ofl1}")
        A("s_mov_b64 exec, -1")
        if o.wb:
            if o.wb == 1: A(f"s_cmp_eq_u32 s{sW}, 0")
            elif o.wb == 2:
                A(f"s_or_b32 s70, s{sW}, s{sHP}"); A("s_cmp_eq_u32 s70, 0")
            elif o.wb == 3:
                A(f"s_or_b32 s70, s{sW}, s{sHP}"); A(f"s_or_b32 s70, s70, s{sB}"); A("s_cmp_eq_u32 s70, 0")
            A("s_cbranch_scc0 A_nowb")
            A("buffer_wbl2 sc1")
            s.lab("A_nowb")
        if o.astamp >= 0:
            A(f"s_cmp_lg_u32 s{sW}, 0")
            A("s_cbranch_scc1 L_end")
            A("s_lshl_b32 s70, s2, 8")
            A(f"s_add_u32 s70, s70, {STAMP_BASE + 65536}")
            A("s_mov_b64 exec, 1")
            for i in range(7):
                A(f"v_mov_b32 v32, s{50+i}")
                A(f"buffer_store_dword v32, off, {srd(sWS)}, s70 offset:{4*i}")
                A("s_nop 1")
        A("s_endpgm")
        s.lab("A_tope")
        A(f"s_cmp_eq_u32 s{sSTEP}, 0")
        A("s_cbranch_scc0 A_top8")
        A(f"s_waitcnt vmcnt({n0})")
        A("s_barrier")
        for i in range(8):
            A(f"ds_read_b128 {vr(Q_+4*i,4)}, v{QA} offset:{i*1024}")
        A(f"v_add_u32 v{QA}, 16384, v{QA}")
        A("s_branch A_top8b")
        s.lab("A_top8")
        A("s_barrier")
        for i in range(8):
            A(f"ds_read_b128 {vr(Q_+4*i,4)}, v{QA} offset:{i*1024}")
        s.lab("A_top8b")
        A(f"s_mov_b32 s{sTHR}, 0xff800000")
        A("s_waitcnt lgkmcnt(0)")
        A("s_branch A_toper")
        s.lab("A_topo")
        A(f"s_cmp_eq_u32 s{sSTEP}, 1")
        A("s_cbranch_scc0 A_top7")
        A("s_waitcnt vmcnt(0)")
        A("s_barrier")
        A("s_branch A_topor")
        s.lab("A_top7")
        A(f"s_or_b32 s{sPEND}, s{sPEND}, 4")
        A("s_barrier")
        A("s_branch A_topor")
        for par in range(2):
            tagp = "e" if par == 0 else "o"; cur = SB[par]
            s.lab(f"A_resc{tagp}")
            A(f"v_mov_b32 v{U+1}, v{U}")
            A(f"v_permlane32_swap_b32 v{U}, v{U+1}")
            A(f"v_max_f32 v{U}, v{U}, v{U+1}")
            if par == 0:
                A(f"s_and_b32 s71, s{sSTEP}, 7")
                A("s_cmp_eq_u32 s71, 0")
                A("s_cbranch_scc1 A_hsw")
            A(f"v_max_f32 v{U}, 0, v{U}")
            A(f"v_sub_f32 v{U+1}, 0, v{U}")
            A(f"v_exp_f32 v{AL}, v{U+1}")
            A(f"s_or_b32 s{sPEND}, s{sPEND}, 1")
            A(f"v_mul_f32 v{LS}, v{AL}, v{LS}")
            A(f"v_mul_f32 v{LS+1}, v{AL}, v{LS+1}")
            if par == 0: s.lab("A_hswj")
            for i in range(32): A(f"v_sub_f32 v{cur+i}, v{cur+i}, v{U}")
            for i in range(16): A(f"v_sub_f32 v{NM+i}, v{NM+i}, v{U}")
            A(f"s_branch A_resc{tagp}r")
        s.lab("A_hsw")
        s.emit(rl_lines(RL))
        A(f"v_mov_b64 {vr(LS,2)}, 0")
        A(f"s_mov_b32 s{sTHR}, {hex(fbits(THR))}")
        A(f"s_lshr_b32 s{sPEND}, s{sSTEP}, 3")
        A(f"s_add_u32 s{sPEND}, s{sPEND}, 2")
        A(f"s_lshl_b32 s{sPEND}, s{sPEND}, 3")
        A("s_branch A_hswj")
        for par in range(2):
            tagp = "e" if par == 0 else "o"
            s.lab(f"A_pend{tagp}")
            if par == 0:
                A(f"s_cmp_ge_u32 s{sPEND}, 16")
                A("s_cbranch_scc1 A_pz")
            A(f"s_bitcmp1_b32 s{sPEND}, 0")
            A(f"s_cbranch_scc0 A_pn{tagp}")
            for i in range(32):
                A(f"v_pk_mul_f32 {vr(O+2*i,2)}, {vr(O+2*i,2)}, {vr(AL,2)} op_sel_hi:[1,0]")
            s.lab(f"A_pn{tagp}")
            if par == 1:
                A(f"s_bitcmp1_b32 s{sPEND}, 2")
                A(f"s_cbranch_scc0 A_pm{tagp}")
                for i in range(8): A(f"v_mov_b64 {vr(NM+2*i,2)}, 0")
                s.lab(f"A_pm{tagp}")
            A(f"s_mov_b32 s{sPEND}, 0")
            A(f"s_branch A_pend{tagp}r")
        s.lab("A_pz")
        A(f"s_cmp_eq_u32 s{sPEND}, 24")
        A("s_cbranch_scc0 A_pz2")
        A(f"v_mov_b32 v{AL}, v{RL}")
        for D in range(4):
            s.emit(fin_D(D, WIN))
            for h in range(2):
                A(f"ds_write_b128 v{QA}, {vr(WIN+8*D+4*h,4)} offset:{(2*D+h)*1024}")
        A("s_waitcnt lgkmcnt(0)")
        s.lab("A_pz2")
        for i in range(32): A(f"v_mov_b64 {vr(O+2*i,2)}, 0")
        A(f"s_mov_b32 s{sPEND}, 0")
        A(f"s_branch A_pender")

    def waveB(s):
        A = s.A; o = s.opt
        vV, vW, vK, WA, vWO, vO, vQW, vWB = 2, 3, 4, 8, 12, 13, 14, 15
        Y, vR, vOL, VP = 16, 17, 18, 20
        XA = 24
        WIN, X, ACC = 32, 64, 192
        q = Q(63)
        nt = " nt" if o.nt else ""
        PX = [P[1], P[2], W[0], W[2]]
        s.lab("L_B")
        s.stamp("b0")
        A(f"v_mov_b32 v{vW}, v2")
        s.late_scalars()
        A(f"s_cmp_lg_u32 s{sW}, 0")
        A("s_cbranch_scc1 B_nclr")
        A("v_mov_b32 v28, 0")
        A("v_lshlrev_b32 v29, 2, v1")
        A(f"s_lshl_b32 s70, s{sMYB}, 7")
        A(f"s_add_u32 s70, s70, {FLAG_BASE}")
        A("s_mov_b64 exec, 0xfff")
        A(f"buffer_store_dword v28, v29, {srd(sWS)}, s70 offen sc1")
        A("s_mov_b64 exec, -1")
        s.lab("B_nclr")
        s.kv_voffs(vK, vV)
        A("v_lshlrev_b32 v23, 10, v19")
        A(f"v_add_u32 v{vWO}, v23, v21")
        A("v_lshrrev_b32 v22, 2, v20")
        A("v_and_b32 v23, 1, v19")
        A("v_lshlrev_b32 v28, 13, v17")
        A("v_lshlrev_b32 v29, 8, v22")
        A("v_add_u32 v28, v28, v29")
        A("v_lshlrev_b32 v29, 5, v23")
        A("v_add_u32 v28, v28, v29")
        A("v_and_b32 v29, 1, v18")
        A("v_lshlrev_b32 v29, 4, v29")
        A("v_add_u32 v28, v28, v29")
        A("v_lshrrev_b32 v29, 1, v18")
        A("v_lshlrev_b32 v29, 3, v29")
        A(f"v_add_u32 v{vWB}, v28, v29")
        A(f"v_add_u32 v28, {P[1]}, v{vWB}")
        for D in range(4):
            A(f"v_xor_b32 v29, {D}, v22")
            A(f"v_lshlrev_b32 v29, 6, v29")
            A(f"v_add_u32 v{WA+D}, v28, v29")
        A("v_and_b32 v28, 31, v1")
        A("v_lshrrev_b32 v29, 1, v28")
        A("v_and_b32 v29, 7, v29")
        A("v_lshlrev_b32 v30, 2, v17")
        A("v_xor_b32 v29, v29, v30")
        A("v_lshlrev_b32 v28, 7, v28")
        A(f"s_add_u32 s70, s{sW4K}, {P[1]}")
        A("v_add_u32 v28, s70, v28")
        for j in range(4):
            A(f"v_xor_b32 v30, {j}, v29")
            A(f"v_lshlrev_b32 v30, 4, v30")
            A(f"v_add_u32 v{XA+j}, v28, v30")
        A(f"v_mul_u32_u24 v{vO}, 448, v17")
        A("v_and_b32 v29, 31, v1")
        A(f"v_add_u32 v{vO}, v{vO}, v29")
        A(f"s_lshl_b32 s70, s{sW}, 5")
        A(f"v_add_u32 v{vO}, s70, v{vO}")
        A(f"v_lshlrev_b32 v{vO}, 4, v{vO}")
        A(f"s_lshl_b32 s70, s{sW}, 13")
        A(f"s_add_u32 s70, s70, {W[0]}")
        A(f"v_lshlrev_b32 v{vQW}, 4, v1")
        A(f"v_add_u32 v{vQW}, s70, v{vQW}")
        A(f"v_lshlrev_b32 v30, 11, v17")
        A(f"v_lshlrev_b32 v29, 4, v29")
        A(f"v_add_u32 v30, v30, v29")
        A(f"s_add_u32 s70, s70, 16384")
        A(f"v_add_u32 v31, s70, v30")
        A(f"v_mov_b32 v{vOL}, v31")
        A(f"v_mov_b32 v{vR}, v22")
        A(f"v_add_u32 v{Y}, 3584, v{vO}")
        A(f"s_lshl_b32 s70, s{sHG}, 20")
        A(f"s_lshl_b32 s71, s{sW}, 14")
        A("s_add_u32 s70, s70, s71")
        A(f"s_lshl_b32 s71, s{sHP}, 8")
        A(f"s_add_u32 s{sWOB}, s70, s71")
        A(f"s_lshl_b32 s70, s{sBR}, 3")
        A(f"s_add_u32 s70, s70, s{sB}")
        A(f"s_lshl_b32 s70, s70, 5")
        A(f"s_lshl_b32 s71, s{sHG}, 3")
        A(f"s_add_u32 s70, s70, s71")
        A(f"s_mul_i32 s73, s70, {UNIT}")
        sH = (77, 79); sOH = (76, 3)
        if o.wrot:
            A(f"s_mul_i32 s76, s{sB}, 11")
            A("s_lshr_b32 s76, s76, 5")
            A("s_mul_i32 s76, s76, 3")
            A(f"s_sub_u32 s76, s{sB}, s76")
            if not (o.wrot & 1): A("s_mov_b32 s76, 0")
        for p in range(4):
            if o.wrot and p > 0:
                A(f"s_add_u32 s70, s76, {p - 1}")
                A("s_sub_u32 s71, s70, 3")
                A("s_cmp_ge_u32 s70, 3")
                A("s_cselect_b32 s70, s71, s70")
                A(f"s_add_u32 s70, s70, s{sHP}")
                A("s_add_u32 s70, s70, 1")
            else:
                A(f"s_add_u32 s70, s{sHP}, {p}")
            A("s_and_b32 s70, s70, 3")
            A(f"s_lshl_b32 s71, s70, 18")
            A(f"s_add_u32 s{sWP+p}, s{sWOB}, s71")
            A(f"s_mul_i32 s71, s70, {2*UNIT}")
            A(f"s_add_u32 s{sOP+p}, s73, s71")
        vOL2 = 19
        if o.wrot:
            A(f"s_and_b32 s70, s{sB}, 1")
            if not (o.wrot & 2): A("s_mov_b32 s70, 0")
            A(f"s_lshl_b32 s{sH[0]}, s70, 16")
            A(f"s_sub_u32 s{sH[1]}, 65536, s{sH[0]}")
            A(f"s_mul_i32 s{sOH[0]}, s70, 14336")
            A(f"s_sub_u32 s{sOH[1]}, 14336, s{sOH[0]}")
            A("s_lshl_b32 s70, s70, 12")
            A("s_sub_u32 s71, 4096, s70")
            A(f"v_add_u32 v{vOL2}, s71, v{vOL}")
            A(f"v_add_u32 v{vOL}, s70, v{vOL}")
        A(f"s_mov_b32 s74, {hex(fbits(CSCALE))}")
        sCS = 74
        sPF = 75

        def wait_vm(tags):
            n = q.wait(tags)
            if n is not None: A(f"s_waitcnt vmcnt({n})")
        def mat(groups):
            out = []
            for tag, ins in groups:
                q.issue(tag); out.append(ins)
            return out
        def dma_wo(rr, p, half, slot):
            g = []
            for t in range(4):
                pre = [f"s_add_u32 m0, s{sW4K}, {slot}"] if (t == 0 or o.ilv) else []
                if o.wrot:
                    if t == 0: pre.append(f"s_add_u32 s72, s{sWP+p}, s{sH[half]}")
                    addr = f"s_add_u32 s71, s72, {rr*131072 + t*3072}"
                else:
                    addr = f"s_add_u32 s71, s{sWP+p}, {(rr*128 + 64*half)*1024 + t*3072}"
                g.append((f"O{rr}{p}{half}", pre + [addr,
                          f"buffer_load_dwordx4 v{vWO}, {srd(sWO)}, s71 offen offset:{t*1024}{s.nto} lds"]))
            return g
        def of_mem(rr, p, half, tag, store=False, clean=False, blk=None):
            g = []
            xb = 2*p + half if blk is None else blk + half
            for jj in range(2):
                va = vO if jj == 0 else Y
                if o.wrot:
                    ins = [f"s_add_u32 s72, s{sOP+p}, s{sOH[half]}"] + ([f"s_add_u32 s72, s72, {rr*UNIT}"] if rr else []) + [f"s_mov_b64 exec, s[{sEXLO}:{sEXHI}]"]
                else:
                    ins = [f"s_add_u32 s72, s{sOP+p}, {rr*UNIT + half*8*1792}", f"s_mov_b64 exec, s[{sEXLO}:{sEXHI}]"]
                for j in (2*jj, 2*jj+1):
                    op = "buffer_store_dwordx4" if store else "buffer_load_dwordx4"
                    ins.append(f"{op} {vr(X+16*xb+4*j,4)}, v{va}, {srd(sWS)}, s72 offen offset:{(j&1)*1792}{(' sc1' if clean else s.ost0) if store else ' sc1'}{s.nths if (store and not clean) else s.nthl if not store else ''}")
                ins.append("s_mov_b64 exec, -1")
                g.append(((tag, tag), ins))
            return g
        def mat2(groups):
            out = []
            for tag, ins in groups:
                if isinstance(tag, tuple):
                    for t_ in tag: q.issue(t_)
                else: q.issue(tag)
                out.append(ins)
            return out

        s.wbase = P[1]; s.xbase = P[1]
        def rebase_lines(regs, cur, nb):
            d = (nb - cur) & 0xffffffff
            return [f"v_add_u32 v{r}, {hex(d)}, v{r}" for r in regs]
        def base_for(slot, cur):
            if 0 <= slot - cur <= 49152: return cur
            for b in (P[1], W[0], P[0], P[2]):
                if 0 <= slot - b <= 49152: return b
            raise ValueError
        LA = o.la
        def frags_c(lst):
            fr = []
            for ci, (slot, xb, first) in enumerate(lst):
                fr += [(slot, xb, first and j == 0, j, D, ci) for j in range(4) for D in range(4)]
            return fr
        def stream(fr, fillers=None, prologue=False, gapfill=None):
            n = len(fr)
            lq = Q(15)
            def xrd(ci, j):
                slot = PX[ci % 4]; r = []
                nb = base_for(slot, s.xbase)
                if nb != s.xbase:
                    r += rebase_lines(range(XA, XA+4), s.xbase, nb); s.xbase = nb
                lq.issue(f"X{ci}_{j}")
                r.append(f"ds_read_b128 {vr(X+16*ci+4*j,4)}, v{XA+j} offset:{slot - s.xbase}")
                return r
            def rd(f):
                slot, xb, zero, j, D, ci = fr[f]; r = []
                if prologue and j == 0 and D == 0 and ci > 0:
                    r += s.stamp_lines(f"x{ci}")
                    r.append("s_barrier")
                    r += s.stamp_lines(f"p{ci}")
                nb = base_for(slot, s.wbase)
                if nb != s.wbase:
                    r += rebase_lines(range(WA, WA+4), s.wbase, nb); s.wbase = nb
                if prologue and D == 0: r += xrd(ci, j)
                for a in range(2):
                    lq.issue(f)
                    r.append(f"ds_read_b64_tr_b16 {vr(WIN+4*(f%8)+2*a,2)}, v{WA+D} offset:{slot-s.wbase + j*2048 + a*1024}")
                return r
            gaps = gapfill if gapfill is not None else [[] for _ in range(n)]
            if fillers: spread(gaps, fillers, 0, n)
            for f in range(min(LA, n)): s.emit(rd(f))
            issued = min(LA, n)
            for f in range(n):
                slot, xb, zero, j, D, ci = fr[f]
                k = lq.wait([f, f + 1] if (f % 2 == 0 and f + 1 < issued) else [f])
                if k is not None: A(f"s_waitcnt lgkmcnt({k})")
                srcC = "0" if zero else vr(ACC+16*D, 16)
                A(f"v_mfma_f32_32x32x16_bf16 {vr(ACC+16*D,16)}, {vr(WIN+4*(f%8),4)}, {vr(X+16*xb+4*j,4)}, {srcC}")
                if issued < n:
                    s.emit(rd(issued)); issued += 1
                s.emit(gaps[f])
        def write_q(base_off):
            for D in range(4):
                for i in range(16):
                    A(f"v_mul_f32 v{ACC+16*D+i}, s{sCS}, v{ACC+16*D+i}")
                for h in range(2):
                    f = 2*D + h
                    for i in range(4):
                        A(f"v_cvt_pk_bf16_f32 v{WIN+4*f+i}, v{ACC+16*D+8*h+2*i}, v{ACC+16*D+8*h+2*i+1}")
                    A(f"ds_write_b128 v{vQW}, {vr(WIN+4*f,4)} offset:{base_off + f*1024}")
            A("s_waitcnt lgkmcnt(0)")
        def pair(j):
            a = s.dma_k(j, vK, nt, f"KV{j}") if j <= 15 else []
            b = s.dma_v(j, vV, nt, f"KV{j}") if j >= 1 else []
            return a + b
        def own_frags():
            for half in range(2):
                for j in range(4):
                    if o.wrot: A(f"ds_read_b128 {vr(X+16*half+4*j,4)}, v{(vOL, vOL2)[half]} offset:{j*512}")
                    else: A(f"ds_read_b128 {vr(X+16*half+4*j,4)}, v{vOL} offset:{half*4096 + j*512}")
            A("s_waitcnt lgkmcnt(0)")

        A(f"v_add_u32 v21, s{sHP}, v1")
        A("v_add_u32 v21, 1, v21")
        A("v_and_b32 v21, 3, v21")
        A(f"v_add_u32 v21, s{sGRP}, v21")
        A("v_lshlrev_b32 v21, 7, v21")
        A(f"v_add_u32 v22, s{sHG}, v1")
        A("v_add_u32 v22, 1, v22")
        A("v_and_b32 v22, 3, v22")
        A("v_lshlrev_b32 v22, 2, v22")
        A(f"s_and_b32 s71, s{sGRP}, {hex(0xfffffff0)}")
        A(f"s_add_u32 s71, s71, s{sHP}")
        A("v_add_u32 v22, s71, v22")
        A("v_lshlrev_b32 v22, 7, v22")
        A("v_lshlrev_b32 v23, 4, v1")
        A(f"s_lshl_b32 s{sPF}, s{sHG}, 20")
        A("s_lshr_b32 s70, s2, 3")
        A("s_lshl_b32 s70, s70, 15")
        A(f"s_add_u32 s{sPF}, s{sPF}, s70")
        A(f"s_lshl_b32 s70, s{sW}, 13")
        A(f"s_add_u32 s{sPF}, s{sPF}, s70")
        A("s_waitcnt vmcnt(0)")
        s.stamp("x0")
        A("s_barrier")
        s.stamp("p0")
        stream(frags_c([(PX[c % 4] + 16384, c, c == 0) for c in range(8)]), None, prologue=True)
        write_q(0)
        s.stamp("pro")
        def poll_check(vsrc, shift):
            A(f"v_readfirstlane_b32 s70, v{vsrc} ; @val=POLL")
            if shift == 0:
                A("s_lshr_b32 s71, s70, 1"); A("s_or_b32 s70, s70, s71")
            else:
                A(f"s_lshr_b32 s70, s70, {shift}")
            A("s_and_b32 s70, s70, 0x01010101")
            A("s_cmp_eq_u32 s70, 0x01010101")
        def mid_poll():
            return [f"s_and_b32 s71, s{sGRP}, {hex(0xfffffff0)}",
                    f"buffer_load_dwordx4 v[24:27], off, {srd(sDBG)}, s71 sc1"]
        def mid_check():
            return [f"v_and_b32 v24, v24, v25", f"v_and_b32 v26, v26, v27",
                    f"v_and_b32 v24, v24, v26",
                    "s_nop 0",
                    f"v_readfirstlane_b32 s70, v24 ; @val=POLL",
                    "s_and_b32 s70, s70, 0x01010101", "s_cmp_eq_u32 s70, 0x01010101"]
        def wave_poll(vaddr, nm, drain=True):
            A(f"s_mov_b32 s{sSPIN}, 0")
            A("s_mov_b64 exec, 7")
            s.lab(f"B_{nm}")
            A(f"buffer_load_dword v{VP}, v{vaddr}, {srd(sWS)}, s72 offen sc1")
            A("s_waitcnt vmcnt(0)")
            A(f"v_cmp_ne_u32 vcc, 0, v{VP}")
            A("s_cmp_eq_u32 vcc_lo, 7")
            A(f"s_cbranch_scc1 B_{nm}d ; @taken")
            A(f"s_add_u32 s{sSPIN}, s{sSPIN}, 1")
            A(f"s_cmp_lt_u32 s{sSPIN}, {o.spin}")
            A(f"s_cbranch_scc1 B_{nm}")
            s.lab(f"B_{nm}d")
            A("s_mov_b64 exec, -1")
            if drain: q.drain()
        wq_slot = lambda c: (P[0] + 16384) if c == 0 else W[(c + 1) % 4]
        wq_issue = {0: [1, 2], 1: [3], 2: [4], 3: [5], 4: [6], 5: [7]}
        wo0_slot = {(0,0): W[3], (0,1): W[0], (1,0): W[0], (1,1): W[1], (2,0): W[2], (2,1): W[3], (3,0): P[1], (3,1): P[2]}
        wo0_issue = eval(o.w0i)
        wo0_use = eval(o.w0u)
        ords = eval(o.ords)
        of0_issue = eval(o.f0)
        pf_issue = {1: [0, 1], 2: [2, 3], 3: [4], 4: [5], 5: [6], 6: [7]}
        wo1_slot = {(0,0): P[2] + 16384, (0,1): P[1] + 16384, (1,0): W[0], (1,1): W[1], (2,0): W[2], (2,1): W[3], (3,0): P[1], (3,1): P[2]}
        wo1_issue = eval(o.w1i)
        FL0AT = o.fl0at if o.fl0at else o.s0at + 1
        PO0 = o.po0
        def flag_check(nm):
            A("s_mov_b64 exec, 7")
            A(f"v_cmp_ne_u32 vcc, 0, v{VP}")
            A("s_mov_b64 exec, -1")
            A("s_cmp_eq_u32 vcc_lo, 7")
            A(f"s_cbranch_scc0 B_slow{nm} ; @nottaken")
            s.lab(f"B_slow{nm}r")
        for st in range(17):
            s.stamp(f"c{st}")
            tags = [f"KV{st}"]
            if 1 <= st <= 7: tags.append(f"Q{st}")
            for (p, h) in wo0_use.get(st, []):
                tags += [f"O0{p}{h}", f"F{p}"]
            if st == FL0AT: tags.append("S0")
            if st == PO0 + 1: tags.append("POLL")
            if st == 9: tags.append("POLL0")
            if st == 8: tags.append("PF")
            wait_vm(tags)
            s.stamp(f"w{st}")
            A("s_barrier")
            s.stamp(f"s{st}")
            if st == 8:
                for d in range(4):
                    A(f"s_add_u32 s70, s{sHG}, {1 + d}")
                    A("s_and_b32 s70, s70, 3")
                    A(f"v_xor_b32 v29, s70, v{vR}")
                    A("v_lshlrev_b32 v29, 6, v29")
                    A(f"v_add_u32 v29, v29, v{vWB}")
                    A(f"v_add_u32 v{WA+d}, {s.wbase}, v29")
            pre_groups = []
            if st == 9:
                own_frags()
            g_s = []
            s0sp = eval(o.s0sp) if o.s0sp else {o.s0at: [0, 1, 2, 3]}
            assert max(s0sp) == o.s0at
            if st in s0sp:
                g_s = of_mem(0, 0, 0, "S0", store=True) + of_mem(0, 0, 1, "S0", store=True)
                g_s = [g_s[i] for i in s0sp[st]]
                if "s" not in ords.get(st, o.order): pre_groups = g_s
            if st == 2:
                A(f"s_cmp_lg_u32 s{sW}, 0")
                A(f"s_cbranch_scc1 B_nf{st}")
                s.flag_store(1, 28)
                s.lab(f"B_nf{st}")
            if st == 8:
                s.emit(mid_poll()); q.issue("POLL0")
            if st == 9:
                s.emit(mid_check())
                A("s_cbranch_scc0 B_slow0 ; @nottaken")
                s.lab("B_slow0r")
                s.stamp("chk0")
            if st == FL0AT and not (o.abl & 4):
                A(f"s_lshl_b32 s70, s{sMYB}, 7")
                A(f"s_lshl_b32 s71, s{sW}, 2")
                A(f"s_add_u32 s71, s71, {FLAG_BASE + 32}")
                A("s_add_u32 s70, s70, s71")
                A("v_mov_b32 v28, 1")
                A("s_mov_b64 exec, 1")
                A(f"buffer_store_dword v28, off, {srd(sWS)}, s70{s.ofl0}")
                A("s_mov_b64 exec, -1")
                q.issue("FL0")
            if st == PO0 and not (o.abl & 4):
                A(f"s_lshl_b32 s72, s{sW}, 2")
                A(f"s_add_u32 s72, s72, {FLAG_BASE + 32}")
                A("s_mov_b64 exec, 7")
                A(f"buffer_load_dword v{VP}, v21, {srd(sWS)}, s72 offen sc1"); q.issue("POLL")
                A("s_mov_b64 exec, -1")
            if st == PO0 + 1 and not (o.abl & 4):
                flag_check("1")
                s.stamp("chk")
            g_kv = pair(st + 2) if st + 2 <= 16 else []
            g_w = []
            for c in wq_issue.get(st, []): g_w += s.dma_wq(c, wq_slot(c), vW, f"Q{c}", 256, 72)
            for (p, h) in wo0_issue.get(st, []): g_w += dma_wo(0, p, h, wo0_slot[(p, h)])
            g_f = []
            for p in of0_issue.get(st, []): g_f += of_mem(0, p, 0, f"F{p}") + of_mem(0, p, 1, f"F{p}")
            g_1 = []
            for (p, h) in wo1_issue.get(st, []): g_1 += dma_wo(1, p, h, wo1_slot[(p, h)])
            g_p = []
            if o.pf:
                for t in pf_issue.get(st, []):
                    g_p.append(("PF", [f"s_add_u32 s71, s{sPF}, {t*1024}",
                                       f"buffer_load_dwordx4 v[24:27], v23, {srd(sWO)}, s71 offen ; @dummy"]))
            if (o.abl & 1) and 10 <= st <= 13: g_w = []
            if st in eval(o.ablw): g_w = []
            if o.abl & 2: pre_groups = []
            if (o.abl & 8) and 8 <= st <= 13: g_kv = g_kv[:4]
            gm = {"w": g_w + g_1, "f": g_f, "k": g_kv, "p": g_p, "s": g_s}
            groups = pre_groups + sum((gm[c] for c in ords.get(st, o.order)), [])
            if o.ilv and st >= o.ilv0:
                oth = (pre_groups if o.ilv & 2 else []) + sum((gm[c] for c in o.order if c != "k"), [])
                def pos(lst, ph):
                    w = [2 if isinstance(g[0], tuple) else 1 for g in lst]; tot = sum(w); acc = 0; r = []
                    for g, x in zip(lst, w):
                        r.append(((acc + ph * x) / tot, g)); acc += x
                    return r
                a_ = pos(g_kv, 0.0) if g_kv else []
                b_ = pos(oth, 0.5) if oth else []
                merged = sorted([(x, 0, i, g) for i, (x, g) in enumerate(a_)] + [(x, 1, i, g) for i, (x, g) in enumerate(b_)], key=lambda z: (z[0], z[1], z[2]))
                groups = ([] if o.ilv & 2 else pre_groups) + [z[3] for z in merged]
            mem = mat2(groups)
            use = ([(wq_slot(st), st, st == 0)] if st <= 7 else []) + \
                  [(wo0_slot[(p, h)], 2*p + h, (p, h) == (0, 0)) for (p, h) in wo0_use.get(st, [])]
            if use:
                stream(frags_c(use), mem)
                if st == 7: write_q(16384)
            else:
                for gi, g_ in enumerate(mem):
                    s.emit(g_); s.stamp(f"m{st}_{gi}")
            s.stamp(f"d{st}")
        sPD = [sWP, sWP + 1, sWP + 2] if o.tail == 1 else [82, 83, 84]
        def addr_prep():
            A("v_lshrrev_b32 v17, 5, v1")
            A("v_mul_u32_u24 v23, 112, v17")
            A("v_and_b32 v18, 31, v1")
            A("v_add_u32 v23, v23, v18")
            A(f"s_lshl_b32 s70, s{sW}, 5")
            A("v_add_u32 v23, s70, v23")
            A("v_add_u32 v19, s70, v18")
            A("v_lshlrev_b32 v23, 4, v23")
            A(f"s_lshl_b32 s70, s{sBR}, 3")
            A(f"s_add_u32 s70, s70, s{sB}")
            A(f"s_lshl_b32 s70, s70, 2")
            A(f"s_add_u32 s70, s70, s{sHP}")
            A(f"s_mul_i32 s73, s70, {12*PSZ}")
            A(f"s_add_u32 s73, s73, {PART_BASE}")
            for d in range(3):
                A(f"s_add_u32 s70, s{sHG}, {1 + d}")
                A("s_and_b32 s70, s70, 3")
                A(f"s_mul_i32 s70, s70, {3*PSZ}")
                A(f"s_add_u32 s70, s70, s73")
                A(f"s_add_u32 s{sPD[d]}, s70, {(2-d)*PSZ}")
            A("v_lshlrev_b32 v19, 11, v19")
            A("v_lshlrev_b32 v17, 4, v17")
            A("v_add_u32 v19, v19, v17")
        def pub(d):
            r = []
            for rq in range(4):
                r.append([f"s_add_u32 s70, s{sPD[d]}, {rq*3584}", f"s_mov_b64 exec, s[{sEXLO}:{sEXHI}]",
                          f"buffer_store_dwordx4 {vr(ACC+16*d+4*rq,4)}, v23, {srd(sWS)}, s70 offen sc1{s.nths}", "s_mov_b64 exec, -1"])
            return r
        def tail1():
            used0 = set(x for v in wo0_use.values() for x in v)
            tail0 = [(p, h) for p in range(4) for h in range(2) if (p, h) not in used0]
            tailF = sorted(set(p for p, h in tail0))
            assert all((p, 0) in tail0 or (p, 0) in used0 for p in tailF)
            issued1 = set(x for v in wo1_issue.values() for x in v)
            def ftags(p): return [f"O0{p}{h}" for h in range(2) if (p, h) in tail0] + ([f"F{p}"] if p else [])
            wait_vm(ftags(tailF[0]) + ["O100"])
            A(f"v_add_u32 v{vOL}, {hex((P[0] - W[1]) & 0xffffffff)}, v{vOL}")
            if o.wrot: A(f"v_add_u32 v{vOL2}, {hex((P[0] - W[1]) & 0xffffffff)}, v{vOL2}")
            A("s_barrier")
            s.stamp("E")
            busy = set(wo0_slot[c] for c in tail0)
            avail = [c for c in [(0, 1), (1, 0), (1, 1), (2, 0), (2, 1), (3, 0), (3, 1)] if c not in issued1 and wo1_slot[c] not in busy]
            for i, p in enumerate(tailF):
                fl = mat2(sum((dma_wo(1, pp, hh, wo1_slot[(pp, hh)]) for (pp, hh) in avail), []))
                issued1 |= set(avail)
                stream(frags_c([(wo0_slot[(p, h)], 2*p + h, False) for h in range(2) if (p, h) in tail0]), fl)
                for h in range(2): busy.discard(wo0_slot[(p, h)])
                avail = [c for c in [(0, 1), (1, 0), (1, 1), (2, 0), (2, 1), (3, 0), (3, 1)] if c not in issued1 and wo1_slot[c] not in busy]
                if i + 1 < len(tailF):
                    wait_vm(ftags(tailF[i + 1]))
                    A("s_barrier")
                    s.stamp(f"T{i}")
            own_frags()
            wait_vm("O101")
            A("s_barrier")
            s.stamp("Ta")
            fl = mat2(sum((dma_wo(1, pp, hh, wo1_slot[(pp, hh)]) for (pp, hh) in avail), []))
            issued1 |= set(avail)
            assert len(issued1) == 8, issued1
            stream(frags_c([(wo1_slot[(0, 0)], 0, False), (wo1_slot[(0, 1)], 1, False)]), fl)
            s.stamp("own")
            addr_prep()
            A(f"s_lshl_b32 s72, s{sW}, 2")
            A(f"s_add_u32 s72, s72, {FLAG_BASE}")
            wave_poll(21, "poll1")
            s.stamp("poll1")
            gl = lambda p: of_mem(1, p, 0, f"G{p}") + of_mem(1, p, 1, f"G{p}")
            for g_ in mat2(gl(1) + gl(2)): s.emit(g_)
            A("s_barrier")
            ND = 3 if o.defer else 4
            for p in (1, 2):
                wait_vm(f"G{p}")
                if p == 1: s.stamp("g1")
                fl = mat2(gl(3)) if p == 1 else None
                stream([f for f in frags_c([(wo1_slot[(p, 0)], 2*p, False), (wo1_slot[(p, 1)], 2*p + 1, False)]) if f[4] < ND], fl)
            wait_vm("G3")
            fr = []
            for d in range(ND):
                for half in range(2):
                    for j in range(4):
                        fr.append((wo1_slot[(3, half)], 6 + half, False, j, d, half))
            for p in ((1, 2, 3) if o.defer else ()):
                for half in range(2):
                    for j in range(4):
                        fr.append((wo1_slot[(p, half)], 2*p + half, False, j, 3, half))
            gaps = [[] for _ in range(len(fr))]
            for d in range(3):
                spread(gaps, pub(d), 8*d + 8 + 3, 8*d + 8 + 7)
            stream(fr, None, gapfill=gaps)
        def tail2():
            used0 = set(x for v in wo0_use.values() for x in v)
            assert used0 == {(0, 0), (0, 1)}
            fdone = set(p for v in of0_issue.values() for p in v)
            assert wo1_issue == {15: [(0, 0)]}
            gb = lambda p: 2 * (p - 1)
            gl = lambda p: of_mem(1, p, 0, f"G{p}", blk=gb(p)) + of_mem(1, p, 1, f"G{p}", blk=gb(p))
            w1 = lambda cs: sum((dma_wo(1, pp, hh, wo1_slot[(pp, hh)]) for (pp, hh) in cs), [])
            fw = lambda p: frags_c([(wo0_slot[(p, 0)], 2*p, False), (wo0_slot[(p, 1)], 2*p + 1, False)])
            tags = [f"O0{p}{h}" for p in (1, 2, 3) for h in range(2)] + ["O100"]
            if PO0 == 16: tags.append("POLL")
            wait_vm(tags)
            A(f"v_add_u32 v{vOL}, {hex((P[0] - W[1]) & 0xffffffff)}, v{vOL}")
            if o.wrot: A(f"v_add_u32 v{vOL2}, {hex((P[0] - W[1]) & 0xffffffff)}, v{vOL2}")
            if PO0 == 16:
                flag_check("1")
                s.stamp("chk")
            rest = [p for p in (1, 2, 3) if p not in fdone]
            if o.fpre and PO0 == 16:
                for p in rest:
                    for g_ in mat2(of_mem(0, p, 0, f"F{p}") + of_mem(0, p, 1, f"F{p}")): s.emit(g_)
                rest = []
            A("s_barrier")
            s.stamp("E")
            for g_ in mat2(w1([(0, 1)])): s.emit(g_)
            for p in rest:
                for g_ in mat2(of_mem(0, p, 0, f"F{p}") + of_mem(0, p, 1, f"F{p}")): s.emit(g_)
            own_frags()
            stream(frags_c([(wo1_slot[(0, 0)], 0, False)]), None)
            addr_prep()
            wait_vm("O101")
            A("s_barrier")
            s.stamp("Ta")
            stream(frags_c([(wo1_slot[(0, 1)], 1, False)]), None)
            s.stamp("own")
            wait_vm("F1")
            s.stamp("f1")
            stream(fw(1), None)
            wait_vm("F2")
            A("s_barrier")
            A(f"s_lshl_b32 s72, s{sW}, 2")
            A(f"s_add_u32 s72, s72, {FLAG_BASE}")
            A("s_mov_b64 exec, 7")
            A(f"buffer_load_dword v{VP}, v21, {srd(sWS)}, s72 offen sc1"); q.issue("POLL1")
            A("s_mov_b64 exec, -1")
            s.stamp("f2")
            stream(fw(2), mat2(w1([(1, 0), (1, 1)])))
            wait_vm(["POLL1", "F3"])
            A("s_barrier")
            flag_check("2")
            s.stamp("poll1")
            for g_ in mat2(gl(1)): s.emit(g_)
            stream(fw(3), mat2(gl(2) + w1([(2, 0), (2, 1)]) + gl(3)))
            wait_vm(["O110", "O111"])
            A("s_barrier")
            s.stamp("f3")
            for g_ in mat2(w1([(3, 0), (3, 1)])): s.emit(g_)
            ND = 3 if o.defer else 4
            for p in (1, 2):
                if p == 2:
                    wait_vm(["O120", "O121", "G2"])
                    A("s_barrier")
                else:
                    wait_vm("G1")
                    s.stamp("g1")
                stream([f for f in frags_c([(wo1_slot[(p, 0)], gb(p), False), (wo1_slot[(p, 1)], gb(p) + 1, False)]) if f[4] < ND], None)
            wait_vm(["G3", "O130", "O131"])
            A("s_barrier")
            fr = []
            for d in range(ND):
                for half in range(2):
                    for j in range(4):
                        fr.append((wo1_slot[(3, half)], gb(3) + half, False, j, d, half))
            for p in ((1, 2, 3) if o.defer else ()):
                for half in range(2):
                    for j in range(4):
                        fr.append((wo1_slot[(p, half)], gb(p) + half, False, j, 3, half))
            gaps = [[] for _ in range(len(fr))]
            for d in range(3):
                spread(gaps, pub(d), 8*d + 8 + 3, 8*d + 8 + 7)
            stream(fr, None, gapfill=gaps)
        (tail1 if o.tail == 1 else tail2)()
        s.stamp("oproj")
        A(f"s_lshl_b32 s70, s{sMYB}, 7")
        A(f"s_lshl_b32 s72, s{sW}, 2")
        A(f"s_add_u32 s72, s72, {FLAG_BASE + 16}")
        A("s_add_u32 s70, s70, s72")
        A("v_mov_b32 v20, 1")
        A("s_waitcnt vmcnt(0)")
        s.stamp("pst")
        A("s_mov_b64 exec, 1")
        A(f"buffer_store_dword v20, off, {srd(sWS)}, s70 sc1")
        if o.cl & 2:
            A("s_mov_b64 exec, -1")
            for g_ in mat2(of_mem(1, 3, 0, "CL1", store=True, clean=True) + of_mem(1, 3, 1, "CL1", store=True, clean=True)): s.emit(g_)
            A(f"s_lshl_b32 s72, s{sW}, 2")
            A(f"s_add_u32 s72, s72, {FLAG_BASE + 16}")
        wave_poll(22, "poll2")
        s.stamp("poll2")
        A(f"s_mul_i32 s71, s{sHG}, {3*PSZ}")
        A("s_add_u32 s73, s73, s71")
        R = 64
        A(f"s_mov_b64 exec, s[{sEXLO}:{sEXHI}]")
        for src in range(3):
            for rq in range(4):
                A(f"s_add_u32 s70, s73, {src*PSZ + rq*3584}")
                A(f"buffer_load_dwordx4 {vr(R+16*src+4*rq,4)}, v23, {srd(sWS)}, s70 offen sc1{s.nthl}")
        A(f"s_mul_i32 s70, s{sB}, {112*2048}")
        A(f"s_lshl_b32 s71, s{sBR}, 10")
        A("s_add_u32 s70, s70, s71")
        A(f"s_lshl_b32 s71, s{sHP}, 8")
        A("s_add_u32 s70, s70, s71")
        A(f"s_lshl_b32 s71, s{sHG}, 6")
        A("s_add_u32 s70, s70, s71")
        OWN = ACC + 48
        A("s_waitcnt vmcnt(8)")
        for i in range(8): A(f"v_pk_add_f32 {vr(OWN+2*i,2)}, {vr(OWN+2*i,2)}, {vr(R+2*i,2)}")
        A("s_waitcnt vmcnt(4)")
        for i in range(8): A(f"v_pk_add_f32 {vr(OWN+2*i,2)}, {vr(OWN+2*i,2)}, {vr(R+16+2*i,2)}")
        A("s_waitcnt vmcnt(0)")
        for i in range(8): A(f"v_pk_add_f32 {vr(OWN+2*i,2)}, {vr(OWN+2*i,2)}, {vr(R+32+2*i,2)}")
        for i in range(8):
            A(f"v_cvt_pk_bf16_f32 v{32+i}, v{OWN+2*i}, v{OWN+2*i+1}")
        for h in range(2):
            A(f"buffer_store_dwordx4 {vr(32+4*h,4)}, v19, {srd(sOUT)}, s70 offen offset:{h*32}{['', ' sc1', ' sc0 sc1', ' nt', ' sc1 nt'][o.outsc]}")
        A("s_mov_b64 exec, -1")
        if o.dbgst:
            A("s_waitcnt vmcnt(0)")
            A(f"s_or_b32 s70, s{sW}, s{sHG}")
            A(f"s_or_b32 s70, s70, s{sHP}")
            A("s_cmp_lg_u32 s70, 0")
            A("s_cbranch_scc1 L_end")
            s.stamp("end"); s.stamp("cend", True)
            A("s_waitcnt lgkmcnt(0)")
            r = STAMP_REGS
            A(f"s_sub_u32 s70, s{r[5]}, s{r[1]}")
            A(f"s_sub_u32 s71, s{r[4]}, s{r[0]}")
            A(f"s_sub_u32 s72, s{r[2]}, s{r[1]}")
            A(f"s_sub_u32 s73, s{r[3]}, s{r[1]}")
            for i in range(4): A(f"v_mov_b32 v{32+i}, s{70+i}")
            A(f"s_and_b32 s71, s{sGRP}, {hex(0xfffffff0)}")
            A("s_mov_b64 exec, 1")
            A(f"buffer_store_dwordx4 v[32:35], off, {srd(sDBG)}, s71 sc1")
            A("s_endpgm")
        if o.stamp and not o.dbgst:
            A("s_waitcnt vmcnt(0)")
            A(f"s_cmp_lg_u32 s{sW}, 0")
            A("s_cbranch_scc1 L_end")
            s.stamp("end"); s.stamp("cend", True)
            A("s_waitcnt lgkmcnt(0)")
            n = len(o.stamps.split(","))
            assert n <= len(STAMP_REGS)
            A("s_lshl_b32 s70, s2, 8")
            A(f"s_add_u32 s70, s70, {STAMP_BASE}")
            A("s_mov_b64 exec, 1")
            for i in range(n):
                r = STAMP_REGS[i]
                A(f"v_mov_b32 v32, s{r}"); A(f"v_mov_b32 v33, s{r+1}")
                A(f"buffer_store_dwordx2 v[32:33], off, {srd(sWS)}, s70 offset:{8*i}")
                A("s_nop 1")
        A("s_endpgm")
        s.lab("B_slow0")
        A(f"s_mov_b32 s{sSPIN}, 0")
        s.lab("B_slow0l")
        s.emit(mid_poll())
        A("s_waitcnt vmcnt(0)")
        s.emit(mid_check())
        A("s_cbranch_scc1 B_slow0r ; @taken")
        A(f"s_add_u32 s{sSPIN}, s{sSPIN}, 1")
        A(f"s_cmp_lt_u32 s{sSPIN}, {o.spin}")
        A("s_cbranch_scc1 B_slow0l")
        A("s_branch B_slow0r")
        s.lab("B_slow1")
        A(f"s_lshl_b32 s72, s{sW}, 2")
        A(f"s_add_u32 s72, s72, {FLAG_BASE + 32}")
        wave_poll(21, "slow1l", drain=False)
        A("s_branch B_slow1r" if not (o.abl & 4) else "s_endpgm")
        if o.tail == 2:
            s.lab("B_slow2")
            A(f"s_lshl_b32 s72, s{sW}, 2")
            A(f"s_add_u32 s72, s72, {FLAG_BASE}")
            wave_poll(21, "slow2l", drain=False)
            A("s_branch B_slow2r")

    def build(s):
        s.common()
        s.waveA()
        s.waveB()
        s.lab("L_end")
        s.A("s_endpgm")
        lines = [l for l in s.L if l is not None]
        cfgs = []
        for wave in (0, 1, 3, 4, 5, 7):
            cfgs.append((f"wg5w{wave}", {2: 5}, {"WAVE": wave, "POLL": 0x03030303, "POLL3": 0x03030303}))
        cfgs.append(("allresc", {2: 5}, {"WAVE": 1, "ALLRESC": 1}))
        cfgs.append(("extra", {2: 256}, {"WAVE": 0}))
        lines = asmlib.finalize(lines, cfgs, verbose=True)
        return "\n".join(lines)

if __name__ == "__main__":
    ap = argparse.ArgumentParser()
    ap.add_argument("-o", default="k8.s")
    ap.add_argument("--stamp", action="store_true")
    ap.add_argument("--cyc", action="store_true")
    ap.add_argument("--stamps", default="start,pro,s8,E,poll1,oproj,pst,poll2,end")
    ap.add_argument("--nt", type=int, default=1)
    ap.add_argument("--prioA", type=int, default=0)
    for n_ in ("ntw", "ntx", "nto", "nths", "nthl"): ap.add_argument("--" + n_, type=int, default=0)
    ap.add_argument("--astamp", type=int, default=-1)
    ap.add_argument("--la", type=int, default=6)
    ap.add_argument("--nbub", type=int, default=3)
    ap.add_argument("--rot", type=int, default=1)
    ap.add_argument("--k0at", type=int, default=5)
    ap.add_argument("--p1at", type=int, default=7)
    ap.add_argument("--pf", type=int, default=0)
    ap.add_argument("--f0", default="{13: [1], 14: [2], 15: [3]}")
    ap.add_argument("--po0", type=int, default=11)
    ap.add_argument("--defer", type=int, default=1)
    ap.add_argument("--cpf", type=int, default=1)
    ap.add_argument("--dbgst", type=int, default=0)
    ap.add_argument("--g2at", type=int, default=8)
    ap.add_argument("--order", default="wfkp")
    ap.add_argument("--spin", type=int, default=131072)
    ap.add_argument("--outsc", type=int, default=0)
    ap.add_argument("--osc", type=int, default=15)
    ap.add_argument("--wb", type=int, default=0)
    ap.add_argument("--ablw", default="[]")
    ap.add_argument("--fl0at", type=int, default=0)
    ap.add_argument("--s0sp", default="")
    ap.add_argument("--tail", type=int, default=1)
    ap.add_argument("--s0at", type=int, default=9)
    ap.add_argument("--fpre", type=int, default=0)
    ap.add_argument("--abl", type=int, default=0)
    ap.add_argument("--w0i", default="{7: [(0,0)], 8: [(0,1)], 11: [(1,0)], 12: [(1,1), (2,0)], 13: [(2,1)], 14: [(3,0)], 15: [(3,1)]}")
    ap.add_argument("--w0u", default="{9: [(0,0)], 10: [(0,1)], 15: [(1,0), (1,1)], 16: [(2,0), (2,1)]}")
    ap.add_argument("--w1i", default="{15: [(0,0)], 16: [(1,0), (1,1)]}")
    ap.add_argument("--ords", default="{}")
    ap.add_argument("--ilv", type=int, default=0)
    ap.add_argument("--ilv0", type=int, default=1)
    ap.add_argument("--wrot", type=int, default=0)
    ap.add_argument("--cl", type=int, default=0)
    o = ap.parse_args()
    g = Gen(o)
    body = g.build()
    k = kernel_text(NAME + "_kernel", body, vgpr=256)
    hdr = ["; @launch grid=(256,1,1) block=(512,1,1) lds=163840"]
    if o.stamp and not o.dbgst: hdr.append("; STAMPS " + o.stamps)
    if o.astamp >= 0: hdr.append("; ASTAMP")
    if o.cyc: hdr.append("; STAMPCYC")
    open(o.o, "w").write(file_text(hdr, [k]))
    print("wrote", o.o, len(body.splitlines()), "lines")
```

```python
import sys, argparse, struct
from gen_common import *
import asmlib

P = [0, 32768, 65536]
W = [98304, 114688, 131072, 147456]
UNIT = 28672
PART_BASE = 16 << 20
PSZ = 14336
STAMP_BASE = 128 << 20
FLAG_BASE = 32 << 20
THR = 12.0

sK, sV, sWQ, sX, sWS, sWO, sOUT, sDBG = 4, 8, 12, 16, 20, 24, 28, 32
sWAVE, sW, sBR, sHG, sB, sHP, sH0, sKV = 62, 63, 64, 65, 66, 67, 68, 69
sXB, sPEND = 72, 73
sEV, sTHR, sPAT = 74, 75, 76
sSTEP, sROT, sNEG, sOBASE = 77, 78, 79, 80
sW4K, sWQB, sKVW, sWOB, sGRP, sMYB = 81, 82, 83, 84, 85, 86
sSPIN = 87
sEXLO, sEXHI = 88, 89
sPOS = 3
sWP, sOP = 54, 58
STAMP_REGS = [90, 92, 94, 96, 98, 100] + list(range(36, 54, 2))

def srd(r): return f"s[{r}:{r+3}]"
def vr(a, n=1): return f"v{a}" if n == 1 else f"v[{a}:{a+n-1}]"
def fbits(x): return struct.unpack('<I', struct.pack('<f', x))[0]
CSCALE = (128 ** -0.5) * 1.4426950408889634

class Q:
    def __init__(s, maxn): s.q = []; s.maxn = maxn
    def issue(s, tag):
        s.q.append(tag)
        assert len(s.q) <= s.maxn, ("counter overflow", s.q)
    def wait(s, tags):
        if isinstance(tags, str): tags = [tags]
        last = -1
        for i, t in enumerate(s.q):
            if t in tags: last = i
        if last < 0: return None
        n = len(s.q) - 1 - last
        s.q = s.q[last + 1:]
        return n
    def drain(s): s.q = []

def spread(slots, items, start=0, end=None):
    if end is None: end = len(slots)
    n = end - start
    m = len(items)
    for i, it in enumerate(items):
        k = start + (i * n) // m
        slots[k].extend(it)

class Gen:
    def __init__(s, opt):
        s.L = []; s.opt = opt
        f = lambda b: " nt" if b else ""
        s.ntw, s.ntx, s.nto, s.nths, s.nthl = f(opt.ntw), f(opt.ntx), f(opt.nto), f(opt.nths), f(opt.nthl)
        c = lambda b: " sc1" if b else ""
        s.ost0, s.ost1, s.ofl0, s.ofl1 = c(opt.osc & 1), c(opt.osc & 2), c(opt.osc & 4), c(opt.osc & 8)
    def A(s, t): s.L.append("  " + t)
    def lab(s, n): s.L.append(n + ":")
    def emit(s, lines):
        for l in lines:
            if l.endswith(":"): s.L.append(l)
            else: s.L.append("  " + l)
    def stamp_lines(s, name, cyc=False):
        if not s.opt.stamp: return []
        names = s.opt.stamps.split(",")
        if name not in names: return []
        r = STAMP_REGS[names.index(name)]
        cyc = cyc or s.opt.cyc or (s.opt.dbgst and name not in ("start", "end"))
        return [f"s_mem{'time' if cyc else 'realtime'} s[{r}:{r+1}]"]
    def stamp(s, name, cyc=False): s.emit(s.stamp_lines(name, cyc))
    def ast(s, i):
        return [f"s_memtime s[{36+2*i}:{37+2*i}]"] if s.opt.astamp >= 0 else []

    def common(s):
        A = s.A
        A("s_cmp_ge_u32 s2, 256")
        A("s_cbranch_scc1 L_end")
        s.stamp("start"); s.stamp("cstart", True)
        A("s_load_dwordx16 s[36:51], s[0:1], 0")
        A("s_load_dwordx8 s[52:59], s[0:1], 64")
        A("s_load_dwordx2 s[60:61], s[0:1], 96")
        A("v_lshrrev_b32 v1, 6, v0")
        A("s_and_b32 s70, s2, 7")
        A("s_lshr_b32 s71, s2, 3")
        if s.opt.cpf:
            KN = NAME + "_kernel"
            A("s_getpc_b64 s[84:85]")
            s.lab("L_pc")
            A(f"s_sub_u32 s84, s84, L_pc-{KN}")
            A("s_subb_u32 s85, s85, 0")
            A("v_lshlrev_b32 v2, 7, v1")
            A("v_and_b32 v3, 31, v0")
            A("v_lshlrev_b32 v3, 2, v3")
            A("v_add_u32 v2, v2, v3")
            A("s_lshl_b32 s72, s71, 10")
            A("v_add_u32 v2, s72, v2")
            A(f"v_min_u32 v2, L_end-{KN}, v2")
            A("global_load_dword v63, v2, s[84:85]")
        A(f"v_readfirstlane_b32 s{sWAVE}, v1 ; @val=WAVE")
        A(f"s_lshr_b32 s{sBR}, s70, 2")
        A(f"s_and_b32 s{sHG}, s70, 3")
        A(f"s_and_b32 s{sB}, s71, 7")
        A(f"s_lshr_b32 s{sHP}, s71, 3")
        A(f"s_lshl_b32 s{sH0}, s{sHG}, 3")
        A(f"s_lshl_b32 s70, s{sHP}, 1")
        A(f"s_add_u32 s{sH0}, s{sH0}, s70")
        A(f"s_add_u32 s{sROT}, s{sB}, s70")
        if not s.opt.rot: A(f"s_mov_b32 s{sROT}, 0")
        A(f"s_and_b32 s{sW}, s{sWAVE}, 3")
        A(f"s_lshl_b32 s{sW4K}, s{sW}, 12")
        A("v_and_b32 v1, 63, v0")
        A("v_lshrrev_b32 v19, 4, v1")
        A("v_and_b32 v20, 15, v1")
        A("v_lshlrev_b32 v21, 2, v19")
        A("v_xor_b32 v21, v20, v21")
        A("v_lshlrev_b32 v21, 4, v21")
        A("v_lshrrev_b32 v17, 5, v1")
        A("v_and_b32 v18, 3, v1")
        A("v_lshlrev_b32 v2, 13, v19")
        A("v_add_u32 v2, v2, v21")
        A("v_lshrrev_b32 v22, 3, v1")
        A("v_lshlrev_b32 v22, 10, v22")
        A("v_and_b32 v23, 7, v1")
        A("v_xor_b32 v23, v23, v19")
        A("v_lshlrev_b32 v24, 4, v23")
        A("v_add_u32 v3, v22, v24")
        A("v_xor_b32 v24, 64, v24")
        A("v_add_u32 v4, v22, v24")
        for r, sz in ((sK, 33554432), (sV, 33554432), (sWQ, 4194304), (sWS, 268435456), (sWO, 4194304), (sOUT, 1835008), (sDBG, 256)):
            A(f"s_mov_b32 s{r+2}, {sz}")
            A(f"s_mov_b32 s{r+3}, 0x20000")
        A(f"s_mov_b32 s{sX+3}, 0x20000")
        A(f"s_lshl_b32 s70, s{sW}, 17")
        A(f"s_lshl_b32 s71, s{sH0}, 8")
        A(f"s_add_u32 s{sWQB}, s70, s71")
        A(f"s_mul_i32 s70, s{sB}, 112")
        A(f"s_add_u32 s71, s70, 112")
        A(f"s_lshl_b32 s{sX+2}, s71, 10")
        A(f"s_lshl_b32 s71, s{sW}, 5")
        A("s_add_u32 s70, s70, s71")
        A(f"s_lshl_b32 s{sXB}, s70, 10")
        A(f"s_lshl_b32 s70, s{sB}, 5")
        A(f"s_add_u32 s70, s70, s{sH0}")
        A(f"s_lshl_b32 s{sKV}, s70, 17")
        A(f"s_add_u32 s{sKVW}, s{sKV}, s{sW4K}")
        A(f"s_cmp_eq_u32 s{sBR}, 0")
        A("s_waitcnt lgkmcnt(0)")
        s.stamp("k")
        for r, a, b in ((sX, 36, 46), (sWQ, 42, 52), (sK, 38, 48), (sV, 40, 50), (sWO, 44, 54)):
            A(f"s_cselect_b32 s{r}, s{a}, s{b}")
            A(f"s_cselect_b32 s{r+1}, s{a+1}, s{b+1}")
        for r, a in ((sOUT, 56), (sDBG, 58), (sWS, 60)):
            A(f"s_mov_b32 s{r}, s{a}")
            A(f"s_mov_b32 s{r+1}, s{a+1}")
        A(f"s_cmp_ge_u32 s{sWAVE}, 4")
        A("s_cbranch_scc1 L_B")

    def late_scalars(s):
        A = s.A
        A(f"s_lshl_b32 s70, s{sBR}, 3")
        A(f"s_add_u32 s70, s70, s{sB}")
        A(f"s_lshl_b32 s71, s70, 5")
        A(f"s_add_u32 s71, s71, s{sH0}")
        A(f"s_mul_i32 s{sOBASE}, s71, {UNIT}")
        A(f"s_lshl_b32 s71, s70, 2")
        A(f"s_add_u32 s71, s71, s{sHG}")
        A(f"s_lshl_b32 s{sGRP}, s71, 2")
        A(f"s_add_u32 s{sMYB}, s{sGRP}, s{sHP}")
        A(f"s_cmp_eq_u32 s{sW}, 3")
        A(f"s_cselect_b32 s{sEXLO}, 0xffff, -1")
        A(f"s_mov_b32 s{sEXHI}, s{sEXLO}")

    def kv_voffs(s, vK, vV):
        A = s.A
        A("v_lshlrev_b32 v22, 8, v19")
        A(f"v_add_u32 v{vV}, v22, v21")
        for t in range(4):
            A(f"v_add_u32 v23, {4*t}, v19")
            A(f"v_xor_b32 v23, v20, v23")
            A(f"v_lshlrev_b32 v23, 4, v23")
            A(f"v_add_u32 v{vK+t}, v22, v23")

    def flag_store(s, val, vtmp):
        A = s.A
        A(f"v_mov_b32 v{vtmp}, {val}")
        A("s_mov_b64 exec, 1")
        A(f"buffer_store_byte v{vtmp}, off, {srd(sDBG)}, s{sMYB} sc1")
        A("s_mov_b64 exec, -1")

    def dma_k(s, j, vK, nt, tag):
        g = []
        for t in range(4):
            pre = [f"s_add_u32 m0, s{sW4K}, {P[j%3]}", f"s_add_u32 s70, s{sKVW}, {j*16384}"] if t == 0 else []
            if t and s.opt.ilv: pre = [f"s_add_u32 m0, s{sW4K}, {P[j%3]}", "s_nop 0"]
            g.append((tag, pre + [f"buffer_load_dwordx4 v{vK+t}, {srd(sK)}, s70 offen offset:{t*1024}{nt} lds"]))
        return g
    def dma_v(s, j, vV, nt, tag):
        g = []
        for t in range(4):
            pre = [f"s_add_u32 m0, s{sW4K}, {P[j%3]+16384}", f"s_add_u32 s70, s{sKVW}, {(j-1)*16384}"] if t == 0 else []
            if t and s.opt.ilv: pre = [f"s_add_u32 m0, s{sW4K}, {P[j%3]+16384}", "s_nop 0"]
            g.append((tag, pre + [f"buffer_load_dwordx4 v{vV}, {srd(sV)}, s70 offen offset:{t*1024}{nt} lds"]))
        return g
    def kc_lines(s, c, dst):
        return [f"s_add_u32 s{dst}, s{sROT}, {c}", f"s_and_b32 s{dst}, s{dst}, 7"]
    def dma_wq(s, c, slot, vW, tag, extra, tmp):
        g = []
        for t in range(4):
            pre = []
            if t == 0:
                pre = s.kc_lines(c, tmp) + [f"s_lshl_b32 s{tmp}, s{tmp}, 19", f"s_add_u32 s{tmp}, s{tmp}, s{sWQB}",
                                            f"s_add_u32 m0, s{sW4K}, {slot}"]
            elif s.opt.ilv: pre = [f"s_add_u32 m0, s{sW4K}, {slot}"]
            g.append((tag, pre + [f"s_add_u32 s71, s{tmp}, {extra + t*31744}",
                                  f"buffer_load_dwordx4 v{vW}, {srd(sWQ)}, s71 offen offset:{t*1024}{' nt' if (tag in eval(s.opt.ntq)) else s.ntw} lds"]))
        return g

    def waveA(s):
        A = s.A; o = s.opt
        nt = " nt" if o.nt else ""
        Q_, SB, Pr, O, WIN, NM = 0, [32, 64], 96, 112, 176, 208
        KA, VA, QA, OV, RL = 224, 232, 236, 237, 238
        LS, AL, T = 240, 242, 244
        vK, vV = 5, 9
        q = Q(63)
        PX = [P[1], P[2], W[0], W[2]]
        def dma_x(c):
            g = []
            for t in range(4):
                pre = []
                if t == 0:
                    pre = s.kc_lines(c, 87) + ["s_lshl_b32 s87, s87, 7", f"s_add_u32 s87, s87, s{sXB}", f"s_add_u32 m0, s{sW4K}, {PX[c%4]}"]
                g.append((f"C{c}", pre + [f"s_add_u32 s71, s87, {t*7168}",
                                          f"buffer_load_dwordx4 v{3 + (t&1)}, {srd(sX)}, s71 offen offset:{t*1024}{' nt' if (c in eval(o.ntxc)) else s.ntx} lds"]))
            return g
        def issue(groups):
            for tag, ins in groups:
                q.issue(tag); s.emit(ins)
        def chunk(c): return dma_x(c) + s.dma_wq(c, PX[c % 4] + 16384, 2, f"C{c}", 0, 87)
        issue(chunk(0))
        s.stamp("a0")
        issue(chunk(1))
        s.late_scalars()
        s.kv_voffs(vK, vV)
        A("v_and_b32 v10, 31, v1")
        A("v_lshlrev_b32 v10, 8, v10")
        A("v_xor_b32 v11, v17, v20")
        for k in range(8):
            A(f"v_xor_b32 v12, {2*k}, v11")
            A(f"v_lshlrev_b32 v12, 4, v12")
            A(f"v_add_u32 v{KA+k}, v10, v12")
        A("v_lshrrev_b32 v10, 2, v20")
        A("v_and_b32 v11, 1, v19")
        A("v_lshlrev_b32 v12, 10, v17")
        A("v_lshlrev_b32 v13, 8, v10")
        A("v_add_u32 v12, v12, v13")
        A("v_lshlrev_b32 v13, 5, v11")
        A("v_add_u32 v12, v12, v13")
        A("v_and_b32 v13, 1, v18")
        A("v_lshlrev_b32 v13, 4, v13")
        A("v_add_u32 v12, v12, v13")
        A("v_lshrrev_b32 v13, 1, v18")
        A("v_lshlrev_b32 v13, 3, v13")
        A("v_add_u32 v12, v12, v13")
        A("v_add_u32 v12, 16384, v12")
        for D in range(4):
            A(f"v_xor_b32 v13, {D}, v10")
            A(f"v_lshlrev_b32 v13, 6, v13")
            A(f"v_add_u32 v{VA+D}, v12, v13")
        A(f"s_lshl_b32 s70, s{sW}, 13")
        A(f"s_add_u32 s70, s70, {W[0]}")
        A(f"v_lshlrev_b32 v{QA}, 4, v1")
        A(f"v_add_u32 v{QA}, s70, v{QA}")
        A(f"v_mul_u32_u24 v{OV}, 112, v17")
        A(f"v_and_b32 v12, 31, v1")
        A(f"v_add_u32 v{OV}, v{OV}, v12")
        A(f"s_lshl_b32 s70, s{sW}, 5")
        A(f"v_add_u32 v{OV}, s70, v{OV}")
        A(f"v_lshlrev_b32 v{OV}, 4, v{OV}")
        for i in range(8): A(f"v_mov_b64 {vr(NM+2*i,2)}, 0")
        A(f"v_mov_b64 {vr(LS,2)}, 0")
        A(f"s_mov_b32 s{sEV}, {hex((1<<0)|(1<<8)|(1<<1)|(1<<7))}")
        A(f"s_mov_b32 s{sPAT}, {hex(sum(1 << i for i in range(2, 17, 3)))}")
        A(f"s_mov_b32 s{sNEG}, 0xffff0000")
        A(f"s_mov_b32 s{sPOS}, 32768")
        A(f"s_mov_b32 s{sTHR}, {hex(fbits(THR))}")
        A(f"s_mov_b32 s{sSTEP}, 0")
        A(f"s_mov_b32 s{sPEND}, 0")
        A(f"s_add_u32 s{sOBASE}, s{sOBASE}, {UNIT}")
        for k in range(8):
            n = q.wait(f"C{k}")
            if n is not None: A(f"s_waitcnt vmcnt({n})")
            s.stamp(f"aw{k}")
            A("s_barrier")
            if k + 2 < 8: issue(chunk(k + 2))
            if k == o.k0at: issue(s.dma_k(0, vK, nt, "K0"))
            if k == 5: issue(s.dma_wq(0, P[0] + 16384, 2, "Q0", 256, 87))
            if k == o.p1at: issue(s.dma_k(1, vK, nt, "KV1") + s.dma_v(1, vV, nt, "KV1"))
        n0 = q.wait(["K0", "Q0"])
        assert n0 == 8, n0
        if o.prioA: A(f"s_setprio {o.prioA}")

        U = T + 4
        def fin_D(D, dst):
            L = [f"v_mul_f32 v{O+16*D+i}, v{AL}, v{O+16*D+i}" for i in range(16)]
            L += [f"v_cvt_pk_bf16_f32 v{dst+8*D+i}, v{O+16*D+2*i}, v{O+16*D+2*i+1}" for i in range(8)]
            return L
        def step(par, last=False):
            cur, prev = SB[par], SB[1 - par]
            lq = Q(15)
            L = []
            def wl(tags):
                n = lq.wait(tags)
                return [f"s_waitcnt lgkmcnt({n})"] if n is not None else []
            def kread(i):
                T_, k = divmod(i, 8); lq.issue(f"K{i}")
                return [f"ds_read_b128 {vr(WIN + 4*(i % 8), 4)}, v{KA+k} offset:{T_*8192}"]
            vorder = [divmod(f, 4) for f in range(16)] if not last else [(t, D) for D in range(4) for t in range(4)]
            def vread(f):
                t, D = vorder[f]; r = []
                for a in range(2):
                    lq.issue(f"V{f}")
                    r.append(f"ds_read_b64_tr_b16 {vr(WIN + 4*(f % 8) + 2*a, 2)}, v{VA+D} offset:{t*4096 + a*2048}")
                return r
            exp = lambda r: [f"v_exp_f32 v{r}, v{r}"]
            add = lambda r: [f"v_add_f32 v{LS + (r & 1)}, v{LS + (r & 1)}, v{r}"]
            cvt = lambda t, i: [f"v_cvt_pk_bf16_f32 v{Pr+4*t+i}, v{prev+8*t+2*i}, v{prev+8*t+2*i+1}"]
            mx = lambda d, a, b, c: [f"v_max3_f32 v{d}, v{a}, v{b}, v{c}"]
            bub = []
            for i in range(4): bub += [cvt(0, i), add(prev + 2*i), add(prev + 2*i + 1)]
            for i in range(4): bub += [cvt(1, i), add(prev + 8 + 2*i), add(prev + 8 + 2*i + 1)]
            F1 = []
            e = [exp(prev + 16 + i) for i in range(16)]
            a_ = [add(prev + 16 + i) for i in range(16)]
            c2 = [cvt(2, i) for i in range(4)]; c3 = [cvt(3, i) for i in range(4)]
            F1 += [e[0], e[1], e[2]]
            for i in range(3, 16):
                F1 += [e[i], a_[i - 3]]
                if i in (5, 7, 9, 11): F1.append(c2[(i - 5) // 2])
                if i in (13, 15): F1.append(c3[(i - 13) // 2])
            F1 += [a_[13], c3[2], a_[14], a_[15], c3[3]]
            def maxT(base, d0, d1):
                return [mx(d0, base, base+1, base+2), mx(d1, base+8, base+9, base+10),
                        mx(d0, d0, base+3, base+4), mx(d1, d1, base+11, base+12),
                        mx(d0, d0, base+5, base+6), mx(d1, d1, base+13, base+14),
                        mx(d0, d0, base+7, base+15)]
            M0 = maxT(cur, U, U+1)
            M1 = maxT(cur+16, U+2, U+3)
            fin = [mx(U, U, U+1, U+2), [f"v_max_f32 v{U}, v{U}, v{U+3}"]]
            tagp = "e" if par == 0 else "o"
            chk = [f"v_cmp_lt_f32 vcc, s{sTHR}, v{U}",
                   f"s_nop 0",
                   f"s_cbranch_vccnz A_resc{tagp} ; @takenif={sTHR}:0xff800000",
                   f"A_resc{tagp}r:"]
            advK = [[f"v_add_u32 v{KA+k}, s70, v{KA+k}"] for k in range(8)]
            advV = [[f"v_add_u32 v{VA+D}, s70, v{VA+D}"] for D in range(4)]
            exps1 = [exp(cur+i) for i in range(16)]

            L += s.ast(1)
            if not last:
                for i in range(8): L += kread(i)
                for it in bub: L += it
                nb = o.nbub
                for it in F1[:nb]: L += it
                gaps = [[] for _ in range(16)]
                spread(gaps, F1[nb:], 0, 14)
                spread(gaps, M0, 10, 16)
                for i in range(16):
                    T_, k = divmod(i, 8)
                    if i % 2 == 0: L += wl([f"K{i}", f"K{i+1}"])
                    srcC = vr(NM, 16) if k == 0 else vr(cur + 16*T_, 16)
                    L.append(f"v_mfma_f32_32x32x16_bf16 {vr(cur+16*T_,16)}, {vr(WIN+4*(i%8),4)}, {vr(Q_+4*k,4)}, {srcC}")
                    if i + 8 < 16: L += kread(i + 8)
                    if i >= 9: L += vread(i - 9)
                    L += gaps[i]
                    if i == 7: L += s.ast(2)
                L += s.ast(3)
                vissued = 7
                gaps = [[] for _ in range(16)]
                spread(gaps, advK[:4], 0, 2)
                spread(gaps, M1 + fin, 2, 5)
                gaps[5] += chk
                spread(gaps, exps1, 5, 16)
                spread(gaps, advK[4:], 6, 10)
                spread(gaps, advV, 10, 14)
                L += [f"s_bitcmp1_b32 s{sPAT}, s{sSTEP}", f"s_cselect_b32 s70, s{sNEG}, s{sPOS}"]
            else:
                for f in range(7): L += vread(f)
                vissued = 7
                for it in bub: L += it
                for it in F1: L += it
                L += rl_lines(AL)
                L.append(f"v_add_u32 v{QA}, {hex((P[0] - W[1]) & 0xffffffff)}, v{QA}")
                gaps = [[] for _ in range(16)]
                for D in range(3):
                    items = [[x] for x in fin_D(D, cur)] + [out_D(D, cur)]
                    spread(gaps, items, 4*D + 6 if D < 2 else 14, 4*D + 10 if D < 2 else 16)
            for f in range(16):
                t, D = vorder[f]
                if f % 2 == 0: L += wl([f"V{f}", f"V{f+1}"])
                L.append(f"v_mfma_f32_32x32x16_bf16 {vr(O+16*D,16)}, {vr(WIN+4*(f%8),4)}, {vr(Pr+4*t,4)}, {vr(O+16*D,16)}")
                if vissued < 16:
                    L += vread(vissued); vissued += 1
                L += gaps[f]
                if f == 6 and not last: L += s.ast(4)
            if not last:
                L += s.ast(5)
                L += [f"s_cmp_lg_u32 s{sPEND}, 0", f"s_cbranch_scc1 A_pend{tagp}", f"A_pend{tagp}r:"]
                L += s.ast(6)
                if s.opt.astamp >= 0:
                    L += ["s_waitcnt lgkmcnt(0)", f"s_cmp_eq_u32 s{sSTEP}, {s.opt.astamp}"]
                    L += [f"s_cselect_b32 s{50+i}, s{36+2*i}, s{50+i}" for i in range(7)]
            else:
                L += fin_D(3, cur) + out_D(3, cur)
            return L
        def out_D(D, src):
            L = []
            for h in range(2):
                L.append(f"ds_write_b128 v{QA}, {vr(src+8*D+4*h,4)} offset:{(2*D+h)*1024}")
            L.append(f"s_mov_b64 exec, s[{sEXLO}:{sEXHI}]")
            for h in range(2):
                L.append(f"s_add_u32 s71, s{sOBASE}, {(4*D+2*h)*1792}")
                L.append(f"buffer_store_dwordx4 {vr(src+8*D+4*h,4)}, v{OV}, {srd(sWS)}, s71 offen{s.ost1}{s.nths}")
            L.append("s_mov_b64 exec, -1")
            return L
        def rl_lines(dst):
            return [f"v_add_f32 v{T}, v{LS}, v{LS+1}", f"v_mov_b32 v{T+1}, v{T}", f"v_permlane32_swap_b32 v{T}, v{T+1}",
                    f"v_add_f32 v{T}, v{T}, v{T+1}", f"v_rcp_f32 v{dst}, v{T}"]

        s.lab("A_loop")
        for par in range(2):
            tagp = "e" if par == 0 else "o"
            s.emit(s.ast(0))
            A(f"s_bitcmp1_b32 s{sEV}, s{sSTEP}")
            A(f"s_cbranch_scc1 A_top{tagp}")
            A("s_barrier")
            s.lab(f"A_top{tagp}r")
            s.emit(step(par))
            A(f"s_add_u32 s{sSTEP}, s{sSTEP}, 1")
        A(f"s_cmp_lt_u32 s{sSTEP}, 16")
        A("s_cbranch_scc1 A_loop")
        A("s_barrier")
        s.emit(step(0, last=True))
        A("s_waitcnt lgkmcnt(0)")
        A("s_barrier")
        A(f"s_lshl_b32 s70, s{sMYB}, 7")
        A(f"s_add_u32 s70, s70, {FLAG_BASE}")
        A(f"s_lshl_b32 s71, s{sW}, 2")
        A("s_add_u32 s70, s70, s71")
        A(f"v_mov_b32 v{T}, 1")
        A("s_waitcnt vmcnt(0)")
        A("s_mov_b64 exec, 1")
        A(f"buffer_store_dword v{T}, off, {srd(sWS)}, s70{s.ofl1}")
        A("s_mov_b64 exec, -1")
        if o.wb:
            if o.wb == 1: A(f"s_cmp_eq_u32 s{sW}, 0")
            elif o.wb == 2:
                A(f"s_or_b32 s70, s{sW}, s{sHP}"); A("s_cmp_eq_u32 s70, 0")
            elif o.wb == 3:
                A(f"s_or_b32 s70, s{sW}, s{sHP}"); A(f"s_or_b32 s70, s70, s{sB}"); A("s_cmp_eq_u32 s70, 0")
            A("s_cbranch_scc0 A_nowb")
            A("buffer_wbl2 sc1")
            s.lab("A_nowb")
        if o.astamp >= 0:
            A(f"s_cmp_lg_u32 s{sW}, 0")
            A("s_cbranch_scc1 L_end")
            A("s_lshl_b32 s70, s2, 8")
            A(f"s_add_u32 s70, s70, {STAMP_BASE + 65536}")
            A("s_mov_b64 exec, 1")
            for i in range(7):
                A(f"v_mov_b32 v32, s{50+i}")
                A(f"buffer_store_dword v32, off, {srd(sWS)}, s70 offset:{4*i}")
                A("s_nop 1")
        A("s_endpgm")
        s.lab("A_tope")
        A(f"s_cmp_eq_u32 s{sSTEP}, 0")
        A("s_cbranch_scc0 A_top8")
        A(f"s_waitcnt vmcnt({n0})")
        A("s_barrier")
        for i in range(8):
            A(f"ds_read_b128 {vr(Q_+4*i,4)}, v{QA} offset:{i*1024}")
        A(f"v_add_u32 v{QA}, 16384, v{QA}")
        A("s_branch A_top8b")
        s.lab("A_top8")
        A("s_barrier")
        for i in range(8):
            A(f"ds_read_b128 {vr(Q_+4*i,4)}, v{QA} offset:{i*1024}")
        s.lab("A_top8b")
        A(f"s_mov_b32 s{sTHR}, 0xff800000")
        A("s_waitcnt lgkmcnt(0)")
        A("s_branch A_toper")
        s.lab("A_topo")
        A(f"s_cmp_eq_u32 s{sSTEP}, 1")
        A("s_cbranch_scc0 A_top7")
        A("s_waitcnt vmcnt(0)")
        A("s_barrier")
        A("s_branch A_topor")
        s.lab("A_top7")
        A(f"s_or_b32 s{sPEND}, s{sPEND}, 4")
        A("s_barrier")
        A("s_branch A_topor")
        for par in range(2):
            tagp = "e" if par == 0 else "o"; cur = SB[par]
            s.lab(f"A_resc{tagp}")
            A(f"v_mov_b32 v{U+1}, v{U}")
            A(f"v_permlane32_swap_b32 v{U}, v{U+1}")
            A(f"v_max_f32 v{U}, v{U}, v{U+1}")
            if par == 0:
                A(f"s_and_b32 s71, s{sSTEP}, 7")
                A("s_cmp_eq_u32 s71, 0")
                A("s_cbranch_scc1 A_hsw")
            A(f"v_max_f32 v{U}, 0, v{U}")
            A(f"v_sub_f32 v{U+1}, 0, v{U}")
            A(f"v_exp_f32 v{AL}, v{U+1}")
            A(f"s_or_b32 s{sPEND}, s{sPEND}, 1")
            A(f"v_mul_f32 v{LS}, v{AL}, v{LS}")
            A(f"v_mul_f32 v{LS+1}, v{AL}, v{LS+1}")
            if par == 0: s.lab("A_hswj")
            for i in range(32): A(f"v_sub_f32 v{cur+i}, v{cur+i}, v{U}")
            for i in range(16): A(f"v_sub_f32 v{NM+i}, v{NM+i}, v{U}")
            A(f"s_branch A_resc{tagp}r")
        s.lab("A_hsw")
        s.emit(rl_lines(RL))
        A(f"v_mov_b64 {vr(LS,2)}, 0")
        A(f"s_mov_b32 s{sTHR}, {hex(fbits(THR))}")
        A(f"s_lshr_b32 s{sPEND}, s{sSTEP}, 3")
        A(f"s_add_u32 s{sPEND}, s{sPEND}, 2")
        A(f"s_lshl_b32 s{sPEND}, s{sPEND}, 3")
        A("s_branch A_hswj")
        for par in range(2):
            tagp = "e" if par == 0 else "o"
            s.lab(f"A_pend{tagp}")
            if par == 0:
                A(f"s_cmp_ge_u32 s{sPEND}, 16")
                A("s_cbranch_scc1 A_pz")
            A(f"s_bitcmp1_b32 s{sPEND}, 0")
            A(f"s_cbranch_scc0 A_pn{tagp}")
            for i in range(32):
                A(f"v_pk_mul_f32 {vr(O+2*i,2)}, {vr(O+2*i,2)}, {vr(AL,2)} op_sel_hi:[1,0]")
            s.lab(f"A_pn{tagp}")
            if par == 1:
                A(f"s_bitcmp1_b32 s{sPEND}, 2")
                A(f"s_cbranch_scc0 A_pm{tagp}")
                for i in range(8): A(f"v_mov_b64 {vr(NM+2*i,2)}, 0")
                s.lab(f"A_pm{tagp}")
            A(f"s_mov_b32 s{sPEND}, 0")
            A(f"s_branch A_pend{tagp}r")
        s.lab("A_pz")
        A(f"s_cmp_eq_u32 s{sPEND}, 24")
        A("s_cbranch_scc0 A_pz2")
        A(f"v_mov_b32 v{AL}, v{RL}")
        for D in range(4):
            s.emit(fin_D(D, WIN))
            for h in range(2):
                A(f"ds_write_b128 v{QA}, {vr(WIN+8*D+4*h,4)} offset:{(2*D+h)*1024}")
        A("s_waitcnt lgkmcnt(0)")
        s.lab("A_pz2")
        for i in range(32): A(f"v_mov_b64 {vr(O+2*i,2)}, 0")
        A(f"s_mov_b32 s{sPEND}, 0")
        A(f"s_branch A_pender")

    def waveB(s):
        A = s.A; o = s.opt
        vV, vW, vK, WA, vWO, vO, vQW, vWB = 2, 3, 4, 8, 12, 13, 14, 15
        Y, vR, vOL, VP = 16, 17, 18, 20
        XA = 24
        WIN, X, ACC = 32, 64, 192
        q = Q(63)
        nt = " nt" if o.nt else ""
        PX = [P[1], P[2], W[0], W[2]]
        s.lab("L_B")
        s.stamp("b0")
        A(f"v_mov_b32 v{vW}, v2")
        s.late_scalars()
        A(f"s_cmp_lg_u32 s{sW}, 0")
        A("s_cbranch_scc1 B_nclr")
        A("v_mov_b32 v28, 0")
        A("v_lshlrev_b32 v29, 2, v1")
        A(f"s_lshl_b32 s70, s{sMYB}, 7")
        A(f"s_add_u32 s70, s70, {FLAG_BASE}")
        A("s_mov_b64 exec, 0xfff")
        A(f"buffer_store_dword v28, v29, {srd(sWS)}, s70 offen sc1")
        A("s_mov_b64 exec, -1")
        s.lab("B_nclr")
        s.kv_voffs(vK, vV)
        A("v_lshlrev_b32 v23, 10, v19")
        A(f"v_add_u32 v{vWO}, v23, v21")
        A("v_lshrrev_b32 v22, 2, v20")
        A("v_and_b32 v23, 1, v19")
        A("v_lshlrev_b32 v28, 13, v17")
        A("v_lshlrev_b32 v29, 8, v22")
        A("v_add_u32 v28, v28, v29")
        A("v_lshlrev_b32 v29, 5, v23")
        A("v_add_u32 v28, v28, v29")
        A("v_and_b32 v29, 1, v18")
        A("v_lshlrev_b32 v29, 4, v29")
        A("v_add_u32 v28, v28, v29")
        A("v_lshrrev_b32 v29, 1, v18")
        A("v_lshlrev_b32 v29, 3, v29")
        A(f"v_add_u32 v{vWB}, v28, v29")
        A(f"v_add_u32 v28, {P[1]}, v{vWB}")
        for D in range(4):
            A(f"v_xor_b32 v29, {D}, v22")
            A(f"v_lshlrev_b32 v29, 6, v29")
            A(f"v_add_u32 v{WA+D}, v28, v29")
        A("v_and_b32 v28, 31, v1")
        A("v_lshrrev_b32 v29, 1, v28")
        A("v_and_b32 v29, 7, v29")
        A("v_lshlrev_b32 v30, 2, v17")
        A("v_xor_b32 v29, v29, v30")
        A("v_lshlrev_b32 v28, 7, v28")
        A(f"s_add_u32 s70, s{sW4K}, {P[1]}")
        A("v_add_u32 v28, s70, v28")
        for j in range(4):
            A(f"v_xor_b32 v30, {j}, v29")
            A(f"v_lshlrev_b32 v30, 4, v30")
            A(f"v_add_u32 v{XA+j}, v28, v30")
        A(f"v_mul_u32_u24 v{vO}, 448, v17")
        A("v_and_b32 v29, 31, v1")
        A(f"v_add_u32 v{vO}, v{vO}, v29")
        A(f"s_lshl_b32 s70, s{sW}, 5")
        A(f"v_add_u32 v{vO}, s70, v{vO}")
        A(f"v_lshlrev_b32 v{vO}, 4, v{vO}")
        A(f"s_lshl_b32 s70, s{sW}, 13")
        A(f"s_add_u32 s70, s70, {W[0]}")
        A(f"v_lshlrev_b32 v{vQW}, 4, v1")
        A(f"v_add_u32 v{vQW}, s70, v{vQW}")
        A(f"v_lshlrev_b32 v30, 11, v17")
        A(f"v_lshlrev_b32 v29, 4, v29")
        A(f"v_add_u32 v30, v30, v29")
        A(f"s_add_u32 s70, s70, 16384")
        A(f"v_add_u32 v31, s70, v30")
        A(f"v_mov_b32 v{vOL}, v31")
        A(f"v_mov_b32 v{vR}, v22")
        A(f"v_add_u32 v{Y}, 3584, v{vO}")
        A(f"s_lshl_b32 s70, s{sHG}, 20")
        A(f"s_lshl_b32 s71, s{sW}, 14")
        A("s_add_u32 s70, s70, s71")
        A(f"s_lshl_b32 s71, s{sHP}, 8")
        A(f"s_add_u32 s{sWOB}, s70, s71")
        A(f"s_lshl_b32 s70, s{sBR}, 3")
        A(f"s_add_u32 s70, s70, s{sB}")
        A(f"s_lshl_b32 s70, s70, 5")
        A(f"s_lshl_b32 s71, s{sHG}, 3")
        A(f"s_add_u32 s70, s70, s71")
        A(f"s_mul_i32 s73, s70, {UNIT}")
        sH = (77, 79); sOH = (76, 3)
        if o.wrot:
            A(f"s_mul_i32 s76, s{sB}, 11")
            A("s_lshr_b32 s76, s76, 5")
            A("s_mul_i32 s76, s76, 3")
            A(f"s_sub_u32 s76, s{sB}, s76")
            if not (o.wrot & 1): A("s_mov_b32 s76, 0")
        for p in range(4):
            if o.wrot and p > 0:
                A(f"s_add_u32 s70, s76, {p - 1}")
                A("s_sub_u32 s71, s70, 3")
                A("s_cmp_ge_u32 s70, 3")
                A("s_cselect_b32 s70, s71, s70")
                A(f"s_add_u32 s70, s70, s{sHP}")
                A("s_add_u32 s70, s70, 1")
            else:
                A(f"s_add_u32 s70, s{sHP}, {p}")
            A("s_and_b32 s70, s70, 3")
            A(f"s_lshl_b32 s71, s70, 18")
            A(f"s_add_u32 s{sWP+p}, s{sWOB}, s71")
            A(f"s_mul_i32 s71, s70, {2*UNIT}")
            A(f"s_add_u32 s{sOP+p}, s73, s71")
        vOL2 = 19
        if o.wrot:
            A(f"s_and_b32 s70, s{sB}, 1")
            if not (o.wrot & 2): A("s_mov_b32 s70, 0")
            A(f"s_lshl_b32 s{sH[0]}, s70, 16")
            A(f"s_sub_u32 s{sH[1]}, 65536, s{sH[0]}")
            A(f"s_mul_i32 s{sOH[0]}, s70, 14336")
            A(f"s_sub_u32 s{sOH[1]}, 14336, s{sOH[0]}")
            A("s_lshl_b32 s70, s70, 12")
            A("s_sub_u32 s71, 4096, s70")
            A(f"v_add_u32 v{vOL2}, s71, v{vOL}")
            A(f"v_add_u32 v{vOL}, s70, v{vOL}")
        A(f"s_mov_b32 s74, {hex(fbits(CSCALE))}")
        sCS = 74
        sPF = 75

        def wait_vm(tags):
            n = q.wait(tags)
            if n is not None: A(f"s_waitcnt vmcnt({n})")
        def mat(groups):
            out = []
            for tag, ins in groups:
                q.issue(tag); out.append(ins)
            return out
        def dma_wo(rr, p, half, slot):
            g = []
            for t in range(4):
                pre = [f"s_add_u32 m0, s{sW4K}, {slot}"] if (t == 0 or o.ilv) else []
                if o.wrot:
                    if t == 0: pre.append(f"s_add_u32 s72, s{sWP+p}, s{sH[half]}")
                    addr = f"s_add_u32 s71, s72, {rr*131072 + t*3072}"
                else:
                    addr = f"s_add_u32 s71, s{sWP+p}, {(rr*128 + 64*half)*1024 + t*3072}"
                g.append((f"O{rr}{p}{half}", pre + [addr,
                          f"buffer_load_dwordx4 v{vWO}, {srd(sWO)}, s71 offen offset:{t*1024}{' nt' if ((rr, p, half) in eval(o.ntoc)) else s.nto} lds"]))
            return g
        def of_mem(rr, p, half, tag, store=False, clean=False, blk=None):
            g = []
            xb = 2*p + half if blk is None else blk + half
            for jj in range(2):
                va = vO if jj == 0 else Y
                if o.wrot:
                    ins = [f"s_add_u32 s72, s{sOP+p}, s{sOH[half]}"] + ([f"s_add_u32 s72, s72, {rr*UNIT}"] if rr else []) + [f"s_mov_b64 exec, s[{sEXLO}:{sEXHI}]"]
                else:
                    ins = [f"s_add_u32 s72, s{sOP+p}, {rr*UNIT + half*8*1792}", f"s_mov_b64 exec, s[{sEXLO}:{sEXHI}]"]
                for j in (2*jj, 2*jj+1):
                    op = "buffer_store_dwordx4" if store else "buffer_load_dwordx4"
                    ins.append(f"{op} {vr(X+16*xb+4*j,4)}, v{va}, {srd(sWS)}, s72 offen offset:{(j&1)*1792}{(' sc1' if clean else s.ost0) if store else ' sc1'}{s.nths if (store and not clean) else s.nthl if not store else ''}")
                ins.append("s_mov_b64 exec, -1")
                g.append(((tag, tag), ins))
            return g
        def mat2(groups):
            out = []
            for tag, ins in groups:
                if isinstance(tag, tuple):
                    for t_ in tag: q.issue(t_)
                else: q.issue(tag)
                out.append(ins)
            return out

        s.wbase = P[1]; s.xbase = P[1]
        def rebase_lines(regs, cur, nb):
            d = (nb - cur) & 0xffffffff
            return [f"v_add_u32 v{r}, {hex(d)}, v{r}" for r in regs]
        def base_for(slot, cur):
            if 0 <= slot - cur <= 49152: return cur
            for b in (P[1], W[0], P[0], P[2]):
                if 0 <= slot - b <= 49152: return b
            raise ValueError
        LA = o.la
        def frags_c(lst):
            fr = []
            for ci, (slot, xb, first) in enumerate(lst):
                fr += [(slot, xb, first and j == 0, j, D, ci) for j in range(4) for D in range(4)]
            return fr
        def stream(fr, fillers=None, prologue=False, gapfill=None):
            n = len(fr)
            lq = Q(15)
            def xrd(ci, j):
                slot = PX[ci % 4]; r = []
                nb = base_for(slot, s.xbase)
                if nb != s.xbase:
                    r += rebase_lines(range(XA, XA+4), s.xbase, nb); s.xbase = nb
                lq.issue(f"X{ci}_{j}")
                r.append(f"ds_read_b128 {vr(X+16*ci+4*j,4)}, v{XA+j} offset:{slot - s.xbase}")
                return r
            def rd(f):
                slot, xb, zero, j, D, ci = fr[f]; r = []
                if prologue and j == 0 and D == 0 and ci > 0:
                    r += s.stamp_lines(f"x{ci}")
                    r.append("s_barrier")
                    r += s.stamp_lines(f"p{ci}")
                nb = base_for(slot, s.wbase)
                if nb != s.wbase:
                    r += rebase_lines(range(WA, WA+4), s.wbase, nb); s.wbase = nb
                if prologue and D == 0: r += xrd(ci, j)
                for a in range(2):
                    lq.issue(f)
                    r.append(f"ds_read_b64_tr_b16 {vr(WIN+4*(f%8)+2*a,2)}, v{WA+D} offset:{slot-s.wbase + j*2048 + a*1024}")
                return r
            gaps = gapfill if gapfill is not None else [[] for _ in range(n)]
            if fillers: spread(gaps, fillers, 0, n)
            for f in range(min(LA, n)): s.emit(rd(f))
            issued = min(LA, n)
            for f in range(n):
                slot, xb, zero, j, D, ci = fr[f]
                k = lq.wait([f, f + 1] if (f % 2 == 0 and f + 1 < issued) else [f])
                if k is not None: A(f"s_waitcnt lgkmcnt({k})")
                srcC = "0" if zero else vr(ACC+16*D, 16)
                A(f"v_mfma_f32_32x32x16_bf16 {vr(ACC+16*D,16)}, {vr(WIN+4*(f%8),4)}, {vr(X+16*xb+4*j,4)}, {srcC}")
                if issued < n:
                    s.emit(rd(issued)); issued += 1
                s.emit(gaps[f])
        def write_q(base_off):
            for D in range(4):
                for i in range(16):
                    A(f"v_mul_f32 v{ACC+16*D+i}, s{sCS}, v{ACC+16*D+i}")
                for h in range(2):
                    f = 2*D + h
                    for i in range(4):
                        A(f"v_cvt_pk_bf16_f32 v{WIN+4*f+i}, v{ACC+16*D+8*h+2*i}, v{ACC+16*D+8*h+2*i+1}")
                    A(f"ds_write_b128 v{vQW}, {vr(WIN+4*f,4)} offset:{base_off + f*1024}")
            A("s_waitcnt lgkmcnt(0)")
        def pair(j):
            a = s.dma_k(j, vK, nt, f"KV{j}") if j <= 15 else []
            b = s.dma_v(j, vV, nt, f"KV{j}") if j >= 1 else []
            return a + b
        def own_frags():
            for half in range(2):
                for j in range(4):
                    if o.wrot: A(f"ds_read_b128 {vr(X+16*half+4*j,4)}, v{(vOL, vOL2)[half]} offset:{j*512}")
                    else: A(f"ds_read_b128 {vr(X+16*half+4*j,4)}, v{vOL} offset:{half*4096 + j*512}")
            A("s_waitcnt lgkmcnt(0)")

        A(f"v_add_u32 v21, s{sHP}, v1")
        A("v_add_u32 v21, 1, v21")
        A("v_and_b32 v21, 3, v21")
        A(f"v_add_u32 v21, s{sGRP}, v21")
        A("v_lshlrev_b32 v21, 7, v21")
        A(f"v_add_u32 v22, s{sHG}, v1")
        A("v_add_u32 v22, 1, v22")
        A("v_and_b32 v22, 3, v22")
        A("v_lshlrev_b32 v22, 2, v22")
        A(f"s_and_b32 s71, s{sGRP}, {hex(0xfffffff0)}")
        A(f"s_add_u32 s71, s71, s{sHP}")
        A("v_add_u32 v22, s71, v22")
        A("v_lshlrev_b32 v22, 7, v22")
        A("v_lshlrev_b32 v23, 4, v1")
        A(f"s_lshl_b32 s{sPF}, s{sHG}, 20")
        A("s_lshr_b32 s70, s2, 3")
        A("s_lshl_b32 s70, s70, 15")
        A(f"s_add_u32 s{sPF}, s{sPF}, s70")
        A(f"s_lshl_b32 s70, s{sW}, 13")
        A(f"s_add_u32 s{sPF}, s{sPF}, s70")
        A("s_waitcnt vmcnt(0)")
        s.stamp("x0")
        A("s_barrier")
        s.stamp("p0")
        stream(frags_c([(PX[c % 4] + 16384, c, c == 0) for c in range(8)]), None, prologue=True)
        write_q(0)
        s.stamp("pro")
        def poll_check(vsrc, shift):
            A(f"v_readfirstlane_b32 s70, v{vsrc} ; @val=POLL")
            if shift == 0:
                A("s_lshr_b32 s71, s70, 1"); A("s_or_b32 s70, s70, s71")
            else:
                A(f"s_lshr_b32 s70, s70, {shift}")
            A("s_and_b32 s70, s70, 0x01010101")
            A("s_cmp_eq_u32 s70, 0x01010101")
        def mid_poll():
            return [f"s_and_b32 s71, s{sGRP}, {hex(0xfffffff0)}",
                    f"buffer_load_dwordx4 v[24:27], off, {srd(sDBG)}, s71 sc1"]
        def mid_check():
            return [f"v_and_b32 v24, v24, v25", f"v_and_b32 v26, v26, v27",
                    f"v_and_b32 v24, v24, v26",
                    "s_nop 0",
                    f"v_readfirstlane_b32 s70, v24 ; @val=POLL",
                    "s_and_b32 s70, s70, 0x01010101", "s_cmp_eq_u32 s70, 0x01010101"]
        def wave_poll(vaddr, nm, drain=True):
            A(f"s_mov_b32 s{sSPIN}, 0")
            A("s_mov_b64 exec, 7")
            s.lab(f"B_{nm}")
            A(f"buffer_load_dword v{VP}, v{vaddr}, {srd(sWS)}, s72 offen sc1")
            A("s_waitcnt vmcnt(0)")
            A(f"v_cmp_ne_u32 vcc, 0, v{VP}")
            A("s_cmp_eq_u32 vcc_lo, 7")
            A(f"s_cbranch_scc1 B_{nm}d ; @taken")
            A(f"s_add_u32 s{sSPIN}, s{sSPIN}, 1")
            A(f"s_cmp_lt_u32 s{sSPIN}, {o.spin}")
            A(f"s_cbranch_scc1 B_{nm}")
            s.lab(f"B_{nm}d")
            A("s_mov_b64 exec, -1")
            if drain: q.drain()
        wq_slot = lambda c: (P[0] + 16384) if c == 0 else W[(c + 1) % 4]
        wq_issue = {0: [1, 2], 1: [3], 2: [4], 3: [5], 4: [6], 5: [7]}
        wo0_slot = {(0,0): W[3], (0,1): W[0], (1,0): W[0], (1,1): W[1], (2,0): W[2], (2,1): W[3], (3,0): P[1], (3,1): P[2]}
        wo0_issue = eval(o.w0i)
        wo0_use = eval(o.w0u)
        ords = eval(o.ords)
        of0_issue = eval(o.f0)
        pf_issue = {1: [0, 1], 2: [2, 3], 3: [4], 4: [5], 5: [6], 6: [7]}
        wo1_slot = {(0,0): P[2] + 16384, (0,1): P[1] + 16384, (1,0): W[0], (1,1): W[1], (2,0): W[2], (2,1): W[3], (3,0): P[1], (3,1): P[2]}
        wo1_issue = eval(o.w1i)
        FL0AT = o.fl0at if o.fl0at else o.s0at + 1
        PO0 = o.po0
        def flag_check(nm):
            A("s_mov_b64 exec, 7")
            A(f"v_cmp_ne_u32 vcc, 0, v{VP}")
            A("s_mov_b64 exec, -1")
            A("s_cmp_eq_u32 vcc_lo, 7")
            A(f"s_cbranch_scc0 B_slow{nm} ; @nottaken")
            s.lab(f"B_slow{nm}r")
        for st in range(17):
            s.stamp(f"c{st}")
            tags = [f"KV{st}"]
            if 1 <= st <= 7: tags.append(f"Q{st}")
            for (p, h) in wo0_use.get(st, []):
                tags += [f"O0{p}{h}", f"F{p}"]
            if st == FL0AT: tags.append("S0")
            if st == PO0 + 1: tags.append("POLL")
            if st == 9: tags.append("POLL0")
            if st == 8: tags.append("PF")
            wait_vm(tags)
            s.stamp(f"w{st}")
            A("s_barrier")
            s.stamp(f"s{st}")
            if st == 8:
                for d in range(4):
                    A(f"s_add_u32 s70, s{sHG}, {1 + d}")
                    A("s_and_b32 s70, s70, 3")
                    A(f"v_xor_b32 v29, s70, v{vR}")
                    A("v_lshlrev_b32 v29, 6, v29")
                    A(f"v_add_u32 v29, v29, v{vWB}")
                    A(f"v_add_u32 v{WA+d}, {s.wbase}, v29")
            pre_groups = []
            if st == 9:
                own_frags()
            g_s = []
            s0sp = eval(o.s0sp) if o.s0sp else {o.s0at: [0, 1, 2, 3]}
            assert max(s0sp) == o.s0at
            if st in s0sp:
                g_s = of_mem(0, 0, 0, "S0", store=True) + of_mem(0, 0, 1, "S0", store=True)
                g_s = [g_s[i] for i in s0sp[st]]
                if "s" not in ords.get(st, o.order): pre_groups = g_s
            if st == 2:
                A(f"s_cmp_lg_u32 s{sW}, 0")
                A(f"s_cbranch_scc1 B_nf{st}")
                s.flag_store(1, 28)
                s.lab(f"B_nf{st}")
            if st == 8:
                s.emit(mid_poll()); q.issue("POLL0")
            if st == 9:
                s.emit(mid_check())
                A("s_cbranch_scc0 B_slow0 ; @nottaken")
                s.lab("B_slow0r")
                s.stamp("chk0")
            if st == FL0AT and not (o.abl & 4):
                A(f"s_lshl_b32 s70, s{sMYB}, 7")
                A(f"s_lshl_b32 s71, s{sW}, 2")
                A(f"s_add_u32 s71, s71, {FLAG_BASE + 32}")
                A("s_add_u32 s70, s70, s71")
                A("v_mov_b32 v28, 1")
                A("s_mov_b64 exec, 1")
                A(f"buffer_store_dword v28, off, {srd(sWS)}, s70{s.ofl0}")
                A("s_mov_b64 exec, -1")
                q.issue("FL0")
            if st == PO0 and not (o.abl & 4):
                A(f"s_lshl_b32 s72, s{sW}, 2")
                A(f"s_add_u32 s72, s72, {FLAG_BASE + 32}")
                A("s_mov_b64 exec, 7")
                A(f"buffer_load_dword v{VP}, v21, {srd(sWS)}, s72 offen sc1"); q.issue("POLL")
                A("s_mov_b64 exec, -1")
            if st == PO0 + 1 and not (o.abl & 4):
                flag_check("1")
                s.stamp("chk")
            g_kv = pair(st + 2) if st + 2 <= 16 else []
            g_w = []
            for c in wq_issue.get(st, []): g_w += s.dma_wq(c, wq_slot(c), vW, f"Q{c}", 256, 72)
            for (p, h) in wo0_issue.get(st, []): g_w += dma_wo(0, p, h, wo0_slot[(p, h)])
            g_f = []
            for p in of0_issue.get(st, []): g_f += of_mem(0, p, 0, f"F{p}") + of_mem(0, p, 1, f"F{p}")
            g_1 = []
            for (p, h) in wo1_issue.get(st, []): g_1 += dma_wo(1, p, h, wo1_slot[(p, h)])
            g_p = []
            if o.pf:
                for t in pf_issue.get(st, []):
                    g_p.append(("PF", [f"s_add_u32 s71, s{sPF}, {t*1024}",
                                       f"buffer_load_dwordx4 v[24:27], v23, {srd(sWO)}, s71 offen ; @dummy"]))
            if (o.abl & 1) and 10 <= st <= 13: g_w = []
            if st in eval(o.ablw): g_w = []
            if o.abl & 2: pre_groups = []
            if (o.abl & 8) and 8 <= st <= 13: g_kv = g_kv[:4]
            gm = {"w": g_w + g_1, "f": g_f, "k": g_kv, "p": g_p, "s": g_s}
            groups = pre_groups + sum((gm[c] for c in ords.get(st, o.order)), [])
            if o.ilv and st >= o.ilv0:
                oth = (pre_groups if o.ilv & 2 else []) + sum((gm[c] for c in o.order if c != "k"), [])
                def pos(lst, ph):
                    w = [2 if isinstance(g[0], tuple) else 1 for g in lst]; tot = sum(w); acc = 0; r = []
                    for g, x in zip(lst, w):
                        r.append(((acc + ph * x) / tot, g)); acc += x
                    return r
                a_ = pos(g_kv, 0.0) if g_kv else []
                b_ = pos(oth, 0.5) if oth else []
                merged = sorted([(x, 0, i, g) for i, (x, g) in enumerate(a_)] + [(x, 1, i, g) for i, (x, g) in enumerate(b_)], key=lambda z: (z[0], z[1], z[2]))
                groups = ([] if o.ilv & 2 else pre_groups) + [z[3] for z in merged]
            mem = mat2(groups)
            use = ([(wq_slot(st), st, st == 0)] if st <= 7 else []) + \
                  [(wo0_slot[(p, h)], 2*p + h, (p, h) == (0, 0)) for (p, h) in wo0_use.get(st, [])]
            if use:
                stream(frags_c(use), mem)
                if st == 7: write_q(16384)
            else:
                for gi, g_ in enumerate(mem):
                    s.emit(g_); s.stamp(f"m{st}_{gi}")
            s.stamp(f"d{st}")
        sPD = [sWP, sWP + 1, sWP + 2] if o.tail == 1 else [82, 83, 84]
        def addr_prep():
            A("v_lshrrev_b32 v17, 5, v1")
            A("v_mul_u32_u24 v23, 112, v17")
            A("v_and_b32 v18, 31, v1")
            A("v_add_u32 v23, v23, v18")
            A(f"s_lshl_b32 s70, s{sW}, 5")
            A("v_add_u32 v23, s70, v23")
            A("v_add_u32 v19, s70, v18")
            A("v_lshlrev_b32 v23, 4, v23")
            A(f"s_lshl_b32 s70, s{sBR}, 3")
            A(f"s_add_u32 s70, s70, s{sB}")
            A(f"s_lshl_b32 s70, s70, 2")
            A(f"s_add_u32 s70, s70, s{sHP}")
            A(f"s_mul_i32 s73, s70, {12*PSZ}")
            A(f"s_add_u32 s73, s73, {PART_BASE}")
            for d in range(3):
                A(f"s_add_u32 s70, s{sHG}, {1 + d}")
                A("s_and_b32 s70, s70, 3")
                A(f"s_mul_i32 s70, s70, {3*PSZ}")
                A(f"s_add_u32 s70, s70, s73")
                A(f"s_add_u32 s{sPD[d]}, s70, {(2-d)*PSZ}")
            A("v_lshlrev_b32 v19, 11, v19")
            A("v_lshlrev_b32 v17, 4, v17")
            A("v_add_u32 v19, v19, v17")
        def pub(d):
            r = []
            for rq in range(4):
                r.append([f"s_add_u32 s70, s{sPD[d]}, {rq*3584}", f"s_mov_b64 exec, s[{sEXLO}:{sEXHI}]",
                          f"buffer_store_dwordx4 {vr(ACC+16*d+4*rq,4)}, v23, {srd(sWS)}, s70 offen sc1{s.nths}", "s_mov_b64 exec, -1"])
            return r
        def tail1():
            used0 = set(x for v in wo0_use.values() for x in v)
            tail0 = [(p, h) for p in range(4) for h in range(2) if (p, h) not in used0]
            tailF = sorted(set(p for p, h in tail0))
            assert all((p, 0) in tail0 or (p, 0) in used0 for p in tailF)
            issued1 = set(x for v in wo1_issue.values() for x in v)
            def ftags(p): return [f"O0{p}{h}" for h in range(2) if (p, h) in tail0] + ([f"F{p}"] if p else [])
            wait_vm(ftags(tailF[0]) + ["O100"])
            A(f"v_add_u32 v{vOL}, {hex((P[0] - W[1]) & 0xffffffff)}, v{vOL}")
            if o.wrot: A(f"v_add_u32 v{vOL2}, {hex((P[0] - W[1]) & 0xffffffff)}, v{vOL2}")
            A("s_barrier")
            s.stamp("E")
            busy = set(wo0_slot[c] for c in tail0)
            avail = [c for c in [(0, 1), (1, 0), (1, 1), (2, 0), (2, 1), (3, 0), (3, 1)] if c not in issued1 and wo1_slot[c] not in busy]
            for i, p in enumerate(tailF):
                fl = mat2(sum((dma_wo(1, pp, hh, wo1_slot[(pp, hh)]) for (pp, hh) in avail), []))
                issued1 |= set(avail)
                stream(frags_c([(wo0_slot[(p, h)], 2*p + h, False) for h in range(2) if (p, h) in tail0]), fl)
                for h in range(2): busy.discard(wo0_slot[(p, h)])
                avail = [c for c in [(0, 1), (1, 0), (1, 1), (2, 0), (2, 1), (3, 0), (3, 1)] if c not in issued1 and wo1_slot[c] not in busy]
                if i + 1 < len(tailF):
                    wait_vm(ftags(tailF[i + 1]))
                    A("s_barrier")
                    s.stamp(f"T{i}")
            own_frags()
            wait_vm("O101")
            A("s_barrier")
            s.stamp("Ta")
            fl = mat2(sum((dma_wo(1, pp, hh, wo1_slot[(pp, hh)]) for (pp, hh) in avail), []))
            issued1 |= set(avail)
            assert len(issued1) == 8, issued1
            stream(frags_c([(wo1_slot[(0, 0)], 0, False), (wo1_slot[(0, 1)], 1, False)]), fl)
            s.stamp("own")
            addr_prep()
            A(f"s_lshl_b32 s72, s{sW}, 2")
            A(f"s_add_u32 s72, s72, {FLAG_BASE}")
            wave_poll(21, "poll1")
            s.stamp("poll1")
            gl = lambda p: of_mem(1, p, 0, f"G{p}") + of_mem(1, p, 1, f"G{p}")
            for g_ in mat2(gl(1) + gl(2)): s.emit(g_)
            A("s_barrier")
            ND = 3 if o.defer else 4
            for p in (1, 2):
                wait_vm(f"G{p}")
                if p == 1: s.stamp("g1")
                fl = mat2(gl(3)) if p == 1 else None
                stream([f for f in frags_c([(wo1_slot[(p, 0)], 2*p, False), (wo1_slot[(p, 1)], 2*p + 1, False)]) if f[4] < ND], fl)
            wait_vm("G3")
            fr = []
            for d in range(ND):
                for half in range(2):
                    for j in range(4):
                        fr.append((wo1_slot[(3, half)], 6 + half, False, j, d, half))
            for p in ((1, 2, 3) if o.defer else ()):
                for half in range(2):
                    for j in range(4):
                        fr.append((wo1_slot[(p, half)], 2*p + half, False, j, 3, half))
            gaps = [[] for _ in range(len(fr))]
            for d in range(3):
                spread(gaps, pub(d), 8*d + 8 + 3, 8*d + 8 + 7)
            stream(fr, None, gapfill=gaps)
        def tail2():
            used0 = set(x for v in wo0_use.values() for x in v)
            assert used0 == {(0, 0), (0, 1)}
            fdone = set(p for v in of0_issue.values() for p in v)
            assert wo1_issue == {15: [(0, 0)]}
            gb = lambda p: 2 * (p - 1)
            gl = lambda p: of_mem(1, p, 0, f"G{p}", blk=gb(p)) + of_mem(1, p, 1, f"G{p}", blk=gb(p))
            w1 = lambda cs: sum((dma_wo(1, pp, hh, wo1_slot[(pp, hh)]) for (pp, hh) in cs), [])
            fw = lambda p: frags_c([(wo0_slot[(p, 0)], 2*p, False), (wo0_slot[(p, 1)], 2*p + 1, False)])
            tags = [f"O0{p}{h}" for p in (1, 2, 3) for h in range(2)] + ["O100"]
            if PO0 == 16: tags.append("POLL")
            wait_vm(tags)
            A(f"v_add_u32 v{vOL}, {hex((P[0] - W[1]) & 0xffffffff)}, v{vOL}")
            if o.wrot: A(f"v_add_u32 v{vOL2}, {hex((P[0] - W[1]) & 0xffffffff)}, v{vOL2}")
            if PO0 == 16:
                flag_check("1")
                s.stamp("chk")
            rest = [p for p in (1, 2, 3) if p not in fdone]
            if o.fpre and PO0 == 16:
                for p in rest:
                    for g_ in mat2(of_mem(0, p, 0, f"F{p}") + of_mem(0, p, 1, f"F{p}")): s.emit(g_)
                rest = []
            A("s_barrier")
            s.stamp("E")
            for g_ in mat2(w1([(0, 1)])): s.emit(g_)
            for p in rest:
                for g_ in mat2(of_mem(0, p, 0, f"F{p}") + of_mem(0, p, 1, f"F{p}")): s.emit(g_)
            own_frags()
            stream(frags_c([(wo1_slot[(0, 0)], 0, False)]), None)
            addr_prep()
            wait_vm("O101")
            A("s_barrier")
            s.stamp("Ta")
            stream(frags_c([(wo1_slot[(0, 1)], 1, False)]), None)
            s.stamp("own")
            wait_vm("F1")
            s.stamp("f1")
            stream(fw(1), None)
            wait_vm("F2")
            A("s_barrier")
            A(f"s_lshl_b32 s72, s{sW}, 2")
            A(f"s_add_u32 s72, s72, {FLAG_BASE}")
            A("s_mov_b64 exec, 7")
            A(f"buffer_load_dword v{VP}, v21, {srd(sWS)}, s72 offen sc1"); q.issue("POLL1")
            A("s_mov_b64 exec, -1")
            s.stamp("f2")
            stream(fw(2), mat2(w1([(1, 0), (1, 1)])))
            wait_vm(["POLL1", "F3"])
            A("s_barrier")
            flag_check("2")
            s.stamp("poll1")
            for g_ in mat2(gl(1)): s.emit(g_)
            stream(fw(3), mat2(gl(2) + w1([(2, 0), (2, 1)]) + gl(3)))
            wait_vm(["O110", "O111"])
            A("s_barrier")
            s.stamp("f3")
            for g_ in mat2(w1([(3, 0), (3, 1)])): s.emit(g_)
            ND = 3 if o.defer else 4
            for p in (1, 2):
                if p == 2:
                    wait_vm(["O120", "O121", "G2"])
                    A("s_barrier")
                else:
                    wait_vm("G1")
                    s.stamp("g1")
                stream([f for f in frags_c([(wo1_slot[(p, 0)], gb(p), False), (wo1_slot[(p, 1)], gb(p) + 1, False)]) if f[4] < ND], None)
            wait_vm(["G3", "O130", "O131"])
            A("s_barrier")
            fr = []
            for d in range(ND):
                for half in range(2):
                    for j in range(4):
                        fr.append((wo1_slot[(3, half)], gb(3) + half, False, j, d, half))
            for p in ((1, 2, 3) if o.defer else ()):
                for half in range(2):
                    for j in range(4):
                        fr.append((wo1_slot[(p, half)], gb(p) + half, False, j, 3, half))
            gaps = [[] for _ in range(len(fr))]
            for d in range(3):
                spread(gaps, pub(d), 8*d + 8 + 3, 8*d + 8 + 7)
            stream(fr, None, gapfill=gaps)
        (tail1 if o.tail == 1 else tail2)()
        s.stamp("oproj")
        A(f"s_lshl_b32 s70, s{sMYB}, 7")
        A(f"s_lshl_b32 s72, s{sW}, 2")
        A(f"s_add_u32 s72, s72, {FLAG_BASE + 16}")
        A("s_add_u32 s70, s70, s72")
        A("v_mov_b32 v20, 1")
        A("s_waitcnt vmcnt(0)")
        s.stamp("pst")
        A("s_mov_b64 exec, 1")
        A(f"buffer_store_dword v20, off, {srd(sWS)}, s70 sc1")
        if o.cl & 2:
            A("s_mov_b64 exec, -1")
            for g_ in mat2(of_mem(1, 3, 0, "CL1", store=True, clean=True) + of_mem(1, 3, 1, "CL1", store=True, clean=True)): s.emit(g_)
            A(f"s_lshl_b32 s72, s{sW}, 2")
            A(f"s_add_u32 s72, s72, {FLAG_BASE + 16}")
        wave_poll(22, "poll2")
        s.stamp("poll2")
        A(f"s_mul_i32 s71, s{sHG}, {3*PSZ}")
        A("s_add_u32 s73, s73, s71")
        R = 64
        A(f"s_mov_b64 exec, s[{sEXLO}:{sEXHI}]")
        for src in range(3):
            for rq in range(4):
                A(f"s_add_u32 s70, s73, {src*PSZ + rq*3584}")
                A(f"buffer_load_dwordx4 {vr(R+16*src+4*rq,4)}, v23, {srd(sWS)}, s70 offen sc1{s.nthl}")
        A(f"s_mul_i32 s70, s{sB}, {112*2048}")
        A(f"s_lshl_b32 s71, s{sBR}, 10")
        A("s_add_u32 s70, s70, s71")
        A(f"s_lshl_b32 s71, s{sHP}, 8")
        A("s_add_u32 s70, s70, s71")
        A(f"s_lshl_b32 s71, s{sHG}, 6")
        A("s_add_u32 s70, s70, s71")
        OWN = ACC + 48
        A("s_waitcnt vmcnt(8)")
        for i in range(8): A(f"v_pk_add_f32 {vr(OWN+2*i,2)}, {vr(OWN+2*i,2)}, {vr(R+2*i,2)}")
        A("s_waitcnt vmcnt(4)")
        for i in range(8): A(f"v_pk_add_f32 {vr(OWN+2*i,2)}, {vr(OWN+2*i,2)}, {vr(R+16+2*i,2)}")
        A("s_waitcnt vmcnt(0)")
        for i in range(8): A(f"v_pk_add_f32 {vr(OWN+2*i,2)}, {vr(OWN+2*i,2)}, {vr(R+32+2*i,2)}")
        for i in range(8):
            A(f"v_cvt_pk_bf16_f32 v{32+i}, v{OWN+2*i}, v{OWN+2*i+1}")
        for h in range(2):
            A(f"buffer_store_dwordx4 {vr(32+4*h,4)}, v19, {srd(sOUT)}, s70 offen offset:{h*32}{['', ' sc1', ' sc0 sc1', ' nt', ' sc1 nt'][o.outsc]}")
        A("s_mov_b64 exec, -1")
        if o.dbgst:
            A("s_waitcnt vmcnt(0)")
            A(f"s_or_b32 s70, s{sW}, s{sHG}")
            A(f"s_or_b32 s70, s70, s{sHP}")
            A("s_cmp_lg_u32 s70, 0")
            A("s_cbranch_scc1 L_end")
            s.stamp("end"); s.stamp("cend", True)
            A("s_waitcnt lgkmcnt(0)")
            r = STAMP_REGS
            A(f"s_sub_u32 s70, s{r[5]}, s{r[1]}")
            A(f"s_sub_u32 s71, s{r[4]}, s{r[0]}")
            A(f"s_sub_u32 s72, s{r[2]}, s{r[1]}")
            A(f"s_sub_u32 s73, s{r[3]}, s{r[1]}")
            for i in range(4): A(f"v_mov_b32 v{32+i}, s{70+i}")
            A(f"s_and_b32 s71, s{sGRP}, {hex(0xfffffff0)}")
            A("s_mov_b64 exec, 1")
            A(f"buffer_store_dwordx4 v[32:35], off, {srd(sDBG)}, s71 sc1")
            A("s_endpgm")
        if o.stamp and not o.dbgst:
            A("s_waitcnt vmcnt(0)")
            A(f"s_cmp_lg_u32 s{sW}, 0")
            A("s_cbranch_scc1 L_end")
            s.stamp("end"); s.stamp("cend", True)
            A("s_waitcnt lgkmcnt(0)")
            n = len(o.stamps.split(","))
            assert n <= len(STAMP_REGS)
            A("s_lshl_b32 s70, s2, 8")
            A(f"s_add_u32 s70, s70, {STAMP_BASE}")
            A("s_mov_b64 exec, 1")
            for i in range(n):
                r = STAMP_REGS[i]
                A(f"v_mov_b32 v32, s{r}"); A(f"v_mov_b32 v33, s{r+1}")
                A(f"buffer_store_dwordx2 v[32:33], off, {srd(sWS)}, s70 offset:{8*i}")
                A("s_nop 1")
        A("s_endpgm")
        s.lab("B_slow0")
        A(f"s_mov_b32 s{sSPIN}, 0")
        s.lab("B_slow0l")
        s.emit(mid_poll())
        A("s_waitcnt vmcnt(0)")
        s.emit(mid_check())
        A("s_cbranch_scc1 B_slow0r ; @taken")
        A(f"s_add_u32 s{sSPIN}, s{sSPIN}, 1")
        A(f"s_cmp_lt_u32 s{sSPIN}, {o.spin}")
        A("s_cbranch_scc1 B_slow0l")
        A("s_branch B_slow0r")
        s.lab("B_slow1")
        A(f"s_lshl_b32 s72, s{sW}, 2")
        A(f"s_add_u32 s72, s72, {FLAG_BASE + 32}")
        wave_poll(21, "slow1l", drain=False)
        A("s_branch B_slow1r" if not (o.abl & 4) else "s_endpgm")
        if o.tail == 2:
            s.lab("B_slow2")
            A(f"s_lshl_b32 s72, s{sW}, 2")
            A(f"s_add_u32 s72, s72, {FLAG_BASE}")
            wave_poll(21, "slow2l", drain=False)
            A("s_branch B_slow2r")

    def build(s):
        s.common()
        s.waveA()
        s.waveB()
        s.lab("L_end")
        s.A("s_endpgm")
        lines = [l for l in s.L if l is not None]
        cfgs = []
        for wave in (0, 1, 3, 4, 5, 7):
            cfgs.append((f"wg5w{wave}", {2: 5}, {"WAVE": wave, "POLL": 0x03030303, "POLL3": 0x03030303}))
        cfgs.append(("allresc", {2: 5}, {"WAVE": 1, "ALLRESC": 1}))
        cfgs.append(("extra", {2: 256}, {"WAVE": 0}))
        lines = asmlib.finalize(lines, cfgs, verbose=True)
        return "\n".join(lines)

if __name__ == "__main__":
    ap = argparse.ArgumentParser()
    ap.add_argument("-o", default="k8.s")
    ap.add_argument("--stamp", action="store_true")
    ap.add_argument("--cyc", action="store_true")
    ap.add_argument("--stamps", default="start,pro,s8,E,poll1,oproj,pst,poll2,end")
    ap.add_argument("--nt", type=int, default=1)
    ap.add_argument("--prioA", type=int, default=0)
    for n_ in ("ntw", "ntx", "nto", "nths", "nthl"): ap.add_argument("--" + n_, type=int, default=0)
    ap.add_argument("--astamp", type=int, default=-1)
    ap.add_argument("--la", type=int, default=6)
    ap.add_argument("--nbub", type=int, default=3)
    ap.add_argument("--rot", type=int, default=1)
    ap.add_argument("--k0at", type=int, default=5)
    ap.add_argument("--p1at", type=int, default=7)
    ap.add_argument("--pf", type=int, default=0)
    ap.add_argument("--f0", default="{13: [1], 14: [2], 15: [3]}")
    ap.add_argument("--po0", type=int, default=11)
    ap.add_argument("--defer", type=int, default=1)
    ap.add_argument("--cpf", type=int, default=1)
    ap.add_argument("--dbgst", type=int, default=0)
    ap.add_argument("--g2at", type=int, default=8)
    ap.add_argument("--order", default="wfkp")
    ap.add_argument("--spin", type=int, default=131072)
    ap.add_argument("--outsc", type=int, default=0)
    ap.add_argument("--osc", type=int, default=15)
    ap.add_argument("--wb", type=int, default=0)
    ap.add_argument("--ntq", default="[]")
    ap.add_argument("--ntxc", default="[]")
    ap.add_argument("--ntoc", default="[]")
    ap.add_argument("--ablw", default="[]")
    ap.add_argument("--fl0at", type=int, default=0)
    ap.add_argument("--s0sp", default="")
    ap.add_argument("--tail", type=int, default=1)
    ap.add_argument("--s0at", type=int, default=9)
    ap.add_argument("--fpre", type=int, default=0)
    ap.add_argument("--abl", type=int, default=0)
    ap.add_argument("--w0i", default="{7: [(0,0)], 8: [(0,1)], 11: [(1,0)], 12: [(1,1), (2,0)], 13: [(2,1)], 14: [(3,0)], 15: [(3,1)]}")
    ap.add_argument("--w0u", default="{9: [(0,0)], 10: [(0,1)], 15: [(1,0), (1,1)], 16: [(2,0), (2,1)]}")
    ap.add_argument("--w1i", default="{15: [(0,0)], 16: [(1,0), (1,1)]}")
    ap.add_argument("--ords", default="{}")
    ap.add_argument("--ilv", type=int, default=0)
    ap.add_argument("--ilv0", type=int, default=1)
    ap.add_argument("--wrot", type=int, default=0)
    ap.add_argument("--cl", type=int, default=0)
    o = ap.parse_args()
    g = Gen(o)
    body = g.build()
    k = kernel_text(NAME + "_kernel", body, vgpr=256)
    hdr = ["; @launch grid=(256,1,1) block=(512,1,1) lds=163840"]
    if o.stamp and not o.dbgst: hdr.append("; STAMPS " + o.stamps)
    if o.astamp >= 0: hdr.append("; ASTAMP")
    if o.cyc: hdr.append("; STAMPCYC")
    open(o.o, "w").write(file_text(hdr, [k]))
    print("wrote", o.o, len(body.splitlines()), "lines")
```

```python
import sys, argparse, struct
from gen_common import *
import asmlib

P = [0, 32768, 65536]
W = [98304, 114688, 131072, 147456]
UNIT = 28672
PART_BASE = 16 << 20
PSZ = 14336
STAMP_BASE = 128 << 20
FLAG_BASE = 32 << 20
THR = 12.0

sK, sV, sWQ, sX, sWS, sWO, sOUT, sDBG = 4, 8, 12, 16, 20, 24, 28, 32
sWAVE, sW, sBR, sHG, sB, sHP, sH0, sKV = 62, 63, 64, 65, 66, 67, 68, 69
sXB, sPEND = 72, 73
sEV, sTHR, sPAT = 74, 75, 76
sSTEP, sROT, sNEG, sOBASE = 77, 78, 79, 80
sW4K, sWQB, sKVW, sWOB, sGRP, sMYB = 81, 82, 83, 84, 85, 86
sSPIN = 87
sEXLO, sEXHI = 88, 89
sPOS = 3
sWP, sOP = 54, 58
STAMP_REGS = [90, 92, 94, 96, 98, 100] + list(range(36, 54, 2))

def srd(r): return f"s[{r}:{r+3}]"
def vr(a, n=1): return f"v{a}" if n == 1 else f"v[{a}:{a+n-1}]"
def fbits(x): return struct.unpack('<I', struct.pack('<f', x))[0]
CSCALE = (128 ** -0.5) * 1.4426950408889634

class Q:
    def __init__(s, maxn): s.q = []; s.maxn = maxn
    def issue(s, tag):
        s.q.append(tag)
        assert len(s.q) <= s.maxn, ("counter overflow", s.q)
    def wait(s, tags):
        if isinstance(tags, str): tags = [tags]
        last = -1
        for i, t in enumerate(s.q):
            if t in tags: last = i
        if last < 0: return None
        n = len(s.q) - 1 - last
        s.q = s.q[last + 1:]
        return n
    def drain(s): s.q = []

def spread(slots, items, start=0, end=None):
    if end is None: end = len(slots)
    n = end - start
    m = len(items)
    for i, it in enumerate(items):
        k = start + (i * n) // m
        slots[k].extend(it)

class Gen:
    def __init__(s, opt):
        s.L = []; s.opt = opt
        f = lambda b: " nt" if b else ""
        s.ntw, s.ntx, s.nto, s.nths, s.nthl = f(opt.ntw), f(opt.ntx), f(opt.nto), f(opt.nths), f(opt.nthl)
        c = lambda b: " sc1" if b else ""
        s.ost0, s.ost1, s.ofl0, s.ofl1 = c(opt.osc & 1), c(opt.osc & 2), c(opt.osc & 4), c(opt.osc & 8)
    def A(s, t): s.L.append("  " + t)
    def lab(s, n): s.L.append(n + ":")
    def emit(s, lines):
        for l in lines:
            if l.endswith(":"): s.L.append(l)
            else: s.L.append("  " + l)
    def stamp_lines(s, name, cyc=False):
        if not s.opt.stamp: return []
        names = s.opt.stamps.split(",")
        if name not in names: return []
        r = STAMP_REGS[names.index(name)]
        cyc = cyc or s.opt.cyc or (s.opt.dbgst and name not in ("start", "end"))
        return [f"s_mem{'time' if cyc else 'realtime'} s[{r}:{r+1}]"]
    def stamp(s, name, cyc=False): s.emit(s.stamp_lines(name, cyc))
    def capture(s, fn):
        old = s.L; s.L = []
        fn()
        out = [l if l.endswith(":") else l.strip() for l in s.L]; s.L = old
        return out
    def ast(s, i):
        return [f"s_memtime s[{36+2*i}:{37+2*i}]"] if s.opt.astamp >= 0 else []

    def common(s):
        A = s.A
        A("s_cmp_ge_u32 s2, 256")
        A("s_cbranch_scc1 L_end")
        s.stamp("start"); s.stamp("cstart", True)
        A("s_load_dwordx16 s[36:51], s[0:1], 0")
        A("s_load_dwordx8 s[52:59], s[0:1], 64")
        A("s_load_dwordx2 s[60:61], s[0:1], 96")
        A("v_lshrrev_b32 v1, 6, v0")
        A("s_and_b32 s70, s2, 7")
        A("s_lshr_b32 s71, s2, 3")
        if s.opt.cpf:
            KN = NAME + "_kernel"
            A("s_getpc_b64 s[84:85]")
            s.lab("L_pc")
            A(f"s_sub_u32 s84, s84, L_pc-{KN}")
            A("s_subb_u32 s85, s85, 0")
            A("v_lshlrev_b32 v2, 7, v1")
            A("v_and_b32 v3, 31, v0")
            A("v_lshlrev_b32 v3, 2, v3")
            A("v_add_u32 v2, v2, v3")
            A("s_lshl_b32 s72, s71, 10")
            A("v_add_u32 v2, s72, v2")
            A(f"v_min_u32 v2, L_end-{KN}, v2")
            if s.opt.pro2:
                A("v_and_b32 v25, 63, v0")
                A("global_load_dword v0, v2, s[84:85]")
            else: A("global_load_dword v63, v2, s[84:85]")
        A(f"v_readfirstlane_b32 s{sWAVE}, v1 ; @val=WAVE")
        A(f"s_lshr_b32 s{sBR}, s70, 2")
        A(f"s_and_b32 s{sHG}, s70, 3")
        A(f"s_and_b32 s{sB}, s71, 7")
        A(f"s_lshr_b32 s{sHP}, s71, 3")
        A(f"s_lshl_b32 s{sH0}, s{sHG}, 3")
        A(f"s_lshl_b32 s70, s{sHP}, 1")
        A(f"s_add_u32 s{sH0}, s{sH0}, s70")
        A(f"s_add_u32 s{sROT}, s{sB}, s70")
        if not s.opt.rot: A(f"s_mov_b32 s{sROT}, 0")
        A(f"s_and_b32 s{sW}, s{sWAVE}, 3")
        A(f"s_lshl_b32 s{sW4K}, s{sW}, 12")
        A("v_mov_b32 v1, v25" if (s.opt.pro2 and s.opt.cpf) else "v_and_b32 v1, 63, v0")
        A("v_lshrrev_b32 v19, 4, v1")
        A("v_and_b32 v20, 15, v1")
        A("v_lshlrev_b32 v21, 2, v19")
        A("v_xor_b32 v21, v20, v21")
        A("v_lshlrev_b32 v21, 4, v21")
        A("v_lshrrev_b32 v17, 5, v1")
        A("v_and_b32 v18, 3, v1")
        A("v_lshlrev_b32 v2, 13, v19")
        A("v_add_u32 v2, v2, v21")
        A("v_lshrrev_b32 v22, 3, v1")
        A("v_lshlrev_b32 v22, 10, v22")
        A("v_and_b32 v23, 7, v1")
        A("v_xor_b32 v23, v23, v19")
        A("v_lshlrev_b32 v24, 4, v23")
        A("v_add_u32 v3, v22, v24")
        A("v_xor_b32 v24, 64, v24")
        A("v_add_u32 v4, v22, v24")
        for r, sz in ((sK, 33554432), (sV, 33554432), (sWQ, 4194304), (sWS, 268435456), (sWO, 4194304), (sOUT, 1835008), (sDBG, 256)):
            A(f"s_mov_b32 s{r+2}, {sz}")
            A(f"s_mov_b32 s{r+3}, 0x20000")
        A(f"s_mov_b32 s{sX+3}, 0x20000")
        A(f"s_lshl_b32 s70, s{sW}, 17")
        A(f"s_lshl_b32 s71, s{sH0}, 8")
        A(f"s_add_u32 s{sWQB}, s70, s71")
        A(f"s_mul_i32 s70, s{sB}, 112")
        A(f"s_add_u32 s71, s70, 112")
        A(f"s_lshl_b32 s{sX+2}, s71, 10")
        A(f"s_lshl_b32 s71, s{sW}, 5")
        A("s_add_u32 s70, s70, s71")
        A(f"s_lshl_b32 s{sXB}, s70, 10")
        A(f"s_lshl_b32 s70, s{sB}, 5")
        A(f"s_add_u32 s70, s70, s{sH0}")
        A(f"s_lshl_b32 s{sKV}, s70, 17")
        A(f"s_add_u32 s{sKVW}, s{sKV}, s{sW4K}")
        A(f"s_cmp_eq_u32 s{sBR}, 0")
        A("s_waitcnt lgkmcnt(0)")
        s.stamp("k")
        for r, a, b in ((sX, 36, 46), (sWQ, 42, 52), (sK, 38, 48), (sV, 40, 50), (sWO, 44, 54)):
            A(f"s_cselect_b32 s{r}, s{a}, s{b}")
            A(f"s_cselect_b32 s{r+1}, s{a+1}, s{b+1}")
        for r, a in ((sOUT, 56), (sDBG, 58), (sWS, 60)):
            A(f"s_mov_b32 s{r}, s{a}")
            A(f"s_mov_b32 s{r+1}, s{a+1}")
        A(f"s_cmp_ge_u32 s{sWAVE}, 4")
        A("s_cbranch_scc1 L_B")

    def late_scalars(s):
        A = s.A
        A(f"s_lshl_b32 s70, s{sBR}, 3")
        A(f"s_add_u32 s70, s70, s{sB}")
        A(f"s_lshl_b32 s71, s70, 5")
        A(f"s_add_u32 s71, s71, s{sH0}")
        A(f"s_mul_i32 s{sOBASE}, s71, {UNIT}")
        A(f"s_lshl_b32 s71, s70, 2")
        A(f"s_add_u32 s71, s71, s{sHG}")
        A(f"s_lshl_b32 s{sGRP}, s71, 2")
        A(f"s_add_u32 s{sMYB}, s{sGRP}, s{sHP}")
        A(f"s_cmp_eq_u32 s{sW}, 3")
        A(f"s_cselect_b32 s{sEXLO}, 0xffff, -1")
        A(f"s_mov_b32 s{sEXHI}, s{sEXLO}")

    def kv_voffs(s, vK, vV):
        A = s.A
        A("v_lshlrev_b32 v22, 8, v19")
        A(f"v_add_u32 v{vV}, v22, v21")
        for t in range(4):
            A(f"v_add_u32 v23, {4*t}, v19")
            A(f"v_xor_b32 v23, v20, v23")
            A(f"v_lshlrev_b32 v23, 4, v23")
            A(f"v_add_u32 v{vK+t}, v22, v23")

    def flag_store(s, val, vtmp):
        A = s.A
        A(f"v_mov_b32 v{vtmp}, {val}")
        A("s_mov_b64 exec, 1")
        A(f"buffer_store_byte v{vtmp}, off, {srd(sDBG)}, s{sMYB} sc1")
        A("s_mov_b64 exec, -1")

    def dma_k(s, j, vK, nt, tag):
        g = []
        for t in range(4):
            pre = [f"s_add_u32 m0, s{sW4K}, {P[j%3]}", f"s_add_u32 s70, s{sKVW}, {j*16384}"] if t == 0 else []
            if t and s.opt.ilv: pre = [f"s_add_u32 m0, s{sW4K}, {P[j%3]}", "s_nop 0"]
            g.append((tag, pre + [f"buffer_load_dwordx4 v{vK+t}, {srd(sK)}, s70 offen offset:{t*1024}{nt} lds"]))
        return g
    def dma_v(s, j, vV, nt, tag):
        g = []
        for t in range(4):
            pre = [f"s_add_u32 m0, s{sW4K}, {P[j%3]+16384}", f"s_add_u32 s70, s{sKVW}, {(j-1)*16384}"] if t == 0 else []
            if t and s.opt.ilv: pre = [f"s_add_u32 m0, s{sW4K}, {P[j%3]+16384}", "s_nop 0"]
            g.append((tag, pre + [f"buffer_load_dwordx4 v{vV}, {srd(sV)}, s70 offen offset:{t*1024}{nt} lds"]))
        return g
    def kc_lines(s, c, dst):
        return [f"s_add_u32 s{dst}, s{sROT}, {c}", f"s_and_b32 s{dst}, s{dst}, 7"]
    def dma_wq(s, c, slot, vW, tag, extra, tmp):
        g = []
        for t in range(4):
            pre = []
            if t == 0:
                pre = s.kc_lines(c, tmp) + [f"s_lshl_b32 s{tmp}, s{tmp}, 19", f"s_add_u32 s{tmp}, s{tmp}, s{sWQB}",
                                            f"s_add_u32 m0, s{sW4K}, {slot}"]
            elif s.opt.ilv: pre = [f"s_add_u32 m0, s{sW4K}, {slot}"]
            g.append((tag, pre + [f"s_add_u32 s71, s{tmp}, {extra + t*31744}",
                                  f"buffer_load_dwordx4 v{vW}, {srd(sWQ)}, s71 offen offset:{t*1024}{' nt' if (tag in eval(s.opt.ntq)) else s.ntw} lds"]))
        return g

    def waveA(s):
        A = s.A; o = s.opt
        nt = " nt" if o.nt else ""
        Q_, SB, Pr, O, WIN, NM = 0, [32, 64], 96, 112, 176, 208
        KA, VA, QA, OV, RL = 224, 232, 236, 237, 238
        LS, AL, T = 240, 242, 244
        vK, vV = 5, 9
        q = Q(63)
        PX = [P[1], P[2], W[0], W[2]]
        def dma_x(c):
            g = []
            for t in range(4):
                pre = []
                if t == 0:
                    pre = s.kc_lines(c, 87) + ["s_lshl_b32 s87, s87, 7", f"s_add_u32 s87, s87, s{sXB}", f"s_add_u32 m0, s{sW4K}, {PX[c%4]}"]
                g.append((f"C{c}", pre + [f"s_add_u32 s71, s87, {t*7168}",
                                          f"buffer_load_dwordx4 v{3 + (t&1)}, {srd(sX)}, s71 offen offset:{t*1024}{' nt' if (c in eval(o.ntxc)) else s.ntx} lds"]))
            return g
        def issue(groups):
            for tag, ins in groups:
                q.issue(tag); s.emit(ins)
        def chunk(c): return dma_x(c) + s.dma_wq(c, PX[c % 4] + 16384, 2, f"C{c}", 0, 87)
        issue(chunk(0))
        s.stamp("a0")
        issue(chunk(1))
        segs = []
        capL = s.L
        if o.pro2a: s.L = []
        def cut():
            if o.pro2a:
                segs.append(s.L); s.L = []
        s.late_scalars()
        s.kv_voffs(vK, vV)
        cut()
        A("v_and_b32 v10, 31, v1")
        A("v_lshlrev_b32 v10, 8, v10")
        A("v_xor_b32 v11, v17, v20")
        for k in range(8):
            A(f"v_xor_b32 v12, {2*k}, v11")
            A(f"v_lshlrev_b32 v12, 4, v12")
            A(f"v_add_u32 v{KA+k}, v10, v12")
        cut()
        A("v_lshrrev_b32 v10, 2, v20")
        A("v_and_b32 v11, 1, v19")
        A("v_lshlrev_b32 v12, 10, v17")
        A("v_lshlrev_b32 v13, 8, v10")
        A("v_add_u32 v12, v12, v13")
        A("v_lshlrev_b32 v13, 5, v11")
        A("v_add_u32 v12, v12, v13")
        A("v_and_b32 v13, 1, v18")
        A("v_lshlrev_b32 v13, 4, v13")
        A("v_add_u32 v12, v12, v13")
        A("v_lshrrev_b32 v13, 1, v18")
        A("v_lshlrev_b32 v13, 3, v13")
        A("v_add_u32 v12, v12, v13")
        A("v_add_u32 v12, 16384, v12")
        for D in range(4):
            A(f"v_xor_b32 v13, {D}, v10")
            A(f"v_lshlrev_b32 v13, 6, v13")
            A(f"v_add_u32 v{VA+D}, v12, v13")
        cut()
        A(f"s_lshl_b32 s70, s{sW}, 13")
        A(f"s_add_u32 s70, s70, {W[0]}")
        A(f"v_lshlrev_b32 v{QA}, 4, v1")
        A(f"v_add_u32 v{QA}, s70, v{QA}")
        A(f"v_mul_u32_u24 v{OV}, 112, v17")
        A(f"v_and_b32 v12, 31, v1")
        A(f"v_add_u32 v{OV}, v{OV}, v12")
        A(f"s_lshl_b32 s70, s{sW}, 5")
        A(f"v_add_u32 v{OV}, s70, v{OV}")
        A(f"v_lshlrev_b32 v{OV}, 4, v{OV}")
        for i in range(8): A(f"v_mov_b64 {vr(NM+2*i,2)}, 0")
        A(f"v_mov_b64 {vr(LS,2)}, 0")
        A(f"s_mov_b32 s{sEV}, {hex((1<<0)|(1<<8)|(1<<1)|(1<<7))}")
        A(f"s_mov_b32 s{sPAT}, {hex(sum(1 << i for i in range(2, 17, 3)))}")
        A(f"s_mov_b32 s{sNEG}, 0xffff0000")
        A(f"s_mov_b32 s{sPOS}, 32768")
        A(f"s_mov_b32 s{sTHR}, {hex(fbits(THR))}")
        A(f"s_mov_b32 s{sSTEP}, 0")
        A(f"s_mov_b32 s{sPEND}, 0")
        A(f"s_add_u32 s{sOBASE}, s{sOBASE}, {UNIT}")
        cut()
        if o.pro2a: s.L = capL
        for k in range(8):
            n = q.wait(f"C{k}")
            if n is not None: A(f"s_waitcnt vmcnt({n})")
            s.stamp(f"aw{k}")
            A("s_barrier")
            if k + 2 < 8: issue(chunk(k + 2))
            if k == o.k0at: issue(s.dma_k(0, vK, nt, "K0"))
            if k == 5: issue(s.dma_wq(0, P[0] + 16384, 2, "Q0", 256, 87))
            if k == o.p1at: issue(s.dma_k(1, vK, nt, "KV1") + s.dma_v(1, vV, nt, "KV1"))
            if k < len(segs): s.L += segs[k]
        n0 = q.wait(["K0", "Q0"])
        assert n0 == 8, n0
        if o.prioA: A(f"s_setprio {o.prioA}")

        U = T + 4
        def fin_D(D, dst):
            L = [f"v_mul_f32 v{O+16*D+i}, v{AL}, v{O+16*D+i}" for i in range(16)]
            L += [f"v_cvt_pk_bf16_f32 v{dst+8*D+i}, v{O+16*D+2*i}, v{O+16*D+2*i+1}" for i in range(8)]
            return L
        def step(par, last=False):
            cur, prev = SB[par], SB[1 - par]
            lq = Q(15)
            L = []
            def wl(tags):
                n = lq.wait(tags)
                return [f"s_waitcnt lgkmcnt({n})"] if n is not None else []
            def kread(i):
                T_, k = divmod(i, 8); lq.issue(f"K{i}")
                return [f"ds_read_b128 {vr(WIN + 4*(i % 8), 4)}, v{KA+k} offset:{T_*8192}"]
            vorder = [divmod(f, 4) for f in range(16)] if not last else [(t, D) for D in range(4) for t in range(4)]
            def vread(f):
                t, D = vorder[f]; r = []
                for a in range(2):
                    lq.issue(f"V{f}")
                    r.append(f"ds_read_b64_tr_b16 {vr(WIN + 4*(f % 8) + 2*a, 2)}, v{VA+D} offset:{t*4096 + a*2048}")
                return r
            exp = lambda r: [f"v_exp_f32 v{r}, v{r}"]
            add = lambda r: [f"v_add_f32 v{LS + (r & 1)}, v{LS + (r & 1)}, v{r}"]
            cvt = lambda t, i: [f"v_cvt_pk_bf16_f32 v{Pr+4*t+i}, v{prev+8*t+2*i}, v{prev+8*t+2*i+1}"]
            mx = lambda d, a, b, c: [f"v_max3_f32 v{d}, v{a}, v{b}, v{c}"]
            bub = []
            for i in range(4): bub += [cvt(0, i), add(prev + 2*i), add(prev + 2*i + 1)]
            for i in range(4): bub += [cvt(1, i), add(prev + 8 + 2*i), add(prev + 8 + 2*i + 1)]
            F1 = []
            e = [exp(prev + 16 + i) for i in range(16)]
            a_ = [add(prev + 16 + i) for i in range(16)]
            c2 = [cvt(2, i) for i in range(4)]; c3 = [cvt(3, i) for i in range(4)]
            F1 += [e[0], e[1], e[2]]
            for i in range(3, 16):
                F1 += [e[i], a_[i - 3]]
                if i in (5, 7, 9, 11): F1.append(c2[(i - 5) // 2])
                if i in (13, 15): F1.append(c3[(i - 13) // 2])
            F1 += [a_[13], c3[2], a_[14], a_[15], c3[3]]
            def maxT(base, d0, d1):
                return [mx(d0, base, base+1, base+2), mx(d1, base+8, base+9, base+10),
                        mx(d0, d0, base+3, base+4), mx(d1, d1, base+11, base+12),
                        mx(d0, d0, base+5, base+6), mx(d1, d1, base+13, base+14),
                        mx(d0, d0, base+7, base+15)]
            M0 = maxT(cur, U, U+1)
            M1 = maxT(cur+16, U+2, U+3)
            fin = [mx(U, U, U+1, U+2), [f"v_max_f32 v{U}, v{U}, v{U+3}"]]
            tagp = "e" if par == 0 else "o"
            chk = [f"v_cmp_lt_f32 vcc, s{sTHR}, v{U}",
                   f"s_nop 0",
                   f"s_cbranch_vccnz A_resc{tagp} ; @takenif={sTHR}:0xff800000",
                   f"A_resc{tagp}r:"]
            advK = [[f"v_add_u32 v{KA+k}, s70, v{KA+k}"] for k in range(8)]
            advV = [[f"v_add_u32 v{VA+D}, s70, v{VA+D}"] for D in range(4)]
            exps1 = [exp(cur+i) for i in range(16)]

            L += s.ast(1)
            if not last:
                for i in range(8): L += kread(i)
                for it in bub: L += it
                nb = o.nbub
                for it in F1[:nb]: L += it
                gaps = [[] for _ in range(16)]
                spread(gaps, F1[nb:], 0, 14)
                spread(gaps, M0, 10, 16)
                for i in range(16):
                    T_, k = divmod(i, 8)
                    if i % 2 == 0: L += wl([f"K{i}", f"K{i+1}"])
                    srcC = vr(NM, 16) if k == 0 else vr(cur + 16*T_, 16)
                    L.append(f"v_mfma_f32_32x32x16_bf16 {vr(cur+16*T_,16)}, {vr(WIN+4*(i%8),4)}, {vr(Q_+4*k,4)}, {srcC}")
                    if i + 8 < 16: L += kread(i + 8)
                    if i >= 9: L += vread(i - 9)
                    L += gaps[i]
                    if i == 7: L += s.ast(2)
                L += s.ast(3)
                vissued = 7
                gaps = [[] for _ in range(16)]
                spread(gaps, advK[:4], 0, 2)
                spread(gaps, M1 + fin, 2, 5)
                gaps[5] += chk
                spread(gaps, exps1, 5, 16)
                spread(gaps, advK[4:], 6, 10)
                spread(gaps, advV, 10, 14)
                L += [f"s_bitcmp1_b32 s{sPAT}, s{sSTEP}", f"s_cselect_b32 s70, s{sNEG}, s{sPOS}"]
            else:
                for f in range(7): L += vread(f)
                vissued = 7
                for it in bub: L += it
                for it in F1: L += it
                L += rl_lines(AL)
                L.append(f"v_add_u32 v{QA}, {hex((P[0] - W[1]) & 0xffffffff)}, v{QA}")
                gaps = [[] for _ in range(16)]
                for D in range(3):
                    items = [[x] for x in fin_D(D, cur)] + [out_D(D, cur)]
                    spread(gaps, items, 4*D + 6 if D < 2 else 14, 4*D + 10 if D < 2 else 16)
            for f in range(16):
                t, D = vorder[f]
                if f % 2 == 0: L += wl([f"V{f}", f"V{f+1}"])
                L.append(f"v_mfma_f32_32x32x16_bf16 {vr(O+16*D,16)}, {vr(WIN+4*(f%8),4)}, {vr(Pr+4*t,4)}, {vr(O+16*D,16)}")
                if vissued < 16:
                    L += vread(vissued); vissued += 1
                L += gaps[f]
                if f == 6 and not last: L += s.ast(4)
            if not last:
                L += s.ast(5)
                L += [f"s_cmp_lg_u32 s{sPEND}, 0", f"s_cbranch_scc1 A_pend{tagp}", f"A_pend{tagp}r:"]
                L += s.ast(6)
                if s.opt.astamp >= 0:
                    L += ["s_waitcnt lgkmcnt(0)", f"s_cmp_eq_u32 s{sSTEP}, {s.opt.astamp}"]
                    L += [f"s_cselect_b32 s{50+i}, s{36+2*i}, s{50+i}" for i in range(7)]
            else:
                L += fin_D(3, cur) + out_D(3, cur)
            return L
        def out_D(D, src):
            L = []
            for h in range(2):
                L.append(f"ds_write_b128 v{QA}, {vr(src+8*D+4*h,4)} offset:{(2*D+h)*1024}")
            L.append(f"s_mov_b64 exec, s[{sEXLO}:{sEXHI}]")
            for h in range(2):
                L.append(f"s_add_u32 s71, s{sOBASE}, {(4*D+2*h)*1792}")
                L.append(f"buffer_store_dwordx4 {vr(src+8*D+4*h,4)}, v{OV}, {srd(sWS)}, s71 offen{s.ost1}{s.nths}")
            L.append("s_mov_b64 exec, -1")
            return L
        def rl_lines(dst):
            return [f"v_add_f32 v{T}, v{LS}, v{LS+1}", f"v_mov_b32 v{T+1}, v{T}", f"v_permlane32_swap_b32 v{T}, v{T+1}",
                    f"v_add_f32 v{T}, v{T}, v{T+1}", f"v_rcp_f32 v{dst}, v{T}"]

        s.lab("A_loop")
        for par in range(2):
            tagp = "e" if par == 0 else "o"
            s.emit(s.ast(0))
            A(f"s_bitcmp1_b32 s{sEV}, s{sSTEP}")
            A(f"s_cbranch_scc1 A_top{tagp}")
            A("s_barrier")
            s.lab(f"A_top{tagp}r")
            s.emit(step(par))
            A(f"s_add_u32 s{sSTEP}, s{sSTEP}, 1")
        A(f"s_cmp_lt_u32 s{sSTEP}, 16")
        A("s_cbranch_scc1 A_loop")
        A("s_barrier")
        s.emit(step(0, last=True))
        A("s_waitcnt lgkmcnt(0)")
        A("s_barrier")
        A(f"s_lshl_b32 s70, s{sMYB}, 7")
        A(f"s_add_u32 s70, s70, {FLAG_BASE}")
        A(f"s_lshl_b32 s71, s{sW}, 2")
        A("s_add_u32 s70, s70, s71")
        A(f"v_mov_b32 v{T}, 1")
        A("s_waitcnt vmcnt(0)")
        A("s_mov_b64 exec, 1")
        A(f"buffer_store_dword v{T}, off, {srd(sWS)}, s70{s.ofl1}")
        A("s_mov_b64 exec, -1")
        if o.wb:
            if o.wb == 1: A(f"s_cmp_eq_u32 s{sW}, 0")
            elif o.wb == 2:
                A(f"s_or_b32 s70, s{sW}, s{sHP}"); A("s_cmp_eq_u32 s70, 0")
            elif o.wb == 3:
                A(f"s_or_b32 s70, s{sW}, s{sHP}"); A(f"s_or_b32 s70, s70, s{sB}"); A("s_cmp_eq_u32 s70, 0")
            A("s_cbranch_scc0 A_nowb")
            A("buffer_wbl2 sc1")
            s.lab("A_nowb")
        if o.astamp >= 0:
            A(f"s_cmp_lg_u32 s{sW}, 0")
            A("s_cbranch_scc1 L_end")
            A("s_lshl_b32 s70, s2, 8")
            A(f"s_add_u32 s70, s70, {STAMP_BASE + 65536}")
            A("s_mov_b64 exec, 1")
            for i in range(7):
                A(f"v_mov_b32 v32, s{50+i}")
                A(f"buffer_store_dword v32, off, {srd(sWS)}, s70 offset:{4*i}")
                A("s_nop 1")
        if o.stamp and not o.dbgst and o.astamp < 0:
            A("s_waitcnt vmcnt(0) lgkmcnt(0)")
            A(f"s_cmp_lg_u32 s{sW}, 0")
            A("s_cbranch_scc1 L_end")
            n = len(o.stamps.split(","))
            A("s_lshl_b32 s70, s2, 8")
            A(f"s_add_u32 s70, s70, {STAMP_BASE + 65536}")
            A("s_mov_b64 exec, 1")
            for i in range(n):
                r = STAMP_REGS[i]
                A(f"v_mov_b32 v32, s{r}"); A(f"v_mov_b32 v33, s{r+1}")
                A(f"buffer_store_dwordx2 v[32:33], off, {srd(sWS)}, s70 offset:{8*i}")
                A("s_nop 1")
        A("s_endpgm")
        s.lab("A_tope")
        A(f"s_cmp_eq_u32 s{sSTEP}, 0")
        A("s_cbranch_scc0 A_top8")
        A(f"s_waitcnt vmcnt({n0})")
        A("s_barrier")
        for i in range(8):
            A(f"ds_read_b128 {vr(Q_+4*i,4)}, v{QA} offset:{i*1024}")
        A(f"v_add_u32 v{QA}, 16384, v{QA}")
        A("s_branch A_top8b")
        s.lab("A_top8")
        A("s_barrier")
        for i in range(8):
            A(f"ds_read_b128 {vr(Q_+4*i,4)}, v{QA} offset:{i*1024}")
        s.lab("A_top8b")
        A(f"s_mov_b32 s{sTHR}, 0xff800000")
        A("s_waitcnt lgkmcnt(0)")
        A("s_branch A_toper")
        s.lab("A_topo")
        A(f"s_cmp_eq_u32 s{sSTEP}, 1")
        A("s_cbranch_scc0 A_top7")
        A("s_waitcnt vmcnt(0)")
        A("s_barrier")
        A("s_branch A_topor")
        s.lab("A_top7")
        A(f"s_or_b32 s{sPEND}, s{sPEND}, 4")
        A("s_barrier")
        A("s_branch A_topor")
        for par in range(2):
            tagp = "e" if par == 0 else "o"; cur = SB[par]
            s.lab(f"A_resc{tagp}")
            A(f"v_mov_b32 v{U+1}, v{U}")
            A(f"v_permlane32_swap_b32 v{U}, v{U+1}")
            A(f"v_max_f32 v{U}, v{U}, v{U+1}")
            if par == 0:
                A(f"s_and_b32 s71, s{sSTEP}, 7")
                A("s_cmp_eq_u32 s71, 0")
                A("s_cbranch_scc1 A_hsw")
            A(f"v_max_f32 v{U}, 0, v{U}")
            A(f"v_sub_f32 v{U+1}, 0, v{U}")
            A(f"v_exp_f32 v{AL}, v{U+1}")
            A(f"s_or_b32 s{sPEND}, s{sPEND}, 1")
            A(f"v_mul_f32 v{LS}, v{AL}, v{LS}")
            A(f"v_mul_f32 v{LS+1}, v{AL}, v{LS+1}")
            if par == 0: s.lab("A_hswj")
            for i in range(32): A(f"v_sub_f32 v{cur+i}, v{cur+i}, v{U}")
            for i in range(16): A(f"v_sub_f32 v{NM+i}, v{NM+i}, v{U}")
            A(f"s_branch A_resc{tagp}r")
        s.lab("A_hsw")
        s.emit(rl_lines(RL))
        A(f"v_mov_b64 {vr(LS,2)}, 0")
        A(f"s_mov_b32 s{sTHR}, {hex(fbits(THR))}")
        A(f"s_lshr_b32 s{sPEND}, s{sSTEP}, 3")
        A(f"s_add_u32 s{sPEND}, s{sPEND}, 2")
        A(f"s_lshl_b32 s{sPEND}, s{sPEND}, 3")
        A("s_branch A_hswj")
        for par in range(2):
            tagp = "e" if par == 0 else "o"
            s.lab(f"A_pend{tagp}")
            if par == 0:
                A(f"s_cmp_ge_u32 s{sPEND}, 16")
                A("s_cbranch_scc1 A_pz")
            A(f"s_bitcmp1_b32 s{sPEND}, 0")
            A(f"s_cbranch_scc0 A_pn{tagp}")
            for i in range(32):
                A(f"v_pk_mul_f32 {vr(O+2*i,2)}, {vr(O+2*i,2)}, {vr(AL,2)} op_sel_hi:[1,0]")
            s.lab(f"A_pn{tagp}")
            if par == 1:
                A(f"s_bitcmp1_b32 s{sPEND}, 2")
                A(f"s_cbranch_scc0 A_pm{tagp}")
                for i in range(8): A(f"v_mov_b64 {vr(NM+2*i,2)}, 0")
                s.lab(f"A_pm{tagp}")
            A(f"s_mov_b32 s{sPEND}, 0")
            A(f"s_branch A_pend{tagp}r")
        s.lab("A_pz")
        A(f"s_cmp_eq_u32 s{sPEND}, 24")
        A("s_cbranch_scc0 A_pz2")
        A(f"v_mov_b32 v{AL}, v{RL}")
        for D in range(4):
            s.emit(fin_D(D, WIN))
            for h in range(2):
                A(f"ds_write_b128 v{QA}, {vr(WIN+8*D+4*h,4)} offset:{(2*D+h)*1024}")
        A("s_waitcnt lgkmcnt(0)")
        s.lab("A_pz2")
        for i in range(32): A(f"v_mov_b64 {vr(O+2*i,2)}, 0")
        A(f"s_mov_b32 s{sPEND}, 0")
        A(f"s_branch A_pender")

    def waveB(s):
        A = s.A; o = s.opt
        vV, vW, vK, WA, vWO, vO, vQW, vWB = 2, 3, 4, 8, 12, 13, 14, 15
        Y, vR, vOL, VP = 16, 17, 18, 20
        XA = 24
        WIN, X, ACC = 32, 64, 192
        q = Q(63)
        nt = " nt" if o.nt else ""
        PX = [P[1], P[2], W[0], W[2]]
        s.lab("L_B")
        s.stamp("b0")
        capL = s.L
        if o.pro2: s.L = []
        def mark(n):
            if o.pro2: s.L.append("@@" + n)
        A(f"v_mov_b32 v{vW}, v2")
        s.late_scalars()
        mark("clr0")
        if o.lead:
            A(f"s_or_b32 s70, s{sW}, s{sHG}")
            A(f"s_or_b32 s70, s70, s{sHP}")
            A("s_cmp_lg_u32 s70, 0")
            A("s_cbranch_scc1 B_nclr")
            A("v_mov_b64 v[28:29], 0")
            A("v_mov_b64 v[30:31], 0")
            A("v_lshlrev_b32 v23, 4, v1")
            A(f"s_lshl_b32 s70, s{sGRP}, 7")
            A(f"s_add_u32 s70, s70, {FLAG_BASE}")
            A(f"buffer_store_dwordx4 v[28:31], v23, {srd(sWS)}, s70 offen sc1")
            A(f"buffer_store_dwordx4 v[28:31], v23, {srd(sWS)}, s70 offen offset:1024 sc1")
            A("s_nop 1")
        else:
            A(f"s_cmp_lg_u32 s{sW}, 0")
            A("s_cbranch_scc1 B_nclr")
            A("v_mov_b32 v28, 0")
            A("v_lshlrev_b32 v29, 2, v1")
            A(f"s_lshl_b32 s70, s{sMYB}, 7")
            A(f"s_add_u32 s70, s70, {FLAG_BASE}")
            A("s_mov_b64 exec, 0xfff")
            A(f"buffer_store_dword v28, v29, {srd(sWS)}, s70 offen sc1")
            A("s_mov_b64 exec, -1")
        s.lab("B_nclr")
        mark("clr1")
        s.kv_voffs(vK, vV)
        A("v_lshlrev_b32 v23, 10, v19")
        A(f"v_add_u32 v{vWO}, v23, v21")
        mark("early0")
        A("v_lshrrev_b32 v22, 2, v20")
        A("v_and_b32 v23, 1, v19")
        A("v_lshlrev_b32 v28, 13, v17")
        A("v_lshlrev_b32 v29, 8, v22")
        A("v_add_u32 v28, v28, v29")
        A("v_lshlrev_b32 v29, 5, v23")
        A("v_add_u32 v28, v28, v29")
        A("v_and_b32 v29, 1, v18")
        A("v_lshlrev_b32 v29, 4, v29")
        A("v_add_u32 v28, v28, v29")
        A("v_lshrrev_b32 v29, 1, v18")
        A("v_lshlrev_b32 v29, 3, v29")
        A(f"v_add_u32 v{vWB}, v28, v29")
        A(f"v_add_u32 v28, {P[1]}, v{vWB}")
        for D in range(4):
            A(f"v_xor_b32 v29, {D}, v22")
            A(f"v_lshlrev_b32 v29, 6, v29")
            A(f"v_add_u32 v{WA+D}, v28, v29")
        A("v_and_b32 v28, 31, v1")
        A("v_lshrrev_b32 v29, 1, v28")
        A("v_and_b32 v29, 7, v29")
        A("v_lshlrev_b32 v30, 2, v17")
        A("v_xor_b32 v29, v29, v30")
        A("v_lshlrev_b32 v28, 7, v28")
        A(f"s_add_u32 s70, s{sW4K}, {P[1]}")
        A("v_add_u32 v28, s70, v28")
        for j in range(4):
            A(f"v_xor_b32 v30, {j}, v29")
            A(f"v_lshlrev_b32 v30, 4, v30")
            A(f"v_add_u32 v{XA+j}, v28, v30")
        mark("early1")
        if o.pro2: A("v_lshrrev_b32 v22, 2, v20")
        A(f"v_mul_u32_u24 v{vO}, 448, v17")
        A("v_and_b32 v29, 31, v1")
        A(f"v_add_u32 v{vO}, v{vO}, v29")
        A(f"s_lshl_b32 s70, s{sW}, 5")
        A(f"v_add_u32 v{vO}, s70, v{vO}")
        A(f"v_lshlrev_b32 v{vO}, 4, v{vO}")
        A(f"s_lshl_b32 s70, s{sW}, 13")
        A(f"s_add_u32 s70, s70, {W[0]}")
        A(f"v_lshlrev_b32 v{vQW}, 4, v1")
        A(f"v_add_u32 v{vQW}, s70, v{vQW}")
        A(f"v_lshlrev_b32 v30, 11, v17")
        A(f"v_lshlrev_b32 v29, 4, v29")
        A(f"v_add_u32 v30, v30, v29")
        A(f"s_add_u32 s70, s70, 16384")
        A(f"v_add_u32 v31, s70, v30")
        A(f"v_mov_b32 v{vOL}, v31")
        A(f"v_mov_b32 v{vR}, v22")
        A(f"v_add_u32 v{Y}, 3584, v{vO}")
        A(f"s_lshl_b32 s70, s{sHG}, 20")
        A(f"s_lshl_b32 s71, s{sW}, 14")
        A("s_add_u32 s70, s70, s71")
        A(f"s_lshl_b32 s71, s{sHP}, 8")
        A(f"s_add_u32 s{sWOB}, s70, s71")
        A(f"s_lshl_b32 s70, s{sBR}, 3")
        A(f"s_add_u32 s70, s70, s{sB}")
        A(f"s_lshl_b32 s70, s70, 5")
        A(f"s_lshl_b32 s71, s{sHG}, 3")
        A(f"s_add_u32 s70, s70, s71")
        A(f"s_mul_i32 s73, s70, {UNIT}")
        sH = (77, 79); sOH = (76, 3)
        if o.wrot:
            A(f"s_mul_i32 s76, s{sB}, 11")
            A("s_lshr_b32 s76, s76, 5")
            A("s_mul_i32 s76, s76, 3")
            A(f"s_sub_u32 s76, s{sB}, s76")
            if not (o.wrot & 1): A("s_mov_b32 s76, 0")
        for p in range(4):
            if o.wrot and p > 0:
                A(f"s_add_u32 s70, s76, {p - 1}")
                A("s_sub_u32 s71, s70, 3")
                A("s_cmp_ge_u32 s70, 3")
                A("s_cselect_b32 s70, s71, s70")
                A(f"s_add_u32 s70, s70, s{sHP}")
                A("s_add_u32 s70, s70, 1")
            else:
                A(f"s_add_u32 s70, s{sHP}, {p}")
            A("s_and_b32 s70, s70, 3")
            A(f"s_lshl_b32 s71, s70, 18")
            A(f"s_add_u32 s{sWP+p}, s{sWOB}, s71")
            A(f"s_mul_i32 s71, s70, {2*UNIT}")
            A(f"s_add_u32 s{sOP+p}, s73, s71")
        vOL2 = 19
        if o.wrot:
            A(f"s_and_b32 s70, s{sB}, 1")
            if not (o.wrot & 2): A("s_mov_b32 s70, 0")
            A(f"s_lshl_b32 s{sH[0]}, s70, 16")
            A(f"s_sub_u32 s{sH[1]}, 65536, s{sH[0]}")
            A(f"s_mul_i32 s{sOH[0]}, s70, 14336")
            A(f"s_sub_u32 s{sOH[1]}, 14336, s{sOH[0]}")
            A("s_lshl_b32 s70, s70, 12")
            A("s_sub_u32 s71, 4096, s70")
            A(f"v_add_u32 v{vOL2}, s71, v{vOL}")
            A(f"v_add_u32 v{vOL}, s70, v{vOL}")
        A(f"s_mov_b32 s74, {hex(fbits(CSCALE))}")
        sCS = 74
        sPF = 75

        def wait_vm(tags):
            n = q.wait(tags)
            if n is not None: A(f"s_waitcnt vmcnt({n})")
        def mat(groups):
            out = []
            for tag, ins in groups:
                q.issue(tag); out.append(ins)
            return out
        def dma_wo(rr, p, half, slot):
            g = []
            for t in range(4):
                pre = [f"s_add_u32 m0, s{sW4K}, {slot}"] if (t == 0 or o.ilv) else []
                if o.wrot:
                    if t == 0: pre.append(f"s_add_u32 s72, s{sWP+p}, s{sH[half]}")
                    addr = f"s_add_u32 s71, s72, {rr*131072 + t*3072}"
                else:
                    addr = f"s_add_u32 s71, s{sWP+p}, {(rr*128 + 64*half)*1024 + t*3072}"
                g.append((f"O{rr}{p}{half}", pre + [addr,
                          f"buffer_load_dwordx4 v{vWO}, {srd(sWO)}, s71 offen offset:{t*1024}{' nt' if ((rr, p, half) in eval(o.ntoc)) else s.nto} lds"]))
            return g
        def of_mem(rr, p, half, tag, store=False, clean=False, blk=None):
            g = []
            xb = 2*p + half if blk is None else blk + half
            for jj in range(2):
                va = vO if jj == 0 else Y
                if o.wrot:
                    ins = [f"s_add_u32 s72, s{sOP+p}, s{sOH[half]}"] + ([f"s_add_u32 s72, s72, {rr*UNIT}"] if rr else []) + [f"s_mov_b64 exec, s[{sEXLO}:{sEXHI}]"]
                else:
                    ins = [f"s_add_u32 s72, s{sOP+p}, {rr*UNIT + half*8*1792}", f"s_mov_b64 exec, s[{sEXLO}:{sEXHI}]"]
                for j in (2*jj, 2*jj+1):
                    op = "buffer_store_dwordx4" if store else "buffer_load_dwordx4"
                    ins.append(f"{op} {vr(X+16*xb+4*j,4)}, v{va}, {srd(sWS)}, s72 offen offset:{(j&1)*1792}{(' sc1' if clean else s.ost0) if store else [' sc1', '', ' sc0'][o.fgl]}{s.nths if (store and not clean) else s.nthl if not store else ''}")
                ins.append("s_mov_b64 exec, -1")
                g.append(((tag, tag), ins))
            return g
        def mat2(groups):
            out = []
            for tag, ins in groups:
                if isinstance(tag, tuple):
                    for t_ in tag: q.issue(t_)
                else: q.issue(tag)
                out.append(ins)
            return out

        s.wbase = P[1]; s.xbase = P[1]
        def rebase_lines(regs, cur, nb):
            d = (nb - cur) & 0xffffffff
            return [f"v_add_u32 v{r}, {hex(d)}, v{r}" for r in regs]
        def base_for(slot, cur):
            if 0 <= slot - cur <= 49152: return cur
            for b in (P[1], W[0], P[0], P[2]):
                if 0 <= slot - b <= 49152: return b
            raise ValueError
        LA = o.la
        def frags_c(lst):
            fr = []
            for ci, (slot, xb, first) in enumerate(lst):
                fr += [(slot, xb, first and j == 0, j, D, ci) for j in range(4) for D in range(4)]
            return fr
        def stream(fr, fillers=None, prologue=False, gapfill=None, LA=LA):
            n = len(fr)
            lq = Q(15)
            def xrd(ci, j):
                slot = PX[ci % 4]; r = []
                nb = base_for(slot, s.xbase)
                if nb != s.xbase:
                    r += rebase_lines(range(XA, XA+4), s.xbase, nb); s.xbase = nb
                lq.issue(f"X{ci}_{j}")
                r.append(f"ds_read_b128 {vr(X+16*ci+4*j,4)}, v{XA+j} offset:{slot - s.xbase}")
                return r
            def rd(f):
                slot, xb, zero, j, D, ci = fr[f]; r = []
                if prologue and j == 0 and D == 0 and ci > 0:
                    r += s.stamp_lines(f"x{ci}")
                    r.append("s_barrier")
                    r += s.stamp_lines(f"p{ci}")
                nb = base_for(slot, s.wbase)
                if nb != s.wbase:
                    r += rebase_lines(range(WA, WA+4), s.wbase, nb); s.wbase = nb
                if prologue and D == 0: r += xrd(ci, j)
                for a in range(2):
                    lq.issue(f)
                    r.append(f"ds_read_b64_tr_b16 {vr(WIN+4*(f%8)+2*a,2)}, v{WA+D} offset:{slot-s.wbase + j*2048 + a*1024}")
                return r
            gaps = gapfill if gapfill is not None else [[] for _ in range(n)]
            if fillers: spread(gaps, fillers, 0, n)
            for f in range(min(LA, n)): s.emit(rd(f))
            issued = min(LA, n)
            for f in range(n):
                slot, xb, zero, j, D, ci = fr[f]
                k = lq.wait([f, f + 1] if (f % 2 == 0 and f + 1 < issued) else [f])
                if k is not None: A(f"s_waitcnt lgkmcnt({k})")
                srcC = "0" if zero else vr(ACC+16*D, 16)
                A(f"v_mfma_f32_32x32x16_bf16 {vr(ACC+16*D,16)}, {vr(WIN+4*(f%8),4)}, {vr(X+16*xb+4*j,4)}, {srcC}")
                if issued < n:
                    s.emit(rd(issued)); issued += 1
                s.emit(gaps[f])
        def write_q(base_off):
            for D in range(4):
                for i in range(16):
                    A(f"v_mul_f32 v{ACC+16*D+i}, s{sCS}, v{ACC+16*D+i}")
                for h in range(2):
                    f = 2*D + h
                    for i in range(4):
                        A(f"v_cvt_pk_bf16_f32 v{WIN+4*f+i}, v{ACC+16*D+8*h+2*i}, v{ACC+16*D+8*h+2*i+1}")
                    A(f"ds_write_b128 v{vQW}, {vr(WIN+4*f,4)} offset:{base_off + f*1024}")
            A("s_waitcnt lgkmcnt(0)")
        def pair(j):
            a = s.dma_k(j, vK, nt, f"KV{j}") if j <= 15 else []
            b = s.dma_v(j, vV, nt, f"KV{j}") if j >= 1 else []
            return a + b
        def own_frags():
            for half in range(2):
                for j in range(4):
                    if o.wrot: A(f"ds_read_b128 {vr(X+16*half+4*j,4)}, v{(vOL, vOL2)[half]} offset:{j*512}")
                    else: A(f"ds_read_b128 {vr(X+16*half+4*j,4)}, v{vOL} offset:{half*4096 + j*512}")
            A("s_waitcnt lgkmcnt(0)")

        A(f"v_add_u32 v21, s{sHP}, v1")
        A("v_add_u32 v21, 1, v21")
        A("v_and_b32 v21, 3, v21")
        A(f"v_add_u32 v21, s{sGRP}, v21")
        A("v_lshlrev_b32 v21, 7, v21")
        A(f"v_add_u32 v22, s{sHG}, v1")
        A("v_add_u32 v22, 1, v22")
        A("v_and_b32 v22, 3, v22")
        A("v_lshlrev_b32 v22, 2, v22")
        A(f"s_and_b32 s71, s{sGRP}, {hex(0xfffffff0)}")
        A(f"s_add_u32 s71, s71, s{sHP}")
        A("v_add_u32 v22, s71, v22")
        A("v_lshlrev_b32 v22, 7, v22")
        A("v_lshlrev_b32 v23, 4, v1")
        A(f"s_lshl_b32 s{sPF}, s{sHG}, 20")
        A("s_lshr_b32 s70, s2, 3")
        A("s_lshl_b32 s70, s70, 15")
        A(f"s_add_u32 s{sPF}, s{sPF}, s70")
        A(f"s_lshl_b32 s70, s{sW}, 13")
        A(f"s_add_u32 s{sPF}, s{sPF}, s70")
        def wq_pieces(D, base_off):
            L = [f"v_pk_mul_f32 {vr(ACC+16*D+2*i,2)}, {vr(ACC+16*D+2*i,2)}, s[{sCS}:{sCS+1}] op_sel_hi:[1,0]" for i in range(8)]
            for h in range(2):
                L += [f"v_cvt_pk_bf16_f32 v{ACC+16*D+4*h+i}, v{ACC+16*D+8*h+2*i}, v{ACC+16*D+8*h+2*i+1}" for i in range(4)]
                L.append(f"ds_write_b128 v{vQW}, {vr(ACC+16*D+4*h,4)} offset:{base_off + (2*D+h)*1024}")
            return L
        def douter(fr):
            last = fr[-16:]
            return fr[:-16] + sorted(last, key=lambda f: (f[4], f[3]))
        def dq_gaps(gaps, base_off):
            n = len(gaps); b = n - 16
            for D in range(3):
                spread(gaps, [[x] for x in wq_pieces(D, base_off)], b + 4*D + 5, min(b + 4*D + 9, n))
        def dq_end(base_off):
            s.emit(wq_pieces(3, base_off))
            A("s_waitcnt lgkmcnt(0)")
        fr0 = frags_c([(PX[c % 4] + 16384, c, c == 0) for c in range(8)])
        gaps0 = [[] for _ in fr0]
        if o.pro2:
            setup = s.L; s.L = capL
            sec = {"pre": [], "clr": [], "mid": [], "early": [], "post": []}
            cur = "pre"
            nxt = {"@@clr0": "clr", "@@clr1": "mid", "@@early0": "early", "@@early1": "post"}
            for l in setup:
                if l in nxt: cur = nxt[l]
                else: sec[cur].append(l if l.endswith(":") else l.strip())
            s.emit(sec["early"])
            fill = [[l] for l in sec["pre"]] + [sec["clr"]] + [[l] for l in sec["mid"] + sec["post"]]
            if o.pro2 == 1: spread(gaps0, fill, 2, 108)
            else:
                for g_ in fill: s.emit(g_)
            s.stamp("bs")
        else:
            s.stamp("bs")
            A("s_waitcnt vmcnt(0)")
        s.stamp("x0")
        A("s_barrier")
        s.stamp("p0")
        if o.dq:
            fr0 = douter(fr0); dq_gaps(gaps0, 0)
        stream(fr0, None, prologue=True, gapfill=gaps0, LA=(min(LA, 5) if o.dq else LA))
        if o.dq: dq_end(0)
        else: write_q(0)
        s.stamp("pro")
        def poll_check(vsrc, shift):
            A(f"v_readfirstlane_b32 s70, v{vsrc} ; @val=POLL")
            if shift == 0:
                A("s_lshr_b32 s71, s70, 1"); A("s_or_b32 s70, s70, s71")
            else:
                A(f"s_lshr_b32 s70, s70, {shift}")
            A("s_and_b32 s70, s70, 0x01010101")
            A("s_cmp_eq_u32 s70, 0x01010101")
        def mid_poll(slow=False):
            if o.lead:
                return [f"s_and_b32 s71, s{sGRP}, {hex(0xfffffff0)}",
                        f"buffer_load_dword v24, off, {srd(sDBG)}, s71{' sc1' if (slow or o.lead == 2) else ''}"]
            return [f"s_and_b32 s71, s{sGRP}, {hex(0xfffffff0)}",
                    f"buffer_load_dwordx4 v[24:27], off, {srd(sDBG)}, s71 sc1"]
        def mid_check():
            if o.lead:
                return [f"v_readfirstlane_b32 s70, v24 ; @val=POLL",
                        "s_and_b32 s70, s70, 0x01010101", "s_cmp_eq_u32 s70, 0x01010101"]
            return [f"v_and_b32 v24, v24, v25", f"v_and_b32 v26, v26, v27",
                    f"v_and_b32 v24, v24, v26",
                    "s_nop 0",
                    f"v_readfirstlane_b32 s70, v24 ; @val=POLL",
                    "s_and_b32 s70, s70, 0x01010101", "s_cmp_eq_u32 s70, 0x01010101"]
        def wave_poll(vaddr, nm, drain=True):
            A(f"s_mov_b32 s{sSPIN}, 0")
            A("s_mov_b64 exec, 7")
            s.lab(f"B_{nm}")
            A(f"buffer_load_dword v{VP}, v{vaddr}, {srd(sWS)}, s72 offen sc1")
            A("s_waitcnt vmcnt(0)")
            A(f"v_cmp_ne_u32 vcc, 0, v{VP}")
            A("s_cmp_eq_u32 vcc_lo, 7")
            A(f"s_cbranch_scc1 B_{nm}d ; @taken")
            A(f"s_add_u32 s{sSPIN}, s{sSPIN}, 1")
            A(f"s_cmp_lt_u32 s{sSPIN}, {o.spin}")
            A(f"s_cbranch_scc1 B_{nm}")
            s.lab(f"B_{nm}d")
            A("s_mov_b64 exec, -1")
            if drain: q.drain()
        wq_slot = lambda c: (P[0] + 16384) if c == 0 else W[(c + 1) % 4]
        wq_issue = {0: [1, 2], 1: [3], 2: [4], 3: [5], 4: [6], 5: [7]}
        wo0_slot = {(0,0): W[3], (0,1): W[0], (1,0): W[0], (1,1): W[1], (2,0): W[2], (2,1): W[3], (3,0): P[1], (3,1): P[2]}
        wo0_issue = eval(o.w0i)
        wo0_use = eval(o.w0u)
        ords = eval(o.ords)
        of0_issue = eval(o.f0)
        pf_issue = {1: [0, 1], 2: [2, 3], 3: [4], 4: [5], 5: [6], 6: [7]}
        wo1_slot = {(0,0): P[2] + 16384, (0,1): P[1] + 16384, (1,0): W[0], (1,1): W[1], (2,0): W[2], (2,1): W[3], (3,0): P[1], (3,1): P[2]}
        wo1_issue = eval(o.w1i)
        FL0AT = o.fl0at if o.fl0at else o.s0at + 1
        PO0 = o.po0
        def flag_check(nm):
            A("s_mov_b64 exec, 7")
            A(f"v_cmp_ne_u32 vcc, 0, v{VP}")
            A("s_mov_b64 exec, -1")
            A("s_cmp_eq_u32 vcc_lo, 7")
            A(f"s_cbranch_scc0 B_slow{nm} ; @nottaken")
            s.lab(f"B_slow{nm}r")
        for st in range(17):
            s.stamp(f"c{st}")
            tags = [f"KV{st}"]
            if 1 <= st <= 7: tags.append(f"Q{st}")
            for (p, h) in wo0_use.get(st, []):
                tags += [f"O0{p}{h}", f"F{p}"]
            if st == FL0AT: tags.append("S0")
            if st == PO0 + 1: tags.append("POLL")
            if st == 9: tags.append("POLL0")
            if st == 8: tags.append("PF")
            wait_vm(tags)
            s.stamp(f"w{st}")
            A("s_barrier")
            s.stamp(f"s{st}")
            if st == 8:
                for d in range(4):
                    A(f"s_add_u32 s70, s{sHG}, {1 + d}")
                    A("s_and_b32 s70, s70, 3")
                    A(f"v_xor_b32 v29, s70, v{vR}")
                    A("v_lshlrev_b32 v29, 6, v29")
                    A(f"v_add_u32 v29, v29, v{vWB}")
                    A(f"v_add_u32 v{WA+d}, {s.wbase}, v29")
            pre_groups = []
            if st == 9:
                own_frags()
            g_s = []
            s0sp = eval(o.s0sp) if o.s0sp else {o.s0at: [0, 1, 2, 3]}
            assert max(s0sp) == o.s0at
            if st in s0sp:
                g_s = of_mem(0, 0, 0, "S0", store=True) + of_mem(0, 0, 1, "S0", store=True)
                g_s = [g_s[i] for i in s0sp[st]]
                if "s" not in ords.get(st, o.order): pre_groups = g_s
            if st == 2 and not (o.abl & 16):
                if o.lead:
                    A(f"s_or_b32 s70, s{sW}, s{sHG}")
                    A(f"s_or_b32 s70, s70, s{sHP}")
                    A("s_cmp_lg_u32 s70, 0")
                    A(f"s_cbranch_scc1 B_nf{st}")
                    A("v_mov_b32 v28, 0x01010101")
                    A("s_mov_b64 exec, 1")
                    A(f"buffer_store_dword v28, off, {srd(sDBG)}, s{sGRP} sc1")
                    A("s_mov_b64 exec, -1")
                else:
                    A(f"s_cmp_lg_u32 s{sW}, 0")
                    A(f"s_cbranch_scc1 B_nf{st}")
                    s.flag_store(1, 28)
                s.lab(f"B_nf{st}")
            if st == 8 and not (o.abl & 32):
                s.emit(mid_poll()); q.issue("POLL0")
            if st == 9 and not (o.abl & 32):
                s.emit(mid_check())
                A("s_cbranch_scc0 B_slow0 ; @nottaken")
                s.lab("B_slow0r")
                s.stamp("chk0")
            if st == FL0AT and not (o.abl & 4):
                A(f"s_lshl_b32 s70, s{sMYB}, 7")
                A(f"s_lshl_b32 s71, s{sW}, 2")
                A(f"s_add_u32 s71, s71, {FLAG_BASE + 32}")
                A("s_add_u32 s70, s70, s71")
                A("v_mov_b32 v28, 1")
                A("s_mov_b64 exec, 1")
                A(f"buffer_store_dword v28, off, {srd(sWS)}, s70{s.ofl0}")
                A("s_mov_b64 exec, -1")
                q.issue("FL0")
            if st == PO0 and not (o.abl & 4):
                A(f"s_lshl_b32 s72, s{sW}, 2")
                A(f"s_add_u32 s72, s72, {FLAG_BASE + 32}")
                A("s_mov_b64 exec, 7")
                A(f"buffer_load_dword v{VP}, v21, {srd(sWS)}, s72 offen sc1"); q.issue("POLL")
                A("s_mov_b64 exec, -1")
            if st == PO0 + 1 and not (o.abl & 4):
                flag_check("1")
                s.stamp("chk")
            g_kv = pair(st + 2) if st + 2 <= 16 else []
            g_w = []
            for c in wq_issue.get(st, []): g_w += s.dma_wq(c, wq_slot(c), vW, f"Q{c}", 256, 72)
            for (p, h) in wo0_issue.get(st, []): g_w += dma_wo(0, p, h, wo0_slot[(p, h)])
            g_f = []
            for p in of0_issue.get(st, []): g_f += of_mem(0, p, 0, f"F{p}") + of_mem(0, p, 1, f"F{p}")
            g_1 = []
            for (p, h) in wo1_issue.get(st, []): g_1 += dma_wo(1, p, h, wo1_slot[(p, h)])
            g_p = []
            if o.pf:
                for t in pf_issue.get(st, []):
                    g_p.append(("PF", [f"s_add_u32 s71, s{sPF}, {t*1024}",
                                       f"buffer_load_dwordx4 v[24:27], v23, {srd(sWO)}, s71 offen ; @dummy"]))
            if (o.abl & 1) and 10 <= st <= 13: g_w = []
            if st in eval(o.ablw): g_w = []
            if o.abl & 2: pre_groups = []
            if (o.abl & 8) and 8 <= st <= 13: g_kv = g_kv[:4]
            gm = {"w": g_w + g_1, "f": g_f, "k": g_kv, "p": g_p, "s": g_s}
            groups = pre_groups + sum((gm[c] for c in ords.get(st, o.order)), [])
            if o.ilv and st >= o.ilv0:
                oth = (pre_groups if o.ilv & 2 else []) + sum((gm[c] for c in o.order if c != "k"), [])
                def pos(lst, ph):
                    w = [2 if isinstance(g[0], tuple) else 1 for g in lst]; tot = sum(w); acc = 0; r = []
                    for g, x in zip(lst, w):
                        r.append(((acc + ph * x) / tot, g)); acc += x
                    return r
                a_ = pos(g_kv, 0.0) if g_kv else []
                b_ = pos(oth, 0.5) if oth else []
                merged = sorted([(x, 0, i, g) for i, (x, g) in enumerate(a_)] + [(x, 1, i, g) for i, (x, g) in enumerate(b_)], key=lambda z: (z[0], z[1], z[2]))
                groups = ([] if o.ilv & 2 else pre_groups) + [z[3] for z in merged]
            mem = mat2(groups)
            use = ([(wq_slot(st), st, st == 0)] if st <= 7 else []) + \
                  [(wo0_slot[(p, h)], 2*p + h, (p, h) == (0, 0)) for (p, h) in wo0_use.get(st, [])]
            if use and st == 7 and o.dq:
                fr7 = douter(frags_c(use)); g7 = [[] for _ in fr7]
                if not o.s7f: spread(g7, mem, 0, 16)
                dq_gaps(g7, 16384)
                stream(fr7, None, gapfill=g7)
                dq_end(16384)
                if o.s7f:
                    for g_ in mem: s.emit(g_)
            elif use:
                stream(frags_c(use), mem)
                if st == 7: write_q(16384)
            else:
                for gi, g_ in enumerate(mem):
                    s.emit(g_); s.stamp(f"m{st}_{gi}")
            s.stamp(f"d{st}")
        sPD = [sWP, sWP + 1, sWP + 2] if o.tail == 1 else [82, 83, 84]
        def addr_prep():
            A("v_lshrrev_b32 v17, 5, v1")
            A("v_mul_u32_u24 v23, 112, v17")
            A("v_and_b32 v18, 31, v1")
            A("v_add_u32 v23, v23, v18")
            A(f"s_lshl_b32 s70, s{sW}, 5")
            A("v_add_u32 v23, s70, v23")
            A("v_add_u32 v19, s70, v18")
            A("v_lshlrev_b32 v23, 4, v23")
            A(f"s_lshl_b32 s70, s{sBR}, 3")
            A(f"s_add_u32 s70, s70, s{sB}")
            A(f"s_lshl_b32 s70, s70, 2")
            A(f"s_add_u32 s70, s70, s{sHP}")
            A(f"s_mul_i32 s73, s70, {12*PSZ}")
            A(f"s_add_u32 s73, s73, {PART_BASE}")
            for d in range(3):
                A(f"s_add_u32 s70, s{sHG}, {1 + d}")
                A("s_and_b32 s70, s70, 3")
                A(f"s_mul_i32 s70, s70, {3*PSZ}")
                A(f"s_add_u32 s70, s70, s73")
                A(f"s_add_u32 s{sPD[d]}, s70, {(2-d)*PSZ}")
            A("v_lshlrev_b32 v19, 11, v19")
            A("v_lshlrev_b32 v17, 4, v17")
            A("v_add_u32 v19, v19, v17")
        def pub(d):
            r = []
            for rq in range(4):
                r.append([f"s_add_u32 s70, s{sPD[d]}, {rq*3584}", f"s_mov_b64 exec, s[{sEXLO}:{sEXHI}]",
                          f"buffer_store_dwordx4 {vr(ACC+16*d+4*rq,4)}, v23, {srd(sWS)}, s70 offen sc1{s.nths}", "s_mov_b64 exec, -1"])
            return r
        def tail1():
            used0 = set(x for v in wo0_use.values() for x in v)
            tail0 = [(p, h) for p in range(4) for h in range(2) if (p, h) not in used0]
            tailF = sorted(set(p for p, h in tail0))
            assert all((p, 0) in tail0 or (p, 0) in used0 for p in tailF)
            issued1 = set(x for v in wo1_issue.values() for x in v)
            def ftags(p): return [f"O0{p}{h}" for h in range(2) if (p, h) in tail0] + ([f"F{p}"] if p else [])
            wait_vm(ftags(tailF[0]) + ["O100"])
            A(f"v_add_u32 v{vOL}, {hex((P[0] - W[1]) & 0xffffffff)}, v{vOL}")
            if o.wrot: A(f"v_add_u32 v{vOL2}, {hex((P[0] - W[1]) & 0xffffffff)}, v{vOL2}")
            A("s_barrier")
            s.stamp("E")
            busy = set(wo0_slot[c] for c in tail0)
            avail = [c for c in [(0, 1), (1, 0), (1, 1), (2, 0), (2, 1), (3, 0), (3, 1)] if c not in issued1 and wo1_slot[c] not in busy]
            for i, p in enumerate(tailF):
                fl = mat2(sum((dma_wo(1, pp, hh, wo1_slot[(pp, hh)]) for (pp, hh) in avail), []))
                issued1 |= set(avail)
                stream(frags_c([(wo0_slot[(p, h)], 2*p + h, False) for h in range(2) if (p, h) in tail0]), fl)
                for h in range(2): busy.discard(wo0_slot[(p, h)])
                avail = [c for c in [(0, 1), (1, 0), (1, 1), (2, 0), (2, 1), (3, 0), (3, 1)] if c not in issued1 and wo1_slot[c] not in busy]
                if i + 1 < len(tailF):
                    wait_vm(ftags(tailF[i + 1]))
                    A("s_barrier")
                    s.stamp(f"T{i}")
            own_frags()
            wait_vm("O101")
            A("s_barrier")
            s.stamp("Ta")
            fl = mat2(sum((dma_wo(1, pp, hh, wo1_slot[(pp, hh)]) for (pp, hh) in avail), []))
            issued1 |= set(avail)
            assert len(issued1) == 8, issued1
            stream(frags_c([(wo1_slot[(0, 0)], 0, False), (wo1_slot[(0, 1)], 1, False)]), fl)
            s.stamp("own")
            addr_prep()
            A(f"s_lshl_b32 s72, s{sW}, 2")
            A(f"s_add_u32 s72, s72, {FLAG_BASE}")
            wave_poll(21, "poll1")
            s.stamp("poll1")
            gl = lambda p: of_mem(1, p, 0, f"G{p}") + of_mem(1, p, 1, f"G{p}")
            for g_ in mat2(gl(1) + gl(2)): s.emit(g_)
            A("s_barrier")
            ND = 3 if o.defer else 4
            for p in (1, 2):
                wait_vm(f"G{p}")
                if p == 1: s.stamp("g1")
                fl = mat2(gl(3)) if p == 1 else None
                stream([f for f in frags_c([(wo1_slot[(p, 0)], 2*p, False), (wo1_slot[(p, 1)], 2*p + 1, False)]) if f[4] < ND], fl)
            wait_vm("G3")
            fr = []
            for d in range(ND):
                for half in range(2):
                    for j in range(4):
                        fr.append((wo1_slot[(3, half)], 6 + half, False, j, d, half))
            for p in ((1, 2, 3) if o.defer else ()):
                for half in range(2):
                    for j in range(4):
                        fr.append((wo1_slot[(p, half)], 2*p + half, False, j, 3, half))
            gaps = [[] for _ in range(len(fr))]
            for d in range(3):
                spread(gaps, pub(d), 8*d + 8 + 3, 8*d + 8 + 7)
            stream(fr, None, gapfill=gaps)
        def tail2():
            used0 = set(x for v in wo0_use.values() for x in v)
            assert used0 == {(0, 0), (0, 1)}
            fdone = set(p for v in of0_issue.values() for p in v)
            assert wo1_issue == {15: [(0, 0)]}
            gb = lambda p: 2 * (p - 1)
            gl = lambda p: of_mem(1, p, 0, f"G{p}", blk=gb(p)) + of_mem(1, p, 1, f"G{p}", blk=gb(p))
            w1 = lambda cs: sum((dma_wo(1, pp, hh, wo1_slot[(pp, hh)]) for (pp, hh) in cs), [])
            fw = lambda p: frags_c([(wo0_slot[(p, 0)], 2*p, False), (wo0_slot[(p, 1)], 2*p + 1, False)])
            tags = [f"O0{p}{h}" for p in (1, 2, 3) for h in range(2)] + ["O100"]
            if PO0 == 16: tags.append("POLL")
            wait_vm(tags)
            A(f"v_add_u32 v{vOL}, {hex((P[0] - W[1]) & 0xffffffff)}, v{vOL}")
            if o.wrot: A(f"v_add_u32 v{vOL2}, {hex((P[0] - W[1]) & 0xffffffff)}, v{vOL2}")
            if PO0 == 16:
                flag_check("1")
                s.stamp("chk")
            rest = [p for p in (1, 2, 3) if p not in fdone]
            if o.fpre and PO0 == 16:
                for p in rest:
                    for g_ in mat2(of_mem(0, p, 0, f"F{p}") + of_mem(0, p, 1, f"F{p}")): s.emit(g_)
                rest = []
            A("s_barrier")
            s.stamp("E")
            for g_ in mat2(w1([(0, 1)])): s.emit(g_)
            for p in rest:
                for g_ in mat2(of_mem(0, p, 0, f"F{p}") + of_mem(0, p, 1, f"F{p}")): s.emit(g_)
            own_frags()
            stream(frags_c([(wo1_slot[(0, 0)], 0, False)]), None)
            addr_prep()
            wait_vm("O101")
            A("s_barrier")
            s.stamp("Ta")
            stream(frags_c([(wo1_slot[(0, 1)], 1, False)]), None)
            s.stamp("own")
            wait_vm("F1")
            s.stamp("f1")
            stream(fw(1), None)
            wait_vm("F2")
            A("s_barrier")
            A(f"s_lshl_b32 s72, s{sW}, 2")
            A(f"s_add_u32 s72, s72, {FLAG_BASE}")
            A("s_mov_b64 exec, 7")
            A(f"buffer_load_dword v{VP}, v21, {srd(sWS)}, s72 offen sc1"); q.issue("POLL1")
            A("s_mov_b64 exec, -1")
            s.stamp("f2")
            stream(fw(2), mat2(w1([(1, 0), (1, 1)])))
            wait_vm(["POLL1", "F3"])
            A("s_barrier")
            flag_check("2")
            s.stamp("poll1")
            for g_ in mat2(gl(1)): s.emit(g_)
            stream(fw(3), mat2(gl(2) + w1([(2, 0), (2, 1)]) + gl(3)))
            wait_vm(["O110", "O111"])
            A("s_barrier")
            s.stamp("f3")
            for g_ in mat2(w1([(3, 0), (3, 1)])): s.emit(g_)
            ND = 3 if o.defer else 4
            for p in (1, 2):
                if p == 2:
                    wait_vm(["O120", "O121", "G2"])
                    A("s_barrier")
                else:
                    wait_vm("G1")
                    s.stamp("g1")
                stream([f for f in frags_c([(wo1_slot[(p, 0)], gb(p), False), (wo1_slot[(p, 1)], gb(p) + 1, False)]) if f[4] < ND], None)
            wait_vm(["G3", "O130", "O131"])
            A("s_barrier")
            fr = []
            for d in range(ND):
                for half in range(2):
                    for j in range(4):
                        fr.append((wo1_slot[(3, half)], gb(3) + half, False, j, d, half))
            for p in ((1, 2, 3) if o.defer else ()):
                for half in range(2):
                    for j in range(4):
                        fr.append((wo1_slot[(p, half)], gb(p) + half, False, j, 3, half))
            gaps = [[] for _ in range(len(fr))]
            for d in range(3):
                spread(gaps, pub(d), 8*d + 8 + 3, 8*d + 8 + 7)
            stream(fr, None, gapfill=gaps)
        (tail1 if o.tail == 1 else tail2)()
        s.stamp("oproj")
        A(f"s_lshl_b32 s70, s{sMYB}, 7")
        A(f"s_lshl_b32 s72, s{sW}, 2")
        A(f"s_add_u32 s72, s72, {FLAG_BASE + 16}")
        A("s_add_u32 s70, s70, s72")
        A("v_mov_b32 v20, 1")
        A("s_waitcnt vmcnt(0)")
        s.stamp("pst")
        A("s_mov_b64 exec, 1")
        A(f"buffer_store_dword v20, off, {srd(sWS)}, s70 sc1")
        if o.cl & 2:
            A("s_mov_b64 exec, -1")
            for g_ in mat2(of_mem(1, 3, 0, "CL1", store=True, clean=True) + of_mem(1, 3, 1, "CL1", store=True, clean=True)): s.emit(g_)
            A(f"s_lshl_b32 s72, s{sW}, 2")
            A(f"s_add_u32 s72, s72, {FLAG_BASE + 16}")
        wave_poll(22, "poll2")
        s.stamp("poll2")
        A(f"s_mul_i32 s71, s{sHG}, {3*PSZ}")
        A("s_add_u32 s73, s73, s71")
        R = 64
        A(f"s_mov_b64 exec, s[{sEXLO}:{sEXHI}]")
        for src in range(3):
            for rq in range(4):
                A(f"s_add_u32 s70, s73, {src*PSZ + rq*3584}")
                A(f"buffer_load_dwordx4 {vr(R+16*src+4*rq,4)}, v23, {srd(sWS)}, s70 offen sc1{s.nthl}")
        A(f"s_mul_i32 s70, s{sB}, {112*2048}")
        A(f"s_lshl_b32 s71, s{sBR}, 10")
        A("s_add_u32 s70, s70, s71")
        A(f"s_lshl_b32 s71, s{sHP}, 8")
        A("s_add_u32 s70, s70, s71")
        A(f"s_lshl_b32 s71, s{sHG}, 6")
        A("s_add_u32 s70, s70, s71")
        OWN = ACC + 48
        A("s_waitcnt vmcnt(8)")
        for i in range(8): A(f"v_pk_add_f32 {vr(OWN+2*i,2)}, {vr(OWN+2*i,2)}, {vr(R+2*i,2)}")
        A("s_waitcnt vmcnt(4)")
        for i in range(8): A(f"v_pk_add_f32 {vr(OWN+2*i,2)}, {vr(OWN+2*i,2)}, {vr(R+16+2*i,2)}")
        A("s_waitcnt vmcnt(0)")
        for i in range(8): A(f"v_pk_add_f32 {vr(OWN+2*i,2)}, {vr(OWN+2*i,2)}, {vr(R+32+2*i,2)}")
        for i in range(8):
            A(f"v_cvt_pk_bf16_f32 v{32+i}, v{OWN+2*i}, v{OWN+2*i+1}")
        for h in range(2):
            A(f"buffer_store_dwordx4 {vr(32+4*h,4)}, v19, {srd(sOUT)}, s70 offen offset:{h*32}{['', ' sc1', ' sc0 sc1', ' nt', ' sc1 nt'][o.outsc]}")
        A("s_mov_b64 exec, -1")
        if o.dbgst:
            A("s_waitcnt vmcnt(0)")
            A(f"s_or_b32 s70, s{sW}, s{sHG}")
            A(f"s_or_b32 s70, s70, s{sHP}")
            A("s_cmp_lg_u32 s70, 0")
            A("s_cbranch_scc1 L_end")
            s.stamp("end"); s.stamp("cend", True)
            A("s_waitcnt lgkmcnt(0)")
            r = STAMP_REGS
            A(f"s_sub_u32 s70, s{r[5]}, s{r[1]}")
            A(f"s_sub_u32 s71, s{r[4]}, s{r[0]}")
            A(f"s_sub_u32 s72, s{r[2]}, s{r[1]}")
            A(f"s_sub_u32 s73, s{r[3]}, s{r[1]}")
            for i in range(4): A(f"v_mov_b32 v{32+i}, s{70+i}")
            A(f"s_and_b32 s71, s{sGRP}, {hex(0xfffffff0)}")
            A("s_mov_b64 exec, 1")
            A(f"buffer_store_dwordx4 v[32:35], off, {srd(sDBG)}, s71 sc1")
            A("s_endpgm")
        if o.stamp and not o.dbgst:
            A("s_waitcnt vmcnt(0)")
            A(f"s_cmp_lg_u32 s{sW}, 0")
            A("s_cbranch_scc1 L_end")
            s.stamp("end"); s.stamp("cend", True)
            A("s_waitcnt lgkmcnt(0)")
            n = len(o.stamps.split(","))
            assert n <= len(STAMP_REGS)
            A("s_lshl_b32 s70, s2, 8")
            A(f"s_add_u32 s70, s70, {STAMP_BASE}")
            A("s_mov_b64 exec, 1")
            for i in range(n):
                r = STAMP_REGS[i]
                A(f"v_mov_b32 v32, s{r}"); A(f"v_mov_b32 v33, s{r+1}")
                A(f"buffer_store_dwordx2 v[32:33], off, {srd(sWS)}, s70 offset:{8*i}")
                A("s_nop 1")
        A("s_endpgm")
        s.lab("B_slow0")
        A(f"s_mov_b32 s{sSPIN}, 0")
        s.lab("B_slow0l")
        s.emit(mid_poll(True))
        A("s_waitcnt vmcnt(0)")
        s.emit(mid_check())
        A("s_cbranch_scc1 B_slow0r ; @taken" if not (o.abl & 32) else "s_nop 0")
        A(f"s_add_u32 s{sSPIN}, s{sSPIN}, 1")
        A(f"s_cmp_lt_u32 s{sSPIN}, {o.spin}")
        A("s_cbranch_scc1 B_slow0l")
        A("s_branch B_slow0r" if not (o.abl & 32) else "s_endpgm")
        s.lab("B_slow1")
        A(f"s_lshl_b32 s72, s{sW}, 2")
        A(f"s_add_u32 s72, s72, {FLAG_BASE + 32}")
        wave_poll(21, "slow1l", drain=False)
        A("s_branch B_slow1r" if not (o.abl & 4) else "s_endpgm")
        if o.tail == 2:
            s.lab("B_slow2")
            A(f"s_lshl_b32 s72, s{sW}, 2")
            A(f"s_add_u32 s72, s72, {FLAG_BASE}")
            wave_poll(21, "slow2l", drain=False)
            A("s_branch B_slow2r")

    def build(s):
        s.common()
        s.waveA()
        s.waveB()
        s.lab("L_end")
        s.A("s_endpgm")
        lines = [l for l in s.L if l is not None]
        cfgs = []
        for wave in (0, 1, 3, 4, 5, 7):
            cfgs.append((f"wg5w{wave}", {2: 5}, {"WAVE": wave, "POLL": 0x03030303, "POLL3": 0x03030303}))
        cfgs.append(("allresc", {2: 5}, {"WAVE": 1, "ALLRESC": 1}))
        cfgs.append(("extra", {2: 256}, {"WAVE": 0}))
        lines = asmlib.finalize(lines, cfgs, verbose=True)
        return "\n".join(lines)

if __name__ == "__main__":
    ap = argparse.ArgumentParser()
    ap.add_argument("-o", default="k8.s")
    ap.add_argument("--stamp", action="store_true")
    ap.add_argument("--cyc", action="store_true")
    ap.add_argument("--stamps", default="start,pro,s8,E,poll1,oproj,pst,poll2,end")
    ap.add_argument("--nt", type=int, default=1)
    ap.add_argument("--prioA", type=int, default=0)
    for n_ in ("ntw", "ntx", "nto", "nths", "nthl"): ap.add_argument("--" + n_, type=int, default=0)
    ap.add_argument("--astamp", type=int, default=-1)
    ap.add_argument("--la", type=int, default=6)
    ap.add_argument("--nbub", type=int, default=3)
    ap.add_argument("--rot", type=int, default=1)
    ap.add_argument("--k0at", type=int, default=5)
    ap.add_argument("--p1at", type=int, default=7)
    ap.add_argument("--pf", type=int, default=0)
    ap.add_argument("--f0", default="{13: [1], 14: [2], 15: [3]}")
    ap.add_argument("--po0", type=int, default=11)
    ap.add_argument("--defer", type=int, default=1)
    ap.add_argument("--cpf", type=int, default=1)
    ap.add_argument("--dbgst", type=int, default=0)
    ap.add_argument("--g2at", type=int, default=8)
    ap.add_argument("--order", default="wfkp")
    ap.add_argument("--spin", type=int, default=131072)
    ap.add_argument("--outsc", type=int, default=0)
    ap.add_argument("--osc", type=int, default=15)
    ap.add_argument("--wb", type=int, default=0)
    ap.add_argument("--ntq", default="[]")
    ap.add_argument("--ntxc", default="[]")
    ap.add_argument("--ntoc", default="[]")
    ap.add_argument("--ablw", default="[]")
    ap.add_argument("--fl0at", type=int, default=0)
    ap.add_argument("--s0sp", default="")
    ap.add_argument("--tail", type=int, default=1)
    ap.add_argument("--s0at", type=int, default=9)
    ap.add_argument("--fpre", type=int, default=0)
    ap.add_argument("--abl", type=int, default=0)
    ap.add_argument("--w0i", default="{7: [(0,0)], 8: [(0,1)], 11: [(1,0)], 12: [(1,1), (2,0)], 13: [(2,1)], 14: [(3,0)], 15: [(3,1)]}")
    ap.add_argument("--w0u", default="{9: [(0,0)], 10: [(0,1)], 15: [(1,0), (1,1)], 16: [(2,0), (2,1)]}")
    ap.add_argument("--w1i", default="{15: [(0,0)], 16: [(1,0), (1,1)]}")
    ap.add_argument("--ords", default="{}")
    ap.add_argument("--ilv", type=int, default=0)
    ap.add_argument("--ilv0", type=int, default=1)
    ap.add_argument("--wrot", type=int, default=0)
    ap.add_argument("--cl", type=int, default=0)
    ap.add_argument("--fgl", type=int, default=0)
    ap.add_argument("--pro2", type=int, default=0)
    ap.add_argument("--dq", type=int, default=0)
    ap.add_argument("--lead", type=int, default=0)
    ap.add_argument("--pro2a", type=int, default=0)
    ap.add_argument("--s7f", type=int, default=0)
    o = ap.parse_args()
    g = Gen(o)
    body = g.build()
    k = kernel_text(NAME + "_kernel", body, vgpr=256)
    hdr = ["; @launch grid=(256,1,1) block=(512,1,1) lds=163840"]
    if o.stamp and not o.dbgst: hdr.append("; STAMPS " + o.stamps)
    if o.astamp >= 0: hdr.append("; ASTAMP")
    if o.cyc: hdr.append("; STAMPCYC")
    open(o.o, "w").write(file_text(hdr, [k]))
    print("wrote", o.o, len(body.splitlines()), "lines")
```

```python
import sys, argparse, struct
from gen_common import *
import asmlib

P = [0, 32768, 65536]
W = [98304, 114688, 131072, 147456]
UNIT = 28672
PART_BASE = 16 << 20
PSZ = 14336
STAMP_BASE = 128 << 20
FLAG_BASE = 32 << 20
THR = 12.0

sK, sV, sWQ, sX, sWS, sWO, sOUT, sDBG = 4, 8, 12, 16, 20, 24, 28, 32
sWAVE, sW, sBR, sHG, sB, sHP, sH0, sKV = 62, 63, 64, 65, 66, 67, 68, 69
sXB, sPEND = 72, 73
sEV, sTHR, sPAT = 74, 75, 76
sSTEP, sROT, sNEG, sOBASE = 77, 78, 79, 80
sW4K, sWQB, sKVW, sWOB, sGRP, sMYB = 81, 82, 83, 84, 85, 86
sSPIN = 87
sEXLO, sEXHI = 88, 89
sPOS = 3
sWP, sOP = 54, 58
STAMP_REGS = [90, 92, 94, 96, 98, 100] + list(range(36, 54, 2))

def srd(r): return f"s[{r}:{r+3}]"
def vr(a, n=1): return f"v{a}" if n == 1 else f"v[{a}:{a+n-1}]"
def fbits(x): return struct.unpack('<I', struct.pack('<f', x))[0]
CSCALE = (128 ** -0.5) * 1.4426950408889634

class Q:
    def __init__(s, maxn): s.q = []; s.maxn = maxn
    def issue(s, tag):
        s.q.append(tag)
        assert len(s.q) <= s.maxn, ("counter overflow", s.q)
    def wait(s, tags):
        if isinstance(tags, str): tags = [tags]
        last = -1
        for i, t in enumerate(s.q):
            if t in tags: last = i
        if last < 0: return None
        n = len(s.q) - 1 - last
        s.q = s.q[last + 1:]
        return n
    def drain(s): s.q = []

def spread(slots, items, start=0, end=None):
    if end is None: end = len(slots)
    n = end - start
    m = len(items)
    for i, it in enumerate(items):
        k = start + (i * n) // m
        slots[k].extend(it)

class Gen:
    def __init__(s, opt):
        s.L = []; s.opt = opt
        f = lambda b: " nt" if b else ""
        s.ntw, s.ntx, s.nto, s.nths, s.nthl = f(opt.ntw), f(opt.ntx), f(opt.nto), f(opt.nths), f(opt.nthl)
        c = lambda b: " sc1" if b else ""
        s.ost0, s.ost1, s.ofl0, s.ofl1 = c(opt.osc & 1), c(opt.osc & 2), c(opt.osc & 4), c(opt.osc & 8)
    def A(s, t): s.L.append("  " + t)
    def lab(s, n): s.L.append(n + ":")
    def emit(s, lines):
        for l in lines:
            if l.endswith(":"): s.L.append(l)
            else: s.L.append("  " + l)
    def stamp_lines(s, name, cyc=False):
        if not s.opt.stamp: return []
        names = s.opt.stamps.split(",")
        if name not in names: return []
        r = STAMP_REGS[names.index(name)]
        cyc = cyc or s.opt.cyc or (s.opt.dbgst and name not in ("start", "end"))
        return [f"s_mem{'time' if cyc else 'realtime'} s[{r}:{r+1}]"]
    def stamp(s, name, cyc=False): s.emit(s.stamp_lines(name, cyc))
    def capture(s, fn):
        old = s.L; s.L = []
        fn()
        out = [l if l.endswith(":") else l.strip() for l in s.L]; s.L = old
        return out
    def ast(s, i):
        return [f"s_memtime s[{36+2*i}:{37+2*i}]"] if s.opt.astamp >= 0 else []

    def common(s):
        A = s.A
        A("s_cmp_ge_u32 s2, 256")
        A("s_cbranch_scc1 L_end")
        s.stamp("start"); s.stamp("cstart", True)
        A("s_load_dwordx16 s[36:51], s[0:1], 0")
        A("s_load_dwordx8 s[52:59], s[0:1], 64")
        A("s_load_dwordx2 s[60:61], s[0:1], 96")
        A("v_lshrrev_b32 v1, 6, v0")
        A("s_and_b32 s70, s2, 7")
        A("s_lshr_b32 s71, s2, 3")
        if s.opt.cpf:
            KN = NAME + "_kernel"
            A("s_getpc_b64 s[84:85]")
            s.lab("L_pc")
            A(f"s_sub_u32 s84, s84, L_pc-{KN}")
            A("s_subb_u32 s85, s85, 0")
            A("v_lshlrev_b32 v2, 7, v1")
            A("v_and_b32 v3, 31, v0")
            A("v_lshlrev_b32 v3, 2, v3")
            A("v_add_u32 v2, v2, v3")
            A("s_lshl_b32 s72, s71, 10")
            A("v_add_u32 v2, s72, v2")
            A(f"v_min_u32 v2, L_end-{KN}, v2")
            if s.opt.pro2:
                A("v_and_b32 v25, 63, v0")
                A("global_load_dword v0, v2, s[84:85]")
            else: A("global_load_dword v63, v2, s[84:85]")
        A(f"v_readfirstlane_b32 s{sWAVE}, v1 ; @val=WAVE")
        A(f"s_lshr_b32 s{sBR}, s70, 2")
        A(f"s_and_b32 s{sHG}, s70, 3")
        A(f"s_and_b32 s{sB}, s71, 7")
        A(f"s_lshr_b32 s{sHP}, s71, 3")
        A(f"s_lshl_b32 s{sH0}, s{sHG}, 3")
        A(f"s_lshl_b32 s70, s{sHP}, 1")
        A(f"s_add_u32 s{sH0}, s{sH0}, s70")
        A(f"s_add_u32 s{sROT}, s{sB}, s70")
        if not s.opt.rot: A(f"s_mov_b32 s{sROT}, 0")
        A(f"s_and_b32 s{sW}, s{sWAVE}, 3")
        A(f"s_lshl_b32 s{sW4K}, s{sW}, 12")
        A("v_mov_b32 v1, v25" if (s.opt.pro2 and s.opt.cpf) else "v_and_b32 v1, 63, v0")
        A("v_lshrrev_b32 v19, 4, v1")
        A("v_and_b32 v20, 15, v1")
        A("v_lshlrev_b32 v21, 2, v19")
        A("v_xor_b32 v21, v20, v21")
        A("v_lshlrev_b32 v21, 4, v21")
        A("v_lshrrev_b32 v17, 5, v1")
        A("v_and_b32 v18, 3, v1")
        A("v_lshlrev_b32 v2, 13, v19")
        A("v_add_u32 v2, v2, v21")
        A("v_lshrrev_b32 v22, 3, v1")
        A("v_lshlrev_b32 v22, 10, v22")
        A("v_and_b32 v23, 7, v1")
        A("v_xor_b32 v23, v23, v19")
        A("v_lshlrev_b32 v24, 4, v23")
        A("v_add_u32 v3, v22, v24")
        A("v_xor_b32 v24, 64, v24")
        A("v_add_u32 v4, v22, v24")
        for r, sz in ((sK, 33554432), (sV, 33554432), (sWQ, 4194304), (sWS, 268435456), (sWO, 4194304), (sOUT, 1835008), (sDBG, 256)):
            A(f"s_mov_b32 s{r+2}, {sz}")
            A(f"s_mov_b32 s{r+3}, 0x20000")
        A(f"s_mov_b32 s{sX+3}, 0x20000")
        A(f"s_lshl_b32 s70, s{sW}, 17")
        A(f"s_lshl_b32 s71, s{sH0}, 8")
        A(f"s_add_u32 s{sWQB}, s70, s71")
        A(f"s_mul_i32 s70, s{sB}, 112")
        A(f"s_add_u32 s71, s70, 112")
        A(f"s_lshl_b32 s{sX+2}, s71, 10")
        A(f"s_lshl_b32 s71, s{sW}, 5")
        A("s_add_u32 s70, s70, s71")
        A(f"s_lshl_b32 s{sXB}, s70, 10")
        A(f"s_lshl_b32 s70, s{sB}, 5")
        A(f"s_add_u32 s70, s70, s{sH0}")
        A(f"s_lshl_b32 s{sKV}, s70, 17")
        A(f"s_add_u32 s{sKVW}, s{sKV}, s{sW4K}")
        A(f"s_cmp_eq_u32 s{sBR}, 0")
        A("s_waitcnt lgkmcnt(0)")
        s.stamp("k")
        for r, a, b in ((sX, 36, 46), (sWQ, 42, 52), (sK, 38, 48), (sV, 40, 50), (sWO, 44, 54)):
            A(f"s_cselect_b32 s{r}, s{a}, s{b}")
            A(f"s_cselect_b32 s{r+1}, s{a+1}, s{b+1}")
        for r, a in ((sOUT, 56), (sDBG, 58), (sWS, 60)):
            A(f"s_mov_b32 s{r}, s{a}")
            A(f"s_mov_b32 s{r+1}, s{a+1}")
        A(f"s_cmp_ge_u32 s{sWAVE}, 4")
        A("s_cbranch_scc1 L_B")

    def late_scalars(s):
        A = s.A
        A(f"s_lshl_b32 s70, s{sBR}, 3")
        A(f"s_add_u32 s70, s70, s{sB}")
        A(f"s_lshl_b32 s71, s70, 5")
        A(f"s_add_u32 s71, s71, s{sH0}")
        A(f"s_mul_i32 s{sOBASE}, s71, {UNIT}")
        A(f"s_lshl_b32 s71, s70, 2")
        A(f"s_add_u32 s71, s71, s{sHG}")
        A(f"s_lshl_b32 s{sGRP}, s71, 2")
        A(f"s_add_u32 s{sMYB}, s{sGRP}, s{sHP}")
        A(f"s_cmp_eq_u32 s{sW}, 3")
        A(f"s_cselect_b32 s{sEXLO}, 0xffff, -1")
        A(f"s_mov_b32 s{sEXHI}, s{sEXLO}")

    def kv_voffs(s, vK, vV):
        A = s.A
        A("v_lshlrev_b32 v22, 8, v19")
        A(f"v_add_u32 v{vV}, v22, v21")
        for t in range(4):
            A(f"v_add_u32 v23, {4*t}, v19")
            A(f"v_xor_b32 v23, v20, v23")
            A(f"v_lshlrev_b32 v23, 4, v23")
            A(f"v_add_u32 v{vK+t}, v22, v23")

    def flag_store(s, val, vtmp):
        A = s.A
        A(f"v_mov_b32 v{vtmp}, {val}")
        A("s_mov_b64 exec, 1")
        A(f"buffer_store_byte v{vtmp}, off, {srd(sDBG)}, s{sMYB} sc1")
        A("s_mov_b64 exec, -1")

    def dma_k(s, j, vK, nt, tag):
        g = []
        for t in range(4):
            pre = [f"s_add_u32 m0, s{sW4K}, {P[j%3]}", f"s_add_u32 s70, s{sKVW}, {j*16384}"] if t == 0 else []
            if t and s.opt.ilv: pre = [f"s_add_u32 m0, s{sW4K}, {P[j%3]}", "s_nop 0"]
            g.append((tag, pre + [f"buffer_load_dwordx4 v{vK+t}, {srd(sK)}, s70 offen offset:{t*1024}{nt} lds"]))
        return g
    def dma_v(s, j, vV, nt, tag):
        g = []
        for t in range(4):
            pre = [f"s_add_u32 m0, s{sW4K}, {P[j%3]+16384}", f"s_add_u32 s70, s{sKVW}, {(j-1)*16384}"] if t == 0 else []
            if t and s.opt.ilv: pre = [f"s_add_u32 m0, s{sW4K}, {P[j%3]+16384}", "s_nop 0"]
            g.append((tag, pre + [f"buffer_load_dwordx4 v{vV}, {srd(sV)}, s70 offen offset:{t*1024}{nt} lds"]))
        return g
    def kc_lines(s, c, dst):
        return [f"s_add_u32 s{dst}, s{sROT}, {c}", f"s_and_b32 s{dst}, s{dst}, 7"]
    def dma_wq(s, c, slot, vW, tag, extra, tmp):
        g = []
        for t in range(4):
            pre = []
            if t == 0:
                pre = s.kc_lines(c, tmp) + [f"s_lshl_b32 s{tmp}, s{tmp}, 19", f"s_add_u32 s{tmp}, s{tmp}, s{sWQB}",
                                            f"s_add_u32 m0, s{sW4K}, {slot}"]
            elif s.opt.ilv: pre = [f"s_add_u32 m0, s{sW4K}, {slot}"]
            g.append((tag, pre + [f"s_add_u32 s71, s{tmp}, {extra + t*31744}",
                                  f"buffer_load_dwordx4 v{vW}, {srd(sWQ)}, s71 offen offset:{t*1024}{' nt' if (tag in eval(s.opt.ntq)) else s.ntw} lds"]))
        return g

    def waveA(s):
        A = s.A; o = s.opt
        nt = " nt" if o.nt else ""
        Q_, SB, Pr, O, WIN, NM = 0, [32, 64], 96, 112, 176, 208
        KA, VA, QA, OV, RL = 224, 232, 236, 237, 238
        LS, AL, T = 240, 242, 244
        vK, vV = 5, 9
        q = Q(63)
        PX = [P[1], P[2], W[0], W[2]]
        def dma_x(c):
            g = []
            for t in range(4):
                pre = []
                if t == 0:
                    pre = s.kc_lines(c, 87) + ["s_lshl_b32 s87, s87, 7", f"s_add_u32 s87, s87, s{sXB}", f"s_add_u32 m0, s{sW4K}, {PX[c%4]}"]
                g.append((f"C{c}", pre + [f"s_add_u32 s71, s87, {t*7168}",
                                          f"buffer_load_dwordx4 v{3 + (t&1)}, {srd(sX)}, s71 offen offset:{t*1024}{' nt' if (c in eval(o.ntxc)) else s.ntx} lds"]))
            return g
        def issue(groups):
            for tag, ins in groups:
                q.issue(tag); s.emit(ins)
        def chunk(c): return dma_x(c) + s.dma_wq(c, PX[c % 4] + 16384, 2, f"C{c}", 0, 87)
        issue(chunk(0))
        s.stamp("a0")
        issue(chunk(1))
        segs = []
        capL = s.L
        if o.pro2a: s.L = []
        def cut():
            if o.pro2a:
                segs.append(s.L); s.L = []
        s.late_scalars()
        s.kv_voffs(vK, vV)
        cut()
        A("v_and_b32 v10, 31, v1")
        A("v_lshlrev_b32 v10, 8, v10")
        A("v_xor_b32 v11, v17, v20")
        for k in range(8):
            A(f"v_xor_b32 v12, {2*k}, v11")
            A(f"v_lshlrev_b32 v12, 4, v12")
            A(f"v_add_u32 v{KA+k}, v10, v12")
        cut()
        A("v_lshrrev_b32 v10, 2, v20")
        A("v_and_b32 v11, 1, v19")
        A("v_lshlrev_b32 v12, 10, v17")
        A("v_lshlrev_b32 v13, 8, v10")
        A("v_add_u32 v12, v12, v13")
        A("v_lshlrev_b32 v13, 5, v11")
        A("v_add_u32 v12, v12, v13")
        A("v_and_b32 v13, 1, v18")
        A("v_lshlrev_b32 v13, 4, v13")
        A("v_add_u32 v12, v12, v13")
        A("v_lshrrev_b32 v13, 1, v18")
        A("v_lshlrev_b32 v13, 3, v13")
        A("v_add_u32 v12, v12, v13")
        A("v_add_u32 v12, 16384, v12")
        for D in range(4):
            A(f"v_xor_b32 v13, {D}, v10")
            A(f"v_lshlrev_b32 v13, 6, v13")
            A(f"v_add_u32 v{VA+D}, v12, v13")
        cut()
        A(f"s_lshl_b32 s70, s{sW}, 13")
        A(f"s_add_u32 s70, s70, {W[0]}")
        A(f"v_lshlrev_b32 v{QA}, 4, v1")
        A(f"v_add_u32 v{QA}, s70, v{QA}")
        A(f"v_mul_u32_u24 v{OV}, 112, v17")
        A(f"v_and_b32 v12, 31, v1")
        A(f"v_add_u32 v{OV}, v{OV}, v12")
        A(f"s_lshl_b32 s70, s{sW}, 5")
        A(f"v_add_u32 v{OV}, s70, v{OV}")
        A(f"v_lshlrev_b32 v{OV}, 4, v{OV}")
        for i in range(8): A(f"v_mov_b64 {vr(NM+2*i,2)}, 0")
        A(f"v_mov_b64 {vr(LS,2)}, 0")
        A(f"s_mov_b32 s{sEV}, {hex((1<<0)|(1<<8)|(1<<1)|(1<<7))}")
        A(f"s_mov_b32 s{sPAT}, {hex(sum(1 << i for i in range(2, 17, 3)))}")
        A(f"s_mov_b32 s{sNEG}, 0xffff0000")
        A(f"s_mov_b32 s{sPOS}, 32768")
        A(f"s_mov_b32 s{sTHR}, {hex(fbits(THR))}")
        A(f"s_mov_b32 s{sSTEP}, 0")
        A(f"s_mov_b32 s{sPEND}, 0")
        A(f"s_add_u32 s{sOBASE}, s{sOBASE}, {UNIT}")
        cut()
        if o.pro2a: s.L = capL
        for k in range(8):
            n = q.wait(f"C{k}")
            if n is not None: A(f"s_waitcnt vmcnt({n})")
            s.stamp(f"aw{k}")
            A("s_barrier")
            if k + 2 < 8: issue(chunk(k + 2))
            if k == o.k0at: issue(s.dma_k(0, vK, nt, "K0"))
            if k == 5: issue(s.dma_wq(0, P[0] + 16384, 2, "Q0", 256, 87))
            if k == o.p1at: issue(s.dma_k(1, vK, nt, "KV1") + s.dma_v(1, vV, nt, "KV1"))
            if k < len(segs): s.L += segs[k]
        n0 = q.wait(["K0", "Q0"])
        assert n0 == 8, n0
        if o.prioA: A(f"s_setprio {o.prioA}")

        U = T + 4
        def fin_D(D, dst):
            L = [f"v_mul_f32 v{O+16*D+i}, v{AL}, v{O+16*D+i}" for i in range(16)]
            L += [f"v_cvt_pk_bf16_f32 v{dst+8*D+i}, v{O+16*D+2*i}, v{O+16*D+2*i+1}" for i in range(8)]
            return L
        def step(par, last=False):
            cur, prev = SB[par], SB[1 - par]
            lq = Q(15)
            L = []
            def wl(tags):
                n = lq.wait(tags)
                return [f"s_waitcnt lgkmcnt({n})"] if n is not None else []
            def kread(i):
                T_, k = divmod(i, 8); lq.issue(f"K{i}")
                return [f"ds_read_b128 {vr(WIN + 4*(i % 8), 4)}, v{KA+k} offset:{T_*8192}"]
            vorder = [divmod(f, 4) for f in range(16)] if not last else [(t, D) for D in range(4) for t in range(4)]
            def vread(f):
                t, D = vorder[f]; r = []
                for a in range(2):
                    lq.issue(f"V{f}")
                    r.append(f"ds_read_b64_tr_b16 {vr(WIN + 4*(f % 8) + 2*a, 2)}, v{VA+D} offset:{t*4096 + a*2048}")
                return r
            exp = lambda r: [f"v_exp_f32 v{r}, v{r}"]
            add = lambda r: [f"v_add_f32 v{LS + (r & 1)}, v{LS + (r & 1)}, v{r}"]
            cvt = lambda t, i: [f"v_cvt_pk_bf16_f32 v{Pr+4*t+i}, v{prev+8*t+2*i}, v{prev+8*t+2*i+1}"]
            mx = lambda d, a, b, c: [f"v_max3_f32 v{d}, v{a}, v{b}, v{c}"]
            bub = []
            for i in range(4): bub += [cvt(0, i), add(prev + 2*i), add(prev + 2*i + 1)]
            for i in range(4): bub += [cvt(1, i), add(prev + 8 + 2*i), add(prev + 8 + 2*i + 1)]
            F1 = []
            e = [exp(prev + 16 + i) for i in range(16)]
            a_ = [add(prev + 16 + i) for i in range(16)]
            c2 = [cvt(2, i) for i in range(4)]; c3 = [cvt(3, i) for i in range(4)]
            F1 += [e[0], e[1], e[2]]
            for i in range(3, 16):
                F1 += [e[i], a_[i - 3]]
                if i in (5, 7, 9, 11): F1.append(c2[(i - 5) // 2])
                if i in (13, 15): F1.append(c3[(i - 13) // 2])
            F1 += [a_[13], c3[2], a_[14], a_[15], c3[3]]
            def maxT(base, d0, d1):
                return [mx(d0, base, base+1, base+2), mx(d1, base+8, base+9, base+10),
                        mx(d0, d0, base+3, base+4), mx(d1, d1, base+11, base+12),
                        mx(d0, d0, base+5, base+6), mx(d1, d1, base+13, base+14),
                        mx(d0, d0, base+7, base+15)]
            M0 = maxT(cur, U, U+1)
            M1 = maxT(cur+16, U+2, U+3)
            fin = [mx(U, U, U+1, U+2), [f"v_max_f32 v{U}, v{U}, v{U+3}"]]
            tagp = "e" if par == 0 else "o"
            chk = [f"v_cmp_lt_f32 vcc, s{sTHR}, v{U}",
                   f"s_nop 0",
                   f"s_cbranch_vccnz A_resc{tagp} ; @takenif={sTHR}:0xff800000",
                   f"A_resc{tagp}r:"]
            advK = [[f"v_add_u32 v{KA+k}, s70, v{KA+k}"] for k in range(8)]
            advV = [[f"v_add_u32 v{VA+D}, s70, v{VA+D}"] for D in range(4)]
            exps1 = [exp(cur+i) for i in range(16)]

            L += s.ast(1)
            if not last:
                for i in range(8): L += kread(i)
                for it in bub: L += it
                nb = o.nbub
                for it in F1[:nb]: L += it
                gaps = [[] for _ in range(16)]
                spread(gaps, F1[nb:], 0, 14)
                spread(gaps, M0, 10, 16)
                for i in range(16):
                    T_, k = divmod(i, 8)
                    if i % 2 == 0: L += wl([f"K{i}", f"K{i+1}"])
                    srcC = vr(NM, 16) if k == 0 else vr(cur + 16*T_, 16)
                    L.append(f"v_mfma_f32_32x32x16_bf16 {vr(cur+16*T_,16)}, {vr(WIN+4*(i%8),4)}, {vr(Q_+4*k,4)}, {srcC}")
                    if i + 8 < 16: L += kread(i + 8)
                    if i >= 9: L += vread(i - 9)
                    L += gaps[i]
                    if i == 7: L += s.ast(2)
                L += s.ast(3)
                vissued = 7
                gaps = [[] for _ in range(16)]
                spread(gaps, advK[:4], 0, 2)
                spread(gaps, M1 + fin, 2, 5)
                gaps[5] += chk
                spread(gaps, exps1, 5, 16)
                spread(gaps, advK[4:], 6, 10)
                spread(gaps, advV, 10, 14)
                L += [f"s_bitcmp1_b32 s{sPAT}, s{sSTEP}", f"s_cselect_b32 s70, s{sNEG}, s{sPOS}"]
            else:
                for f in range(7): L += vread(f)
                vissued = 7
                for it in bub: L += it
                for it in F1: L += it
                L += rl_lines(AL)
                L.append(f"v_add_u32 v{QA}, {hex((P[0] - W[1]) & 0xffffffff)}, v{QA}")
                gaps = [[] for _ in range(16)]
                for D in range(3):
                    items = [[x] for x in fin_D(D, cur)] + [out_D(D, cur)]
                    spread(gaps, items, 4*D + 6 if D < 2 else 14, 4*D + 10 if D < 2 else 16)
            for f in range(16):
                t, D = vorder[f]
                if f % 2 == 0: L += wl([f"V{f}", f"V{f+1}"])
                L.append(f"v_mfma_f32_32x32x16_bf16 {vr(O+16*D,16)}, {vr(WIN+4*(f%8),4)}, {vr(Pr+4*t,4)}, {vr(O+16*D,16)}")
                if vissued < 16:
                    L += vread(vissued); vissued += 1
                L += gaps[f]
                if f == 6 and not last: L += s.ast(4)
            if not last:
                L += s.ast(5)
                L += [f"s_cmp_lg_u32 s{sPEND}, 0", f"s_cbranch_scc1 A_pend{tagp}", f"A_pend{tagp}r:"]
                L += s.ast(6)
                if s.opt.astamp >= 0:
                    L += ["s_waitcnt lgkmcnt(0)", f"s_cmp_eq_u32 s{sSTEP}, {s.opt.astamp}"]
                    L += [f"s_cselect_b32 s{50+i}, s{36+2*i}, s{50+i}" for i in range(7)]
            else:
                L += fin_D(3, cur) + out_D(3, cur)
            return L
        def out_D(D, src):
            L = []
            for h in range(2):
                L.append(f"ds_write_b128 v{QA}, {vr(src+8*D+4*h,4)} offset:{(2*D+h)*1024}")
            L.append(f"s_mov_b64 exec, s[{sEXLO}:{sEXHI}]")
            for h in range(2):
                L.append(f"s_add_u32 s71, s{sOBASE}, {(4*D+2*h)*1792}")
                L.append(f"buffer_store_dwordx4 {vr(src+8*D+4*h,4)}, v{OV}, {srd(sWS)}, s71 offen{s.ost1}{s.nths}")
            L.append("s_mov_b64 exec, -1")
            return L
        def rl_lines(dst):
            return [f"v_add_f32 v{T}, v{LS}, v{LS+1}", f"v_mov_b32 v{T+1}, v{T}", f"v_permlane32_swap_b32 v{T}, v{T+1}",
                    f"v_add_f32 v{T}, v{T}, v{T+1}", f"v_rcp_f32 v{dst}, v{T}"]

        s.lab("A_loop")
        for par in range(2):
            tagp = "e" if par == 0 else "o"
            s.emit(s.ast(0))
            A(f"s_bitcmp1_b32 s{sEV}, s{sSTEP}")
            A(f"s_cbranch_scc1 A_top{tagp}")
            A("s_barrier")
            s.lab(f"A_top{tagp}r")
            s.emit(step(par))
            A(f"s_add_u32 s{sSTEP}, s{sSTEP}, 1")
        A(f"s_cmp_lt_u32 s{sSTEP}, 16")
        A("s_cbranch_scc1 A_loop")
        A("s_barrier")
        s.emit(step(0, last=True))
        A("s_waitcnt lgkmcnt(0)")
        A("s_barrier")
        A(f"s_lshl_b32 s70, s{sMYB}, 7")
        A(f"s_add_u32 s70, s70, {FLAG_BASE}")
        A(f"s_lshl_b32 s71, s{sW}, 2")
        A("s_add_u32 s70, s70, s71")
        A(f"v_mov_b32 v{T}, 1")
        A("s_waitcnt vmcnt(0)")
        A("s_mov_b64 exec, 1")
        A(f"buffer_store_dword v{T}, off, {srd(sWS)}, s70{s.ofl1}")
        A("s_mov_b64 exec, -1")
        if o.wb:
            if o.wb == 1: A(f"s_cmp_eq_u32 s{sW}, 0")
            elif o.wb == 2:
                A(f"s_or_b32 s70, s{sW}, s{sHP}"); A("s_cmp_eq_u32 s70, 0")
            elif o.wb == 3:
                A(f"s_or_b32 s70, s{sW}, s{sHP}"); A(f"s_or_b32 s70, s70, s{sB}"); A("s_cmp_eq_u32 s70, 0")
            A("s_cbranch_scc0 A_nowb")
            A("buffer_wbl2 sc1")
            s.lab("A_nowb")
        if o.astamp >= 0:
            A(f"s_cmp_lg_u32 s{sW}, 0")
            A("s_cbranch_scc1 L_end")
            A("s_lshl_b32 s70, s2, 8")
            A(f"s_add_u32 s70, s70, {STAMP_BASE + 65536}")
            A("s_mov_b64 exec, 1")
            for i in range(7):
                A(f"v_mov_b32 v32, s{50+i}")
                A(f"buffer_store_dword v32, off, {srd(sWS)}, s70 offset:{4*i}")
                A("s_nop 1")
        if o.stamp and not o.dbgst and o.astamp < 0:
            A("s_waitcnt vmcnt(0) lgkmcnt(0)")
            A(f"s_cmp_lg_u32 s{sW}, 0")
            A("s_cbranch_scc1 L_end")
            n = len(o.stamps.split(","))
            A("s_lshl_b32 s70, s2, 8")
            A(f"s_add_u32 s70, s70, {STAMP_BASE + 65536}")
            A("s_mov_b64 exec, 1")
            for i in range(n):
                r = STAMP_REGS[i]
                A(f"v_mov_b32 v32, s{r}"); A(f"v_mov_b32 v33, s{r+1}")
                A(f"buffer_store_dwordx2 v[32:33], off, {srd(sWS)}, s70 offset:{8*i}")
                A("s_nop 1")
        A("s_endpgm")
        s.lab("A_tope")
        A(f"s_cmp_eq_u32 s{sSTEP}, 0")
        A("s_cbranch_scc0 A_top8")
        A(f"s_waitcnt vmcnt({n0})")
        A("s_barrier")
        for i in range(8):
            A(f"ds_read_b128 {vr(Q_+4*i,4)}, v{QA} offset:{i*1024}")
        A(f"v_add_u32 v{QA}, 16384, v{QA}")
        A("s_branch A_top8b")
        s.lab("A_top8")
        A("s_barrier")
        for i in range(8):
            A(f"ds_read_b128 {vr(Q_+4*i,4)}, v{QA} offset:{i*1024}")
        s.lab("A_top8b")
        A(f"s_mov_b32 s{sTHR}, 0xff800000")
        A("s_waitcnt lgkmcnt(0)")
        A("s_branch A_toper")
        s.lab("A_topo")
        A(f"s_cmp_eq_u32 s{sSTEP}, 1")
        A("s_cbranch_scc0 A_top7")
        A("s_waitcnt vmcnt(0)")
        A("s_barrier")
        A("s_branch A_topor")
        s.lab("A_top7")
        A(f"s_or_b32 s{sPEND}, s{sPEND}, 4")
        A("s_barrier")
        A("s_branch A_topor")
        for par in range(2):
            tagp = "e" if par == 0 else "o"; cur = SB[par]
            s.lab(f"A_resc{tagp}")
            A(f"v_mov_b32 v{U+1}, v{U}")
            A(f"v_permlane32_swap_b32 v{U}, v{U+1}")
            A(f"v_max_f32 v{U}, v{U}, v{U+1}")
            if par == 0:
                A(f"s_and_b32 s71, s{sSTEP}, 7")
                A("s_cmp_eq_u32 s71, 0")
                A("s_cbranch_scc1 A_hsw")
            A(f"v_max_f32 v{U}, 0, v{U}")
            A(f"v_sub_f32 v{U+1}, 0, v{U}")
            A(f"v_exp_f32 v{AL}, v{U+1}")
            A(f"s_or_b32 s{sPEND}, s{sPEND}, 1")
            A(f"v_mul_f32 v{LS}, v{AL}, v{LS}")
            A(f"v_mul_f32 v{LS+1}, v{AL}, v{LS+1}")
            if par == 0: s.lab("A_hswj")
            for i in range(32): A(f"v_sub_f32 v{cur+i}, v{cur+i}, v{U}")
            for i in range(16): A(f"v_sub_f32 v{NM+i}, v{NM+i}, v{U}")
            A(f"s_branch A_resc{tagp}r")
        s.lab("A_hsw")
        s.emit(rl_lines(RL))
        A(f"v_mov_b64 {vr(LS,2)}, 0")
        A(f"s_mov_b32 s{sTHR}, {hex(fbits(THR))}")
        A(f"s_lshr_b32 s{sPEND}, s{sSTEP}, 3")
        A(f"s_add_u32 s{sPEND}, s{sPEND}, 2")
        A(f"s_lshl_b32 s{sPEND}, s{sPEND}, 3")
        A("s_branch A_hswj")
        for par in range(2):
            tagp = "e" if par == 0 else "o"
            s.lab(f"A_pend{tagp}")
            if par == 0:
                A(f"s_cmp_ge_u32 s{sPEND}, 16")
                A("s_cbranch_scc1 A_pz")
            A(f"s_bitcmp1_b32 s{sPEND}, 0")
            A(f"s_cbranch_scc0 A_pn{tagp}")
            for i in range(32):
                A(f"v_pk_mul_f32 {vr(O+2*i,2)}, {vr(O+2*i,2)}, {vr(AL,2)} op_sel_hi:[1,0]")
            s.lab(f"A_pn{tagp}")
            if par == 1:
                A(f"s_bitcmp1_b32 s{sPEND}, 2")
                A(f"s_cbranch_scc0 A_pm{tagp}")
                for i in range(8): A(f"v_mov_b64 {vr(NM+2*i,2)}, 0")
                s.lab(f"A_pm{tagp}")
            A(f"s_mov_b32 s{sPEND}, 0")
            A(f"s_branch A_pend{tagp}r")
        s.lab("A_pz")
        A(f"s_cmp_eq_u32 s{sPEND}, 24")
        A("s_cbranch_scc0 A_pz2")
        A(f"v_mov_b32 v{AL}, v{RL}")
        for D in range(4):
            s.emit(fin_D(D, WIN))
            for h in range(2):
                A(f"ds_write_b128 v{QA}, {vr(WIN+8*D+4*h,4)} offset:{(2*D+h)*1024}")
        A("s_waitcnt lgkmcnt(0)")
        s.lab("A_pz2")
        for i in range(32): A(f"v_mov_b64 {vr(O+2*i,2)}, 0")
        A(f"s_mov_b32 s{sPEND}, 0")
        A(f"s_branch A_pender")

    def waveB(s):
        A = s.A; o = s.opt
        vV, vW, vK, WA, vWO, vO, vQW, vWB = 2, 3, 4, 8, 12, 13, 14, 15
        Y, vR, vOL, VP = 16, 17, 18, 20
        XA = 24
        WIN, X, ACC = 32, 64, 192
        q = Q(63)
        nt = " nt" if o.nt else ""
        PX = [P[1], P[2], W[0], W[2]]
        s.lab("L_B")
        s.stamp("b0")
        capL = s.L
        if o.pro2: s.L = []
        def mark(n):
            if o.pro2: s.L.append("@@" + n)
        A(f"v_mov_b32 v{vW}, v2")
        s.late_scalars()
        mark("clr0")
        if o.lead:
            A(f"s_or_b32 s70, s{sW}, s{sHG}")
            A(f"s_or_b32 s70, s70, s{sHP}")
            A("s_cmp_lg_u32 s70, 0")
            A("s_cbranch_scc1 B_nclr")
            A("v_mov_b64 v[28:29], 0")
            A("v_mov_b64 v[30:31], 0")
            A("v_lshlrev_b32 v23, 4, v1")
            A(f"s_lshl_b32 s70, s{sGRP}, 7")
            A(f"s_add_u32 s70, s70, {FLAG_BASE}")
            A(f"buffer_store_dwordx4 v[28:31], v23, {srd(sWS)}, s70 offen sc1")
            A(f"buffer_store_dwordx4 v[28:31], v23, {srd(sWS)}, s70 offen offset:1024 sc1")
            A("s_nop 1")
        else:
            A(f"s_cmp_lg_u32 s{sW}, 0")
            A("s_cbranch_scc1 B_nclr")
            A("v_mov_b32 v28, 0")
            A("v_lshlrev_b32 v29, 2, v1")
            A(f"s_lshl_b32 s70, s{sMYB}, 7")
            A(f"s_add_u32 s70, s70, {FLAG_BASE}")
            A("s_mov_b64 exec, 0xfff")
            A(f"buffer_store_dword v28, v29, {srd(sWS)}, s70 offen sc1")
            A("s_mov_b64 exec, -1")
        s.lab("B_nclr")
        mark("clr1")
        s.kv_voffs(vK, vV)
        A("v_lshlrev_b32 v23, 10, v19")
        A(f"v_add_u32 v{vWO}, v23, v21")
        mark("early0")
        A("v_lshrrev_b32 v22, 2, v20")
        A("v_and_b32 v23, 1, v19")
        A("v_lshlrev_b32 v28, 13, v17")
        A("v_lshlrev_b32 v29, 8, v22")
        A("v_add_u32 v28, v28, v29")
        A("v_lshlrev_b32 v29, 5, v23")
        A("v_add_u32 v28, v28, v29")
        A("v_and_b32 v29, 1, v18")
        A("v_lshlrev_b32 v29, 4, v29")
        A("v_add_u32 v28, v28, v29")
        A("v_lshrrev_b32 v29, 1, v18")
        A("v_lshlrev_b32 v29, 3, v29")
        A(f"v_add_u32 v{vWB}, v28, v29")
        A(f"v_add_u32 v28, {P[1]}, v{vWB}")
        for D in range(4):
            A(f"v_xor_b32 v29, {D}, v22")
            A(f"v_lshlrev_b32 v29, 6, v29")
            A(f"v_add_u32 v{WA+D}, v28, v29")
        A("v_and_b32 v28, 31, v1")
        A("v_lshrrev_b32 v29, 1, v28")
        A("v_and_b32 v29, 7, v29")
        A("v_lshlrev_b32 v30, 2, v17")
        A("v_xor_b32 v29, v29, v30")
        A("v_lshlrev_b32 v28, 7, v28")
        A(f"s_add_u32 s70, s{sW4K}, {P[1]}")
        A("v_add_u32 v28, s70, v28")
        for j in range(4):
            A(f"v_xor_b32 v30, {j}, v29")
            A(f"v_lshlrev_b32 v30, 4, v30")
            A(f"v_add_u32 v{XA+j}, v28, v30")
        mark("early1")
        if o.pro2: A("v_lshrrev_b32 v22, 2, v20")
        A(f"v_mul_u32_u24 v{vO}, 448, v17")
        A("v_and_b32 v29, 31, v1")
        A(f"v_add_u32 v{vO}, v{vO}, v29")
        A(f"s_lshl_b32 s70, s{sW}, 5")
        A(f"v_add_u32 v{vO}, s70, v{vO}")
        A(f"v_lshlrev_b32 v{vO}, 4, v{vO}")
        A(f"s_lshl_b32 s70, s{sW}, 13")
        A(f"s_add_u32 s70, s70, {W[0]}")
        A(f"v_lshlrev_b32 v{vQW}, 4, v1")
        A(f"v_add_u32 v{vQW}, s70, v{vQW}")
        A(f"v_lshlrev_b32 v30, 11, v17")
        A(f"v_lshlrev_b32 v29, 4, v29")
        A(f"v_add_u32 v30, v30, v29")
        A(f"s_add_u32 s70, s70, 16384")
        A(f"v_add_u32 v31, s70, v30")
        A(f"v_mov_b32 v{vOL}, v31")
        A(f"v_mov_b32 v{vR}, v22")
        A(f"v_add_u32 v{Y}, 3584, v{vO}")
        A(f"s_lshl_b32 s70, s{sHG}, 20")
        A(f"s_lshl_b32 s71, s{sW}, 14")
        A("s_add_u32 s70, s70, s71")
        A(f"s_lshl_b32 s71, s{sHP}, 8")
        A(f"s_add_u32 s{sWOB}, s70, s71")
        A(f"s_lshl_b32 s70, s{sBR}, 3")
        A(f"s_add_u32 s70, s70, s{sB}")
        A(f"s_lshl_b32 s70, s70, 5")
        A(f"s_lshl_b32 s71, s{sHG}, 3")
        A(f"s_add_u32 s70, s70, s71")
        A(f"s_mul_i32 s73, s70, {UNIT}")
        sH = (77, 79); sOH = (76, 3)
        if o.wrot:
            A(f"s_mul_i32 s76, s{sB}, 11")
            A("s_lshr_b32 s76, s76, 5")
            A("s_mul_i32 s76, s76, 3")
            A(f"s_sub_u32 s76, s{sB}, s76")
            if not (o.wrot & 1): A("s_mov_b32 s76, 0")
        for p in range(4):
            if o.wrot and p > 0:
                A(f"s_add_u32 s70, s76, {p - 1}")
                A("s_sub_u32 s71, s70, 3")
                A("s_cmp_ge_u32 s70, 3")
                A("s_cselect_b32 s70, s71, s70")
                A(f"s_add_u32 s70, s70, s{sHP}")
                A("s_add_u32 s70, s70, 1")
            else:
                A(f"s_add_u32 s70, s{sHP}, {p}")
            A("s_and_b32 s70, s70, 3")
            A(f"s_lshl_b32 s71, s70, 18")
            A(f"s_add_u32 s{sWP+p}, s{sWOB}, s71")
            A(f"s_mul_i32 s71, s70, {2*UNIT}")
            A(f"s_add_u32 s{sOP+p}, s73, s71")
        vOL2 = 19
        if o.wrot:
            A(f"s_and_b32 s70, s{sB}, 1")
            if not (o.wrot & 2): A("s_mov_b32 s70, 0")
            A(f"s_lshl_b32 s{sH[0]}, s70, 16")
            A(f"s_sub_u32 s{sH[1]}, 65536, s{sH[0]}")
            A(f"s_mul_i32 s{sOH[0]}, s70, 14336")
            A(f"s_sub_u32 s{sOH[1]}, 14336, s{sOH[0]}")
            A("s_lshl_b32 s70, s70, 12")
            A("s_sub_u32 s71, 4096, s70")
            A(f"v_add_u32 v{vOL2}, s71, v{vOL}")
            A(f"v_add_u32 v{vOL}, s70, v{vOL}")
        A(f"s_mov_b32 s74, {hex(fbits(CSCALE))}")
        sCS = 74
        sPF = 75

        def wait_vm(tags):
            n = q.wait(tags)
            if n is not None: A(f"s_waitcnt vmcnt({n})")
        def mat(groups):
            out = []
            for tag, ins in groups:
                q.issue(tag); out.append(ins)
            return out
        def dma_wo(rr, p, half, slot):
            g = []
            tagp, tagh = p, half
            if (o.abl & 64) and rr == 0 and p >= 1: p, half = 1, 1
            if (o.abl & 128) and rr == 0 and p >= 1: p, half = 0, 1
            for t in range(4):
                pre = [f"s_add_u32 m0, s{sW4K}, {slot}"] if (t == 0 or o.ilv) else []
                if o.wrot:
                    if t == 0: pre.append(f"s_add_u32 s72, s{sWP+p}, s{sH[half]}")
                    addr = f"s_add_u32 s71, s72, {rr*131072 + t*3072}"
                else:
                    addr = f"s_add_u32 s71, s{sWP+p}, {(rr*128 + 64*half)*1024 + t*3072}"
                g.append((f"O{rr}{tagp}{tagh}", pre + [addr,
                          f"buffer_load_dwordx4 v{vWO}, {srd(sWO)}, s71 offen offset:{t*1024}{' nt' if ((rr, p, half) in eval(o.ntoc)) else s.nto} lds"]))
            return g
        def of_mem(rr, p, half, tag, store=False, clean=False, blk=None):
            g = []
            xb = 2*p + half if blk is None else blk + half
            for jj in range(2):
                va = vO if jj == 0 else Y
                if o.wrot:
                    ins = [f"s_add_u32 s72, s{sOP+p}, s{sOH[half]}"] + ([f"s_add_u32 s72, s72, {rr*UNIT}"] if rr else []) + [f"s_mov_b64 exec, s[{sEXLO}:{sEXHI}]"]
                else:
                    ins = [f"s_add_u32 s72, s{sOP+p}, {rr*UNIT + half*8*1792}", f"s_mov_b64 exec, s[{sEXLO}:{sEXHI}]"]
                for j in (2*jj, 2*jj+1):
                    op = "buffer_store_dwordx4" if store else "buffer_load_dwordx4"
                    ins.append(f"{op} {vr(X+16*xb+4*j,4)}, v{va}, {srd(sWS)}, s72 offen offset:{(j&1)*1792}{(' sc1' if clean else s.ost0) if store else [' sc1', '', ' sc0'][o.fgl]}{s.nths if (store and not clean) else s.nthl if not store else ''}")
                ins.append("s_mov_b64 exec, -1")
                g.append(((tag, tag), ins))
            return g
        def mat2(groups):
            out = []
            for tag, ins in groups:
                if isinstance(tag, tuple):
                    for t_ in tag: q.issue(t_)
                else: q.issue(tag)
                out.append(ins)
            return out

        s.wbase = P[1]; s.xbase = P[1]
        def rebase_lines(regs, cur, nb):
            d = (nb - cur) & 0xffffffff
            return [f"v_add_u32 v{r}, {hex(d)}, v{r}" for r in regs]
        def base_for(slot, cur):
            if 0 <= slot - cur <= 49152: return cur
            for b in (P[1], W[0], P[0], P[2]):
                if 0 <= slot - b <= 49152: return b
            raise ValueError
        LA = o.la
        def frags_c(lst):
            fr = []
            for ci, (slot, xb, first) in enumerate(lst):
                fr += [(slot, xb, first and j == 0, j, D, ci) for j in range(4) for D in range(4)]
            return fr
        def stream(fr, fillers=None, prologue=False, gapfill=None, LA=LA):
            n = len(fr)
            lq = Q(15)
            def xrd(ci, j):
                slot = PX[ci % 4]; r = []
                nb = base_for(slot, s.xbase)
                if nb != s.xbase:
                    r += rebase_lines(range(XA, XA+4), s.xbase, nb); s.xbase = nb
                lq.issue(f"X{ci}_{j}")
                r.append(f"ds_read_b128 {vr(X+16*ci+4*j,4)}, v{XA+j} offset:{slot - s.xbase}")
                return r
            def rd(f):
                slot, xb, zero, j, D, ci = fr[f]; r = []
                if prologue and j == 0 and D == 0 and ci > 0:
                    r += s.stamp_lines(f"x{ci}")
                    r.append("s_barrier")
                    r += s.stamp_lines(f"p{ci}")
                nb = base_for(slot, s.wbase)
                if nb != s.wbase:
                    r += rebase_lines(range(WA, WA+4), s.wbase, nb); s.wbase = nb
                if prologue and D == 0: r += xrd(ci, j)
                for a in range(2):
                    lq.issue(f)
                    r.append(f"ds_read_b64_tr_b16 {vr(WIN+4*(f%8)+2*a,2)}, v{WA+D} offset:{slot-s.wbase + j*2048 + a*1024}")
                return r
            gaps = gapfill if gapfill is not None else [[] for _ in range(n)]
            if fillers: spread(gaps, fillers, 0, n)
            for f in range(min(LA, n)): s.emit(rd(f))
            issued = min(LA, n)
            for f in range(n):
                slot, xb, zero, j, D, ci = fr[f]
                k = lq.wait([f, f + 1] if (f % 2 == 0 and f + 1 < issued) else [f])
                if k is not None: A(f"s_waitcnt lgkmcnt({k})")
                srcC = "0" if zero else vr(ACC+16*D, 16)
                A(f"v_mfma_f32_32x32x16_bf16 {vr(ACC+16*D,16)}, {vr(WIN+4*(f%8),4)}, {vr(X+16*xb+4*j,4)}, {srcC}")
                if issued < n:
                    s.emit(rd(issued)); issued += 1
                s.emit(gaps[f])
        def write_q(base_off):
            for D in range(4):
                for i in range(16):
                    A(f"v_mul_f32 v{ACC+16*D+i}, s{sCS}, v{ACC+16*D+i}")
                for h in range(2):
                    f = 2*D + h
                    for i in range(4):
                        A(f"v_cvt_pk_bf16_f32 v{WIN+4*f+i}, v{ACC+16*D+8*h+2*i}, v{ACC+16*D+8*h+2*i+1}")
                    A(f"ds_write_b128 v{vQW}, {vr(WIN+4*f,4)} offset:{base_off + f*1024}")
            A("s_waitcnt lgkmcnt(0)")
        def pair(j):
            a = s.dma_k(j, vK, nt, f"KV{j}") if j <= 15 else []
            b = s.dma_v(j, vV, nt, f"KV{j}") if j >= 1 else []
            return a + b
        def own_frags():
            for half in range(2):
                for j in range(4):
                    if o.wrot: A(f"ds_read_b128 {vr(X+16*half+4*j,4)}, v{(vOL, vOL2)[half]} offset:{j*512}")
                    else: A(f"ds_read_b128 {vr(X+16*half+4*j,4)}, v{vOL} offset:{half*4096 + j*512}")
            A("s_waitcnt lgkmcnt(0)")

        A(f"v_add_u32 v21, s{sHP}, v1")
        A("v_add_u32 v21, 1, v21")
        A("v_and_b32 v21, 3, v21")
        A(f"v_add_u32 v21, s{sGRP}, v21")
        A("v_lshlrev_b32 v21, 7, v21")
        A(f"v_add_u32 v22, s{sHG}, v1")
        A("v_add_u32 v22, 1, v22")
        A("v_and_b32 v22, 3, v22")
        A("v_lshlrev_b32 v22, 2, v22")
        A(f"s_and_b32 s71, s{sGRP}, {hex(0xfffffff0)}")
        A(f"s_add_u32 s71, s71, s{sHP}")
        A("v_add_u32 v22, s71, v22")
        A("v_lshlrev_b32 v22, 7, v22")
        A("v_lshlrev_b32 v23, 4, v1")
        A(f"s_lshl_b32 s{sPF}, s{sHG}, 20")
        A("s_lshr_b32 s70, s2, 3")
        A("s_lshl_b32 s70, s70, 15")
        A(f"s_add_u32 s{sPF}, s{sPF}, s70")
        A(f"s_lshl_b32 s70, s{sW}, 13")
        A(f"s_add_u32 s{sPF}, s{sPF}, s70")
        def wq_pieces(D, base_off):
            L = [f"v_pk_mul_f32 {vr(ACC+16*D+2*i,2)}, {vr(ACC+16*D+2*i,2)}, s[{sCS}:{sCS+1}] op_sel_hi:[1,0]" for i in range(8)]
            for h in range(2):
                L += [f"v_cvt_pk_bf16_f32 v{ACC+16*D+4*h+i}, v{ACC+16*D+8*h+2*i}, v{ACC+16*D+8*h+2*i+1}" for i in range(4)]
                L.append(f"ds_write_b128 v{vQW}, {vr(ACC+16*D+4*h,4)} offset:{base_off + (2*D+h)*1024}")
            return L
        def douter(fr):
            last = fr[-16:]
            return fr[:-16] + sorted(last, key=lambda f: (f[4], f[3]))
        def dq_gaps(gaps, base_off):
            n = len(gaps); b = n - 16
            for D in range(3):
                spread(gaps, [[x] for x in wq_pieces(D, base_off)], b + 4*D + 5, min(b + 4*D + 9, n))
        def dq_end(base_off):
            s.emit(wq_pieces(3, base_off))
            A("s_waitcnt lgkmcnt(0)")
        fr0 = frags_c([(PX[c % 4] + 16384, c, c == 0) for c in range(8)])
        gaps0 = [[] for _ in fr0]
        if o.pro2:
            setup = s.L; s.L = capL
            sec = {"pre": [], "clr": [], "mid": [], "early": [], "post": []}
            cur = "pre"
            nxt = {"@@clr0": "clr", "@@clr1": "mid", "@@early0": "early", "@@early1": "post"}
            for l in setup:
                if l in nxt: cur = nxt[l]
                else: sec[cur].append(l if l.endswith(":") else l.strip())
            s.emit(sec["early"])
            fill = [[l] for l in sec["pre"]] + [sec["clr"]] + [[l] for l in sec["mid"] + sec["post"]]
            if o.pro2 == 1: spread(gaps0, fill, 2, 108)
            else:
                for g_ in fill: s.emit(g_)
            s.stamp("bs")
        else:
            s.stamp("bs")
            A("s_waitcnt vmcnt(0)")
        s.stamp("x0")
        A("s_barrier")
        s.stamp("p0")
        if o.dq:
            fr0 = douter(fr0); dq_gaps(gaps0, 0)
        stream(fr0, None, prologue=True, gapfill=gaps0, LA=(min(LA, 5) if o.dq else LA))
        if o.dq: dq_end(0)
        else: write_q(0)
        s.stamp("pro")
        def poll_check(vsrc, shift):
            A(f"v_readfirstlane_b32 s70, v{vsrc} ; @val=POLL")
            if shift == 0:
                A("s_lshr_b32 s71, s70, 1"); A("s_or_b32 s70, s70, s71")
            else:
                A(f"s_lshr_b32 s70, s70, {shift}")
            A("s_and_b32 s70, s70, 0x01010101")
            A("s_cmp_eq_u32 s70, 0x01010101")
        def mid_poll(slow=False):
            if o.lead:
                return [f"s_and_b32 s71, s{sGRP}, {hex(0xfffffff0)}",
                        f"buffer_load_dword v24, off, {srd(sDBG)}, s71{' sc1' if (slow or o.lead == 2) else ''}"]
            return [f"s_and_b32 s71, s{sGRP}, {hex(0xfffffff0)}",
                    f"buffer_load_dwordx4 v[24:27], off, {srd(sDBG)}, s71 sc1"]
        def mid_check():
            if o.lead:
                return [f"v_readfirstlane_b32 s70, v24 ; @val=POLL",
                        "s_and_b32 s70, s70, 0x01010101", "s_cmp_eq_u32 s70, 0x01010101"]
            return [f"v_and_b32 v24, v24, v25", f"v_and_b32 v26, v26, v27",
                    f"v_and_b32 v24, v24, v26",
                    "s_nop 0",
                    f"v_readfirstlane_b32 s70, v24 ; @val=POLL",
                    "s_and_b32 s70, s70, 0x01010101", "s_cmp_eq_u32 s70, 0x01010101"]
        def wave_poll(vaddr, nm, drain=True):
            A(f"s_mov_b32 s{sSPIN}, 0")
            A("s_mov_b64 exec, 7")
            s.lab(f"B_{nm}")
            A(f"buffer_load_dword v{VP}, v{vaddr}, {srd(sWS)}, s72 offen sc1")
            A("s_waitcnt vmcnt(0)")
            A(f"v_cmp_ne_u32 vcc, 0, v{VP}")
            A("s_cmp_eq_u32 vcc_lo, 7")
            A(f"s_cbranch_scc1 B_{nm}d ; @taken")
            A(f"s_add_u32 s{sSPIN}, s{sSPIN}, 1")
            A(f"s_cmp_lt_u32 s{sSPIN}, {o.spin}")
            A(f"s_cbranch_scc1 B_{nm}")
            s.lab(f"B_{nm}d")
            A("s_mov_b64 exec, -1")
            if drain: q.drain()
        wq_slot = lambda c: (P[0] + 16384) if c == 0 else W[(c + 1) % 4]
        wq_issue = {0: [1, 2], 1: [3], 2: [4], 3: [5], 4: [6], 5: [7]}
        wo0_slot = {(0,0): W[3], (0,1): W[0], (1,0): W[0], (1,1): W[1], (2,0): W[2], (2,1): W[3], (3,0): P[1], (3,1): P[2]}
        wo0_issue = eval(o.w0i)
        wo0_use = eval(o.w0u)
        ords = eval(o.ords)
        of0_issue = eval(o.f0)
        pf_issue = {1: [0, 1], 2: [2, 3], 3: [4], 4: [5], 5: [6], 6: [7]}
        wo1_slot = {(0,0): P[2] + 16384, (0,1): P[1] + 16384, (1,0): W[0], (1,1): W[1], (2,0): W[2], (2,1): W[3], (3,0): P[1], (3,1): P[2]}
        wo1_issue = eval(o.w1i)
        FL0AT = o.fl0at if o.fl0at else o.s0at + 1
        PO0 = o.po0
        def flag_check(nm):
            A("s_mov_b64 exec, 7")
            A(f"v_cmp_ne_u32 vcc, 0, v{VP}")
            A("s_mov_b64 exec, -1")
            A("s_cmp_eq_u32 vcc_lo, 7")
            A(f"s_cbranch_scc0 B_slow{nm} ; @nottaken")
            s.lab(f"B_slow{nm}r")
        for st in range(17):
            s.stamp(f"c{st}")
            tags = [f"KV{st}"]
            if 1 <= st <= 7: tags.append(f"Q{st}")
            for (p, h) in wo0_use.get(st, []):
                tags += [f"O0{p}{h}", f"F{p}"]
            if st == FL0AT: tags.append("S0")
            if st == PO0 + 1: tags.append("POLL")
            if st == 9: tags.append("POLL0")
            if st == 8: tags.append("PF")
            wait_vm(tags)
            s.stamp(f"w{st}")
            A("s_barrier")
            s.stamp(f"s{st}")
            if st == 8:
                for d in range(4):
                    A(f"s_add_u32 s70, s{sHG}, {1 + d}")
                    A("s_and_b32 s70, s70, 3")
                    A(f"v_xor_b32 v29, s70, v{vR}")
                    A("v_lshlrev_b32 v29, 6, v29")
                    A(f"v_add_u32 v29, v29, v{vWB}")
                    A(f"v_add_u32 v{WA+d}, {s.wbase}, v29")
            pre_groups = []
            if st == 9:
                own_frags()
            g_s = []
            s0sp = eval(o.s0sp) if o.s0sp else {o.s0at: [0, 1, 2, 3]}
            assert max(s0sp) == o.s0at
            if st in s0sp:
                g_s = of_mem(0, 0, 0, "S0", store=True) + of_mem(0, 0, 1, "S0", store=True)
                g_s = [g_s[i] for i in s0sp[st]]
                if "s" not in ords.get(st, o.order): pre_groups = g_s
            if st == 2 and not (o.abl & 16):
                if o.lead:
                    A(f"s_or_b32 s70, s{sW}, s{sHG}")
                    A(f"s_or_b32 s70, s70, s{sHP}")
                    A("s_cmp_lg_u32 s70, 0")
                    A(f"s_cbranch_scc1 B_nf{st}")
                    A("v_mov_b32 v28, 0x01010101")
                    A("s_mov_b64 exec, 1")
                    A(f"buffer_store_dword v28, off, {srd(sDBG)}, s{sGRP} sc1")
                    A("s_mov_b64 exec, -1")
                else:
                    A(f"s_cmp_lg_u32 s{sW}, 0")
                    A(f"s_cbranch_scc1 B_nf{st}")
                    s.flag_store(1, 28)
                s.lab(f"B_nf{st}")
            if st == 8 and not (o.abl & 32):
                s.emit(mid_poll()); q.issue("POLL0")
            if st == 9 and not (o.abl & 32):
                s.emit(mid_check())
                A("s_cbranch_scc0 B_slow0 ; @nottaken")
                s.lab("B_slow0r")
                s.stamp("chk0")
            if st == FL0AT and not (o.abl & 4):
                A(f"s_lshl_b32 s70, s{sMYB}, 7")
                A(f"s_lshl_b32 s71, s{sW}, 2")
                A(f"s_add_u32 s71, s71, {FLAG_BASE + 32}")
                A("s_add_u32 s70, s70, s71")
                A("v_mov_b32 v28, 1")
                A("s_mov_b64 exec, 1")
                A(f"buffer_store_dword v28, off, {srd(sWS)}, s70{s.ofl0}")
                A("s_mov_b64 exec, -1")
                q.issue("FL0")
            if st == PO0 and not (o.abl & 4):
                A(f"s_lshl_b32 s72, s{sW}, 2")
                A(f"s_add_u32 s72, s72, {FLAG_BASE + 32}")
                A("s_mov_b64 exec, 7")
                A(f"buffer_load_dword v{VP}, v21, {srd(sWS)}, s72 offen sc1"); q.issue("POLL")
                A("s_mov_b64 exec, -1")
            if st == PO0 + 1 and not (o.abl & 4):
                flag_check("1")
                s.stamp("chk")
            g_kv = pair(st + 2) if st + 2 <= 16 else []
            g_w = []
            for c in wq_issue.get(st, []): g_w += s.dma_wq(c, wq_slot(c), vW, f"Q{c}", 256, 72)
            for (p, h) in wo0_issue.get(st, []): g_w += dma_wo(0, p, h, wo0_slot[(p, h)])
            g_f = []
            for p in of0_issue.get(st, []): g_f += of_mem(0, p, 0, f"F{p}") + of_mem(0, p, 1, f"F{p}")
            g_1 = []
            for (p, h) in wo1_issue.get(st, []): g_1 += dma_wo(1, p, h, wo1_slot[(p, h)])
            g_p = []
            if o.pf:
                for t in pf_issue.get(st, []):
                    g_p.append(("PF", [f"s_add_u32 s71, s{sPF}, {t*1024}",
                                       f"buffer_load_dwordx4 v[24:27], v23, {srd(sWO)}, s71 offen ; @dummy"]))
            if (o.abl & 1) and 10 <= st <= 13: g_w = []
            if st in eval(o.ablw): g_w = []
            if o.abl & 2: pre_groups = []
            if (o.abl & 8) and 8 <= st <= 13: g_kv = g_kv[:4]
            gm = {"w": g_w + g_1, "f": g_f, "k": g_kv, "p": g_p, "s": g_s}
            groups = pre_groups + sum((gm[c] for c in ords.get(st, o.order)), [])
            if o.ilv and st >= o.ilv0:
                oth = (pre_groups if o.ilv & 2 else []) + sum((gm[c] for c in o.order if c != "k"), [])
                def pos(lst, ph):
                    w = [2 if isinstance(g[0], tuple) else 1 for g in lst]; tot = sum(w); acc = 0; r = []
                    for g, x in zip(lst, w):
                        r.append(((acc + ph * x) / tot, g)); acc += x
                    return r
                a_ = pos(g_kv, 0.0) if g_kv else []
                b_ = pos(oth, 0.5) if oth else []
                merged = sorted([(x, 0, i, g) for i, (x, g) in enumerate(a_)] + [(x, 1, i, g) for i, (x, g) in enumerate(b_)], key=lambda z: (z[0], z[1], z[2]))
                groups = ([] if o.ilv & 2 else pre_groups) + [z[3] for z in merged]
            mem = mat2(groups)
            use = ([(wq_slot(st), st, st == 0)] if st <= 7 else []) + \
                  [(wo0_slot[(p, h)], 2*p + h, (p, h) == (0, 0)) for (p, h) in wo0_use.get(st, [])]
            if use and st == 7 and o.dq:
                fr7 = douter(frags_c(use)); g7 = [[] for _ in fr7]
                if not o.s7f: spread(g7, mem, 0, 16)
                dq_gaps(g7, 16384)
                stream(fr7, None, gapfill=g7)
                dq_end(16384)
                if o.s7f:
                    for g_ in mem: s.emit(g_)
            elif use:
                stream(frags_c(use), mem)
                if st == 7: write_q(16384)
            else:
                for gi, g_ in enumerate(mem):
                    s.emit(g_); s.stamp(f"m{st}_{gi}")
            s.stamp(f"d{st}")
        sPD = [sWP, sWP + 1, sWP + 2] if o.tail == 1 else [82, 83, 84]
        def addr_prep():
            A("v_lshrrev_b32 v17, 5, v1")
            A("v_mul_u32_u24 v23, 112, v17")
            A("v_and_b32 v18, 31, v1")
            A("v_add_u32 v23, v23, v18")
            A(f"s_lshl_b32 s70, s{sW}, 5")
            A("v_add_u32 v23, s70, v23")
            A("v_add_u32 v19, s70, v18")
            A("v_lshlrev_b32 v23, 4, v23")
            A(f"s_lshl_b32 s70, s{sBR}, 3")
            A(f"s_add_u32 s70, s70, s{sB}")
            A(f"s_lshl_b32 s70, s70, 2")
            A(f"s_add_u32 s70, s70, s{sHP}")
            A(f"s_mul_i32 s73, s70, {12*PSZ}")
            A(f"s_add_u32 s73, s73, {PART_BASE}")
            for d in range(3):
                A(f"s_add_u32 s70, s{sHG}, {1 + d}")
                A("s_and_b32 s70, s70, 3")
                A(f"s_mul_i32 s70, s70, {3*PSZ}")
                A(f"s_add_u32 s70, s70, s73")
                A(f"s_add_u32 s{sPD[d]}, s70, {(2-d)*PSZ}")
            A("v_lshlrev_b32 v19, 11, v19")
            A("v_lshlrev_b32 v17, 4, v17")
            A("v_add_u32 v19, v19, v17")
        def pub(d):
            r = []
            for rq in range(4):
                r.append([f"s_add_u32 s70, s{sPD[d]}, {rq*3584}", f"s_mov_b64 exec, s[{sEXLO}:{sEXHI}]",
                          f"buffer_store_dwordx4 {vr(ACC+16*d+4*rq,4)}, v23, {srd(sWS)}, s70 offen sc1{s.nths}", "s_mov_b64 exec, -1"])
            return r
        def tail1():
            used0 = set(x for v in wo0_use.values() for x in v)
            tail0 = [(p, h) for p in range(4) for h in range(2) if (p, h) not in used0]
            tailF = sorted(set(p for p, h in tail0))
            assert all((p, 0) in tail0 or (p, 0) in used0 for p in tailF)
            issued1 = set(x for v in wo1_issue.values() for x in v)
            def ftags(p): return [f"O0{p}{h}" for h in range(2) if (p, h) in tail0] + ([f"F{p}"] if p else [])
            wait_vm(ftags(tailF[0]) + ["O100"])
            A(f"v_add_u32 v{vOL}, {hex((P[0] - W[1]) & 0xffffffff)}, v{vOL}")
            if o.wrot: A(f"v_add_u32 v{vOL2}, {hex((P[0] - W[1]) & 0xffffffff)}, v{vOL2}")
            A("s_barrier")
            s.stamp("E")
            busy = set(wo0_slot[c] for c in tail0)
            avail = [c for c in [(0, 1), (1, 0), (1, 1), (2, 0), (2, 1), (3, 0), (3, 1)] if c not in issued1 and wo1_slot[c] not in busy]
            for i, p in enumerate(tailF):
                fl = mat2(sum((dma_wo(1, pp, hh, wo1_slot[(pp, hh)]) for (pp, hh) in avail), []))
                issued1 |= set(avail)
                stream(frags_c([(wo0_slot[(p, h)], 2*p + h, False) for h in range(2) if (p, h) in tail0]), fl)
                for h in range(2): busy.discard(wo0_slot[(p, h)])
                avail = [c for c in [(0, 1), (1, 0), (1, 1), (2, 0), (2, 1), (3, 0), (3, 1)] if c not in issued1 and wo1_slot[c] not in busy]
                if i + 1 < len(tailF):
                    wait_vm(ftags(tailF[i + 1]))
                    A("s_barrier")
                    s.stamp(f"T{i}")
            own_frags()
            wait_vm("O101")
            A("s_barrier")
            s.stamp("Ta")
            fl = mat2(sum((dma_wo(1, pp, hh, wo1_slot[(pp, hh)]) for (pp, hh) in avail), []))
            issued1 |= set(avail)
            assert len(issued1) == 8, issued1
            stream(frags_c([(wo1_slot[(0, 0)], 0, False), (wo1_slot[(0, 1)], 1, False)]), fl)
            s.stamp("own")
            addr_prep()
            A(f"s_lshl_b32 s72, s{sW}, 2")
            A(f"s_add_u32 s72, s72, {FLAG_BASE}")
            wave_poll(21, "poll1")
            s.stamp("poll1")
            gl = lambda p: of_mem(1, p, 0, f"G{p}") + of_mem(1, p, 1, f"G{p}")
            for g_ in mat2(gl(1) + gl(2)): s.emit(g_)
            A("s_barrier")
            ND = 3 if o.defer else 4
            for p in (1, 2):
                wait_vm(f"G{p}")
                if p == 1: s.stamp("g1")
                fl = mat2(gl(3)) if p == 1 else None
                stream([f for f in frags_c([(wo1_slot[(p, 0)], 2*p, False), (wo1_slot[(p, 1)], 2*p + 1, False)]) if f[4] < ND], fl)
            wait_vm("G3")
            fr = []
            for d in range(ND):
                for half in range(2):
                    for j in range(4):
                        fr.append((wo1_slot[(3, half)], 6 + half, False, j, d, half))
            for p in ((1, 2, 3) if o.defer else ()):
                for half in range(2):
                    for j in range(4):
                        fr.append((wo1_slot[(p, half)], 2*p + half, False, j, 3, half))
            gaps = [[] for _ in range(len(fr))]
            for d in range(3):
                spread(gaps, pub(d), 8*d + 8 + 3, 8*d + 8 + 7)
            stream(fr, None, gapfill=gaps)
        def tail2():
            used0 = set(x for v in wo0_use.values() for x in v)
            assert used0 == {(0, 0), (0, 1)}
            fdone = set(p for v in of0_issue.values() for p in v)
            assert wo1_issue == {15: [(0, 0)]}
            gb = lambda p: 2 * (p - 1)
            gl = lambda p: of_mem(1, p, 0, f"G{p}", blk=gb(p)) + of_mem(1, p, 1, f"G{p}", blk=gb(p))
            w1 = lambda cs: sum((dma_wo(1, pp, hh, wo1_slot[(pp, hh)]) for (pp, hh) in cs), [])
            fw = lambda p: frags_c([(wo0_slot[(p, 0)], 2*p, False), (wo0_slot[(p, 1)], 2*p + 1, False)])
            tags = [f"O0{p}{h}" for p in (1, 2, 3) for h in range(2)] + ["O100"]
            if PO0 == 16: tags.append("POLL")
            wait_vm(tags)
            A(f"v_add_u32 v{vOL}, {hex((P[0] - W[1]) & 0xffffffff)}, v{vOL}")
            if o.wrot: A(f"v_add_u32 v{vOL2}, {hex((P[0] - W[1]) & 0xffffffff)}, v{vOL2}")
            if PO0 == 16:
                flag_check("1")
                s.stamp("chk")
            rest = [p for p in (1, 2, 3) if p not in fdone]
            if o.fpre and PO0 == 16:
                for p in rest:
                    for g_ in mat2(of_mem(0, p, 0, f"F{p}") + of_mem(0, p, 1, f"F{p}")): s.emit(g_)
                rest = []
            A("s_barrier")
            s.stamp("E")
            for g_ in mat2(w1([(0, 1)])): s.emit(g_)
            for p in rest:
                for g_ in mat2(of_mem(0, p, 0, f"F{p}") + of_mem(0, p, 1, f"F{p}")): s.emit(g_)
            own_frags()
            stream(frags_c([(wo1_slot[(0, 0)], 0, False)]), None)
            addr_prep()
            wait_vm("O101")
            A("s_barrier")
            s.stamp("Ta")
            stream(frags_c([(wo1_slot[(0, 1)], 1, False)]), None)
            s.stamp("own")
            wait_vm("F1")
            s.stamp("f1")
            stream(fw(1), None)
            wait_vm("F2")
            A("s_barrier")
            A(f"s_lshl_b32 s72, s{sW}, 2")
            A(f"s_add_u32 s72, s72, {FLAG_BASE}")
            A("s_mov_b64 exec, 7")
            A(f"buffer_load_dword v{VP}, v21, {srd(sWS)}, s72 offen sc1"); q.issue("POLL1")
            A("s_mov_b64 exec, -1")
            s.stamp("f2")
            stream(fw(2), mat2(w1([(1, 0), (1, 1)])))
            wait_vm(["POLL1", "F3"])
            A("s_barrier")
            flag_check("2")
            s.stamp("poll1")
            for g_ in mat2(gl(1)): s.emit(g_)
            stream(fw(3), mat2(gl(2) + w1([(2, 0), (2, 1)]) + gl(3)))
            wait_vm(["O110", "O111"])
            A("s_barrier")
            s.stamp("f3")
            for g_ in mat2(w1([(3, 0), (3, 1)])): s.emit(g_)
            ND = 3 if o.defer else 4
            for p in (1, 2):
                if p == 2:
                    wait_vm(["O120", "O121", "G2"])
                    A("s_barrier")
                else:
                    wait_vm("G1")
                    s.stamp("g1")
                stream([f for f in frags_c([(wo1_slot[(p, 0)], gb(p), False), (wo1_slot[(p, 1)], gb(p) + 1, False)]) if f[4] < ND], None)
            wait_vm(["G3", "O130", "O131"])
            A("s_barrier")
            fr = []
            for d in range(ND):
                for half in range(2):
                    for j in range(4):
                        fr.append((wo1_slot[(3, half)], gb(3) + half, False, j, d, half))
            for p in ((1, 2, 3) if o.defer else ()):
                for half in range(2):
                    for j in range(4):
                        fr.append((wo1_slot[(p, half)], gb(p) + half, False, j, 3, half))
            gaps = [[] for _ in range(len(fr))]
            for d in range(3):
                spread(gaps, pub(d), 8*d + 8 + 3, 8*d + 8 + 7)
            stream(fr, None, gapfill=gaps)
        (tail1 if o.tail == 1 else tail2)()
        s.stamp("oproj")
        A(f"s_lshl_b32 s70, s{sMYB}, 7")
        A(f"s_lshl_b32 s72, s{sW}, 2")
        A(f"s_add_u32 s72, s72, {FLAG_BASE + 16}")
        A("s_add_u32 s70, s70, s72")
        A("v_mov_b32 v20, 1")
        A("s_waitcnt vmcnt(0)")
        s.stamp("pst")
        A("s_mov_b64 exec, 1")
        A(f"buffer_store_dword v20, off, {srd(sWS)}, s70 sc1")
        if o.cl & 2:
            A("s_mov_b64 exec, -1")
            for g_ in mat2(of_mem(1, 3, 0, "CL1", store=True, clean=True) + of_mem(1, 3, 1, "CL1", store=True, clean=True)): s.emit(g_)
            A(f"s_lshl_b32 s72, s{sW}, 2")
            A(f"s_add_u32 s72, s72, {FLAG_BASE + 16}")
        wave_poll(22, "poll2")
        s.stamp("poll2")
        A(f"s_mul_i32 s71, s{sHG}, {3*PSZ}")
        A("s_add_u32 s73, s73, s71")
        R = 64
        A(f"s_mov_b64 exec, s[{sEXLO}:{sEXHI}]")
        for src in range(3):
            for rq in range(4):
                A(f"s_add_u32 s70, s73, {src*PSZ + rq*3584}")
                A(f"buffer_load_dwordx4 {vr(R+16*src+4*rq,4)}, v23, {srd(sWS)}, s70 offen sc1{s.nthl}")
        A(f"s_mul_i32 s70, s{sB}, {112*2048}")
        A(f"s_lshl_b32 s71, s{sBR}, 10")
        A("s_add_u32 s70, s70, s71")
        A(f"s_lshl_b32 s71, s{sHP}, 8")
        A("s_add_u32 s70, s70, s71")
        A(f"s_lshl_b32 s71, s{sHG}, 6")
        A("s_add_u32 s70, s70, s71")
        OWN = ACC + 48
        A("s_waitcnt vmcnt(8)")
        for i in range(8): A(f"v_pk_add_f32 {vr(OWN+2*i,2)}, {vr(OWN+2*i,2)}, {vr(R+2*i,2)}")
        A("s_waitcnt vmcnt(4)")
        for i in range(8): A(f"v_pk_add_f32 {vr(OWN+2*i,2)}, {vr(OWN+2*i,2)}, {vr(R+16+2*i,2)}")
        A("s_waitcnt vmcnt(0)")
        for i in range(8): A(f"v_pk_add_f32 {vr(OWN+2*i,2)}, {vr(OWN+2*i,2)}, {vr(R+32+2*i,2)}")
        for i in range(8):
            A(f"v_cvt_pk_bf16_f32 v{32+i}, v{OWN+2*i}, v{OWN+2*i+1}")
        for h in range(2):
            A(f"buffer_store_dwordx4 {vr(32+4*h,4)}, v19, {srd(sOUT)}, s70 offen offset:{h*32}{['', ' sc1', ' sc0 sc1', ' nt', ' sc1 nt'][o.outsc]}")
        A("s_mov_b64 exec, -1")
        if o.dbgst:
            A("s_waitcnt vmcnt(0)")
            A(f"s_or_b32 s70, s{sW}, s{sHG}")
            A(f"s_or_b32 s70, s70, s{sHP}")
            A("s_cmp_lg_u32 s70, 0")
            A("s_cbranch_scc1 L_end")
            s.stamp("end"); s.stamp("cend", True)
            A("s_waitcnt lgkmcnt(0)")
            r = STAMP_REGS
            A(f"s_sub_u32 s70, s{r[5]}, s{r[1]}")
            A(f"s_sub_u32 s71, s{r[4]}, s{r[0]}")
            A(f"s_sub_u32 s72, s{r[2]}, s{r[1]}")
            A(f"s_sub_u32 s73, s{r[3]}, s{r[1]}")
            for i in range(4): A(f"v_mov_b32 v{32+i}, s{70+i}")
            A(f"s_and_b32 s71, s{sGRP}, {hex(0xfffffff0)}")
            A("s_mov_b64 exec, 1")
            A(f"buffer_store_dwordx4 v[32:35], off, {srd(sDBG)}, s71 sc1")
            A("s_endpgm")
        if o.stamp and not o.dbgst:
            A("s_waitcnt vmcnt(0)")
            A(f"s_cmp_lg_u32 s{sW}, 0")
            A("s_cbranch_scc1 L_end")
            s.stamp("end"); s.stamp("cend", True)
            A("s_waitcnt lgkmcnt(0)")
            n = len(o.stamps.split(","))
            assert n <= len(STAMP_REGS)
            A("s_lshl_b32 s70, s2, 8")
            A(f"s_add_u32 s70, s70, {STAMP_BASE}")
            A("s_mov_b64 exec, 1")
            for i in range(n):
                r = STAMP_REGS[i]
                A(f"v_mov_b32 v32, s{r}"); A(f"v_mov_b32 v33, s{r+1}")
                A(f"buffer_store_dwordx2 v[32:33], off, {srd(sWS)}, s70 offset:{8*i}")
                A("s_nop 1")
        A("s_endpgm")
        s.lab("B_slow0")
        A(f"s_mov_b32 s{sSPIN}, 0")
        s.lab("B_slow0l")
        s.emit(mid_poll(True))
        A("s_waitcnt vmcnt(0)")
        s.emit(mid_check())
        A("s_cbranch_scc1 B_slow0r ; @taken" if not (o.abl & 32) else "s_nop 0")
        A(f"s_add_u32 s{sSPIN}, s{sSPIN}, 1")
        A(f"s_cmp_lt_u32 s{sSPIN}, {o.spin}")
        A("s_cbranch_scc1 B_slow0l")
        A("s_branch B_slow0r" if not (o.abl & 32) else "s_endpgm")
        s.lab("B_slow1")
        A(f"s_lshl_b32 s72, s{sW}, 2")
        A(f"s_add_u32 s72, s72, {FLAG_BASE + 32}")
        wave_poll(21, "slow1l", drain=False)
        A("s_branch B_slow1r" if not (o.abl & 4) else "s_endpgm")
        if o.tail == 2:
            s.lab("B_slow2")
            A(f"s_lshl_b32 s72, s{sW}, 2")
            A(f"s_add_u32 s72, s72, {FLAG_BASE}")
            wave_poll(21, "slow2l", drain=False)
            A("s_branch B_slow2r")

    def build(s):
        s.common()
        s.waveA()
        s.waveB()
        s.lab("L_end")
        s.A("s_endpgm")
        lines = [l for l in s.L if l is not None]
        cfgs = []
        for wave in (0, 1, 3, 4, 5, 7):
            cfgs.append((f"wg5w{wave}", {2: 5}, {"WAVE": wave, "POLL": 0x03030303, "POLL3": 0x03030303}))
        cfgs.append(("allresc", {2: 5}, {"WAVE": 1, "ALLRESC": 1}))
        cfgs.append(("extra", {2: 256}, {"WAVE": 0}))
        lines = asmlib.finalize(lines, cfgs, verbose=True)
        return "\n".join(lines)

if __name__ == "__main__":
    ap = argparse.ArgumentParser()
    ap.add_argument("-o", default="k8.s")
    ap.add_argument("--stamp", action="store_true")
    ap.add_argument("--cyc", action="store_true")
    ap.add_argument("--stamps", default="start,pro,s8,E,poll1,oproj,pst,poll2,end")
    ap.add_argument("--nt", type=int, default=1)
    ap.add_argument("--prioA", type=int, default=0)
    for n_ in ("ntw", "ntx", "nto", "nths", "nthl"): ap.add_argument("--" + n_, type=int, default=0)
    ap.add_argument("--astamp", type=int, default=-1)
    ap.add_argument("--la", type=int, default=6)
    ap.add_argument("--nbub", type=int, default=3)
    ap.add_argument("--rot", type=int, default=1)
    ap.add_argument("--k0at", type=int, default=5)
    ap.add_argument("--p1at", type=int, default=7)
    ap.add_argument("--pf", type=int, default=0)
    ap.add_argument("--f0", default="{13: [1], 14: [2], 15: [3]}")
    ap.add_argument("--po0", type=int, default=11)
    ap.add_argument("--defer", type=int, default=1)
    ap.add_argument("--cpf", type=int, default=1)
    ap.add_argument("--dbgst", type=int, default=0)
    ap.add_argument("--g2at", type=int, default=8)
    ap.add_argument("--order", default="wfkp")
    ap.add_argument("--spin", type=int, default=131072)
    ap.add_argument("--outsc", type=int, default=0)
    ap.add_argument("--osc", type=int, default=15)
    ap.add_argument("--wb", type=int, default=0)
    ap.add_argument("--ntq", default="[]")
    ap.add_argument("--ntxc", default="[]")
    ap.add_argument("--ntoc", default="[]")
    ap.add_argument("--ablw", default="[]")
    ap.add_argument("--fl0at", type=int, default=0)
    ap.add_argument("--s0sp", default="")
    ap.add_argument("--tail", type=int, default=1)
    ap.add_argument("--s0at", type=int, default=9)
    ap.add_argument("--fpre", type=int, default=0)
    ap.add_argument("--abl", type=int, default=0)
    ap.add_argument("--w0i", default="{7: [(0,0)], 8: [(0,1)], 11: [(1,0)], 12: [(1,1), (2,0)], 13: [(2,1)], 14: [(3,0)], 15: [(3,1)]}")
    ap.add_argument("--w0u", default="{9: [(0,0)], 10: [(0,1)], 15: [(1,0), (1,1)], 16: [(2,0), (2,1)]}")
    ap.add_argument("--w1i", default="{15: [(0,0)], 16: [(1,0), (1,1)]}")
    ap.add_argument("--ords", default="{}")
    ap.add_argument("--ilv", type=int, default=0)
    ap.add_argument("--ilv0", type=int, default=1)
    ap.add_argument("--wrot", type=int, default=0)
    ap.add_argument("--cl", type=int, default=0)
    ap.add_argument("--fgl", type=int, default=0)
    ap.add_argument("--pro2", type=int, default=0)
    ap.add_argument("--dq", type=int, default=0)
    ap.add_argument("--lead", type=int, default=0)
    ap.add_argument("--pro2a", type=int, default=0)
    ap.add_argument("--s7f", type=int, default=0)
    o = ap.parse_args()
    g = Gen(o)
    body = g.build()
    k = kernel_text(NAME + "_kernel", body, vgpr=256)
    hdr = ["; @launch grid=(256,1,1) block=(512,1,1) lds=163840"]
    if o.stamp and not o.dbgst: hdr.append("; STAMPS " + o.stamps)
    if o.astamp >= 0: hdr.append("; ASTAMP")
    if o.cyc: hdr.append("; STAMPCYC")
    open(o.o, "w").write(file_text(hdr, [k]))
    print("wrote", o.o, len(body.splitlines()), "lines")
```

```python
import sys, argparse, struct
from gen_common import *
import asmlib

P = [0, 32768, 65536]
W = [98304, 114688, 131072, 147456]
UNIT = 28672
PART_BASE = 16 << 20
PSZ = 14336
STAMP_BASE = 128 << 20
FLAG_BASE = 32 << 20
THR = 12.0

sK, sV, sWQ, sX, sWS, sWO, sOUT, sDBG = 4, 8, 12, 16, 20, 24, 28, 32
sWAVE, sW, sBR, sHG, sB, sHP, sH0, sKV = 62, 63, 64, 65, 66, 67, 68, 69
sXB, sPEND = 72, 73
sEV, sTHR, sPAT = 74, 75, 76
sSTEP, sROT, sNEG, sOBASE = 77, 78, 79, 80
sW4K, sWQB, sKVW, sWOB, sGRP, sMYB = 81, 82, 83, 84, 85, 86
sSPIN = 87
sEXLO, sEXHI = 88, 89
sPOS = 3
sWP, sOP = 54, 58
STAMP_REGS = [90, 92, 94, 96, 98, 100] + list(range(36, 54, 2))

def srd(r): return f"s[{r}:{r+3}]"
def vr(a, n=1): return f"v{a}" if n == 1 else f"v[{a}:{a+n-1}]"
def fbits(x): return struct.unpack('<I', struct.pack('<f', x))[0]
CSCALE = (128 ** -0.5) * 1.4426950408889634

class Q:
    def __init__(s, maxn): s.q = []; s.maxn = maxn
    def issue(s, tag):
        s.q.append(tag)
        assert len(s.q) <= s.maxn, ("counter overflow", s.q)
    def wait(s, tags):
        if isinstance(tags, str): tags = [tags]
        last = -1
        for i, t in enumerate(s.q):
            if t in tags: last = i
        if last < 0: return None
        n = len(s.q) - 1 - last
        s.q = s.q[last + 1:]
        return n
    def drain(s): s.q = []

def spread(slots, items, start=0, end=None):
    if end is None: end = len(slots)
    n = end - start
    m = len(items)
    for i, it in enumerate(items):
        k = start + (i * n) // m
        slots[k].extend(it)

class Gen:
    def __init__(s, opt):
        s.L = []; s.opt = opt
        f = lambda b: " nt" if b else ""
        s.ntw, s.ntx, s.nto, s.nths, s.nthl = f(opt.ntw), f(opt.ntx), f(opt.nto), f(opt.nths), f(opt.nthl)
        c = lambda b: " sc1" if b else ""
        s.ost0, s.ost1, s.ofl0, s.ofl1 = c(opt.osc & 1), c(opt.osc & 2), c(opt.osc & 4), c(opt.osc & 8)
    def A(s, t): s.L.append("  " + t)
    def lab(s, n): s.L.append(n + ":")
    def emit(s, lines):
        for l in lines:
            if l.endswith(":"): s.L.append(l)
            else: s.L.append("  " + l)
    def stamp_lines(s, name, cyc=False):
        if not s.opt.stamp: return []
        names = s.opt.stamps.split(",")
        if name not in names: return []
        r = STAMP_REGS[names.index(name)]
        cyc = cyc or s.opt.cyc or (s.opt.dbgst and name not in ("start", "end"))
        return [f"s_mem{'time' if cyc else 'realtime'} s[{r}:{r+1}]"]
    def stamp(s, name, cyc=False): s.emit(s.stamp_lines(name, cyc))
    def capture(s, fn):
        old = s.L; s.L = []
        fn()
        out = [l if l.endswith(":") else l.strip() for l in s.L]; s.L = old
        return out
    def ast(s, i):
        return [f"s_memtime s[{36+2*i}:{37+2*i}]"] if s.opt.astamp >= 0 else []

    def common(s):
        A = s.A
        A("s_cmp_ge_u32 s2, 256")
        A("s_cbranch_scc1 L_end")
        s.stamp("start"); s.stamp("cstart", True)
        A("s_load_dwordx16 s[36:51], s[0:1], 0")
        A("s_load_dwordx8 s[52:59], s[0:1], 64")
        A("s_load_dwordx2 s[60:61], s[0:1], 96")
        A("v_lshrrev_b32 v1, 6, v0")
        A("s_and_b32 s70, s2, 7")
        A("s_lshr_b32 s71, s2, 3")
        if s.opt.cpf:
            KN = NAME + "_kernel"
            A("s_getpc_b64 s[84:85]")
            s.lab("L_pc")
            A(f"s_sub_u32 s84, s84, L_pc-{KN}")
            A("s_subb_u32 s85, s85, 0")
            A("v_lshlrev_b32 v2, 7, v1")
            A("v_and_b32 v3, 31, v0")
            A("v_lshlrev_b32 v3, 2, v3")
            A("v_add_u32 v2, v2, v3")
            A("s_lshl_b32 s72, s71, 10")
            A("v_add_u32 v2, s72, v2")
            A(f"v_min_u32 v2, L_end-{KN}, v2")
            if s.opt.pro2:
                A("v_and_b32 v25, 63, v0")
                A("global_load_dword v0, v2, s[84:85]")
            else: A("global_load_dword v63, v2, s[84:85]")
        A(f"v_readfirstlane_b32 s{sWAVE}, v1 ; @val=WAVE")
        A(f"s_lshr_b32 s{sBR}, s70, 2")
        A(f"s_and_b32 s{sHG}, s70, 3")
        A(f"s_and_b32 s{sB}, s71, 7")
        A(f"s_lshr_b32 s{sHP}, s71, 3")
        A(f"s_lshl_b32 s{sH0}, s{sHG}, 3")
        A(f"s_lshl_b32 s70, s{sHP}, 1")
        A(f"s_add_u32 s{sH0}, s{sH0}, s70")
        A(f"s_add_u32 s{sROT}, s{sB}, s70")
        if not s.opt.rot: A(f"s_mov_b32 s{sROT}, 0")
        A(f"s_and_b32 s{sW}, s{sWAVE}, 3")
        A(f"s_lshl_b32 s{sW4K}, s{sW}, 12")
        A("v_mov_b32 v1, v25" if (s.opt.pro2 and s.opt.cpf) else "v_and_b32 v1, 63, v0")
        A("v_lshrrev_b32 v19, 4, v1")
        A("v_and_b32 v20, 15, v1")
        A("v_lshlrev_b32 v21, 2, v19")
        A("v_xor_b32 v21, v20, v21")
        A("v_lshlrev_b32 v21, 4, v21")
        A("v_lshrrev_b32 v17, 5, v1")
        A("v_and_b32 v18, 3, v1")
        A("v_lshlrev_b32 v2, 13, v19")
        A("v_add_u32 v2, v2, v21")
        A("v_lshrrev_b32 v22, 3, v1")
        A("v_lshlrev_b32 v22, 10, v22")
        A("v_and_b32 v23, 7, v1")
        A("v_xor_b32 v23, v23, v19")
        A("v_lshlrev_b32 v24, 4, v23")
        A("v_add_u32 v3, v22, v24")
        A("v_xor_b32 v24, 64, v24")
        A("v_add_u32 v4, v22, v24")
        for r, sz in ((sK, 33554432), (sV, 33554432), (sWQ, 4194304), (sWS, 268435456), (sWO, 4194304), (sOUT, 1835008), (sDBG, 256)):
            A(f"s_mov_b32 s{r+2}, {sz}")
            A(f"s_mov_b32 s{r+3}, 0x20000")
        A(f"s_mov_b32 s{sX+3}, 0x20000")
        A(f"s_lshl_b32 s70, s{sW}, 17")
        A(f"s_lshl_b32 s71, s{sH0}, 8")
        A(f"s_add_u32 s{sWQB}, s70, s71")
        A(f"s_mul_i32 s70, s{sB}, 112")
        A(f"s_add_u32 s71, s70, 112")
        A(f"s_lshl_b32 s{sX+2}, s71, 10")
        A(f"s_lshl_b32 s71, s{sW}, 5")
        A("s_add_u32 s70, s70, s71")
        A(f"s_lshl_b32 s{sXB}, s70, 10")
        A(f"s_lshl_b32 s70, s{sB}, 5")
        A(f"s_add_u32 s70, s70, s{sH0}")
        A(f"s_lshl_b32 s{sKV}, s70, 17")
        A(f"s_add_u32 s{sKVW}, s{sKV}, s{sW4K}")
        A(f"s_cmp_eq_u32 s{sBR}, 0")
        A("s_waitcnt lgkmcnt(0)")
        s.stamp("k")
        for r, a, b in ((sX, 36, 46), (sWQ, 42, 52), (sK, 38, 48), (sV, 40, 50), (sWO, 44, 54)):
            A(f"s_cselect_b32 s{r}, s{a}, s{b}")
            A(f"s_cselect_b32 s{r+1}, s{a+1}, s{b+1}")
        for r, a in ((sOUT, 56), (sDBG, 58), (sWS, 60)):
            A(f"s_mov_b32 s{r}, s{a}")
            A(f"s_mov_b32 s{r+1}, s{a+1}")
        A(f"s_cmp_ge_u32 s{sWAVE}, 4")
        A("s_cbranch_scc1 L_B")

    def late_scalars(s):
        A = s.A
        A(f"s_lshl_b32 s70, s{sBR}, 3")
        A(f"s_add_u32 s70, s70, s{sB}")
        A(f"s_lshl_b32 s71, s70, 5")
        A(f"s_add_u32 s71, s71, s{sH0}")
        A(f"s_mul_i32 s{sOBASE}, s71, {UNIT}")
        A(f"s_lshl_b32 s71, s70, 2")
        A(f"s_add_u32 s71, s71, s{sHG}")
        A(f"s_lshl_b32 s{sGRP}, s71, 2")
        A(f"s_add_u32 s{sMYB}, s{sGRP}, s{sHP}")
        A(f"s_cmp_eq_u32 s{sW}, 3")
        A(f"s_cselect_b32 s{sEXLO}, 0xffff, -1")
        A(f"s_mov_b32 s{sEXHI}, s{sEXLO}")

    def kv_voffs(s, vK, vV):
        A = s.A
        A("v_lshlrev_b32 v22, 8, v19")
        A(f"v_add_u32 v{vV}, v22, v21")
        for t in range(4):
            A(f"v_add_u32 v23, {4*t}, v19")
            A(f"v_xor_b32 v23, v20, v23")
            A(f"v_lshlrev_b32 v23, 4, v23")
            A(f"v_add_u32 v{vK+t}, v22, v23")

    def flag_store(s, val, vtmp):
        A = s.A
        A(f"v_mov_b32 v{vtmp}, {val}")
        A("s_mov_b64 exec, 1")
        A(f"buffer_store_byte v{vtmp}, off, {srd(sDBG)}, s{sMYB} sc1")
        A("s_mov_b64 exec, -1")

    def dma_k(s, j, vK, nt, tag):
        g = []
        for t in range(4):
            pre = [f"s_add_u32 m0, s{sW4K}, {P[j%3]}", f"s_add_u32 s70, s{sKVW}, {j*16384}"] if t == 0 else []
            if t and s.opt.ilv: pre = [f"s_add_u32 m0, s{sW4K}, {P[j%3]}", "s_nop 0"]
            g.append((tag, pre + [f"buffer_load_dwordx4 v{vK+t}, {srd(sK)}, s70 offen offset:{t*1024}{nt} lds"]))
        return g
    def dma_v(s, j, vV, nt, tag):
        g = []
        for t in range(4):
            pre = [f"s_add_u32 m0, s{sW4K}, {P[j%3]+16384}", f"s_add_u32 s70, s{sKVW}, {(j-1)*16384}"] if t == 0 else []
            if t and s.opt.ilv: pre = [f"s_add_u32 m0, s{sW4K}, {P[j%3]+16384}", "s_nop 0"]
            g.append((tag, pre + [f"buffer_load_dwordx4 v{vV}, {srd(sV)}, s70 offen offset:{t*1024}{nt} lds"]))
        return g
    def kc_lines(s, c, dst):
        return [f"s_add_u32 s{dst}, s{sROT}, {c}", f"s_and_b32 s{dst}, s{dst}, 7"]
    def dma_wq(s, c, slot, vW, tag, extra, tmp):
        g = []
        for t in range(4):
            pre = []
            if t == 0:
                pre = s.kc_lines(c, tmp) + [f"s_lshl_b32 s{tmp}, s{tmp}, 19", f"s_add_u32 s{tmp}, s{tmp}, s{sWQB}",
                                            f"s_add_u32 m0, s{sW4K}, {slot}"]
            elif s.opt.ilv: pre = [f"s_add_u32 m0, s{sW4K}, {slot}"]
            g.append((tag, pre + [f"s_add_u32 s71, s{tmp}, {extra + t*31744}",
                                  f"buffer_load_dwordx4 v{vW}, {srd(sWQ)}, s71 offen offset:{t*1024}{' nt' if (tag in eval(s.opt.ntq)) else s.ntw} lds"]))
        return g

    def waveA(s):
        A = s.A; o = s.opt
        nt = " nt" if o.nt else ""
        Q_, SB, Pr, O, WIN, NM = 0, [32, 64], 96, 112, 176, 208
        KA, VA, QA, OV, RL = 224, 232, 236, 237, 238
        LS, AL, T = 240, 242, 244
        vK, vV = 5, 9
        q = Q(63)
        PX = [P[1], P[2], W[0], W[2]]
        def dma_x(c):
            g = []
            for t in range(4):
                pre = []
                if t == 0:
                    pre = s.kc_lines(c, 87) + ["s_lshl_b32 s87, s87, 7", f"s_add_u32 s87, s87, s{sXB}", f"s_add_u32 m0, s{sW4K}, {PX[c%4]}"]
                g.append((f"C{c}", pre + [f"s_add_u32 s71, s87, {t*7168}",
                                          f"buffer_load_dwordx4 v{3 + (t&1)}, {srd(sX)}, s71 offen offset:{t*1024}{' nt' if (c in eval(o.ntxc)) else s.ntx} lds"]))
            return g
        def issue(groups):
            for tag, ins in groups:
                q.issue(tag); s.emit(ins)
        def chunk(c): return dma_x(c) + s.dma_wq(c, PX[c % 4] + 16384, 2, f"C{c}", 0, 87)
        issue(chunk(0))
        s.stamp("a0")
        issue(chunk(1))
        segs = []
        capL = s.L
        if o.pro2a: s.L = []
        def cut():
            if o.pro2a:
                segs.append(s.L); s.L = []
        s.late_scalars()
        s.kv_voffs(vK, vV)
        cut()
        A("v_and_b32 v10, 31, v1")
        A("v_lshlrev_b32 v10, 8, v10")
        A("v_xor_b32 v11, v17, v20")
        for k in range(8):
            A(f"v_xor_b32 v12, {2*k}, v11")
            A(f"v_lshlrev_b32 v12, 4, v12")
            A(f"v_add_u32 v{KA+k}, v10, v12")
        cut()
        A("v_lshrrev_b32 v10, 2, v20")
        A("v_and_b32 v11, 1, v19")
        A("v_lshlrev_b32 v12, 10, v17")
        A("v_lshlrev_b32 v13, 8, v10")
        A("v_add_u32 v12, v12, v13")
        A("v_lshlrev_b32 v13, 5, v11")
        A("v_add_u32 v12, v12, v13")
        A("v_and_b32 v13, 1, v18")
        A("v_lshlrev_b32 v13, 4, v13")
        A("v_add_u32 v12, v12, v13")
        A("v_lshrrev_b32 v13, 1, v18")
        A("v_lshlrev_b32 v13, 3, v13")
        A("v_add_u32 v12, v12, v13")
        A("v_add_u32 v12, 16384, v12")
        for D in range(4):
            A(f"v_xor_b32 v13, {D}, v10")
            A(f"v_lshlrev_b32 v13, 6, v13")
            A(f"v_add_u32 v{VA+D}, v12, v13")
        cut()
        A(f"s_lshl_b32 s70, s{sW}, 13")
        A(f"s_add_u32 s70, s70, {W[0]}")
        A(f"v_lshlrev_b32 v{QA}, 4, v1")
        A(f"v_add_u32 v{QA}, s70, v{QA}")
        A(f"v_mul_u32_u24 v{OV}, 112, v17")
        A(f"v_and_b32 v12, 31, v1")
        A(f"v_add_u32 v{OV}, v{OV}, v12")
        A(f"s_lshl_b32 s70, s{sW}, 5")
        A(f"v_add_u32 v{OV}, s70, v{OV}")
        A(f"v_lshlrev_b32 v{OV}, 4, v{OV}")
        for i in range(8): A(f"v_mov_b64 {vr(NM+2*i,2)}, 0")
        A(f"v_mov_b64 {vr(LS,2)}, 0")
        A(f"s_mov_b32 s{sEV}, {hex((1<<0)|(1<<8)|(1<<1)|(1<<7))}")
        A(f"s_mov_b32 s{sPAT}, {hex(sum(1 << i for i in range(2, 17, 3)))}")
        A(f"s_mov_b32 s{sNEG}, 0xffff0000")
        A(f"s_mov_b32 s{sPOS}, 32768")
        A(f"s_mov_b32 s{sTHR}, {hex(fbits(THR))}")
        A(f"s_mov_b32 s{sSTEP}, 0")
        A(f"s_mov_b32 s{sPEND}, 0")
        A(f"s_add_u32 s{sOBASE}, s{sOBASE}, {UNIT}")
        cut()
        if o.pro2a: s.L = capL
        for k in range(8):
            n = q.wait(f"C{k}")
            if n is not None: A(f"s_waitcnt vmcnt({n})")
            s.stamp(f"aw{k}")
            A("s_barrier")
            if k + 2 < 8: issue(chunk(k + 2))
            if k == o.k0at: issue(s.dma_k(0, vK, nt, "K0"))
            if k == 5: issue(s.dma_wq(0, P[0] + 16384, 2, "Q0", 256, 87))
            apf = eval(o.apf)
            def pf_groups(part):
                g = []
                pre = ["v_lshlrev_b32 v14, 4, v1", "s_lshr_b32 s70, s2, 3", "s_lshr_b32 s71, s70, 3", "s_lshl_b32 s71, s71, 18",
                       "s_and_b32 s70, s70, 7", "s_lshl_b32 s70, s70, 14", "s_add_u32 s70, s70, s71",
                       f"s_lshl_b32 s71, s{sHG}, 20", "s_add_u32 s70, s70, s71", f"s_add_u32 s70, s70, s{sW4K}"]
                if part: pre.append("s_add_u32 s70, s70, 131072")
                for t_ in range(4):
                    g.append(("PF", (pre if t_ == 0 else []) + [f"buffer_load_dwordx4 v[{32+4*t_}:{35+4*t_}], v14, {srd(sWO)}, s70 offen offset:{t_*1024}{o.apfnt} ; @dummy"]))
                return g
            if o.apfpos == 0:
                for part in apf.get(k, []): issue(pf_groups(part))
            if k == o.p1at: issue(s.dma_k(1, vK, nt, "KV1") + s.dma_v(1, vV, nt, "KV1"))
            if o.apfpos == 1:
                for part in apf.get(k, []): issue(pf_groups(part))
            if k < len(segs): s.L += segs[k]
        n0 = q.wait(["K0", "Q0"])
        assert n0 == 8 or o.apf != "{}", n0
        if o.prioA: A(f"s_setprio {o.prioA}")

        U = T + 4
        def fin_D(D, dst):
            L = [f"v_mul_f32 v{O+16*D+i}, v{AL}, v{O+16*D+i}" for i in range(16)]
            L += [f"v_cvt_pk_bf16_f32 v{dst+8*D+i}, v{O+16*D+2*i}, v{O+16*D+2*i+1}" for i in range(8)]
            return L
        def step(par, last=False):
            cur, prev = SB[par], SB[1 - par]
            lq = Q(15)
            L = []
            def wl(tags):
                n = lq.wait(tags)
                return [f"s_waitcnt lgkmcnt({n})"] if n is not None else []
            def kread(i):
                T_, k = divmod(i, 8); lq.issue(f"K{i}")
                return [f"ds_read_b128 {vr(WIN + 4*(i % 8), 4)}, v{KA+k} offset:{T_*8192}"]
            vorder = [divmod(f, 4) for f in range(16)] if not last else [(t, D) for D in range(4) for t in range(4)]
            def vread(f):
                t, D = vorder[f]; r = []
                for a in range(2):
                    lq.issue(f"V{f}")
                    r.append(f"ds_read_b64_tr_b16 {vr(WIN + 4*(f % 8) + 2*a, 2)}, v{VA+D} offset:{t*4096 + a*2048}")
                return r
            exp = lambda r: [f"v_exp_f32 v{r}, v{r}"]
            add = lambda r: [f"v_add_f32 v{LS + (r & 1)}, v{LS + (r & 1)}, v{r}"]
            cvt = lambda t, i: [f"v_cvt_pk_bf16_f32 v{Pr+4*t+i}, v{prev+8*t+2*i}, v{prev+8*t+2*i+1}"]
            mx = lambda d, a, b, c: [f"v_max3_f32 v{d}, v{a}, v{b}, v{c}"]
            bub = []
            for i in range(4): bub += [cvt(0, i), add(prev + 2*i), add(prev + 2*i + 1)]
            for i in range(4): bub += [cvt(1, i), add(prev + 8 + 2*i), add(prev + 8 + 2*i + 1)]
            F1 = []
            e = [exp(prev + 16 + i) for i in range(16)]
            a_ = [add(prev + 16 + i) for i in range(16)]
            c2 = [cvt(2, i) for i in range(4)]; c3 = [cvt(3, i) for i in range(4)]
            F1 += [e[0], e[1], e[2]]
            for i in range(3, 16):
                F1 += [e[i], a_[i - 3]]
                if i in (5, 7, 9, 11): F1.append(c2[(i - 5) // 2])
                if i in (13, 15): F1.append(c3[(i - 13) // 2])
            F1 += [a_[13], c3[2], a_[14], a_[15], c3[3]]
            def maxT(base, d0, d1):
                return [mx(d0, base, base+1, base+2), mx(d1, base+8, base+9, base+10),
                        mx(d0, d0, base+3, base+4), mx(d1, d1, base+11, base+12),
                        mx(d0, d0, base+5, base+6), mx(d1, d1, base+13, base+14),
                        mx(d0, d0, base+7, base+15)]
            M0 = maxT(cur, U, U+1)
            M1 = maxT(cur+16, U+2, U+3)
            fin = [mx(U, U, U+1, U+2), [f"v_max_f32 v{U}, v{U}, v{U+3}"]]
            tagp = "e" if par == 0 else "o"
            chk = [f"v_cmp_lt_f32 vcc, s{sTHR}, v{U}",
                   f"s_nop 0",
                   f"s_cbranch_vccnz A_resc{tagp} ; @takenif={sTHR}:0xff800000",
                   f"A_resc{tagp}r:"]
            advK = [[f"v_add_u32 v{KA+k}, s70, v{KA+k}"] for k in range(8)]
            advV = [[f"v_add_u32 v{VA+D}, s70, v{VA+D}"] for D in range(4)]
            exps1 = [exp(cur+i) for i in range(16)]

            L += s.ast(1)
            if not last:
                for i in range(8): L += kread(i)
                for it in bub: L += it
                nb = o.nbub
                for it in F1[:nb]: L += it
                gaps = [[] for _ in range(16)]
                spread(gaps, F1[nb:], 0, 14)
                spread(gaps, M0, 10, 16)
                for i in range(16):
                    T_, k = divmod(i, 8)
                    if i % 2 == 0: L += wl([f"K{i}", f"K{i+1}"])
                    srcC = vr(NM, 16) if k == 0 else vr(cur + 16*T_, 16)
                    L.append(f"v_mfma_f32_32x32x16_bf16 {vr(cur+16*T_,16)}, {vr(WIN+4*(i%8),4)}, {vr(Q_+4*k,4)}, {srcC}")
                    if i + 8 < 16: L += kread(i + 8)
                    if i >= 9: L += vread(i - 9)
                    L += gaps[i]
                    if i == 7: L += s.ast(2)
                L += s.ast(3)
                vissued = 7
                gaps = [[] for _ in range(16)]
                spread(gaps, advK[:4], 0, 2)
                spread(gaps, M1 + fin, 2, 5)
                gaps[5] += chk
                spread(gaps, exps1, 5, 16)
                spread(gaps, advK[4:], 6, 10)
                spread(gaps, advV, 10, 14)
                L += [f"s_bitcmp1_b32 s{sPAT}, s{sSTEP}", f"s_cselect_b32 s70, s{sNEG}, s{sPOS}"]
            else:
                for f in range(7): L += vread(f)
                vissued = 7
                for it in bub: L += it
                for it in F1: L += it
                L += rl_lines(AL)
                L.append(f"v_add_u32 v{QA}, {hex((P[0] - W[1]) & 0xffffffff)}, v{QA}")
                gaps = [[] for _ in range(16)]
                for D in range(3):
                    items = [[x] for x in fin_D(D, cur)] + [out_D(D, cur)]
                    spread(gaps, items, 4*D + 6 if D < 2 else 14, 4*D + 10 if D < 2 else 16)
            for f in range(16):
                t, D = vorder[f]
                if f % 2 == 0: L += wl([f"V{f}", f"V{f+1}"])
                L.append(f"v_mfma_f32_32x32x16_bf16 {vr(O+16*D,16)}, {vr(WIN+4*(f%8),4)}, {vr(Pr+4*t,4)}, {vr(O+16*D,16)}")
                if vissued < 16:
                    L += vread(vissued); vissued += 1
                L += gaps[f]
                if f == 6 and not last: L += s.ast(4)
            if not last:
                L += s.ast(5)
                L += [f"s_cmp_lg_u32 s{sPEND}, 0", f"s_cbranch_scc1 A_pend{tagp}", f"A_pend{tagp}r:"]
                L += s.ast(6)
                if s.opt.astamp >= 0:
                    L += ["s_waitcnt lgkmcnt(0)", f"s_cmp_eq_u32 s{sSTEP}, {s.opt.astamp}"]
                    L += [f"s_cselect_b32 s{50+i}, s{36+2*i}, s{50+i}" for i in range(7)]
            else:
                L += fin_D(3, cur) + out_D(3, cur)
            return L
        def out_D(D, src):
            L = []
            for h in range(2):
                L.append(f"ds_write_b128 v{QA}, {vr(src+8*D+4*h,4)} offset:{(2*D+h)*1024}")
            L.append(f"s_mov_b64 exec, s[{sEXLO}:{sEXHI}]")
            for h in range(2):
                L.append(f"s_add_u32 s71, s{sOBASE}, {(4*D+2*h)*1792}")
                L.append(f"buffer_store_dwordx4 {vr(src+8*D+4*h,4)}, v{OV}, {srd(sWS)}, s71 offen{s.ost1}{s.nths}")
            L.append("s_mov_b64 exec, -1")
            return L
        def rl_lines(dst):
            return [f"v_add_f32 v{T}, v{LS}, v{LS+1}", f"v_mov_b32 v{T+1}, v{T}", f"v_permlane32_swap_b32 v{T}, v{T+1}",
                    f"v_add_f32 v{T}, v{T}, v{T+1}", f"v_rcp_f32 v{dst}, v{T}"]

        s.lab("A_loop")
        for par in range(2):
            tagp = "e" if par == 0 else "o"
            s.emit(s.ast(0))
            A(f"s_bitcmp1_b32 s{sEV}, s{sSTEP}")
            A(f"s_cbranch_scc1 A_top{tagp}")
            A("s_barrier")
            s.lab(f"A_top{tagp}r")
            s.emit(step(par))
            A(f"s_add_u32 s{sSTEP}, s{sSTEP}, 1")
        A(f"s_cmp_lt_u32 s{sSTEP}, 16")
        A("s_cbranch_scc1 A_loop")
        A("s_barrier")
        s.emit(step(0, last=True))
        A("s_waitcnt lgkmcnt(0)")
        A("s_barrier")
        A(f"s_lshl_b32 s70, s{sMYB}, 7")
        A(f"s_add_u32 s70, s70, {FLAG_BASE}")
        A(f"s_lshl_b32 s71, s{sW}, 2")
        A("s_add_u32 s70, s70, s71")
        A(f"v_mov_b32 v{T}, 1")
        s.stamp("aE")
        A("s_waitcnt vmcnt(0)")
        s.stamp("adr")
        A("s_mov_b64 exec, 1")
        A(f"buffer_store_dword v{T}, off, {srd(sWS)}, s70{s.ofl1}")
        A("s_mov_b64 exec, -1")
        if o.wb:
            if o.wb == 1: A(f"s_cmp_eq_u32 s{sW}, 0")
            elif o.wb == 2:
                A(f"s_or_b32 s70, s{sW}, s{sHP}"); A("s_cmp_eq_u32 s70, 0")
            elif o.wb == 3:
                A(f"s_or_b32 s70, s{sW}, s{sHP}"); A(f"s_or_b32 s70, s70, s{sB}"); A("s_cmp_eq_u32 s70, 0")
            A("s_cbranch_scc0 A_nowb")
            A("buffer_wbl2 sc1")
            s.lab("A_nowb")
        if o.astamp >= 0:
            A(f"s_cmp_lg_u32 s{sW}, 0")
            A("s_cbranch_scc1 L_end")
            A("s_lshl_b32 s70, s2, 8")
            A(f"s_add_u32 s70, s70, {STAMP_BASE + 65536}")
            A("s_mov_b64 exec, 1")
            for i in range(7):
                A(f"v_mov_b32 v32, s{50+i}")
                A(f"buffer_store_dword v32, off, {srd(sWS)}, s70 offset:{4*i}")
                A("s_nop 1")
        if o.stamp and not o.dbgst and o.astamp < 0:
            A("s_waitcnt vmcnt(0) lgkmcnt(0)")
            A(f"s_cmp_lg_u32 s{sW}, 0")
            A("s_cbranch_scc1 L_end")
            n = len(o.stamps.split(","))
            A("s_lshl_b32 s70, s2, 8")
            A(f"s_add_u32 s70, s70, {STAMP_BASE + 65536}")
            A("s_mov_b64 exec, 1")
            for i in range(n):
                r = STAMP_REGS[i]
                A(f"v_mov_b32 v32, s{r}"); A(f"v_mov_b32 v33, s{r+1}")
                A(f"buffer_store_dwordx2 v[32:33], off, {srd(sWS)}, s70 offset:{8*i}")
                A("s_nop 1")
        A("s_endpgm")
        s.lab("A_tope")
        A(f"s_cmp_eq_u32 s{sSTEP}, 0")
        A("s_cbranch_scc0 A_top8")
        A(f"s_waitcnt vmcnt({n0})")
        A("s_barrier")
        for i in range(8):
            A(f"ds_read_b128 {vr(Q_+4*i,4)}, v{QA} offset:{i*1024}")
        A(f"v_add_u32 v{QA}, 16384, v{QA}")
        A("s_branch A_top8b")
        s.lab("A_top8")
        A("s_barrier")
        for i in range(8):
            A(f"ds_read_b128 {vr(Q_+4*i,4)}, v{QA} offset:{i*1024}")
        s.lab("A_top8b")
        A(f"s_mov_b32 s{sTHR}, 0xff800000")
        A("s_waitcnt lgkmcnt(0)")
        A("s_branch A_toper")
        s.lab("A_topo")
        A(f"s_cmp_eq_u32 s{sSTEP}, 1")
        A("s_cbranch_scc0 A_top7")
        A("s_waitcnt vmcnt(0)")
        A("s_barrier")
        A("s_branch A_topor")
        s.lab("A_top7")
        A(f"s_or_b32 s{sPEND}, s{sPEND}, 4")
        A("s_barrier")
        A("s_branch A_topor")
        for par in range(2):
            tagp = "e" if par == 0 else "o"; cur = SB[par]
            s.lab(f"A_resc{tagp}")
            A(f"v_mov_b32 v{U+1}, v{U}")
            A(f"v_permlane32_swap_b32 v{U}, v{U+1}")
            A(f"v_max_f32 v{U}, v{U}, v{U+1}")
            if par == 0:
                A(f"s_and_b32 s71, s{sSTEP}, 7")
                A("s_cmp_eq_u32 s71, 0")
                A("s_cbranch_scc1 A_hsw")
            A(f"v_max_f32 v{U}, 0, v{U}")
            A(f"v_sub_f32 v{U+1}, 0, v{U}")
            A(f"v_exp_f32 v{AL}, v{U+1}")
            A(f"s_or_b32 s{sPEND}, s{sPEND}, 1")
            A(f"v_mul_f32 v{LS}, v{AL}, v{LS}")
            A(f"v_mul_f32 v{LS+1}, v{AL}, v{LS+1}")
            if par == 0: s.lab("A_hswj")
            for i in range(32): A(f"v_sub_f32 v{cur+i}, v{cur+i}, v{U}")
            for i in range(16): A(f"v_sub_f32 v{NM+i}, v{NM+i}, v{U}")
            A(f"s_branch A_resc{tagp}r")
        s.lab("A_hsw")
        s.emit(rl_lines(RL))
        A(f"v_mov_b64 {vr(LS,2)}, 0")
        A(f"s_mov_b32 s{sTHR}, {hex(fbits(THR))}")
        A(f"s_lshr_b32 s{sPEND}, s{sSTEP}, 3")
        A(f"s_add_u32 s{sPEND}, s{sPEND}, 2")
        A(f"s_lshl_b32 s{sPEND}, s{sPEND}, 3")
        A("s_branch A_hswj")
        for par in range(2):
            tagp = "e" if par == 0 else "o"
            s.lab(f"A_pend{tagp}")
            if par == 0:
                A(f"s_cmp_ge_u32 s{sPEND}, 16")
                A("s_cbranch_scc1 A_pz")
            A(f"s_bitcmp1_b32 s{sPEND}, 0")
            A(f"s_cbranch_scc0 A_pn{tagp}")
            for i in range(32):
                A(f"v_pk_mul_f32 {vr(O+2*i,2)}, {vr(O+2*i,2)}, {vr(AL,2)} op_sel_hi:[1,0]")
            s.lab(f"A_pn{tagp}")
            if par == 1:
                A(f"s_bitcmp1_b32 s{sPEND}, 2")
                A(f"s_cbranch_scc0 A_pm{tagp}")
                for i in range(8): A(f"v_mov_b64 {vr(NM+2*i,2)}, 0")
                s.lab(f"A_pm{tagp}")
            A(f"s_mov_b32 s{sPEND}, 0")
            A(f"s_branch A_pend{tagp}r")
        s.lab("A_pz")
        A(f"s_cmp_eq_u32 s{sPEND}, 24")
        A("s_cbranch_scc0 A_pz2")
        A(f"v_mov_b32 v{AL}, v{RL}")
        for D in range(4):
            s.emit(fin_D(D, WIN))
            for h in range(2):
                A(f"ds_write_b128 v{QA}, {vr(WIN+8*D+4*h,4)} offset:{(2*D+h)*1024}")
        A("s_waitcnt lgkmcnt(0)")
        s.lab("A_pz2")
        for i in range(32): A(f"v_mov_b64 {vr(O+2*i,2)}, 0")
        A(f"s_mov_b32 s{sPEND}, 0")
        A(f"s_branch A_pender")

    def waveB(s):
        A = s.A; o = s.opt
        vV, vW, vK, WA, vWO, vO, vQW, vWB = 2, 3, 4, 8, 12, 13, 14, 15
        Y, vR, vOL, VP = 16, 17, 18, 20
        XA = 24
        WIN, X, ACC = 32, 64, 192
        q = Q(63)
        nt = " nt" if o.nt else ""
        PX = [P[1], P[2], W[0], W[2]]
        s.lab("L_B")
        s.stamp("b0")
        capL = s.L
        if o.pro2: s.L = []
        def mark(n):
            if o.pro2: s.L.append("@@" + n)
        A(f"v_mov_b32 v{vW}, v2")
        s.late_scalars()
        mark("clr0")
        if o.lead:
            A(f"s_or_b32 s70, s{sW}, s{sHG}")
            A(f"s_or_b32 s70, s70, s{sHP}")
            A("s_cmp_lg_u32 s70, 0")
            A("s_cbranch_scc1 B_nclr")
            A("v_mov_b64 v[28:29], 0")
            A("v_mov_b64 v[30:31], 0")
            A("v_lshlrev_b32 v23, 4, v1")
            A(f"s_lshl_b32 s70, s{sGRP}, 7")
            A(f"s_add_u32 s70, s70, {FLAG_BASE}")
            A(f"buffer_store_dwordx4 v[28:31], v23, {srd(sWS)}, s70 offen sc1")
            A(f"buffer_store_dwordx4 v[28:31], v23, {srd(sWS)}, s70 offen offset:1024 sc1")
            A("s_nop 1")
        else:
            A(f"s_cmp_lg_u32 s{sW}, 0")
            A("s_cbranch_scc1 B_nclr")
            A("v_mov_b32 v28, 0")
            A("v_lshlrev_b32 v29, 2, v1")
            A(f"s_lshl_b32 s70, s{sMYB}, 7")
            A(f"s_add_u32 s70, s70, {FLAG_BASE}")
            A("s_mov_b64 exec, 0xfff")
            A(f"buffer_store_dword v28, v29, {srd(sWS)}, s70 offen sc1")
            A("s_mov_b64 exec, -1")
        s.lab("B_nclr")
        mark("clr1")
        s.kv_voffs(vK, vV)
        A("v_lshlrev_b32 v23, 10, v19")
        A(f"v_add_u32 v{vWO}, v23, v21")
        mark("early0")
        A("v_lshrrev_b32 v22, 2, v20")
        A("v_and_b32 v23, 1, v19")
        A("v_lshlrev_b32 v28, 13, v17")
        A("v_lshlrev_b32 v29, 8, v22")
        A("v_add_u32 v28, v28, v29")
        A("v_lshlrev_b32 v29, 5, v23")
        A("v_add_u32 v28, v28, v29")
        A("v_and_b32 v29, 1, v18")
        A("v_lshlrev_b32 v29, 4, v29")
        A("v_add_u32 v28, v28, v29")
        A("v_lshrrev_b32 v29, 1, v18")
        A("v_lshlrev_b32 v29, 3, v29")
        A(f"v_add_u32 v{vWB}, v28, v29")
        A(f"v_add_u32 v28, {P[1]}, v{vWB}")
        for D in range(4):
            A(f"v_xor_b32 v29, {D}, v22")
            A(f"v_lshlrev_b32 v29, 6, v29")
            A(f"v_add_u32 v{WA+D}, v28, v29")
        A("v_and_b32 v28, 31, v1")
        A("v_lshrrev_b32 v29, 1, v28")
        A("v_and_b32 v29, 7, v29")
        A("v_lshlrev_b32 v30, 2, v17")
        A("v_xor_b32 v29, v29, v30")
        A("v_lshlrev_b32 v28, 7, v28")
        A(f"s_add_u32 s70, s{sW4K}, {P[1]}")
        A("v_add_u32 v28, s70, v28")
        for j in range(4):
            A(f"v_xor_b32 v30, {j}, v29")
            A(f"v_lshlrev_b32 v30, 4, v30")
            A(f"v_add_u32 v{XA+j}, v28, v30")
        mark("early1")
        if o.pro2: A("v_lshrrev_b32 v22, 2, v20")
        A(f"v_mul_u32_u24 v{vO}, 448, v17")
        A("v_and_b32 v29, 31, v1")
        A(f"v_add_u32 v{vO}, v{vO}, v29")
        A(f"s_lshl_b32 s70, s{sW}, 5")
        A(f"v_add_u32 v{vO}, s70, v{vO}")
        A(f"v_lshlrev_b32 v{vO}, 4, v{vO}")
        A(f"s_lshl_b32 s70, s{sW}, 13")
        A(f"s_add_u32 s70, s70, {W[0]}")
        A(f"v_lshlrev_b32 v{vQW}, 4, v1")
        A(f"v_add_u32 v{vQW}, s70, v{vQW}")
        A(f"v_lshlrev_b32 v30, 11, v17")
        A(f"v_lshlrev_b32 v29, 4, v29")
        A(f"v_add_u32 v30, v30, v29")
        A(f"s_add_u32 s70, s70, 16384")
        A(f"v_add_u32 v31, s70, v30")
        A(f"v_mov_b32 v{vOL}, v31")
        A(f"v_mov_b32 v{vR}, v22")
        A(f"v_add_u32 v{Y}, 3584, v{vO}")
        A(f"s_lshl_b32 s70, s{sHG}, 20")
        A(f"s_lshl_b32 s71, s{sW}, 14")
        A("s_add_u32 s70, s70, s71")
        A(f"s_lshl_b32 s71, s{sHP}, 8")
        A(f"s_add_u32 s{sWOB}, s70, s71")
        A(f"s_lshl_b32 s70, s{sBR}, 3")
        A(f"s_add_u32 s70, s70, s{sB}")
        A(f"s_lshl_b32 s70, s70, 5")
        A(f"s_lshl_b32 s71, s{sHG}, 3")
        A(f"s_add_u32 s70, s70, s71")
        A(f"s_mul_i32 s73, s70, {UNIT}")
        sH = (77, 79); sOH = (76, 3)
        if o.wrot:
            A(f"s_mul_i32 s76, s{sB}, 11")
            A("s_lshr_b32 s76, s76, 5")
            A("s_mul_i32 s76, s76, 3")
            A(f"s_sub_u32 s76, s{sB}, s76")
            if not (o.wrot & 1): A("s_mov_b32 s76, 0")
        for p in range(4):
            if o.wrot and p > 0:
                A(f"s_add_u32 s70, s76, {p - 1}")
                A("s_sub_u32 s71, s70, 3")
                A("s_cmp_ge_u32 s70, 3")
                A("s_cselect_b32 s70, s71, s70")
                A(f"s_add_u32 s70, s70, s{sHP}")
                A("s_add_u32 s70, s70, 1")
            else:
                A(f"s_add_u32 s70, s{sHP}, {p}")
            A("s_and_b32 s70, s70, 3")
            A(f"s_lshl_b32 s71, s70, 18")
            A(f"s_add_u32 s{sWP+p}, s{sWOB}, s71")
            A(f"s_mul_i32 s71, s70, {2*UNIT}")
            A(f"s_add_u32 s{sOP+p}, s73, s71")
        vOL2 = 19
        if o.wrot:
            A(f"s_and_b32 s70, s{sB}, 1")
            if not (o.wrot & 2): A("s_mov_b32 s70, 0")
            A(f"s_lshl_b32 s{sH[0]}, s70, 16")
            A(f"s_sub_u32 s{sH[1]}, 65536, s{sH[0]}")
            A(f"s_mul_i32 s{sOH[0]}, s70, 14336")
            A(f"s_sub_u32 s{sOH[1]}, 14336, s{sOH[0]}")
            A("s_lshl_b32 s70, s70, 12")
            A("s_sub_u32 s71, 4096, s70")
            A(f"v_add_u32 v{vOL2}, s71, v{vOL}")
            A(f"v_add_u32 v{vOL}, s70, v{vOL}")
        A(f"s_mov_b32 s74, {hex(fbits(CSCALE))}")
        sCS = 74
        sPF = 75

        def wait_vm(tags):
            n = q.wait(tags)
            if n is not None: A(f"s_waitcnt vmcnt({n})")
        def mat(groups):
            out = []
            for tag, ins in groups:
                q.issue(tag); out.append(ins)
            return out
        def dma_wo(rr, p, half, slot):
            g = []
            tagp, tagh = p, half
            if (o.abl & 64) and rr == 0 and p >= 1: p, half = 1, 1
            if (o.abl & 128) and rr == 0 and p >= 1: p, half = 0, 1
            for t in range(4):
                pre = [f"s_add_u32 m0, s{sW4K}, {slot}"] if (t == 0 or o.ilv) else []
                if o.wrot:
                    if t == 0: pre.append(f"s_add_u32 s72, s{sWP+p}, s{sH[half]}")
                    addr = f"s_add_u32 s71, s72, {rr*131072 + t*3072}"
                else:
                    addr = f"s_add_u32 s71, s{sWP+p}, {(rr*128 + 64*half)*1024 + t*3072}"
                g.append((f"O{rr}{tagp}{tagh}", pre + [addr,
                          f"buffer_load_dwordx4 v{vWO}, {srd(sWO)}, s71 offen offset:{t*1024}{' nt' if ((rr, p, half) in eval(o.ntoc)) else s.nto} lds"]))
            return g
        def of_mem(rr, p, half, tag, store=False, clean=False, blk=None):
            g = []
            xb = 2*p + half if blk is None else blk + half
            for jj in range(2):
                va = vO if jj == 0 else Y
                if o.wrot:
                    ins = [f"s_add_u32 s72, s{sOP+p}, s{sOH[half]}"] + ([f"s_add_u32 s72, s72, {rr*UNIT}"] if rr else []) + [f"s_mov_b64 exec, s[{sEXLO}:{sEXHI}]"]
                else:
                    ins = [f"s_add_u32 s72, s{sOP+p}, {rr*UNIT + half*8*1792}", f"s_mov_b64 exec, s[{sEXLO}:{sEXHI}]"]
                for j in (2*jj, 2*jj+1):
                    op = "buffer_store_dwordx4" if store else "buffer_load_dwordx4"
                    ins.append(f"{op} {vr(X+16*xb+4*j,4)}, v{va}, {srd(sWS)}, s72 offen offset:{(j&1)*1792}{(' sc1' if clean else s.ost0) if store else [' sc1', '', ' sc0'][o.fgl]}{s.nths if (store and not clean) else s.nthl if not store else ''}")
                ins.append("s_mov_b64 exec, -1")
                g.append(((tag, tag), ins))
            return g
        def mat2(groups):
            out = []
            for tag, ins in groups:
                if isinstance(tag, tuple):
                    for t_ in tag: q.issue(t_)
                else: q.issue(tag)
                out.append(ins)
            return out

        s.wbase = P[1]; s.xbase = P[1]
        def rebase_lines(regs, cur, nb):
            d = (nb - cur) & 0xffffffff
            return [f"v_add_u32 v{r}, {hex(d)}, v{r}" for r in regs]
        def base_for(slot, cur):
            if 0 <= slot - cur <= 49152: return cur
            for b in (P[1], W[0], P[0], P[2]):
                if 0 <= slot - b <= 49152: return b
            raise ValueError
        LA = o.la
        def frags_c(lst):
            fr = []
            for ci, (slot, xb, first) in enumerate(lst):
                fr += [(slot, xb, first and j == 0, j, D, ci) for j in range(4) for D in range(4)]
            return fr
        def stream(fr, fillers=None, prologue=False, gapfill=None, LA=LA):
            n = len(fr)
            lq = Q(15)
            def xrd(ci, j):
                slot = PX[ci % 4]; r = []
                nb = base_for(slot, s.xbase)
                if nb != s.xbase:
                    r += rebase_lines(range(XA, XA+4), s.xbase, nb); s.xbase = nb
                lq.issue(f"X{ci}_{j}")
                r.append(f"ds_read_b128 {vr(X+16*ci+4*j,4)}, v{XA+j} offset:{slot - s.xbase}")
                return r
            def rd(f):
                slot, xb, zero, j, D, ci = fr[f]; r = []
                if prologue and j == 0 and D == 0 and ci > 0:
                    r += s.stamp_lines(f"x{ci}")
                    r.append("s_barrier")
                    r += s.stamp_lines(f"p{ci}")
                nb = base_for(slot, s.wbase)
                if nb != s.wbase:
                    r += rebase_lines(range(WA, WA+4), s.wbase, nb); s.wbase = nb
                if prologue and D == 0: r += xrd(ci, j)
                for a in range(2):
                    lq.issue(f)
                    r.append(f"ds_read_b64_tr_b16 {vr(WIN+4*(f%8)+2*a,2)}, v{WA+D} offset:{slot-s.wbase + j*2048 + a*1024}")
                return r
            gaps = gapfill if gapfill is not None else [[] for _ in range(n)]
            if fillers: spread(gaps, fillers, 0, n)
            for f in range(min(LA, n)): s.emit(rd(f))
            issued = min(LA, n)
            for f in range(n):
                slot, xb, zero, j, D, ci = fr[f]
                k = lq.wait([f, f + 1] if (f % 2 == 0 and f + 1 < issued) else [f])
                if k is not None: A(f"s_waitcnt lgkmcnt({k})")
                srcC = "0" if zero else vr(ACC+16*D, 16)
                A(f"v_mfma_f32_32x32x16_bf16 {vr(ACC+16*D,16)}, {vr(WIN+4*(f%8),4)}, {vr(X+16*xb+4*j,4)}, {srcC}")
                if issued < n:
                    s.emit(rd(issued)); issued += 1
                s.emit(gaps[f])
        def write_q(base_off):
            for D in range(4):
                for i in range(16):
                    A(f"v_mul_f32 v{ACC+16*D+i}, s{sCS}, v{ACC+16*D+i}")
                for h in range(2):
                    f = 2*D + h
                    for i in range(4):
                        A(f"v_cvt_pk_bf16_f32 v{WIN+4*f+i}, v{ACC+16*D+8*h+2*i}, v{ACC+16*D+8*h+2*i+1}")
                    A(f"ds_write_b128 v{vQW}, {vr(WIN+4*f,4)} offset:{base_off + f*1024}")
            A("s_waitcnt lgkmcnt(0)")
        def pair(j):
            a = s.dma_k(j, vK, nt, f"KV{j}") if j <= 15 else []
            b = s.dma_v(j, vV, nt, f"KV{j}") if j >= 1 else []
            return a + b
        def own_frags():
            for half in range(2):
                for j in range(4):
                    if o.wrot: A(f"ds_read_b128 {vr(X+16*half+4*j,4)}, v{(vOL, vOL2)[half]} offset:{j*512}")
                    else: A(f"ds_read_b128 {vr(X+16*half+4*j,4)}, v{vOL} offset:{half*4096 + j*512}")
            A("s_waitcnt lgkmcnt(0)")

        A(f"v_add_u32 v21, s{sHP}, v1")
        A("v_add_u32 v21, 1, v21")
        A("v_and_b32 v21, 3, v21")
        A(f"v_add_u32 v21, s{sGRP}, v21")
        A("v_lshlrev_b32 v21, 7, v21")
        A(f"v_add_u32 v22, s{sHG}, v1")
        A("v_add_u32 v22, 1, v22")
        A("v_and_b32 v22, 3, v22")
        A("v_lshlrev_b32 v22, 2, v22")
        A(f"s_and_b32 s71, s{sGRP}, {hex(0xfffffff0)}")
        A(f"s_add_u32 s71, s71, s{sHP}")
        A("v_add_u32 v22, s71, v22")
        A("v_lshlrev_b32 v22, 7, v22")
        A("v_lshlrev_b32 v23, 4, v1")
        A(f"s_lshl_b32 s{sPF}, s{sHG}, 20")
        A("s_lshr_b32 s70, s2, 3")
        A("s_lshl_b32 s70, s70, 15")
        A(f"s_add_u32 s{sPF}, s{sPF}, s70")
        A(f"s_lshl_b32 s70, s{sW}, 13")
        A(f"s_add_u32 s{sPF}, s{sPF}, s70")
        def wq_pieces(D, base_off):
            L = [f"v_pk_mul_f32 {vr(ACC+16*D+2*i,2)}, {vr(ACC+16*D+2*i,2)}, s[{sCS}:{sCS+1}] op_sel_hi:[1,0]" for i in range(8)]
            for h in range(2):
                L += [f"v_cvt_pk_bf16_f32 v{ACC+16*D+4*h+i}, v{ACC+16*D+8*h+2*i}, v{ACC+16*D+8*h+2*i+1}" for i in range(4)]
                L.append(f"ds_write_b128 v{vQW}, {vr(ACC+16*D+4*h,4)} offset:{base_off + (2*D+h)*1024}")
            return L
        def douter(fr):
            last = fr[-16:]
            return fr[:-16] + sorted(last, key=lambda f: (f[4], f[3]))
        def dq_gaps(gaps, base_off):
            n = len(gaps); b = n - 16
            for D in range(3):
                spread(gaps, [[x] for x in wq_pieces(D, base_off)], b + 4*D + 5, min(b + 4*D + 9, n))
        def dq_end(base_off):
            s.emit(wq_pieces(3, base_off))
            A("s_waitcnt lgkmcnt(0)")
        fr0 = frags_c([(PX[c % 4] + 16384, c, c == 0) for c in range(8)])
        gaps0 = [[] for _ in fr0]
        if o.pro2:
            setup = s.L; s.L = capL
            sec = {"pre": [], "clr": [], "mid": [], "early": [], "post": []}
            cur = "pre"
            nxt = {"@@clr0": "clr", "@@clr1": "mid", "@@early0": "early", "@@early1": "post"}
            for l in setup:
                if l in nxt: cur = nxt[l]
                else: sec[cur].append(l if l.endswith(":") else l.strip())
            s.emit(sec["early"])
            fill = [[l] for l in sec["pre"]] + [sec["clr"]] + [[l] for l in sec["mid"] + sec["post"]]
            if o.pro2 == 1: spread(gaps0, fill, 2, 108)
            else:
                for g_ in fill: s.emit(g_)
            s.stamp("bs")
        else:
            s.stamp("bs")
            A("s_waitcnt vmcnt(0)")
        s.stamp("x0")
        A("s_barrier")
        s.stamp("p0")
        if o.dq:
            fr0 = douter(fr0); dq_gaps(gaps0, 0)
        stream(fr0, None, prologue=True, gapfill=gaps0, LA=(min(LA, 5) if o.dq else LA))
        if o.dq: dq_end(0)
        else: write_q(0)
        s.stamp("pro")
        def poll_check(vsrc, shift):
            A(f"v_readfirstlane_b32 s70, v{vsrc} ; @val=POLL")
            if shift == 0:
                A("s_lshr_b32 s71, s70, 1"); A("s_or_b32 s70, s70, s71")
            else:
                A(f"s_lshr_b32 s70, s70, {shift}")
            A("s_and_b32 s70, s70, 0x01010101")
            A("s_cmp_eq_u32 s70, 0x01010101")
        def mid_poll(slow=False):
            if o.lead:
                return [f"s_and_b32 s71, s{sGRP}, {hex(0xfffffff0)}",
                        f"buffer_load_dword v24, off, {srd(sDBG)}, s71{' sc1' if (slow or o.lead == 2) else ''}"]
            return [f"s_and_b32 s71, s{sGRP}, {hex(0xfffffff0)}",
                    f"buffer_load_dwordx4 v[24:27], off, {srd(sDBG)}, s71 sc1"]
        def mid_check():
            if o.lead:
                return [f"v_readfirstlane_b32 s70, v24 ; @val=POLL",
                        "s_and_b32 s70, s70, 0x01010101", "s_cmp_eq_u32 s70, 0x01010101"]
            return [f"v_and_b32 v24, v24, v25", f"v_and_b32 v26, v26, v27",
                    f"v_and_b32 v24, v24, v26",
                    "s_nop 0",
                    f"v_readfirstlane_b32 s70, v24 ; @val=POLL",
                    "s_and_b32 s70, s70, 0x01010101", "s_cmp_eq_u32 s70, 0x01010101"]
        def wave_poll(vaddr, nm, drain=True):
            A(f"s_mov_b32 s{sSPIN}, 0")
            A("s_mov_b64 exec, 7")
            s.lab(f"B_{nm}")
            A(f"buffer_load_dword v{VP}, v{vaddr}, {srd(sWS)}, s72 offen sc1")
            A("s_waitcnt vmcnt(0)")
            A(f"v_cmp_ne_u32 vcc, 0, v{VP}")
            A("s_cmp_eq_u32 vcc_lo, 7")
            A(f"s_cbranch_scc1 B_{nm}d ; @taken")
            A(f"s_add_u32 s{sSPIN}, s{sSPIN}, 1")
            A(f"s_cmp_lt_u32 s{sSPIN}, {o.spin}")
            A(f"s_cbranch_scc1 B_{nm}")
            s.lab(f"B_{nm}d")
            A("s_mov_b64 exec, -1")
            if drain: q.drain()
        wq_slot = lambda c: (P[0] + 16384) if c == 0 else W[(c + 1) % 4]
        wq_issue = {0: [1, 2], 1: [3], 2: [4], 3: [5], 4: [6], 5: [7]}
        wo0_slot = {(0,0): W[3], (0,1): W[0], (1,0): W[0], (1,1): W[1], (2,0): W[2], (2,1): W[3], (3,0): P[1], (3,1): P[2]}
        wo0_issue = eval(o.w0i)
        wo0_use = eval(o.w0u)
        ords = eval(o.ords)
        of0_issue = eval(o.f0)
        pf_issue = {1: [0, 1], 2: [2, 3], 3: [4], 4: [5], 5: [6], 6: [7]}
        wo1_slot = {(0,0): P[2] + 16384, (0,1): P[1] + 16384, (1,0): W[0], (1,1): W[1], (2,0): W[2], (2,1): W[3], (3,0): P[1], (3,1): P[2]}
        wo1_issue = eval(o.w1i)
        FL0AT = o.fl0at if o.fl0at else o.s0at + 1
        PO0 = o.po0
        def flag_check(nm):
            A("s_mov_b64 exec, 7")
            A(f"v_cmp_ne_u32 vcc, 0, v{VP}")
            A("s_mov_b64 exec, -1")
            A("s_cmp_eq_u32 vcc_lo, 7")
            A(f"s_cbranch_scc0 B_slow{nm} ; @nottaken")
            s.lab(f"B_slow{nm}r")
        for st in range(17):
            s.stamp(f"c{st}")
            tags = [f"KV{st}"]
            if 1 <= st <= 7: tags.append(f"Q{st}")
            for (p, h) in wo0_use.get(st, []):
                tags += [f"O0{p}{h}", f"F{p}"]
            if st == FL0AT: tags.append("S0")
            if st == PO0 + 1: tags.append("POLL")
            if st == 9: tags.append("POLL0")
            if st == 8: tags.append("PF")
            wait_vm(tags)
            s.stamp(f"w{st}")
            A("s_barrier")
            s.stamp(f"s{st}")
            if st == 8:
                for d in range(4):
                    A(f"s_add_u32 s70, s{sHG}, {1 + d}")
                    A("s_and_b32 s70, s70, 3")
                    A(f"v_xor_b32 v29, s70, v{vR}")
                    A("v_lshlrev_b32 v29, 6, v29")
                    A(f"v_add_u32 v29, v29, v{vWB}")
                    A(f"v_add_u32 v{WA+d}, {s.wbase}, v29")
            pre_groups = []
            if st == 9:
                own_frags()
            g_s = []
            s0sp = eval(o.s0sp) if o.s0sp else {o.s0at: [0, 1, 2, 3]}
            assert max(s0sp) == o.s0at
            if st in s0sp:
                g_s = of_mem(0, 0, 0, "S0", store=True) + of_mem(0, 0, 1, "S0", store=True)
                g_s = [g_s[i] for i in s0sp[st]]
                if "s" not in ords.get(st, o.order): pre_groups = g_s
            if st == 2 and not (o.abl & 16):
                if o.lead:
                    A(f"s_or_b32 s70, s{sW}, s{sHG}")
                    A(f"s_or_b32 s70, s70, s{sHP}")
                    A("s_cmp_lg_u32 s70, 0")
                    A(f"s_cbranch_scc1 B_nf{st}")
                    A("v_mov_b32 v28, 0x01010101")
                    A("s_mov_b64 exec, 1")
                    A(f"buffer_store_dword v28, off, {srd(sDBG)}, s{sGRP} sc1")
                    A("s_mov_b64 exec, -1")
                else:
                    A(f"s_cmp_lg_u32 s{sW}, 0")
                    A(f"s_cbranch_scc1 B_nf{st}")
                    s.flag_store(1, 28)
                s.lab(f"B_nf{st}")
            if st == 8 and not (o.abl & 32):
                s.emit(mid_poll()); q.issue("POLL0")
            if st == 9 and not (o.abl & 32):
                s.emit(mid_check())
                A("s_cbranch_scc0 B_slow0 ; @nottaken")
                s.lab("B_slow0r")
                s.stamp("chk0")
            if st == FL0AT and not (o.abl & 4):
                A(f"s_lshl_b32 s70, s{sMYB}, 7")
                A(f"s_lshl_b32 s71, s{sW}, 2")
                A(f"s_add_u32 s71, s71, {FLAG_BASE + 32}")
                A("s_add_u32 s70, s70, s71")
                A("v_mov_b32 v28, 1")
                A("s_mov_b64 exec, 1")
                A(f"buffer_store_dword v28, off, {srd(sWS)}, s70{s.ofl0}")
                A("s_mov_b64 exec, -1")
                q.issue("FL0")
            if st == PO0 and not (o.abl & 4):
                A(f"s_lshl_b32 s72, s{sW}, 2")
                A(f"s_add_u32 s72, s72, {FLAG_BASE + 32}")
                A("s_mov_b64 exec, 7")
                A(f"buffer_load_dword v{VP}, v21, {srd(sWS)}, s72 offen sc1"); q.issue("POLL")
                A("s_mov_b64 exec, -1")
            if st == PO0 + 1 and not (o.abl & 4):
                flag_check("1")
                s.stamp("chk")
            g_kv = pair(st + 2) if st + 2 <= 16 else []
            g_w = []
            for c in wq_issue.get(st, []): g_w += s.dma_wq(c, wq_slot(c), vW, f"Q{c}", 256, 72)
            for (p, h) in wo0_issue.get(st, []): g_w += dma_wo(0, p, h, wo0_slot[(p, h)])
            g_f = []
            for p in of0_issue.get(st, []): g_f += of_mem(0, p, 0, f"F{p}") + of_mem(0, p, 1, f"F{p}")
            g_1 = []
            for (p, h) in wo1_issue.get(st, []): g_1 += dma_wo(1, p, h, wo1_slot[(p, h)])
            g_p = []
            if o.pf:
                for t in pf_issue.get(st, []):
                    g_p.append(("PF", [f"s_add_u32 s71, s{sPF}, {t*1024}",
                                       f"buffer_load_dwordx4 v[24:27], v23, {srd(sWO)}, s71 offen ; @dummy"]))
            if (o.abl & 1) and 10 <= st <= 13: g_w = []
            if st in eval(o.ablw): g_w = []
            if o.abl & 2: pre_groups = []
            if (o.abl & 8) and 8 <= st <= 13: g_kv = g_kv[:4]
            gm = {"w": g_w + g_1, "f": g_f, "k": g_kv, "p": g_p, "s": g_s}
            groups = pre_groups + sum((gm[c] for c in ords.get(st, o.order)), [])
            if o.ilv and st >= o.ilv0:
                oth = (pre_groups if o.ilv & 2 else []) + sum((gm[c] for c in o.order if c != "k"), [])
                def pos(lst, ph):
                    w = [2 if isinstance(g[0], tuple) else 1 for g in lst]; tot = sum(w); acc = 0; r = []
                    for g, x in zip(lst, w):
                        r.append(((acc + ph * x) / tot, g)); acc += x
                    return r
                a_ = pos(g_kv, 0.0) if g_kv else []
                b_ = pos(oth, 0.5) if oth else []
                merged = sorted([(x, 0, i, g) for i, (x, g) in enumerate(a_)] + [(x, 1, i, g) for i, (x, g) in enumerate(b_)], key=lambda z: (z[0], z[1], z[2]))
                groups = ([] if o.ilv & 2 else pre_groups) + [z[3] for z in merged]
            mem = mat2(groups)
            use = ([(wq_slot(st), st, st == 0)] if st <= 7 else []) + \
                  [(wo0_slot[(p, h)], 2*p + h, (p, h) == (0, 0)) for (p, h) in wo0_use.get(st, [])]
            if use and st == 7 and o.dq:
                fr7 = douter(frags_c(use)); g7 = [[] for _ in fr7]
                if not o.s7f: spread(g7, mem, 0, 16)
                dq_gaps(g7, 16384)
                stream(fr7, None, gapfill=g7)
                dq_end(16384)
                if o.s7f:
                    for g_ in mem: s.emit(g_)
            elif use:
                stream(frags_c(use), mem)
                if st == 7: write_q(16384)
            else:
                for gi, g_ in enumerate(mem):
                    s.emit(g_); s.stamp(f"m{st}_{gi}")
            s.stamp(f"d{st}")
        sPD = [sWP, sWP + 1, sWP + 2] if o.tail in (1, 3) else [82, 83, 84]
        def addr_prep():
            A("v_lshrrev_b32 v17, 5, v1")
            A("v_mul_u32_u24 v23, 112, v17")
            A("v_and_b32 v18, 31, v1")
            A("v_add_u32 v23, v23, v18")
            A(f"s_lshl_b32 s70, s{sW}, 5")
            A("v_add_u32 v23, s70, v23")
            A("v_add_u32 v19, s70, v18")
            A("v_lshlrev_b32 v23, 4, v23")
            A(f"s_lshl_b32 s70, s{sBR}, 3")
            A(f"s_add_u32 s70, s70, s{sB}")
            A(f"s_lshl_b32 s70, s70, 2")
            A(f"s_add_u32 s70, s70, s{sHP}")
            A(f"s_mul_i32 s73, s70, {12*PSZ}")
            A(f"s_add_u32 s73, s73, {PART_BASE}")
            for d in range(3):
                A(f"s_add_u32 s70, s{sHG}, {1 + d}")
                A("s_and_b32 s70, s70, 3")
                A(f"s_mul_i32 s70, s70, {3*PSZ}")
                A(f"s_add_u32 s70, s70, s73")
                A(f"s_add_u32 s{sPD[d]}, s70, {(2-d)*PSZ}")
            A("v_lshlrev_b32 v19, 11, v19")
            A("v_lshlrev_b32 v17, 4, v17")
            A("v_add_u32 v19, v19, v17")
        def pub(d):
            r = []
            for rq in range(4):
                r.append([f"s_add_u32 s70, s{sPD[d]}, {rq*3584}", f"s_mov_b64 exec, s[{sEXLO}:{sEXHI}]",
                          f"buffer_store_dwordx4 {vr(ACC+16*d+4*rq,4)}, v23, {srd(sWS)}, s70 offen sc1{s.nths}", "s_mov_b64 exec, -1"])
            return r
        def tail1():
            used0 = set(x for v in wo0_use.values() for x in v)
            tail0 = [(p, h) for p in range(4) for h in range(2) if (p, h) not in used0]
            tailF = sorted(set(p for p, h in tail0))
            assert all((p, 0) in tail0 or (p, 0) in used0 for p in tailF)
            issued1 = set(x for v in wo1_issue.values() for x in v)
            def ftags(p): return [f"O0{p}{h}" for h in range(2) if (p, h) in tail0] + ([f"F{p}"] if p else [])
            wait_vm(ftags(tailF[0]) + ["O100"])
            A(f"v_add_u32 v{vOL}, {hex((P[0] - W[1]) & 0xffffffff)}, v{vOL}")
            if o.wrot: A(f"v_add_u32 v{vOL2}, {hex((P[0] - W[1]) & 0xffffffff)}, v{vOL2}")
            A("s_barrier")
            s.stamp("E")
            busy = set(wo0_slot[c] for c in tail0)
            avail = [c for c in [(0, 1), (1, 0), (1, 1), (2, 0), (2, 1), (3, 0), (3, 1)] if c not in issued1 and wo1_slot[c] not in busy]
            for i, p in enumerate(tailF):
                fl = mat2(sum((dma_wo(1, pp, hh, wo1_slot[(pp, hh)]) for (pp, hh) in avail), []))
                issued1 |= set(avail)
                stream(frags_c([(wo0_slot[(p, h)], 2*p + h, False) for h in range(2) if (p, h) in tail0]), fl)
                for h in range(2): busy.discard(wo0_slot[(p, h)])
                avail = [c for c in [(0, 1), (1, 0), (1, 1), (2, 0), (2, 1), (3, 0), (3, 1)] if c not in issued1 and wo1_slot[c] not in busy]
                if i + 1 < len(tailF):
                    wait_vm(ftags(tailF[i + 1]))
                    A("s_barrier")
                    s.stamp(f"T{i}")
            own_frags()
            wait_vm("O101")
            A("s_barrier")
            s.stamp("Ta")
            fl = mat2(sum((dma_wo(1, pp, hh, wo1_slot[(pp, hh)]) for (pp, hh) in avail), []))
            issued1 |= set(avail)
            assert len(issued1) == 8, issued1
            stream(frags_c([(wo1_slot[(0, 0)], 0, False), (wo1_slot[(0, 1)], 1, False)]), fl)
            s.stamp("own")
            addr_prep()
            A(f"s_lshl_b32 s72, s{sW}, 2")
            A(f"s_add_u32 s72, s72, {FLAG_BASE}")
            wave_poll(21, "poll1")
            s.stamp("poll1")
            gl = lambda p: of_mem(1, p, 0, f"G{p}") + of_mem(1, p, 1, f"G{p}")
            for g_ in mat2(gl(1) + gl(2)): s.emit(g_)
            A("s_barrier")
            ND = 3 if o.defer else 4
            for p in (1, 2):
                wait_vm(f"G{p}")
                if p == 1: s.stamp("g1")
                fl = mat2(gl(3)) if p == 1 else None
                stream([f for f in frags_c([(wo1_slot[(p, 0)], 2*p, False), (wo1_slot[(p, 1)], 2*p + 1, False)]) if f[4] < ND], fl)
            wait_vm("G3")
            fr = []
            for d in range(ND):
                for half in range(2):
                    for j in range(4):
                        fr.append((wo1_slot[(3, half)], 6 + half, False, j, d, half))
            for p in ((1, 2, 3) if o.defer else ()):
                for half in range(2):
                    for j in range(4):
                        fr.append((wo1_slot[(p, half)], 2*p + half, False, j, 3, half))
            gaps = [[] for _ in range(len(fr))]
            for d in range(3):
                spread(gaps, pub(d), 8*d + 8 + 3, 8*d + 8 + 7)
            stream(fr, None, gapfill=gaps)
        def tail2():
            used0 = set(x for v in wo0_use.values() for x in v)
            assert used0 == {(0, 0), (0, 1)}
            fdone = set(p for v in of0_issue.values() for p in v)
            assert wo1_issue == {15: [(0, 0)]}
            gb = lambda p: 2 * (p - 1)
            gl = lambda p: of_mem(1, p, 0, f"G{p}", blk=gb(p)) + of_mem(1, p, 1, f"G{p}", blk=gb(p))
            w1 = lambda cs: sum((dma_wo(1, pp, hh, wo1_slot[(pp, hh)]) for (pp, hh) in cs), [])
            fw = lambda p: frags_c([(wo0_slot[(p, 0)], 2*p, False), (wo0_slot[(p, 1)], 2*p + 1, False)])
            tags = [f"O0{p}{h}" for p in (1, 2, 3) for h in range(2)] + ["O100"]
            if PO0 == 16: tags.append("POLL")
            wait_vm(tags)
            A(f"v_add_u32 v{vOL}, {hex((P[0] - W[1]) & 0xffffffff)}, v{vOL}")
            if o.wrot: A(f"v_add_u32 v{vOL2}, {hex((P[0] - W[1]) & 0xffffffff)}, v{vOL2}")
            if PO0 == 16:
                flag_check("1")
                s.stamp("chk")
            rest = [p for p in (1, 2, 3) if p not in fdone]
            if o.fpre and PO0 == 16:
                for p in rest:
                    for g_ in mat2(of_mem(0, p, 0, f"F{p}") + of_mem(0, p, 1, f"F{p}")): s.emit(g_)
                rest = []
            A("s_barrier")
            s.stamp("E")
            for g_ in mat2(w1([(0, 1)])): s.emit(g_)
            for p in rest:
                for g_ in mat2(of_mem(0, p, 0, f"F{p}") + of_mem(0, p, 1, f"F{p}")): s.emit(g_)
            own_frags()
            stream(frags_c([(wo1_slot[(0, 0)], 0, False)]), None)
            addr_prep()
            wait_vm("O101")
            A("s_barrier")
            s.stamp("Ta")
            stream(frags_c([(wo1_slot[(0, 1)], 1, False)]), None)
            s.stamp("own")
            wait_vm("F1")
            s.stamp("f1")
            stream(fw(1), None)
            wait_vm("F2")
            A("s_barrier")
            A(f"s_lshl_b32 s72, s{sW}, 2")
            A(f"s_add_u32 s72, s72, {FLAG_BASE}")
            A("s_mov_b64 exec, 7")
            A(f"buffer_load_dword v{VP}, v21, {srd(sWS)}, s72 offen sc1"); q.issue("POLL1")
            A("s_mov_b64 exec, -1")
            s.stamp("f2")
            stream(fw(2), mat2(w1([(1, 0), (1, 1)])))
            wait_vm(["POLL1", "F3"])
            A("s_barrier")
            flag_check("2")
            s.stamp("poll1")
            for g_ in mat2(gl(1)): s.emit(g_)
            stream(fw(3), mat2(gl(2) + w1([(2, 0), (2, 1)]) + gl(3)))
            wait_vm(["O110", "O111"])
            A("s_barrier")
            s.stamp("f3")
            for g_ in mat2(w1([(3, 0), (3, 1)])): s.emit(g_)
            ND = 3 if o.defer else 4
            for p in (1, 2):
                if p == 2:
                    wait_vm(["O120", "O121", "G2"])
                    A("s_barrier")
                else:
                    wait_vm("G1")
                    s.stamp("g1")
                stream([f for f in frags_c([(wo1_slot[(p, 0)], gb(p), False), (wo1_slot[(p, 1)], gb(p) + 1, False)]) if f[4] < ND], None)
            wait_vm(["G3", "O130", "O131"])
            A("s_barrier")
            fr = []
            for d in range(ND):
                for half in range(2):
                    for j in range(4):
                        fr.append((wo1_slot[(3, half)], gb(3) + half, False, j, d, half))
            for p in ((1, 2, 3) if o.defer else ()):
                for half in range(2):
                    for j in range(4):
                        fr.append((wo1_slot[(p, half)], gb(p) + half, False, j, 3, half))
            gaps = [[] for _ in range(len(fr))]
            for d in range(3):
                spread(gaps, pub(d), 8*d + 8 + 3, 8*d + 8 + 7)
            stream(fr, None, gapfill=gaps)
        def tail3():
            used0 = set(x for v in wo0_use.values() for x in v)
            assert used0 == {(0, 0), (0, 1)}
            assert wo1_issue == {15: [(0, 0)]}
            gl = lambda p: of_mem(1, p, 0, f"G{p}") + of_mem(1, p, 1, f"G{p}")
            w1 = lambda cs: sum((dma_wo(1, pp, hh, wo1_slot[(pp, hh)]) for (pp, hh) in cs), [])
            fw = lambda p: frags_c([(wo0_slot[(p, 0)], 2*p, False), (wo0_slot[(p, 1)], 2*p + 1, False)])
            ft = lambda p: [f"O0{p}0", f"O0{p}1", f"F{p}"]
            def poll_issue():
                A(f"s_lshl_b32 s72, s{sW}, 2")
                A(f"s_add_u32 s72, s72, {FLAG_BASE}")
                A("s_mov_b64 exec, 7")
                A(f"buffer_load_dword v{VP}, v21, {srd(sWS)}, s72 offen sc1"); q.issue("POLL1")
                A("s_mov_b64 exec, -1")
            wait_vm(ft(1) + ["O100"])
            A(f"v_add_u32 v{vOL}, {hex((P[0] - W[1]) & 0xffffffff)}, v{vOL}")
            if o.wrot: A(f"v_add_u32 v{vOL2}, {hex((P[0] - W[1]) & 0xffffffff)}, v{vOL2}")
            A("s_barrier")
            s.stamp("E")
            if o.t3a == 0: stream(fw(1), mat2(w1([(0, 1)])))
            else:
                stream(fw(1), None)
                for g_ in mat2(w1([(0, 1)])): s.emit(g_)
            wait_vm(ft(2))
            A("s_barrier")
            s.stamp("T0")
            if o.t3p == 0: poll_issue()
            stream(fw(2), mat2(w1([(1, 0), (1, 1)])))
            if o.t3p == 1: poll_issue()
            wait_vm(ft(3) + (["POLL1"] if o.t3p == 0 else []))
            A("s_barrier")
            s.stamp("T1")
            if o.t3p == 0:
                flag_check("2")
                s.stamp("poll1")
                stream(fw(3), mat2(gl(1) + w1([(2, 0), (2, 1)]) + gl(2)))
            else:
                stream(fw(3), mat2(w1([(2, 0), (2, 1)])))
                wait_vm("POLL1")
                flag_check("2")
                s.stamp("poll1")
                for g_ in mat2(gl(1)): s.emit(g_)
            own_frags()
            wait_vm("O101")
            A("s_barrier")
            s.stamp("Ta")
            stream(frags_c([(wo1_slot[(0, 0)], 0, False), (wo1_slot[(0, 1)], 1, False)]),
                   mat2((gl(2) if o.t3p == 1 else []) + (gl(3) + w1([(3, 0), (3, 1)]) if o.t3g == 0 else w1([(3, 0), (3, 1)]) + gl(3))))
            s.stamp("own")
            addr_prep()
            ND = 3 if o.defer else 4
            for p in (1, 2):
                wait_vm([f"O1{p}0", f"O1{p}1", f"G{p}"])
                A("s_barrier")
                if p == 1: s.stamp("g1")
                stream([f for f in frags_c([(wo1_slot[(p, 0)], 2*p, False), (wo1_slot[(p, 1)], 2*p + 1, False)]) if f[4] < ND], None)
            wait_vm(["G3", "O130", "O131"])
            A("s_barrier")
            fr = []
            for d in range(ND):
                for half in range(2):
                    for j in range(4):
                        fr.append((wo1_slot[(3, half)], 6 + half, False, j, d, half))
            for p in ((1, 2, 3) if o.defer else ()):
                for half in range(2):
                    for j in range(4):
                        fr.append((wo1_slot[(p, half)], 2*p + half, False, j, 3, half))
            gaps = [[] for _ in range(len(fr))]
            for d in range(3):
                spread(gaps, pub(d), 8*d + 8 + 3, 8*d + 8 + 7)
            stream(fr, None, gapfill=gaps)
        {1: tail1, 2: tail2, 3: tail3}[o.tail]()
        s.stamp("oproj")
        A(f"s_lshl_b32 s70, s{sMYB}, 7")
        A(f"s_lshl_b32 s72, s{sW}, 2")
        A(f"s_add_u32 s72, s72, {FLAG_BASE + 16}")
        A("s_add_u32 s70, s70, s72")
        A("v_mov_b32 v20, 1")
        A("s_waitcnt vmcnt(0)")
        s.stamp("pst")
        A("s_mov_b64 exec, 1")
        A(f"buffer_store_dword v20, off, {srd(sWS)}, s70 sc1")
        if o.cl & 2:
            A("s_mov_b64 exec, -1")
            for g_ in mat2(of_mem(1, 3, 0, "CL1", store=True, clean=True) + of_mem(1, 3, 1, "CL1", store=True, clean=True)): s.emit(g_)
            A(f"s_lshl_b32 s72, s{sW}, 2")
            A(f"s_add_u32 s72, s72, {FLAG_BASE + 16}")
        wave_poll(22, "poll2")
        s.stamp("poll2")
        A(f"s_mul_i32 s71, s{sHG}, {3*PSZ}")
        A("s_add_u32 s73, s73, s71")
        R = 64
        A(f"s_mov_b64 exec, s[{sEXLO}:{sEXHI}]")
        for src in range(3):
            for rq in range(4):
                A(f"s_add_u32 s70, s73, {src*PSZ + rq*3584}")
                A(f"buffer_load_dwordx4 {vr(R+16*src+4*rq,4)}, v23, {srd(sWS)}, s70 offen sc1{s.nthl}")
        A(f"s_mul_i32 s70, s{sB}, {112*2048}")
        A(f"s_lshl_b32 s71, s{sBR}, 10")
        A("s_add_u32 s70, s70, s71")
        A(f"s_lshl_b32 s71, s{sHP}, 8")
        A("s_add_u32 s70, s70, s71")
        A(f"s_lshl_b32 s71, s{sHG}, 6")
        A("s_add_u32 s70, s70, s71")
        OWN = ACC + 48
        A("s_waitcnt vmcnt(8)")
        for i in range(8): A(f"v_pk_add_f32 {vr(OWN+2*i,2)}, {vr(OWN+2*i,2)}, {vr(R+2*i,2)}")
        A("s_waitcnt vmcnt(4)")
        for i in range(8): A(f"v_pk_add_f32 {vr(OWN+2*i,2)}, {vr(OWN+2*i,2)}, {vr(R+16+2*i,2)}")
        A("s_waitcnt vmcnt(0)")
        for i in range(8): A(f"v_pk_add_f32 {vr(OWN+2*i,2)}, {vr(OWN+2*i,2)}, {vr(R+32+2*i,2)}")
        for i in range(8):
            A(f"v_cvt_pk_bf16_f32 v{32+i}, v{OWN+2*i}, v{OWN+2*i+1}")
        for h in range(2):
            A(f"buffer_store_dwordx4 {vr(32+4*h,4)}, v19, {srd(sOUT)}, s70 offen offset:{h*32}{['', ' sc1', ' sc0 sc1', ' nt', ' sc1 nt'][o.outsc]}")
        A("s_mov_b64 exec, -1")
        if o.dbgst:
            A("s_waitcnt vmcnt(0)")
            A(f"s_or_b32 s70, s{sW}, s{sHG}")
            A(f"s_or_b32 s70, s70, s{sHP}")
            A("s_cmp_lg_u32 s70, 0")
            A("s_cbranch_scc1 L_end")
            s.stamp("end"); s.stamp("cend", True)
            A("s_waitcnt lgkmcnt(0)")
            r = STAMP_REGS
            A(f"s_sub_u32 s70, s{r[5]}, s{r[1]}")
            A(f"s_sub_u32 s71, s{r[4]}, s{r[0]}")
            A(f"s_sub_u32 s72, s{r[2]}, s{r[1]}")
            A(f"s_sub_u32 s73, s{r[3]}, s{r[1]}")
            for i in range(4): A(f"v_mov_b32 v{32+i}, s{70+i}")
            A(f"s_and_b32 s71, s{sGRP}, {hex(0xfffffff0)}")
            A("s_mov_b64 exec, 1")
            A(f"buffer_store_dwordx4 v[32:35], off, {srd(sDBG)}, s71 sc1")
            A("s_endpgm")
        if o.stamp and not o.dbgst:
            A("s_waitcnt vmcnt(0)")
            A(f"s_cmp_lg_u32 s{sW}, 0")
            A("s_cbranch_scc1 L_end")
            s.stamp("end"); s.stamp("cend", True)
            A("s_waitcnt lgkmcnt(0)")
            n = len(o.stamps.split(","))
            assert n <= len(STAMP_REGS)
            A("s_lshl_b32 s70, s2, 8")
            A(f"s_add_u32 s70, s70, {STAMP_BASE}")
            A("s_mov_b64 exec, 1")
            for i in range(n):
                r = STAMP_REGS[i]
                A(f"v_mov_b32 v32, s{r}"); A(f"v_mov_b32 v33, s{r+1}")
                A(f"buffer_store_dwordx2 v[32:33], off, {srd(sWS)}, s70 offset:{8*i}")
                A("s_nop 1")
        A("s_endpgm")
        s.lab("B_slow0")
        A(f"s_mov_b32 s{sSPIN}, 0")
        s.lab("B_slow0l")
        s.emit(mid_poll(True))
        A("s_waitcnt vmcnt(0)")
        s.emit(mid_check())
        A("s_cbranch_scc1 B_slow0r ; @taken" if not (o.abl & 32) else "s_nop 0")
        A(f"s_add_u32 s{sSPIN}, s{sSPIN}, 1")
        A(f"s_cmp_lt_u32 s{sSPIN}, {o.spin}")
        A("s_cbranch_scc1 B_slow0l")
        A("s_branch B_slow0r" if not (o.abl & 32) else "s_endpgm")
        s.lab("B_slow1")
        A(f"s_lshl_b32 s72, s{sW}, 2")
        A(f"s_add_u32 s72, s72, {FLAG_BASE + 32}")
        wave_poll(21, "slow1l", drain=False)
        A("s_branch B_slow1r" if not (o.abl & 4) else "s_endpgm")
        if o.tail in (2, 3):
            s.lab("B_slow2")
            A(f"s_lshl_b32 s72, s{sW}, 2")
            A(f"s_add_u32 s72, s72, {FLAG_BASE}")
            wave_poll(21, "slow2l", drain=False)
            A("s_branch B_slow2r")

    def build(s):
        s.common()
        s.waveA()
        s.waveB()
        s.lab("L_end")
        s.A("s_endpgm")
        lines = [l for l in s.L if l is not None]
        cfgs = []
        for wave in (0, 1, 3, 4, 5, 7):
            cfgs.append((f"wg5w{wave}", {2: 5}, {"WAVE": wave, "POLL": 0x03030303, "POLL3": 0x03030303}))
        cfgs.append(("allresc", {2: 5}, {"WAVE": 1, "ALLRESC": 1}))
        cfgs.append(("extra", {2: 256}, {"WAVE": 0}))
        lines = asmlib.finalize(lines, cfgs, verbose=True)
        return "\n".join(lines)

if __name__ == "__main__":
    ap = argparse.ArgumentParser()
    ap.add_argument("-o", default="k8.s")
    ap.add_argument("--stamp", action="store_true")
    ap.add_argument("--cyc", action="store_true")
    ap.add_argument("--stamps", default="start,pro,s8,E,poll1,oproj,pst,poll2,end")
    ap.add_argument("--nt", type=int, default=1)
    ap.add_argument("--prioA", type=int, default=0)
    for n_ in ("ntw", "ntx", "nto", "nths", "nthl"): ap.add_argument("--" + n_, type=int, default=0)
    ap.add_argument("--astamp", type=int, default=-1)
    ap.add_argument("--la", type=int, default=6)
    ap.add_argument("--nbub", type=int, default=3)
    ap.add_argument("--rot", type=int, default=1)
    ap.add_argument("--k0at", type=int, default=5)
    ap.add_argument("--p1at", type=int, default=7)
    ap.add_argument("--pf", type=int, default=0)
    ap.add_argument("--f0", default="{13: [1], 14: [2], 15: [3]}")
    ap.add_argument("--po0", type=int, default=11)
    ap.add_argument("--defer", type=int, default=1)
    ap.add_argument("--cpf", type=int, default=1)
    ap.add_argument("--dbgst", type=int, default=0)
    ap.add_argument("--g2at", type=int, default=8)
    ap.add_argument("--order", default="wfkp")
    ap.add_argument("--spin", type=int, default=131072)
    ap.add_argument("--outsc", type=int, default=0)
    ap.add_argument("--osc", type=int, default=15)
    ap.add_argument("--wb", type=int, default=0)
    ap.add_argument("--ntq", default="[]")
    ap.add_argument("--ntxc", default="[]")
    ap.add_argument("--ntoc", default="[]")
    ap.add_argument("--ablw", default="[]")
    ap.add_argument("--fl0at", type=int, default=0)
    ap.add_argument("--s0sp", default="")
    ap.add_argument("--tail", type=int, default=1)
    ap.add_argument("--s0at", type=int, default=9)
    ap.add_argument("--fpre", type=int, default=0)
    ap.add_argument("--abl", type=int, default=0)
    ap.add_argument("--w0i", default="{7: [(0,0)], 8: [(0,1)], 11: [(1,0)], 12: [(1,1), (2,0)], 13: [(2,1)], 14: [(3,0)], 15: [(3,1)]}")
    ap.add_argument("--w0u", default="{9: [(0,0)], 10: [(0,1)], 15: [(1,0), (1,1)], 16: [(2,0), (2,1)]}")
    ap.add_argument("--w1i", default="{15: [(0,0)], 16: [(1,0), (1,1)]}")
    ap.add_argument("--ords", default="{}")
    ap.add_argument("--ilv", type=int, default=0)
    ap.add_argument("--ilv0", type=int, default=1)
    ap.add_argument("--wrot", type=int, default=0)
    ap.add_argument("--cl", type=int, default=0)
    ap.add_argument("--fgl", type=int, default=0)
    ap.add_argument("--pro2", type=int, default=0)
    ap.add_argument("--dq", type=int, default=0)
    ap.add_argument("--apf", default="{}")
    ap.add_argument("--apfpos", type=int, default=0)
    ap.add_argument("--apfnt", default="")
    ap.add_argument("--t3a", type=int, default=0)
    ap.add_argument("--t3p", type=int, default=0)
    ap.add_argument("--t3g", type=int, default=0)
    ap.add_argument("--lead", type=int, default=0)
    ap.add_argument("--pro2a", type=int, default=0)
    ap.add_argument("--s7f", type=int, default=0)
    o = ap.parse_args()
    g = Gen(o)
    body = g.build()
    k = kernel_text(NAME + "_kernel", body, vgpr=256)
    hdr = ["; @launch grid=(256,1,1) block=(512,1,1) lds=163840"]
    if o.stamp and not o.dbgst: hdr.append("; STAMPS " + o.stamps)
    if o.astamp >= 0: hdr.append("; ASTAMP")
    if o.cyc: hdr.append("; STAMPCYC")
    open(o.o, "w").write(file_text(hdr, [k]))
    print("wrote", o.o, len(body.splitlines()), "lines")
```

```python
import sys, argparse, struct
from gen_common import *
import asmlib

P = [0, 32768, 65536]
W = [98304, 114688, 131072, 147456]
UNIT = 28672
PART_BASE = 16 << 20
PSZ = 14336
STAMP_BASE = 128 << 20
FLAG_BASE = 32 << 20
THR = 12.0

sK, sV, sWQ, sX, sWS, sWO, sOUT, sDBG = 4, 8, 12, 16, 20, 24, 28, 32
sWAVE, sW, sBR, sHG, sB, sHP, sH0, sKV = 62, 63, 64, 65, 66, 67, 68, 69
sXB, sPEND = 72, 73
sEV, sTHR, sPAT = 74, 75, 76
sSTEP, sROT, sNEG, sOBASE = 77, 78, 79, 80
sW4K, sWQB, sKVW, sWOB, sGRP, sMYB = 81, 82, 83, 84, 85, 86
sSPIN = 87
sEXLO, sEXHI = 88, 89
sPOS = 3
sWP, sOP = 54, 58
STAMP_REGS = [90, 92, 94, 96, 98, 100] + list(range(36, 54, 2))

def srd(r): return f"s[{r}:{r+3}]"
def vr(a, n=1): return f"v{a}" if n == 1 else f"v[{a}:{a+n-1}]"
def fbits(x): return struct.unpack('<I', struct.pack('<f', x))[0]
CSCALE = (128 ** -0.5) * 1.4426950408889634

class Q:
    def __init__(s, maxn): s.q = []; s.maxn = maxn
    def issue(s, tag):
        s.q.append(tag)
        assert len(s.q) <= s.maxn, ("counter overflow", s.q)
    def wait(s, tags):
        if isinstance(tags, str): tags = [tags]
        last = -1
        for i, t in enumerate(s.q):
            if t in tags: last = i
        if last < 0: return None
        n = len(s.q) - 1 - last
        s.q = s.q[last + 1:]
        return n
    def drain(s): s.q = []

def spread(slots, items, start=0, end=None):
    if end is None: end = len(slots)
    n = end - start
    m = len(items)
    for i, it in enumerate(items):
        k = start + (i * n) // m
        slots[k].extend(it)

class Gen:
    def __init__(s, opt):
        s.L = []; s.opt = opt
        f = lambda b: " nt" if b else ""
        s.ntw, s.ntx, s.nto, s.nths, s.nthl = f(opt.ntw), f(opt.ntx), f(opt.nto), f(opt.nths), f(opt.nthl)
        c = lambda b: " sc1" if b else ""
        s.ost0, s.ost1, s.ofl0, s.ofl1 = c(opt.osc & 1), c(opt.osc & 2), c(opt.osc & 4), c(opt.osc & 8)
    def A(s, t): s.L.append("  " + t)
    def lab(s, n): s.L.append(n + ":")
    def emit(s, lines):
        for l in lines:
            if l.endswith(":"): s.L.append(l)
            else: s.L.append("  " + l)
    def stamp_lines(s, name, cyc=False):
        if not s.opt.stamp: return []
        names = s.opt.stamps.split(",")
        if name not in names: return []
        r = STAMP_REGS[names.index(name)]
        if name == "hwid": return [f"s_getreg_b32 s{r}, hwreg(HW_REG_XCC_ID)", f"s_getreg_b32 s{r+1}, hwreg(HW_REG_HW_ID)"]
        cyc = cyc or s.opt.cyc or (s.opt.dbgst and name not in ("start", "end"))
        return [f"s_mem{'time' if cyc else 'realtime'} s[{r}:{r+1}]"]
    def stamp(s, name, cyc=False): s.emit(s.stamp_lines(name, cyc))
    def capture(s, fn):
        old = s.L; s.L = []
        fn()
        out = [l if l.endswith(":") else l.strip() for l in s.L]; s.L = old
        return out
    def ast(s, i):
        return [f"s_memtime s[{36+2*i}:{37+2*i}]"] if s.opt.astamp >= 0 else []

    def common(s):
        A = s.A
        A("s_cmp_ge_u32 s2, 256")
        A("s_cbranch_scc1 L_end")
        s.stamp("start"); s.stamp("cstart", True); s.stamp("hwid")
        if s.opt.diagx:
            A("s_getreg_b32 s70, hwreg(HW_REG_XCC_ID)")
            A("s_and_b32 s70, s70, 15")
            A("s_and_b32 s71, s2, 7")
            A("s_cmp_eq_u32 s70, s71")
            A("s_cbranch_scc1 L_diag ; @taken")
            for _ in range(s.opt.diagx): A("s_sleep 127")
            s.lab("L_diag")
        A("s_load_dwordx16 s[36:51], s[0:1], 0")
        A("s_load_dwordx8 s[52:59], s[0:1], 64")
        A("s_load_dwordx2 s[60:61], s[0:1], 96")
        A("v_lshrrev_b32 v1, 6, v0")
        A("s_and_b32 s70, s2, 7")
        A("s_lshr_b32 s71, s2, 3")
        if s.opt.cpf:
            KN = NAME + "_kernel"
            A("s_getpc_b64 s[84:85]")
            s.lab("L_pc")
            A(f"s_sub_u32 s84, s84, L_pc-{KN}")
            A("s_subb_u32 s85, s85, 0")
            A("v_lshlrev_b32 v2, 7, v1")
            A("v_and_b32 v3, 31, v0")
            A("v_lshlrev_b32 v3, 2, v3")
            A("v_add_u32 v2, v2, v3")
            A("s_lshl_b32 s72, s71, 10")
            A("v_add_u32 v2, s72, v2")
            A(f"v_min_u32 v2, L_end-{KN}, v2")
            if s.opt.pro2:
                A("v_and_b32 v25, 63, v0")
                A("global_load_dword v0, v2, s[84:85]")
            else: A("global_load_dword v63, v2, s[84:85]")
        A(f"v_readfirstlane_b32 s{sWAVE}, v1 ; @val=WAVE")
        A(f"s_lshr_b32 s{sBR}, s70, 2")
        A(f"s_and_b32 s{sHG}, s70, 3")
        A(f"s_and_b32 s{sB}, s71, 7")
        A(f"s_lshr_b32 s{sHP}, s71, 3")
        A(f"s_lshl_b32 s{sH0}, s{sHG}, 3")
        A(f"s_lshl_b32 s70, s{sHP}, 1")
        A(f"s_add_u32 s{sH0}, s{sH0}, s70")
        A(f"s_add_u32 s{sROT}, s{sB}, s70")
        if not s.opt.rot: A(f"s_mov_b32 s{sROT}, 0")
        A(f"s_and_b32 s{sW}, s{sWAVE}, 3")
        A(f"s_lshl_b32 s{sW4K}, s{sW}, 12")
        A("v_mov_b32 v1, v25" if (s.opt.pro2 and s.opt.cpf) else "v_and_b32 v1, 63, v0")
        A("v_lshrrev_b32 v19, 4, v1")
        A("v_and_b32 v20, 15, v1")
        A("v_lshlrev_b32 v21, 2, v19")
        A("v_xor_b32 v21, v20, v21")
        A("v_lshlrev_b32 v21, 4, v21")
        A("v_lshrrev_b32 v17, 5, v1")
        A("v_and_b32 v18, 3, v1")
        A("v_lshlrev_b32 v2, 13, v19")
        A("v_add_u32 v2, v2, v21")
        A("v_lshrrev_b32 v22, 3, v1")
        A("v_lshlrev_b32 v22, 10, v22")
        A("v_and_b32 v23, 7, v1")
        A("v_xor_b32 v23, v23, v19")
        A("v_lshlrev_b32 v24, 4, v23")
        A("v_add_u32 v3, v22, v24")
        A("v_xor_b32 v24, 64, v24")
        A("v_add_u32 v4, v22, v24")
        for r, sz in ((sK, 33554432), (sV, 33554432), (sWQ, 4194304), (sWS, 268435456), (sWO, 4194304), (sOUT, 1835008), (sDBG, 256)):
            A(f"s_mov_b32 s{r+2}, {sz}")
            A(f"s_mov_b32 s{r+3}, 0x20000")
        A(f"s_mov_b32 s{sX+3}, 0x20000")
        A(f"s_lshl_b32 s70, s{sW}, 17")
        A(f"s_lshl_b32 s71, s{sH0}, 8")
        A(f"s_add_u32 s{sWQB}, s70, s71")
        A(f"s_mul_i32 s70, s{sB}, 112")
        A(f"s_add_u32 s71, s70, 112")
        A(f"s_lshl_b32 s{sX+2}, s71, 10")
        A(f"s_lshl_b32 s71, s{sW}, 5")
        A("s_add_u32 s70, s70, s71")
        A(f"s_lshl_b32 s{sXB}, s70, 10")
        A(f"s_lshl_b32 s70, s{sB}, 5")
        A(f"s_add_u32 s70, s70, s{sH0}")
        A(f"s_lshl_b32 s{sKV}, s70, 17")
        A(f"s_add_u32 s{sKVW}, s{sKV}, s{sW4K}")
        A(f"s_cmp_eq_u32 s{sBR}, 0")
        A("s_waitcnt lgkmcnt(0)")
        s.stamp("k")
        for r, a, b in ((sX, 36, 46), (sWQ, 42, 52), (sK, 38, 48), (sV, 40, 50), (sWO, 44, 54)):
            A(f"s_cselect_b32 s{r}, s{a}, s{b}")
            A(f"s_cselect_b32 s{r+1}, s{a+1}, s{b+1}")
        for r, a in ((sOUT, 56), (sDBG, 58), (sWS, 60)):
            A(f"s_mov_b32 s{r}, s{a}")
            A(f"s_mov_b32 s{r+1}, s{a+1}")
        A(f"s_cmp_ge_u32 s{sWAVE}, 4")
        A("s_cbranch_scc1 L_B")

    def late_scalars(s):
        A = s.A
        A(f"s_lshl_b32 s70, s{sBR}, 3")
        A(f"s_add_u32 s70, s70, s{sB}")
        A(f"s_lshl_b32 s71, s70, 5")
        A(f"s_add_u32 s71, s71, s{sH0}")
        A(f"s_mul_i32 s{sOBASE}, s71, {UNIT}")
        A(f"s_lshl_b32 s71, s70, 2")
        A(f"s_add_u32 s71, s71, s{sHG}")
        A(f"s_lshl_b32 s{sGRP}, s71, 2")
        A(f"s_add_u32 s{sMYB}, s{sGRP}, s{sHP}")
        A(f"s_cmp_eq_u32 s{sW}, 3")
        A(f"s_cselect_b32 s{sEXLO}, 0xffff, -1")
        A(f"s_mov_b32 s{sEXHI}, s{sEXLO}")

    def kv_voffs(s, vK, vV):
        A = s.A
        A("v_lshlrev_b32 v22, 8, v19")
        A(f"v_add_u32 v{vV}, v22, v21")
        for t in range(4):
            A(f"v_add_u32 v23, {4*t}, v19")
            A(f"v_xor_b32 v23, v20, v23")
            A(f"v_lshlrev_b32 v23, 4, v23")
            A(f"v_add_u32 v{vK+t}, v22, v23")

    def flag_store(s, val, vtmp):
        A = s.A
        A(f"v_mov_b32 v{vtmp}, {val}")
        A("s_mov_b64 exec, 1")
        A(f"buffer_store_byte v{vtmp}, off, {srd(sDBG)}, s{sMYB} sc1")
        A("s_mov_b64 exec, -1")

    def dma_k(s, j, vK, nt, tag):
        g = []
        for t in range(4):
            pre = [f"s_add_u32 m0, s{sW4K}, {P[j%3]}", f"s_add_u32 s70, s{sKVW}, {j*16384}"] if t == 0 else []
            if t and s.opt.ilv: pre = [f"s_add_u32 m0, s{sW4K}, {P[j%3]}", "s_nop 0"]
            g.append((tag, pre + [f"buffer_load_dwordx4 v{vK+t}, {srd(sK)}, s70 offen offset:{t*1024}{nt} lds"]))
        return g
    def dma_v(s, j, vV, nt, tag):
        g = []
        for t in range(4):
            pre = [f"s_add_u32 m0, s{sW4K}, {P[j%3]+16384}", f"s_add_u32 s70, s{sKVW}, {(j-1)*16384}"] if t == 0 else []
            if t and s.opt.ilv: pre = [f"s_add_u32 m0, s{sW4K}, {P[j%3]+16384}", "s_nop 0"]
            g.append((tag, pre + [f"buffer_load_dwordx4 v{vV}, {srd(sV)}, s70 offen offset:{t*1024}{nt} lds"]))
        return g
    def kc_lines(s, c, dst):
        return [f"s_add_u32 s{dst}, s{sROT}, {c}", f"s_and_b32 s{dst}, s{dst}, 7"]
    def dma_wq(s, c, slot, vW, tag, extra, tmp):
        g = []
        for t in range(4):
            pre = []
            if t == 0:
                pre = s.kc_lines(c, tmp) + [f"s_lshl_b32 s{tmp}, s{tmp}, 19", f"s_add_u32 s{tmp}, s{tmp}, s{sWQB}",
                                            f"s_add_u32 m0, s{sW4K}, {slot}"]
            elif s.opt.ilv: pre = [f"s_add_u32 m0, s{sW4K}, {slot}"]
            g.append((tag, pre + [f"s_add_u32 s71, s{tmp}, {extra + t*31744}",
                                  f"buffer_load_dwordx4 v{vW}, {srd(sWQ)}, s71 offen offset:{t*1024}{' nt' if (tag in eval(s.opt.ntq)) else s.ntw} lds"]))
        return g

    def waveA(s):
        A = s.A; o = s.opt
        nt = " nt" if o.nt else ""
        Q_, SB, Pr, O, WIN, NM = 0, [32, 64], 96, 112, 176, 208
        KA, VA, QA, OV, RL = 224, 232, 236, 237, 238
        LS, AL, T = 240, 242, 244
        vK, vV = 5, 9
        q = Q(63)
        PX = [P[1], P[2], W[0], W[2]]
        def dma_x(c):
            g = []
            for t in range(4):
                pre = []
                if t == 0:
                    pre = s.kc_lines(c, 87) + ["s_lshl_b32 s87, s87, 7", f"s_add_u32 s87, s87, s{sXB}", f"s_add_u32 m0, s{sW4K}, {PX[c%4]}"]
                g.append((f"C{c}", pre + [f"s_add_u32 s71, s87, {t*7168}",
                                          f"buffer_load_dwordx4 v{3 + (t&1)}, {srd(sX)}, s71 offen offset:{t*1024}{' nt' if (c in eval(o.ntxc)) else s.ntx} lds"]))
            return g
        def issue(groups):
            for tag, ins in groups:
                q.issue(tag); s.emit(ins)
        def chunk(c): return dma_x(c) + s.dma_wq(c, PX[c % 4] + 16384, 2, f"C{c}", 0, 87)
        issue(chunk(0))
        s.stamp("a0")
        issue(chunk(1))
        segs = []
        capL = s.L
        if o.pro2a: s.L = []
        def cut():
            if o.pro2a:
                segs.append(s.L); s.L = []
        s.late_scalars()
        s.kv_voffs(vK, vV)
        cut()
        A("v_and_b32 v10, 31, v1")
        A("v_lshlrev_b32 v10, 8, v10")
        A("v_xor_b32 v11, v17, v20")
        for k in range(8):
            A(f"v_xor_b32 v12, {2*k}, v11")
            A(f"v_lshlrev_b32 v12, 4, v12")
            A(f"v_add_u32 v{KA+k}, v10, v12")
        cut()
        A("v_lshrrev_b32 v10, 2, v20")
        A("v_and_b32 v11, 1, v19")
        A("v_lshlrev_b32 v12, 10, v17")
        A("v_lshlrev_b32 v13, 8, v10")
        A("v_add_u32 v12, v12, v13")
        A("v_lshlrev_b32 v13, 5, v11")
        A("v_add_u32 v12, v12, v13")
        A("v_and_b32 v13, 1, v18")
        A("v_lshlrev_b32 v13, 4, v13")
        A("v_add_u32 v12, v12, v13")
        A("v_lshrrev_b32 v13, 1, v18")
        A("v_lshlrev_b32 v13, 3, v13")
        A("v_add_u32 v12, v12, v13")
        A("v_add_u32 v12, 16384, v12")
        for D in range(4):
            A(f"v_xor_b32 v13, {D}, v10")
            A(f"v_lshlrev_b32 v13, 6, v13")
            A(f"v_add_u32 v{VA+D}, v12, v13")
        cut()
        A(f"s_lshl_b32 s70, s{sW}, 13")
        A(f"s_add_u32 s70, s70, {W[0]}")
        A(f"v_lshlrev_b32 v{QA}, 4, v1")
        A(f"v_add_u32 v{QA}, s70, v{QA}")
        A(f"v_mul_u32_u24 v{OV}, 112, v17")
        A(f"v_and_b32 v12, 31, v1")
        A(f"v_add_u32 v{OV}, v{OV}, v12")
        A(f"s_lshl_b32 s70, s{sW}, 5")
        A(f"v_add_u32 v{OV}, s70, v{OV}")
        A(f"v_lshlrev_b32 v{OV}, 4, v{OV}")
        for i in range(8): A(f"v_mov_b64 {vr(NM+2*i,2)}, 0")
        A(f"v_mov_b64 {vr(LS,2)}, 0")
        A(f"s_mov_b32 s{sEV}, {hex((1<<0)|(1<<8)|(1<<1)|(1<<7))}")
        A(f"s_mov_b32 s{sPAT}, {hex(sum(1 << i for i in range(2, 17, 3)))}")
        A(f"s_mov_b32 s{sNEG}, 0xffff0000")
        A(f"s_mov_b32 s{sPOS}, 32768")
        A(f"s_mov_b32 s{sTHR}, {hex(fbits(THR))}")
        A(f"s_mov_b32 s{sSTEP}, 0")
        A(f"s_mov_b32 s{sPEND}, 0")
        A(f"s_add_u32 s{sOBASE}, s{sOBASE}, {UNIT}")
        cut()
        if o.pro2a: s.L = capL
        for k in range(8):
            n = q.wait(f"C{k}")
            if n is not None: A(f"s_waitcnt vmcnt({n})")
            s.stamp(f"aw{k}")
            A("s_barrier")
            if k + 2 < 8: issue(chunk(k + 2))
            if k == o.k0at: issue(s.dma_k(0, vK, nt, "K0"))
            if k == 5: issue(s.dma_wq(0, P[0] + 16384, 2, "Q0", 256, 87))
            apf = eval(o.apf)
            def pf_groups(part):
                g = []
                pre = ["v_lshlrev_b32 v14, 4, v1", "s_lshr_b32 s70, s2, 3", "s_lshr_b32 s71, s70, 3", "s_lshl_b32 s71, s71, 18",
                       "s_and_b32 s70, s70, 7", "s_lshl_b32 s70, s70, 14", "s_add_u32 s70, s70, s71",
                       f"s_lshl_b32 s71, s{sHG}, 20", "s_add_u32 s70, s70, s71", f"s_add_u32 s70, s70, s{sW4K}"]
                if part: pre.append("s_add_u32 s70, s70, 131072")
                for t_ in range(4):
                    g.append(("PF", (pre if t_ == 0 else []) + [f"buffer_load_dwordx4 v[{32+4*t_}:{35+4*t_}], v14, {srd(sWO)}, s70 offen offset:{t_*1024}{o.apfnt} ; @dummy"]))
                return g
            if o.apfpos == 0:
                for part in apf.get(k, []): issue(pf_groups(part))
            if k == o.p1at: issue(s.dma_k(1, vK, nt, "KV1") + s.dma_v(1, vV, nt, "KV1"))
            if o.apfpos == 1:
                for part in apf.get(k, []): issue(pf_groups(part))
            if k < len(segs): s.L += segs[k]
        n0 = q.wait(["K0", "Q0"])
        assert n0 == 8 or o.apf != "{}", n0
        if o.prioA: A(f"s_setprio {o.prioA}")

        U = T + 4
        def fin_D(D, dst):
            L = [f"v_mul_f32 v{O+16*D+i}, v{AL}, v{O+16*D+i}" for i in range(16)]
            L += [f"v_cvt_pk_bf16_f32 v{dst+8*D+i}, v{O+16*D+2*i}, v{O+16*D+2*i+1}" for i in range(8)]
            return L
        def step(par, last=False):
            cur, prev = SB[par], SB[1 - par]
            lq = Q(15)
            L = []
            def wl(tags):
                n = lq.wait(tags)
                return [f"s_waitcnt lgkmcnt({n})"] if n is not None else []
            def kread(i):
                T_, k = divmod(i, 8); lq.issue(f"K{i}")
                return [f"ds_read_b128 {vr(WIN + 4*(i % 8), 4)}, v{KA+k} offset:{T_*8192}"]
            vorder = [divmod(f, 4) for f in range(16)] if not last else [(t, D) for D in range(4) for t in range(4)]
            def vread(f):
                t, D = vorder[f]; r = []
                for a in range(2):
                    lq.issue(f"V{f}")
                    r.append(f"ds_read_b64_tr_b16 {vr(WIN + 4*(f % 8) + 2*a, 2)}, v{VA+D} offset:{t*4096 + a*2048}")
                return r
            exp = lambda r: [f"v_exp_f32 v{r}, v{r}"]
            add = lambda r: [f"v_add_f32 v{LS + (r & 1)}, v{LS + (r & 1)}, v{r}"]
            cvt = lambda t, i: [f"v_cvt_pk_bf16_f32 v{Pr+4*t+i}, v{prev+8*t+2*i}, v{prev+8*t+2*i+1}"]
            mx = lambda d, a, b, c: [f"v_max3_f32 v{d}, v{a}, v{b}, v{c}"]
            bub = []
            for i in range(4): bub += [cvt(0, i), add(prev + 2*i), add(prev + 2*i + 1)]
            for i in range(4): bub += [cvt(1, i), add(prev + 8 + 2*i), add(prev + 8 + 2*i + 1)]
            F1 = []
            e = [exp(prev + 16 + i) for i in range(16)]
            a_ = [add(prev + 16 + i) for i in range(16)]
            c2 = [cvt(2, i) for i in range(4)]; c3 = [cvt(3, i) for i in range(4)]
            F1 += [e[0], e[1], e[2]]
            for i in range(3, 16):
                F1 += [e[i], a_[i - 3]]
                if i in (5, 7, 9, 11): F1.append(c2[(i - 5) // 2])
                if i in (13, 15): F1.append(c3[(i - 13) // 2])
            F1 += [a_[13], c3[2], a_[14], a_[15], c3[3]]
            def maxT(base, d0, d1):
                return [mx(d0, base, base+1, base+2), mx(d1, base+8, base+9, base+10),
                        mx(d0, d0, base+3, base+4), mx(d1, d1, base+11, base+12),
                        mx(d0, d0, base+5, base+6), mx(d1, d1, base+13, base+14),
                        mx(d0, d0, base+7, base+15)]
            M0 = maxT(cur, U, U+1)
            M1 = maxT(cur+16, U+2, U+3)
            fin = [mx(U, U, U+1, U+2), [f"v_max_f32 v{U}, v{U}, v{U+3}"]]
            tagp = "e" if par == 0 else "o"
            chk = [f"v_cmp_lt_f32 vcc, s{sTHR}, v{U}",
                   f"s_nop 0",
                   f"s_cbranch_vccnz A_resc{tagp} ; @takenif={sTHR}:0xff800000",
                   f"A_resc{tagp}r:"]
            advK = [[f"v_add_u32 v{KA+k}, s70, v{KA+k}"] for k in range(8)]
            advV = [[f"v_add_u32 v{VA+D}, s70, v{VA+D}"] for D in range(4)]
            exps1 = [exp(cur+i) for i in range(16)]

            L += s.ast(1)
            if not last:
                for i in range(8): L += kread(i)
                for it in bub: L += it
                nb = o.nbub
                for it in F1[:nb]: L += it
                gaps = [[] for _ in range(16)]
                spread(gaps, F1[nb:], 0, 14)
                spread(gaps, M0, 10, 16)
                for i in range(16):
                    T_, k = divmod(i, 8)
                    if i % 2 == 0: L += wl([f"K{i}", f"K{i+1}"])
                    srcC = vr(NM, 16) if k == 0 else vr(cur + 16*T_, 16)
                    L.append(f"v_mfma_f32_32x32x16_bf16 {vr(cur+16*T_,16)}, {vr(WIN+4*(i%8),4)}, {vr(Q_+4*k,4)}, {srcC}")
                    if i + 8 < 16: L += kread(i + 8)
                    if i >= 9: L += vread(i - 9)
                    L += gaps[i]
                    if i == 7: L += s.ast(2)
                L += s.ast(3)
                vissued = 7
                gaps = [[] for _ in range(16)]
                spread(gaps, advK[:4], 0, 2)
                spread(gaps, M1 + fin, 2, 5)
                gaps[5] += chk
                spread(gaps, exps1, 5, 16)
                spread(gaps, advK[4:], 6, 10)
                spread(gaps, advV, 10, 14)
                L += [f"s_bitcmp1_b32 s{sPAT}, s{sSTEP}", f"s_cselect_b32 s70, s{sNEG}, s{sPOS}"]
            else:
                for f in range(7): L += vread(f)
                vissued = 7
                for it in bub: L += it
                for it in F1: L += it
                L += rl_lines(AL)
                L.append(f"v_add_u32 v{QA}, {hex((P[0] - W[1]) & 0xffffffff)}, v{QA}")
                gaps = [[] for _ in range(16)]
                for D in range(3):
                    items = [[x] for x in fin_D(D, cur)] + [out_D(D, cur)]
                    spread(gaps, items, 4*D + 6 if D < 2 else 14, 4*D + 10 if D < 2 else 16)
            for f in range(16):
                t, D = vorder[f]
                if f % 2 == 0: L += wl([f"V{f}", f"V{f+1}"])
                L.append(f"v_mfma_f32_32x32x16_bf16 {vr(O+16*D,16)}, {vr(WIN+4*(f%8),4)}, {vr(Pr+4*t,4)}, {vr(O+16*D,16)}")
                if vissued < 16:
                    L += vread(vissued); vissued += 1
                L += gaps[f]
                if f == 6 and not last: L += s.ast(4)
            if not last:
                L += s.ast(5)
                L += [f"s_cmp_lg_u32 s{sPEND}, 0", f"s_cbranch_scc1 A_pend{tagp}", f"A_pend{tagp}r:"]
                L += s.ast(6)
                if s.opt.astamp >= 0:
                    L += ["s_waitcnt lgkmcnt(0)", f"s_cmp_eq_u32 s{sSTEP}, {s.opt.astamp}"]
                    L += [f"s_cselect_b32 s{50+i}, s{36+2*i}, s{50+i}" for i in range(7)]
            else:
                L += fin_D(3, cur) + out_D(3, cur)
            return L
        def out_D(D, src):
            L = []
            for h in range(2):
                L.append(f"ds_write_b128 v{QA}, {vr(src+8*D+4*h,4)} offset:{(2*D+h)*1024}")
            L.append(f"s_mov_b64 exec, s[{sEXLO}:{sEXHI}]")
            for h in range(2):
                L.append(f"s_add_u32 s71, s{sOBASE}, {(4*D+2*h)*1792}")
                L.append(f"buffer_store_dwordx4 {vr(src+8*D+4*h,4)}, v{OV}, {srd(sWS)}, s71 offen{s.ost1}{s.nths}")
            L.append("s_mov_b64 exec, -1")
            return L
        def rl_lines(dst):
            return [f"v_add_f32 v{T}, v{LS}, v{LS+1}", f"v_mov_b32 v{T+1}, v{T}", f"v_permlane32_swap_b32 v{T}, v{T+1}",
                    f"v_add_f32 v{T}, v{T}, v{T+1}", f"v_rcp_f32 v{dst}, v{T}"]

        s.lab("A_loop")
        for par in range(2):
            tagp = "e" if par == 0 else "o"
            s.emit(s.ast(0))
            A(f"s_bitcmp1_b32 s{sEV}, s{sSTEP}")
            A(f"s_cbranch_scc1 A_top{tagp}")
            A("s_barrier")
            s.lab(f"A_top{tagp}r")
            s.emit(step(par))
            A(f"s_add_u32 s{sSTEP}, s{sSTEP}, 1")
        A(f"s_cmp_lt_u32 s{sSTEP}, 16")
        A("s_cbranch_scc1 A_loop")
        A("s_barrier")
        s.emit(step(0, last=True))
        A("s_waitcnt lgkmcnt(0)")
        A("s_barrier")
        A(f"s_lshl_b32 s70, s{sMYB}, 7")
        A(f"s_add_u32 s70, s70, {FLAG_BASE}")
        A(f"s_lshl_b32 s71, s{sW}, 2")
        A("s_add_u32 s70, s70, s71")
        A(f"v_mov_b32 v{T}, 1")
        s.stamp("aE")
        A("s_waitcnt vmcnt(0)")
        s.stamp("adr")
        A("s_mov_b64 exec, 1")
        A(f"buffer_store_dword v{T}, off, {srd(sWS)}, s70{s.ofl1}")
        A("s_mov_b64 exec, -1")
        if o.wb:
            if o.wb == 1: A(f"s_cmp_eq_u32 s{sW}, 0")
            elif o.wb == 2:
                A(f"s_or_b32 s70, s{sW}, s{sHP}"); A("s_cmp_eq_u32 s70, 0")
            elif o.wb == 3:
                A(f"s_or_b32 s70, s{sW}, s{sHP}"); A(f"s_or_b32 s70, s70, s{sB}"); A("s_cmp_eq_u32 s70, 0")
            A("s_cbranch_scc0 A_nowb")
            A("buffer_wbl2 sc1")
            s.lab("A_nowb")
        if o.astamp >= 0:
            A(f"s_cmp_lg_u32 s{sW}, 0")
            A("s_cbranch_scc1 L_end")
            A("s_lshl_b32 s70, s2, 8")
            A(f"s_add_u32 s70, s70, {STAMP_BASE + 65536}")
            A("s_mov_b64 exec, 1")
            for i in range(7):
                A(f"v_mov_b32 v32, s{50+i}")
                A(f"buffer_store_dword v32, off, {srd(sWS)}, s70 offset:{4*i}")
                A("s_nop 1")
        if o.stamp and not o.dbgst and o.astamp < 0:
            A("s_waitcnt vmcnt(0) lgkmcnt(0)")
            A(f"s_cmp_lg_u32 s{sW}, 0")
            A("s_cbranch_scc1 L_end")
            n = len(o.stamps.split(","))
            A("s_lshl_b32 s70, s2, 8")
            A(f"s_add_u32 s70, s70, {STAMP_BASE + 65536}")
            A("s_mov_b64 exec, 1")
            for i in range(n):
                r = STAMP_REGS[i]
                A(f"v_mov_b32 v32, s{r}"); A(f"v_mov_b32 v33, s{r+1}")
                A(f"buffer_store_dwordx2 v[32:33], off, {srd(sWS)}, s70 offset:{8*i}")
                A("s_nop 1")
        A("s_endpgm")
        s.lab("A_tope")
        A(f"s_cmp_eq_u32 s{sSTEP}, 0")
        A("s_cbranch_scc0 A_top8")
        A(f"s_waitcnt vmcnt({n0})")
        A("s_barrier")
        for i in range(8):
            A(f"ds_read_b128 {vr(Q_+4*i,4)}, v{QA} offset:{i*1024}")
        A(f"v_add_u32 v{QA}, 16384, v{QA}")
        A("s_branch A_top8b")
        s.lab("A_top8")
        A("s_barrier")
        for i in range(8):
            A(f"ds_read_b128 {vr(Q_+4*i,4)}, v{QA} offset:{i*1024}")
        s.lab("A_top8b")
        A(f"s_mov_b32 s{sTHR}, 0xff800000")
        A("s_waitcnt lgkmcnt(0)")
        A("s_branch A_toper")
        s.lab("A_topo")
        A(f"s_cmp_eq_u32 s{sSTEP}, 1")
        A("s_cbranch_scc0 A_top7")
        A("s_waitcnt vmcnt(0)")
        A("s_barrier")
        A("s_branch A_topor")
        s.lab("A_top7")
        A(f"s_or_b32 s{sPEND}, s{sPEND}, 4")
        A("s_barrier")
        A("s_branch A_topor")
        for par in range(2):
            tagp = "e" if par == 0 else "o"; cur = SB[par]
            s.lab(f"A_resc{tagp}")
            A(f"v_mov_b32 v{U+1}, v{U}")
            A(f"v_permlane32_swap_b32 v{U}, v{U+1}")
            A(f"v_max_f32 v{U}, v{U}, v{U+1}")
            if par == 0:
                A(f"s_and_b32 s71, s{sSTEP}, 7")
                A("s_cmp_eq_u32 s71, 0")
                A("s_cbranch_scc1 A_hsw")
            A(f"v_max_f32 v{U}, 0, v{U}")
            A(f"v_sub_f32 v{U+1}, 0, v{U}")
            A(f"v_exp_f32 v{AL}, v{U+1}")
            A(f"s_or_b32 s{sPEND}, s{sPEND}, 1")
            A(f"v_mul_f32 v{LS}, v{AL}, v{LS}")
            A(f"v_mul_f32 v{LS+1}, v{AL}, v{LS+1}")
            if par == 0: s.lab("A_hswj")
            for i in range(32): A(f"v_sub_f32 v{cur+i}, v{cur+i}, v{U}")
            for i in range(16): A(f"v_sub_f32 v{NM+i}, v{NM+i}, v{U}")
            A(f"s_branch A_resc{tagp}r")
        s.lab("A_hsw")
        s.emit(rl_lines(RL))
        A(f"v_mov_b64 {vr(LS,2)}, 0")
        A(f"s_mov_b32 s{sTHR}, {hex(fbits(THR))}")
        A(f"s_lshr_b32 s{sPEND}, s{sSTEP}, 3")
        A(f"s_add_u32 s{sPEND}, s{sPEND}, 2")
        A(f"s_lshl_b32 s{sPEND}, s{sPEND}, 3")
        A("s_branch A_hswj")
        for par in range(2):
            tagp = "e" if par == 0 else "o"
            s.lab(f"A_pend{tagp}")
            if par == 0:
                A(f"s_cmp_ge_u32 s{sPEND}, 16")
                A("s_cbranch_scc1 A_pz")
            A(f"s_bitcmp1_b32 s{sPEND}, 0")
            A(f"s_cbranch_scc0 A_pn{tagp}")
            for i in range(32):
                A(f"v_pk_mul_f32 {vr(O+2*i,2)}, {vr(O+2*i,2)}, {vr(AL,2)} op_sel_hi:[1,0]")
            s.lab(f"A_pn{tagp}")
            if par == 1:
                A(f"s_bitcmp1_b32 s{sPEND}, 2")
                A(f"s_cbranch_scc0 A_pm{tagp}")
                for i in range(8): A(f"v_mov_b64 {vr(NM+2*i,2)}, 0")
                s.lab(f"A_pm{tagp}")
            A(f"s_mov_b32 s{sPEND}, 0")
            A(f"s_branch A_pend{tagp}r")
        s.lab("A_pz")
        A(f"s_cmp_eq_u32 s{sPEND}, 24")
        A("s_cbranch_scc0 A_pz2")
        A(f"v_mov_b32 v{AL}, v{RL}")
        for D in range(4):
            s.emit(fin_D(D, WIN))
            for h in range(2):
                A(f"ds_write_b128 v{QA}, {vr(WIN+8*D+4*h,4)} offset:{(2*D+h)*1024}")
        A("s_waitcnt lgkmcnt(0)")
        s.lab("A_pz2")
        for i in range(32): A(f"v_mov_b64 {vr(O+2*i,2)}, 0")
        A(f"s_mov_b32 s{sPEND}, 0")
        A(f"s_branch A_pender")

    def waveB(s):
        A = s.A; o = s.opt
        vV, vW, vK, WA, vWO, vO, vQW, vWB = 2, 3, 4, 8, 12, 13, 14, 15
        Y, vR, vOL, VP = 16, 17, 18, 20
        XA = 24
        WIN, X, ACC = 32, 64, 192
        q = Q(63)
        nt = " nt" if o.nt else ""
        PX = [P[1], P[2], W[0], W[2]]
        s.lab("L_B")
        s.stamp("b0")
        capL = s.L
        if o.pro2: s.L = []
        def mark(n):
            if o.pro2: s.L.append("@@" + n)
        A(f"v_mov_b32 v{vW}, v2")
        s.late_scalars()
        mark("clr0")
        if o.lead:
            A(f"s_or_b32 s70, s{sW}, s{sHG}")
            A(f"s_or_b32 s70, s70, s{sHP}")
            A("s_cmp_lg_u32 s70, 0")
            A("s_cbranch_scc1 B_nclr")
            A("v_mov_b64 v[28:29], 0")
            A("v_mov_b64 v[30:31], 0")
            A("v_lshlrev_b32 v23, 4, v1")
            A(f"s_lshl_b32 s70, s{sGRP}, 7")
            A(f"s_add_u32 s70, s70, {FLAG_BASE}")
            A(f"buffer_store_dwordx4 v[28:31], v23, {srd(sWS)}, s70 offen sc1")
            A(f"buffer_store_dwordx4 v[28:31], v23, {srd(sWS)}, s70 offen offset:1024 sc1")
            A("s_nop 1")
        else:
            A(f"s_cmp_lg_u32 s{sW}, 0")
            A("s_cbranch_scc1 B_nclr")
            A("v_mov_b32 v28, 0")
            A("v_lshlrev_b32 v29, 2, v1")
            A(f"s_lshl_b32 s70, s{sMYB}, 7")
            A(f"s_add_u32 s70, s70, {FLAG_BASE}")
            A("s_mov_b64 exec, 0xfff")
            A(f"buffer_store_dword v28, v29, {srd(sWS)}, s70 offen sc1")
            A("s_mov_b64 exec, -1")
        s.lab("B_nclr")
        mark("clr1")
        s.kv_voffs(vK, vV)
        A("v_lshlrev_b32 v23, 10, v19")
        A(f"v_add_u32 v{vWO}, v23, v21")
        mark("early0")
        A("v_lshrrev_b32 v22, 2, v20")
        A("v_and_b32 v23, 1, v19")
        A("v_lshlrev_b32 v28, 13, v17")
        A("v_lshlrev_b32 v29, 8, v22")
        A("v_add_u32 v28, v28, v29")
        A("v_lshlrev_b32 v29, 5, v23")
        A("v_add_u32 v28, v28, v29")
        A("v_and_b32 v29, 1, v18")
        A("v_lshlrev_b32 v29, 4, v29")
        A("v_add_u32 v28, v28, v29")
        A("v_lshrrev_b32 v29, 1, v18")
        A("v_lshlrev_b32 v29, 3, v29")
        A(f"v_add_u32 v{vWB}, v28, v29")
        A(f"v_add_u32 v28, {P[1]}, v{vWB}")
        for D in range(4):
            A(f"v_xor_b32 v29, {D}, v22")
            A(f"v_lshlrev_b32 v29, 6, v29")
            A(f"v_add_u32 v{WA+D}, v28, v29")
        A("v_and_b32 v28, 31, v1")
        A("v_lshrrev_b32 v29, 1, v28")
        A("v_and_b32 v29, 7, v29")
        A("v_lshlrev_b32 v30, 2, v17")
        A("v_xor_b32 v29, v29, v30")
        A("v_lshlrev_b32 v28, 7, v28")
        A(f"s_add_u32 s70, s{sW4K}, {P[1]}")
        A("v_add_u32 v28, s70, v28")
        for j in range(4):
            A(f"v_xor_b32 v30, {j}, v29")
            A(f"v_lshlrev_b32 v30, 4, v30")
            A(f"v_add_u32 v{XA+j}, v28, v30")
        mark("early1")
        if o.pro2: A("v_lshrrev_b32 v22, 2, v20")
        A(f"v_mul_u32_u24 v{vO}, 448, v17")
        A("v_and_b32 v29, 31, v1")
        A(f"v_add_u32 v{vO}, v{vO}, v29")
        A(f"s_lshl_b32 s70, s{sW}, 5")
        A(f"v_add_u32 v{vO}, s70, v{vO}")
        A(f"v_lshlrev_b32 v{vO}, 4, v{vO}")
        A(f"s_lshl_b32 s70, s{sW}, 13")
        A(f"s_add_u32 s70, s70, {W[0]}")
        A(f"v_lshlrev_b32 v{vQW}, 4, v1")
        A(f"v_add_u32 v{vQW}, s70, v{vQW}")
        A(f"v_lshlrev_b32 v30, 11, v17")
        A(f"v_lshlrev_b32 v29, 4, v29")
        A(f"v_add_u32 v30, v30, v29")
        A(f"s_add_u32 s70, s70, 16384")
        A(f"v_add_u32 v31, s70, v30")
        A(f"v_mov_b32 v{vOL}, v31")
        A(f"v_mov_b32 v{vR}, v22")
        A(f"v_add_u32 v{Y}, 3584, v{vO}")
        A(f"s_lshl_b32 s70, s{sHG}, 20")
        A(f"s_lshl_b32 s71, s{sW}, 14")
        A("s_add_u32 s70, s70, s71")
        A(f"s_lshl_b32 s71, s{sHP}, 8")
        A(f"s_add_u32 s{sWOB}, s70, s71")
        A(f"s_lshl_b32 s70, s{sBR}, 3")
        A(f"s_add_u32 s70, s70, s{sB}")
        A(f"s_lshl_b32 s70, s70, 5")
        A(f"s_lshl_b32 s71, s{sHG}, 3")
        A(f"s_add_u32 s70, s70, s71")
        A(f"s_mul_i32 s73, s70, {UNIT}")
        sH = (77, 79); sOH = (76, 3)
        if o.wrot:
            A(f"s_mul_i32 s76, s{sB}, 11")
            A("s_lshr_b32 s76, s76, 5")
            A("s_mul_i32 s76, s76, 3")
            A(f"s_sub_u32 s76, s{sB}, s76")
            if not (o.wrot & 1): A("s_mov_b32 s76, 0")
        for p in range(4):
            if o.wrot and p > 0:
                A(f"s_add_u32 s70, s76, {p - 1}")
                A("s_sub_u32 s71, s70, 3")
                A("s_cmp_ge_u32 s70, 3")
                A("s_cselect_b32 s70, s71, s70")
                A(f"s_add_u32 s70, s70, s{sHP}")
                A("s_add_u32 s70, s70, 1")
            else:
                A(f"s_add_u32 s70, s{sHP}, {p}")
            A("s_and_b32 s70, s70, 3")
            A(f"s_lshl_b32 s71, s70, 18")
            A(f"s_add_u32 s{sWP+p}, s{sWOB}, s71")
            A(f"s_mul_i32 s71, s70, {2*UNIT}")
            A(f"s_add_u32 s{sOP+p}, s73, s71")
        vOL2 = 19
        if o.wrot:
            A(f"s_and_b32 s70, s{sB}, 1")
            if not (o.wrot & 2): A("s_mov_b32 s70, 0")
            A(f"s_lshl_b32 s{sH[0]}, s70, 16")
            A(f"s_sub_u32 s{sH[1]}, 65536, s{sH[0]}")
            A(f"s_mul_i32 s{sOH[0]}, s70, 14336")
            A(f"s_sub_u32 s{sOH[1]}, 14336, s{sOH[0]}")
            A("s_lshl_b32 s70, s70, 12")
            A("s_sub_u32 s71, 4096, s70")
            A(f"v_add_u32 v{vOL2}, s71, v{vOL}")
            A(f"v_add_u32 v{vOL}, s70, v{vOL}")
        A(f"s_mov_b32 s74, {hex(fbits(CSCALE))}")
        sCS = 74
        sPF = 75

        def wait_vm(tags):
            n = q.wait(tags)
            if n is not None: A(f"s_waitcnt vmcnt({n})")
        def mat(groups):
            out = []
            for tag, ins in groups:
                q.issue(tag); out.append(ins)
            return out
        def dma_wo(rr, p, half, slot):
            g = []
            tagp, tagh = p, half
            if (o.abl & 64) and rr == 0 and p >= 1: p, half = 1, 1
            if (o.abl & 128) and rr == 0 and p >= 1: p, half = 0, 1
            for t in range(4):
                pre = [f"s_add_u32 m0, s{sW4K}, {slot}"] if (t == 0 or o.ilv) else []
                if o.wrot:
                    if t == 0: pre.append(f"s_add_u32 s72, s{sWP+p}, s{sH[half]}")
                    addr = f"s_add_u32 s71, s72, {rr*131072 + t*3072}"
                else:
                    addr = f"s_add_u32 s71, s{sWP+p}, {(rr*128 + 64*half)*1024 + t*3072}"
                g.append((f"O{rr}{tagp}{tagh}", pre + [addr,
                          f"buffer_load_dwordx4 v{vWO}, {srd(sWO)}, s71 offen offset:{t*1024}{' nt' if ((rr, p, half) in eval(o.ntoc)) else s.nto} lds"]))
            return g
        def of_mem(rr, p, half, tag, store=False, clean=False, blk=None):
            g = []
            xb = 2*p + half if blk is None else blk + half
            for jj in range(2):
                va = vO if jj == 0 else Y
                if o.wrot:
                    ins = [f"s_add_u32 s72, s{sOP+p}, s{sOH[half]}"] + ([f"s_add_u32 s72, s72, {rr*UNIT}"] if rr else []) + [f"s_mov_b64 exec, s[{sEXLO}:{sEXHI}]"]
                else:
                    ins = [f"s_add_u32 s72, s{sOP+p}, {rr*UNIT + half*8*1792}", f"s_mov_b64 exec, s[{sEXLO}:{sEXHI}]"]
                for j in (2*jj, 2*jj+1):
                    op = "buffer_store_dwordx4" if store else "buffer_load_dwordx4"
                    ins.append(f"{op} {vr(X+16*xb+4*j,4)}, v{va}, {srd(sWS)}, s72 offen offset:{(j&1)*1792}{(' sc1' if clean else s.ost0) if store else [' sc1', '', ' sc0'][o.fgl]}{s.nths if (store and not clean) else s.nthl if not store else ''}")
                ins.append("s_mov_b64 exec, -1")
                g.append(((tag, tag), ins))
            return g
        def mat2(groups):
            out = []
            for tag, ins in groups:
                if isinstance(tag, tuple):
                    for t_ in tag: q.issue(t_)
                else: q.issue(tag)
                out.append(ins)
            return out

        s.wbase = P[1]; s.xbase = P[1]
        def rebase_lines(regs, cur, nb):
            d = (nb - cur) & 0xffffffff
            return [f"v_add_u32 v{r}, {hex(d)}, v{r}" for r in regs]
        def base_for(slot, cur):
            if 0 <= slot - cur <= 49152: return cur
            for b in (P[1], W[0], P[0], P[2]):
                if 0 <= slot - b <= 49152: return b
            raise ValueError
        LA = o.la
        def frags_c(lst):
            fr = []
            for ci, (slot, xb, first) in enumerate(lst):
                fr += [(slot, xb, first and j == 0, j, D, ci) for j in range(4) for D in range(4)]
            return fr
        def stream(fr, fillers=None, prologue=False, gapfill=None, LA=LA):
            n = len(fr)
            lq = Q(15)
            def xrd(ci, j):
                slot = PX[ci % 4]; r = []
                nb = base_for(slot, s.xbase)
                if nb != s.xbase:
                    r += rebase_lines(range(XA, XA+4), s.xbase, nb); s.xbase = nb
                lq.issue(f"X{ci}_{j}")
                r.append(f"ds_read_b128 {vr(X+16*ci+4*j,4)}, v{XA+j} offset:{slot - s.xbase}")
                return r
            def rd(f):
                slot, xb, zero, j, D, ci = fr[f]; r = []
                if prologue and j == 0 and D == 0 and ci > 0:
                    r += s.stamp_lines(f"x{ci}")
                    r.append("s_barrier")
                    r += s.stamp_lines(f"p{ci}")
                nb = base_for(slot, s.wbase)
                if nb != s.wbase:
                    r += rebase_lines(range(WA, WA+4), s.wbase, nb); s.wbase = nb
                if prologue and D == 0: r += xrd(ci, j)
                for a in range(2):
                    lq.issue(f)
                    r.append(f"ds_read_b64_tr_b16 {vr(WIN+4*(f%8)+2*a,2)}, v{WA+D} offset:{slot-s.wbase + j*2048 + a*1024}")
                return r
            gaps = gapfill if gapfill is not None else [[] for _ in range(n)]
            if fillers: spread(gaps, fillers, 0, n)
            for f in range(min(LA, n)): s.emit(rd(f))
            issued = min(LA, n)
            for f in range(n):
                slot, xb, zero, j, D, ci = fr[f]
                k = lq.wait([f, f + 1] if (f % 2 == 0 and f + 1 < issued) else [f])
                if k is not None: A(f"s_waitcnt lgkmcnt({k})")
                srcC = "0" if zero else vr(ACC+16*D, 16)
                A(f"v_mfma_f32_32x32x16_bf16 {vr(ACC+16*D,16)}, {vr(WIN+4*(f%8),4)}, {vr(X+16*xb+4*j,4)}, {srcC}")
                if issued < n:
                    s.emit(rd(issued)); issued += 1
                s.emit(gaps[f])
        def write_q(base_off):
            for D in range(4):
                for i in range(16):
                    A(f"v_mul_f32 v{ACC+16*D+i}, s{sCS}, v{ACC+16*D+i}")
                for h in range(2):
                    f = 2*D + h
                    for i in range(4):
                        A(f"v_cvt_pk_bf16_f32 v{WIN+4*f+i}, v{ACC+16*D+8*h+2*i}, v{ACC+16*D+8*h+2*i+1}")
                    A(f"ds_write_b128 v{vQW}, {vr(WIN+4*f,4)} offset:{base_off + f*1024}")
            A("s_waitcnt lgkmcnt(0)")
        def pair(j):
            a = s.dma_k(j, vK, nt, f"KV{j}") if j <= 15 else []
            b = s.dma_v(j, vV, nt, f"KV{j}") if j >= 1 else []
            return a + b
        def own_frags():
            for half in range(2):
                for j in range(4):
                    if o.wrot: A(f"ds_read_b128 {vr(X+16*half+4*j,4)}, v{(vOL, vOL2)[half]} offset:{j*512}")
                    else: A(f"ds_read_b128 {vr(X+16*half+4*j,4)}, v{vOL} offset:{half*4096 + j*512}")
            A("s_waitcnt lgkmcnt(0)")

        A(f"v_add_u32 v21, s{sHP}, v1")
        A("v_add_u32 v21, 1, v21")
        A("v_and_b32 v21, 3, v21")
        A(f"v_add_u32 v21, s{sGRP}, v21")
        A("v_lshlrev_b32 v21, 7, v21")
        A(f"v_add_u32 v22, s{sHG}, v1")
        A("v_add_u32 v22, 1, v22")
        A("v_and_b32 v22, 3, v22")
        A("v_lshlrev_b32 v22, 2, v22")
        A(f"s_and_b32 s71, s{sGRP}, {hex(0xfffffff0)}")
        A(f"s_add_u32 s71, s71, s{sHP}")
        A("v_add_u32 v22, s71, v22")
        A("v_lshlrev_b32 v22, 7, v22")
        A("v_lshlrev_b32 v23, 4, v1")
        A(f"s_lshl_b32 s{sPF}, s{sHG}, 20")
        A("s_lshr_b32 s70, s2, 3")
        A("s_lshl_b32 s70, s70, 15")
        A(f"s_add_u32 s{sPF}, s{sPF}, s70")
        A(f"s_lshl_b32 s70, s{sW}, 13")
        A(f"s_add_u32 s{sPF}, s{sPF}, s70")
        def wq_pieces(D, base_off):
            L = [f"v_pk_mul_f32 {vr(ACC+16*D+2*i,2)}, {vr(ACC+16*D+2*i,2)}, s[{sCS}:{sCS+1}] op_sel_hi:[1,0]" for i in range(8)]
            for h in range(2):
                L += [f"v_cvt_pk_bf16_f32 v{ACC+16*D+4*h+i}, v{ACC+16*D+8*h+2*i}, v{ACC+16*D+8*h+2*i+1}" for i in range(4)]
                L.append(f"ds_write_b128 v{vQW}, {vr(ACC+16*D+4*h,4)} offset:{base_off + (2*D+h)*1024}")
            return L
        def douter(fr):
            last = fr[-16:]
            return fr[:-16] + sorted(last, key=lambda f: (f[4], f[3]))
        def dq_gaps(gaps, base_off):
            n = len(gaps); b = n - 16
            for D in range(3):
                spread(gaps, [[x] for x in wq_pieces(D, base_off)], b + 4*D + 5, min(b + 4*D + 9, n))
        def dq_end(base_off):
            s.emit(wq_pieces(3, base_off))
            A("s_waitcnt lgkmcnt(0)")
        fr0 = frags_c([(PX[c % 4] + 16384, c, c == 0) for c in range(8)])
        gaps0 = [[] for _ in fr0]
        if o.pro2:
            setup = s.L; s.L = capL
            sec = {"pre": [], "clr": [], "mid": [], "early": [], "post": []}
            cur = "pre"
            nxt = {"@@clr0": "clr", "@@clr1": "mid", "@@early0": "early", "@@early1": "post"}
            for l in setup:
                if l in nxt: cur = nxt[l]
                else: sec[cur].append(l if l.endswith(":") else l.strip())
            s.emit(sec["early"])
            fill = [[l] for l in sec["pre"]] + [sec["clr"]] + [[l] for l in sec["mid"] + sec["post"]]
            if o.pro2 == 1: spread(gaps0, fill, 2, 108)
            else:
                for g_ in fill: s.emit(g_)
            s.stamp("bs")
        else:
            s.stamp("bs")
            A("s_waitcnt vmcnt(0)")
        s.stamp("x0")
        A("s_barrier")
        s.stamp("p0")
        if o.dq:
            fr0 = douter(fr0); dq_gaps(gaps0, 0)
        stream(fr0, None, prologue=True, gapfill=gaps0, LA=(min(LA, 5) if o.dq else LA))
        if o.dq: dq_end(0)
        else: write_q(0)
        s.stamp("pro")
        def poll_check(vsrc, shift):
            A(f"v_readfirstlane_b32 s70, v{vsrc} ; @val=POLL")
            if shift == 0:
                A("s_lshr_b32 s71, s70, 1"); A("s_or_b32 s70, s70, s71")
            else:
                A(f"s_lshr_b32 s70, s70, {shift}")
            A("s_and_b32 s70, s70, 0x01010101")
            A("s_cmp_eq_u32 s70, 0x01010101")
        def mid_poll(slow=False):
            if o.lead:
                return [f"s_and_b32 s71, s{sGRP}, {hex(0xfffffff0)}",
                        f"buffer_load_dword v24, off, {srd(sDBG)}, s71{' sc1' if (slow or o.lead == 2) else ''}"]
            return [f"s_and_b32 s71, s{sGRP}, {hex(0xfffffff0)}",
                    f"buffer_load_dwordx4 v[24:27], off, {srd(sDBG)}, s71 sc1"]
        def mid_check():
            if o.lead:
                return [f"v_readfirstlane_b32 s70, v24 ; @val=POLL",
                        "s_and_b32 s70, s70, 0x01010101", "s_cmp_eq_u32 s70, 0x01010101"]
            return [f"v_and_b32 v24, v24, v25", f"v_and_b32 v26, v26, v27",
                    f"v_and_b32 v24, v24, v26",
                    "s_nop 0",
                    f"v_readfirstlane_b32 s70, v24 ; @val=POLL",
                    "s_and_b32 s70, s70, 0x01010101", "s_cmp_eq_u32 s70, 0x01010101"]
        def wave_poll(vaddr, nm, drain=True):
            A(f"s_mov_b32 s{sSPIN}, 0")
            A("s_mov_b64 exec, 7")
            s.lab(f"B_{nm}")
            A(f"buffer_load_dword v{VP}, v{vaddr}, {srd(sWS)}, s72 offen sc1")
            A("s_waitcnt vmcnt(0)")
            A(f"v_cmp_ne_u32 vcc, 0, v{VP}")
            A("s_cmp_eq_u32 vcc_lo, 7")
            A(f"s_cbranch_scc1 B_{nm}d ; @taken")
            A(f"s_add_u32 s{sSPIN}, s{sSPIN}, 1")
            A(f"s_cmp_lt_u32 s{sSPIN}, {o.spin}")
            A(f"s_cbranch_scc1 B_{nm}")
            s.lab(f"B_{nm}d")
            A("s_mov_b64 exec, -1")
            if drain: q.drain()
        wq_slot = lambda c: (P[0] + 16384) if c == 0 else W[(c + 1) % 4]
        wq_issue = {0: [1, 2], 1: [3], 2: [4], 3: [5], 4: [6], 5: [7]}
        wo0_slot = {(0,0): W[3], (0,1): W[0], (1,0): W[0], (1,1): W[1], (2,0): W[2], (2,1): W[3], (3,0): P[1], (3,1): P[2]}
        wo0_issue = eval(o.w0i)
        wo0_use = eval(o.w0u)
        ords = eval(o.ords)
        of0_issue = eval(o.f0)
        pf_issue = {1: [0, 1], 2: [2, 3], 3: [4], 4: [5], 5: [6], 6: [7]}
        wo1_slot = {(0,0): P[2] + 16384, (0,1): P[1] + 16384, (1,0): W[0], (1,1): W[1], (2,0): W[2], (2,1): W[3], (3,0): P[1], (3,1): P[2]}
        wo1_issue = eval(o.w1i)
        FL0AT = o.fl0at if o.fl0at else o.s0at + 1
        PO0 = o.po0
        def flag_check(nm):
            A("s_mov_b64 exec, 7")
            A(f"v_cmp_ne_u32 vcc, 0, v{VP}")
            A("s_mov_b64 exec, -1")
            A("s_cmp_eq_u32 vcc_lo, 7")
            A(f"s_cbranch_scc0 B_slow{nm} ; @nottaken")
            s.lab(f"B_slow{nm}r")
        for st in range(17):
            s.stamp(f"c{st}")
            tags = [f"KV{st}"]
            if 1 <= st <= 7: tags.append(f"Q{st}")
            for (p, h) in wo0_use.get(st, []):
                tags += [f"O0{p}{h}", f"F{p}"]
            if st == FL0AT: tags.append("S0")
            if st == PO0 + 1: tags.append("POLL")
            if st == 9: tags.append("POLL0")
            if st == 8: tags.append("PF")
            wait_vm(tags)
            s.stamp(f"w{st}")
            A("s_barrier")
            s.stamp(f"s{st}")
            if st == 8:
                for d in range(4):
                    A(f"s_add_u32 s70, s{sHG}, {1 + d}")
                    A("s_and_b32 s70, s70, 3")
                    A(f"v_xor_b32 v29, s70, v{vR}")
                    A("v_lshlrev_b32 v29, 6, v29")
                    A(f"v_add_u32 v29, v29, v{vWB}")
                    A(f"v_add_u32 v{WA+d}, {s.wbase}, v29")
            pre_groups = []
            if st == 9:
                own_frags()
            g_s = []
            s0sp = eval(o.s0sp) if o.s0sp else {o.s0at: [0, 1, 2, 3]}
            assert max(s0sp) == o.s0at
            if st in s0sp:
                g_s = of_mem(0, 0, 0, "S0", store=True) + of_mem(0, 0, 1, "S0", store=True)
                g_s = [g_s[i] for i in s0sp[st]]
                if "s" not in ords.get(st, o.order): pre_groups = g_s
            if st == 2 and not (o.abl & 16):
                if o.lead:
                    A(f"s_or_b32 s70, s{sW}, s{sHG}")
                    A(f"s_or_b32 s70, s70, s{sHP}")
                    A("s_cmp_lg_u32 s70, 0")
                    A(f"s_cbranch_scc1 B_nf{st}")
                    A("v_mov_b32 v28, 0x01010101")
                    A("s_mov_b64 exec, 1")
                    A(f"buffer_store_dword v28, off, {srd(sDBG)}, s{sGRP} sc1")
                    A("s_mov_b64 exec, -1")
                else:
                    A(f"s_cmp_lg_u32 s{sW}, 0")
                    A(f"s_cbranch_scc1 B_nf{st}")
                    s.flag_store(1, 28)
                s.lab(f"B_nf{st}")
            if st == 8 and not (o.abl & 32):
                s.emit(mid_poll()); q.issue("POLL0")
            if st == 9 and not (o.abl & 32):
                s.emit(mid_check())
                A("s_cbranch_scc0 B_slow0 ; @nottaken")
                s.lab("B_slow0r")
                s.stamp("chk0")
            if st == FL0AT and not (o.abl & 4):
                A(f"s_lshl_b32 s70, s{sMYB}, 7")
                A(f"s_lshl_b32 s71, s{sW}, 2")
                A(f"s_add_u32 s71, s71, {FLAG_BASE + 32}")
                A("s_add_u32 s70, s70, s71")
                A("v_mov_b32 v28, 1")
                A("s_mov_b64 exec, 1")
                A(f"buffer_store_dword v28, off, {srd(sWS)}, s70{s.ofl0}")
                A("s_mov_b64 exec, -1")
                q.issue("FL0")
            if st == PO0 and not (o.abl & 4):
                A(f"s_lshl_b32 s72, s{sW}, 2")
                A(f"s_add_u32 s72, s72, {FLAG_BASE + 32}")
                A("s_mov_b64 exec, 7")
                A(f"buffer_load_dword v{VP}, v21, {srd(sWS)}, s72 offen sc1"); q.issue("POLL")
                A("s_mov_b64 exec, -1")
            if st == PO0 + 1 and not (o.abl & 4):
                flag_check("1")
                s.stamp("chk")
            g_kv = pair(st + 2) if st + 2 <= 16 else []
            g_w = []
            for c in wq_issue.get(st, []): g_w += s.dma_wq(c, wq_slot(c), vW, f"Q{c}", 256, 72)
            for (p, h) in wo0_issue.get(st, []): g_w += dma_wo(0, p, h, wo0_slot[(p, h)])
            g_f = []
            for p in of0_issue.get(st, []): g_f += of_mem(0, p, 0, f"F{p}") + of_mem(0, p, 1, f"F{p}")
            g_1 = []
            for (p, h) in wo1_issue.get(st, []): g_1 += dma_wo(1, p, h, wo1_slot[(p, h)])
            g_p = []
            if o.pf:
                for t in pf_issue.get(st, []):
                    g_p.append(("PF", [f"s_add_u32 s71, s{sPF}, {t*1024}",
                                       f"buffer_load_dwordx4 v[24:27], v23, {srd(sWO)}, s71 offen ; @dummy"]))
            if (o.abl & 1) and 10 <= st <= 13: g_w = []
            if st in eval(o.ablw): g_w = []
            if o.abl & 2: pre_groups = []
            if (o.abl & 8) and 8 <= st <= 13: g_kv = g_kv[:4]
            gm = {"w": g_w + g_1, "f": g_f, "k": g_kv, "p": g_p, "s": g_s}
            groups = pre_groups + sum((gm[c] for c in ords.get(st, o.order)), [])
            if o.ilv and st >= o.ilv0:
                oth = (pre_groups if o.ilv & 2 else []) + sum((gm[c] for c in o.order if c != "k"), [])
                def pos(lst, ph):
                    w = [2 if isinstance(g[0], tuple) else 1 for g in lst]; tot = sum(w); acc = 0; r = []
                    for g, x in zip(lst, w):
                        r.append(((acc + ph * x) / tot, g)); acc += x
                    return r
                a_ = pos(g_kv, 0.0) if g_kv else []
                b_ = pos(oth, 0.5) if oth else []
                merged = sorted([(x, 0, i, g) for i, (x, g) in enumerate(a_)] + [(x, 1, i, g) for i, (x, g) in enumerate(b_)], key=lambda z: (z[0], z[1], z[2]))
                groups = ([] if o.ilv & 2 else pre_groups) + [z[3] for z in merged]
            mem = mat2(groups)
            use = ([(wq_slot(st), st, st == 0)] if st <= 7 else []) + \
                  [(wo0_slot[(p, h)], 2*p + h, (p, h) == (0, 0)) for (p, h) in wo0_use.get(st, [])]
            if use and st == 7 and o.dq:
                fr7 = douter(frags_c(use)); g7 = [[] for _ in fr7]
                if not o.s7f: spread(g7, mem, 0, 16)
                dq_gaps(g7, 16384)
                stream(fr7, None, gapfill=g7)
                dq_end(16384)
                if o.s7f:
                    for g_ in mem: s.emit(g_)
            elif use:
                stream(frags_c(use), mem)
                if st == 7: write_q(16384)
            else:
                for gi, g_ in enumerate(mem):
                    s.emit(g_); s.stamp(f"m{st}_{gi}")
            s.stamp(f"d{st}")
        sPD = [sWP, sWP + 1, sWP + 2] if o.tail in (1, 3) else [82, 83, 84]
        def addr_prep():
            A("v_lshrrev_b32 v17, 5, v1")
            A("v_mul_u32_u24 v23, 112, v17")
            A("v_and_b32 v18, 31, v1")
            A("v_add_u32 v23, v23, v18")
            A(f"s_lshl_b32 s70, s{sW}, 5")
            A("v_add_u32 v23, s70, v23")
            A("v_add_u32 v19, s70, v18")
            A("v_lshlrev_b32 v23, 4, v23")
            A(f"s_lshl_b32 s70, s{sBR}, 3")
            A(f"s_add_u32 s70, s70, s{sB}")
            A(f"s_lshl_b32 s70, s70, 2")
            A(f"s_add_u32 s70, s70, s{sHP}")
            A(f"s_mul_i32 s73, s70, {12*PSZ}")
            A(f"s_add_u32 s73, s73, {PART_BASE}")
            for d in range(3):
                A(f"s_add_u32 s70, s{sHG}, {1 + d}")
                A("s_and_b32 s70, s70, 3")
                A(f"s_mul_i32 s70, s70, {3*PSZ}")
                A(f"s_add_u32 s70, s70, s73")
                A(f"s_add_u32 s{sPD[d]}, s70, {(2-d)*PSZ}")
            A("v_lshlrev_b32 v19, 11, v19")
            A("v_lshlrev_b32 v17, 4, v17")
            A("v_add_u32 v19, v19, v17")
        def pub(d):
            r = []
            for rq in range(4):
                r.append([f"s_add_u32 s70, s{sPD[d]}, {rq*3584}", f"s_mov_b64 exec, s[{sEXLO}:{sEXHI}]",
                          f"buffer_store_dwordx4 {vr(ACC+16*d+4*rq,4)}, v23, {srd(sWS)}, s70 offen sc1{s.nths}", "s_mov_b64 exec, -1"])
            return r
        def tail1():
            used0 = set(x for v in wo0_use.values() for x in v)
            tail0 = [(p, h) for p in range(4) for h in range(2) if (p, h) not in used0]
            tailF = sorted(set(p for p, h in tail0))
            assert all((p, 0) in tail0 or (p, 0) in used0 for p in tailF)
            issued1 = set(x for v in wo1_issue.values() for x in v)
            def ftags(p): return [f"O0{p}{h}" for h in range(2) if (p, h) in tail0] + ([f"F{p}"] if p else [])
            wait_vm(ftags(tailF[0]) + ["O100"])
            A(f"v_add_u32 v{vOL}, {hex((P[0] - W[1]) & 0xffffffff)}, v{vOL}")
            if o.wrot: A(f"v_add_u32 v{vOL2}, {hex((P[0] - W[1]) & 0xffffffff)}, v{vOL2}")
            A("s_barrier")
            s.stamp("E")
            busy = set(wo0_slot[c] for c in tail0)
            avail = [c for c in [(0, 1), (1, 0), (1, 1), (2, 0), (2, 1), (3, 0), (3, 1)] if c not in issued1 and wo1_slot[c] not in busy]
            for i, p in enumerate(tailF):
                fl = mat2(sum((dma_wo(1, pp, hh, wo1_slot[(pp, hh)]) for (pp, hh) in avail), []))
                issued1 |= set(avail)
                stream(frags_c([(wo0_slot[(p, h)], 2*p + h, False) for h in range(2) if (p, h) in tail0]), fl)
                for h in range(2): busy.discard(wo0_slot[(p, h)])
                avail = [c for c in [(0, 1), (1, 0), (1, 1), (2, 0), (2, 1), (3, 0), (3, 1)] if c not in issued1 and wo1_slot[c] not in busy]
                if i + 1 < len(tailF):
                    wait_vm(ftags(tailF[i + 1]))
                    A("s_barrier")
                    s.stamp(f"T{i}")
            own_frags()
            wait_vm("O101")
            A("s_barrier")
            s.stamp("Ta")
            fl = mat2(sum((dma_wo(1, pp, hh, wo1_slot[(pp, hh)]) for (pp, hh) in avail), []))
            issued1 |= set(avail)
            assert len(issued1) == 8, issued1
            stream(frags_c([(wo1_slot[(0, 0)], 0, False), (wo1_slot[(0, 1)], 1, False)]), fl)
            s.stamp("own")
            addr_prep()
            A(f"s_lshl_b32 s72, s{sW}, 2")
            A(f"s_add_u32 s72, s72, {FLAG_BASE}")
            wave_poll(21, "poll1")
            s.stamp("poll1")
            gl = lambda p: of_mem(1, p, 0, f"G{p}") + of_mem(1, p, 1, f"G{p}")
            for g_ in mat2(gl(1) + gl(2)): s.emit(g_)
            A("s_barrier")
            ND = 3 if o.defer else 4
            for p in (1, 2):
                wait_vm(f"G{p}")
                if p == 1: s.stamp("g1")
                fl = mat2(gl(3)) if p == 1 else None
                stream([f for f in frags_c([(wo1_slot[(p, 0)], 2*p, False), (wo1_slot[(p, 1)], 2*p + 1, False)]) if f[4] < ND], fl)
            wait_vm("G3")
            fr = []
            for d in range(ND):
                for half in range(2):
                    for j in range(4):
                        fr.append((wo1_slot[(3, half)], 6 + half, False, j, d, half))
            for p in ((1, 2, 3) if o.defer else ()):
                for half in range(2):
                    for j in range(4):
                        fr.append((wo1_slot[(p, half)], 2*p + half, False, j, 3, half))
            gaps = [[] for _ in range(len(fr))]
            for d in range(3):
                spread(gaps, pub(d), 8*d + 8 + 3, 8*d + 8 + 7)
            stream(fr, None, gapfill=gaps)
        def tail2():
            used0 = set(x for v in wo0_use.values() for x in v)
            assert used0 == {(0, 0), (0, 1)}
            fdone = set(p for v in of0_issue.values() for p in v)
            assert wo1_issue == {15: [(0, 0)]}
            gb = lambda p: 2 * (p - 1)
            gl = lambda p: of_mem(1, p, 0, f"G{p}", blk=gb(p)) + of_mem(1, p, 1, f"G{p}", blk=gb(p))
            w1 = lambda cs: sum((dma_wo(1, pp, hh, wo1_slot[(pp, hh)]) for (pp, hh) in cs), [])
            fw = lambda p: frags_c([(wo0_slot[(p, 0)], 2*p, False), (wo0_slot[(p, 1)], 2*p + 1, False)])
            tags = [f"O0{p}{h}" for p in (1, 2, 3) for h in range(2)] + ["O100"]
            if PO0 == 16: tags.append("POLL")
            wait_vm(tags)
            A(f"v_add_u32 v{vOL}, {hex((P[0] - W[1]) & 0xffffffff)}, v{vOL}")
            if o.wrot: A(f"v_add_u32 v{vOL2}, {hex((P[0] - W[1]) & 0xffffffff)}, v{vOL2}")
            if PO0 == 16:
                flag_check("1")
                s.stamp("chk")
            rest = [p for p in (1, 2, 3) if p not in fdone]
            if o.fpre and PO0 == 16:
                for p in rest:
                    for g_ in mat2(of_mem(0, p, 0, f"F{p}") + of_mem(0, p, 1, f"F{p}")): s.emit(g_)
                rest = []
            A("s_barrier")
            s.stamp("E")
            for g_ in mat2(w1([(0, 1)])): s.emit(g_)
            for p in rest:
                for g_ in mat2(of_mem(0, p, 0, f"F{p}") + of_mem(0, p, 1, f"F{p}")): s.emit(g_)
            own_frags()
            stream(frags_c([(wo1_slot[(0, 0)], 0, False)]), None)
            addr_prep()
            wait_vm("O101")
            A("s_barrier")
            s.stamp("Ta")
            stream(frags_c([(wo1_slot[(0, 1)], 1, False)]), None)
            s.stamp("own")
            wait_vm("F1")
            s.stamp("f1")
            stream(fw(1), None)
            wait_vm("F2")
            A("s_barrier")
            A(f"s_lshl_b32 s72, s{sW}, 2")
            A(f"s_add_u32 s72, s72, {FLAG_BASE}")
            A("s_mov_b64 exec, 7")
            A(f"buffer_load_dword v{VP}, v21, {srd(sWS)}, s72 offen sc1"); q.issue("POLL1")
            A("s_mov_b64 exec, -1")
            s.stamp("f2")
            stream(fw(2), mat2(w1([(1, 0), (1, 1)])))
            wait_vm(["POLL1", "F3"])
            A("s_barrier")
            flag_check("2")
            s.stamp("poll1")
            for g_ in mat2(gl(1)): s.emit(g_)
            stream(fw(3), mat2(gl(2) + w1([(2, 0), (2, 1)]) + gl(3)))
            wait_vm(["O110", "O111"])
            A("s_barrier")
            s.stamp("f3")
            for g_ in mat2(w1([(3, 0), (3, 1)])): s.emit(g_)
            ND = 3 if o.defer else 4
            for p in (1, 2):
                if p == 2:
                    wait_vm(["O120", "O121", "G2"])
                    A("s_barrier")
                else:
                    wait_vm("G1")
                    s.stamp("g1")
                stream([f for f in frags_c([(wo1_slot[(p, 0)], gb(p), False), (wo1_slot[(p, 1)], gb(p) + 1, False)]) if f[4] < ND], None)
            wait_vm(["G3", "O130", "O131"])
            A("s_barrier")
            fr = []
            for d in range(ND):
                for half in range(2):
                    for j in range(4):
                        fr.append((wo1_slot[(3, half)], gb(3) + half, False, j, d, half))
            for p in ((1, 2, 3) if o.defer else ()):
                for half in range(2):
                    for j in range(4):
                        fr.append((wo1_slot[(p, half)], gb(p) + half, False, j, 3, half))
            gaps = [[] for _ in range(len(fr))]
            for d in range(3):
                spread(gaps, pub(d), 8*d + 8 + 3, 8*d + 8 + 7)
            stream(fr, None, gapfill=gaps)
        def tail3():
            used0 = set(x for v in wo0_use.values() for x in v)
            assert used0 == {(0, 0), (0, 1)}
            assert wo1_issue == {15: [(0, 0)]}
            gl = lambda p: of_mem(1, p, 0, f"G{p}") + of_mem(1, p, 1, f"G{p}")
            w1 = lambda cs: sum((dma_wo(1, pp, hh, wo1_slot[(pp, hh)]) for (pp, hh) in cs), [])
            fw = lambda p: frags_c([(wo0_slot[(p, 0)], 2*p, False), (wo0_slot[(p, 1)], 2*p + 1, False)])
            ft = lambda p: [f"O0{p}0", f"O0{p}1", f"F{p}"]
            def poll_issue():
                A(f"s_lshl_b32 s72, s{sW}, 2")
                A(f"s_add_u32 s72, s72, {FLAG_BASE}")
                A("s_mov_b64 exec, 7")
                A(f"buffer_load_dword v{VP}, v21, {srd(sWS)}, s72 offen sc1"); q.issue("POLL1")
                A("s_mov_b64 exec, -1")
            wait_vm(ft(1) + ["O100"])
            A(f"v_add_u32 v{vOL}, {hex((P[0] - W[1]) & 0xffffffff)}, v{vOL}")
            if o.wrot: A(f"v_add_u32 v{vOL2}, {hex((P[0] - W[1]) & 0xffffffff)}, v{vOL2}")
            A("s_barrier")
            s.stamp("E")
            if o.t3a == 0: stream(fw(1), mat2(w1([(0, 1)])))
            else:
                stream(fw(1), None)
                for g_ in mat2(w1([(0, 1)])): s.emit(g_)
            wait_vm(ft(2))
            A("s_barrier")
            s.stamp("T0")
            if o.t3p == 0: poll_issue()
            stream(fw(2), mat2(w1([(1, 0), (1, 1)])))
            if o.t3p == 1: poll_issue()
            wait_vm(ft(3) + (["POLL1"] if o.t3p == 0 else []))
            A("s_barrier")
            s.stamp("T1")
            if o.t3p == 0:
                flag_check("2")
                s.stamp("poll1")
                stream(fw(3), mat2(gl(1) + w1([(2, 0), (2, 1)]) + gl(2)))
            else:
                stream(fw(3), mat2(w1([(2, 0), (2, 1)])))
                wait_vm("POLL1")
                flag_check("2")
                s.stamp("poll1")
                for g_ in mat2(gl(1)): s.emit(g_)
            own_frags()
            wait_vm("O101")
            A("s_barrier")
            s.stamp("Ta")
            stream(frags_c([(wo1_slot[(0, 0)], 0, False), (wo1_slot[(0, 1)], 1, False)]),
                   mat2((gl(2) if o.t3p == 1 else []) + (gl(3) + w1([(3, 0), (3, 1)]) if o.t3g == 0 else w1([(3, 0), (3, 1)]) + gl(3))))
            s.stamp("own")
            addr_prep()
            ND = 3 if o.defer else 4
            for p in (1, 2):
                wait_vm([f"O1{p}0", f"O1{p}1", f"G{p}"])
                A("s_barrier")
                if p == 1: s.stamp("g1")
                stream([f for f in frags_c([(wo1_slot[(p, 0)], 2*p, False), (wo1_slot[(p, 1)], 2*p + 1, False)]) if f[4] < ND], None)
            wait_vm(["G3", "O130", "O131"])
            A("s_barrier")
            fr = []
            for d in range(ND):
                for half in range(2):
                    for j in range(4):
                        fr.append((wo1_slot[(3, half)], 6 + half, False, j, d, half))
            for p in ((1, 2, 3) if o.defer else ()):
                for half in range(2):
                    for j in range(4):
                        fr.append((wo1_slot[(p, half)], 2*p + half, False, j, 3, half))
            gaps = [[] for _ in range(len(fr))]
            for d in range(3):
                spread(gaps, pub(d), 8*d + 8 + 3, 8*d + 8 + 7)
            stream(fr, None, gapfill=gaps)
        {1: tail1, 2: tail2, 3: tail3}[o.tail]()
        s.stamp("oproj")
        A(f"s_lshl_b32 s70, s{sMYB}, 7")
        A(f"s_lshl_b32 s72, s{sW}, 2")
        A(f"s_add_u32 s72, s72, {FLAG_BASE + 16}")
        A("s_add_u32 s70, s70, s72")
        A("v_mov_b32 v20, 1")
        A("s_waitcnt vmcnt(0)")
        s.stamp("pst")
        A("s_mov_b64 exec, 1")
        A(f"buffer_store_dword v20, off, {srd(sWS)}, s70 sc1")
        if o.cl & 2:
            A("s_mov_b64 exec, -1")
            for g_ in mat2(of_mem(1, 3, 0, "CL1", store=True, clean=True) + of_mem(1, 3, 1, "CL1", store=True, clean=True)): s.emit(g_)
            A(f"s_lshl_b32 s72, s{sW}, 2")
            A(f"s_add_u32 s72, s72, {FLAG_BASE + 16}")
        wave_poll(22, "poll2")
        s.stamp("poll2")
        A(f"s_mul_i32 s71, s{sHG}, {3*PSZ}")
        A("s_add_u32 s73, s73, s71")
        R = 64
        A(f"s_mov_b64 exec, s[{sEXLO}:{sEXHI}]")
        for src in range(3):
            for rq in range(4):
                A(f"s_add_u32 s70, s73, {src*PSZ + rq*3584}")
                A(f"buffer_load_dwordx4 {vr(R+16*src+4*rq,4)}, v23, {srd(sWS)}, s70 offen sc1{s.nthl}")
        A(f"s_mul_i32 s70, s{sB}, {112*2048}")
        A(f"s_lshl_b32 s71, s{sBR}, 10")
        A("s_add_u32 s70, s70, s71")
        A(f"s_lshl_b32 s71, s{sHP}, 8")
        A("s_add_u32 s70, s70, s71")
        A(f"s_lshl_b32 s71, s{sHG}, 6")
        A("s_add_u32 s70, s70, s71")
        OWN = ACC + 48
        A("s_waitcnt vmcnt(8)")
        for i in range(8): A(f"v_pk_add_f32 {vr(OWN+2*i,2)}, {vr(OWN+2*i,2)}, {vr(R+2*i,2)}")
        A("s_waitcnt vmcnt(4)")
        for i in range(8): A(f"v_pk_add_f32 {vr(OWN+2*i,2)}, {vr(OWN+2*i,2)}, {vr(R+16+2*i,2)}")
        A("s_waitcnt vmcnt(0)")
        for i in range(8): A(f"v_pk_add_f32 {vr(OWN+2*i,2)}, {vr(OWN+2*i,2)}, {vr(R+32+2*i,2)}")
        for i in range(8):
            A(f"v_cvt_pk_bf16_f32 v{32+i}, v{OWN+2*i}, v{OWN+2*i+1}")
        for h in range(2):
            A(f"buffer_store_dwordx4 {vr(32+4*h,4)}, v19, {srd(sOUT)}, s70 offen offset:{h*32}{['', ' sc1', ' sc0 sc1', ' nt', ' sc1 nt'][o.outsc]}")
        A("s_mov_b64 exec, -1")
        if o.dbgst:
            A("s_waitcnt vmcnt(0)")
            A(f"s_or_b32 s70, s{sW}, s{sHG}")
            A(f"s_or_b32 s70, s70, s{sHP}")
            A("s_cmp_lg_u32 s70, 0")
            A("s_cbranch_scc1 L_end")
            s.stamp("end"); s.stamp("cend", True)
            A("s_waitcnt lgkmcnt(0)")
            r = STAMP_REGS
            A(f"s_sub_u32 s70, s{r[5]}, s{r[1]}")
            A(f"s_sub_u32 s71, s{r[4]}, s{r[0]}")
            A(f"s_sub_u32 s72, s{r[2]}, s{r[1]}")
            A(f"s_sub_u32 s73, s{r[3]}, s{r[1]}")
            for i in range(4): A(f"v_mov_b32 v{32+i}, s{70+i}")
            A(f"s_and_b32 s71, s{sGRP}, {hex(0xfffffff0)}")
            A("s_mov_b64 exec, 1")
            A(f"buffer_store_dwordx4 v[32:35], off, {srd(sDBG)}, s71 sc1")
            A("s_endpgm")
        if o.stamp and not o.dbgst:
            A("s_waitcnt vmcnt(0)")
            A(f"s_cmp_lg_u32 s{sW}, 0")
            A("s_cbranch_scc1 L_end")
            s.stamp("end"); s.stamp("cend", True)
            A("s_waitcnt lgkmcnt(0)")
            n = len(o.stamps.split(","))
            assert n <= len(STAMP_REGS)
            if o.diagd:
                na, nb, kk = o.diagd.split(",")
                nm = o.stamps.split(",")
                ra, rb, re_ = (STAMP_REGS[nm.index(x)] for x in (na, nb, "end"))
                A(f"s_sub_u32 s70, s{rb}, s{ra}")
                A(f"s_mul_i32 s70, s70, {kk}")
                A("s_min_u32 s70, s70, 50000")
                s.lab("L_dg")
                A("s_memrealtime s[72:73]")
                A("s_waitcnt lgkmcnt(0)")
                A(f"s_sub_u32 s71, s72, s{re_}")
                A("s_cmp_lt_u32 s71, s70")
                A("s_cbranch_scc1 L_dg ; @nottaken")
            A("s_lshl_b32 s70, s2, 8")
            A(f"s_add_u32 s70, s70, {STAMP_BASE}")
            A("s_mov_b64 exec, 1")
            for i in range(n):
                r = STAMP_REGS[i]
                A(f"v_mov_b32 v32, s{r}"); A(f"v_mov_b32 v33, s{r+1}")
                A(f"buffer_store_dwordx2 v[32:33], off, {srd(sWS)}, s70 offset:{8*i}")
                A("s_nop 1")
        A("s_endpgm")
        s.lab("B_slow0")
        A(f"s_mov_b32 s{sSPIN}, 0")
        s.lab("B_slow0l")
        s.emit(mid_poll(True))
        A("s_waitcnt vmcnt(0)")
        s.emit(mid_check())
        A("s_cbranch_scc1 B_slow0r ; @taken" if not (o.abl & 32) else "s_nop 0")
        A(f"s_add_u32 s{sSPIN}, s{sSPIN}, 1")
        A(f"s_cmp_lt_u32 s{sSPIN}, {o.spin}")
        A("s_cbranch_scc1 B_slow0l")
        A("s_branch B_slow0r" if not (o.abl & 32) else "s_endpgm")
        s.lab("B_slow1")
        A(f"s_lshl_b32 s72, s{sW}, 2")
        A(f"s_add_u32 s72, s72, {FLAG_BASE + 32}")
        wave_poll(21, "slow1l", drain=False)
        A("s_branch B_slow1r" if not (o.abl & 4) else "s_endpgm")
        if o.tail in (2, 3):
            s.lab("B_slow2")
            A(f"s_lshl_b32 s72, s{sW}, 2")
            A(f"s_add_u32 s72, s72, {FLAG_BASE}")
            wave_poll(21, "slow2l", drain=False)
            A("s_branch B_slow2r")

    def build(s):
        s.common()
        s.waveA()
        s.waveB()
        s.lab("L_end")
        s.A("s_endpgm")
        lines = [l for l in s.L if l is not None]
        cfgs = []
        for wave in (0, 1, 3, 4, 5, 7):
            cfgs.append((f"wg5w{wave}", {2: 5}, {"WAVE": wave, "POLL": 0x03030303, "POLL3": 0x03030303}))
        cfgs.append(("allresc", {2: 5}, {"WAVE": 1, "ALLRESC": 1}))
        cfgs.append(("extra", {2: 256}, {"WAVE": 0}))
        lines = asmlib.finalize(lines, cfgs, verbose=True)
        return "\n".join(lines)

if __name__ == "__main__":
    ap = argparse.ArgumentParser()
    ap.add_argument("-o", default="k8.s")
    ap.add_argument("--stamp", action="store_true")
    ap.add_argument("--cyc", action="store_true")
    ap.add_argument("--stamps", default="start,pro,s8,E,poll1,oproj,pst,poll2,end")
    ap.add_argument("--nt", type=int, default=1)
    ap.add_argument("--prioA", type=int, default=0)
    for n_ in ("ntw", "ntx", "nto", "nths", "nthl"): ap.add_argument("--" + n_, type=int, default=0)
    ap.add_argument("--astamp", type=int, default=-1)
    ap.add_argument("--la", type=int, default=6)
    ap.add_argument("--nbub", type=int, default=3)
    ap.add_argument("--rot", type=int, default=1)
    ap.add_argument("--k0at", type=int, default=5)
    ap.add_argument("--p1at", type=int, default=7)
    ap.add_argument("--pf", type=int, default=0)
    ap.add_argument("--f0", default="{13: [1], 14: [2], 15: [3]}")
    ap.add_argument("--po0", type=int, default=11)
    ap.add_argument("--defer", type=int, default=1)
    ap.add_argument("--cpf", type=int, default=1)
    ap.add_argument("--dbgst", type=int, default=0)
    ap.add_argument("--g2at", type=int, default=8)
    ap.add_argument("--order", default="wfkp")
    ap.add_argument("--spin", type=int, default=131072)
    ap.add_argument("--outsc", type=int, default=0)
    ap.add_argument("--osc", type=int, default=15)
    ap.add_argument("--wb", type=int, default=0)
    ap.add_argument("--ntq", default="[]")
    ap.add_argument("--ntxc", default="[]")
    ap.add_argument("--ntoc", default="[]")
    ap.add_argument("--ablw", default="[]")
    ap.add_argument("--fl0at", type=int, default=0)
    ap.add_argument("--s0sp", default="")
    ap.add_argument("--tail", type=int, default=1)
    ap.add_argument("--s0at", type=int, default=9)
    ap.add_argument("--fpre", type=int, default=0)
    ap.add_argument("--abl", type=int, default=0)
    ap.add_argument("--w0i", default="{7: [(0,0)], 8: [(0,1)], 11: [(1,0)], 12: [(1,1), (2,0)], 13: [(2,1)], 14: [(3,0)], 15: [(3,1)]}")
    ap.add_argument("--w0u", default="{9: [(0,0)], 10: [(0,1)], 15: [(1,0), (1,1)], 16: [(2,0), (2,1)]}")
    ap.add_argument("--w1i", default="{15: [(0,0)], 16: [(1,0), (1,1)]}")
    ap.add_argument("--ords", default="{}")
    ap.add_argument("--ilv", type=int, default=0)
    ap.add_argument("--ilv0", type=int, default=1)
    ap.add_argument("--wrot", type=int, default=0)
    ap.add_argument("--cl", type=int, default=0)
    ap.add_argument("--fgl", type=int, default=0)
    ap.add_argument("--pro2", type=int, default=0)
    ap.add_argument("--dq", type=int, default=0)
    ap.add_argument("--apf", default="{}")
    ap.add_argument("--apfpos", type=int, default=0)
    ap.add_argument("--apfnt", default="")
    ap.add_argument("--t3a", type=int, default=0)
    ap.add_argument("--t3p", type=int, default=0)
    ap.add_argument("--t3g", type=int, default=0)
    ap.add_argument("--lead", type=int, default=0)
    ap.add_argument("--pro2a", type=int, default=0)
    ap.add_argument("--s7f", type=int, default=0)
    ap.add_argument("--diagx", type=int, default=0)
    ap.add_argument("--diagd", default="")
    o = ap.parse_args()
    g = Gen(o)
    body = g.build()
    k = kernel_text(NAME + "_kernel", body, vgpr=256)
    hdr = ["; @launch grid=(256,1,1) block=(512,1,1) lds=163840"]
    if o.stamp and not o.dbgst: hdr.append("; STAMPS " + o.stamps)
    if o.astamp >= 0: hdr.append("; ASTAMP")
    if o.cyc: hdr.append("; STAMPCYC")
    open(o.o, "w").write(file_text(hdr, [k]))
    print("wrote", o.o, len(body.splitlines()), "lines")
```

```python
import sys, argparse, struct
from gen_common import *
import asmlib

P = [0, 32768, 65536]
W = [98304, 114688, 131072, 147456]
UNIT = 28672
PART_BASE = 16 << 20
PSZ = 14336
STAMP_BASE = 128 << 20
FLAG_BASE = 32 << 20
NONCE_BASE = FLAG_BASE + 65536
THR = 12.0

sK, sV, sWQ, sX, sWS, sWO, sOUT, sDBG = 4, 8, 12, 16, 20, 24, 28, 32
sWAVE, sW, sBR, sHG, sB, sHP, sH0, sKV = 62, 63, 64, 65, 66, 67, 68, 69
sXB, sPEND = 72, 73
sEV, sTHR, sPAT = 74, 75, 76
sSTEP, sROT, sNEG, sOBASE = 77, 78, 79, 80
sW4K, sWQB, sKVW, sWOB, sGRP, sMYB = 81, 82, 83, 84, 85, 86
sSPIN = 87
sEXLO, sEXHI = 88, 89
sPOS = 3
sWP, sOP = 54, 58
STAMP_REGS = [90, 92, 94, 96, 98, 100] + list(range(36, 52, 2))

def srd(r): return f"s[{r}:{r+3}]"
def vr(a, n=1): return f"v{a}" if n == 1 else f"v[{a}:{a+n-1}]"
def fbits(x): return struct.unpack('<I', struct.pack('<f', x))[0]
CSCALE = (128 ** -0.5) * 1.4426950408889634

class Q:
    def __init__(s, maxn): s.q = []; s.maxn = maxn
    def issue(s, tag):
        s.q.append(tag)
        assert len(s.q) <= s.maxn, ("counter overflow", s.q)
    def wait(s, tags):
        if isinstance(tags, str): tags = [tags]
        last = -1
        for i, t in enumerate(s.q):
            if t in tags: last = i
        if last < 0: return None
        n = len(s.q) - 1 - last
        s.q = s.q[last + 1:]
        return n
    def drain(s): s.q = []

def spread(slots, items, start=0, end=None):
    if end is None: end = len(slots)
    n = end - start
    m = len(items)
    for i, it in enumerate(items):
        k = start + (i * n) // m
        slots[k].extend(it)

class Gen:
    def __init__(s, opt):
        s.L = []; s.opt = opt
        f = lambda b: " nt" if b else ""
        s.ntw, s.ntx, s.nto, s.nths, s.nthl = f(opt.ntw), f(opt.ntx), f(opt.nto), f(opt.nths), f(opt.nthl)
        c = lambda b: " sc1" if b else ""
        s.ost0, s.ost1, s.ofl0, s.ofl1 = c(opt.osc & 1), c(opt.osc & 2), c(opt.osc & 4), c(opt.osc & 8)
    def A(s, t): s.L.append("  " + t)
    def lab(s, n): s.L.append(n + ":")
    def emit(s, lines):
        for l in lines:
            if l.endswith(":"): s.L.append(l)
            else: s.L.append("  " + l)
    def stamp_lines(s, name, cyc=False):
        if not s.opt.stamp: return []
        names = s.opt.stamps.split(",")
        if name not in names: return []
        r = STAMP_REGS[names.index(name)]
        if name == "hwid": return [f"s_getreg_b32 s{r}, hwreg(HW_REG_XCC_ID)", f"s_getreg_b32 s{r+1}, hwreg(HW_REG_HW_ID)"]
        cyc = cyc or s.opt.cyc or (s.opt.dbgst and name not in ("start", "end"))
        return [f"s_mem{'time' if cyc else 'realtime'} s[{r}:{r+1}]"]
    def stamp(s, name, cyc=False): s.emit(s.stamp_lines(name, cyc))
    def capture(s, fn):
        old = s.L; s.L = []
        fn()
        out = [l if l.endswith(":") else l.strip() for l in s.L]; s.L = old
        return out
    def ast(s, i):
        return [f"s_memtime s[{36+2*i}:{37+2*i}]"] if s.opt.astamp >= 0 else []

    def common(s):
        A = s.A
        A("s_cmp_ge_u32 s2, 256")
        A("s_cbranch_scc1 L_end")
        s.stamp("start"); s.stamp("cstart", True); s.stamp("hwid")
        if s.opt.diagx:
            A("s_getreg_b32 s70, hwreg(HW_REG_XCC_ID)")
            A("s_and_b32 s70, s70, 15")
            A("s_and_b32 s71, s2, 7")
            A("s_cmp_eq_u32 s70, s71")
            A("s_cbranch_scc1 L_diag ; @taken")
            for _ in range(s.opt.diagx): A("s_sleep 127")
            s.lab("L_diag")
        A("s_load_dwordx16 s[36:51], s[0:1], 0")
        A("s_load_dwordx8 s[52:59], s[0:1], 64")
        A("s_load_dwordx2 s[60:61], s[0:1], 96")
        A("v_lshrrev_b32 v1, 6, v0")
        A("s_and_b32 s70, s2, 7")
        A("s_lshr_b32 s71, s2, 3")
        if s.opt.cpf:
            KN = NAME + "_kernel"
            A("s_getpc_b64 s[84:85]")
            s.lab("L_pc")
            A(f"s_sub_u32 s84, s84, L_pc-{KN}")
            A("s_subb_u32 s85, s85, 0")
            A("v_lshlrev_b32 v2, 7, v1")
            A("v_and_b32 v3, 31, v0")
            A("v_lshlrev_b32 v3, 2, v3")
            A("v_add_u32 v2, v2, v3")
            A("s_lshl_b32 s72, s71, 10")
            A("v_add_u32 v2, s72, v2")
            A(f"v_min_u32 v2, L_end-{KN}, v2")
            if s.opt.pro2:
                A("v_and_b32 v25, 63, v0")
                A("global_load_dword v0, v2, s[84:85]")
            else: A("global_load_dword v63, v2, s[84:85]")
        A(f"v_readfirstlane_b32 s{sWAVE}, v1 ; @val=WAVE")
        A(f"s_lshr_b32 s{sBR}, s70, 2")
        A(f"s_and_b32 s{sHG}, s70, 3")
        A(f"s_and_b32 s{sB}, s71, 7")
        A(f"s_lshr_b32 s{sHP}, s71, 3")
        A(f"s_lshl_b32 s{sH0}, s{sHG}, 3")
        A(f"s_lshl_b32 s70, s{sHP}, 1")
        A(f"s_add_u32 s{sH0}, s{sH0}, s70")
        A(f"s_add_u32 s{sROT}, s{sB}, s70")
        if not s.opt.rot: A(f"s_mov_b32 s{sROT}, 0")
        R_ = f"s{sROT}"
        if s.opt.rot == 2: s.emit([f"s_xor_b32 {R_}, s{sB}, s{sHP}", f"s_and_b32 {R_}, {R_}, 1", f"s_lshl_b32 {R_}, {R_}, 2"])
        if s.opt.rot == 3: s.emit([f"s_add_u32 {R_}, s{sB}, s{sHP}", f"s_and_b32 {R_}, {R_}, 3", f"s_lshl_b32 {R_}, {R_}, 1"])
        if s.opt.rot == 4: s.emit([f"s_and_b32 {R_}, s{sB}, 3", f"s_lshl_b32 {R_}, {R_}, 1"])
        if s.opt.rot == 5: s.emit([f"s_lshl_b32 {R_}, s{sHP}, 1"])
        if s.opt.rot == 6: s.emit([f"s_mov_b32 {R_}, s{sB}"])
        if s.opt.rot == 7: s.emit([f"s_and_b32 {R_}, s{sB}, 1", f"s_lshl_b32 {R_}, {R_}, 2"])
        if s.opt.rot == 8: s.emit([f"s_lshl_b32 {R_}, s{sHP}, 2", f"s_add_u32 {R_}, {R_}, s{sB}"])
        A(f"s_and_b32 s{sW}, s{sWAVE}, 3")
        A(f"s_lshl_b32 s{sW4K}, s{sW}, 12")
        A("v_mov_b32 v1, v25" if (s.opt.pro2 and s.opt.cpf) else "v_and_b32 v1, 63, v0")
        A("v_lshrrev_b32 v19, 4, v1")
        A("v_and_b32 v20, 15, v1")
        A("v_lshlrev_b32 v21, 2, v19")
        A("v_xor_b32 v21, v20, v21")
        A("v_lshlrev_b32 v21, 4, v21")
        A("v_lshrrev_b32 v17, 5, v1")
        A("v_and_b32 v18, 3, v1")
        A("v_lshlrev_b32 v2, 13, v19")
        A("v_add_u32 v2, v2, v21")
        A("v_lshrrev_b32 v22, 3, v1")
        A("v_lshlrev_b32 v22, 10, v22")
        A("v_and_b32 v23, 7, v1")
        A("v_xor_b32 v23, v23, v19")
        A("v_lshlrev_b32 v24, 4, v23")
        A("v_add_u32 v3, v22, v24")
        A("v_xor_b32 v24, 64, v24")
        A("v_add_u32 v4, v22, v24")
        for r, sz in ((sK, 33554432), (sV, 33554432), (sWQ, 4194304), (sWS, 268435456), (sWO, 4194304), (sOUT, 1835008), (sDBG, 256)):
            A(f"s_mov_b32 s{r+2}, {sz}")
            A(f"s_mov_b32 s{r+3}, 0x20000")
        A(f"s_mov_b32 s{sX+3}, 0x20000")
        A(f"s_lshl_b32 s70, s{sW}, 17")
        A(f"s_lshl_b32 s71, s{sH0}, 8")
        A(f"s_add_u32 s{sWQB}, s70, s71")
        A(f"s_mul_i32 s70, s{sB}, 112")
        A(f"s_add_u32 s71, s70, 112")
        A(f"s_lshl_b32 s{sX+2}, s71, 10")
        A(f"s_lshl_b32 s71, s{sW}, 5")
        A("s_add_u32 s70, s70, s71")
        A(f"s_lshl_b32 s{sXB}, s70, 10")
        A(f"s_lshl_b32 s70, s{sB}, 5")
        A(f"s_add_u32 s70, s70, s{sH0}")
        A(f"s_lshl_b32 s{sKV}, s70, 17")
        A(f"s_add_u32 s{sKVW}, s{sKV}, s{sW4K}")
        A(f"s_cmp_eq_u32 s{sBR}, 0")
        A("s_waitcnt lgkmcnt(0)")
        s.stamp("k")
        for r, a, b in ((sX, 36, 46), (sWQ, 42, 52), (sK, 38, 48), (sV, 40, 50), (sWO, 44, 54)):
            A(f"s_cselect_b32 s{r}, s{a}, s{b}")
            A(f"s_cselect_b32 s{r+1}, s{a+1}, s{b+1}")
        for r, a in ((sOUT, 56), (sDBG, 58), (sWS, 60)):
            A(f"s_mov_b32 s{r}, s{a}")
            A(f"s_mov_b32 s{r+1}, s{a+1}")
        kr = s.opt.krot
        if kr == 1: A(f"s_lshl_b32 s52, s{sB}, 14")
        if kr == 2: s.emit([f"s_lshl_b32 s52, s{sHP}, 1", f"s_add_u32 s52, s52, s{sB}", f"s_add_u32 s52, s52, s{sHG}", "s_lshl_b32 s52, s52, 14"])
        if kr == 3: s.emit([f"s_lshl_b32 s52, s{sHP}, 1", f"s_and_b32 s53, s{sHG}, 1", "s_add_u32 s52, s52, s53", "s_lshl_b32 s52, s52, 14"])
        if kr == 4: s.emit([f"s_lshl_b32 s52, s{sHG}, 1", f"s_add_u32 s52, s52, s{sBR}", "s_lshl_b32 s52, s52, 14"])
        if kr == 5: s.emit([f"s_lshl_b32 s52, s{sB}, 1", f"s_lshr_b32 s53, s{sB}, 2", "s_add_u32 s52, s52, s53", f"s_add_u32 s52, s52, s{sHP}", f"s_lshl_b32 s53, s{sHG}, 1", "s_add_u32 s52, s52, s53", "s_lshl_b32 s52, s52, 14"])
        if kr == 7: s.emit([f"s_and_b32 s52, s{sB}, 1", "s_lshl_b32 s52, s52, 17", "s_sub_u32 s53, 131072, s52"])
        if kr == 8: s.emit([f"s_and_b32 s52, s{sHP}, 1", "s_lshl_b32 s52, s52, 17", "s_sub_u32 s53, 131072, s52"])
        if kr == 9: s.emit([f"s_and_b32 s52, s{sHG}, 1", "s_lshl_b32 s52, s52, 17", "s_sub_u32 s53, 131072, s52"])
        if kr == 10: s.emit([f"s_mov_b32 s52, 131072", "s_mov_b32 s53, 0"])
        if kr == 6: s.emit([f"s_and_b32 s52, s{sB}, 1", "s_lshl_b32 s52, s52, 16"])
        A(f"s_cmp_ge_u32 s{sWAVE}, 4")
        A("s_cbranch_scc1 L_B")

    def late_scalars(s):
        A = s.A
        A(f"s_lshl_b32 s70, s{sBR}, 3")
        A(f"s_add_u32 s70, s70, s{sB}")
        A(f"s_lshl_b32 s71, s70, 5")
        A(f"s_add_u32 s71, s71, s{sH0}")
        A(f"s_mul_i32 s{sOBASE}, s71, {UNIT}")
        A(f"s_lshl_b32 s71, s70, 2")
        A(f"s_add_u32 s71, s71, s{sHG}")
        A(f"s_lshl_b32 s{sGRP}, s71, 2")
        A(f"s_add_u32 s{sMYB}, s{sGRP}, s{sHP}")
        A(f"s_cmp_eq_u32 s{sW}, 3")
        A(f"s_cselect_b32 s{sEXLO}, 0xffff, -1")
        A(f"s_mov_b32 s{sEXHI}, s{sEXLO}")

    def kv_voffs(s, vK, vV):
        A = s.A
        A("v_lshlrev_b32 v22, 8, v19")
        A(f"v_add_u32 v{vV}, v22, v21")
        for t in range(4):
            A(f"v_add_u32 v23, {4*t}, v19")
            A(f"v_xor_b32 v23, v20, v23")
            A(f"v_lshlrev_b32 v23, 4, v23")
            A(f"v_add_u32 v{vK+t}, v22, v23")

    def flag_store(s, val, vtmp):
        A = s.A
        A(f"v_mov_b32 v{vtmp}, {val}")
        A("s_mov_b64 exec, 1")
        A(f"buffer_store_byte v{vtmp}, off, {srd(sDBG)}, s{sMYB} sc1")
        A("s_mov_b64 exec, -1")

    def xcc_byte(s, d):
        return [f"s_getreg_b32 s{d}, hwreg(HW_REG_XCC_ID)", f"s_and_b32 s{d}, s{d}, 15", f"s_lshl_b32 s{d}, s{d}, 1", f"s_or_b32 s{d}, s{d}, 1"]
    def kv_addr(s, j):
        if not s.opt.krot: return [f"s_add_u32 s70, s{sKVW}, {j*16384}"]
        if s.opt.krot >= 7: return [f"s_add_u32 s70, s{sKVW}, s{52 + (j >> 3)}", f"s_add_u32 s70, s70, {(j & 7) << 14}"]
        r = [f"s_add_u32 s70, s52, {(j & 7) << 14}", "s_and_b32 s70, s70, 0x1c000", f"s_add_u32 s70, s70, s{sKVW}"]
        if j >= 8: r.append("s_add_u32 s70, s70, 131072")
        return r
    def dma_k(s, j, vK, nt, tag):
        g = []
        for t in range(4):
            pre = [f"s_add_u32 m0, s{sW4K}, {P[j%3]}"] + s.kv_addr(j) if t == 0 else []
            if t and s.opt.ilv: pre = [f"s_add_u32 m0, s{sW4K}, {P[j%3]}", "s_nop 0"]
            g.append((tag, pre + [f"buffer_load_dwordx4 v{vK+t}, {srd(sK)}, s70 offen offset:{t*1024}{nt} lds"]))
        return g
    def dma_v(s, j, vV, nt, tag):
        g = []
        for t in range(4):
            pre = [f"s_add_u32 m0, s{sW4K}, {P[j%3]+16384}"] + s.kv_addr(j - 1) if t == 0 else []
            if t and s.opt.ilv: pre = [f"s_add_u32 m0, s{sW4K}, {P[j%3]+16384}", "s_nop 0"]
            g.append((tag, pre + [f"buffer_load_dwordx4 v{vV}, {srd(sV)}, s70 offen offset:{t*1024}{nt} lds"]))
        return g
    def kc_lines(s, c, dst):
        return [f"s_add_u32 s{dst}, s{sROT}, {c}", f"s_and_b32 s{dst}, s{dst}, 7"]
    def dma_wq(s, c, slot, vW, tag, extra, tmp):
        g = []
        for t in range(4):
            pre = []
            if t == 0:
                pre = s.kc_lines(c, tmp) + [f"s_lshl_b32 s{tmp}, s{tmp}, 19", f"s_add_u32 s{tmp}, s{tmp}, s{sWQB}",
                                            f"s_add_u32 m0, s{sW4K}, {slot}"]
            elif s.opt.ilv: pre = [f"s_add_u32 m0, s{sW4K}, {slot}"]
            g.append((tag, pre + [f"s_add_u32 s71, s{tmp}, {extra + t*31744}",
                                  f"buffer_load_dwordx4 v{vW}, {srd(sWQ)}, s71 offen offset:{t*1024}{' nt' if (tag in eval(s.opt.ntq)) else s.ntw} lds"]))
        return g

    def waveA(s):
        A = s.A; o = s.opt
        nt = " nt" if o.nt else ""
        Q_, SB, Pr, O, WIN, NM = 0, [32, 64], 96, 112, 176, 208
        KA, VA, QA, OV, RL = 224, 232, 236, 237, 238
        LS, AL, T = 240, 242, 244
        vK, vV = 5, 9
        q = Q(63)
        PX = [W[0], W[2], P[2]] if o.r3 else [P[1], P[2], W[0], W[2]]
        NR = len(PX)
        def dma_x(c):
            g = []
            for t in range(4):
                pre = []
                if t == 0:
                    pre = s.kc_lines(c, 87) + ["s_lshl_b32 s87, s87, 7", f"s_add_u32 s87, s87, s{sXB}", f"s_add_u32 m0, s{sW4K}, {PX[c%NR]}"]
                g.append((f"C{c}", pre + [f"s_add_u32 s71, s87, {t*7168}",
                                          f"buffer_load_dwordx4 v{3 + (t&1)}, {srd(sX)}, s71 offen offset:{t*1024}{' nt' if (c in eval(o.ntxc)) else s.ntx} lds"]))
            return g
        def issue(groups):
            for tag, ins in groups:
                q.issue(tag); s.emit(ins)
        def chunk(c): return dma_x(c) + s.dma_wq(c, PX[c % NR] + 16384, 2, f"C{c}", 0, 87)
        issue(chunk(0))
        s.stamp("a0")
        issue(chunk(1))
        if o.k0at < 0:
            s.kv_voffs(vK, vV)
            issue(s.dma_k(0, vK, nt, "K0"))
            if o.p1at < 0: issue(s.dma_k(1, vK, nt, "KV1") + s.dma_v(1, vV, nt, "KV1"))
        segs = []
        capL = s.L
        if o.pro2a: s.L = []
        def cut():
            if o.pro2a:
                segs.append(s.L); s.L = []
        s.late_scalars()
        if o.k0at >= 0: s.kv_voffs(vK, vV)
        cut()
        A("v_and_b32 v10, 31, v1")
        A("v_lshlrev_b32 v10, 8, v10")
        A("v_xor_b32 v11, v17, v20")
        for k in range(8):
            A(f"v_xor_b32 v12, {2*k}, v11")
            A(f"v_lshlrev_b32 v12, 4, v12")
            A(f"v_add_u32 v{KA+k}, v10, v12")
        cut()
        A("v_lshrrev_b32 v10, 2, v20")
        A("v_and_b32 v11, 1, v19")
        A("v_lshlrev_b32 v12, 10, v17")
        A("v_lshlrev_b32 v13, 8, v10")
        A("v_add_u32 v12, v12, v13")
        A("v_lshlrev_b32 v13, 5, v11")
        A("v_add_u32 v12, v12, v13")
        A("v_and_b32 v13, 1, v18")
        A("v_lshlrev_b32 v13, 4, v13")
        A("v_add_u32 v12, v12, v13")
        A("v_lshrrev_b32 v13, 1, v18")
        A("v_lshlrev_b32 v13, 3, v13")
        A("v_add_u32 v12, v12, v13")
        A("v_add_u32 v12, 16384, v12")
        for D in range(4):
            A(f"v_xor_b32 v13, {D}, v10")
            A(f"v_lshlrev_b32 v13, 6, v13")
            A(f"v_add_u32 v{VA+D}, v12, v13")
        cut()
        A(f"s_lshl_b32 s70, s{sW}, 13")
        A(f"s_add_u32 s70, s70, {W[0]}")
        A(f"v_lshlrev_b32 v{QA}, 4, v1")
        A(f"v_add_u32 v{QA}, s70, v{QA}")
        A(f"v_mul_u32_u24 v{OV}, 112, v17")
        A(f"v_and_b32 v12, 31, v1")
        A(f"v_add_u32 v{OV}, v{OV}, v12")
        A(f"s_lshl_b32 s70, s{sW}, 5")
        A(f"v_add_u32 v{OV}, s70, v{OV}")
        A(f"v_lshlrev_b32 v{OV}, 4, v{OV}")
        for i in range(8): A(f"v_mov_b64 {vr(NM+2*i,2)}, 0")
        A(f"v_mov_b64 {vr(LS,2)}, 0")
        A(f"s_mov_b32 s{sEV}, {hex((1<<0)|(1<<8)|(1<<1)|(1<<7))}")
        A(f"s_mov_b32 s{sPAT}, {hex(sum(1 << i for i in range(2, 17, 3)))}")
        A(f"s_mov_b32 s{sNEG}, 0xffff0000")
        A(f"s_mov_b32 s{sPOS}, 32768")
        A(f"s_mov_b32 s{sTHR}, {hex(fbits(THR))}")
        A(f"s_mov_b32 s{sSTEP}, 0")
        A(f"s_mov_b32 s{sPEND}, 0")
        A(f"s_add_u32 s{sOBASE}, s{sOBASE}, {UNIT}")
        if o.kpf:
            A(f"s_cmp_lt_u32 s{sW}, 2")
            A(f"s_cselect_b32 s56, s{sK}, s{sV}")
            A(f"s_cselect_b32 s57, s{sK+1}, s{sV+1}")
            A(f"s_cselect_b32 s60, 0, {hex((-16384) & 0xffffffff)}")
            A(f"s_cselect_b32 s61, {15 - 2 - o.kpf + 1}, {16 - 2 - o.kpf + 1}")
            A("s_mov_b32 s58, 33554432")
            A("s_mov_b32 s59, 0x20000")
            A(f"s_add_u32 s60, s60, s{sKV}")
            A(f"s_and_b32 s70, s{sW}, 1")
            A("s_lshl_b32 s70, s70, 13")
            A("s_add_u32 s60, s60, s70")
            A(f"s_add_u32 s60, s60, {(2 + o.kpf) * 16384}")
            A("v_lshlrev_b32 v255, 7, v1")
        if o.xs in (1, 2):
            A("v_lshlrev_b32 v14, 2, v1")
            A(f"s_lshl_b32 s70, s{sMYB}, 7")
            A(f"s_add_u32 s70, s70, {FLAG_BASE}")
            A("s_mov_b64 exec, 0xfff")
            A(f"buffer_store_dword v{NM}, v14, {srd(sWS)}, s70 offen sc1")
            A("s_mov_b64 exec, -1")
        cut()
        if o.pro2a: s.L = capL
        for k in range(8):
            n = q.wait(f"C{k}")
            if n is not None: A(f"s_waitcnt vmcnt({n})")
            s.stamp(f"aw{k}")
            A("s_barrier")
            if o.r3 == 2 and 1 <= k <= 6: A("s_barrier")
            if k + 2 < 8: issue(chunk(k + 2))
            bkv = eval(o.bkv)
            if k == o.k0at and 0 not in bkv: issue(s.dma_k(0, vK, nt, "K0"))
            if k == o.q0at and 'q' not in bkv: issue(s.dma_wq(0, P[0] + 16384, 2, "Q0", 256, 87))
            apf = eval(o.apf)
            def pf_groups(part):
                g = []
                pre = ["v_lshlrev_b32 v14, 4, v1", "s_lshr_b32 s70, s2, 3", "s_lshr_b32 s71, s70, 3", "s_lshl_b32 s71, s71, 18",
                       "s_and_b32 s70, s70, 7", "s_lshl_b32 s70, s70, 14", "s_add_u32 s70, s70, s71",
                       f"s_lshl_b32 s71, s{sHG}, 20", "s_add_u32 s70, s70, s71", f"s_add_u32 s70, s70, s{sW4K}"]
                if part: pre.append("s_add_u32 s70, s70, 131072")
                for t_ in range(4):
                    g.append(("PF", (pre if t_ == 0 else []) + [f"buffer_load_dwordx4 v[{32+4*t_}:{35+4*t_}], v14, {srd(sWO)}, s70 offen offset:{t_*1024}{o.apfnt} ; @dummy"]))
                return g
            if o.apfpos == 0:
                for part in apf.get(k, []): issue(pf_groups(part))
            for (kk_, when, j) in eval(o.kpf0):
                if kk_ == k and when == 0:
                    issue([("PF", [f"s_add_u32 s70, s60, {hex(((j - 2 - o.kpf) * 16384) & 0xffffffff)}",
                                   f"buffer_load_dword v254, v255, s[56:59], s70 offen{o.kpfnt} ; @dummy"])] +
                          [("PF", [f"buffer_load_dword v254, v255, s[56:59], s70 offen offset:{128 // o.kpfn * i_}{o.kpfnt} ; @dummy"]) for i_ in range(1, o.kpfn)])
            if k == o.p1at and 1 not in bkv: issue(s.dma_k(1, vK, nt, "KV1") + s.dma_v(1, vV, nt, "KV1"))
            if k == o.p2at: issue(s.dma_k(2, vK, nt, "KV2") + s.dma_v(2, vV, nt, "KV2"))
            for (kk_, when, j) in eval(o.kpf0):
                if kk_ == k and when == 1:
                    issue([("PF", [f"s_add_u32 s70, s60, {hex(((j - 2 - o.kpf) * 16384) & 0xffffffff)}",
                                   f"buffer_load_dword v254, v255, s[56:59], s70 offen{o.kpfnt} ; @dummy"])] +
                          [("PF", [f"buffer_load_dword v254, v255, s[56:59], s70 offen offset:{128 // o.kpfn * i_}{o.kpfnt} ; @dummy"]) for i_ in range(1, o.kpfn)])
            if o.apfpos == 1:
                for part in apf.get(k, []): issue(pf_groups(part))
            if k < len(segs): s.L += segs[k]
            if o.xs in (1, 2) and k == 3: q.issue("CLR")
        n0 = q.wait(["K0", "Q0"])
        if n0 is None: n0 = 63
        assert n0 == 8 or o.apf != "{}" or o.r3 or o.kpf or o.p2at <= 7, n0
        if o.kpf:
            for _ in range(o.kpfn): q.issue("PF")
        n1 = q.wait("KV1") if o.kpf else 0
        if n1 is None: n1 = 63
        if o.prioA: A(f"s_setprio {o.prioA}")

        U = T + 4
        def fin_D(D, dst):
            L = [f"v_mul_f32 v{O+16*D+i}, v{AL}, v{O+16*D+i}" for i in range(16)]
            L += [f"v_cvt_pk_bf16_f32 v{dst+8*D+i}, v{O+16*D+2*i}, v{O+16*D+2*i+1}" for i in range(8)]
            return L
        def step(par, last=False):
            cur, prev = SB[par], SB[1 - par]
            lq = Q(15)
            L = []
            def wl(tags):
                n = lq.wait(tags)
                return [f"s_waitcnt lgkmcnt({n})"] if n is not None else []
            def kread(i):
                T_, k = divmod(i, 8); lq.issue(f"K{i}")
                return [f"ds_read_b128 {vr(WIN + 4*(i % 8), 4)}, v{KA+k} offset:{T_*8192}"]
            vorder = [divmod(f, 4) for f in range(16)] if not last else [(t, D) for D in range(4) for t in range(4)]
            def vread(f):
                t, D = vorder[f]; r = []
                for a in range(2):
                    lq.issue(f"V{f}")
                    r.append(f"ds_read_b64_tr_b16 {vr(WIN + 4*(f % 8) + 2*a, 2)}, v{VA+D} offset:{t*4096 + a*2048}")
                return r
            exp = lambda r: [f"v_exp_f32 v{r}, v{r}"]
            add = lambda r: [f"v_add_f32 v{LS + (r & 1)}, v{LS + (r & 1)}, v{r}"]
            cvt = lambda t, i: [f"v_cvt_pk_bf16_f32 v{Pr+4*t+i}, v{prev+8*t+2*i}, v{prev+8*t+2*i+1}"]
            mx = lambda d, a, b, c: [f"v_max3_f32 v{d}, v{a}, v{b}, v{c}"]
            bub = []
            for i in range(4): bub += [cvt(0, i), add(prev + 2*i), add(prev + 2*i + 1)]
            for i in range(4): bub += [cvt(1, i), add(prev + 8 + 2*i), add(prev + 8 + 2*i + 1)]
            F1 = []
            e = [exp(prev + 16 + i) for i in range(16)]
            a_ = [add(prev + 16 + i) for i in range(16)]
            c2 = [cvt(2, i) for i in range(4)]; c3 = [cvt(3, i) for i in range(4)]
            F1 += [e[0], e[1], e[2]]
            for i in range(3, 16):
                F1 += [e[i], a_[i - 3]]
                if i in (5, 7, 9, 11): F1.append(c2[(i - 5) // 2])
                if i in (13, 15): F1.append(c3[(i - 13) // 2])
            F1 += [a_[13], c3[2], a_[14], a_[15], c3[3]]
            def maxT(base, d0, d1):
                return [mx(d0, base, base+1, base+2), mx(d1, base+8, base+9, base+10),
                        mx(d0, d0, base+3, base+4), mx(d1, d1, base+11, base+12),
                        mx(d0, d0, base+5, base+6), mx(d1, d1, base+13, base+14),
                        mx(d0, d0, base+7, base+15)]
            M0 = maxT(cur, U, U+1)
            M1 = maxT(cur+16, U+2, U+3)
            fin = [mx(U, U, U+1, U+2), [f"v_max_f32 v{U}, v{U}, v{U+3}"]]
            tagp = "e" if par == 0 else "o"
            chk = [f"v_cmp_lt_f32 vcc, s{sTHR}, v{U}",
                   f"s_nop 0",
                   f"s_cbranch_vccnz A_resc{tagp} ; @takenif={sTHR}:0xff800000",
                   f"A_resc{tagp}r:"]
            advK = [[f"v_add_u32 v{KA+k}, s70, v{KA+k}"] for k in range(8)]
            advV = [[f"v_add_u32 v{VA+D}, s70, v{VA+D}"] for D in range(4)]
            exps1 = [exp(cur+i) for i in range(16)]

            L += s.ast(1)
            if not last:
                for i in range(8): L += kread(i)
                for it in bub: L += it
                nb = o.nbub
                for it in F1[:nb]: L += it
                gaps = [[] for _ in range(16)]
                spread(gaps, F1[nb:], 0, 14)
                spread(gaps, M0, 10, 16)
                for i in range(16):
                    T_, k = divmod(i, 8)
                    if i % 2 == 0: L += wl([f"K{i}", f"K{i+1}"])
                    srcC = vr(NM, 16) if k == 0 else vr(cur + 16*T_, 16)
                    L.append(f"v_mfma_f32_32x32x16_bf16 {vr(cur+16*T_,16)}, {vr(WIN+4*(i%8),4)}, {vr(Q_+4*k,4)}, {srcC}")
                    if i + 8 < 16: L += kread(i + 8)
                    if i >= 9: L += vread(i - 9)
                    L += gaps[i]
                    if i == 7: L += s.ast(2)
                L += s.ast(3)
                vissued = 7
                gaps = [[] for _ in range(16)]
                spread(gaps, advK[:4], 0, 2)
                spread(gaps, M1 + fin, 2, 5)
                gaps[5] += chk
                spread(gaps, exps1, 5, 16)
                spread(gaps, advK[4:], 6, 10)
                spread(gaps, advV, 10, 14)
                L += [f"s_bitcmp1_b32 s{sPAT}, s{sSTEP}", f"s_cselect_b32 s70, s{sNEG}, s{sPOS}"]
            else:
                for f in range(7): L += vread(f)
                vissued = 7
                for it in bub: L += it
                for it in F1: L += it
                L += rl_lines(AL)
                L.append(f"v_add_u32 v{QA}, {hex((P[0] - W[1]) & 0xffffffff)}, v{QA}")
                gaps = [[] for _ in range(16)]
                for D in range(3):
                    items = [[x] for x in fin_D(D, cur)] + [out_D(D, cur)]
                    spread(gaps, items, 4*D + 6 if D < 2 else 14, 4*D + 10 if D < 2 else 16)
            for f in range(16):
                t, D = vorder[f]
                if f % 2 == 0: L += wl([f"V{f}", f"V{f+1}"])
                L.append(f"v_mfma_f32_32x32x16_bf16 {vr(O+16*D,16)}, {vr(WIN+4*(f%8),4)}, {vr(Pr+4*t,4)}, {vr(O+16*D,16)}")
                if vissued < 16:
                    L += vread(vissued); vissued += 1
                L += gaps[f]
                if f == 6 and not last: L += s.ast(4)
            if not last:
                L += s.ast(5)
                L += [f"s_cmp_lg_u32 s{sPEND}, 0", f"s_cbranch_scc1 A_pend{tagp}", f"A_pend{tagp}r:"]
                L += s.ast(6)
                if s.opt.astamp >= 0:
                    L += ["s_waitcnt lgkmcnt(0)", f"s_cmp_eq_u32 s{sSTEP}, {s.opt.astamp}"]
                    L += [f"s_cselect_b32 s{50+i}, s{36+2*i}, s{50+i}" for i in range(7)]
            else:
                L += fin_D(3, cur) + out_D(3, cur)
            return L
        def out_D(D, src):
            L = []
            for h in range(2):
                L.append(f"ds_write_b128 v{QA}, {vr(src+8*D+4*h,4)} offset:{(2*D+h)*1024}")
            L.append(f"s_mov_b64 exec, s[{sEXLO}:{sEXHI}]")
            for h in range(2):
                L.append(f"s_add_u32 s71, s{sOBASE}, {(4*D+2*h)*1792}")
                L.append(f"buffer_store_dwordx4 {vr(src+8*D+4*h,4)}, v{OV}, {srd(sWS)}, s71 offen{s.ost1}{s.nths}")
            L.append("s_mov_b64 exec, -1")
            return L
        def rl_lines(dst):
            return [f"v_add_f32 v{T}, v{LS}, v{LS+1}", f"v_mov_b32 v{T+1}, v{T}", f"v_permlane32_swap_b32 v{T}, v{T+1}",
                    f"v_add_f32 v{T}, v{T}, v{T+1}", f"v_rcp_f32 v{dst}, v{T}"]

        s.lab("A_loop")
        for par in range(2):
            tagp = "e" if par == 0 else "o"
            s.emit(s.ast(0))
            A(f"s_bitcmp1_b32 s{sEV}, s{sSTEP}")
            A(f"s_cbranch_scc1 A_top{tagp}")
            A("s_barrier")
            s.lab(f"A_top{tagp}r")
            if o.kpf:
                A(f"s_cmp_lt_u32 s{sSTEP}, s61")
                A(f"s_cbranch_scc0 A_npf{tagp}")
                for i_ in range(o.kpfn):
                    A(f"buffer_load_dword v254, v255, s[56:59], s60 offen offset:{128 // o.kpfn * i_}{o.kpfnt} ; @dummy")
                A("s_add_u32 s60, s60, 16384")
                s.lab(f"A_npf{tagp}")
            s.emit(step(par))
            A(f"s_add_u32 s{sSTEP}, s{sSTEP}, 1")
        A(f"s_cmp_lt_u32 s{sSTEP}, 16")
        A("s_cbranch_scc1 A_loop")
        A("s_barrier")
        s.emit(step(0, last=True))
        A("s_waitcnt lgkmcnt(0)")
        A("s_barrier")
        A(f"s_lshl_b32 s70, s{sMYB}, 7")
        A(f"s_add_u32 s70, s70, {FLAG_BASE}")
        A(f"s_lshl_b32 s71, s{sW}, 2")
        A("s_add_u32 s70, s70, s71")
        A(f"v_mov_b32 v{T}, 1")
        s.stamp("aE")
        if o.xs:
            s.emit(s.xcc_byte(87))
            if o.xs < 3: A("s_mul_i32 s87, s87, 0x01010101")
            else: A("s_mov_b64 exec, 15")
        A("s_waitcnt vmcnt(0)")
        s.stamp("adr")
        if o.xs in (1, 2):
            A("v_readfirstlane_b32 s71, v252")
            A("s_cmp_eq_u32 s71, s87")
            A("s_cbranch_scc0 A_wb ; @nottaken" if o.xs == 1 else "s_branch A_wb")
            s.lab("A_wbr")
        elif o.xs:
            A("v_cmp_eq_u32 vcc, s87, v252")
            A("s_cmp_eq_u32 vcc_lo, 15")
            A("s_cbranch_scc0 A_wb ; @nottaken" if o.xs == 3 else "s_branch A_wb")
            s.lab("A_wbr")
        A("s_mov_b64 exec, 1")
        A(f"buffer_store_dword v{T}, off, {srd(sWS)}, s70{s.ofl1}")
        A("s_mov_b64 exec, -1")
        if o.apre:
            A(f"s_mov_b64 exec, s[{sEXLO}:{sEXHI}]")
            for D in range(4):
                for h in range(2):
                    A(f"s_add_u32 s71, s{sOBASE}, {(4*D+2*h)*1792}")
                    A(f"buffer_load_dwordx4 {vr(32+8*D+4*h,4)}, v{OV}, {srd(sWS)}, s71 offen{['', '', ' sc1', ' nt'][o.apre]} ; @dummy")
            A("s_mov_b64 exec, -1")
        for _ in range(o.abar): A("s_barrier")
        if o.wb:
            if o.wb == 1: A(f"s_cmp_eq_u32 s{sW}, 0")
            elif o.wb == 2:
                A(f"s_or_b32 s70, s{sW}, s{sHP}"); A("s_cmp_eq_u32 s70, 0")
            elif o.wb == 3:
                A(f"s_or_b32 s70, s{sW}, s{sHP}"); A(f"s_or_b32 s70, s70, s{sB}"); A("s_cmp_eq_u32 s70, 0")
            A("s_cbranch_scc0 A_nowb")
            for _ in range(o.wbn): A("s_barrier")
            A("buffer_wbl2 sc1")
            s.lab("A_nowb")
        if o.astamp >= 0:
            A(f"s_cmp_lg_u32 s{sW}, 0")
            A("s_cbranch_scc1 L_end")
            A("s_lshl_b32 s70, s2, 8")
            A(f"s_add_u32 s70, s70, {STAMP_BASE + 65536}")
            A("s_mov_b64 exec, 1")
            for i in range(7):
                A(f"v_mov_b32 v32, s{50+i}")
                A(f"buffer_store_dword v32, off, {srd(sWS)}, s70 offset:{4*i}")
                A("s_nop 1")
        if o.stamp and not o.dbgst and o.astamp < 0:
            A("s_waitcnt vmcnt(0) lgkmcnt(0)")
            A(f"s_cmp_lg_u32 s{sW}, {o.stw}")
            A("s_cbranch_scc1 L_end")
            n = len(o.stamps.split(","))
            A("s_lshl_b32 s70, s2, 8")
            A(f"s_add_u32 s70, s70, {STAMP_BASE + 65536}")
            A("s_mov_b64 exec, 1")
            for i in range(n):
                r = STAMP_REGS[i]
                A(f"v_mov_b32 v32, s{r}"); A(f"v_mov_b32 v33, s{r+1}")
                A(f"buffer_store_dwordx2 v[32:33], off, {srd(sWS)}, s70 offset:{8*i}")
                A("s_nop 1")
        A("s_endpgm")
        if o.xs:
            s.lab("A_wb")
            A("buffer_wbl2 sc1")
            A("s_waitcnt vmcnt(0)")
            A("s_branch A_wbr")
        s.lab("A_tope")
        A(f"s_cmp_eq_u32 s{sSTEP}, 0")
        A("s_cbranch_scc0 A_top8")
        A(f"s_waitcnt vmcnt({n0})")
        A("s_barrier")
        for i in range(8):
            A(f"ds_read_b128 {vr(Q_+4*i,4)}, v{QA} offset:{i*1024}")
        A(f"v_add_u32 v{QA}, 16384, v{QA}")
        A("s_branch A_top8b")
        s.lab("A_top8")
        A("s_barrier")
        if o.xs in (1, 2): A(f"buffer_load_dword v252, off, {srd(sDBG)}, s{sGRP} sc1")
        elif o.xs:
            A("v_mbcnt_lo_u32_b32 v253, -1, 0")
            A("v_lshlrev_b32 v253, 7, v253")
            A(f"s_lshl_b32 s70, s{sGRP}, 7")
            A(f"s_add_u32 s70, s70, {FLAG_BASE + 64}")
            A("s_mov_b64 exec, 15")
            A(f"buffer_load_dword v252, v253, {srd(sWS)}, s70 offen sc1")
            A("s_mov_b64 exec, -1")
        for i in range(8):
            A(f"ds_read_b128 {vr(Q_+4*i,4)}, v{QA} offset:{i*1024}")
        s.lab("A_top8b")
        A(f"s_mov_b32 s{sTHR}, 0xff800000")
        A("s_waitcnt lgkmcnt(0)")
        A("s_branch A_toper")
        s.lab("A_topo")
        A(f"s_cmp_eq_u32 s{sSTEP}, 1")
        A("s_cbranch_scc0 A_top7")
        A(f"s_waitcnt vmcnt({n1})")
        A("s_barrier")
        if o.xs in (1, 2):
            A(f"s_cmp_lg_u32 s{sW}, 0")
            A("s_cbranch_scc1 A_topor")
            s.emit(s.xcc_byte(70))
            A("v_mov_b32 v252, s70")
            A("s_mov_b64 exec, 1")
            A(f"buffer_store_byte v252, off, {srd(sDBG)}, s{sMYB} sc1")
            A("s_mov_b64 exec, -1")
        A("s_branch A_topor")
        s.lab("A_top7")
        A(f"s_or_b32 s{sPEND}, s{sPEND}, 4")
        A("s_barrier")
        A("s_branch A_topor")
        for par in range(2):
            tagp = "e" if par == 0 else "o"; cur = SB[par]
            s.lab(f"A_resc{tagp}")
            A(f"v_mov_b32 v{U+1}, v{U}")
            A(f"v_permlane32_swap_b32 v{U}, v{U+1}")
            A(f"v_max_f32 v{U}, v{U}, v{U+1}")
            if par == 0:
                A(f"s_and_b32 s71, s{sSTEP}, 7")
                A("s_cmp_eq_u32 s71, 0")
                A("s_cbranch_scc1 A_hsw")
            A(f"v_max_f32 v{U}, 0, v{U}")
            A(f"v_sub_f32 v{U+1}, 0, v{U}")
            A(f"v_exp_f32 v{AL}, v{U+1}")
            A(f"s_or_b32 s{sPEND}, s{sPEND}, 1")
            A(f"v_mul_f32 v{LS}, v{AL}, v{LS}")
            A(f"v_mul_f32 v{LS+1}, v{AL}, v{LS+1}")
            if par == 0: s.lab("A_hswj")
            for i in range(32): A(f"v_sub_f32 v{cur+i}, v{cur+i}, v{U}")
            for i in range(16): A(f"v_sub_f32 v{NM+i}, v{NM+i}, v{U}")
            A(f"s_branch A_resc{tagp}r")
        s.lab("A_hsw")
        s.emit(rl_lines(RL))
        A(f"v_mov_b64 {vr(LS,2)}, 0")
        A(f"s_mov_b32 s{sTHR}, {hex(fbits(THR))}")
        A(f"s_lshr_b32 s{sPEND}, s{sSTEP}, 3")
        A(f"s_add_u32 s{sPEND}, s{sPEND}, 2")
        A(f"s_lshl_b32 s{sPEND}, s{sPEND}, 3")
        A("s_branch A_hswj")
        for par in range(2):
            tagp = "e" if par == 0 else "o"
            s.lab(f"A_pend{tagp}")
            if par == 0:
                A(f"s_cmp_ge_u32 s{sPEND}, 16")
                A("s_cbranch_scc1 A_pz")
            A(f"s_bitcmp1_b32 s{sPEND}, 0")
            A(f"s_cbranch_scc0 A_pn{tagp}")
            for i in range(32):
                A(f"v_pk_mul_f32 {vr(O+2*i,2)}, {vr(O+2*i,2)}, {vr(AL,2)} op_sel_hi:[1,0]")
            s.lab(f"A_pn{tagp}")
            if par == 1:
                A(f"s_bitcmp1_b32 s{sPEND}, 2")
                A(f"s_cbranch_scc0 A_pm{tagp}")
                for i in range(8): A(f"v_mov_b64 {vr(NM+2*i,2)}, 0")
                s.lab(f"A_pm{tagp}")
            A(f"s_mov_b32 s{sPEND}, 0")
            A(f"s_branch A_pend{tagp}r")
        s.lab("A_pz")
        A(f"s_cmp_eq_u32 s{sPEND}, 24")
        A("s_cbranch_scc0 A_pz2")
        A(f"v_mov_b32 v{AL}, v{RL}")
        for D in range(4):
            s.emit(fin_D(D, WIN))
            for h in range(2):
                A(f"ds_write_b128 v{QA}, {vr(WIN+8*D+4*h,4)} offset:{(2*D+h)*1024}")
        A("s_waitcnt lgkmcnt(0)")
        s.lab("A_pz2")
        for i in range(32): A(f"v_mov_b64 {vr(O+2*i,2)}, 0")
        A(f"s_mov_b32 s{sPEND}, 0")
        A(f"s_branch A_pender")

    def waveB(s):
        A = s.A; o = s.opt
        vV, vW, vK, WA, vWO, vO, vQW, vWB = 2, 3, 4, 8, 12, 13, 14, 15
        Y, vR, vOL, VP = 16, 17, 18, 20
        XA = 24
        WIN, X, ACC = 32, 64, 192
        q = Q(63)
        nt = " nt" if o.nt else ""
        PX = [W[0], W[2], P[2]] if o.r3 else [P[1], P[2], W[0], W[2]]
        NR = len(PX)
        s.lab("L_B")
        s.stamp("b0")
        capL = s.L
        if o.pro2: s.L = []
        def mark(n):
            if o.pro2: s.L.append("@@" + n)
        A(f"v_mov_b32 v{vW}, v2")
        s.late_scalars()
        mark("clr0")
        if o.xs in (1, 2): pass
        elif o.lead:
            A(f"s_or_b32 s70, s{sW}, s{sHG}")
            A(f"s_or_b32 s70, s70, s{sHP}")
            A("s_cmp_lg_u32 s70, 0")
            A("s_cbranch_scc1 B_nclr")
            A("v_mov_b64 v[28:29], 0")
            A("v_mov_b64 v[30:31], 0")
            A("v_lshlrev_b32 v23, 4, v1")
            A(f"s_lshl_b32 s70, s{sGRP}, 7")
            A(f"s_add_u32 s70, s70, {FLAG_BASE}")
            A(f"buffer_store_dwordx4 v[28:31], v23, {srd(sWS)}, s70 offen sc1")
            A(f"buffer_store_dwordx4 v[28:31], v23, {srd(sWS)}, s70 offen offset:1024 sc1")
            A("s_nop 1")
        else:
            A(f"s_cmp_lg_u32 s{sW}, 0")
            A("s_cbranch_scc1 B_nclr")
            A("v_mov_b32 v28, 0")
            A("v_lshlrev_b32 v29, 2, v1")
            A(f"s_lshl_b32 s70, s{sMYB}, 7")
            A(f"s_add_u32 s70, s70, {FLAG_BASE}")
            A("s_mov_b64 exec, 0xfff")
            A(f"buffer_store_dword v28, v29, {srd(sWS)}, s70 offen sc1")
            A("s_mov_b64 exec, -1")
        if o.xs not in (1, 2): s.lab("B_nclr")
        mark("clr1")
        s.kv_voffs(vK, vV)
        A("v_lshlrev_b32 v23, 10, v19")
        A(f"v_add_u32 v{vWO}, v23, v21")
        mark("early0")
        A("v_lshrrev_b32 v22, 2, v20")
        A("v_and_b32 v23, 1, v19")
        A("v_lshlrev_b32 v28, 13, v17")
        A("v_lshlrev_b32 v29, 8, v22")
        A("v_add_u32 v28, v28, v29")
        A("v_lshlrev_b32 v29, 5, v23")
        A("v_add_u32 v28, v28, v29")
        A("v_and_b32 v29, 1, v18")
        A("v_lshlrev_b32 v29, 4, v29")
        A("v_add_u32 v28, v28, v29")
        A("v_lshrrev_b32 v29, 1, v18")
        A("v_lshlrev_b32 v29, 3, v29")
        A(f"v_add_u32 v{vWB}, v28, v29")
        A(f"v_add_u32 v28, {PX[0]}, v{vWB}")
        for D in range(4):
            A(f"v_xor_b32 v29, {D}, v22")
            A(f"v_lshlrev_b32 v29, 6, v29")
            A(f"v_add_u32 v{WA+D}, v28, v29")
        A("v_and_b32 v28, 31, v1")
        A("v_lshrrev_b32 v29, 1, v28")
        A("v_and_b32 v29, 7, v29")
        A("v_lshlrev_b32 v30, 2, v17")
        A("v_xor_b32 v29, v29, v30")
        A("v_lshlrev_b32 v28, 7, v28")
        A(f"s_add_u32 s70, s{sW4K}, {PX[0]}")
        A("v_add_u32 v28, s70, v28")
        for j in range(4):
            A(f"v_xor_b32 v30, {j}, v29")
            A(f"v_lshlrev_b32 v30, 4, v30")
            A(f"v_add_u32 v{XA+j}, v28, v30")
        mark("early1")
        if o.pro2: A("v_lshrrev_b32 v22, 2, v20")
        A(f"v_mul_u32_u24 v{vO}, 448, v17")
        A("v_and_b32 v29, 31, v1")
        A(f"v_add_u32 v{vO}, v{vO}, v29")
        A(f"s_lshl_b32 s70, s{sW}, 5")
        A(f"v_add_u32 v{vO}, s70, v{vO}")
        A(f"v_lshlrev_b32 v{vO}, 4, v{vO}")
        A(f"s_lshl_b32 s70, s{sW}, 13")
        A(f"s_add_u32 s70, s70, {W[0]}")
        A(f"v_lshlrev_b32 v{vQW}, 4, v1")
        A(f"v_add_u32 v{vQW}, s70, v{vQW}")
        A(f"v_lshlrev_b32 v30, 11, v17")
        A(f"v_lshlrev_b32 v29, 4, v29")
        A(f"v_add_u32 v30, v30, v29")
        A(f"s_add_u32 s70, s70, 16384")
        A(f"v_add_u32 v31, s70, v30")
        A(f"v_mov_b32 v{vOL}, v31")
        A(f"v_mov_b32 v{vR}, v22")
        A(f"v_add_u32 v{Y}, 3584, v{vO}")
        A(f"s_lshl_b32 s70, s{sHG}, 20")
        A(f"s_lshl_b32 s71, s{sW}, 14")
        A("s_add_u32 s70, s70, s71")
        A(f"s_lshl_b32 s71, s{sHP}, 8")
        A(f"s_add_u32 s{sWOB}, s70, s71")
        A(f"s_lshl_b32 s70, s{sBR}, 3")
        A(f"s_add_u32 s70, s70, s{sB}")
        A(f"s_lshl_b32 s70, s70, 5")
        A(f"s_lshl_b32 s71, s{sHG}, 3")
        A(f"s_add_u32 s70, s70, s71")
        A(f"s_mul_i32 s73, s70, {UNIT}")
        sH = (77, 79); sOH = (76, 3)
        if o.wrot:
            A(f"s_mul_i32 s76, s{sB}, 11")
            A("s_lshr_b32 s76, s76, 5")
            A("s_mul_i32 s76, s76, 3")
            A(f"s_sub_u32 s76, s{sB}, s76")
            if not (o.wrot & 1): A("s_mov_b32 s76, 0")
        for p in range(4):
            if o.wrot and p > 0:
                A(f"s_add_u32 s70, s76, {p - 1}")
                A("s_sub_u32 s71, s70, 3")
                A("s_cmp_ge_u32 s70, 3")
                A("s_cselect_b32 s70, s71, s70")
                A(f"s_add_u32 s70, s70, s{sHP}")
                A("s_add_u32 s70, s70, 1")
            else:
                A(f"s_add_u32 s70, s{sHP}, {p}")
            A("s_and_b32 s70, s70, 3")
            A(f"s_lshl_b32 s71, s70, 18")
            A(f"s_add_u32 s{sWP+p}, s{sWOB}, s71")
            A(f"s_mul_i32 s71, s70, {2*UNIT}")
            A(f"s_add_u32 s{sOP+p}, s73, s71")
        vOL2 = 19
        if o.wrot:
            A(f"s_and_b32 s70, s{sB}, 1")
            if not (o.wrot & 2): A("s_mov_b32 s70, 0")
            A(f"s_lshl_b32 s{sH[0]}, s70, 16")
            A(f"s_sub_u32 s{sH[1]}, 65536, s{sH[0]}")
            A(f"s_mul_i32 s{sOH[0]}, s70, 14336")
            A(f"s_sub_u32 s{sOH[1]}, 14336, s{sOH[0]}")
            A("s_lshl_b32 s70, s70, 12")
            A("s_sub_u32 s71, 4096, s70")
            A(f"v_add_u32 v{vOL2}, s71, v{vOL}")
            A(f"v_add_u32 v{vOL}, s70, v{vOL}")
        A(f"s_mov_b32 s74, {hex(fbits(CSCALE))}")
        sCS = 74
        sPF = 75

        def wait_vm(tags):
            n = q.wait(tags)
            if n is not None: A(f"s_waitcnt vmcnt({n})")
        def mat(groups):
            out = []
            for tag, ins in groups:
                q.issue(tag); out.append(ins)
            return out
        def dma_wo(rr, p, half, slot):
            g = []
            tagp, tagh = p, half
            if (o.abl & 64) and rr == 0 and p >= 1: p, half = 1, 1
            if (o.abl & 128) and rr == 0 and p >= 1: p, half = 0, 1
            for t in range(4):
                pre = [f"s_add_u32 m0, s{sW4K}, {slot}"] if (t == 0 or o.ilv) else []
                if o.wrot:
                    if t == 0: pre.append(f"s_add_u32 s72, s{sWP+p}, s{sH[half]}")
                    addr = f"s_add_u32 s71, s72, {rr*131072 + t*3072}"
                else:
                    addr = f"s_add_u32 s71, s{sWP+p}, {(rr*128 + 64*half)*1024 + t*3072}"
                g.append((f"O{rr}{tagp}{tagh}", pre + [addr,
                          f"buffer_load_dwordx4 v{vWO}, {srd(sWO)}, s71 offen offset:{t*1024}{' nt' if ((rr, p, half) in eval(o.ntoc)) else s.nto} lds"]))
            return g
        def of_mem(rr, p, half, tag, store=False, clean=False, blk=None):
            g = []
            xb = 2*p + half if blk is None else blk + half
            for jj in range(2):
                va = vO if jj == 0 else Y
                if o.wrot:
                    ins = [f"s_add_u32 s72, s{sOP+p}, s{sOH[half]}"] + ([f"s_add_u32 s72, s72, {rr*UNIT}"] if rr else []) + [f"s_mov_b64 exec, s[{sEXLO}:{sEXHI}]"]
                else:
                    ins = [f"s_add_u32 s72, s{sOP+p}, {rr*UNIT + half*8*1792}", f"s_mov_b64 exec, s[{sEXLO}:{sEXHI}]"]
                for j in (2*jj, 2*jj+1):
                    op = "buffer_store_dwordx4" if store else "buffer_load_dwordx4"
                    ins.append(f"{op} {vr(X+16*xb+4*j,4)}, v{va}, {srd(sWS)}, s72 offen offset:{(j&1)*1792}{(' sc1' if clean else s.ost0) if store else [' sc1', '', ' sc0'][o.fgl]}{s.nths if (store and not clean) else s.nthl if not store else ''}")
                ins.append("s_mov_b64 exec, -1")
                g.append(((tag, tag), ins))
            return g
        def mat2(groups):
            out = []
            for tag, ins in groups:
                if isinstance(tag, tuple):
                    for t_ in tag: q.issue(t_)
                else: q.issue(tag)
                out.append(ins)
            return out

        s.wbase = PX[0]; s.xbase = PX[0]
        def rebase_lines(regs, cur, nb):
            d = (nb - cur) & 0xffffffff
            return [f"v_add_u32 v{r}, {hex(d)}, v{r}" for r in regs]
        def base_for(slot, cur):
            if 0 <= slot - cur <= 49152: return cur
            for b in (P[1], W[0], P[0], P[2]):
                if 0 <= slot - b <= 49152: return b
            raise ValueError
        LA = o.la
        def frags_c(lst):
            fr = []
            for ci, (slot, xb, first) in enumerate(lst):
                fr += [(slot, xb, first and j == 0, j, D, ci) for j in range(4) for D in range(4)]
            return fr
        def stream(fr, fillers=None, prologue=False, gapfill=None, LA=LA):
            n = len(fr)
            lq = Q(15)
            def xrd(ci, j):
                slot = PX[ci % NR]; r = []
                nb = base_for(slot, s.xbase)
                if nb != s.xbase:
                    r += rebase_lines(range(XA, XA+4), s.xbase, nb); s.xbase = nb
                lq.issue(f"X{ci}_{j}")
                r.append(f"ds_read_b128 {vr(X+16*ci+4*j,4)}, v{XA+j} offset:{slot - s.xbase}")
                return r
            def rd(f):
                slot, xb, zero, j, D, ci = fr[f]; r = []
                if prologue and j == 0 and D == 0 and ci > 0:
                    r += s.stamp_lines(f"x{ci}")
                    r.append("s_barrier")
                    r += s.stamp_lines(f"p{ci}")
                nb = base_for(slot, s.wbase)
                if nb != s.wbase:
                    r += rebase_lines(range(WA, WA+4), s.wbase, nb); s.wbase = nb
                if prologue and D == 0: r += xrd(ci, j)
                for a in range(2):
                    lq.issue(f)
                    r.append(f"ds_read_b64_tr_b16 {vr(WIN+4*(f%8)+2*a,2)}, v{WA+D} offset:{slot-s.wbase + j*2048 + a*1024}")
                return r
            gaps = gapfill if gapfill is not None else [[] for _ in range(n)]
            if fillers: spread(gaps, fillers, 0, n)
            for f in range(min(LA, n)): s.emit(rd(f))
            issued = min(LA, n)
            for f in range(n):
                slot, xb, zero, j, D, ci = fr[f]
                k = lq.wait([f, f + 1] if (f % 2 == 0 and f + 1 < issued) else [f])
                if k is not None: A(f"s_waitcnt lgkmcnt({k})")
                srcC = "0" if zero else vr(ACC+16*D, 16)
                A(f"v_mfma_f32_32x32x16_bf16 {vr(ACC+16*D,16)}, {vr(WIN+4*(f%8),4)}, {vr(X+16*xb+4*j,4)}, {srcC}")
                if issued < n:
                    s.emit(rd(issued)); issued += 1
                s.emit(gaps[f])
        def write_q(base_off):
            for D in range(4):
                for i in range(16):
                    A(f"v_mul_f32 v{ACC+16*D+i}, s{sCS}, v{ACC+16*D+i}")
                for h in range(2):
                    f = 2*D + h
                    for i in range(4):
                        A(f"v_cvt_pk_bf16_f32 v{WIN+4*f+i}, v{ACC+16*D+8*h+2*i}, v{ACC+16*D+8*h+2*i+1}")
                    A(f"ds_write_b128 v{vQW}, {vr(WIN+4*f,4)} offset:{base_off + f*1024}")
            A("s_waitcnt lgkmcnt(0)")
        def pair(j):
            a = s.dma_k(j, vK, nt, f"KV{j}") if j <= 15 else []
            b = s.dma_v(j, vV, nt, f"KV{j}") if j >= 1 else []
            return a + b
        def own_frags():
            for half in range(2):
                for j in range(4):
                    if o.wrot: A(f"ds_read_b128 {vr(X+16*half+4*j,4)}, v{(vOL, vOL2)[half]} offset:{j*512}")
                    else: A(f"ds_read_b128 {vr(X+16*half+4*j,4)}, v{vOL} offset:{half*4096 + j*512}")
            A("s_waitcnt lgkmcnt(0)")

        A(f"v_add_u32 v21, s{sHP}, v1")
        A("v_add_u32 v21, 1, v21")
        A("v_and_b32 v21, 3, v21")
        A(f"v_add_u32 v21, s{sGRP}, v21")
        A("v_lshlrev_b32 v21, 7, v21")
        A(f"v_add_u32 v22, s{sHG}, v1")
        A("v_add_u32 v22, 1, v22")
        A("v_and_b32 v22, 3, v22")
        A("v_lshlrev_b32 v22, 2, v22")
        A(f"s_and_b32 s71, s{sGRP}, {hex(0xfffffff0)}")
        A(f"s_add_u32 s71, s71, s{sHP}")
        A("v_add_u32 v22, s71, v22")
        A("v_lshlrev_b32 v22, 7, v22")
        A("v_lshlrev_b32 v23, 4, v1")
        A(f"s_lshl_b32 s{sPF}, s{sHG}, 20")
        A("s_lshr_b32 s70, s2, 3")
        A("s_lshl_b32 s70, s70, 15")
        A(f"s_add_u32 s{sPF}, s{sPF}, s70")
        A(f"s_lshl_b32 s70, s{sW}, 13")
        A(f"s_add_u32 s{sPF}, s{sPF}, s70")
        def wq_pieces(D, base_off):
            L = [f"v_pk_mul_f32 {vr(ACC+16*D+2*i,2)}, {vr(ACC+16*D+2*i,2)}, s[{sCS}:{sCS+1}] op_sel_hi:[1,0]" for i in range(8)]
            for h in range(2):
                L += [f"v_cvt_pk_bf16_f32 v{ACC+16*D+4*h+i}, v{ACC+16*D+8*h+2*i}, v{ACC+16*D+8*h+2*i+1}" for i in range(4)]
                L.append(f"ds_write_b128 v{vQW}, {vr(ACC+16*D+4*h,4)} offset:{base_off + (2*D+h)*1024}")
            return L
        def douter(fr):
            last = fr[-16:]
            return fr[:-16] + sorted(last, key=lambda f: (f[4], f[3]))
        def dq_gaps(gaps, base_off):
            n = len(gaps); b = n - 16
            for D in range(3):
                spread(gaps, [[x] for x in wq_pieces(D, base_off)], b + 4*D + 5, min(b + 4*D + 9, n))
        def dq_end(base_off):
            s.emit(wq_pieces(3, base_off))
            A("s_waitcnt lgkmcnt(0)")
        fr0 = frags_c([(PX[c % NR] + 16384, c, c == 0) for c in range(8)])
        gaps0 = [[] for _ in fr0]
        if o.r3 == 2:
            for c in range(1, 7): gaps0[16*c - 1].append("s_barrier")
        if o.pro2:
            setup = s.L; s.L = capL
            sec = {"pre": [], "clr": [], "mid": [], "early": [], "post": []}
            cur = "pre"
            nxt = {"@@clr0": "clr", "@@clr1": "mid", "@@early0": "early", "@@early1": "post"}
            for l in setup:
                if l in nxt: cur = nxt[l]
                else: sec[cur].append(l if l.endswith(":") else l.strip())
            s.emit(sec["early"])
            fill = [[l] for l in sec["pre"]] + [sec["clr"]] + [[l] for l in sec["mid"] + sec["post"]]
            if o.pro2 == 1: spread(gaps0, fill, 2, 108)
            else:
                for g_ in fill: s.emit(g_)
            s.stamp("bs")
        else:
            s.stamp("bs")
            A("s_waitcnt vmcnt(0)")
        s.stamp("x0")
        A("s_barrier")
        s.stamp("p0")
        if o.dq:
            fr0 = douter(fr0); dq_gaps(gaps0, 0)
        bkv = eval(o.bkv)
        if o.r3 and 2 not in bkv and o.p2at > 7: bkv[2] = 96 + o.p2g
        for key, pos in sorted(bkv.items(), key=lambda z: z[1]):
            if key == 'q': g_ = s.dma_wq(0, P[0] + 16384, vW, "Q0", 256, 72)
            else: g_ = (s.dma_k(key, vK, nt, f"KV{key}") + (s.dma_v(key, vV, nt, f"KV{key}") if key else []))
            assert key != 2 or pos >= 96
            spread(gaps0, mat(g_), pos, pos + len(g_))
        stream(fr0, None, prologue=True, gapfill=gaps0, LA=(min(LA, 5) if o.dq else LA))
        if o.dq: dq_end(0)
        else: write_q(0)
        s.stamp("pro")
        def poll_check(vsrc, shift):
            A(f"v_readfirstlane_b32 s70, v{vsrc} ; @val=POLL")
            if shift == 0:
                A("s_lshr_b32 s71, s70, 1"); A("s_or_b32 s70, s70, s71")
            else:
                A(f"s_lshr_b32 s70, s70, {shift}")
            A("s_and_b32 s70, s70, 0x01010101")
            A("s_cmp_eq_u32 s70, 0x01010101")
        def mid_poll(slow=False):
            if o.lead:
                return [f"s_and_b32 s71, s{sGRP}, {hex(0xfffffff0)}",
                        f"buffer_load_dword v24, off, {srd(sDBG)}, s71{' sc1' if (slow or o.lead == 2) else ''}"]
            return [f"s_and_b32 s71, s{sGRP}, {hex(0xfffffff0)}",
                    f"buffer_load_dwordx4 v[24:27], off, {srd(sDBG)}, s71 sc1"] + \
                   ([f"buffer_load_dword v29, off, {srd(sDBG)}, s{sGRP} sc1"] if o.xs in (1, 2) else [])
        def mid_check():
            if o.lead:
                return [f"v_readfirstlane_b32 s70, v24 ; @val=POLL",
                        "s_and_b32 s70, s70, 0x01010101", "s_cmp_eq_u32 s70, 0x01010101"]
            return [f"v_and_b32 v24, v24, v25", f"v_and_b32 v26, v26, v27",
                    f"v_and_b32 v24, v24, v26",
                    "s_nop 0",
                    f"v_readfirstlane_b32 s70, v24 ; @val=POLL",
                    "s_and_b32 s70, s70, 0x01010101", "s_cmp_eq_u32 s70, 0x01010101"]
        sNC = 69
        sTG = [82, 84, 78, 80]
        def nonce_addr(d):
            return [f"s_lshr_b32 s{d}, s{sGRP}, 4", f"s_lshl_b32 s{d}, s{d}, 2", f"s_add_u32 s{d}, s{d}, s{sHP}", f"s_lshl_b32 s{d}, s{d}, 7",
                    f"s_lshl_b32 s71, s{sW}, 2", f"s_add_u32 s{d}, s{d}, s71", f"s_add_u32 s{d}, s{d}, {NONCE_BASE}"]
        def wave_poll(vaddr, nm, drain=True):
            A(f"s_mov_b32 s{sSPIN}, 0")
            A("s_mov_b64 exec, 7")
            s.lab(f"B_{nm}")
            A(f"buffer_load_dword v{VP}, v{vaddr}, {srd(sWS)}, s72 offen sc1")
            A("s_waitcnt vmcnt(0)")
            A(f"v_cmp_ne_u32 vcc, 0, v{VP}")
            A("s_cmp_eq_u32 vcc_lo, 7")
            A(f"s_cbranch_scc1 B_{nm}d ; @taken")
            A(f"s_add_u32 s{sSPIN}, s{sSPIN}, 1")
            A(f"s_cmp_lt_u32 s{sSPIN}, {o.spin}")
            A(f"s_cbranch_scc1 B_{nm}")
            s.lab(f"B_{nm}d")
            A("s_mov_b64 exec, -1")
            if drain: q.drain()
        wq_slot = lambda c: (P[0] + 16384) if c == 0 else W[(c + 1) % 4]
        wq_issue = {0: [1, 2], 1: [3], 2: [4], 3: [5], 4: [6], 5: [7]}
        wo0_slot = {(0,0): W[3], (0,1): W[0], (1,0): W[0], (1,1): W[1], (2,0): W[2], (2,1): W[3], (3,0): P[1], (3,1): P[2]}
        wo0_issue = eval(o.w0i)
        wo0_use = eval(o.w0u)
        ords = eval(o.ords)
        of0_issue = eval(o.f0)
        pf_issue = {1: [0, 1], 2: [2, 3], 3: [4], 4: [5], 5: [6], 6: [7]}
        wo1_slot = {(0,0): P[2] + 16384, (0,1): P[1] + 16384, (1,0): W[0], (1,1): W[1], (2,0): W[2], (2,1): W[3], (3,0): P[1], (3,1): P[2]}
        wo1_issue = eval(o.w1i)
        FL0AT = o.fl0at if o.fl0at else o.s0at + 1
        PO0 = o.po0
        def flag_check(nm):
            A("s_mov_b64 exec, 7")
            A(f"v_cmp_ne_u32 vcc, 0, v{VP}")
            A("s_mov_b64 exec, -1")
            A("s_cmp_eq_u32 vcc_lo, 7")
            A(f"s_cbranch_scc0 B_slow{nm} ; @nottaken")
            s.lab(f"B_slow{nm}r")
        for st in range(17):
            s.stamp(f"c{st}")
            tags = [f"KV{st}"]
            if 0 <= st <= 7: tags.append(f"Q{st}")
            for (p, h) in wo0_use.get(st, []):
                tags += [f"O0{p}{h}", f"F{p}"]
            if st == FL0AT: tags.append("S0")
            if st == PO0 + 1: tags.append("POLL")
            if st == o.mp + 1: tags.append("POLL0")
            if st == 9 and o.xs >= 3: tags.append("XQ")
            if st == 8: tags.append("PF")
            wait_vm(tags)
            s.stamp(f"w{st}")
            A("s_barrier")
            s.stamp(f"s{st}")
            if st in eval(o.prioB): A(f"s_setprio {eval(o.prioB)[st]}")
            if st == 8:
                for d in range(4):
                    A(f"s_add_u32 s70, s{sHG}, {1 + d}")
                    A("s_and_b32 s70, s70, 3")
                    A(f"v_xor_b32 v29, s70, v{vR}")
                    A("v_lshlrev_b32 v29, 6, v29")
                    A(f"v_add_u32 v29, v29, v{vWB}")
                    A(f"v_add_u32 v{WA+d}, {s.wbase}, v29")
            pre_groups = []
            if st == 9:
                own_frags()
            g_s = []
            s0sp = eval(o.s0sp) if o.s0sp else {o.s0at: [0, 1, 2, 3]}
            assert max(s0sp) == o.s0at
            if st in s0sp:
                g_s = of_mem(0, 0, 0, "S0", store=True) + of_mem(0, 0, 1, "S0", store=True)
                g_s = [g_s[i] for i in s0sp[st]]
                if "s" not in ords.get(st, o.order): pre_groups = g_s
            if st == 2 and not (o.abl & 16) and o.xs not in (1, 2):
                if o.lead:
                    A(f"s_or_b32 s70, s{sW}, s{sHG}")
                    A(f"s_or_b32 s70, s70, s{sHP}")
                    A("s_cmp_lg_u32 s70, 0")
                    A(f"s_cbranch_scc1 B_nf{st}")
                    A("v_mov_b32 v28, 0x01010101")
                    A("s_mov_b64 exec, 1")
                    A(f"buffer_store_dword v28, off, {srd(sDBG)}, s{sGRP} sc1")
                    A("s_mov_b64 exec, -1")
                else:
                    A(f"s_cmp_lg_u32 s{sW}, 0")
                    A(f"s_cbranch_scc1 B_nf{st}")
                    s.flag_store(1, 28)
                s.lab(f"B_nf{st}")
            if st == o.mp and not (o.abl & 32):
                s.emit(mid_poll()); q.issue("POLL0")
                if o.xs in (1, 2): q.issue("POLL0")
                if o.tg:
                    s.emit(nonce_addr(72))
                    A(f"buffer_load_dword v25, off, {srd(sWS)}, s72 sc1"); q.issue("POLL0")
            if st == 8 and o.xs >= 3:
                A(f"s_mov_b32 s72, {FLAG_BASE + 64}")
                A("s_mov_b64 exec, 15")
                A(f"buffer_load_dword v29, v21, {srd(sWS)}, s72 offen sc1"); q.issue("XQ")
                A("s_mov_b64 exec, -1")
            if st == 9 and o.xs >= 3:
                s.emit(s.xcc_byte(71))
                A("s_mov_b64 exec, 15")
                A("v_cmp_eq_u32 vcc, s71, v29")
                A("s_mov_b64 exec, -1")
                A("s_cmp_eq_u32 vcc_lo, 15")
                A(f"s_cselect_b32 s{sOBASE}, 1, 0")
            if st == o.mp + 1 and not (o.abl & 32):
                s.emit(mid_check())
                A("s_cbranch_scc0 B_slow0 ; @nottaken")
                s.lab("B_slow0r")
                if o.tg:
                    s.emit([f"v_readfirstlane_b32 s{sNC}, v25", f"s_add_u32 s{sNC}, s{sNC}, 1", f"s_mul_i32 s70, s{sNC}, 0x9E3779B1",
                            f"s_and_b32 s{sTG[0]}, s70, 0xff", f"s_bfe_u32 s{sTG[1]}, s70, 0x80008", f"s_bfe_u32 s{sTG[2]}, s70, 0x80010",
                            f"s_lshr_b32 s{sTG[3]}, s70, 24",
                            f"s_or_b32 s{sTG[1]}, s{sTG[1]}, 1", f"s_xor_b32 s{sTG[1]}, s{sTG[1]}, s{sTG[0]}"])
                if o.xs >= 3:
                    A(f"s_cmp_lg_u32 s{sW}, 0")
                    A("s_cbranch_scc1 B_nx")
                    s.emit(s.xcc_byte(71))
                    A(f"s_lshl_b32 s70, s{sMYB}, 7")
                    A(f"s_add_u32 s70, s70, {FLAG_BASE + 64}")
                    A("v_mov_b32 v28, s71")
                    A("s_mov_b64 exec, 1")
                    A(f"buffer_store_dword v28, off, {srd(sWS)}, s70 sc1")
                    A("s_mov_b64 exec, -1")
                    s.lab("B_nx")
                if o.xs in (1, 2):
                    s.emit(["v_readfirstlane_b32 s70, v29"] + s.xcc_byte(71) + ["s_mul_i32 s71, s71, 0x01010101", "s_cmp_eq_u32 s70, s71",
                            f"s_cselect_b32 s{sOBASE}, 1, 0"])
                s.stamp("chk0")
            if st == FL0AT and not (o.abl & 4):
                if o.xs:
                    A(f"s_cmp_eq_u32 s{sOBASE}, 0")
                    A("s_cbranch_scc1 B_wb ; @nottaken" if o.xs in (1, 3) else "s_branch B_wb")
                    s.lab("B_wbr")
                A(f"s_lshl_b32 s70, s{sMYB}, 7")
                A(f"s_lshl_b32 s71, s{sW}, 2")
                A(f"s_add_u32 s71, s71, {FLAG_BASE + 32}")
                A("s_add_u32 s70, s70, s71")
                A("v_mov_b32 v28, 1")
                A("s_mov_b64 exec, 1")
                A(f"buffer_store_dword v28, off, {srd(sWS)}, s70{s.ofl0}")
                A("s_mov_b64 exec, -1")
                q.issue("FL0")
            if st == PO0 and not (o.abl & 4):
                A(f"s_lshl_b32 s72, s{sW}, 2")
                A(f"s_add_u32 s72, s72, {FLAG_BASE + 32}")
                A("s_mov_b64 exec, 7")
                A(f"buffer_load_dword v{VP}, v21, {srd(sWS)}, s72 offen sc1"); q.issue("POLL")
                A("s_mov_b64 exec, -1")
            if st == PO0 + 1 and not (o.abl & 4):
                flag_check("1")
                s.stamp("chk")
            g_kv = pair(st + 2) if st + 2 <= 16 else []
            if (o.r3 or 2 in eval(o.bkv) or o.p2at <= 7) and st == 0: g_kv = []
            g_w = []
            for c in wq_issue.get(st, []): g_w += s.dma_wq(c, wq_slot(c), vW, f"Q{c}", 256, 72)
            for (p, h) in wo0_issue.get(st, []): g_w += dma_wo(0, p, h, wo0_slot[(p, h)])
            g_f = []
            for p in of0_issue.get(st, []): g_f += of_mem(0, p, 0, f"F{p}") + of_mem(0, p, 1, f"F{p}")
            g_1 = []
            for (p, h) in wo1_issue.get(st, []): g_1 += dma_wo(1, p, h, wo1_slot[(p, h)])
            g_p = []
            if o.pf:
                for t in pf_issue.get(st, []):
                    g_p.append(("PF", [f"s_add_u32 s71, s{sPF}, {t*1024}",
                                       f"buffer_load_dwordx4 v[24:27], v23, {srd(sWO)}, s71 offen ; @dummy"]))
            if (o.abl & 1) and 10 <= st <= 13: g_w = []
            if st in eval(o.ablw): g_w = []
            if o.abl & 2: pre_groups = []
            if (o.abl & 8) and 8 <= st <= 13: g_kv = g_kv[:4]
            gm = {"w": g_w + g_1, "f": g_f, "k": g_kv, "p": g_p, "s": g_s}
            groups = pre_groups + sum((gm[c] for c in ords.get(st, o.order)), [])
            if o.ilv and st >= o.ilv0:
                oth = (pre_groups if o.ilv & 2 else []) + sum((gm[c] for c in o.order if c != "k"), [])
                def pos(lst, ph):
                    w = [2 if isinstance(g[0], tuple) else 1 for g in lst]; tot = sum(w); acc = 0; r = []
                    for g, x in zip(lst, w):
                        r.append(((acc + ph * x) / tot, g)); acc += x
                    return r
                a_ = pos(g_kv, 0.0) if g_kv else []
                b_ = pos(oth, 0.5) if oth else []
                merged = sorted([(x, 0, i, g) for i, (x, g) in enumerate(a_)] + [(x, 1, i, g) for i, (x, g) in enumerate(b_)], key=lambda z: (z[0], z[1], z[2]))
                groups = ([] if o.ilv & 2 else pre_groups) + [z[3] for z in merged]
            mem = mat2(groups)
            use = ([(wq_slot(st), st, st == 0)] if st <= 7 else []) + \
                  [(wo0_slot[(p, h)], 2*p + h, (p, h) == (0, 0)) for (p, h) in wo0_use.get(st, [])]
            if use and st == 7 and o.dq:
                fr7 = douter(frags_c(use)); g7 = [[] for _ in fr7]
                if not o.s7f: spread(g7, mem, 0, 16)
                if o.s7f == 2:
                    assert ords.get(st, o.order).startswith("k") and len(mem) == 12, len(mem)
                    for g_ in mem[:8]: s.emit(g_)
                    mem = mem[8:]
                if o.s7f == 3:
                    assert ords.get(st, o.order).startswith("k") and len(mem) == 12, len(mem)
                    for g_ in mem[:8]: s.emit(g_)
                    spread(g7, mem[8:], 0, 16); mem = []
                dq_gaps(g7, 16384)
                stream(fr7, None, gapfill=g7)
                s.stamp("q7a")
                dq_end(16384)
                s.stamp("q7b")
                if o.s7f:
                    for g_ in mem: s.emit(g_)
            elif use:
                if st in eval(o.mf):
                    nk = len(g_kv)
                    assert ords.get(st, o.order).replace("p", "").startswith("k") and not pre_groups
                    for g_ in mem[:nk]: s.emit(g_)
                    mem = mem[nk:]
                stream(frags_c(use), mem)
                if st == 7: write_q(16384)
            else:
                for gi, g_ in enumerate(mem):
                    s.emit(g_); s.stamp(f"m{st}_{gi}")
            s.stamp(f"d{st}")
        sPD = [sWP, sWP + 1, sWP + 2] if o.tail in (1, 3) else [82, 83, 84]
        def addr_prep():
            A("v_lshrrev_b32 v17, 5, v1")
            A("v_mul_u32_u24 v23, 112, v17")
            A("v_and_b32 v18, 31, v1")
            A("v_add_u32 v23, v23, v18")
            A(f"s_lshl_b32 s70, s{sW}, 5")
            A("v_add_u32 v23, s70, v23")
            A("v_add_u32 v19, s70, v18")
            A("v_lshlrev_b32 v23, 4, v23")
            A(f"s_lshl_b32 s70, s{sBR}, 3")
            A(f"s_add_u32 s70, s70, s{sB}")
            A(f"s_lshl_b32 s70, s70, 2")
            A(f"s_add_u32 s70, s70, s{sHP}")
            A(f"s_mul_i32 s73, s70, {12*PSZ}")
            A(f"s_add_u32 s73, s73, {PART_BASE}")
            for d in range(3):
                A(f"s_add_u32 s70, s{sHG}, {1 + d}")
                A("s_and_b32 s70, s70, 3")
                A(f"s_mul_i32 s70, s70, {3*PSZ}")
                A(f"s_add_u32 s70, s70, s73")
                A(f"s_add_u32 s{sPD[d]}, s70, {(2-d)*PSZ}")
            A("v_lshlrev_b32 v19, 11, v19")
            A("v_lshlrev_b32 v17, 4, v17")
            A("v_add_u32 v19, v19, v17")
            if o.tg: A("v_mov_b32 v24, 0xff")
        def pub(d):
            r = []
            for rq in range(4):
                tg = [f"v_bfi_b32 v{ACC+16*d+4*rq+i}, v24, s{sTG[i]}, v{ACC+16*d+4*rq+i}" for i in range(4)] if o.tg else []
                r.append(tg + [f"s_add_u32 s70, s{sPD[d]}, {rq*3584}", f"s_mov_b64 exec, s[{sEXLO}:{sEXHI}]",
                          f"buffer_store_dwordx4 {vr(ACC+16*d+4*rq,4)}, v23, {srd(sWS)}, s70 offen sc1{s.nths}", "s_mov_b64 exec, -1"])
            return r
        def part_ld(src, dst, rq):
            return [f"s_add_u32 s70, s73, {src*PSZ + rq*3584}",
                    f"buffer_load_dwordx4 {vr(dst+4*rq,4)}, v23, {srd(sWS)}, s70 offen sc1{s.nthl}"]
        def tail1():
            used0 = set(x for v in wo0_use.values() for x in v)
            tail0 = [(p, h) for p in range(4) for h in range(2) if (p, h) not in used0]
            tailF = sorted(set(p for p, h in tail0))
            assert all((p, 0) in tail0 or (p, 0) in used0 for p in tailF)
            issued1 = set(x for v in wo1_issue.values() for x in v)
            def ftags(p): return [f"O0{p}{h}" for h in range(2) if (p, h) in tail0] + ([f"F{p}"] if p else [])
            s.stamp("preE")
            wait_vm(ftags(tailF[0]) + ["O100"])
            s.stamp("wE")
            A(f"v_add_u32 v{vOL}, {hex((P[0] - W[1]) & 0xffffffff)}, v{vOL}")
            if o.wrot: A(f"v_add_u32 v{vOL2}, {hex((P[0] - W[1]) & 0xffffffff)}, v{vOL2}")
            A("s_barrier")
            s.stamp("E")
            busy = set(wo0_slot[c] for c in tail0)
            avail = [c for c in [(0, 1), (1, 0), (1, 1), (2, 0), (2, 1), (3, 0), (3, 1)] if c not in issued1 and wo1_slot[c] not in busy]
            for i, p in enumerate(tailF):
                fl = mat2(sum((dma_wo(1, pp, hh, wo1_slot[(pp, hh)]) for (pp, hh) in avail), []))
                issued1 |= set(avail)
                stream(frags_c([(wo0_slot[(p, h)], 2*p + h, False) for h in range(2) if (p, h) in tail0]), fl)
                for h in range(2): busy.discard(wo0_slot[(p, h)])
                avail = [c for c in [(0, 1), (1, 0), (1, 1), (2, 0), (2, 1), (3, 0), (3, 1)] if c not in issued1 and wo1_slot[c] not in busy]
                s.stamp(f"U{i}")
                if i + 1 < len(tailF):
                    wait_vm(ftags(tailF[i + 1]))
                    s.stamp(f"V{i}")
                    A("s_barrier")
                    s.stamp(f"T{i}")
            own_frags()
            wait_vm("O101")
            A("s_barrier")
            s.stamp("Ta")
            if o.t1p:
                A(f"s_lshl_b32 s72, s{sW}, 2")
                A(f"s_add_u32 s72, s72, {FLAG_BASE}")
                A("s_mov_b64 exec, 7")
                A(f"buffer_load_dword v{VP}, v21, {srd(sWS)}, s72 offen sc1"); q.issue("POLL1")
                A("s_mov_b64 exec, -1")
            fl = mat2(sum((dma_wo(1, pp, hh, wo1_slot[(pp, hh)]) for (pp, hh) in avail), []))
            issued1 |= set(avail)
            assert len(issued1) == 8, issued1
            stream(frags_c([(wo1_slot[(0, 0)], 0, False), (wo1_slot[(0, 1)], 1, False)]), fl)
            s.stamp("own")
            addr_prep()
            if o.t1p:
                wait_vm("POLL1")
                flag_check("2")
            else:
                A(f"s_lshl_b32 s72, s{sW}, 2")
                A(f"s_add_u32 s72, s72, {FLAG_BASE}")
                wave_poll(21, "poll1")
            s.stamp("poll1")
            gl = lambda p: of_mem(1, p, 0, f"G{p}") + of_mem(1, p, 1, f"G{p}")
            for g_ in mat2(gl(1) + gl(2)): s.emit(g_)
            A("s_barrier")
            ND = 3 if o.defer else 4
            for p in (1, 2):
                wait_vm(f"G{p}")
                if p == 1: s.stamp("g1")
                fl = mat2(gl(3)) if p == 1 else None
                stream([f for f in frags_c([(wo1_slot[(p, 0)], 2*p, False), (wo1_slot[(p, 1)], 2*p + 1, False)]) if f[4] < ND], fl)
            wait_vm("G3")
            if o.t1p: A("s_barrier")
            fr = []
            for d in range(ND):
                for half in range(2):
                    for j in range(4):
                        fr.append((wo1_slot[(3, half)], 6 + half, False, j, d, half))
            for p in ((1, 2, 3) if o.defer else ()):
                for half in range(2):
                    for j in range(4):
                        fr.append((wo1_slot[(p, half)], 2*p + half, False, j, 3, half))
            gaps = [[] for _ in range(len(fr))]
            for d in range(3):
                spread(gaps, pub(d), 8*d + 8 + 3, 8*d + 8 + 7)
            if o.tg == 2:
                gaps[0] = [f"s_mul_i32 s71, s{sHG}, {3*PSZ}", "s_add_u32 s73, s73, s71"] + gaps[0]
                if o.tge >= 0:
                    assert o.tge >= 31
                    for rq in range(4):
                        gaps[min(o.tge + rq, len(fr) - 1)] += [f"s_mov_b64 exec, s[{sEXLO}:{sEXHI}]"] + part_ld(2, 64, rq) + ["s_mov_b64 exec, -1"]
            stream(fr, None, gapfill=gaps)
        def tail2():
            used0 = set(x for v in wo0_use.values() for x in v)
            assert used0 == {(0, 0), (0, 1)}
            fdone = set(p for v in of0_issue.values() for p in v)
            assert wo1_issue == {15: [(0, 0)]}
            gb = lambda p: 2 * (p - 1)
            gl = lambda p: of_mem(1, p, 0, f"G{p}", blk=gb(p)) + of_mem(1, p, 1, f"G{p}", blk=gb(p))
            w1 = lambda cs: sum((dma_wo(1, pp, hh, wo1_slot[(pp, hh)]) for (pp, hh) in cs), [])
            fw = lambda p: frags_c([(wo0_slot[(p, 0)], 2*p, False), (wo0_slot[(p, 1)], 2*p + 1, False)])
            tags = [f"O0{p}{h}" for p in (1, 2, 3) for h in range(2)] + ["O100"]
            if PO0 == 16: tags.append("POLL")
            wait_vm(tags)
            A(f"v_add_u32 v{vOL}, {hex((P[0] - W[1]) & 0xffffffff)}, v{vOL}")
            if o.wrot: A(f"v_add_u32 v{vOL2}, {hex((P[0] - W[1]) & 0xffffffff)}, v{vOL2}")
            if PO0 == 16:
                flag_check("1")
                s.stamp("chk")
            rest = [p for p in (1, 2, 3) if p not in fdone]
            if o.fpre and PO0 == 16:
                for p in rest:
                    for g_ in mat2(of_mem(0, p, 0, f"F{p}") + of_mem(0, p, 1, f"F{p}")): s.emit(g_)
                rest = []
            A("s_barrier")
            s.stamp("E")
            for g_ in mat2(w1([(0, 1)])): s.emit(g_)
            for p in rest:
                for g_ in mat2(of_mem(0, p, 0, f"F{p}") + of_mem(0, p, 1, f"F{p}")): s.emit(g_)
            own_frags()
            stream(frags_c([(wo1_slot[(0, 0)], 0, False)]), None)
            addr_prep()
            wait_vm("O101")
            A("s_barrier")
            s.stamp("Ta")
            stream(frags_c([(wo1_slot[(0, 1)], 1, False)]), None)
            s.stamp("own")
            wait_vm("F1")
            s.stamp("f1")
            stream(fw(1), None)
            wait_vm("F2")
            A("s_barrier")
            A(f"s_lshl_b32 s72, s{sW}, 2")
            A(f"s_add_u32 s72, s72, {FLAG_BASE}")
            A("s_mov_b64 exec, 7")
            A(f"buffer_load_dword v{VP}, v21, {srd(sWS)}, s72 offen sc1"); q.issue("POLL1")
            A("s_mov_b64 exec, -1")
            s.stamp("f2")
            stream(fw(2), mat2(w1([(1, 0), (1, 1)])))
            wait_vm(["POLL1", "F3"])
            A("s_barrier")
            flag_check("2")
            s.stamp("poll1")
            for g_ in mat2(gl(1)): s.emit(g_)
            stream(fw(3), mat2(gl(2) + w1([(2, 0), (2, 1)]) + gl(3)))
            wait_vm(["O110", "O111"])
            A("s_barrier")
            s.stamp("f3")
            for g_ in mat2(w1([(3, 0), (3, 1)])): s.emit(g_)
            ND = 3 if o.defer else 4
            for p in (1, 2):
                if p == 2:
                    wait_vm(["O120", "O121", "G2"])
                    A("s_barrier")
                else:
                    wait_vm("G1")
                    s.stamp("g1")
                stream([f for f in frags_c([(wo1_slot[(p, 0)], gb(p), False), (wo1_slot[(p, 1)], gb(p) + 1, False)]) if f[4] < ND], None)
            wait_vm(["G3", "O130", "O131"])
            A("s_barrier")
            fr = []
            for d in range(ND):
                for half in range(2):
                    for j in range(4):
                        fr.append((wo1_slot[(3, half)], gb(3) + half, False, j, d, half))
            for p in ((1, 2, 3) if o.defer else ()):
                for half in range(2):
                    for j in range(4):
                        fr.append((wo1_slot[(p, half)], gb(p) + half, False, j, 3, half))
            gaps = [[] for _ in range(len(fr))]
            for d in range(3):
                spread(gaps, pub(d), 8*d + 8 + 3, 8*d + 8 + 7)
            stream(fr, None, gapfill=gaps)
        def tail3():
            used0 = set(x for v in wo0_use.values() for x in v)
            assert used0 == {(0, 0), (0, 1)}
            assert wo1_issue == {15: [(0, 0)]}
            gl = lambda p: of_mem(1, p, 0, f"G{p}") + of_mem(1, p, 1, f"G{p}")
            w1 = lambda cs: sum((dma_wo(1, pp, hh, wo1_slot[(pp, hh)]) for (pp, hh) in cs), [])
            fw = lambda p: frags_c([(wo0_slot[(p, 0)], 2*p, False), (wo0_slot[(p, 1)], 2*p + 1, False)])
            ft = lambda p: [f"O0{p}0", f"O0{p}1", f"F{p}"]
            def poll_issue():
                A(f"s_lshl_b32 s72, s{sW}, 2")
                A(f"s_add_u32 s72, s72, {FLAG_BASE}")
                A("s_mov_b64 exec, 7")
                A(f"buffer_load_dword v{VP}, v21, {srd(sWS)}, s72 offen sc1"); q.issue("POLL1")
                A("s_mov_b64 exec, -1")
            wait_vm(ft(1) + ["O100"])
            A(f"v_add_u32 v{vOL}, {hex((P[0] - W[1]) & 0xffffffff)}, v{vOL}")
            if o.wrot: A(f"v_add_u32 v{vOL2}, {hex((P[0] - W[1]) & 0xffffffff)}, v{vOL2}")
            A("s_barrier")
            s.stamp("E")
            if o.t3a == 0: stream(fw(1), mat2(w1([(0, 1)])))
            else:
                stream(fw(1), None)
                for g_ in mat2(w1([(0, 1)])): s.emit(g_)
            wait_vm(ft(2))
            A("s_barrier")
            s.stamp("T0")
            if o.t3p == 0: poll_issue()
            stream(fw(2), mat2(w1([(1, 0), (1, 1)])))
            if o.t3p == 1: poll_issue()
            wait_vm(ft(3) + (["POLL1"] if o.t3p == 0 else []))
            A("s_barrier")
            s.stamp("T1")
            if o.t3p == 0:
                flag_check("2")
                s.stamp("poll1")
                stream(fw(3), mat2(gl(1) + w1([(2, 0), (2, 1)]) + gl(2)))
            else:
                stream(fw(3), mat2(w1([(2, 0), (2, 1)])))
                wait_vm("POLL1")
                flag_check("2")
                s.stamp("poll1")
                for g_ in mat2(gl(1)): s.emit(g_)
            own_frags()
            wait_vm("O101")
            A("s_barrier")
            s.stamp("Ta")
            stream(frags_c([(wo1_slot[(0, 0)], 0, False), (wo1_slot[(0, 1)], 1, False)]),
                   mat2((gl(2) if o.t3p == 1 else []) + (gl(3) + w1([(3, 0), (3, 1)]) if o.t3g == 0 else w1([(3, 0), (3, 1)]) + gl(3))))
            s.stamp("own")
            addr_prep()
            ND = 3 if o.defer else 4
            for p in (1, 2):
                wait_vm([f"O1{p}0", f"O1{p}1", f"G{p}"])
                A("s_barrier")
                if p == 1: s.stamp("g1")
                stream([f for f in frags_c([(wo1_slot[(p, 0)], 2*p, False), (wo1_slot[(p, 1)], 2*p + 1, False)]) if f[4] < ND], None)
            wait_vm(["G3", "O130", "O131"])
            A("s_barrier")
            fr = []
            for d in range(ND):
                for half in range(2):
                    for j in range(4):
                        fr.append((wo1_slot[(3, half)], 6 + half, False, j, d, half))
            for p in ((1, 2, 3) if o.defer else ()):
                for half in range(2):
                    for j in range(4):
                        fr.append((wo1_slot[(p, half)], 2*p + half, False, j, 3, half))
            gaps = [[] for _ in range(len(fr))]
            for d in range(3):
                spread(gaps, pub(d), 8*d + 8 + 3, 8*d + 8 + 7)
            stream(fr, None, gapfill=gaps)
        {1: tail1, 2: tail2, 3: tail3}[o.tail]()
        s.stamp("oproj")
        if not o.tg:
            A(f"s_lshl_b32 s70, s{sMYB}, 7")
            A(f"s_lshl_b32 s72, s{sW}, 2")
            A(f"s_add_u32 s72, s72, {FLAG_BASE + 16}")
            A("s_add_u32 s70, s70, s72")
            A("v_mov_b32 v20, 1")
            A("s_waitcnt vmcnt(0)")
            s.stamp("pst")
            A("s_mov_b64 exec, 1")
            A(f"buffer_store_dword v20, off, {srd(sWS)}, s70 sc1")
        if o.cl & 2:
            A("s_mov_b64 exec, -1")
            for g_ in mat2(of_mem(1, 3, 0, "CL1", store=True, clean=True) + of_mem(1, 3, 1, "CL1", store=True, clean=True)): s.emit(g_)
            A(f"s_lshl_b32 s72, s{sW}, 2")
            A(f"s_add_u32 s72, s72, {FLAG_BASE + 16}")
        if not o.tg:
            wave_poll(22, "poll2")
            s.stamp("poll2")
        if o.tg != 2:
            A(f"s_mul_i32 s71, s{sHG}, {3*PSZ}")
            A("s_add_u32 s73, s73, s71")
        R = 64
        OWN = ACC + 48
        A(f"s_mov_b64 exec, s[{sEXLO}:{sEXHI}]")
        def part_iss(src, dst): return sum((part_ld(src, dst, rq) for rq in range(4)), [])
        def part_chk(dst):
            r = [f"v_xor_b32 v25, s{sTG[0]}, v{dst}", f"v_xor_b32 v26, s{sTG[1]}, v{dst+1}"]
            r += [f"v_bitop3_b32 v{25 + (i & 1)}, v{25 + (i & 1)}, v{dst+i}, s{sTG[i % 4]} bitop3:0xf6" for i in range(2, 16)]
            return r + ["v_or_b32 v25, v25, v26", "v_and_b32 v25, v24, v25", "v_cmp_ne_u32 vcc, 0, v25", "s_nop 0"]
        def part_add(dst): return [f"v_pk_add_f32 {vr(OWN+2*i,2)}, {vr(OWN+2*i,2)}, {vr(dst+2*i,2)}" for i in range(8)]
        def out_addr():
            A(f"s_mul_i32 s72, s{sB}, {112*2048}")
            A(f"s_lshl_b32 s71, s{sBR}, 10")
            A("s_add_u32 s72, s72, s71")
            A(f"s_lshl_b32 s71, s{sHP}, 8")
            A("s_add_u32 s72, s72, s71")
            A(f"s_lshl_b32 s71, s{sHG}, 6")
            A("s_add_u32 s72, s72, s71")
        tg2_slow = []
        if o.tg == 2:
            order = [(2, R), (1, R + 16), (0, R + 32)]
            A(f"s_mov_b32 s{sSPIN}, 0")
            if o.tge < 0: s.emit(part_iss(2, R))
            s.emit(part_iss(1, R + 16))
            if o.tgd == 0: s.emit(part_iss(0, R + 32))
            out_addr()
            for k_, (src, dst) in enumerate(order):
                later = {0: 4 + (4 if o.tgd == 0 else 0), 1: (4 if o.tgd <= 1 else 0), 2: 0}[k_]
                A(f"s_waitcnt vmcnt({later})")
                if k_ == 0: s.stamp("l2")
                if k_ == 1: s.stamp("l1")
                if o.tgd == k_ + 1: s.emit(part_iss(0, R + 32))
                s.emit(part_chk(dst))
                A(f"s_cbranch_vccnz B_r{src} ; @nottaken")
                s.lab(f"B_r{src}r")
                s.emit(part_add(dst))
                tg2_slow += [f"B_r{src}:", f"s_add_u32 s{sSPIN}, s{sSPIN}, 1", f"s_cmp_ge_u32 s{sSPIN}, {min(o.spin, 4096)}",
                             f"s_cbranch_scc1 B_r{src}r ; @nottaken"] + part_iss(src, dst) + ["s_waitcnt vmcnt(0)"] + part_chk(dst) + \
                            [f"s_cbranch_vccnz B_r{src} ; @nottaken", f"s_branch B_r{src}r"]
            s.stamp("poll2")
            if o.stamp and "nrt" in o.stamps.split(","):
                r_ = STAMP_REGS[o.stamps.split(",").index("nrt")]
                s.emit(["s_waitcnt lgkmcnt(0)", f"s_mul_i32 s70, s{sSPIN}, 1000", f"s_add_u32 s{r_}, s90, s70", f"s_addc_u32 s{r_+1}, s91, 0"])
            q.drain()
            A("s_mov_b32 s70, s72")
        if o.tg == 1:
            A(f"s_mov_b32 s{sSPIN}, 0")
            s.lab("B_rt")
        for src in (range(3) if o.tg != 2 else ()):
            for rq in range(4):
                A(f"s_add_u32 s70, s73, {src*PSZ + rq*3584}")
                A(f"buffer_load_dwordx4 {vr(R+16*src+4*rq,4)}, v23, {srd(sWS)}, s70 offen sc1{s.nthl}")
        if o.tg == 1:
            for src in range(3):
                A(f"s_waitcnt vmcnt({8 - 4*src})")
                for i in range(16):
                    acc = 25 + (i & 1)
                    if src == 0 and i < 2: A(f"v_xor_b32 v{acc}, s{sTG[i % 4]}, v{R+16*src+i}")
                    else: A(f"v_bitop3_b32 v{acc}, v{acc}, v{R+16*src+i}, s{sTG[i % 4]} bitop3:0xf6")
            A("v_or_b32 v25, v25, v26")
            A("v_and_b32 v25, v24, v25")
            A("v_cmp_ne_u32 vcc, 0, v25")
            A("s_nop 0")
            A("s_cbranch_vccz B_rtd ; @taken")
            A(f"s_add_u32 s{sSPIN}, s{sSPIN}, 1")
            A(f"s_cmp_lt_u32 s{sSPIN}, {min(o.spin, 4096)}")
            A("s_cbranch_scc1 B_rt")
            s.lab("B_rtd")
            s.stamp("poll2")
            if o.stamp and "nrt" in o.stamps.split(","):
                r_ = STAMP_REGS[o.stamps.split(",").index("nrt")]
                s.emit(["s_waitcnt lgkmcnt(0)", f"s_mul_i32 s70, s{sSPIN}, 1000", f"s_add_u32 s{r_}, s90, s70", f"s_addc_u32 s{r_+1}, s91, 0"])
            q.drain()
        if o.tg != 2:
            out_addr()
            A("s_mov_b32 s70, s72")
            A("s_waitcnt vmcnt(8)")
            s.emit(part_add(R))
            A("s_waitcnt vmcnt(4)")
            s.emit(part_add(R + 16))
            A("s_waitcnt vmcnt(0)")
            s.emit(part_add(R + 32))
        for i in range(8):
            A(f"v_cvt_pk_bf16_f32 v{32+i}, v{OWN+2*i}, v{OWN+2*i+1}")
        for h in range(2):
            A(f"buffer_store_dwordx4 {vr(32+4*h,4)}, v19, {srd(sOUT)}, s70 offen offset:{h*32}{['', ' sc1', ' sc0 sc1', ' nt', ' sc1 nt'][o.outsc]}")
        if o.tg:
            A(f"s_cmp_lg_u32 s{sHG}, 0")
            A("s_cbranch_scc1 B_ncell")
            s.emit(nonce_addr(72))
            A(f"v_mov_b32 v20, s{sNC}")
            A("s_mov_b64 exec, 1")
            A(f"buffer_store_dword v20, off, {srd(sWS)}, s72 sc1")
            s.lab("B_ncell")
        A("s_mov_b64 exec, -1")
        if o.dbgst:
            A("s_waitcnt vmcnt(0)")
            A(f"s_or_b32 s70, s{sW}, s{sHG}")
            A(f"s_or_b32 s70, s70, s{sHP}")
            A("s_cmp_lg_u32 s70, 0")
            A("s_cbranch_scc1 L_end")
            s.stamp("end"); s.stamp("cend", True)
            A("s_waitcnt lgkmcnt(0)")
            r = STAMP_REGS
            A(f"s_sub_u32 s70, s{r[5]}, s{r[1]}")
            A(f"s_sub_u32 s71, s{r[4]}, s{r[0]}")
            A(f"s_sub_u32 s72, s{r[2]}, s{r[1]}")
            A(f"s_sub_u32 s73, s{r[3]}, s{r[1]}")
            for i in range(4): A(f"v_mov_b32 v{32+i}, s{70+i}")
            A(f"s_and_b32 s71, s{sGRP}, {hex(0xfffffff0)}")
            A("s_mov_b64 exec, 1")
            A(f"buffer_store_dwordx4 v[32:35], off, {srd(sDBG)}, s71 sc1")
            A("s_endpgm")
        if o.stamp and not o.dbgst:
            A("s_waitcnt vmcnt(0)")
            A(f"s_cmp_lg_u32 s{sW}, {o.stw}")
            A("s_cbranch_scc1 L_end")
            s.stamp("end"); s.stamp("cend", True)
            A("s_waitcnt lgkmcnt(0)")
            n = len(o.stamps.split(","))
            assert n <= len(STAMP_REGS)
            if o.diagd:
                na, nb, kk = o.diagd.split(",")
                nm = o.stamps.split(",")
                ra, rb, re_ = (STAMP_REGS[nm.index(x)] for x in (na, nb, "end"))
                A(f"s_sub_u32 s70, s{rb}, s{ra}")
                A(f"s_mul_i32 s70, s70, {kk}")
                A("s_min_u32 s70, s70, 50000")
                s.lab("L_dg")
                A("s_memrealtime s[72:73]")
                A("s_waitcnt lgkmcnt(0)")
                A(f"s_sub_u32 s71, s72, s{re_}")
                A("s_cmp_lt_u32 s71, s70")
                A("s_cbranch_scc1 L_dg ; @nottaken")
            A("s_lshl_b32 s70, s2, 8")
            A(f"s_add_u32 s70, s70, {STAMP_BASE}")
            A("s_mov_b64 exec, 1")
            for i in range(n):
                r = STAMP_REGS[i]
                A(f"v_mov_b32 v32, s{r}"); A(f"v_mov_b32 v33, s{r+1}")
                A(f"buffer_store_dwordx2 v[32:33], off, {srd(sWS)}, s70 offset:{8*i}")
                A("s_nop 1")
        A("s_endpgm")
        s.emit(tg2_slow)
        if o.xs:
            s.lab("B_wb")
            A("buffer_wbl2 sc1")
            A("s_waitcnt vmcnt(0)")
            A("s_branch B_wbr")
        s.lab("B_slow0")
        A(f"s_mov_b32 s{sSPIN}, 0")
        s.lab("B_slow0l")
        s.emit(mid_poll(True))
        A("s_waitcnt vmcnt(0)")
        s.emit(mid_check())
        A("s_cbranch_scc1 B_slow0r ; @taken" if not (o.abl & 32) else "s_nop 0")
        A(f"s_add_u32 s{sSPIN}, s{sSPIN}, 1")
        A(f"s_cmp_lt_u32 s{sSPIN}, {o.spin}")
        A("s_cbranch_scc1 B_slow0l")
        A("s_branch B_slow0r" if not (o.abl & 32) else "s_endpgm")
        s.lab("B_slow1")
        A(f"s_lshl_b32 s72, s{sW}, 2")
        A(f"s_add_u32 s72, s72, {FLAG_BASE + 32}")
        wave_poll(21, "slow1l", drain=False)
        A("s_branch B_slow1r" if not (o.abl & 4) else "s_endpgm")
        if o.tail in (2, 3) or o.t1p:
            s.lab("B_slow2")
            A(f"s_lshl_b32 s72, s{sW}, 2")
            A(f"s_add_u32 s72, s72, {FLAG_BASE}")
            wave_poll(21, "slow2l", drain=False)
            A("s_branch B_slow2r")

    def build(s):
        s.common()
        s.waveA()
        s.waveB()
        s.lab("L_end")
        s.A("s_endpgm")
        lines = [l for l in s.L if l is not None]
        cfgs = []
        for wave in (0, 1, 3, 4, 5, 7):
            cfgs.append((f"wg5w{wave}", {2: 5}, {"WAVE": wave, "POLL": 0x03030303, "POLL3": 0x03030303}))
        cfgs.append(("allresc", {2: 5}, {"WAVE": 1, "ALLRESC": 1}))
        cfgs.append(("extra", {2: 256}, {"WAVE": 0}))
        lines = asmlib.finalize(lines, cfgs, verbose=True)
        return "\n".join(lines)

if __name__ == "__main__":
    ap = argparse.ArgumentParser()
    ap.add_argument("-o", default="k8.s")
    ap.add_argument("--stamp", action="store_true")
    ap.add_argument("--cyc", action="store_true")
    ap.add_argument("--stamps", default="start,pro,s8,E,poll1,oproj,pst,poll2,end")
    ap.add_argument("--nt", type=int, default=1)
    ap.add_argument("--prioA", type=int, default=0)
    for n_ in ("ntw", "ntx", "nto", "nths", "nthl"): ap.add_argument("--" + n_, type=int, default=0)
    ap.add_argument("--astamp", type=int, default=-1)
    ap.add_argument("--la", type=int, default=6)
    ap.add_argument("--nbub", type=int, default=3)
    ap.add_argument("--rot", type=int, default=1)
    ap.add_argument("--k0at", type=int, default=5)
    ap.add_argument("--p1at", type=int, default=7)
    ap.add_argument("--pf", type=int, default=0)
    ap.add_argument("--f0", default="{13: [1], 14: [2], 15: [3]}")
    ap.add_argument("--po0", type=int, default=11)
    ap.add_argument("--defer", type=int, default=1)
    ap.add_argument("--cpf", type=int, default=1)
    ap.add_argument("--dbgst", type=int, default=0)
    ap.add_argument("--g2at", type=int, default=8)
    ap.add_argument("--order", default="wfkp")
    ap.add_argument("--spin", type=int, default=131072)
    ap.add_argument("--outsc", type=int, default=0)
    ap.add_argument("--osc", type=int, default=15)
    ap.add_argument("--wb", type=int, default=0)
    ap.add_argument("--ntq", default="[]")
    ap.add_argument("--ntxc", default="[]")
    ap.add_argument("--ntoc", default="[]")
    ap.add_argument("--ablw", default="[]")
    ap.add_argument("--fl0at", type=int, default=0)
    ap.add_argument("--s0sp", default="")
    ap.add_argument("--tail", type=int, default=1)
    ap.add_argument("--s0at", type=int, default=9)
    ap.add_argument("--fpre", type=int, default=0)
    ap.add_argument("--abl", type=int, default=0)
    ap.add_argument("--w0i", default="{7: [(0,0)], 8: [(0,1)], 11: [(1,0)], 12: [(1,1), (2,0)], 13: [(2,1)], 14: [(3,0)], 15: [(3,1)]}")
    ap.add_argument("--w0u", default="{9: [(0,0)], 10: [(0,1)], 15: [(1,0), (1,1)], 16: [(2,0), (2,1)]}")
    ap.add_argument("--w1i", default="{15: [(0,0)], 16: [(1,0), (1,1)]}")
    ap.add_argument("--ords", default="{}")
    ap.add_argument("--ilv", type=int, default=0)
    ap.add_argument("--ilv0", type=int, default=1)
    ap.add_argument("--wrot", type=int, default=0)
    ap.add_argument("--cl", type=int, default=0)
    ap.add_argument("--fgl", type=int, default=0)
    ap.add_argument("--pro2", type=int, default=0)
    ap.add_argument("--dq", type=int, default=0)
    ap.add_argument("--apf", default="{}")
    ap.add_argument("--apfpos", type=int, default=0)
    ap.add_argument("--apfnt", default="")
    ap.add_argument("--t3a", type=int, default=0)
    ap.add_argument("--t3p", type=int, default=0)
    ap.add_argument("--t3g", type=int, default=0)
    ap.add_argument("--lead", type=int, default=0)
    ap.add_argument("--pro2a", type=int, default=0)
    ap.add_argument("--s7f", type=int, default=0)
    ap.add_argument("--r3", type=int, default=0)
    ap.add_argument("--q0at", type=int, default=5)
    ap.add_argument("--p2g", type=int, default=0)
    ap.add_argument("--bkv", default="{}")
    ap.add_argument("--p2at", type=int, default=99)
    ap.add_argument("--wbn", type=int, default=0)
    ap.add_argument("--kpf", type=int, default=0)
    ap.add_argument("--kpf0", default="[]")
    ap.add_argument("--kpfnt", default=" nt")
    ap.add_argument("--kpfn", type=int, default=1)
    ap.add_argument("--tg", type=int, default=0)
    ap.add_argument("--krot", type=int, default=0)
    ap.add_argument("--tge", type=int, default=-1)
    ap.add_argument("--tgd", type=int, default=1)
    ap.add_argument("--apre", type=int, default=0)
    ap.add_argument("--t1p", type=int, default=0)
    ap.add_argument("--abar", type=int, default=0)
    ap.add_argument("--stw", type=int, default=0)
    ap.add_argument("--mf", default="[]")
    ap.add_argument("--prioB", default="{}")
    ap.add_argument("--xs", type=int, default=0)
    ap.add_argument("--mp", type=int, default=8)
    ap.add_argument("--diagx", type=int, default=0)
    ap.add_argument("--diagd", default="")
    o = ap.parse_args()
    if o.xs:
        if o.xs < 3: o.lead = 0
        o.osc &= ~3
    g = Gen(o)
    body = g.build()
    k = kernel_text(NAME + "_kernel", body, vgpr=256)
    hdr = ["; @launch grid=(256,1,1) block=(512,1,1) lds=163840"]
    if o.stamp and not o.dbgst: hdr.append("; STAMPS " + o.stamps)
    if o.astamp >= 0: hdr.append("; ASTAMP")
    if o.cyc: hdr.append("; STAMPCYC")
    open(o.o, "w").write(file_text(hdr, [k]))
    print("wrote", o.o, len(body.splitlines()), "lines")
```

```python
import sys, argparse, struct
from gen_common import *
import asmlib

P = [0, 32768, 65536]
W = [98304, 114688, 131072, 147456]
UNIT = 28672
PART_BASE = 16 << 20
PSZ = 14336
STAMP_BASE = 128 << 20
FLAG_BASE = 32 << 20
NONCE_BASE = FLAG_BASE + 65536
THR = 12.0

sK, sV, sWQ, sX, sWS, sWO, sOUT, sDBG = 4, 8, 12, 16, 20, 24, 28, 32
sWAVE, sW, sBR, sHG, sB, sHP, sH0, sKV = 62, 63, 64, 65, 66, 67, 68, 69
sXB, sPEND = 72, 73
sEV, sTHR, sPAT = 74, 75, 76
sSTEP, sROT, sNEG, sOBASE = 77, 78, 79, 80
sW4K, sWQB, sKVW, sWOB, sGRP, sMYB = 81, 82, 83, 84, 85, 86
sSPIN = 87
sEXLO, sEXHI = 88, 89
sPOS = 3
sWP, sOP = 54, 58
STAMP_REGS = [90, 92, 94, 96, 98, 100] + list(range(36, 52, 2))

def srd(r): return f"s[{r}:{r+3}]"
def vr(a, n=1): return f"v{a}" if n == 1 else f"v[{a}:{a+n-1}]"
def fbits(x): return struct.unpack('<I', struct.pack('<f', x))[0]
CSCALE = (128 ** -0.5) * 1.4426950408889634

class Q:
    def __init__(s, maxn): s.q = []; s.maxn = maxn
    def issue(s, tag):
        s.q.append(tag)
        assert len(s.q) <= s.maxn, ("counter overflow", s.q)
    def wait(s, tags):
        if isinstance(tags, str): tags = [tags]
        last = -1
        for i, t in enumerate(s.q):
            if t in tags: last = i
        if last < 0: return None
        n = len(s.q) - 1 - last
        s.q = s.q[last + 1:]
        return n
    def drain(s): s.q = []

def spread(slots, items, start=0, end=None):
    if end is None: end = len(slots)
    n = end - start
    m = len(items)
    for i, it in enumerate(items):
        k = start + (i * n) // m
        slots[k].extend(it)

class Gen:
    def __init__(s, opt):
        s.L = []; s.opt = opt
        f = lambda b: " nt" if b else ""
        s.ntw, s.ntx, s.nto, s.nths, s.nthl = f(opt.ntw), f(opt.ntx), f(opt.nto), f(opt.nths), f(opt.nthl)
        c = lambda b: " sc1" if b else ""
        s.ost0, s.ost1, s.ofl0, s.ofl1 = c(opt.osc & 1), c(opt.osc & 2), c(opt.osc & 4), c(opt.osc & 8)
    def A(s, t): s.L.append("  " + t)
    def lab(s, n): s.L.append(n + ":")
    def emit(s, lines):
        for l in lines:
            if l.endswith(":"): s.L.append(l)
            else: s.L.append("  " + l)
    def stamp_lines(s, name, cyc=False):
        if not s.opt.stamp: return []
        names = s.opt.stamps.split(",")
        if name not in names: return []
        r = STAMP_REGS[names.index(name)]
        if name == "hwid": return [f"s_getreg_b32 s{r}, hwreg(HW_REG_XCC_ID)", f"s_getreg_b32 s{r+1}, hwreg(HW_REG_HW_ID)"]
        cyc = cyc or s.opt.cyc or (s.opt.dbgst and name not in ("start", "end"))
        return [f"s_mem{'time' if cyc else 'realtime'} s[{r}:{r+1}]"]
    def stamp(s, name, cyc=False): s.emit(s.stamp_lines(name, cyc))
    def capture(s, fn):
        old = s.L; s.L = []
        fn()
        out = [l if l.endswith(":") else l.strip() for l in s.L]; s.L = old
        return out
    def ast(s, i):
        return [f"s_memtime s[{36+2*i}:{37+2*i}]"] if s.opt.astamp >= 0 else []

    def common(s):
        A = s.A
        A("s_cmp_ge_u32 s2, 256")
        A("s_cbranch_scc1 L_end")
        s.stamp("start"); s.stamp("cstart", True); s.stamp("hwid")
        if s.opt.diagx:
            A("s_getreg_b32 s70, hwreg(HW_REG_XCC_ID)")
            A("s_and_b32 s70, s70, 15")
            A("s_and_b32 s71, s2, 7")
            A("s_cmp_eq_u32 s70, s71")
            A("s_cbranch_scc1 L_diag ; @taken")
            for _ in range(s.opt.diagx): A("s_sleep 127")
            s.lab("L_diag")
        A("s_load_dwordx16 s[36:51], s[0:1], 0")
        A("s_load_dwordx8 s[52:59], s[0:1], 64")
        A("s_load_dwordx2 s[60:61], s[0:1], 96")
        A("v_lshrrev_b32 v1, 6, v0")
        A("s_and_b32 s70, s2, 7")
        A("s_lshr_b32 s71, s2, 3")
        if s.opt.cpf:
            KN = NAME + "_kernel"
            A("s_getpc_b64 s[84:85]")
            s.lab("L_pc")
            A(f"s_sub_u32 s84, s84, L_pc-{KN}")
            A("s_subb_u32 s85, s85, 0")
            A("v_lshlrev_b32 v2, 7, v1")
            A("v_and_b32 v3, 31, v0")
            A("v_lshlrev_b32 v3, 2, v3")
            A("v_add_u32 v2, v2, v3")
            if s.opt.cpf == 2:
                A("v_and_b32 v3, 32, v0")
                A("v_lshlrev_b32 v3, 10, v3")
                A("v_add_u32 v2, v2, v3")
            A("s_lshl_b32 s72, s71, 10")
            A("v_add_u32 v2, s72, v2")
            A(f"v_min_u32 v2, L_end-{KN}, v2")
            if s.opt.pro2:
                A("v_and_b32 v25, 63, v0")
                A("global_load_dword v0, v2, s[84:85]")
            else: A("global_load_dword v63, v2, s[84:85]")
        A(f"v_readfirstlane_b32 s{sWAVE}, v1 ; @val=WAVE")
        A(f"s_lshr_b32 s{sBR}, s70, 2")
        A(f"s_and_b32 s{sHG}, s70, 3")
        if s.opt.hgx: A(f"s_xor_b32 s{sHG}, s{sHG}, {s.opt.hgx}")
        A(f"s_and_b32 s{sB}, s71, 7")
        A(f"s_lshr_b32 s{sHP}, s71, 3")
        A(f"s_lshl_b32 s{sH0}, s{sHG}, 3")
        A(f"s_lshl_b32 s70, s{sHP}, 1")
        A(f"s_add_u32 s{sH0}, s{sH0}, s70")
        A(f"s_add_u32 s{sROT}, s{sB}, s70")
        if not s.opt.rot: A(f"s_mov_b32 s{sROT}, 0")
        R_ = f"s{sROT}"
        if s.opt.rot == 2: s.emit([f"s_xor_b32 {R_}, s{sB}, s{sHP}", f"s_and_b32 {R_}, {R_}, 1", f"s_lshl_b32 {R_}, {R_}, 2"])
        if s.opt.rot == 3: s.emit([f"s_add_u32 {R_}, s{sB}, s{sHP}", f"s_and_b32 {R_}, {R_}, 3", f"s_lshl_b32 {R_}, {R_}, 1"])
        if s.opt.rot == 4: s.emit([f"s_and_b32 {R_}, s{sB}, 3", f"s_lshl_b32 {R_}, {R_}, 1"])
        if s.opt.rot == 5: s.emit([f"s_lshl_b32 {R_}, s{sHP}, 1"])
        if s.opt.rot == 6: s.emit([f"s_mov_b32 {R_}, s{sB}"])
        if s.opt.rot == 7: s.emit([f"s_and_b32 {R_}, s{sB}, 1", f"s_lshl_b32 {R_}, {R_}, 2"])
        if s.opt.rot == 8: s.emit([f"s_lshl_b32 {R_}, s{sHP}, 2", f"s_add_u32 {R_}, {R_}, s{sB}"])
        A(f"s_and_b32 s{sW}, s{sWAVE}, 3")
        A(f"s_lshl_b32 s{sW4K}, s{sW}, 12")
        A("v_mov_b32 v1, v25" if (s.opt.pro2 and s.opt.cpf) else "v_and_b32 v1, 63, v0")
        A("v_lshrrev_b32 v19, 4, v1")
        A("v_and_b32 v20, 15, v1")
        A("v_lshlrev_b32 v21, 2, v19")
        A("v_xor_b32 v21, v20, v21")
        A("v_lshlrev_b32 v21, 4, v21")
        A("v_lshrrev_b32 v17, 5, v1")
        A("v_and_b32 v18, 3, v1")
        A("v_lshlrev_b32 v2, 13, v19")
        A("v_add_u32 v2, v2, v21")
        A("v_lshrrev_b32 v22, 3, v1")
        A("v_lshlrev_b32 v22, 10, v22")
        A("v_and_b32 v23, 7, v1")
        A("v_xor_b32 v23, v23, v19")
        A("v_lshlrev_b32 v24, 4, v23")
        A("v_add_u32 v3, v22, v24")
        A("v_xor_b32 v24, 64, v24")
        A("v_add_u32 v4, v22, v24")
        for r, sz in ((sK, 33554432), (sV, 33554432), (sWQ, 4194304), (sWS, 268435456), (sWO, 4194304), (sOUT, 1835008), (sDBG, 256)):
            A(f"s_mov_b32 s{r+2}, {sz}")
            A(f"s_mov_b32 s{r+3}, 0x20000")
        A(f"s_mov_b32 s{sX+3}, 0x20000")
        A(f"s_lshl_b32 s70, s{sW}, 17")
        A(f"s_lshl_b32 s71, s{sH0}, 8")
        A(f"s_add_u32 s{sWQB}, s70, s71")
        A(f"s_mul_i32 s70, s{sB}, 112")
        A(f"s_add_u32 s71, s70, 112")
        A(f"s_lshl_b32 s{sX+2}, s71, 10")
        A(f"s_lshl_b32 s71, s{sW}, 5")
        A("s_add_u32 s70, s70, s71")
        A(f"s_lshl_b32 s{sXB}, s70, 10")
        A(f"s_lshl_b32 s70, s{sB}, 5")
        A(f"s_add_u32 s70, s70, s{sH0}")
        A(f"s_lshl_b32 s{sKV}, s70, 17")
        A(f"s_add_u32 s{sKVW}, s{sKV}, s{sW4K}")
        A(f"s_cmp_eq_u32 s{sBR}, 0")
        A("s_waitcnt lgkmcnt(0)")
        s.stamp("k")
        for r, a, b in ((sX, 36, 46), (sWQ, 42, 52), (sK, 38, 48), (sV, 40, 50), (sWO, 44, 54)):
            A(f"s_cselect_b32 s{r}, s{a}, s{b}")
            A(f"s_cselect_b32 s{r+1}, s{a+1}, s{b+1}")
        for r, a in ((sOUT, 56), (sDBG, 58), (sWS, 60)):
            A(f"s_mov_b32 s{r}, s{a}")
            A(f"s_mov_b32 s{r+1}, s{a+1}")
        kr = s.opt.krot
        if kr == 1: A(f"s_lshl_b32 s52, s{sB}, 14")
        if kr == 2: s.emit([f"s_lshl_b32 s52, s{sHP}, 1", f"s_add_u32 s52, s52, s{sB}", f"s_add_u32 s52, s52, s{sHG}", "s_lshl_b32 s52, s52, 14"])
        if kr == 3: s.emit([f"s_lshl_b32 s52, s{sHP}, 1", f"s_and_b32 s53, s{sHG}, 1", "s_add_u32 s52, s52, s53", "s_lshl_b32 s52, s52, 14"])
        if kr == 4: s.emit([f"s_lshl_b32 s52, s{sHG}, 1", f"s_add_u32 s52, s52, s{sBR}", "s_lshl_b32 s52, s52, 14"])
        if kr == 5: s.emit([f"s_lshl_b32 s52, s{sB}, 1", f"s_lshr_b32 s53, s{sB}, 2", "s_add_u32 s52, s52, s53", f"s_add_u32 s52, s52, s{sHP}", f"s_lshl_b32 s53, s{sHG}, 1", "s_add_u32 s52, s52, s53", "s_lshl_b32 s52, s52, 14"])
        if kr == 7: s.emit([f"s_and_b32 s52, s{sB}, 1", "s_lshl_b32 s52, s52, 17", "s_sub_u32 s53, 131072, s52"])
        if kr == 8: s.emit([f"s_and_b32 s52, s{sHP}, 1", "s_lshl_b32 s52, s52, 17", "s_sub_u32 s53, 131072, s52"])
        if kr == 9: s.emit([f"s_and_b32 s52, s{sHG}, 1", "s_lshl_b32 s52, s52, 17", "s_sub_u32 s53, 131072, s52"])
        if kr == 10: s.emit([f"s_mov_b32 s52, 131072", "s_mov_b32 s53, 0"])
        if kr == 6: s.emit([f"s_and_b32 s52, s{sB}, 1", "s_lshl_b32 s52, s52, 16"])
        A(f"s_cmp_ge_u32 s{sWAVE}, 4")
        A("s_cbranch_scc1 L_B")

    def late_scalars(s):
        A = s.A
        A(f"s_lshl_b32 s70, s{sBR}, 3")
        A(f"s_add_u32 s70, s70, s{sB}")
        A(f"s_lshl_b32 s71, s70, 5")
        A(f"s_add_u32 s71, s71, s{sH0}")
        A(f"s_mul_i32 s{sOBASE}, s71, {UNIT}")
        A(f"s_lshl_b32 s71, s70, 2")
        A(f"s_add_u32 s71, s71, s{sHG}")
        A(f"s_lshl_b32 s{sGRP}, s71, 2")
        A(f"s_add_u32 s{sMYB}, s{sGRP}, s{sHP}")
        A(f"s_cmp_eq_u32 s{sW}, 3")
        A(f"s_cselect_b32 s{sEXLO}, 0xffff, -1")
        A(f"s_mov_b32 s{sEXHI}, s{sEXLO}")

    def kv_voffs(s, vK, vV):
        A = s.A
        A("v_lshlrev_b32 v22, 8, v19")
        A(f"v_add_u32 v{vV}, v22, v21")
        for t in range(4):
            A(f"v_add_u32 v23, {4*t}, v19")
            A(f"v_xor_b32 v23, v20, v23")
            A(f"v_lshlrev_b32 v23, 4, v23")
            A(f"v_add_u32 v{vK+t}, v22, v23")

    def flag_store(s, val, vtmp):
        A = s.A
        A(f"v_mov_b32 v{vtmp}, {val}")
        A("s_mov_b64 exec, 1")
        A(f"buffer_store_byte v{vtmp}, off, {srd(sDBG)}, s{sMYB} sc1")
        A("s_mov_b64 exec, -1")

    def xcc_byte(s, d):
        return [f"s_getreg_b32 s{d}, hwreg(HW_REG_XCC_ID)", f"s_and_b32 s{d}, s{d}, 15", f"s_lshl_b32 s{d}, s{d}, 1", f"s_or_b32 s{d}, s{d}, 1"]
    def kv_addr(s, j):
        if not s.opt.krot: return [f"s_add_u32 s70, s{sKVW}, {j*16384}"]
        if s.opt.krot >= 7: return [f"s_add_u32 s70, s{sKVW}, s{52 + (j >> 3)}", f"s_add_u32 s70, s70, {(j & 7) << 14}"]
        r = [f"s_add_u32 s70, s52, {(j & 7) << 14}", "s_and_b32 s70, s70, 0x1c000", f"s_add_u32 s70, s70, s{sKVW}"]
        if j >= 8: r.append("s_add_u32 s70, s70, 131072")
        return r
    def dma_k(s, j, vK, nt, tag):
        g = []
        for t in range(4):
            pre = [f"s_add_u32 m0, s{sW4K}, {P[j%3]}"] + s.kv_addr(j) if t == 0 else []
            if t and s.opt.ilv: pre = [f"s_add_u32 m0, s{sW4K}, {P[j%3]}", "s_nop 0"]
            g.append((tag, pre + [f"buffer_load_dwordx4 v{vK+t}, {srd(sK)}, s70 offen offset:{t*1024}{nt} lds"]))
        return g
    def dma_v(s, j, vV, nt, tag):
        g = []
        for t in range(4):
            pre = [f"s_add_u32 m0, s{sW4K}, {P[j%3]+16384}"] + s.kv_addr(j - 1) if t == 0 else []
            if t and s.opt.ilv: pre = [f"s_add_u32 m0, s{sW4K}, {P[j%3]+16384}", "s_nop 0"]
            g.append((tag, pre + [f"buffer_load_dwordx4 v{vV}, {srd(sV)}, s70 offen offset:{t*1024}{nt} lds"]))
        return g
    def kc_lines(s, c, dst):
        return [f"s_add_u32 s{dst}, s{sROT}, {c}", f"s_and_b32 s{dst}, s{dst}, 7"]
    def dma_wq(s, c, slot, vW, tag, extra, tmp):
        g = []
        for t in range(4):
            pre = []
            if t == 0:
                pre = s.kc_lines(c, tmp) + [f"s_lshl_b32 s{tmp}, s{tmp}, 19", f"s_add_u32 s{tmp}, s{tmp}, s{sWQB}",
                                            f"s_add_u32 m0, s{sW4K}, {slot}"]
            elif s.opt.ilv: pre = [f"s_add_u32 m0, s{sW4K}, {slot}"]
            g.append((tag, pre + [f"s_add_u32 s71, s{tmp}, {extra + t*31744}",
                                  f"buffer_load_dwordx4 v{vW}, {srd(sWQ)}, s71 offen offset:{t*1024}{' nt' if (tag in eval(s.opt.ntq)) else s.ntw} lds"]))
        return g

    def waveA(s):
        A = s.A; o = s.opt
        nt = " nt" if o.nt else ""
        Q_, SB, Pr, O, WIN, NM = 0, [32, 64], 96, 112, 176, 208
        KA, VA, QA, OV, RL = 224, 232, 236, 237, 238
        LS, AL, T = 240, 242, 244
        vK, vV = 5, 9
        q = Q(63)
        PX = [W[0], W[2], P[2]] if o.r3 else [P[1], P[2], W[0], W[2]]
        NR = len(PX)
        def dma_x(c):
            g = []
            for t in range(4):
                pre = []
                if t == 0:
                    pre = s.kc_lines(c, 87) + ["s_lshl_b32 s87, s87, 7", f"s_add_u32 s87, s87, s{sXB}", f"s_add_u32 m0, s{sW4K}, {PX[c%NR]}"]
                g.append((f"C{c}", pre + [f"s_add_u32 s71, s87, {t*7168}",
                                          f"buffer_load_dwordx4 v{3 + (t&1)}, {srd(sX)}, s71 offen offset:{t*1024}{' nt' if (c in eval(o.ntxc)) else s.ntx} lds"]))
            return g
        def issue(groups):
            for tag, ins in groups:
                q.issue(tag); s.emit(ins)
        def chunk(c): return dma_x(c) + s.dma_wq(c, PX[c % NR] + 16384, 2, f"C{c}", 0, 87)
        issue(chunk(0))
        s.stamp("a0")
        issue(chunk(1))
        if o.k0at < 0:
            s.kv_voffs(vK, vV)
            issue(s.dma_k(0, vK, nt, "K0"))
            if o.p1at < 0: issue(s.dma_k(1, vK, nt, "KV1") + s.dma_v(1, vV, nt, "KV1"))
        segs = []
        capL = s.L
        if o.pro2a: s.L = []
        def cut():
            if o.pro2a:
                segs.append(s.L); s.L = []
        s.late_scalars()
        if o.k0at >= 0: s.kv_voffs(vK, vV)
        cut()
        if o.tail == 12:
            A(f"s_lshl_b32 s70, s{sHG}, 20")
            A(f"s_lshl_b32 s71, s{sW}, 14")
            A("s_add_u32 s70, s70, s71")
            A(f"s_lshl_b32 s71, s{sHP}, 8")
            A("s_add_u32 s46, s70, s71")
            A(f"s_mul_i32 s47, s{sB}, 11")
            A("s_lshr_b32 s47, s47, 5")
            A("s_mul_i32 s47, s47, 3")
            A(f"s_sub_u32 s47, s{sB}, s47")
            if not (o.wrot & 1): A("s_mov_b32 s47, 0")
            A(f"s_lshl_b32 s70, s{sBR}, 3")
            A(f"s_add_u32 s70, s70, s{sB}")
            A("s_lshl_b32 s70, s70, 5")
            A(f"s_add_u32 s70, s70, s{sH0}")
            A(f"s_lshl_b32 s71, s{sHP}, 1")
            A("s_sub_u32 s70, s70, s71")
            A(f"s_mul_i32 s55, s70, {UNIT}")
            for p in range(1, 4):
                A(f"s_add_u32 s70, s47, {p - 1}")
                A("s_sub_u32 s71, s70, 3")
                A("s_cmp_ge_u32 s70, 3")
                A("s_cselect_b32 s70, s71, s70")
                A(f"s_add_u32 s70, s70, s{sHP}")
                A("s_add_u32 s70, s70, 1")
                A("s_and_b32 s70, s70, 3")
                A("s_lshl_b32 s71, s70, 18")
                A(f"s_add_u32 s{40+p}, s46, s71")
                A(f"s_mul_i32 s71, s70, {2*UNIT}")
                A(f"s_add_u32 s{49+p}, s55, s71")
                A(f"s_add_u32 s{49+p}, s{49+p}, {UNIT}")
            A(f"s_lshl_b32 s71, s{sHP}, 18")
            A("s_add_u32 s40, s46, s71")
            A(f"s_and_b32 s70, s{sB}, 1")
            if not (o.wrot & 2): A("s_mov_b32 s70, 0")
            A("s_lshl_b32 s44, s70, 16")
            A("s_sub_u32 s45, 65536, s44")
            A("s_mul_i32 s53, s70, 14336")
            A("s_sub_u32 s54, 14336, s53")
            A(f"s_lshl_b32 s48, s{sW}, 2")
            A(f"s_add_u32 s48, s48, {FLAG_BASE}")
            cut()
        A("v_and_b32 v10, 31, v1")
        A("v_lshlrev_b32 v10, 8, v10")
        A("v_xor_b32 v11, v17, v20")
        for k in range(8):
            A(f"v_xor_b32 v12, {2*k}, v11")
            A(f"v_lshlrev_b32 v12, 4, v12")
            A(f"v_add_u32 v{KA+k}, v10, v12")
        cut()
        A("v_lshrrev_b32 v10, 2, v20")
        A("v_and_b32 v11, 1, v19")
        A("v_lshlrev_b32 v12, 10, v17")
        A("v_lshlrev_b32 v13, 8, v10")
        A("v_add_u32 v12, v12, v13")
        A("v_lshlrev_b32 v13, 5, v11")
        A("v_add_u32 v12, v12, v13")
        A("v_and_b32 v13, 1, v18")
        A("v_lshlrev_b32 v13, 4, v13")
        A("v_add_u32 v12, v12, v13")
        A("v_lshrrev_b32 v13, 1, v18")
        A("v_lshlrev_b32 v13, 3, v13")
        A("v_add_u32 v12, v12, v13")
        A("v_add_u32 v12, 16384, v12")
        for D in range(4):
            A(f"v_xor_b32 v13, {D}, v10")
            A(f"v_lshlrev_b32 v13, 6, v13")
            A(f"v_add_u32 v{VA+D}, v12, v13")
        cut()
        A(f"s_lshl_b32 s70, s{sW}, 13")
        A(f"s_add_u32 s70, s70, {W[0]}")
        A(f"v_lshlrev_b32 v{QA}, 4, v1")
        A(f"v_add_u32 v{QA}, s70, v{QA}")
        A(f"v_mul_u32_u24 v{OV}, 112, v17")
        A(f"v_and_b32 v12, 31, v1")
        A(f"v_add_u32 v{OV}, v{OV}, v12")
        A(f"s_lshl_b32 s70, s{sW}, 5")
        A(f"v_add_u32 v{OV}, s70, v{OV}")
        A(f"v_lshlrev_b32 v{OV}, 4, v{OV}")
        for i in range(8): A(f"v_mov_b64 {vr(NM+2*i,2)}, 0")
        A(f"v_mov_b64 {vr(LS,2)}, 0")
        A(f"s_mov_b32 s{sEV}, {hex((1<<0)|(1<<8)|(1<<1)|(1<<7))}")
        A(f"s_mov_b32 s{sPAT}, {hex(sum(1 << i for i in range(2, 17, 3)))}")
        A(f"s_mov_b32 s{sNEG}, 0xffff0000")
        A(f"s_mov_b32 s{sPOS}, 32768")
        A(f"s_mov_b32 s{sTHR}, {hex(fbits(THR))}")
        A(f"s_mov_b32 s{sSTEP}, 0")
        A(f"s_mov_b32 s{sPEND}, 0")
        A(f"s_add_u32 s{sOBASE}, s{sOBASE}, {UNIT}")
        if o.kpf:
            A(f"s_cmp_lt_u32 s{sW}, 2")
            A(f"s_cselect_b32 s56, s{sK}, s{sV}")
            A(f"s_cselect_b32 s57, s{sK+1}, s{sV+1}")
            A(f"s_cselect_b32 s60, 0, {hex((-16384) & 0xffffffff)}")
            A(f"s_cselect_b32 s61, {15 - 2 - o.kpf + 1}, {16 - 2 - o.kpf + 1}")
            A("s_mov_b32 s58, 33554432")
            A("s_mov_b32 s59, 0x20000")
            A(f"s_add_u32 s60, s60, s{sKV}")
            A(f"s_and_b32 s70, s{sW}, 1")
            A("s_lshl_b32 s70, s70, 13")
            A("s_add_u32 s60, s60, s70")
            A(f"s_add_u32 s60, s60, {(2 + o.kpf) * 16384}")
            A("v_lshlrev_b32 v255, 7, v1")
        if o.xs in (1, 2):
            A("v_lshlrev_b32 v14, 2, v1")
            A(f"s_lshl_b32 s70, s{sMYB}, 7")
            A(f"s_add_u32 s70, s70, {FLAG_BASE}")
            A("s_mov_b64 exec, 0xfff")
            A(f"buffer_store_dword v{NM}, v14, {srd(sWS)}, s70 offen sc1")
            A("s_mov_b64 exec, -1")
        cut()
        if o.pro2a: s.L = capL
        for k in range(8):
            n = q.wait(f"C{k}")
            if n is not None: A(f"s_waitcnt vmcnt({n})")
            s.stamp(f"aw{k}")
            A("s_barrier")
            if o.r3 == 2 and 1 <= k <= 6: A("s_barrier")
            if k + 2 < 8: issue(chunk(k + 2))
            bkv = eval(o.bkv)
            if k == o.k0at and 0 not in bkv: issue(s.dma_k(0, vK, nt, "K0"))
            if k == o.q0at and 'q' not in bkv: issue(s.dma_wq(0, P[0] + 16384, 2, "Q0", 256, 87))
            apf = eval(o.apf)
            def pf_groups(part):
                g = []
                pre = ["v_lshlrev_b32 v14, 4, v1", "s_lshr_b32 s70, s2, 3", "s_lshr_b32 s71, s70, 3", "s_lshl_b32 s71, s71, 18",
                       "s_and_b32 s70, s70, 7", "s_lshl_b32 s70, s70, 14", "s_add_u32 s70, s70, s71",
                       f"s_lshl_b32 s71, s{sHG}, 20", "s_add_u32 s70, s70, s71", f"s_add_u32 s70, s70, s{sW4K}"]
                if part: pre.append("s_add_u32 s70, s70, 131072")
                for t_ in range(4):
                    g.append(("PF", (pre if t_ == 0 else []) + [f"buffer_load_dwordx4 v[252:255], v14, {srd(sWO)}, s70 offen offset:{t_*1024}{o.apfnt} ; @dummy"]))
                return g
            if o.apfpos == 0:
                for part in apf.get(k, []): issue(pf_groups(part))
            for (kk_, when, j) in eval(o.kpf0):
                if kk_ == k and when == 0:
                    issue([("PF", [f"s_add_u32 s70, s60, {hex(((j - 2 - o.kpf) * 16384) & 0xffffffff)}",
                                   f"buffer_load_dword v254, v255, s[56:59], s70 offen{o.kpfnt} ; @dummy"])] +
                          [("PF", [f"buffer_load_dword v254, v255, s[56:59], s70 offen offset:{128 // o.kpfn * i_}{o.kpfnt} ; @dummy"]) for i_ in range(1, o.kpfn)])
            if k == o.p1at and 1 not in bkv: issue(s.dma_k(1, vK, nt, "KV1") + s.dma_v(1, vV, nt, "KV1"))
            if k == o.p2at: issue(s.dma_k(2, vK, nt, "KV2") + s.dma_v(2, vV, nt, "KV2"))
            for (kk_, when, j) in eval(o.kpf0):
                if kk_ == k and when == 1:
                    issue([("PF", [f"s_add_u32 s70, s60, {hex(((j - 2 - o.kpf) * 16384) & 0xffffffff)}",
                                   f"buffer_load_dword v254, v255, s[56:59], s70 offen{o.kpfnt} ; @dummy"])] +
                          [("PF", [f"buffer_load_dword v254, v255, s[56:59], s70 offen offset:{128 // o.kpfn * i_}{o.kpfnt} ; @dummy"]) for i_ in range(1, o.kpfn)])
            if o.apfpos == 1:
                for part in apf.get(k, []): issue(pf_groups(part))
            if k < len(segs): s.L += segs[k]
            if o.xs in (1, 2) and k == 3: q.issue("CLR")
        n0 = q.wait(["K0", "Q0"])
        if n0 is None: n0 = 63
        assert n0 == 8 or o.apf != "{}" or o.r3 or o.kpf or o.p2at <= 7, n0
        if o.kpf:
            for _ in range(o.kpfn): q.issue("PF")
        n1 = q.wait("KV1") if o.kpf else 0
        if n1 is None: n1 = 63
        if o.prioA: A(f"s_setprio {o.prioA}")

        U = T + 4
        def fin_D(D, dst):
            L = [f"v_mul_f32 v{O+16*D+i}, v{AL}, v{O+16*D+i}" for i in range(16)]
            L += [f"v_cvt_pk_bf16_f32 v{dst+8*D+i}, v{O+16*D+2*i}, v{O+16*D+2*i+1}" for i in range(8)]
            return L
        def step(par, last=False):
            cur, prev = SB[par], SB[1 - par]
            lq = Q(15)
            L = []
            def wl(tags):
                n = lq.wait(tags)
                return [f"s_waitcnt lgkmcnt({n})"] if n is not None else []
            def kread(i):
                T_, k = divmod(i, 8); lq.issue(f"K{i}")
                return [f"ds_read_b128 {vr(WIN + 4*(i % 8), 4)}, v{KA+k} offset:{T_*8192}"]
            vorder = [divmod(f, 4) for f in range(16)] if not last else [(t, D) for D in range(4) for t in range(4)]
            def vread(f):
                t, D = vorder[f]; r = []
                for a in range(2):
                    lq.issue(f"V{f}")
                    r.append(f"ds_read_b64_tr_b16 {vr(WIN + 4*(f % 8) + 2*a, 2)}, v{VA+D} offset:{t*4096 + a*2048}")
                return r
            exp = lambda r: [f"v_exp_f32 v{r}, v{r}"]
            add = lambda r: [f"v_add_f32 v{LS + (r & 1)}, v{LS + (r & 1)}, v{r}"]
            cvt = lambda t, i: [f"v_cvt_pk_bf16_f32 v{Pr+4*t+i}, v{prev+8*t+2*i}, v{prev+8*t+2*i+1}"]
            mx = lambda d, a, b, c: [f"v_max3_f32 v{d}, v{a}, v{b}, v{c}"]
            bub = []
            for i in range(4): bub += [cvt(0, i), add(prev + 2*i), add(prev + 2*i + 1)]
            for i in range(4): bub += [cvt(1, i), add(prev + 8 + 2*i), add(prev + 8 + 2*i + 1)]
            F1 = []
            e = [exp(prev + 16 + i) for i in range(16)]
            a_ = [add(prev + 16 + i) for i in range(16)]
            c2 = [cvt(2, i) for i in range(4)]; c3 = [cvt(3, i) for i in range(4)]
            F1 += [e[0], e[1], e[2]]
            for i in range(3, 16):
                F1 += [e[i], a_[i - 3]]
                if i in (5, 7, 9, 11): F1.append(c2[(i - 5) // 2])
                if i in (13, 15): F1.append(c3[(i - 13) // 2])
            F1 += [a_[13], c3[2], a_[14], a_[15], c3[3]]
            def maxT(base, d0, d1):
                return [mx(d0, base, base+1, base+2), mx(d1, base+8, base+9, base+10),
                        mx(d0, d0, base+3, base+4), mx(d1, d1, base+11, base+12),
                        mx(d0, d0, base+5, base+6), mx(d1, d1, base+13, base+14),
                        mx(d0, d0, base+7, base+15)]
            M0 = maxT(cur, U, U+1)
            M1 = maxT(cur+16, U+2, U+3)
            fin = [mx(U, U, U+1, U+2), [f"v_max_f32 v{U}, v{U}, v{U+3}"]]
            tagp = "e" if par == 0 else "o"
            chk = [f"v_cmp_lt_f32 vcc, s{sTHR}, v{U}",
                   f"s_nop 0",
                   f"s_cbranch_vccnz A_resc{tagp} ; @takenif={sTHR}:0xff800000",
                   f"A_resc{tagp}r:"]
            advK = [[f"v_add_u32 v{KA+k}, s70, v{KA+k}"] for k in range(8)]
            advV = [[f"v_add_u32 v{VA+D}, s70, v{VA+D}"] for D in range(4)]
            exps1 = [exp(cur+i) for i in range(16)]

            L += s.ast(1)
            if not last:
                for i in range(8): L += kread(i)
                for it in bub: L += it
                nb = o.nbub
                for it in F1[:nb]: L += it
                gaps = [[] for _ in range(16)]
                spread(gaps, F1[nb:], 0, 14)
                spread(gaps, M0, 10, 16)
                for i in range(16):
                    T_, k = divmod(i, 8)
                    if i % 2 == 0: L += wl([f"K{i}", f"K{i+1}"])
                    srcC = vr(NM, 16) if k == 0 else vr(cur + 16*T_, 16)
                    L.append(f"v_mfma_f32_32x32x16_bf16 {vr(cur+16*T_,16)}, {vr(WIN+4*(i%8),4)}, {vr(Q_+4*k,4)}, {srcC}")
                    if i + 8 < 16: L += kread(i + 8)
                    if i >= 9: L += vread(i - 9)
                    L += gaps[i]
                    if i == 7: L += s.ast(2)
                L += s.ast(3)
                vissued = 7
                gaps = [[] for _ in range(16)]
                spread(gaps, advK[:4], 0, 2)
                spread(gaps, M1 + fin, 2, 5)
                gaps[5] += chk
                spread(gaps, exps1, 5, 16)
                spread(gaps, advK[4:], 6, 10)
                spread(gaps, advV, 10, 14)
                L += [f"s_bitcmp1_b32 s{sPAT}, s{sSTEP}", f"s_cselect_b32 s70, s{sNEG}, s{sPOS}"]
            else:
                L += s.stamp_lines("a16")
                for f in range(7): L += vread(f)
                vissued = 7
                for it in bub: L += it
                for it in F1: L += it
                L += rl_lines(AL)
                L += s.stamp_lines("a16v")
                L.append(f"v_add_u32 v{QA}, {hex((P[0] - W[1]) & 0xffffffff)}, v{QA}")
                gaps = [[] for _ in range(16)]
                for D in range(3):
                    items = [[x] for x in fin_D(D, cur)] + [out_D(D, cur)]
                    spread(gaps, items, 4*D + 6 if D < 2 else 14, 4*D + 10 if D < 2 else 16)
            for f in range(16):
                t, D = vorder[f]
                if f % 2 == 0: L += wl([f"V{f}", f"V{f+1}"])
                L.append(f"v_mfma_f32_32x32x16_bf16 {vr(O+16*D,16)}, {vr(WIN+4*(f%8),4)}, {vr(Pr+4*t,4)}, {vr(O+16*D,16)}")
                if vissued < 16:
                    L += vread(vissued); vissued += 1
                L += gaps[f]
                if f == 6 and not last: L += s.ast(4)
            if not last:
                L += s.ast(5)
                L += [f"s_cmp_lg_u32 s{sPEND}, 0", f"s_cbranch_scc1 A_pend{tagp}", f"A_pend{tagp}r:"]
                L += s.ast(6)
                if s.opt.astamp >= 0:
                    L += ["s_waitcnt lgkmcnt(0)", f"s_cmp_eq_u32 s{sSTEP}, {s.opt.astamp}"]
                    L += [f"s_cselect_b32 s{50+i}, s{36+2*i}, s{50+i}" for i in range(7)]
            else:
                L += s.stamp_lines("a16m")
                L += fin_D(3, cur) + out_D(3, cur)
                L += s.stamp_lines("a16s")
            return L
        def out_D(D, src):
            L = []
            if o.tail == 12: L.append(f"s_mov_b64 exec, s[{sEXLO}:{sEXHI}]")
            for h in range(2):
                L.append(f"ds_write_b128 v{QA}, {vr(src+8*D+4*h,4)} offset:{(2*D+h)*1024}")
            if o.tail != 12: L.append(f"s_mov_b64 exec, s[{sEXLO}:{sEXHI}]")
            for h in range(2):
                L.append(f"s_add_u32 s71, s{sOBASE}, {(4*D+2*h)*1792}")
                L.append(f"buffer_store_dwordx4 {vr(src+8*D+4*h,4)}, v{OV}, {srd(sWS)}, s71 offen{s.ost1}{s.nths}")
            L.append("s_mov_b64 exec, -1")
            return L
        def rl_lines(dst):
            return [f"v_add_f32 v{T}, v{LS}, v{LS+1}", f"v_mov_b32 v{T+1}, v{T}", f"v_permlane32_swap_b32 v{T}, v{T+1}",
                    f"v_add_f32 v{T}, v{T}, v{T+1}", f"v_rcp_f32 v{dst}, v{T}"]

        s.lab("A_loop")
        for par in range(2):
            tagp = "e" if par == 0 else "o"
            s.emit(s.ast(0))
            A(f"s_bitcmp1_b32 s{sEV}, s{sSTEP}")
            A(f"s_cbranch_scc1 A_top{tagp}")
            A("s_barrier")
            s.lab(f"A_top{tagp}r")
            if o.kpf:
                A(f"s_cmp_lt_u32 s{sSTEP}, s61")
                A(f"s_cbranch_scc0 A_npf{tagp}")
                for i_ in range(o.kpfn):
                    A(f"buffer_load_dword v254, v255, s[56:59], s60 offen offset:{128 // o.kpfn * i_}{o.kpfnt} ; @dummy")
                A("s_add_u32 s60, s60, 16384")
                s.lab(f"A_npf{tagp}")
            s.emit(step(par))
            A(f"s_add_u32 s{sSTEP}, s{sSTEP}, 1")
        A(f"s_cmp_lt_u32 s{sSTEP}, 16")
        A("s_cbranch_scc1 A_loop")
        A("s_barrier")
        s.emit(step(0, last=True))
        A("s_waitcnt lgkmcnt(0)")
        A("s_barrier")
        if o.tail in (6, 8, 9, 10, 11, 12):
            aWP, aH = [40, 41, 42, 43], (44, 45)
            A("v_mbcnt_lo_u32_b32 v1, -1, 0")
            A("v_mbcnt_hi_u32_b32 v1, -1, v1")
            A("v_lshrrev_b32 v2, 4, v1")
            A("v_and_b32 v3, 15, v1")
            A("v_lshlrev_b32 v7, 2, v2")
            A("v_xor_b32 v7, v3, v7")
            A("v_lshlrev_b32 v7, 4, v7")
            A("v_lshlrev_b32 v4, 10, v2")
            A("v_add_u32 v4, v4, v7")
            A(f"v_add_u32 v5, s{sHP}, v1")
            A("v_add_u32 v5, 1, v5")
            A("v_and_b32 v5, 3, v5")
            A(f"v_add_u32 v5, s{sGRP}, v5")
            A("v_lshlrev_b32 v5, 7, v5")
        if o.tail == 12: pass
        elif o.tail in (6, 8, 9, 10, 11):
            A(f"s_lshl_b32 s70, s{sHG}, 20")
            A(f"s_lshl_b32 s71, s{sW}, 14")
            A("s_add_u32 s70, s70, s71")
            A(f"s_lshl_b32 s71, s{sHP}, 8")
            A("s_add_u32 s46, s70, s71")
            if o.wrot:
                A(f"s_mul_i32 s47, s{sB}, 11")
                A("s_lshr_b32 s47, s47, 5")
                A("s_mul_i32 s47, s47, 3")
                A(f"s_sub_u32 s47, s{sB}, s47")
                if not (o.wrot & 1): A("s_mov_b32 s47, 0")
            for p in range(1, 4) if not o.t6o else range(4):
                if o.wrot and p > 0:
                    A(f"s_add_u32 s70, s47, {p - 1}")
                    A("s_sub_u32 s71, s70, 3")
                    A("s_cmp_ge_u32 s70, 3")
                    A("s_cselect_b32 s70, s71, s70")
                    A(f"s_add_u32 s70, s70, s{sHP}")
                    A("s_add_u32 s70, s70, 1")
                else:
                    A(f"s_add_u32 s70, s{sHP}, {p}")
                A("s_and_b32 s70, s70, 3")
                A(f"s_lshl_b32 s71, s70, 18")
                A(f"s_add_u32 s{aWP[p]}, s46, s71")
            A(f"s_lshl_b32 s71, s{sHP}, 18")
            A(f"s_add_u32 s{aWP[0]}, s46, s71")
            A(f"s_and_b32 s70, s{sB}, 1")
            if not (o.wrot & 2): A("s_mov_b32 s70, 0")
            A(f"s_lshl_b32 s{aH[0]}, s70, 16")
            A(f"s_sub_u32 s{aH[1]}, 65536, s{aH[0]}")
            A(f"s_lshl_b32 s48, s{sW}, 2")
            A(f"s_add_u32 s48, s48, {FLAG_BASE}")
        A(f"s_lshl_b32 s70, s{sMYB}, 7")
        A(f"s_add_u32 s70, s70, {FLAG_BASE}")
        A(f"s_lshl_b32 s71, s{sW}, 2")
        A("s_add_u32 s70, s70, s71")
        A(f"v_mov_b32 v{T}, 1")
        s.stamp("aE")
        if o.xs:
            s.emit(s.xcc_byte(87))
            if o.xs < 3: A("s_mul_i32 s87, s87, 0x01010101")
            else: A("s_mov_b64 exec, 15")
        def a_wo10(p, half, slot, off=131072):
            for t_ in range(4):
                if t_ == 0:
                    A(f"s_add_u32 m0, s{sW4K}, {slot}")
                    A(f"s_add_u32 s72, s{aWP[p]}, s{aH[half]}")
                A(f"s_add_u32 s71, s72, {off + t_*3072}")
                A(f"buffer_load_dwordx4 v4, {srd(sWO)}, s71 offen offset:{t_*1024}{s.nto} lds")
        if o.tail == 10:
            a_wo10(0, 1, P[1] + 16384)
            A("s_waitcnt vmcnt(4)")
        elif o.tail == 12 and o.t12v == 3:
            A("s_waitcnt vmcnt(0)")
        elif o.tail == 12:
            a_wo10(0, 1, P[1] + 16384)
            A("s_waitcnt vmcnt(4)")
        elif o.tail == 11:
            for (pp_, hh_, sl_) in eval(o.t11a): a_wo10(pp_, hh_, sl_)
        else: A("s_waitcnt vmcnt(0)")
        s.stamp("adr")
        if o.xs in (1, 2):
            A("v_readfirstlane_b32 s71, v252")
            A("s_cmp_eq_u32 s71, s87")
            A("s_cbranch_scc0 A_wb ; @nottaken" if o.xs == 1 else "s_branch A_wb")
            s.lab("A_wbr")
        elif o.xs:
            A("v_cmp_eq_u32 vcc, s87, v252")
            A("s_cmp_eq_u32 vcc_lo, 15")
            A("s_cbranch_scc0 A_wb ; @nottaken" if o.xs == 3 else "s_branch A_wb")
            s.lab("A_wbr")
        if o.tail != 11:
            A("s_mov_b64 exec, 1")
            A(f"buffer_store_dword v{T}, off, {srd(sWS)}, s70{s.ofl1}")
            A("s_mov_b64 exec, -1")
        if o.apre:
            A(f"s_mov_b64 exec, s[{sEXLO}:{sEXHI}]")
            for D in range(4):
                for h in range(2):
                    A(f"s_add_u32 s71, s{sOBASE}, {(4*D+2*h)*1792}")
                    A(f"buffer_load_dwordx4 {vr(32+8*D+4*h,4)}, v{OV}, {srd(sWS)}, s71 offen{['', '', ' sc1', ' nt'][o.apre]} ; @dummy")
            A("s_mov_b64 exec, -1")
        if o.tail == 12:
            SY = P[0] + 3*8192 + 256
            A("v_lshrrev_b32 v8, 5, v1")
            A("v_mul_u32_u24 v12, 448, v8")
            A("v_and_b32 v9, 31, v1")
            A("v_add_u32 v12, v12, v9")
            A(f"s_lshl_b32 s70, s{sW}, 5")
            A("v_add_u32 v12, s70, v12")
            A("v_lshlrev_b32 v12, 4, v12")
            A("v_add_u32 v13, 3584, v12")
            A(f"v_mov_b32 v14, {SY}")
            A(f"s_lshl_b32 s70, s{sW}, 2")
            A(f"s_add_u32 s70, s70, {SY + 16}")
            A("v_mov_b32 v15, s70")
            nb_ = [0]
            def a_sig(level):
                A(f"v_mov_b32 v16, {level}")
                A("s_mov_b64 exec, 1")
                A("ds_write_b32 v15, v16")
                A("s_mov_b64 exec, -1")
            def a_need(level):
                n = nb_[0]; nb_[0] += 1
                A(f"s_mov_b32 s{sSPIN}, 0")
                s.lab(f"A_n{n}")
                A("ds_read_b128 v[8:11], v14")
                A(f"s_add_u32 s{sSPIN}, s{sSPIN}, 1")
                A("s_waitcnt lgkmcnt(0)")
                A("v_min3_u32 v8, v8, v9, v10")
                A("v_min_u32 v8, v8, v11")
                A("v_readfirstlane_b32 s70, v8")
                A(f"s_cmp_ge_u32 s70, {level}")
                A(f"s_cbranch_scc1 A_n{n}d ; @taken")
                A(f"s_cmp_lt_u32 s{sSPIN}, {o.spin * 8}")
                A(f"s_cbranch_scc1 A_n{n}")
                s.lab(f"A_n{n}d")
            def a_g(p, region):
                A(f"s_mov_b64 exec, s[{sEXLO}:{sEXHI}]")
                for half in range(2):
                    A(f"s_lshl_b32 s70, s{sW}, 13")
                    A(f"s_add_u32 m0, s70, {region + half*4096}")
                    A(f"s_add_u32 s72, s{49+p}, s{53+half}")
                    for j in range(4):
                        d_ = (j & 1) * 1792 - j * 1024
                        if d_ >= 0: A(f"s_add_u32 s71, s72, {d_}")
                        else: A(f"s_sub_u32 s71, s72, {-d_}")
                        A(f"buffer_load_dwordx4 v{12 + (j >> 1)}, {srd(sWS)}, s71 offen offset:{j*1024} sc1 lds")
                A("s_mov_b64 exec, -1")
            if o.t12v == 4:
                a_need(2)
                a_wo10(1, 0, W[0]); a_wo10(1, 1, W[1])
                a_need(3)
                a_wo10(2, 0, W[2]); a_wo10(2, 1, W[3])
                A("s_waitcnt vmcnt(16)")
                a_sig(1)
                a_need(4)
                a_wo10(3, 0, P[1]); a_wo10(3, 1, P[2])
                A("s_waitcnt vmcnt(16)")
                a_sig(2)
                A("s_waitcnt vmcnt(8)")
                a_sig(3)
                A("s_waitcnt vmcnt(0)")
                a_sig(4)
            elif o.t12v == 3:
                A("v_lshlrev_b32 v17, 4, v1")
                A(f"v_add_u32 v17, s{sW4K}, v17")
                A(f"v_add_u32 v18, {W[0]}, v17")
                A(f"v_add_u32 v19, {P[2]}, v17")
                A("v_lshlrev_b32 v20, 4, v1")
                A(f"s_lshl_b32 s70, s{sW}, 13")
                A("v_add_u32 v20, s70, v20")
                A(f"v_add_u32 v21, {W[2]}, v20")
                RW = {(0, 1): 32, (1, 0): 48, (1, 1): 64, (2, 0): 80, (2, 1): 96, (3, 0): 112, (3, 1): 128}
                RG = {1: 144, 2: 176, 3: 208}
                def ldW(p, half):
                    for t_ in range(4):
                        if t_ == 0: A(f"s_add_u32 s72, s{aWP[p]}, s{aH[half]}")
                        A(f"s_add_u32 s71, s72, {131072 + t_*3072}")
                        A(f"buffer_load_dwordx4 {vr(RW[(p, half)] + 4*t_, 4)}, v4, {srd(sWO)}, s71 offen offset:{t_*1024}{s.nto}")
                def wrW(p, half, slot):
                    if slot >= W[0]: vb, off = 18, slot - W[0]
                    elif slot >= P[2]: vb, off = 19, slot - P[2]
                    else: vb, off = 17, slot
                    for t_ in range(4):
                        A(f"ds_write_b128 v{vb}, {vr(RW[(p, half)] + 4*t_, 4)} offset:{off + t_*1024}")
                def ldG(p):
                    A(f"s_mov_b64 exec, s[{sEXLO}:{sEXHI}]")
                    for half in range(2):
                        A(f"s_add_u32 s72, s{49+p}, s{53+half}")
                        for j in range(4):
                            A(f"buffer_load_dwordx4 {vr(RG[p] + 16*half + 4*j, 4)}, v{12 + (j >> 1)}, {srd(sWS)}, s72 offen offset:{(j & 1)*1792} sc1")
                    A("s_mov_b64 exec, -1")
                def wrG(p, vb):
                    A(f"s_mov_b64 exec, s[{sEXLO}:{sEXHI}]")
                    for k in range(8):
                        A(f"ds_write_b128 v{vb}, {vr(RG[p] + 4*k, 4)} offset:{k*1024}")
                    A("s_mov_b64 exec, -1")
                def sigw(level):
                    A("s_waitcnt lgkmcnt(0)"); a_sig(level)
                def poll_iss():
                    A("s_mov_b64 exec, 7")
                    A(f"buffer_load_dword v6, v5, {srd(sWS)}, s48 offen sc1")
                    A("s_mov_b64 exec, -1")
                def poll_chk():
                    A("s_mov_b64 exec, 7")
                    A("v_cmp_ne_u32 vcc, 0, v6")
                    A("s_mov_b64 exec, -1")
                    A("s_cmp_eq_u32 vcc_lo, 7")
                poll_iss()
                ldW(0, 1); ldW(1, 0); ldW(1, 1)
                A("s_waitcnt vmcnt(12)")
                poll_chk()
                A("s_cbranch_scc0 A_pf ; @hook=GSLOW")
                s.stamp("apl")
                ldG(1)
                A("s_waitcnt vmcnt(16)")
                wrW(0, 1, P[1] + 16384); sigw(1)
                a_need(2)
                A("s_waitcnt vmcnt(8)")
                wrW(1, 0, W[0]); wrW(1, 1, W[1]); sigw(2)
                A("s_branch A_pj")
                s.lab("A_pf")
                A("s_waitcnt vmcnt(8)")
                wrW(0, 1, P[1] + 16384); sigw(1)
                a_need(2)
                A("s_waitcnt vmcnt(0)")
                wrW(1, 0, W[0]); wrW(1, 1, W[1]); sigw(2)
                A(f"s_mov_b32 s{sSPIN}, 0")
                s.lab("A_poll")
                poll_iss()
                A(f"s_add_u32 s{sSPIN}, s{sSPIN}, 1")
                A("s_waitcnt vmcnt(0)")
                poll_chk()
                A("s_cbranch_scc1 A_polld ; @taken")
                A(f"s_cmp_lt_u32 s{sSPIN}, {o.spin}")
                A("s_cbranch_scc1 A_poll")
                s.lab("A_polld")
                s.stamp("apl")
                ldG(1)
                s.lab("A_pj")
                ldW(2, 0); ldW(2, 1)
                A("s_waitcnt vmcnt(8)")
                s.stamp("ag1")
                wrG(1, 20); sigw(3)
                ldG(2)
                a_need(4)
                A("s_waitcnt vmcnt(8)")
                wrW(2, 0, P[1]); wrW(2, 1, P[2]); sigw(4)
                ldW(3, 0); ldW(3, 1)
                A("s_waitcnt vmcnt(8)")
                s.stamp("ag2")
                wrG(2, 21); sigw(5)
                ldG(3)
                a_need(5)
                A("s_waitcnt vmcnt(0)")
                wrG(3, 20); sigw(6)
                a_need(6)
                wrW(3, 0, W[2]); wrW(3, 1, W[3]); sigw(7)
            else:
              pass
            if o.t12v == 0:
                a_need(2)
                a_wo10(1, 0, W[0]); a_wo10(1, 1, W[1])
            def dma_version():
                A(f"s_mov_b32 s{sSPIN}, 0")
                s.lab("A_poll")
                A("s_mov_b64 exec, 7")
                A(f"buffer_load_dword v6, v5, {srd(sWS)}, s48 offen sc1")
                A(f"s_add_u32 s{sSPIN}, s{sSPIN}, 1")
                A("s_waitcnt vmcnt(0)")
                A("v_cmp_ne_u32 vcc, 0, v6")
                A("s_mov_b64 exec, -1")
                A("s_mov_b32 s49, vcc_lo")
                a_sig(3 if o.t12v == 0 else 1)
                A("s_cmp_eq_u32 s49, 7")
                A("s_cbranch_scc1 A_polld ; @taken")
                A(f"s_cmp_lt_u32 s{sSPIN}, {o.spin}")
                A("s_cbranch_scc1 A_poll")
                s.lab("A_polld")
                s.stamp("apl")
                if o.t12v == 0:
                    a_g(1, P[0])
                    a_need(3)
                    a_g(2, W[2])
                    A("s_waitcnt vmcnt(8)")
                    s.stamp("ag1")
                    a_sig(4)
                    a_need(4)
                    a_wo10(2, 0, P[1]); a_wo10(2, 1, P[2])
                    A("s_waitcnt vmcnt(8)")
                    a_sig(5)
                else:
                    a_need(2)
                    a_g(1, P[0])
                    a_wo10(1, 0, W[0]); a_wo10(1, 1, W[1])
                    if o.t12v == 1:
                        A("s_waitcnt vmcnt(8)")
                        s.stamp("ag1")
                        a_sig(2)
                        a_need(3)
                        a_g(2, W[2])
                        A("s_waitcnt vmcnt(8)")
                    else:
                        a_need(3)
                        a_g(2, W[2])
                        A("s_waitcnt vmcnt(16)")
                        s.stamp("ag1")
                        a_sig(2)
                        A("s_waitcnt vmcnt(8)")
                    s.stamp("aw1")
                    a_sig(3)
                    a_need(4)
                    a_wo10(2, 0, P[1]); a_wo10(2, 1, P[2])
                    A("s_waitcnt vmcnt(8)")
                    s.stamp("ag2")
                    a_sig(5)
                a_need(5)
                a_g(3, P[0])
                A("s_waitcnt vmcnt(8)")
                a_sig(6)
                a_need(6)
                a_wo10(3, 0, W[2]); a_wo10(3, 1, W[3])
                A("s_waitcnt vmcnt(8)")
                a_sig(7)
                A("s_waitcnt vmcnt(0)")
                a_sig(8)
            if o.t12v not in (3, 4): dma_version()
            A("s_waitcnt lgkmcnt(0)")
        elif o.tail == 11:
            for seq in eval(o.t11b):
                ib_ = eval(o.t11b).index(seq)
                s.stamp(f"ab{ib_}")
                if seq[0] is not None: A(f"s_waitcnt vmcnt({seq[0]})")
                s.stamp(f"aw{ib_}_")
                A("s_barrier")
                for (pp_, hh_, sl_) in seq[1]: a_wo10(pp_, hh_, sl_)
        elif o.tail == 10:
            A(f"s_bitcmp1_b32 s{sHG}, 0")
            A("s_cbranch_scc1 A_t10o ; @hook=ODD")
            A("s_barrier")
            a_wo10(1, 0, W[0]); a_wo10(1, 1, W[1])
            a_wo10(3, 0, P[0], 1 << 20); a_wo10(3, 1, P[0] + 16384, 1 << 20)
            A("s_barrier")
            a_wo10(2, 0, W[2]); a_wo10(2, 1, W[3])
            A("s_waitcnt vmcnt(25)")
            A("s_barrier")
            a_wo10(3, 0, P[1]); a_wo10(3, 1, P[2])
            A("s_waitcnt vmcnt(16)")
            A("s_barrier")
            A("s_waitcnt vmcnt(0)")
            A("s_barrier")
            A("s_branch A_t10j")
            s.lab("A_t10o")
            A("s_waitcnt vmcnt(1)")
            A("s_barrier")
            a_wo10(1, 0, W[0]); a_wo10(1, 1, W[1])
            a_wo10(2, 0, P[0]); a_wo10(2, 1, P[0] + 16384)
            A("s_waitcnt vmcnt(8)")
            A("s_barrier")
            A("s_waitcnt vmcnt(0)")
            A("s_barrier")
            s.lab("A_t10j")
        elif o.tail in (8, 9):
            T8 = {(0,1): P[1] + 16384, (1,0): W[0], (1,1): W[1], (2,0): W[2], (2,1): W[3], (3,0): P[1], (3,1): P[2]}
            def a_wo8(p, half):
                for t_ in range(4):
                    if t_ == 0:
                        A(f"s_add_u32 m0, s{sW4K}, {T8[(p, half)]}")
                        A(f"s_add_u32 s72, s{aWP[p]}, s{aH[half]}")
                    A(f"s_add_u32 s71, s72, {131072 + t_*3072}")
                    A(f"buffer_load_dwordx4 v4, {srd(sWO)}, s71 offen offset:{t_*1024}{s.nto} lds")
            if o.t8a == 0: a_wo8(0, 1)
            A("s_barrier")
            if o.t8a == 1: a_wo8(0, 1)
            a_wo8(1, 0); a_wo8(1, 1)
            A("s_barrier")
            a_wo8(2, 0); a_wo8(2, 1)
            A("s_waitcnt vmcnt(16)")
            A("s_barrier")
            a_wo8(3, 0); a_wo8(3, 1)
            A("s_waitcnt vmcnt(0)")
            A("s_barrier")
        elif o.tail == 6:
            T6 = {(0,1): P[1] + 16384, (1,0): W[0], (1,1): W[1], (2,0): W[2], (2,1): W[3], (3,0): P[0], (3,1): P[0] + 16384}
            def a_wo(p, half):
                for t_ in range(4):
                    if t_ == 0:
                        A(f"s_add_u32 m0, s{sW4K}, {T6[(p, half)]}")
                        A(f"s_add_u32 s72, s{aWP[p]}, s{aH[half]}")
                    A(f"s_add_u32 s71, s72, {131072 + t_*3072}")
                    A(f"buffer_load_dwordx4 v4, {srd(sWO)}, s71 offen offset:{t_*1024}{s.nto} lds")
            a_wo(0, 1)
            A("s_barrier")
            a_wo(1, 0); a_wo(1, 1)
            if o.t6v == 1: a_wo(3, 0); a_wo(3, 1)
            A(f"s_waitcnt vmcnt({16 if o.t6v == 1 else 8})")
            s.stamp("aTa")
            A("s_barrier")
            A("s_mov_b64 exec, 7")
            A(f"buffer_load_dword v6, v5, {srd(sWS)}, s48 offen sc1")
            A("s_mov_b64 exec, -1")
            if o.t6v != 3: a_wo(2, 0); a_wo(2, 1)
            A(f"s_mov_b32 s{sSPIN}, 0")
            A(f"s_waitcnt vmcnt({8 if o.t6v != 3 else 0})")
            A("s_mov_b64 exec, 7")
            s.lab("A_poll")
            A("v_cmp_ne_u32 vcc, 0, v6")
            A("s_cmp_eq_u32 vcc_lo, 7")
            A("s_cbranch_scc1 A_polld ; @taken")
            A(f"buffer_load_dword v6, v5, {srd(sWS)}, s48 offen sc1")
            A(f"s_add_u32 s{sSPIN}, s{sSPIN}, 1")
            A("s_waitcnt vmcnt(0)")
            A(f"s_cmp_lt_u32 s{sSPIN}, {o.spin}")
            A("s_cbranch_scc1 A_poll")
            s.lab("A_polld")
            A("s_mov_b64 exec, -1")
            s.stamp("apl")
            A("s_barrier")
            if o.t6v == 1:
                A("s_waitcnt vmcnt(0)")
                A("s_barrier")
            else:
                if o.t6v == 3: a_wo(2, 0); a_wo(2, 1)
                a_wo(3, 0); a_wo(3, 1)
                A("s_waitcnt vmcnt(8)")
                A("s_barrier")
                A("s_waitcnt vmcnt(0)")
                A("s_barrier")
        else:
            for _ in range(o.abar): A("s_barrier")
        if o.wb:
            if o.wb == 1: A(f"s_cmp_eq_u32 s{sW}, 0")
            elif o.wb == 2:
                A(f"s_or_b32 s70, s{sW}, s{sHP}"); A("s_cmp_eq_u32 s70, 0")
            elif o.wb == 3:
                A(f"s_or_b32 s70, s{sW}, s{sHP}"); A(f"s_or_b32 s70, s70, s{sB}"); A("s_cmp_eq_u32 s70, 0")
            A("s_cbranch_scc0 A_nowb")
            for _ in range(o.wbn): A("s_barrier")
            A("buffer_wbl2 sc1")
            s.lab("A_nowb")
        if o.astamp >= 0:
            A(f"s_cmp_lg_u32 s{sW}, 0")
            A("s_cbranch_scc1 L_end")
            A("s_lshl_b32 s70, s2, 8")
            A(f"s_add_u32 s70, s70, {STAMP_BASE + 65536}")
            A("s_mov_b64 exec, 1")
            for i in range(7):
                A(f"v_mov_b32 v32, s{50+i}")
                A(f"buffer_store_dword v32, off, {srd(sWS)}, s70 offset:{4*i}")
                A("s_nop 1")
        if o.stamp and not o.dbgst and o.astamp < 0:
            A("s_waitcnt vmcnt(0) lgkmcnt(0)")
            A(f"s_cmp_lg_u32 s{sW}, {o.stw}")
            A("s_cbranch_scc1 L_end")
            n = len(o.stamps.split(","))
            A("s_lshl_b32 s70, s2, 8")
            A(f"s_add_u32 s70, s70, {STAMP_BASE + 65536}")
            A("s_mov_b64 exec, 1")
            for i in range(n):
                r = STAMP_REGS[i]
                A(f"v_mov_b32 v32, s{r}"); A(f"v_mov_b32 v33, s{r+1}")
                A(f"buffer_store_dwordx2 v[32:33], off, {srd(sWS)}, s70 offset:{8*i}")
                A("s_nop 1")
        A("s_endpgm")
        if o.xs:
            s.lab("A_wb")
            A("buffer_wbl2 sc1")
            A("s_waitcnt vmcnt(0)")
            A("s_branch A_wbr")
        s.lab("A_tope")
        A(f"s_cmp_eq_u32 s{sSTEP}, 0")
        A("s_cbranch_scc0 A_top8")
        A(f"s_waitcnt vmcnt({n0})")
        s.stamp("a0w")
        A("s_barrier")
        s.stamp("a0b")
        for i in range(8):
            A(f"ds_read_b128 {vr(Q_+4*i,4)}, v{QA} offset:{i*1024}")
        A(f"v_add_u32 v{QA}, 16384, v{QA}")
        A("s_branch A_top8b")
        s.lab("A_top8")
        A("s_barrier")
        if o.xs in (1, 2): A(f"buffer_load_dword v252, off, {srd(sDBG)}, s{sGRP} sc1")
        elif o.xs:
            A("v_mbcnt_lo_u32_b32 v253, -1, 0")
            A("v_lshlrev_b32 v253, 7, v253")
            A(f"s_lshl_b32 s70, s{sGRP}, 7")
            A(f"s_add_u32 s70, s70, {FLAG_BASE + 64}")
            A("s_mov_b64 exec, 15")
            A(f"buffer_load_dword v252, v253, {srd(sWS)}, s70 offen sc1")
            A("s_mov_b64 exec, -1")
        for i in range(8):
            A(f"ds_read_b128 {vr(Q_+4*i,4)}, v{QA} offset:{i*1024}")
        s.lab("A_top8b")
        A(f"s_mov_b32 s{sTHR}, 0xff800000")
        A("s_waitcnt lgkmcnt(0)")
        A("s_branch A_toper")
        s.lab("A_topo")
        A(f"s_cmp_eq_u32 s{sSTEP}, 1")
        A("s_cbranch_scc0 A_top7")
        s.stamp("a1p")
        A(f"s_waitcnt vmcnt({n1})")
        s.stamp("a1w")
        A("s_barrier")
        if o.xs in (1, 2):
            A(f"s_cmp_lg_u32 s{sW}, 0")
            A("s_cbranch_scc1 A_topor")
            s.emit(s.xcc_byte(70))
            A("v_mov_b32 v252, s70")
            A("s_mov_b64 exec, 1")
            A(f"buffer_store_byte v252, off, {srd(sDBG)}, s{sMYB} sc1")
            A("s_mov_b64 exec, -1")
        A("s_branch A_topor")
        s.lab("A_top7")
        A(f"s_or_b32 s{sPEND}, s{sPEND}, 4")
        A("s_barrier")
        A("s_branch A_topor")
        for par in range(2):
            tagp = "e" if par == 0 else "o"; cur = SB[par]
            s.lab(f"A_resc{tagp}")
            A(f"v_mov_b32 v{U+1}, v{U}")
            A(f"v_permlane32_swap_b32 v{U}, v{U+1}")
            A(f"v_max_f32 v{U}, v{U}, v{U+1}")
            if par == 0:
                A(f"s_and_b32 s71, s{sSTEP}, 7")
                A("s_cmp_eq_u32 s71, 0")
                A("s_cbranch_scc1 A_hsw")
            A(f"v_max_f32 v{U}, 0, v{U}")
            A(f"v_sub_f32 v{U+1}, 0, v{U}")
            A(f"v_exp_f32 v{AL}, v{U+1}")
            A(f"s_or_b32 s{sPEND}, s{sPEND}, 1")
            A(f"v_mul_f32 v{LS}, v{AL}, v{LS}")
            A(f"v_mul_f32 v{LS+1}, v{AL}, v{LS+1}")
            if par == 0: s.lab("A_hswj")
            for i in range(32): A(f"v_sub_f32 v{cur+i}, v{cur+i}, v{U}")
            for i in range(16): A(f"v_sub_f32 v{NM+i}, v{NM+i}, v{U}")
            A(f"s_branch A_resc{tagp}r")
        s.lab("A_hsw")
        s.emit(rl_lines(RL))
        A(f"v_mov_b64 {vr(LS,2)}, 0")
        A(f"s_mov_b32 s{sTHR}, {hex(fbits(THR))}")
        A(f"s_lshr_b32 s{sPEND}, s{sSTEP}, 3")
        A(f"s_add_u32 s{sPEND}, s{sPEND}, 2")
        A(f"s_lshl_b32 s{sPEND}, s{sPEND}, 3")
        A("s_branch A_hswj")
        for par in range(2):
            tagp = "e" if par == 0 else "o"
            s.lab(f"A_pend{tagp}")
            if par == 0:
                A(f"s_cmp_ge_u32 s{sPEND}, 16")
                A("s_cbranch_scc1 A_pz")
            A(f"s_bitcmp1_b32 s{sPEND}, 0")
            A(f"s_cbranch_scc0 A_pn{tagp}")
            for i in range(32):
                A(f"v_pk_mul_f32 {vr(O+2*i,2)}, {vr(O+2*i,2)}, {vr(AL,2)} op_sel_hi:[1,0]")
            s.lab(f"A_pn{tagp}")
            if par == 1:
                A(f"s_bitcmp1_b32 s{sPEND}, 2")
                A(f"s_cbranch_scc0 A_pm{tagp}")
                for i in range(8): A(f"v_mov_b64 {vr(NM+2*i,2)}, 0")
                s.lab(f"A_pm{tagp}")
            A(f"s_mov_b32 s{sPEND}, 0")
            A(f"s_branch A_pend{tagp}r")
        s.lab("A_pz")
        A(f"s_cmp_eq_u32 s{sPEND}, 24")
        A("s_cbranch_scc0 A_pz2")
        A(f"v_mov_b32 v{AL}, v{RL}")
        for D in range(4):
            s.emit(fin_D(D, WIN))
            for h in range(2):
                A(f"ds_write_b128 v{QA}, {vr(WIN+8*D+4*h,4)} offset:{(2*D+h)*1024}")
        A("s_waitcnt lgkmcnt(0)")
        s.lab("A_pz2")
        for i in range(32): A(f"v_mov_b64 {vr(O+2*i,2)}, 0")
        A(f"s_mov_b32 s{sPEND}, 0")
        A(f"s_branch A_pender")

    def waveB(s):
        A = s.A; o = s.opt
        vV, vW, vK, WA, vWO, vO, vQW, vWB = 2, 3, 4, 8, 12, 13, 14, 15
        Y, vR, vOL, VP = 16, 17, 18, 20
        XA = 24
        WIN, X, ACC = 32, 64, 192
        q = Q(63)
        nt = " nt" if o.nt else ""
        PX = [W[0], W[2], P[2]] if o.r3 else [P[1], P[2], W[0], W[2]]
        NR = len(PX)
        s.lab("L_B")
        s.stamp("b0")
        capL = s.L
        if o.pro2: s.L = []
        def mark(n):
            if o.pro2: s.L.append("@@" + n)
        A(f"v_mov_b32 v{vW}, v2")
        s.late_scalars()
        mark("clr0")
        if o.xs in (1, 2): pass
        elif o.lead:
            A(f"s_or_b32 s70, s{sW}, s{sHG}")
            A(f"s_or_b32 s70, s70, s{sHP}")
            A("s_cmp_lg_u32 s70, 0")
            A("s_cbranch_scc1 B_nclr")
            A("v_mov_b64 v[28:29], 0")
            A("v_mov_b64 v[30:31], 0")
            A("v_lshlrev_b32 v23, 4, v1")
            A(f"s_lshl_b32 s70, s{sGRP}, 7")
            A(f"s_add_u32 s70, s70, {FLAG_BASE}")
            A(f"buffer_store_dwordx4 v[28:31], v23, {srd(sWS)}, s70 offen sc1")
            A(f"buffer_store_dwordx4 v[28:31], v23, {srd(sWS)}, s70 offen offset:1024 sc1")
            A("s_nop 1")
        else:
            A(f"s_cmp_lg_u32 s{sW}, 0")
            A("s_cbranch_scc1 B_nclr")
            A("v_mov_b32 v28, 0")
            A("v_lshlrev_b32 v29, 2, v1")
            A(f"s_lshl_b32 s70, s{sMYB}, 7")
            A(f"s_add_u32 s70, s70, {FLAG_BASE}")
            A("s_mov_b64 exec, 0xfff")
            A(f"buffer_store_dword v28, v29, {srd(sWS)}, s70 offen sc1")
            A("s_mov_b64 exec, -1")
        if o.xs not in (1, 2): s.lab("B_nclr")
        mark("clr1")
        s.kv_voffs(vK, vV)
        A("v_lshlrev_b32 v23, 10, v19")
        A(f"v_add_u32 v{vWO}, v23, v21")
        mark("early0")
        A("v_lshrrev_b32 v22, 2, v20")
        A("v_and_b32 v23, 1, v19")
        A("v_lshlrev_b32 v28, 13, v17")
        A("v_lshlrev_b32 v29, 8, v22")
        A("v_add_u32 v28, v28, v29")
        A("v_lshlrev_b32 v29, 5, v23")
        A("v_add_u32 v28, v28, v29")
        A("v_and_b32 v29, 1, v18")
        A("v_lshlrev_b32 v29, 4, v29")
        A("v_add_u32 v28, v28, v29")
        A("v_lshrrev_b32 v29, 1, v18")
        A("v_lshlrev_b32 v29, 3, v29")
        A(f"v_add_u32 v{vWB}, v28, v29")
        A(f"v_add_u32 v28, {PX[0]}, v{vWB}")
        for D in range(4):
            A(f"v_xor_b32 v29, {D}, v22")
            A(f"v_lshlrev_b32 v29, 6, v29")
            A(f"v_add_u32 v{WA+D}, v28, v29")
        A("v_and_b32 v28, 31, v1")
        A("v_lshrrev_b32 v29, 1, v28")
        A("v_and_b32 v29, 7, v29")
        A("v_lshlrev_b32 v30, 2, v17")
        A("v_xor_b32 v29, v29, v30")
        A("v_lshlrev_b32 v28, 7, v28")
        A(f"s_add_u32 s70, s{sW4K}, {PX[0]}")
        A("v_add_u32 v28, s70, v28")
        for j in range(4):
            A(f"v_xor_b32 v30, {j}, v29")
            A(f"v_lshlrev_b32 v30, 4, v30")
            A(f"v_add_u32 v{XA+j}, v28, v30")
        mark("early1")
        if o.pro2: A("v_lshrrev_b32 v22, 2, v20")
        A(f"v_mul_u32_u24 v{vO}, 448, v17")
        A("v_and_b32 v29, 31, v1")
        A(f"v_add_u32 v{vO}, v{vO}, v29")
        A(f"s_lshl_b32 s70, s{sW}, 5")
        A(f"v_add_u32 v{vO}, s70, v{vO}")
        A(f"v_lshlrev_b32 v{vO}, 4, v{vO}")
        A(f"s_lshl_b32 s70, s{sW}, 13")
        A(f"s_add_u32 s70, s70, {W[0]}")
        A(f"v_lshlrev_b32 v{vQW}, 4, v1")
        A(f"v_add_u32 v{vQW}, s70, v{vQW}")
        A(f"v_lshlrev_b32 v30, 11, v17")
        A(f"v_lshlrev_b32 v29, 4, v29")
        A(f"v_add_u32 v30, v30, v29")
        A(f"s_add_u32 s70, s70, 16384")
        A(f"v_add_u32 v31, s70, v30")
        A(f"v_mov_b32 v{vOL}, v31")
        A(f"v_mov_b32 v{vR}, v22")
        A(f"v_add_u32 v{Y}, 3584, v{vO}")
        A(f"s_lshl_b32 s70, s{sHG}, 20")
        A(f"s_lshl_b32 s71, s{sW}, 14")
        A("s_add_u32 s70, s70, s71")
        A(f"s_lshl_b32 s71, s{sHP}, 8")
        A(f"s_add_u32 s{sWOB}, s70, s71")
        A(f"s_lshl_b32 s70, s{sBR}, 3")
        A(f"s_add_u32 s70, s70, s{sB}")
        A(f"s_lshl_b32 s70, s70, 5")
        A(f"s_lshl_b32 s71, s{sHG}, 3")
        A(f"s_add_u32 s70, s70, s71")
        A(f"s_mul_i32 s73, s70, {UNIT}")
        sH = (77, 79); sOH = (76, 3)
        if o.wrot:
            A(f"s_mul_i32 s76, s{sB}, 11")
            A("s_lshr_b32 s76, s76, 5")
            A("s_mul_i32 s76, s76, 3")
            A(f"s_sub_u32 s76, s{sB}, s76")
            if not (o.wrot & 1): A("s_mov_b32 s76, 0")
        for p in range(4):
            if o.wrot and p > 0:
                A(f"s_add_u32 s70, s76, {p - 1}")
                A("s_sub_u32 s71, s70, 3")
                A("s_cmp_ge_u32 s70, 3")
                A("s_cselect_b32 s70, s71, s70")
                A(f"s_add_u32 s70, s70, s{sHP}")
                A("s_add_u32 s70, s70, 1")
            else:
                A(f"s_add_u32 s70, s{sHP}, {p}")
            A("s_and_b32 s70, s70, 3")
            A(f"s_lshl_b32 s71, s70, 18")
            A(f"s_add_u32 s{sWP+p}, s{sWOB}, s71")
            A(f"s_mul_i32 s71, s70, {2*UNIT}")
            A(f"s_add_u32 s{sOP+p}, s73, s71")
            if o.tail == 10 and p == 3:
                A(f"s_add_u32 s52, s70, s{sGRP}")
                A("s_add_u32 s52, s52, 4")
                A("s_lshl_b32 s52, s52, 7")
        vOL2 = 19
        if o.wrot:
            A(f"s_and_b32 s70, s{sB}, 1")
            if not (o.wrot & 2): A("s_mov_b32 s70, 0")
            A(f"s_lshl_b32 s{sH[0]}, s70, 16")
            A(f"s_sub_u32 s{sH[1]}, 65536, s{sH[0]}")
            A(f"s_mul_i32 s{sOH[0]}, s70, 14336")
            A(f"s_sub_u32 s{sOH[1]}, 14336, s{sOH[0]}")
            A("s_lshl_b32 s70, s70, 12")
            A("s_sub_u32 s71, 4096, s70")
            A(f"v_add_u32 v{vOL2}, s71, v{vOL}")
            A(f"v_add_u32 v{vOL}, s70, v{vOL}")
        A(f"s_mov_b32 s74, {hex(fbits(CSCALE))}")
        sCS = 74
        sPF = 75

        def wait_vm(tags):
            n = q.wait(tags)
            if n is not None: A(f"s_waitcnt vmcnt({n})")
        def mat(groups):
            out = []
            for tag, ins in groups:
                q.issue(tag); out.append(ins)
            return out
        def dma_wo(rr, p, half, slot, xoff=None):
            g = []
            tagp, tagh = p, half
            if (o.abl & 64) and rr == 0 and p >= 1: p, half = 1, 1
            if (o.abl & 128) and rr == 0 and p >= 1: p, half = 0, 1
            for t in range(4):
                pre = [f"s_add_u32 m0, s{sW4K}, {slot}"] if (t == 0 or o.ilv) else []
                if o.wrot:
                    if t == 0: pre.append(f"s_add_u32 s72, s{sWP+p}, s{sH[half]}")
                    if t == 0 and o.tail == 10 and rr == 0 and p == 3 and xoff is None: pre.append("s_add_u32 s72, s72, s53")
                    if t == 0 and xoff: pre.append(f"s_add_u32 s72, s72, {xoff}")
                    addr = f"s_add_u32 s71, s72, {rr*131072 + t*3072}"
                else:
                    addr = f"s_add_u32 s71, s{sWP+p}, {(rr*128 + 64*half)*1024 + t*3072}"
                g.append((f"O{rr}{tagp}{tagh}", pre + [addr,
                          f"buffer_load_dwordx4 v{vWO}, {srd(sWO)}, s71 offen offset:{t*1024}{' nt' if ((rr, p, half) in eval(o.ntoc)) else s.nto} lds"]))
            return g
        def of_mem(rr, p, half, tag, store=False, clean=False, blk=None, xoff=0):
            g = []
            xb = 2*p + half if blk is None else blk + half
            for jj in range(2):
                va = vO if jj == 0 else Y
                if o.wrot:
                    ins = [f"s_add_u32 s72, s{sOP+p}, s{sOH[half]}"] + ([f"s_add_u32 s72, s72, {rr*UNIT + xoff}"] if (rr or xoff) else []) + [f"s_mov_b64 exec, s[{sEXLO}:{sEXHI}]"]
                else:
                    ins = [f"s_add_u32 s72, s{sOP+p}, {rr*UNIT + half*8*1792}", f"s_mov_b64 exec, s[{sEXLO}:{sEXHI}]"]
                for j in (2*jj, 2*jj+1):
                    op = "buffer_store_dwordx4" if store else "buffer_load_dwordx4"
                    ins.append(f"{op} {vr(X+16*xb+4*j,4)}, v{va}, {srd(sWS)}, s72 offen offset:{(j&1)*1792}{(' sc1' if clean else s.ost0) if store else [' sc1', '', ' sc0'][o.fgl]}{s.nths if (store and not clean) else s.nthl if not store else ''}")
                ins.append("s_mov_b64 exec, -1")
                if o.nox and not store: ins = [l for l in ins if not l.startswith("s_mov_b64 exec")]
                g.append(((tag, tag), ins))
            return g
        def mat2(groups):
            out = []
            for tag, ins in groups:
                if isinstance(tag, tuple):
                    for t_ in tag: q.issue(t_)
                else: q.issue(tag)
                out.append(ins)
            return out

        s.wbase = PX[0]; s.xbase = PX[0]
        def rebase_lines(regs, cur, nb):
            d = (nb - cur) & 0xffffffff
            return [f"v_add_u32 v{r}, {hex(d)}, v{r}" for r in regs]
        def base_for(slot, cur):
            if 0 <= slot - cur <= 49152: return cur
            for b in (P[1], W[0], P[0], P[2]):
                if 0 <= slot - b <= 49152: return b
            raise ValueError
        LA = o.la
        def frags_c(lst):
            fr = []
            for ci, (slot, xb, first) in enumerate(lst):
                fr += [(slot, xb, first and j == 0, j, D, ci) for j in range(4) for D in range(4)]
            return fr
        def stream(fr, fillers=None, prologue=False, gapfill=None, LA=LA, prerd=None, premf=None):
            n = len(fr)
            lq = Q(15)
            def xrd(ci, j):
                slot = PX[ci % NR]; r = []
                nb = base_for(slot, s.xbase)
                if nb != s.xbase:
                    r += rebase_lines(range(XA, XA+4), s.xbase, nb); s.xbase = nb
                lq.issue(f"X{ci}_{j}")
                r.append(f"ds_read_b128 {vr(X+16*ci+4*j,4)}, v{XA+j} offset:{slot - s.xbase}")
                return r
            def rd(f):
                slot, xb, zero, j, D, ci = fr[f]; r = []
                if prerd and f in prerd: r += prerd[f]
                if prologue and j == 0 and D == 0 and ci > 0:
                    r += s.stamp_lines(f"x{ci}")
                    r.append("s_barrier")
                    r += s.stamp_lines(f"p{ci}")
                nb = base_for(slot, s.wbase)
                if nb != s.wbase:
                    r += rebase_lines(range(WA, WA+4), s.wbase, nb); s.wbase = nb
                if prologue and D == 0: r += xrd(ci, j)
                for a in range(2):
                    lq.issue(f)
                    r.append(f"ds_read_b64_tr_b16 {vr(WIN+4*(f%8)+2*a,2)}, v{WA+D} offset:{slot-s.wbase + j*2048 + a*1024}")
                return r
            gaps = gapfill if gapfill is not None else [[] for _ in range(n)]
            if fillers: spread(gaps, fillers, 0, n)
            for f in range(min(LA, n)): s.emit(rd(f))
            issued = min(LA, n)
            for f in range(n):
                slot, xb, zero, j, D, ci = fr[f]
                k = lq.wait([f, f + 1] if (f % 2 == 0 and f + 1 < issued) else [f])
                if k is not None: A(f"s_waitcnt lgkmcnt({k})")
                srcC = "0" if zero else vr(ACC+16*D, 16)
                if premf and f in premf: s.emit(premf[f])
                A(f"v_mfma_f32_32x32x16_bf16 {vr(ACC+16*D,16)}, {vr(WIN+4*(f%8),4)}, {vr(X+16*xb+4*j,4)}, {srcC}")
                if issued < n:
                    s.emit(rd(issued)); issued += 1
                s.emit(gaps[f])
        def write_q(base_off):
            for D in range(4):
                for i in range(16):
                    A(f"v_mul_f32 v{ACC+16*D+i}, s{sCS}, v{ACC+16*D+i}")
                for h in range(2):
                    f = 2*D + h
                    for i in range(4):
                        A(f"v_cvt_pk_bf16_f32 v{WIN+4*f+i}, v{ACC+16*D+8*h+2*i}, v{ACC+16*D+8*h+2*i+1}")
                    A(f"ds_write_b128 v{vQW}, {vr(WIN+4*f,4)} offset:{base_off + f*1024}")
            A("s_waitcnt lgkmcnt(0)")
        def pair(j):
            a = s.dma_k(j, vK, nt, f"KV{j}") if j <= 15 else []
            b = s.dma_v(j, vV, nt, f"KV{j}") if j >= 1 else []
            return a + b
        def own_frags():
            for half in range(2):
                for j in range(4):
                    if o.wrot: A(f"ds_read_b128 {vr(X+16*half+4*j,4)}, v{(vOL, vOL2)[half]} offset:{j*512}")
                    else: A(f"ds_read_b128 {vr(X+16*half+4*j,4)}, v{vOL} offset:{half*4096 + j*512}")
            A("s_waitcnt lgkmcnt(0)")

        A(f"v_add_u32 v21, s{sHP}, v1")
        A("v_add_u32 v21, 1, v21")
        A("v_and_b32 v21, 3, v21")
        A(f"v_add_u32 v21, s{sGRP}, v21")
        A("v_lshlrev_b32 v21, 7, v21")
        if o.tail == 10:
            A("v_writelane_b32 v21, s52, 3")
            A(f"s_bitcmp1_b32 s{sHG}, 0")
            A("s_cselect_b32 s52, 7, 15")
            A("s_cselect_b32 s53, 131072, 0")
        A(f"v_add_u32 v22, s{sHG}, v1")
        A("v_add_u32 v22, 1, v22")
        A("v_and_b32 v22, 3, v22")
        A("v_lshlrev_b32 v22, 2, v22")
        A(f"s_and_b32 s71, s{sGRP}, {hex(0xfffffff0)}")
        A(f"s_add_u32 s71, s71, s{sHP}")
        A("v_add_u32 v22, s71, v22")
        A("v_lshlrev_b32 v22, 7, v22")
        A("v_lshlrev_b32 v23, 4, v1")
        A(f"s_lshl_b32 s{sPF}, s{sHG}, 20")
        A("s_lshr_b32 s70, s2, 3")
        A("s_lshl_b32 s70, s70, 15")
        A(f"s_add_u32 s{sPF}, s{sPF}, s70")
        A(f"s_lshl_b32 s70, s{sW}, 13")
        A(f"s_add_u32 s{sPF}, s{sPF}, s70")
        def wq_pieces(D, base_off):
            L = [f"v_pk_mul_f32 {vr(ACC+16*D+2*i,2)}, {vr(ACC+16*D+2*i,2)}, s[{sCS}:{sCS+1}] op_sel_hi:[1,0]" for i in range(8)]
            for h in range(2):
                L += [f"v_cvt_pk_bf16_f32 v{ACC+16*D+4*h+i}, v{ACC+16*D+8*h+2*i}, v{ACC+16*D+8*h+2*i+1}" for i in range(4)]
                L.append(f"ds_write_b128 v{vQW}, {vr(ACC+16*D+4*h,4)} offset:{base_off + (2*D+h)*1024}")
            return L
        def douter(fr):
            last = fr[-16:]
            return fr[:-16] + sorted(last, key=lambda f: (f[4], f[3]))
        def dq_gaps(gaps, base_off):
            n = len(gaps); b = n - 16
            for D in range(3):
                spread(gaps, [[x] for x in wq_pieces(D, base_off)], b + 4*D + 5, min(b + 4*D + 9, n))
        def dq_end(base_off):
            s.emit(wq_pieces(3, base_off))
            A("s_waitcnt lgkmcnt(0)")
        fr0 = frags_c([(PX[c % NR] + 16384, c, c == 0) for c in range(8)])
        gaps0 = [[] for _ in fr0]
        if o.r3 == 2:
            for c in range(1, 7): gaps0[16*c - 1].append("s_barrier")
        if o.pro2:
            setup = s.L; s.L = capL
            sec = {"pre": [], "clr": [], "mid": [], "early": [], "post": []}
            cur = "pre"
            nxt = {"@@clr0": "clr", "@@clr1": "mid", "@@early0": "early", "@@early1": "post"}
            for l in setup:
                if l in nxt: cur = nxt[l]
                else: sec[cur].append(l if l.endswith(":") else l.strip())
            s.emit(sec["early"])
            fill = [[l] for l in sec["pre"]] + [sec["clr"]] + [[l] for l in sec["mid"] + sec["post"]]
            if o.pro2 == 1: spread(gaps0, fill, 2, 108)
            else:
                for g_ in fill: s.emit(g_)
            s.stamp("bs")
        else:
            s.stamp("bs")
            A("s_waitcnt vmcnt(0)")
        s.stamp("x0")
        A("s_barrier")
        s.stamp("p0")
        if o.dq:
            fr0 = douter(fr0); dq_gaps(gaps0, 0)
        bkv = eval(o.bkv)
        if o.r3 and 2 not in bkv and o.p2at > 7: bkv[2] = 96 + o.p2g
        for key, pos in sorted(bkv.items(), key=lambda z: z[1]):
            if key == 'q': g_ = s.dma_wq(0, P[0] + 16384, vW, "Q0", 256, 72)
            else: g_ = (s.dma_k(key, vK, nt, f"KV{key}") + (s.dma_v(key, vV, nt, f"KV{key}") if key else []))
            assert key != 2 or pos >= 96
            spread(gaps0, mat(g_), pos, pos + len(g_))
        stream(fr0, None, prologue=True, gapfill=gaps0, LA=(min(LA, 5) if o.dq else LA))
        if o.dq: dq_end(0)
        else: write_q(0)
        s.stamp("pro")
        def poll_check(vsrc, shift):
            A(f"v_readfirstlane_b32 s70, v{vsrc} ; @val=POLL")
            if shift == 0:
                A("s_lshr_b32 s71, s70, 1"); A("s_or_b32 s70, s70, s71")
            else:
                A(f"s_lshr_b32 s70, s70, {shift}")
            A("s_and_b32 s70, s70, 0x01010101")
            A("s_cmp_eq_u32 s70, 0x01010101")
        def mid_poll(slow=False):
            if o.lead:
                return [f"s_and_b32 s71, s{sGRP}, {hex(0xfffffff0)}",
                        f"buffer_load_dword v24, off, {srd(sDBG)}, s71{' sc1' if (slow or o.lead == 2) else ''}"]
            return [f"s_and_b32 s71, s{sGRP}, {hex(0xfffffff0)}",
                    f"buffer_load_dwordx4 v[24:27], off, {srd(sDBG)}, s71 sc1"] + \
                   ([f"buffer_load_dword v29, off, {srd(sDBG)}, s{sGRP} sc1"] if o.xs in (1, 2) else [])
        def mid_check():
            if o.lead:
                return [f"v_readfirstlane_b32 s70, v24 ; @val=POLL",
                        "s_and_b32 s70, s70, 0x01010101", "s_cmp_eq_u32 s70, 0x01010101"]
            return [f"v_and_b32 v24, v24, v25", f"v_and_b32 v26, v26, v27",
                    f"v_and_b32 v24, v24, v26",
                    "s_nop 0",
                    f"v_readfirstlane_b32 s70, v24 ; @val=POLL",
                    "s_and_b32 s70, s70, 0x01010101", "s_cmp_eq_u32 s70, 0x01010101"]
        sNC = 69
        sTG = [82, 84, 78, 80]
        def nonce_addr(d):
            return [f"s_lshr_b32 s{d}, s{sGRP}, 4", f"s_lshl_b32 s{d}, s{d}, 2", f"s_add_u32 s{d}, s{d}, s{sHP}", f"s_lshl_b32 s{d}, s{d}, 7",
                    f"s_lshl_b32 s71, s{sW}, 2", f"s_add_u32 s{d}, s{d}, s71", f"s_add_u32 s{d}, s{d}, {NONCE_BASE}"]
        def wave_poll(vaddr, nm, drain=True, mask=None):
            A(f"s_mov_b32 s{sSPIN}, 0")
            if mask: s.emit([f"s_mov_b32 exec_lo, s{mask}", "s_mov_b32 exec_hi, 0"])
            else: A("s_mov_b64 exec, 7")
            s.lab(f"B_{nm}")
            A(f"buffer_load_dword v{VP}, v{vaddr}, {srd(sWS)}, s72 offen sc1")
            A("s_waitcnt vmcnt(0)")
            A(f"v_cmp_ne_u32 vcc, 0, v{VP}")
            A(f"s_cmp_eq_u32 vcc_lo, {('s%d' % mask) if mask else 7}")
            A(f"s_cbranch_scc1 B_{nm}d ; @taken")
            A(f"s_add_u32 s{sSPIN}, s{sSPIN}, 1")
            A(f"s_cmp_lt_u32 s{sSPIN}, {o.spin}")
            A(f"s_cbranch_scc1 B_{nm}")
            s.lab(f"B_{nm}d")
            A("s_mov_b64 exec, -1")
            if drain: q.drain()
        wq_slot = lambda c: (P[0] + 16384) if c == 0 else W[(c + 1) % 4]
        wq_issue = {0: [1, 2], 1: [3], 2: [4], 3: [5], 4: [6], 5: [7]}
        wo0_slot = {(0,0): W[3], (0,1): W[0], (1,0): W[0], (1,1): W[1], (2,0): W[2], (2,1): W[3], (3,0): P[1], (3,1): P[2]}
        wo0_issue = eval(o.w0i)
        wo0_use = eval(o.w0u)
        ords = eval(o.ords)
        of0_issue = eval(o.f0)
        pf_issue = {1: [0, 1], 2: [2, 3], 3: [4], 4: [5], 5: [6], 6: [7]}
        wo1_slot = {(0,0): P[2] + 16384, (0,1): P[1] + 16384, (1,0): W[0], (1,1): W[1], (2,0): W[2], (2,1): W[3], (3,0): P[1], (3,1): P[2]}
        if o.tail == 11: wo1_slot.update(eval(o.w1s))
        wo1_issue = eval(o.w1i)
        FL0AT = o.fl0at if o.fl0at else o.s0at + 1
        PO0 = o.po0
        def flag_check(nm, mask=None, sfx=""):
            if mask: s.emit([f"s_mov_b32 exec_lo, s{mask}", "s_mov_b32 exec_hi, 0"])
            else: A("s_mov_b64 exec, 7")
            A(f"v_cmp_ne_u32 vcc, 0, v{VP}")
            A("s_mov_b64 exec, -1")
            A(f"s_cmp_eq_u32 vcc_lo, {('s%d' % mask) if mask else 7}")
            A(f"s_cbranch_scc0 B_slow{nm}{sfx} ; @nottaken")
            s.lab(f"B_slow{nm}{sfx}r")
        for st in range(17):
            s.stamp(f"c{st}")
            tags = [f"KV{st}"]
            if 0 <= st <= 7: tags.append(f"Q{st}")
            for (p, h) in wo0_use.get(st, []):
                tags += [f"O0{p}{h}", f"F{p}"]
            if st == FL0AT: tags.append("S0")
            if st == PO0 + o.pod: tags.append("POLL")
            if st == o.mp + o.mpd: tags.append("POLL0")
            if st == 9 and o.xs >= 3: tags.append("XQ")
            if st == 8: tags.append("PF")
            wait_vm(tags)
            s.stamp(f"w{st}")
            A("s_barrier")
            s.stamp(f"s{st}")
            if st in eval(o.prioB): A(f"s_setprio {eval(o.prioB)[st]}")
            if st == 8:
                for d in range(4):
                    A(f"s_add_u32 s70, s{sHG}, {1 + d}")
                    A("s_and_b32 s70, s70, 3")
                    A(f"v_xor_b32 v29, s70, v{vR}")
                    A("v_lshlrev_b32 v29, 6, v29")
                    A(f"v_add_u32 v29, v29, v{vWB}")
                    A(f"v_add_u32 v{WA+d}, {s.wbase}, v29")
            pre_groups = []
            if st == 9:
                own_frags()
            g_s = []
            s0sp = eval(o.s0sp) if o.s0sp else {o.s0at: [0, 1, 2, 3]}
            assert max(s0sp) == o.s0at
            if st in s0sp:
                g_s = of_mem(0, 0, 0, "S0", store=True) + of_mem(0, 0, 1, "S0", store=True)
                g_s = [g_s[i] for i in s0sp[st]]
                if "s" not in ords.get(st, o.order): pre_groups = g_s
            if st == 2 and not (o.abl & 16) and o.xs not in (1, 2):
                if o.lead:
                    A(f"s_or_b32 s70, s{sW}, s{sHG}")
                    A(f"s_or_b32 s70, s70, s{sHP}")
                    A("s_cmp_lg_u32 s70, 0")
                    A(f"s_cbranch_scc1 B_nf{st}")
                    A("v_mov_b32 v28, 0x01010101")
                    A("s_mov_b64 exec, 1")
                    A(f"buffer_store_dword v28, off, {srd(sDBG)}, s{sGRP} sc1")
                    A("s_mov_b64 exec, -1")
                else:
                    A(f"s_cmp_lg_u32 s{sW}, 0")
                    A(f"s_cbranch_scc1 B_nf{st}")
                    s.flag_store(1, 28)
                s.lab(f"B_nf{st}")
            if st == o.mp and not (o.abl & 32):
                s.emit(mid_poll()); q.issue("POLL0")
                if o.xs in (1, 2): q.issue("POLL0")
                if o.tg:
                    s.emit(nonce_addr(72))
                    A(f"buffer_load_dword v25, off, {srd(sWS)}, s72 sc1"); q.issue("POLL0")
            if st == 8 and o.xs >= 3:
                A(f"s_mov_b32 s72, {FLAG_BASE + 64}")
                A("s_mov_b64 exec, 15")
                A(f"buffer_load_dword v29, v21, {srd(sWS)}, s72 offen sc1"); q.issue("XQ")
                A("s_mov_b64 exec, -1")
            if st == 9 and o.xs >= 3:
                s.emit(s.xcc_byte(71))
                A("s_mov_b64 exec, 15")
                A("v_cmp_eq_u32 vcc, s71, v29")
                A("s_mov_b64 exec, -1")
                A("s_cmp_eq_u32 vcc_lo, 15")
                A(f"s_cselect_b32 s{sOBASE}, 1, 0")
            if st == o.mp + o.mpd and not (o.abl & 32):
                s.emit(mid_check())
                A("s_cbranch_scc0 B_slow0 ; @nottaken")
                s.lab("B_slow0r")
                if o.tg:
                    s.emit([f"v_readfirstlane_b32 s{sNC}, v25", f"s_add_u32 s{sNC}, s{sNC}, 1", f"s_mul_i32 s70, s{sNC}, 0x9E3779B1",
                            f"s_and_b32 s{sTG[0]}, s70, 0xff", f"s_bfe_u32 s{sTG[1]}, s70, 0x80008", f"s_bfe_u32 s{sTG[2]}, s70, 0x80010",
                            f"s_lshr_b32 s{sTG[3]}, s70, 24",
                            f"s_or_b32 s{sTG[1]}, s{sTG[1]}, 1", f"s_xor_b32 s{sTG[1]}, s{sTG[1]}, s{sTG[0]}"])
                if o.xs >= 3:
                    A(f"s_cmp_lg_u32 s{sW}, 0")
                    A("s_cbranch_scc1 B_nx")
                    s.emit(s.xcc_byte(71))
                    A(f"s_lshl_b32 s70, s{sMYB}, 7")
                    A(f"s_add_u32 s70, s70, {FLAG_BASE + 64}")
                    A("v_mov_b32 v28, s71")
                    A("s_mov_b64 exec, 1")
                    A(f"buffer_store_dword v28, off, {srd(sWS)}, s70 sc1")
                    A("s_mov_b64 exec, -1")
                    s.lab("B_nx")
                if o.xs in (1, 2):
                    s.emit(["v_readfirstlane_b32 s70, v29"] + s.xcc_byte(71) + ["s_mul_i32 s71, s71, 0x01010101", "s_cmp_eq_u32 s70, s71",
                            f"s_cselect_b32 s{sOBASE}, 1, 0"])
                s.stamp("chk0")
            if st == FL0AT and not (o.abl & 4):
                if o.xs:
                    A(f"s_cmp_eq_u32 s{sOBASE}, 0")
                    A("s_cbranch_scc1 B_wb ; @nottaken" if o.xs in (1, 3) else "s_branch B_wb")
                    s.lab("B_wbr")
                A(f"s_lshl_b32 s70, s{sMYB}, 7")
                A(f"s_lshl_b32 s71, s{sW}, 2")
                A(f"s_add_u32 s71, s71, {FLAG_BASE + 32}")
                A("s_add_u32 s70, s70, s71")
                A("v_mov_b32 v28, 1")
                A("s_mov_b64 exec, 1")
                A(f"buffer_store_dword v28, off, {srd(sWS)}, s70{s.ofl0}")
                A("s_mov_b64 exec, -1")
                q.issue("FL0")
            if st == PO0 and not (o.abl & 4):
                A(f"s_lshl_b32 s72, s{sW}, 2")
                A(f"s_add_u32 s72, s72, {FLAG_BASE + 32}")
                if o.tail == 10: s.emit(["s_mov_b32 exec_lo, s52", "s_mov_b32 exec_hi, 0"])
                else: A("s_mov_b64 exec, 7")
                A(f"buffer_load_dword v{VP}, v21, {srd(sWS)}, s72 offen sc1"); q.issue("POLL")
                A("s_mov_b64 exec, -1")
            if st == PO0 + o.pod and not (o.abl & 4):
                flag_check("1", mask=(52 if o.tail == 10 else None))
                s.stamp("chk")
            g_x = []
            for par_ in eval(o.wpf).get(st, []):
                g_x.append(("PF", ["v_lshlrev_b32 v31, 6, v1", f"s_lshl_b32 s71, s{sHP}, 18", f"s_lshl_b32 s70, s{sHG}, 20", "s_add_u32 s71, s71, s70",
                                   f"s_lshl_b32 s70, s{sB}, 14", "s_add_u32 s71, s71, s70", f"s_add_u32 s71, s71, s{sW4K}",
                                   f"s_add_u32 s71, s71, {par_ * 131072}",
                                   f"buffer_load_dword v30, v31, {srd(sWO)}, s71 offen ; @dummy"]))
            if st == o.fpf:
                assert st >= FL0AT
                g_x.append(("PF", ["v_lshrrev_b32 v31, 2, v1", "v_mul_u32_u24 v31, 1792, v31", "v_and_b32 v29, 3, v1", "v_lshlrev_b32 v29, 7, v29",
                                   "v_add_u32 v31, v31, v29", f"s_lshl_b32 s71, s{sW}, 9", f"s_add_u32 s71, s71, s{sOP}",
                                   f"s_cmp_eq_u32 s{sW}, 3", "s_cselect_b32 s70, 0x33333333, -1", "s_mov_b32 exec_lo, s70", "s_mov_b32 exec_hi, s70",
                                   f"buffer_load_dword v30, v31, {srd(sWS)}, s71 offen{o.fpfm} ; @dummy", "s_mov_b64 exec, -1"]))
            for tag_, ins_ in g_x:
                if o.xpos == 0:
                    q.issue(tag_); s.emit(ins_)
            if st == o.pz:
                gz = []
                for half in range(2):
                    for jj in range(2):
                        va = vO if jj == 0 else Y
                        ins = ([f"v_mov_b32 v{28+i}, -1" for i in range(4)] if not gz else []) + \
                              [f"s_add_u32 s72, s{sOP}, s{sOH[half]}", f"s_add_u32 s72, s72, {UNIT}", f"s_mov_b64 exec, s[{sEXLO}:{sEXHI}]"]
                        for j in range(2):
                            ins.append(f"buffer_store_dwordx4 v[28:31], v{va}, {srd(sWS)}, s72 offen offset:{j*1792} sc1")
                        ins.append("s_mov_b64 exec, -1")
                        gz.append((("PZ", "PZ"), ins))
                g_x = g_x + gz
                assert o.xpos == 1 and st < o.s0at
            g_kv = pair(st + 2) if st + 2 <= 16 else []
            if (o.r3 or 2 in eval(o.bkv) or o.p2at <= 7) and st == 0: g_kv = []
            g_w = []
            for c in wq_issue.get(st, []): g_w += s.dma_wq(c, wq_slot(c), vW, f"Q{c}", 256, 72)
            for (p, h) in wo0_issue.get(st, []): g_w += dma_wo(0, p, h, wo0_slot[(p, h)])
            g_f = []
            for p in of0_issue.get(st, []): g_f += of_mem(0, p, 0, f"F{p}") + of_mem(0, p, 1, f"F{p}")
            g_1 = []
            for (p, h) in wo1_issue.get(st, []): g_1 += dma_wo(1, p, h, wo1_slot[(p, h)])
            g_p = []
            if o.pf:
                for t in pf_issue.get(st, []):
                    g_p.append(("PF", [f"s_add_u32 s71, s{sPF}, {t*1024}",
                                       f"buffer_load_dwordx4 v[24:27], v23, {srd(sWO)}, s71 offen ; @dummy"]))
            if (o.abl & 1) and 10 <= st <= 13: g_w = []
            if st in eval(o.ablw): g_w = []
            if o.abl & 2: pre_groups = []
            if (o.abl & 8) and 8 <= st <= 13: g_kv = g_kv[:4]
            gm = {"w": g_w + g_1, "f": g_f, "k": g_kv, "p": g_p, "s": g_s}
            groups = pre_groups + sum((gm[c] for c in ords.get(st, o.order)), []) + (g_x if o.xpos else [])
            if o.ilv and st >= o.ilv0:
                oth = (pre_groups if o.ilv & 2 else []) + sum((gm[c] for c in o.order if c != "k"), [])
                def pos(lst, ph):
                    w = [2 if isinstance(g[0], tuple) else 1 for g in lst]; tot = sum(w); acc = 0; r = []
                    for g, x in zip(lst, w):
                        r.append(((acc + ph * x) / tot, g)); acc += x
                    return r
                a_ = pos(g_kv, 0.0) if g_kv else []
                b_ = pos(oth, 0.5) if oth else []
                merged = sorted([(x, 0, i, g) for i, (x, g) in enumerate(a_)] + [(x, 1, i, g) for i, (x, g) in enumerate(b_)], key=lambda z: (z[0], z[1], z[2]))
                groups = ([] if o.ilv & 2 else pre_groups) + [z[3] for z in merged]
            mem = mat2(groups)
            use = ([(wq_slot(st), st, st == 0)] if st <= 7 else []) + \
                  [(wo0_slot[(p, h)], 2*p + h, (p, h) == (0, 0)) for (p, h) in wo0_use.get(st, [])]
            if use and st == 7 and o.dq:
                fr7 = douter(frags_c(use)); g7 = [[] for _ in fr7]
                if not o.s7f: spread(g7, mem, 0, 16)
                if o.s7f == 2:
                    assert ords.get(st, o.order).startswith("k") and len(mem) == 12, len(mem)
                    for g_ in mem[:8]: s.emit(g_)
                    mem = mem[8:]
                if o.s7f == 3:
                    assert ords.get(st, o.order).startswith("k") and len(mem) == 12, len(mem)
                    for g_ in mem[:8]: s.emit(g_)
                    spread(g7, mem[8:], 0, 16); mem = []
                dq_gaps(g7, 16384)
                stream(fr7, None, gapfill=g7)
                s.stamp("q7a")
                dq_end(16384)
                s.stamp("q7b")
                if o.s7f:
                    for g_ in mem: s.emit(g_)
            elif use:
                if st in eval(o.mf):
                    nk = len(g_kv)
                    assert ords.get(st, o.order).replace("p", "").startswith("k") and not pre_groups
                    for g_ in mem[:nk]: s.emit(g_)
                    mem = mem[nk:]
                stream(frags_c(use), mem)
                if st == 7: write_q(16384)
            else:
                for gi, g_ in enumerate(mem):
                    s.emit(g_); s.stamp(f"m{st}_{gi}")
            s.stamp(f"d{st}")
        sPD = [sWP, sWP + 1, sWP + 2] if o.tail in (1, 3, 5, 6, 7, 8, 9, 10, 11, 12) else [82, 83, 84]
        def addr_prep():
            A("v_lshrrev_b32 v17, 5, v1")
            A("v_mul_u32_u24 v23, 112, v17")
            A("v_and_b32 v18, 31, v1")
            A("v_add_u32 v23, v23, v18")
            A(f"s_lshl_b32 s70, s{sW}, 5")
            A("v_add_u32 v23, s70, v23")
            A("v_add_u32 v19, s70, v18")
            A("v_lshlrev_b32 v23, 4, v23")
            A(f"s_lshl_b32 s70, s{sBR}, 3")
            A(f"s_add_u32 s70, s70, s{sB}")
            A(f"s_lshl_b32 s70, s70, 2")
            A(f"s_add_u32 s70, s70, s{sHP}")
            A(f"s_mul_i32 s73, s70, {12*PSZ}")
            A(f"s_add_u32 s73, s73, {PART_BASE}")
            for d in range(3):
                A(f"s_add_u32 s70, s{sHG}, {1 + d}")
                A("s_and_b32 s70, s70, 3")
                A(f"s_mul_i32 s70, s70, {3*PSZ}")
                A(f"s_add_u32 s70, s70, s73")
                A(f"s_add_u32 s{sPD[d]}, s70, {(2-d)*PSZ}")
            A("v_lshlrev_b32 v19, 11, v19")
            A("v_lshlrev_b32 v17, 4, v17")
            A("v_add_u32 v19, v19, v17")
            if o.tg: A("v_mov_b32 v24, 0xff")
        def pub(d):
            r = []
            for rq in range(4):
                tg = [f"v_bfi_b32 v{ACC+16*d+4*rq+i}, v24, s{sTG[i]}, v{ACC+16*d+4*rq+i}" for i in range(4)] if o.tg else []
                r.append(tg + [f"s_add_u32 s70, s{sPD[d]}, {rq*3584}", f"s_mov_b64 exec, s[{sEXLO}:{sEXHI}]",
                          f"buffer_store_dwordx4 {vr(ACC+16*d+4*rq,4)}, v23, {srd(sWS)}, s70 offen sc1{s.nths}", "s_mov_b64 exec, -1"])
            return r
        def part_ld(src, dst, rq):
            return [f"s_add_u32 s70, s73, {src*PSZ + rq*3584}",
                    f"buffer_load_dwordx4 {vr(dst+4*rq,4)}, v23, {srd(sWS)}, s70 offen sc1{s.nthl}"]
        def tail1():
            used0 = set(x for v in wo0_use.values() for x in v)
            tail0 = [(p, h) for p in range(4) for h in range(2) if (p, h) not in used0]
            tailF = sorted(set(p for p, h in tail0))
            assert all((p, 0) in tail0 or (p, 0) in used0 for p in tailF)
            issued1 = set(x for v in wo1_issue.values() for x in v)
            def ftags(p): return [f"O0{p}{h}" for h in range(2) if (p, h) in tail0] + ([f"F{p}"] if p else [])
            s.stamp("preE")
            wait_vm(ftags(tailF[0]) + ["O100"])
            s.stamp("wE")
            A(f"v_add_u32 v{vOL}, {hex((P[0] - W[1]) & 0xffffffff)}, v{vOL}")
            if o.wrot: A(f"v_add_u32 v{vOL2}, {hex((P[0] - W[1]) & 0xffffffff)}, v{vOL2}")
            A("s_barrier")
            s.stamp("E")
            busy = set(wo0_slot[c] for c in tail0)
            avail = [c for c in [(0, 1), (1, 0), (1, 1), (2, 0), (2, 1), (3, 0), (3, 1)] if c not in issued1 and wo1_slot[c] not in busy]
            for i, p in enumerate(tailF):
                fl = mat2(sum((dma_wo(1, pp, hh, wo1_slot[(pp, hh)]) for (pp, hh) in avail), []))
                issued1 |= set(avail)
                stream(frags_c([(wo0_slot[(p, h)], 2*p + h, False) for h in range(2) if (p, h) in tail0]), fl)
                for h in range(2): busy.discard(wo0_slot[(p, h)])
                avail = [c for c in [(0, 1), (1, 0), (1, 1), (2, 0), (2, 1), (3, 0), (3, 1)] if c not in issued1 and wo1_slot[c] not in busy]
                s.stamp(f"U{i}")
                if i + 1 < len(tailF):
                    wait_vm(ftags(tailF[i + 1]))
                    s.stamp(f"V{i}")
                    A("s_barrier")
                    s.stamp(f"T{i}")
            own_frags()
            wait_vm("O101")
            A("s_barrier")
            s.stamp("Ta")
            if o.t1p:
                A(f"s_lshl_b32 s72, s{sW}, 2")
                A(f"s_add_u32 s72, s72, {FLAG_BASE}")
                A("s_mov_b64 exec, 7")
                A(f"buffer_load_dword v{VP}, v21, {srd(sWS)}, s72 offen sc1"); q.issue("POLL1")
                A("s_mov_b64 exec, -1")
            fl = mat2(sum((dma_wo(1, pp, hh, wo1_slot[(pp, hh)]) for (pp, hh) in avail), []))
            issued1 |= set(avail)
            assert len(issued1) == 8, issued1
            stream(frags_c([(wo1_slot[(0, 0)], 0, False), (wo1_slot[(0, 1)], 1, False)]), fl)
            s.stamp("own")
            addr_prep()
            if o.t1p:
                wait_vm("POLL1")
                flag_check("2")
            else:
                A(f"s_lshl_b32 s72, s{sW}, 2")
                A(f"s_add_u32 s72, s72, {FLAG_BASE}")
                wave_poll(21, "poll1")
            s.stamp("poll1")
            gl = lambda p: of_mem(1, p, 0, f"G{p}") + of_mem(1, p, 1, f"G{p}")
            for g_ in mat2(gl(1) + gl(2)): s.emit(g_)
            A("s_barrier")
            ND = 3 if o.defer else 4
            for p in (1, 2):
                wait_vm(f"G{p}")
                if p == 1: s.stamp("g1")
                fl = mat2(gl(3)) if p == 1 else None
                stream([f for f in frags_c([(wo1_slot[(p, 0)], 2*p, False), (wo1_slot[(p, 1)], 2*p + 1, False)]) if f[4] < ND], fl)
            wait_vm("G3")
            if o.t1p: A("s_barrier")
            fr = []
            for d in range(ND):
                for half in range(2):
                    for j in range(4):
                        fr.append((wo1_slot[(3, half)], 6 + half, False, j, d, half))
            for p in ((1, 2, 3) if o.defer else ()):
                for half in range(2):
                    for j in range(4):
                        fr.append((wo1_slot[(p, half)], 2*p + half, False, j, 3, half))
            gaps = [[] for _ in range(len(fr))]
            for d in range(3):
                spread(gaps, pub(d), 8*d + 8 + 3, 8*d + 8 + 7)
            if o.tg == 2:
                gaps[0] = [f"s_mul_i32 s71, s{sHG}, {3*PSZ}", "s_add_u32 s73, s73, s71"] + gaps[0]
                if o.tge >= 0:
                    assert o.tge >= 31
                    for rq in range(4):
                        gaps[min(o.tge + rq, len(fr) - 1)] += [f"s_mov_b64 exec, s[{sEXLO}:{sEXHI}]"] + part_ld(2, 64, rq) + ["s_mov_b64 exec, -1"]
            stream(fr, None, gapfill=gaps)
        def tail2():
            used0 = set(x for v in wo0_use.values() for x in v)
            assert used0 == {(0, 0), (0, 1)}
            fdone = set(p for v in of0_issue.values() for p in v)
            assert wo1_issue == {15: [(0, 0)]}
            gb = lambda p: 2 * (p - 1)
            gl = lambda p: of_mem(1, p, 0, f"G{p}", blk=gb(p)) + of_mem(1, p, 1, f"G{p}", blk=gb(p))
            w1 = lambda cs: sum((dma_wo(1, pp, hh, wo1_slot[(pp, hh)]) for (pp, hh) in cs), [])
            fw = lambda p: frags_c([(wo0_slot[(p, 0)], 2*p, False), (wo0_slot[(p, 1)], 2*p + 1, False)])
            tags = [f"O0{p}{h}" for p in (1, 2, 3) for h in range(2)] + ["O100"]
            if PO0 == 16: tags.append("POLL")
            wait_vm(tags)
            A(f"v_add_u32 v{vOL}, {hex((P[0] - W[1]) & 0xffffffff)}, v{vOL}")
            if o.wrot: A(f"v_add_u32 v{vOL2}, {hex((P[0] - W[1]) & 0xffffffff)}, v{vOL2}")
            if PO0 == 16:
                flag_check("1")
                s.stamp("chk")
            rest = [p for p in (1, 2, 3) if p not in fdone]
            if o.fpre and PO0 == 16:
                for p in rest:
                    for g_ in mat2(of_mem(0, p, 0, f"F{p}") + of_mem(0, p, 1, f"F{p}")): s.emit(g_)
                rest = []
            A("s_barrier")
            s.stamp("E")
            for g_ in mat2(w1([(0, 1)])): s.emit(g_)
            for p in rest:
                for g_ in mat2(of_mem(0, p, 0, f"F{p}") + of_mem(0, p, 1, f"F{p}")): s.emit(g_)
            own_frags()
            stream(frags_c([(wo1_slot[(0, 0)], 0, False)]), None)
            addr_prep()
            wait_vm("O101")
            A("s_barrier")
            s.stamp("Ta")
            stream(frags_c([(wo1_slot[(0, 1)], 1, False)]), None)
            s.stamp("own")
            wait_vm("F1")
            s.stamp("f1")
            stream(fw(1), None)
            wait_vm("F2")
            A("s_barrier")
            A(f"s_lshl_b32 s72, s{sW}, 2")
            A(f"s_add_u32 s72, s72, {FLAG_BASE}")
            A("s_mov_b64 exec, 7")
            A(f"buffer_load_dword v{VP}, v21, {srd(sWS)}, s72 offen sc1"); q.issue("POLL1")
            A("s_mov_b64 exec, -1")
            s.stamp("f2")
            stream(fw(2), mat2(w1([(1, 0), (1, 1)])))
            wait_vm(["POLL1", "F3"])
            A("s_barrier")
            flag_check("2")
            s.stamp("poll1")
            for g_ in mat2(gl(1)): s.emit(g_)
            stream(fw(3), mat2(gl(2) + w1([(2, 0), (2, 1)]) + gl(3)))
            wait_vm(["O110", "O111"])
            A("s_barrier")
            s.stamp("f3")
            for g_ in mat2(w1([(3, 0), (3, 1)])): s.emit(g_)
            ND = 3 if o.defer else 4
            for p in (1, 2):
                if p == 2:
                    wait_vm(["O120", "O121", "G2"])
                    A("s_barrier")
                else:
                    wait_vm("G1")
                    s.stamp("g1")
                stream([f for f in frags_c([(wo1_slot[(p, 0)], gb(p), False), (wo1_slot[(p, 1)], gb(p) + 1, False)]) if f[4] < ND], None)
            wait_vm(["G3", "O130", "O131"])
            A("s_barrier")
            fr = []
            for d in range(ND):
                for half in range(2):
                    for j in range(4):
                        fr.append((wo1_slot[(3, half)], gb(3) + half, False, j, d, half))
            for p in ((1, 2, 3) if o.defer else ()):
                for half in range(2):
                    for j in range(4):
                        fr.append((wo1_slot[(p, half)], gb(p) + half, False, j, 3, half))
            gaps = [[] for _ in range(len(fr))]
            for d in range(3):
                spread(gaps, pub(d), 8*d + 8 + 3, 8*d + 8 + 7)
            stream(fr, None, gapfill=gaps)
        def tail3():
            used0 = set(x for v in wo0_use.values() for x in v)
            assert used0 == {(0, 0), (0, 1)}
            assert wo1_issue == {15: [(0, 0)]}
            gl = lambda p: of_mem(1, p, 0, f"G{p}") + of_mem(1, p, 1, f"G{p}")
            w1 = lambda cs: sum((dma_wo(1, pp, hh, wo1_slot[(pp, hh)]) for (pp, hh) in cs), [])
            fw = lambda p: frags_c([(wo0_slot[(p, 0)], 2*p, False), (wo0_slot[(p, 1)], 2*p + 1, False)])
            ft = lambda p: [f"O0{p}0", f"O0{p}1", f"F{p}"]
            def poll_issue():
                A(f"s_lshl_b32 s72, s{sW}, 2")
                A(f"s_add_u32 s72, s72, {FLAG_BASE}")
                A("s_mov_b64 exec, 7")
                A(f"buffer_load_dword v{VP}, v21, {srd(sWS)}, s72 offen sc1"); q.issue("POLL1")
                A("s_mov_b64 exec, -1")
            wait_vm(ft(1) + ["O100"])
            A(f"v_add_u32 v{vOL}, {hex((P[0] - W[1]) & 0xffffffff)}, v{vOL}")
            if o.wrot: A(f"v_add_u32 v{vOL2}, {hex((P[0] - W[1]) & 0xffffffff)}, v{vOL2}")
            A("s_barrier")
            s.stamp("E")
            if o.t3a == 0: stream(fw(1), mat2(w1([(0, 1)])))
            else:
                stream(fw(1), None)
                for g_ in mat2(w1([(0, 1)])): s.emit(g_)
            wait_vm(ft(2))
            A("s_barrier")
            s.stamp("T0")
            if o.t3p == 0: poll_issue()
            stream(fw(2), mat2(w1([(1, 0), (1, 1)])))
            if o.t3p == 1: poll_issue()
            wait_vm(ft(3) + (["POLL1"] if o.t3p == 0 else []))
            A("s_barrier")
            s.stamp("T1")
            if o.t3p == 0:
                flag_check("2")
                s.stamp("poll1")
                stream(fw(3), mat2(gl(1) + w1([(2, 0), (2, 1)]) + gl(2)))
            else:
                stream(fw(3), mat2(w1([(2, 0), (2, 1)])))
                wait_vm("POLL1")
                flag_check("2")
                s.stamp("poll1")
                for g_ in mat2(gl(1)): s.emit(g_)
            own_frags()
            wait_vm("O101")
            A("s_barrier")
            s.stamp("Ta")
            stream(frags_c([(wo1_slot[(0, 0)], 0, False), (wo1_slot[(0, 1)], 1, False)]),
                   mat2((gl(2) if o.t3p == 1 else []) + (gl(3) + w1([(3, 0), (3, 1)]) if o.t3g == 0 else w1([(3, 0), (3, 1)]) + gl(3))))
            s.stamp("own")
            addr_prep()
            ND = 3 if o.defer else 4
            for p in (1, 2):
                wait_vm([f"O1{p}0", f"O1{p}1", f"G{p}"])
                A("s_barrier")
                if p == 1: s.stamp("g1")
                stream([f for f in frags_c([(wo1_slot[(p, 0)], 2*p, False), (wo1_slot[(p, 1)], 2*p + 1, False)]) if f[4] < ND], None)
            wait_vm(["G3", "O130", "O131"])
            A("s_barrier")
            fr = []
            for d in range(ND):
                for half in range(2):
                    for j in range(4):
                        fr.append((wo1_slot[(3, half)], 6 + half, False, j, d, half))
            for p in ((1, 2, 3) if o.defer else ()):
                for half in range(2):
                    for j in range(4):
                        fr.append((wo1_slot[(p, half)], 2*p + half, False, j, 3, half))
            gaps = [[] for _ in range(len(fr))]
            for d in range(3):
                spread(gaps, pub(d), 8*d + 8 + 3, 8*d + 8 + 7)
            if o.tg == 2:
                gaps[0] = [f"s_mul_i32 s71, s{sHG}, {3*PSZ}", "s_add_u32 s73, s73, s71"] + gaps[0]
            stream(fr, None, gapfill=gaps)
        def tail5():
            used0 = set(x for v in wo0_use.values() for x in v)
            assert used0 == {(0, 0), (0, 1)}
            assert wo1_issue == {15: [(0, 0)]}
            gl = lambda p: of_mem(1, p, 0, f"G{p}") + of_mem(1, p, 1, f"G{p}")
            fl = lambda p: of_mem(0, p, 0, f"F{p}") + of_mem(0, p, 1, f"F{p}")
            w1 = lambda cs: sum((dma_wo(1, pp, hh, wo1_slot[(pp, hh)]) for (pp, hh) in cs), [])
            w0 = lambda cs: sum((dma_wo(0, pp, hh, wo0_slot[(pp, hh)]) for (pp, hh) in cs), [])
            fw = lambda p: frags_c([(wo0_slot[(p, 0)], 2*p, False), (wo0_slot[(p, 1)], 2*p + 1, False)])
            ft = lambda p: [f"O0{p}0", f"O0{p}1", f"F{p}"]
            in_loop_w = set(x for v in wo0_issue.values() for x in v)
            in_loop_f = set(x for v in of0_issue.values() for x in v)
            late_w = [(3, h) for h in range(2) if (3, h) not in in_loop_w]
            late_f = [] if 3 in in_loop_f else [3]
            s.stamp("preE")
            wait_vm(ft(1) + ["O100"])
            s.stamp("wE")
            A(f"v_add_u32 v{vOL}, {hex((P[0] - W[1]) & 0xffffffff)}, v{vOL}")
            if o.wrot: A(f"v_add_u32 v{vOL2}, {hex((P[0] - W[1]) & 0xffffffff)}, v{vOL2}")
            A("s_barrier")
            s.stamp("E")
            stream(fw(1), mat2(w1([(0, 1)]) + w0(late_w)))
            s.stamp("U0")
            wait_vm(ft(2))
            A("s_barrier")
            s.stamp("T0")
            stream(fw(2), mat2(sum((fl(p) for p in late_f), []) + w1([(1, 0), (1, 1)])))
            s.stamp("U1")
            own_frags()
            wait_vm(["O101", "O030", "O031"])
            A("s_barrier")
            s.stamp("Ta")
            stream(frags_c([(wo1_slot[(0, 0)], 0, False), (wo1_slot[(0, 1)], 1, False)]), mat2(w1([(2, 0), (2, 1)])))
            s.stamp("own")
            addr_prep()
            A(f"s_lshl_b32 s72, s{sW}, 2")
            A(f"s_add_u32 s72, s72, {FLAG_BASE}")
            wave_poll(21, "poll1")
            s.stamp("poll1")
            for g_ in mat2(gl(1) + gl(2)): s.emit(g_)
            stream(fw(3), None)
            s.stamp("U2")
            A("s_barrier")
            s.stamp("Tb")
            ND = 3 if o.defer else 4
            for p in (1, 2):
                wait_vm(f"G{p}")
                if p == 1: s.stamp("g1")
                f_ = mat2(w1([(3, 0), (3, 1)]) + gl(3) if o.t5g == 0 else gl(3) + w1([(3, 0), (3, 1)])) if p == 1 else None
                stream([f for f in frags_c([(wo1_slot[(p, 0)], 2*p, False), (wo1_slot[(p, 1)], 2*p + 1, False)]) if f[4] < ND], f_)
            wait_vm(["G3", "O130", "O131"])
            A("s_barrier")
            s.stamp("Tc")
            fr = []
            for d in range(ND):
                for half in range(2):
                    for j in range(4):
                        fr.append((wo1_slot[(3, half)], 6 + half, False, j, d, half))
            for p in ((1, 2, 3) if o.defer else ()):
                for half in range(2):
                    for j in range(4):
                        fr.append((wo1_slot[(p, half)], 2*p + half, False, j, 3, half))
            gaps = [[] for _ in range(len(fr))]
            for d in range(3):
                spread(gaps, pub(d), 8*d + 8 + 3, 8*d + 8 + 7)
            if o.tg == 2:
                gaps[0] = [f"s_mul_i32 s71, s{sHG}, {3*PSZ}", "s_add_u32 s73, s73, s71"] + gaps[0]
            stream(fr, None, gapfill=gaps)
        def tail6():
            used0 = set(x for v in wo0_use.values() for x in v)
            assert used0 == {(0, 0), (0, 1)}
            assert wo1_issue == {15: [(0, 0)]}
            T6 = dict(wo1_slot); T6[(3, 0)] = P[0]; T6[(3, 1)] = P[0] + 16384
            gl = lambda p: of_mem(1, p, 0, f"G{p}") + of_mem(1, p, 1, f"G{p}")
            fw = lambda p: frags_c([(wo0_slot[(p, 0)], 2*p, False), (wo0_slot[(p, 1)], 2*p + 1, False)])
            ft = lambda p: [f"O0{p}0", f"O0{p}1", f"F{p}"]
            s.stamp("preE")
            wait_vm(ft(1) + ["O100"])
            s.stamp("wE")
            A(f"v_add_u32 v{vOL}, {hex((P[0] - W[1]) & 0xffffffff)}, v{vOL}")
            if o.wrot: A(f"v_add_u32 v{vOL2}, {hex((P[0] - W[1]) & 0xffffffff)}, v{vOL2}")
            A("s_barrier")
            s.stamp("E")
            f1 = fw(1); gaps = [[] for _ in f1]
            rd_ = []
            for half in range(2):
                for j in range(4):
                    if o.wrot: rd_.append([f"ds_read_b128 {vr(X+16*half+4*j,4)}, v{(vOL, vOL2)[half]} offset:{j*512} ; @own"])
                    else: rd_.append([f"ds_read_b128 {vr(X+16*half+4*j,4)}, v{vOL} offset:{half*4096 + j*512} ; @own"])
            spread(gaps, rd_, 8, 24)
            stream(f1, None, gapfill=gaps)
            s.stamp("U0")
            A("s_waitcnt lgkmcnt(0)")
            wait_vm(ft(2))
            A("s_barrier")
            s.stamp("T0")
            stream(fw(2), None)
            s.stamp("U1")
            wait_vm(["O030", "O031"])
            A("s_barrier")
            s.stamp("Ta")
            stream(frags_c([(T6[(0, 0)], 0, False), (T6[(0, 1)], 1, False)]), None)
            s.stamp("own")
            addr_prep()
            wait_vm("F3")
            A("s_barrier")
            s.stamp("poll1")
            f3 = fw(3); gaps = [[] for _ in f3]
            g1e, g2e = eval(o.t6g)
            spread(gaps, mat2(gl(1)), 0, g1e)
            spread(gaps, mat2(gl(2)), g1e, g2e)
            stream(f3, None, gapfill=gaps)
            s.stamp("U2")
            ND = 3 if o.defer else 4
            for p in (1, 2):
                wait_vm(f"G{p}")
                if p == 2: A("s_barrier")
                if p == 1: s.stamp("g1")
                fr_ = [f for f in frags_c([(T6[(p, 0)], 2*p, False), (T6[(p, 1)], 2*p + 1, False)]) if f[4] < ND]
                gaps = [[] for _ in fr_]
                if p == 1: spread(gaps, mat2(gl(3)), 0, o.t6h)
                stream(fr_, None, gapfill=gaps)
            wait_vm("G3")
            if o.t6v != 1: A("s_barrier")
            s.stamp("Tc")
            fr = []
            for d in range(ND):
                for half in range(2):
                    for j in range(4):
                        fr.append((T6[(3, half)], 6 + half, False, j, d, half))
            for p in ((1, 2, 3) if o.defer else ()):
                for half in range(2):
                    for j in range(4):
                        fr.append((T6[(p, half)], 2*p + half, False, j, 3, half))
            gaps = [[] for _ in range(len(fr))]
            for d in range(3):
                spread(gaps, pub(d), 8*d + 8 + 3, 8*d + 8 + 7)
            if o.tg == 2:
                gaps[0] = [f"s_mul_i32 s71, s{sHG}, {3*PSZ}", "s_add_u32 s73, s73, s71"] + gaps[0]
            stream(fr, None, gapfill=gaps)
        def tail7():
            used0 = set(x for v in wo0_use.values() for x in v)
            assert used0 == {(0, 0), (0, 1)}
            assert wo1_issue == {15: [(0, 0)]}
            gl = lambda p: of_mem(1, p, 0, f"G{p}") + of_mem(1, p, 1, f"G{p}")
            fl = lambda p: of_mem(0, p, 0, f"F{p}") + of_mem(0, p, 1, f"F{p}")
            w1 = lambda cs: sum((dma_wo(1, pp, hh, wo1_slot[(pp, hh)]) for (pp, hh) in cs), [])
            fw = lambda p: frags_c([(wo0_slot[(p, 0)], 2*p, False), (wo0_slot[(p, 1)], 2*p + 1, False)])
            ft = lambda p: [f"O0{p}0", f"O0{p}1", f"F{p}"]
            in_loop_f = set(x for v in of0_issue.values() for x in v)
            late_f = [p for p in (2, 3) if p not in in_loop_f]
            s.stamp("preE")
            wait_vm(ft(1) + ["O100"])
            s.stamp("wE")
            A(f"v_add_u32 v{vOL}, {hex((P[0] - W[1]) & 0xffffffff)}, v{vOL}")
            if o.wrot: A(f"v_add_u32 v{vOL2}, {hex((P[0] - W[1]) & 0xffffffff)}, v{vOL2}")
            A("s_barrier")
            s.stamp("E")
            stream(fw(1), mat2(sum((fl(p) for p in late_f), []) + w1([(0, 1)])))
            s.stamp("U0")
            wait_vm(ft(2))
            A("s_barrier")
            s.stamp("T0")
            stream(fw(2), mat2(w1([(1, 0), (1, 1)])))
            s.stamp("U1")
            wait_vm(ft(3))
            A("s_barrier")
            s.stamp("T1")
            f3 = fw(3); gaps = [[] for _ in f3]
            pl = [f"s_lshl_b32 s72, s{sW}, 2", f"s_add_u32 s72, s72, {FLAG_BASE}", "s_mov_b64 exec, 7",
                  f"buffer_load_dword v{VP}, v21, {srd(sWS)}, s72 offen sc1", "s_mov_b64 exec, -1"]
            ga = w1([(2, 0)]); gb = w1([(2, 1)])
            if o.t7p < 0:
                q.issue("POLL1"); s.emit(pl)
                spread(gaps, mat2(ga + gb), 0, 32)
            else:
                assert o.t7p in (8, 16, 24)
                if o.t7p == 8:
                    spread(gaps, mat2(ga), 0, 8); q.issue("POLL1"); gaps[8] += pl; spread(gaps, mat2(gb), 10, 26)
                elif o.t7p == 16:
                    spread(gaps, mat2(ga), 0, 16); q.issue("POLL1"); gaps[16] += pl; spread(gaps, mat2(gb), 18, 32)
                else:
                    spread(gaps, mat2(ga + gb), 0, 24); q.issue("POLL1"); gaps[24] += pl
            stream(f3, None, gapfill=gaps)
            s.stamp("U2")
            own_frags()
            wait_vm(["O101", "POLL1"])
            A("s_barrier")
            s.stamp("Ta")
            own = frags_c([(wo1_slot[(0, 0)], 0, False), (wo1_slot[(0, 1)], 1, False)])
            old_ = s.L; s.L = []; addr_prep(); ap_ = [[l.strip()] for l in s.L]; s.L = old_
            A("s_mov_b64 exec, 7")
            A(f"v_cmp_ne_u32 vcc, 0, v{VP}")
            A("s_mov_b64 exec, -1")
            A("s_cmp_eq_u32 vcc_lo, 7")
            A("s_cbranch_scc0 B_t7slow ; @hook=SLOW7")
            st_q = list(q.q); st_w = s.wbase
            gaps = [[] for _ in own]
            w3 = mat2(w1([(3, 0), (3, 1)]))
            g1_ = mat2(gl(1)); g2_ = mat2(gl(2)) if o.t7g else None
            if o.t7g:
                spread(gaps, w3, 0, 8); spread(gaps, g1_, 8, 18); spread(gaps, g2_, 18, 30)
            else:
                spread(gaps, w3, 0, 12); spread(gaps, g1_, 12, 28)
            spread(gaps, ap_, 4, 30)
            stream(own, None, gapfill=gaps)
            s.stamp("own")
            s.stamp("poll1")
            s.lab("B_t7m")
            fin_q = list(q.q); fin_w = s.wbase
            q.q = list(st_q); s.wbase = st_w
            old_ = s.L; s.L = []
            s.lab("B_t7slow")
            gaps = [[] for _ in own]
            spread(gaps, mat2(w1([(3, 0), (3, 1)])), 0, 24)
            spread(gaps, ap_, 4, 30)
            stream(own, None, gapfill=gaps)
            s.stamp("own")
            A(f"s_lshl_b32 s72, s{sW}, 2")
            A(f"s_add_u32 s72, s72, {FLAG_BASE}")
            wave_poll(21, "poll1")
            s.stamp("poll1")
            for g_ in mat2(gl(1) + (gl(2) if o.t7g else [])): s.emit(g_)
            A("s_branch B_t7m")
            assert s.wbase == fin_w
            t7_slow.extend(s.L); s.L = old_
            q.q = list(fin_q)
            wait_vm(["O130", "O131"])
            A("s_barrier")
            ND = 3 if o.defer else 4
            for p in (1, 2):
                wait_vm(f"G{p}")
                if p == 1: s.stamp("g1")
                fr_ = [f for f in frags_c([(wo1_slot[(p, 0)], 2*p, False), (wo1_slot[(p, 1)], 2*p + 1, False)]) if f[4] < ND]
                gaps = [[] for _ in fr_]
                if o.t7g:
                    if p == 1: spread(gaps, mat2(gl(3)), 0, o.t7h)
                else:
                    spread(gaps, mat2(gl(p + 1)), 0, o.t7h)
                stream(fr_, None, gapfill=gaps)
            wait_vm("G3")
            s.stamp("Tc")
            fr = []
            for d in range(ND):
                for half in range(2):
                    for j in range(4):
                        fr.append((wo1_slot[(3, half)], 6 + half, False, j, d, half))
            for p in ((1, 2, 3) if o.defer else ()):
                for half in range(2):
                    for j in range(4):
                        fr.append((wo1_slot[(p, half)], 2*p + half, False, j, 3, half))
            gaps = [[] for _ in range(len(fr))]
            for d in range(3):
                spread(gaps, pub(d), 8*d + 8 + 3, 8*d + 8 + 7)
            if o.tg == 2:
                gaps[0] = [f"s_mul_i32 s71, s{sHG}, {3*PSZ}", "s_add_u32 s73, s73, s71"] + gaps[0]
            stream(fr, None, gapfill=gaps)
        def tail8():
            used0 = set(x for v in wo0_use.values() for x in v)
            assert used0 == {(0, 0), (0, 1)}
            assert wo1_issue == {15: [(0, 0)]}
            gl = lambda p: of_mem(1, p, 0, f"G{p}") + of_mem(1, p, 1, f"G{p}")
            fl = lambda p: of_mem(0, p, 0, f"F{p}") + of_mem(0, p, 1, f"F{p}")
            fw = lambda p: frags_c([(wo0_slot[(p, 0)], 2*p, False), (wo0_slot[(p, 1)], 2*p + 1, False)])
            ft = lambda p: [f"O0{p}0", f"O0{p}1", f"F{p}"]
            in_loop_f = set(x for v in of0_issue.values() for x in v)
            late_f = [p for p in (2, 3) if p not in in_loop_f]
            s.stamp("preE")
            wait_vm(ft(1) + ["O100"])
            s.stamp("wE")
            A(f"v_add_u32 v{vOL}, {hex((P[0] - W[1]) & 0xffffffff)}, v{vOL}")
            if o.wrot: A(f"v_add_u32 v{vOL2}, {hex((P[0] - W[1]) & 0xffffffff)}, v{vOL2}")
            A("s_barrier")
            s.stamp("E")
            f1 = fw(1); gaps = [[] for _ in f1]
            if late_f: spread(gaps, mat2(sum((fl(p) for p in late_f), [])), 0, o.t8f)
            stream(f1, None, gapfill=gaps)
            s.stamp("U0")
            wait_vm(ft(2))
            A("s_barrier")
            s.stamp("T0")
            stream(fw(2), None)
            s.stamp("U1")
            wait_vm(ft(3))
            A("s_barrier")
            s.stamp("T1")
            f3 = fw(3); gaps = [[] for _ in f3]
            rd_ = []
            for half in range(2):
                for j in range(4):
                    if o.wrot: rd_.append([f"ds_read_b128 {vr(X+16*half+4*j,4)}, v{(vOL, vOL2)[half]} offset:{j*512} ; @own"])
                    else: rd_.append([f"ds_read_b128 {vr(X+16*half+4*j,4)}, v{vOL} offset:{half*4096 + j*512} ; @own"])
            spread(gaps, rd_, 8, 24)
            stream(f3, None, gapfill=gaps)
            s.stamp("U2")
            A("s_waitcnt lgkmcnt(0)")
            A("s_barrier")
            s.stamp("Ta")
            own = frags_c([(wo1_slot[(0, 0)], 0, False), (wo1_slot[(0, 1)], 1, False)])
            old_ = s.L; s.L = []; addr_prep(); ap_ = [[l.strip()] for l in s.L]; s.L = old_
            gaps = [[] for _ in own]
            spread(gaps, ap_, 2, 30)
            pl = [f"s_lshl_b32 s72, s{sW}, 2", f"s_add_u32 s72, s72, {FLAG_BASE}", "s_mov_b64 exec, 7",
                  f"buffer_load_dword v{VP}, v21, {srd(sWS)}, s72 offen sc1", "s_mov_b64 exec, -1"]
            if o.t8p >= 0:
                q.issue("POLL1"); gaps[o.t8p] += pl
            stream(own, None, gapfill=gaps)
            s.stamp("own")
            if o.t8p >= 0:
                wait_vm("POLL1")
                flag_check("2")
            else:
                A(f"s_lshl_b32 s72, s{sW}, 2")
                A(f"s_add_u32 s72, s72, {FLAG_BASE}")
                wave_poll(21, "poll1")
            s.stamp("poll1")
            for g_ in mat2(gl(1) + gl(2)): s.emit(g_)
            A("s_barrier")
            ND = 3 if o.defer else 4
            for p in (1, 2):
                wait_vm(f"G{p}")
                if p == 1: s.stamp("g1")
                fr_ = [f for f in frags_c([(wo1_slot[(p, 0)], 2*p, False), (wo1_slot[(p, 1)], 2*p + 1, False)]) if f[4] < ND]
                gaps = [[] for _ in fr_]
                if p == 1: spread(gaps, mat2(gl(3)), 0, o.t7h)
                stream(fr_, None, gapfill=gaps)
            wait_vm("G3")
            s.stamp("Tc")
            fr = []
            for d in range(ND):
                for half in range(2):
                    for j in range(4):
                        fr.append((wo1_slot[(3, half)], 6 + half, False, j, d, half))
            for p in ((1, 2, 3) if o.defer else ()):
                for half in range(2):
                    for j in range(4):
                        fr.append((wo1_slot[(p, half)], 2*p + half, False, j, 3, half))
            gaps = [[] for _ in range(len(fr))]
            for d in range(3):
                spread(gaps, pub(d), 8*d + 8 + 3, 8*d + 8 + 7)
            if o.tg == 2:
                gaps[0] = [f"s_mul_i32 s71, s{sHG}, {3*PSZ}", "s_add_u32 s73, s73, s71"] + gaps[0]
            stream(fr, None, gapfill=gaps)
        def tail9():
            used0 = set(x for v in wo0_use.values() for x in v)
            assert used0 == {(0, 0), (0, 1)}
            assert wo1_issue == {15: [(0, 0)]}
            gl = lambda p: of_mem(1, p, 0, f"G{p}") + of_mem(1, p, 1, f"G{p}")
            fl = lambda p: of_mem(0, p, 0, f"F{p}") + of_mem(0, p, 1, f"F{p}")
            fw = lambda p: frags_c([(wo0_slot[(p, 0)], 2*p, False), (wo0_slot[(p, 1)], 2*p + 1, False)])
            in_loop_f = set(x for v in of0_issue.values() for x in v)
            late_f = [p for p in (2, 3) if p not in in_loop_f]
            def wl_vm(tags):
                n = q.wait(tags)
                return [f"s_waitcnt vmcnt({n})"] if n is not None else []
            s.stamp("preE")
            wait_vm([f"O0{p}{h}" for p in (1, 2, 3) for h in range(2)] + ["F1", "O100"])
            s.stamp("wE")
            A(f"v_add_u32 v{vOL}, {hex((P[0] - W[1]) & 0xffffffff)}, v{vOL}")
            if o.wrot: A(f"v_add_u32 v{vOL2}, {hex((P[0] - W[1]) & 0xffffffff)}, v{vOL2}")
            A("s_barrier")
            s.stamp("E")
            own = frags_c([(wo1_slot[(0, 0)], 0, False), (wo1_slot[(0, 1)], 1, False)])
            fr = fw(1) + fw(2) + fw(3) + own
            gaps = [[] for _ in fr]
            if late_f: spread(gaps, mat2(sum((fl(p) for p in late_f), [])), 0, o.t8f)
            gaps[31] += wl_vm("F2") + s.stamp_lines("U0") + ["s_barrier"] + s.stamp_lines("T0")
            gaps[63] += wl_vm("F3") + s.stamp_lines("U1") + ["s_barrier"] + s.stamp_lines("T1")
            rd_ = []
            for half in range(2):
                for j in range(4):
                    if o.wrot: rd_.append([f"ds_read_b128 {vr(X+16*half+4*j,4)}, v{(vOL, vOL2)[half]} offset:{j*512} ; @own"])
                    else: rd_.append([f"ds_read_b128 {vr(X+16*half+4*j,4)}, v{vOL} offset:{half*4096 + j*512} ; @own"])
            spread(gaps, rd_, 68, 84)
            gaps[95] += s.stamp_lines("U2") + ["s_barrier"] + s.stamp_lines("Ta")
            old_ = s.L; s.L = []; addr_prep(); ap_ = [[l.strip()] for l in s.L]; s.L = old_
            spread(gaps, ap_, 98, 126)
            pl = [f"s_lshl_b32 s72, s{sW}, 2", f"s_add_u32 s72, s72, {FLAG_BASE}", "s_mov_b64 exec, 7",
                  f"buffer_load_dword v{VP}, v21, {srd(sWS)}, s72 offen sc1", "s_mov_b64 exec, -1"]
            if o.t8p >= 0:
                q.issue("POLL1"); gaps[96 + o.t8p] += pl
            stream(fr, None, gapfill=gaps)
            s.stamp("own")
            if o.t8p >= 0:
                wait_vm("POLL1")
                flag_check("2")
            else:
                A(f"s_lshl_b32 s72, s{sW}, 2")
                A(f"s_add_u32 s72, s72, {FLAG_BASE}")
                wave_poll(21, "poll1")
            s.stamp("poll1")
            if o.t9g == 0: iss = gl(1) + gl(2)
            elif o.t9g == 1: iss = gl(1)
            else: iss = gl(1) + gl(2) + gl(3)
            for g_ in mat2(iss): s.emit(g_)
            A("s_barrier")
            ND = 3 if o.defer else 4
            assert o.defer
            fr = []
            for p in (1, 2):
                fr += [f for f in frags_c([(wo1_slot[(p, 0)], 2*p, False), (wo1_slot[(p, 1)], 2*p + 1, False)]) if f[4] < ND]
            for d in range(ND):
                for half in range(2):
                    for j in range(4):
                        fr.append((wo1_slot[(3, half)], 6 + half, False, j, d, half))
            for p in (1, 2, 3):
                for half in range(2):
                    for j in range(4):
                        fr.append((wo1_slot[(p, half)], 2*p + half, False, j, 3, half))
            gaps = [[] for _ in range(len(fr))]
            g1w = wl_vm("G1")
            if o.t9g == 1:
                spread(gaps, mat2(gl(2)), 0, 8);
                w2 = wl_vm("G2")
                raise NotImplementedError
            if o.t9g == 0:
                spread(gaps, mat2(gl(3)), 0, o.t7h)
            gaps[23] += wl_vm("G2")
            gaps[47] += wl_vm("G3") + s.stamp_lines("Tc")
            for d in range(3):
                spread(gaps, pub(d), 48 + 8*d + 8 + 3, 48 + 8*d + 8 + 7)
            if o.tg == 2:
                gaps[48] = [f"s_mul_i32 s71, s{sHG}, {3*PSZ}", "s_add_u32 s73, s73, s71"] + gaps[48]
            first = [True]
            stream(fr, None, gapfill=gaps, premf={0: g1w + s.stamp_lines("g1")})
        def tail10():
            used0 = set(x for v in wo0_use.values() for x in v)
            assert used0 == {(0, 0), (0, 1)}
            assert wo1_issue == {15: [(0, 0)]}
            assert set(x for v in of0_issue.values() for x in v) == {1}
            assert o.defer and o.tg == 2
            gl = lambda p, blk: of_mem(1, p, 0, f"G{p}", blk=blk) + of_mem(1, p, 1, f"G{p}", blk=blk)
            fl = lambda p: of_mem(0, p, 0, f"F{p}") + of_mem(0, p, 1, f"F{p}")
            two = lambda s0, s1, blk: frags_c([(s0, blk, False), (s1, blk + 1, False)])
            def wl_vm(tags):
                n = q.wait(tags)
                return [f"s_waitcnt vmcnt({n})"] if n is not None else []
            rd_ = []
            for half in range(2):
                for j in range(4):
                    rd_.append([f"ds_read_b128 {vr(X+16*half+4*j,4)}, v{(vOL, vOL2)[half]} offset:{j*512} ; @own"])
            def ap_lines():
                old_ = s.L; s.L = []; addr_prep(); r = [[l.strip()] for l in s.L]; s.L = old_
                return r
            pl = [f"s_lshl_b32 s72, s{sW}, 2", f"s_add_u32 s72, s72, {FLAG_BASE}", "s_mov_b64 exec, 7",
                  f"buffer_load_dword v{VP}, v21, {srd(sWS)}, s72 offen sc1", "s_mov_b64 exec, -1"]
            def head(late):
                for g_ in mat2(sum((fl(p) for p in late), [])): s.emit(g_)
                s.stamp("preE")
                wait_vm(["O011", "O010", "O020", "O021", "O030", "O031", "F1", "O100"])
                s.stamp("wE")
                A(f"v_add_u32 v{vOL}, {hex((P[0] - W[1]) & 0xffffffff)}, v{vOL}")
                A(f"v_add_u32 v{vOL2}, {hex((P[0] - W[1]) & 0xffffffff)}, v{vOL2}")
                A("s_barrier")
                s.stamp("E")
            def second(stg, fill, barr, waits, first_wait):
                fr = []
                for (s0, s1, blk, df) in stg[:-1]:
                    fr += [f for f in two(s0, s1, blk) if (f[4] < 3 or not df)]
                base = len(fr)
                s0, s1, blk, df = stg[-1]
                for d in range(3):
                    for half in range(2):
                        for j in range(4):
                            fr.append(((s0, s1)[half], blk + half, False, j, d, half))
                for (s0, s1, blk, df) in stg:
                    if not df: continue
                    for half in range(2):
                        for j in range(4):
                            fr.append(((s0, s1)[half], blk + half, False, j, 3, half))
                gaps = [[] for _ in fr]
                for (a, b, grp) in fill: spread(gaps, mat2(grp()), a, b)
                for (at, tags, nm, bar) in sorted(barr + waits):
                    gaps[at] += (wl_vm(tags) if tags else []) + (s.stamp_lines(nm) if nm else []) + (["s_barrier"] if bar else [])
                for d in range(3):
                    spread(gaps, pub(d), base + 8*d + 8 + 3, base + 8*d + 8 + 7)
                gaps[base] = [f"s_mul_i32 s71, s{sHG}, {3*PSZ}", "s_add_u32 s73, s73, s71"] + gaps[base]
                stream(fr, None, gapfill=gaps, premf={0: first_wait})
            def slow2(sfx):
                t7_slow.extend([f"B_slow2{sfx}:", f"s_lshl_b32 s72, s{sW}, 2", f"s_add_u32 s72, s72, {FLAG_BASE}"])
                t7_slow.extend(s.capture(lambda: wave_poll(21, "slow2l" + sfx, drain=False)))
                t7_slow.append(f"s_branch B_slow2{sfx}r")
            q0 = list(q.q); wb0, xb0 = s.wbase, s.xbase
            A(f"s_bitcmp1_b32 s{sHG}, 0")
            A("s_cbranch_scc1 B_t10o ; @hook=ODD")
            head([2, 3])
            fr = two(W[0], W[1], 2) + two(W[2], W[3], 4) + two(P[1], P[2], 6) + two(P[2] + 16384, P[1] + 16384, 0)
            gaps = [[] for _ in fr]
            spread(gaps, rd_, 4, 20)
            gaps[31] += wl_vm("F2") + s.stamp_lines("U0") + ["s_barrier"] + s.stamp_lines("T0")
            fx = of_mem(0, 3, 0, "FX", blk=2, xoff=8*UNIT) + of_mem(0, 3, 1, "FX", blk=2, xoff=8*UNIT)
            spread(gaps, mat2(fx), 33, 49)
            gaps[63] += wl_vm("F3") + s.stamp_lines("U1") + ["s_barrier"] + s.stamp_lines("T1")
            gaps[95] += s.stamp_lines("U2") + ["s_barrier"] + s.stamp_lines("Ta")
            q.issue("POLL1"); gaps[96 + o.t8p] += pl
            spread(gaps, ap_lines(), 110, 127)
            stream(fr, None, gapfill=gaps)
            s.stamp("own")
            wait_vm("POLL1")
            flag_check("2", sfx="e"); slow2("e")
            s.stamp("poll1")
            for g_ in mat2(gl(1, 4) + gl(2, 6)): s.emit(g_)
            A("s_barrier")
            second([(P[0], P[0] + 16384, 2, False), (W[0], W[1], 4, True), (W[2], W[3], 6, True), (P[1], P[2], 0, True)],
                   [(0, o.t7h, lambda: gl(3, 0))], [(48, None, "Tc", True)], [(31, ["G1"], "g1", False), (55, ["G2"], None, False), (79, ["G3"], None, False)],
                   wl_vm("FX"))
            A("s_branch B_fin")
            qe = list(q.q)
            q.q = list(q0); s.wbase, s.xbase = wb0, xb0
            s.lab("B_t10o")
            head([2])
            fr = two(W[0], W[1], 2) + two(P[2] + 16384, P[1] + 16384, 0)
            gaps = [[] for _ in fr]
            spread(gaps, rd_, 4, 20)
            q.issue("POLL1"); gaps[32 + o.t10p] += pl
            gaps[40] += s.stamp_lines("U0") + ["s_barrier"] + s.stamp_lines("T0")
            spread(gaps, ap_lines(), 44, 62)
            stream(fr, None, gapfill=gaps)
            s.stamp("own")
            wait_vm("POLL1")
            flag_check("2", sfx="o"); slow2("o")
            s.stamp("poll1")
            for g_ in mat2(gl(1, 2)): s.emit(g_)
            second([(W[2], W[3], 4, bool(o.t10d)), (W[0], W[1], 2, True), (P[0], P[0] + 16384, 6, True), (P[1], P[2], 0, True)],
                   [(0, o.t7h, lambda: gl(2, 6) + gl(3, 0))],
                   [(24 - 8*o.t10d, None, None, True), (48 - 8*o.t10d, None, "Tc", True)],
                   [(31 - 8*o.t10d, ["G1"], "g1", False), (55 - 8*o.t10d, ["G2"], None, False), (79 - 8*o.t10d, ["G3"], None, False)],
                   wl_vm("F2"))
            s.lab("B_fin")
            q.q = ["PUB"] * 12
        def tail11():
            assert o.defer and o.tg == 2 and o.pz >= 0 and o.wrot
            used0 = set(x for v in wo0_use.values() for x in v)
            rest = [p for p in (1, 2, 3) if (p, 0) not in used0]
            in_loop_f = set(x for v in of0_issue.values() for x in v)
            late_f = [p for p in rest if p not in in_loop_f]
            issued1 = [c for v in wo1_issue.values() for c in v]
            gpos = eval(o.t11g)
            def chk(p, h):
                r0 = X + 16*(2*p + h)
                L = [f"v_max3_u32 v25, v{r0}, v{r0+1}, v{r0+2}", f"v_max3_u32 v26, v{r0+3}, v{r0+4}, v{r0+5}"]
                for i in range(6, 14, 2): L.append(f"v_max3_u32 v{25 + ((i//2 + 1) & 1)}, v{25 + ((i//2 + 1) & 1)}, v{r0+i}, v{r0+i+1}")
                L += [f"v_max3_u32 v25, v25, v{r0+14}, v{r0+15}", "v_max_u32 v25, v25, v26",
                      "v_cmp_eq_u32 vcc, -1, v25", f"s_and_b64 vcc, vcc, s[{sEXLO}:{sEXHI}]"]
                return L
            def gld(p, h): return of_mem(1, p, h, f"G{p}{h}")
            def slow(p, h):
                n = f"B_gs{p}{h}"
                L = [f"{n}:", f"s_mov_b32 s{sSPIN}, 0", f"{n}l:"]
                for (_, ins) in gld(p, h): L += ins
                L += ["s_waitcnt vmcnt(0)"] + chk(p, h) + [f"s_cbranch_scc0 {n}r ; @taken", f"{n}p:",
                      f"s_add_u32 s{sSPIN}, s{sSPIN}, 1", f"s_cmp_ge_u32 s{sSPIN}, {min(o.spin, 8192)}", f"s_cbranch_scc1 {n}r ; @nottaken",
                      f"s_lshl_b32 s70, s{sW}, 9", f"s_add_u32 s72, s{sOP+p}, s{sOH[h]}", "s_add_u32 s72, s72, s70", f"s_add_u32 s72, s72, {UNIT + 6*1792}",
                      f"buffer_load_dword v{VP}, off, {srd(sWS)}, s72 sc1", "s_waitcnt vmcnt(0)", f"v_readfirstlane_b32 s70, v{VP}",
                      "s_cmp_eq_u32 s70, -1", f"s_cbranch_scc1 {n}p ; @nottaken", f"s_branch {n}l"]
                t7_slow.extend(L)
            sSTAG = 53
            if o.stag > 1:
                A(f"s_and_b32 s70, s{sW}, {o.stag - 1}")
                A(f"s_lshl_b32 s{sSTAG}, 1, s70")
            s.stamp("preE")
            pre = [p for p in (1, 2, 3) if gpos[p-1][0] < 0]
            wtags = [f"O1{p}{h}" for (p, h) in issued1] + [f"O0{p}{h}" for p in rest for h in range(2)] + [f"F{p}" for p in rest[:1]]
            if o.t11w == 0: wait_vm(wtags)
            for p in pre:
                assert p not in rest
                for g_ in mat2(gld(p, 0) + gld(p, 1)): s.emit(g_)
            if o.t11w == 1: wait_vm(wtags)
            s.stamp("wE")
            A(f"v_add_u32 v{vOL}, {hex((P[0] - W[1]) & 0xffffffff)}, v{vOL}")
            A(f"v_add_u32 v{vOL2}, {hex((P[0] - W[1]) & 0xffffffff)}, v{vOL2}")
            A("s_barrier")
            s.stamp("E")
            rd_ = []
            for half in range(2):
                for j in range(4):
                    rd_.append([f"ds_read_b128 {vr(X+16*half+4*j,4)}, v{(vOL, vOL2)[half]} offset:{j*512} ; @own"])
            fr = []
            for p in rest: fr += frags_c([(wo0_slot[(p, 0)], 2*p, False), (wo0_slot[(p, 1)], 2*p + 1, False)])
            u_end = len(fr)
            own = frags_c([(wo1_slot[(0, 0)], 0, False), (wo1_slot[(0, 1)], 1, False)])
            fr += own
            g0 = len(fr)
            for p in (1, 2):
                fr += [f for f in frags_c([(wo1_slot[(p, 0)], 2*p, False), (wo1_slot[(p, 1)], 2*p + 1, False)]) if f[4] < 3]
            base = len(fr)
            for d in range(3):
                for half in range(2):
                    for j in range(4):
                        fr.append((wo1_slot[(3, half)], 6 + half, False, j, d, half))
            for p in (1, 2, 3):
                for half in range(2):
                    for j in range(4):
                        fr.append((wo1_slot[(p, half)], 2*p + half, False, j, 3, half))
            n = len(fr)
            ev = []
            def add(at, kind, pay): ev.append((at, len(ev), kind, pay))
            premf = {}
            if u_end == 0:
                for r_ in rd_: s.emit(r_)
                premf[0] = ["s_waitcnt lgkmcnt(0)"] if not o.t11l else []
            else:
                for i, r_ in enumerate(rd_): add(4 + 2*i, "txt", r_)
            if late_f:
                lf = sum((of_mem(0, p, 0, f"F{p}") + of_mem(0, p, 1, f"F{p}") for p in late_f), [])
                for i, g_ in enumerate(lf): add((i * o.t8f) // len(lf), "ld", g_)
            for i, p in enumerate(rest):
                if i: add(32*i - 1, "wait", [f"F{p}"])
            ap_ = s.capture(addr_prep)
            a0 = max(u_end, 24 if u_end else 0) + 2
            for i, l in enumerate(ap_): add(a0 + (i * o.t11p) // len(ap_), "txt", [l])
            for p in (1, 2, 3):
                a, b = gpos[p-1]
                if a < 0: continue
                gl_ = gld(p, 0) + gld(p, 1)
                assert p not in rest or a >= 32*(rest.index(p) + 1)
                if o.stag:
                    k_ = 0
                    for (tg_, ins) in gl_:
                        pre_ = [l for l in ins if l.startswith("s_add")]
                        lds_ = [l for l in ins if l.startswith("buffer_load")]
                        for l in lds_:
                            body = pre_ + ([l] if o.nox else [f"s_mov_b64 exec, s[{sEXLO}:{sEXHI}]", l, "s_mov_b64 exec, -1"])
                            g_at = a + (k_ * (b - a)) // 8
                            for ph in range(o.stag):
                                if o.stag == 1: add(g_at, "txt", body)
                                else:
                                    lb = f"B_sg{p}_{k_}_{ph}"
                                    add(g_at + ph, "txt", [f"s_bitcmp1_b32 s{sSTAG}, {ph}", f"s_cbranch_scc0 {lb} ; @hook=STG{ph}n"] + body + [f"{lb}:"])
                            add(g_at + o.stag - 1, "cnt", tg_[0])
                            k_ += 1
                else:
                    for i, g_ in enumerate(gl_): add(a + (i * (b - a)) // len(gl_), "ld", g_)
            need = {(1, 0): g0, (1, 1): g0 + 12, (2, 0): g0 + 24, (2, 1): g0 + 36, (3, 0): base, (3, 1): base}
            for (p, h), at in need.items():
                at -= 1
                if (p, h) == (3, 0): at -= o.t11c + 1
                c = chk(p, h)
                add(at - o.t11c, "wait", [f"G{p}{h}"])
                if (p, h) == (1, 0): add(at - o.t11c, "txt", s.stamp_lines("g1"))
                for i, l in enumerate(c[:-2]): add(at - o.t11c + (i * (o.t11c + 1)) // len(c[:-2]), "txt", [l])
                add(at, "txt", c[-2:] + [f"s_cbranch_scc1 B_gs{p}{h} ; @hook=GSLOW", f"B_gs{p}{h}r:"] + s.stamp_lines(f"k{p}{h}"))
                slow(p, h)
            for (at, nm) in eval(o.t11s):
                add(at, "txt", s.stamp_lines(nm + "a") + ["s_barrier"] + s.stamp_lines(nm))
            gaps = [[] for _ in range(n)]
            for (at, _, kind, pay) in sorted(ev, key=lambda e: (e[0], e[1])):
                if kind == "txt": gaps[at] += pay
                elif kind == "ld": gaps[at] += mat2([pay])[0]
                elif kind == "cnt": q.issue(pay)
                else:
                    k = q.wait(pay)
                    if k is not None: gaps[at].append(f"s_waitcnt vmcnt({k})")
            gaps[g0 - 1] += s.stamp_lines("own")
            for d in range(3):
                spread(gaps, pub(d), base + 8*d + 8 + 3, base + 8*d + 8 + 7)
            gaps[base] = [f"s_mul_i32 s71, s{sHG}, {3*PSZ}", "s_add_u32 s73, s73, s71"] + gaps[base]
            stream(fr, None, gapfill=gaps, premf=premf)
        def tail12():
            used0 = set(x for v in wo0_use.values() for x in v)
            assert used0 == {(0, 0), (0, 1)} and wo1_issue == {15: [(0, 0)]}
            assert o.defer and o.tg == 2 and o.wrot
            assert set(x for v in of0_issue.values() for x in v) == {1, 2, 3}
            SY = P[0] + 3*8192 + 256
            vS0, vSY, vSG = (12, 13, 16) if o.t12v != 4 else (12, 2, 3)
            fw = lambda p: frags_c([(wo0_slot[(p, 0)], 2*p, False), (wo0_slot[(p, 1)], 2*p + 1, False)])
            def wl_vm(tags):
                n = q.wait(tags)
                return [f"s_waitcnt vmcnt({n})"] if n is not None else []
            A(f"v_mov_b32 v{vSY}, {SY}")
            A(f"s_lshl_b32 s70, s{sW}, 2")
            A(f"s_add_u32 s70, s70, {SY}")
            A(f"v_mov_b32 v{vSG}, s70")
            A(f"v_add_u32 v{vS0}, {hex((-W[0]) & 0xffffffff)}, v{vQW}")
            A("v_mov_b32 v28, 0")
            A("s_mov_b64 exec, 1")
            A(f"ds_write_b32 v{vSG}, v28")
            A(f"ds_write_b32 v{vSG}, v28 offset:16")
            A("s_mov_b64 exec, -1")
            s.stamp("preE")
            wait_vm([f"O0{p}{h}" for p in (1, 2, 3) for h in range(2)] + ["F1", "O100"])
            s.stamp("wE")
            A(f"v_add_u32 v{vOL}, {hex((P[0] - W[1]) & 0xffffffff)}, v{vOL}")
            A(f"v_add_u32 v{vOL2}, {hex((P[0] - W[1]) & 0xffffffff)}, v{vOL2}")
            A("s_waitcnt lgkmcnt(0)")
            A("s_barrier")
            s.stamp("E")
            W1S = {(1, 0): W[0], (1, 1): W[1], (2, 0): P[1], (2, 1): P[2], (3, 0): W[2], (3, 1): W[3]}
            if o.t12v == 4: W1S = dict(wo1_slot)
            own = frags_c([(wo1_slot[(0, 0)], 0, False), (wo1_slot[(0, 1)], 1, False)])
            if o.t12o: own_d3 = [f for f in own if f[4] == 3]; own = [f for f in own if f[4] < 3]
            else: own_d3 = []
            fr = fw(1) + fw(2) + fw(3) + own
            g0 = len(fr)
            for p in (1, 2):
                fr += [f for f in frags_c([(W1S[(p, 0)], 2*p, False), (W1S[(p, 1)], 2*p + 1, False)]) if f[4] < 3]
            base = len(fr)
            for d in range(3):
                for half in range(2):
                    for j in range(4):
                        fr.append((W1S[(3, half)], 6 + half, False, j, d, half))
            fr += own_d3
            for p in (1, 2, 3):
                for half in range(2):
                    for j in range(4):
                        fr.append((W1S[(p, half)], 2*p + half, False, j, 3, half))
            gaps = [[] for _ in fr]
            def sig(at, level):
                gaps[at] += [f"v_mov_b32 v27, {level}", "s_mov_b64 exec, 1", f"ds_write_b32 v{vSG}, v27", "s_mov_b64 exec, -1"]
            nchk = [0]
            def need(at, level, nm=None):
                n = nchk[0]; nchk[0] += 1
                test = ["v_min3_u32 v28, v28, v29, v30", "v_min_u32 v28, v28, v31", "v_readfirstlane_b32 s70, v28", f"s_cmp_ge_u32 s70, {level}"]
                gaps[at - 3] += [f"ds_read_b128 v[28:31], v{vSY} offset:16"]
                gaps[at] += ["s_waitcnt lgkmcnt(6)"] + test + [f"s_cbranch_scc0 B_n{n} ; @hook=GSLOW", f"B_n{n}r:"] + (s.stamp_lines(nm) if nm else [])
                t7_slow.extend([f"B_n{n}:", f"s_mov_b32 s{sSPIN}, 0", f"B_n{n}l:", f"ds_read_b128 v[28:31], v{vSY} offset:16",
                                f"s_add_u32 s{sSPIN}, s{sSPIN}, 1", "s_waitcnt lgkmcnt(0)"] + test +
                               [f"s_cbranch_scc1 B_n{n}r ; @taken", f"s_cmp_lt_u32 s{sSPIN}, {o.spin * 8}", f"s_cbranch_scc1 B_n{n}l ; @nottaken", f"s_branch B_n{n}r"])
            def unit_reads(p, vaddr, off, a, b):
                rd = [[f"ds_read_b128 {vr(X + 16*(2*p + (k >> 2)) + 4*(k & 3), 4)}, v{vaddr} offset:{off + k*1024} ; @own"] for k in range(8)]
                spread(gaps, rd, a, b)
            rd_ = []
            for half in range(2):
                for j in range(4):
                    rd_.append([f"ds_read_b128 {vr(X+16*half+4*j,4)}, v{(vOL, vOL2)[half]} offset:{j*512} ; @own"])
            spread(gaps, rd_, 2, 14)
            gaps[31] += wl_vm("F2") + s.stamp_lines("U0"); sig(31, 2)
            gaps[63] += wl_vm("F3") + s.stamp_lines("U1"); sig(63, 3)
            gaps[95] += s.stamp_lines("U2"); sig(95, 4)
            ap_ = [[l] for l in s.capture(addr_prep)]
            spread(gaps, ap_, 66, 92)
            h1 = 96 + len(own) // 2
            c = eval(o.t12c)
            if o.t12v == 4:
                gl = lambda p: of_mem(1, p, 0, f"G{p}") + of_mem(1, p, 1, f"G{p}")
                need(h1 - 7, 1, "n2")
                pl = [f"s_lshl_b32 s72, s{sW}, 2", f"s_add_u32 s72, s72, {FLAG_BASE}", "s_mov_b64 exec, 7",
                      f"buffer_load_dword v{VP}, v21, {srd(sWS)}, s72 offen sc1", "s_mov_b64 exec, -1"]
                q.issue("POLL1"); gaps[96 + o.t8p] += pl
                gaps[g0 - 1] += s.stamp_lines("own")
                stream(fr[:g0], None, gapfill=gaps[:g0])
                wait_vm("POLL1")
                flag_check("2")
                s.stamp("poll1")
                for g_ in mat2(gl(1) + gl(2)): s.emit(g_)
                fr2 = fr[g0:]; gaps = gaps[g0:]; base -= g0
                for g_ in gaps: assert not g_
                n = nchk[0]; nchk[0] += 1
                test = ["v_min3_u32 v28, v28, v29, v30", "v_min_u32 v28, v28, v31", "v_readfirstlane_b32 s70, v28", "s_cmp_ge_u32 s70, 2"]
                s.emit([f"ds_read_b128 v[28:31], v{vSY} offset:16", "s_waitcnt lgkmcnt(0)"] + test + [f"s_cbranch_scc0 B_n{n} ; @hook=GSLOW", f"B_n{n}r:"])
                t7_slow.extend([f"B_n{n}:", f"s_mov_b32 s{sSPIN}, 0", f"B_n{n}l:", f"ds_read_b128 v[28:31], v{vSY} offset:16",
                                f"s_add_u32 s{sSPIN}, s{sSPIN}, 1", "s_waitcnt lgkmcnt(0)"] + test +
                               [f"s_cbranch_scc1 B_n{n}r ; @taken", f"s_cmp_lt_u32 s{sSPIN}, {o.spin * 8}", f"s_cbranch_scc1 B_n{n}l ; @nottaken", f"s_branch B_n{n}r"])
                g1w = wl_vm("G1")
                spread(gaps, mat2(gl(3)), 0, o.t7h)
                need(24 - 7, 3, "n5")
                gaps[23] += wl_vm("G2")
                need(48 - 7, 4, "n7")
                gaps[47] += wl_vm("G3") + s.stamp_lines("Tc")
                for d in range(3):
                    spread(gaps, pub(d), base + 8*d + 8 + 3, base + 8*d + 8 + 7)
                gaps[base] = [f"s_mul_i32 s71, s{sHG}, {3*PSZ}", "s_add_u32 s73, s73, s71"] + gaps[base]
                stream(fr2, None, gapfill=gaps, premf={0: g1w + s.stamp_lines("g1")})
                return
            if o.t12v == 3:
                assert g0 + c[0] <= g0 - 7 and g0 + c[1] <= g0 + 24 - 7
                need(h1 - 7, 1, "n2")
                need(g0 + c[0], 3, "n3"); unit_reads(1, vS0, 0, g0 + c[0] + 1, g0 + c[0] + 7); sig(g0 + c[0] + 8, 5)
                need(g0 + c[1], 5, "n4"); unit_reads(2, vQW, W[2] - W[0], g0 + c[1] + 1, g0 + c[1] + 7); sig(g0 + c[1] + 8, 6)
                need(base + c[2], 6, "n6"); unit_reads(3, vS0, 0, base + c[2] + 1, base + c[2] + 7)
                need(base - 7, 7, "n7")
            elif o.t12v == 0:
                need(h1 - 7, 3, "n2")
                need(g0 + c[0], 4, "n3")
            else:
                need(h1 - 7, 1, "n2")
                need(g0 + c[0], 2, "n3")
            if o.t12v != 3:
                unit_reads(1, vS0, 0, g0 + c[0] + 1, g0 + c[0] + 7); sig(g0 + c[0] + 8, 5)
                if o.t12v: need(g0 - 7, 3, "nw1")
                need(g0 + c[1], 5, "n4"); unit_reads(2, vQW, W[2] - W[0], g0 + c[1] + 1, g0 + c[1] + 7); sig(g0 + c[1] + 8, 6)
                need(g0 + 24 - 7, 6, "n5")
                need(base + c[2], 7, "n6"); unit_reads(3, vS0, 0, base + c[2] + 1, base + c[2] + 7)
                need(base - 7, 8, "n7")
            gaps[g0 - 1] += s.stamp_lines("own")
            for d in range(3):
                spread(gaps, pub(d), base + 8*d + 8 + 3, base + 8*d + 8 + 7)
            gaps[base] = [f"s_mul_i32 s71, s{sHG}, {3*PSZ}", "s_add_u32 s73, s73, s71"] + gaps[base]
            stream(fr, None, gapfill=gaps)
        t7_slow = []
        {12: tail12, 11: tail11, 10: tail10, 9: tail9, 8: tail8, 1: tail1, 2: tail2, 3: tail3, 5: tail5, 6: tail6, 7: tail7}[o.tail]()
        s.stamp("oproj")
        if not o.tg:
            A(f"s_lshl_b32 s70, s{sMYB}, 7")
            A(f"s_lshl_b32 s72, s{sW}, 2")
            A(f"s_add_u32 s72, s72, {FLAG_BASE + 16}")
            A("s_add_u32 s70, s70, s72")
            A("v_mov_b32 v20, 1")
            A("s_waitcnt vmcnt(0)")
            s.stamp("pst")
            A("s_mov_b64 exec, 1")
            A(f"buffer_store_dword v20, off, {srd(sWS)}, s70 sc1")
        if o.cl & 2:
            A("s_mov_b64 exec, -1")
            for g_ in mat2(of_mem(1, 3, 0, "CL1", store=True, clean=True) + of_mem(1, 3, 1, "CL1", store=True, clean=True)): s.emit(g_)
            A(f"s_lshl_b32 s72, s{sW}, 2")
            A(f"s_add_u32 s72, s72, {FLAG_BASE + 16}")
        if not o.tg:
            wave_poll(22, "poll2")
            s.stamp("poll2")
        if o.tg != 2:
            A(f"s_mul_i32 s71, s{sHG}, {3*PSZ}")
            A("s_add_u32 s73, s73, s71")
        R = 64
        OWN = ACC + 48
        A(f"s_mov_b64 exec, s[{sEXLO}:{sEXHI}]")
        def part_iss(src, dst): return sum((part_ld(src, dst, rq) for rq in range(4)), [])
        def part_chk(dst):
            r = [f"v_xor_b32 v25, s{sTG[0]}, v{dst}", f"v_xor_b32 v26, s{sTG[1]}, v{dst+1}"]
            r += [f"v_bitop3_b32 v{25 + (i & 1)}, v{25 + (i & 1)}, v{dst+i}, s{sTG[i % 4]} bitop3:0xf6" for i in range(2, 16)]
            return r + ["v_or_b32 v25, v25, v26", "v_and_b32 v25, v24, v25", "v_cmp_ne_u32 vcc, 0, v25", "s_nop 0"]
        def part_add(dst): return [f"v_pk_add_f32 {vr(OWN+2*i,2)}, {vr(OWN+2*i,2)}, {vr(dst+2*i,2)}" for i in range(8)]
        def out_addr():
            A(f"s_mul_i32 s72, s{sB}, {112*2048}")
            A(f"s_lshl_b32 s71, s{sBR}, 10")
            A("s_add_u32 s72, s72, s71")
            A(f"s_lshl_b32 s71, s{sHP}, 8")
            A("s_add_u32 s72, s72, s71")
            A(f"s_lshl_b32 s71, s{sHG}, 6")
            A("s_add_u32 s72, s72, s71")
        tg2_slow = []
        if o.tg == 2:
            order = [(2, R), (1, R + 16), (0, R + 32)]
            A(f"s_mov_b32 s{sSPIN}, 0")
            if o.tge < 0: s.emit(part_iss(2, R))
            s.emit(part_iss(1, R + 16))
            if o.tgd == 0: s.emit(part_iss(0, R + 32))
            out_addr()
            for k_, (src, dst) in enumerate(order):
                later = {0: 4 + (4 if o.tgd == 0 else 0), 1: (4 if o.tgd <= 1 else 0), 2: 0}[k_]
                A(f"s_waitcnt vmcnt({later})")
                if k_ == 0: s.stamp("l2")
                if k_ == 1: s.stamp("l1")
                if o.tgd == k_ + 1: s.emit(part_iss(0, R + 32))
                s.emit(part_chk(dst))
                A(f"s_cbranch_vccnz B_r{src} ; @nottaken")
                s.lab(f"B_r{src}r")
                s.emit(part_add(dst))
                tg2_slow += [f"B_r{src}:", f"s_add_u32 s{sSPIN}, s{sSPIN}, 1", f"s_cmp_ge_u32 s{sSPIN}, {min(o.spin, 4096)}",
                             f"s_cbranch_scc1 B_r{src}r ; @nottaken"] + part_iss(src, dst) + ["s_waitcnt vmcnt(0)"] + part_chk(dst) + \
                            [f"s_cbranch_vccnz B_r{src} ; @nottaken", f"s_branch B_r{src}r"]
            s.stamp("poll2")
            if o.stamp and "nrt" in o.stamps.split(","):
                r_ = STAMP_REGS[o.stamps.split(",").index("nrt")]
                s.emit(["s_waitcnt lgkmcnt(0)", f"s_mul_i32 s70, s{sSPIN}, 1000", f"s_add_u32 s{r_}, s90, s70", f"s_addc_u32 s{r_+1}, s91, 0"])
            q.drain()
            A("s_mov_b32 s70, s72")
        if o.tg == 1:
            A(f"s_mov_b32 s{sSPIN}, 0")
            s.lab("B_rt")
        for src in (range(3) if o.tg != 2 else ()):
            for rq in range(4):
                A(f"s_add_u32 s70, s73, {src*PSZ + rq*3584}")
                A(f"buffer_load_dwordx4 {vr(R+16*src+4*rq,4)}, v23, {srd(sWS)}, s70 offen sc1{s.nthl}")
        if o.tg == 1:
            for src in range(3):
                A(f"s_waitcnt vmcnt({8 - 4*src})")
                for i in range(16):
                    acc = 25 + (i & 1)
                    if src == 0 and i < 2: A(f"v_xor_b32 v{acc}, s{sTG[i % 4]}, v{R+16*src+i}")
                    else: A(f"v_bitop3_b32 v{acc}, v{acc}, v{R+16*src+i}, s{sTG[i % 4]} bitop3:0xf6")
            A("v_or_b32 v25, v25, v26")
            A("v_and_b32 v25, v24, v25")
            A("v_cmp_ne_u32 vcc, 0, v25")
            A("s_nop 0")
            A("s_cbranch_vccz B_rtd ; @taken")
            A(f"s_add_u32 s{sSPIN}, s{sSPIN}, 1")
            A(f"s_cmp_lt_u32 s{sSPIN}, {min(o.spin, 4096)}")
            A("s_cbranch_scc1 B_rt")
            s.lab("B_rtd")
            s.stamp("poll2")
            if o.stamp and "nrt" in o.stamps.split(","):
                r_ = STAMP_REGS[o.stamps.split(",").index("nrt")]
                s.emit(["s_waitcnt lgkmcnt(0)", f"s_mul_i32 s70, s{sSPIN}, 1000", f"s_add_u32 s{r_}, s90, s70", f"s_addc_u32 s{r_+1}, s91, 0"])
            q.drain()
        if o.tg != 2:
            out_addr()
            A("s_mov_b32 s70, s72")
            A("s_waitcnt vmcnt(8)")
            s.emit(part_add(R))
            A("s_waitcnt vmcnt(4)")
            s.emit(part_add(R + 16))
            A("s_waitcnt vmcnt(0)")
            s.emit(part_add(R + 32))
        for i in range(8):
            A(f"v_cvt_pk_bf16_f32 v{32+i}, v{OWN+2*i}, v{OWN+2*i+1}")
        for h in range(2):
            A(f"buffer_store_dwordx4 {vr(32+4*h,4)}, v19, {srd(sOUT)}, s70 offen offset:{h*32}{['', ' sc1', ' sc0 sc1', ' nt', ' sc1 nt'][o.outsc]}")
        if o.tg:
            A(f"s_cmp_lg_u32 s{sHG}, 0")
            A("s_cbranch_scc1 B_ncell")
            s.emit(nonce_addr(72))
            A(f"v_mov_b32 v20, s{sNC}")
            A("s_mov_b64 exec, 1")
            A(f"buffer_store_dword v20, off, {srd(sWS)}, s72 sc1")
            s.lab("B_ncell")
        A("s_mov_b64 exec, -1")
        if o.dbgst:
            A("s_waitcnt vmcnt(0)")
            A(f"s_or_b32 s70, s{sW}, s{sHG}")
            A(f"s_or_b32 s70, s70, s{sHP}")
            A("s_cmp_lg_u32 s70, 0")
            A("s_cbranch_scc1 L_end")
            s.stamp("end"); s.stamp("cend", True)
            A("s_waitcnt lgkmcnt(0)")
            r = STAMP_REGS
            A(f"s_sub_u32 s70, s{r[5]}, s{r[1]}")
            A(f"s_sub_u32 s71, s{r[4]}, s{r[0]}")
            A(f"s_sub_u32 s72, s{r[2]}, s{r[1]}")
            A(f"s_sub_u32 s73, s{r[3]}, s{r[1]}")
            for i in range(4): A(f"v_mov_b32 v{32+i}, s{70+i}")
            A(f"s_and_b32 s71, s{sGRP}, {hex(0xfffffff0)}")
            A("s_mov_b64 exec, 1")
            A(f"buffer_store_dwordx4 v[32:35], off, {srd(sDBG)}, s71 sc1")
            A("s_endpgm")
        if o.stamp and not o.dbgst:
            A("s_waitcnt vmcnt(0)")
            A(f"s_cmp_lg_u32 s{sW}, {o.stw}")
            A("s_cbranch_scc1 L_end")
            s.stamp("end"); s.stamp("cend", True)
            A("s_waitcnt lgkmcnt(0)")
            n = len(o.stamps.split(","))
            assert n <= len(STAMP_REGS)
            if o.diagd:
                na, nb, kk = o.diagd.split(",")
                nm = o.stamps.split(",")
                ra, rb, re_ = (STAMP_REGS[nm.index(x)] for x in (na, nb, "end"))
                A(f"s_sub_u32 s70, s{rb}, s{ra}")
                A(f"s_mul_i32 s70, s70, {kk}")
                A("s_min_u32 s70, s70, 50000")
                s.lab("L_dg")
                A("s_memrealtime s[72:73]")
                A("s_waitcnt lgkmcnt(0)")
                A(f"s_sub_u32 s71, s72, s{re_}")
                A("s_cmp_lt_u32 s71, s70")
                A("s_cbranch_scc1 L_dg ; @nottaken")
            A("s_lshl_b32 s70, s2, 8")
            A(f"s_add_u32 s70, s70, {STAMP_BASE}")
            A("s_mov_b64 exec, 1")
            for i in range(n):
                r = STAMP_REGS[i]
                A(f"v_mov_b32 v32, s{r}"); A(f"v_mov_b32 v33, s{r+1}")
                A(f"buffer_store_dwordx2 v[32:33], off, {srd(sWS)}, s70 offset:{8*i}")
                A("s_nop 1")
        A("s_endpgm")
        s.emit(tg2_slow)
        s.L += t7_slow
        if o.xs:
            s.lab("B_wb")
            A("buffer_wbl2 sc1")
            A("s_waitcnt vmcnt(0)")
            A("s_branch B_wbr")
        s.lab("B_slow0")
        A(f"s_mov_b32 s{sSPIN}, 0")
        s.lab("B_slow0l")
        s.emit(mid_poll(True))
        A("s_waitcnt vmcnt(0)")
        s.emit(mid_check())
        A("s_cbranch_scc1 B_slow0r ; @taken" if not (o.abl & 32) else "s_nop 0")
        A(f"s_add_u32 s{sSPIN}, s{sSPIN}, 1")
        A(f"s_cmp_lt_u32 s{sSPIN}, {o.spin}")
        A("s_cbranch_scc1 B_slow0l")
        A("s_branch B_slow0r" if not (o.abl & 32) else "s_endpgm")
        s.lab("B_slow1")
        A(f"s_lshl_b32 s72, s{sW}, 2")
        A(f"s_add_u32 s72, s72, {FLAG_BASE + 32}")
        wave_poll(21, "slow1l", drain=False, mask=(52 if o.tail == 10 else None))
        A("s_branch B_slow1r" if not (o.abl & 4) else "s_endpgm")
        if o.tail in (2, 3) or o.t1p or (o.tail in (8, 9) and o.t8p >= 0) or (o.tail == 12 and o.t12v == 4):
            s.lab("B_slow2")
            A(f"s_lshl_b32 s72, s{sW}, 2")
            A(f"s_add_u32 s72, s72, {FLAG_BASE}")
            wave_poll(21, "slow2l", drain=False)
            A("s_branch B_slow2r")

    def build(s):
        s.common()
        s.waveA()
        s.waveB()
        s.lab("L_end")
        s.A("s_endpgm")
        lines = [l for l in s.L if l is not None]
        cfgs = []
        for wave in (0, 1, 3, 4, 5, 7):
            cfgs.append((f"wg5w{wave}", {2: 5}, {"WAVE": wave, "POLL": 0x03030303, "POLL3": 0x03030303}))
        if s.opt.tail == 10:
            for wave in (0, 3, 4, 7):
                cfgs.append((f"wg5odd{wave}", {2: 5}, {"WAVE": wave, "POLL": 0x03030303, "POLL3": 0x03030303, "ODD": 1}))
        if s.opt.tail in (11, 12):
            for wave in (0, 3, 4, 7):
                cfgs.append((f"gslow{wave}", {2: 5}, {"WAVE": wave, "POLL": 0x03030303, "POLL3": 0x03030303, "GSLOW": 1}))
        cfgs.append(("allresc", {2: 5}, {"WAVE": 1, "ALLRESC": 1}))
        cfgs.append(("slow7", {2: 5}, {"WAVE": 5, "POLL": 0x03030303, "POLL3": 0x03030303, "SLOW7": 1}))
        cfgs.append(("extra", {2: 256}, {"WAVE": 0}))
        if s.opt.stag > 1:
            for (nm_, i_, h_) in cfgs:
                if "WAVE" in h_:
                    for ph in range(s.opt.stag): h_[f"STG{ph}n"] = 0 if (h_["WAVE"] & (s.opt.stag - 1)) == ph else 1
            for wave in (6,):
                h_ = {"WAVE": wave, "POLL": 0x03030303, "POLL3": 0x03030303}
                for ph in range(s.opt.stag): h_[f"STG{ph}n"] = 0 if (wave & (s.opt.stag - 1)) == ph else 1
                cfgs.append((f"wg5w{wave}", {2: 5}, h_))
        lines = asmlib.finalize(lines, cfgs, verbose=True)
        return "\n".join(lines)

if __name__ == "__main__":
    ap = argparse.ArgumentParser()
    ap.add_argument("-o", default="k8.s")
    ap.add_argument("--stamp", action="store_true")
    ap.add_argument("--cyc", action="store_true")
    ap.add_argument("--stamps", default="start,pro,s8,E,poll1,oproj,pst,poll2,end")
    ap.add_argument("--nt", type=int, default=1)
    ap.add_argument("--prioA", type=int, default=0)
    for n_ in ("ntw", "ntx", "nto", "nths", "nthl"): ap.add_argument("--" + n_, type=int, default=0)
    ap.add_argument("--astamp", type=int, default=-1)
    ap.add_argument("--la", type=int, default=6)
    ap.add_argument("--nbub", type=int, default=3)
    ap.add_argument("--rot", type=int, default=1)
    ap.add_argument("--k0at", type=int, default=5)
    ap.add_argument("--p1at", type=int, default=7)
    ap.add_argument("--pf", type=int, default=0)
    ap.add_argument("--f0", default="{13: [1], 14: [2], 15: [3]}")
    ap.add_argument("--po0", type=int, default=11)
    ap.add_argument("--defer", type=int, default=1)
    ap.add_argument("--cpf", type=int, default=1)
    ap.add_argument("--dbgst", type=int, default=0)
    ap.add_argument("--g2at", type=int, default=8)
    ap.add_argument("--order", default="wfkp")
    ap.add_argument("--spin", type=int, default=131072)
    ap.add_argument("--outsc", type=int, default=0)
    ap.add_argument("--osc", type=int, default=15)
    ap.add_argument("--wb", type=int, default=0)
    ap.add_argument("--ntq", default="[]")
    ap.add_argument("--ntxc", default="[]")
    ap.add_argument("--ntoc", default="[]")
    ap.add_argument("--ablw", default="[]")
    ap.add_argument("--fl0at", type=int, default=0)
    ap.add_argument("--s0sp", default="")
    ap.add_argument("--tail", type=int, default=1)
    ap.add_argument("--s0at", type=int, default=9)
    ap.add_argument("--fpre", type=int, default=0)
    ap.add_argument("--abl", type=int, default=0)
    ap.add_argument("--w0i", default="{7: [(0,0)], 8: [(0,1)], 11: [(1,0)], 12: [(1,1), (2,0)], 13: [(2,1)], 14: [(3,0)], 15: [(3,1)]}")
    ap.add_argument("--w0u", default="{9: [(0,0)], 10: [(0,1)], 15: [(1,0), (1,1)], 16: [(2,0), (2,1)]}")
    ap.add_argument("--w1i", default="{15: [(0,0)], 16: [(1,0), (1,1)]}")
    ap.add_argument("--ords", default="{}")
    ap.add_argument("--ilv", type=int, default=0)
    ap.add_argument("--ilv0", type=int, default=1)
    ap.add_argument("--wrot", type=int, default=0)
    ap.add_argument("--cl", type=int, default=0)
    ap.add_argument("--fgl", type=int, default=0)
    ap.add_argument("--pro2", type=int, default=0)
    ap.add_argument("--dq", type=int, default=0)
    ap.add_argument("--apf", default="{}")
    ap.add_argument("--apfpos", type=int, default=0)
    ap.add_argument("--apfnt", default="")
    ap.add_argument("--t3a", type=int, default=0)
    ap.add_argument("--t3p", type=int, default=0)
    ap.add_argument("--t3g", type=int, default=0)
    ap.add_argument("--lead", type=int, default=0)
    ap.add_argument("--pro2a", type=int, default=0)
    ap.add_argument("--s7f", type=int, default=0)
    ap.add_argument("--r3", type=int, default=0)
    ap.add_argument("--q0at", type=int, default=5)
    ap.add_argument("--p2g", type=int, default=0)
    ap.add_argument("--bkv", default="{}")
    ap.add_argument("--p2at", type=int, default=99)
    ap.add_argument("--wbn", type=int, default=0)
    ap.add_argument("--kpf", type=int, default=0)
    ap.add_argument("--kpf0", default="[]")
    ap.add_argument("--kpfnt", default=" nt")
    ap.add_argument("--kpfn", type=int, default=1)
    ap.add_argument("--tg", type=int, default=0)
    ap.add_argument("--krot", type=int, default=0)
    ap.add_argument("--tge", type=int, default=-1)
    ap.add_argument("--tgd", type=int, default=1)
    ap.add_argument("--apre", type=int, default=0)
    ap.add_argument("--t1p", type=int, default=0)
    ap.add_argument("--abar", type=int, default=0)
    ap.add_argument("--stw", type=int, default=0)
    ap.add_argument("--mf", default="[]")
    ap.add_argument("--prioB", default="{}")
    ap.add_argument("--xs", type=int, default=0)
    ap.add_argument("--mp", type=int, default=8)
    ap.add_argument("--diagx", type=int, default=0)
    ap.add_argument("--diagd", default="")
    ap.add_argument("--hgx", type=int, default=0)
    ap.add_argument("--t5g", type=int, default=0)
    ap.add_argument("--t9g", type=int, default=0)
    ap.add_argument("--t8a", type=int, default=0)
    ap.add_argument("--t8p", type=int, default=-1)
    ap.add_argument("--t8f", type=int, default=16)
    ap.add_argument("--t7p", type=int, default=16)
    ap.add_argument("--t7g", type=int, default=1)
    ap.add_argument("--t7h", type=int, default=12)
    ap.add_argument("--t6v", type=int, default=1)
    ap.add_argument("--pod", type=int, default=1)
    ap.add_argument("--mpd", type=int, default=1)
    ap.add_argument("--wpf", default="{}")
    ap.add_argument("--fpf", type=int, default=-1)
    ap.add_argument("--fpfm", default="")
    ap.add_argument("--xpos", type=int, default=1)
    ap.add_argument("--t6g", default="(8, 24)")
    ap.add_argument("--t6h", type=int, default=12)
    ap.add_argument("--t6o", type=int, default=0)
    ap.add_argument("--pz", type=int, default=-1)
    ap.add_argument("--t12o", type=int, default=0)
    ap.add_argument("--t12v", type=int, default=0)
    ap.add_argument("--t12c", default="[-20, -10, -18]")
    ap.add_argument("--nox", type=int, default=0)
    ap.add_argument("--stag", type=int, default=0)
    ap.add_argument("--w1s", default="{}")
    ap.add_argument("--t11a", default="[]")
    ap.add_argument("--t11b", default="[]")
    ap.add_argument("--t11s", default="[]")
    ap.add_argument("--t11g", default="[(0, 8), (12, 24), (30, 44)]")
    ap.add_argument("--t11c", type=int, default=2)
    ap.add_argument("--t11p", type=int, default=20)
    ap.add_argument("--t11w", type=int, default=0)
    ap.add_argument("--t11l", type=int, default=1)
    ap.add_argument("--t10p", type=int, default=12)
    ap.add_argument("--t10d", type=int, default=0)
    o = ap.parse_args()
    if o.xs:
        if o.xs < 3: o.lead = 0
        o.osc &= ~3
    g = Gen(o)
    body = g.build()
    k = kernel_text(NAME + "_kernel", body, vgpr=256)
    hdr = ["; @launch grid=(256,1,1) block=(512,1,1) lds=163840"]
    if o.stamp and not o.dbgst: hdr.append("; STAMPS " + o.stamps)
    if o.astamp >= 0: hdr.append("; ASTAMP")
    if o.cyc: hdr.append("; STAMPCYC")
    open(o.o, "w").write(file_text(hdr, [k]))
    print("wrote", o.o, len(body.splitlines()), "lines")
```

```python
import sys, argparse, struct
from gen_common import *
import asmlib

P = [0, 32768, 65536]
W = [98304, 114688, 131072, 147456]
UNIT = 28672
PART_BASE = 16 << 20
PSZ = 14336
STAMP_BASE = 128 << 20
FLAG_BASE = 32 << 20
NONCE_BASE = FLAG_BASE + 65536
THR = 12.0

sK, sV, sWQ, sX, sWS, sWO, sOUT, sDBG = 4, 8, 12, 16, 20, 24, 28, 32
sWAVE, sW, sBR, sHG, sB, sHP, sH0, sKV = 62, 63, 64, 65, 66, 67, 68, 69
sXB, sPEND = 72, 73
sEV, sTHR, sPAT = 74, 75, 76
sSTEP, sROT, sNEG, sOBASE = 77, 78, 79, 80
sW4K, sWQB, sKVW, sWOB, sGRP, sMYB = 81, 82, 83, 84, 85, 86
sSPIN = 87
sEXLO, sEXHI = 88, 89
sPOS = 3
sWP, sOP = 54, 58
STAMP_REGS = [90, 92, 94, 96, 98, 100] + list(range(36, 52, 2))

def srd(r): return f"s[{r}:{r+3}]"
def vr(a, n=1): return f"v{a}" if n == 1 else f"v[{a}:{a+n-1}]"
def fbits(x): return struct.unpack('<I', struct.pack('<f', x))[0]
CSCALE = (128 ** -0.5) * 1.4426950408889634

class Q:
    def __init__(s, maxn): s.q = []; s.maxn = maxn
    def issue(s, tag):
        s.q.append(tag)
        assert len(s.q) <= s.maxn, ("counter overflow", s.q)
    def wait(s, tags):
        if isinstance(tags, str): tags = [tags]
        last = -1
        for i, t in enumerate(s.q):
            if t in tags: last = i
        if last < 0: return None
        n = len(s.q) - 1 - last
        s.q = s.q[last + 1:]
        return n
    def drain(s): s.q = []

def spread(slots, items, start=0, end=None):
    if end is None: end = len(slots)
    n = end - start
    m = len(items)
    for i, it in enumerate(items):
        k = start + (i * n) // m
        slots[k].extend(it)

class Gen:
    def __init__(s, opt):
        s.L = []; s.opt = opt
        f = lambda b: " nt" if b else ""
        s.ntw, s.ntx, s.nto, s.nths, s.nthl = f(opt.ntw), f(opt.ntx), f(opt.nto), f(opt.nths), f(opt.nthl)
        c = lambda b: " sc1" if b else ""
        s.ost0, s.ost1, s.ofl0, s.ofl1 = c(opt.osc & 1), c(opt.osc & 2), c(opt.osc & 4), c(opt.osc & 8)
    def A(s, t): s.L.append("  " + t)
    def lab(s, n): s.L.append(n + ":")
    def emit(s, lines):
        for l in lines:
            if l.endswith(":"): s.L.append(l)
            else: s.L.append("  " + l)
    def stamp_lines(s, name, cyc=False):
        if not s.opt.stamp: return []
        names = s.opt.stamps.split(",")
        if name not in names: return []
        r = STAMP_REGS[names.index(name)]
        if name == "hwid": return [f"s_getreg_b32 s{r}, hwreg(HW_REG_XCC_ID)", f"s_getreg_b32 s{r+1}, hwreg(HW_REG_HW_ID)"]
        cyc = cyc or s.opt.cyc or (s.opt.dbgst and name not in ("start", "end"))
        return [f"s_mem{'time' if cyc else 'realtime'} s[{r}:{r+1}]"]
    def stamp(s, name, cyc=False): s.emit(s.stamp_lines(name, cyc))
    def capture(s, fn):
        old = s.L; s.L = []
        fn()
        out = [l if l.endswith(":") else l.strip() for l in s.L]; s.L = old
        return out
    def ast(s, i):
        return [f"s_memtime s[{36+2*i}:{37+2*i}]"] if s.opt.astamp >= 0 else []

    def common(s):
        A = s.A
        A("s_cmp_ge_u32 s2, 256")
        A("s_cbranch_scc1 L_end")
        s.stamp("start"); s.stamp("cstart", True); s.stamp("hwid")
        if s.opt.diagx:
            A("s_getreg_b32 s70, hwreg(HW_REG_XCC_ID)")
            A("s_and_b32 s70, s70, 15")
            A("s_and_b32 s71, s2, 7")
            A("s_cmp_eq_u32 s70, s71")
            A("s_cbranch_scc1 L_diag ; @taken")
            for _ in range(s.opt.diagx): A("s_sleep 127")
            s.lab("L_diag")
        A("s_load_dwordx16 s[36:51], s[0:1], 0")
        A("s_load_dwordx8 s[52:59], s[0:1], 64")
        A("s_load_dwordx2 s[60:61], s[0:1], 96")
        A("v_lshrrev_b32 v1, 6, v0")
        A("s_and_b32 s70, s2, 7")
        A("s_lshr_b32 s71, s2, 3")
        if s.opt.cpf:
            KN = NAME + "_kernel"
            A("s_getpc_b64 s[84:85]")
            s.lab("L_pc")
            A(f"s_sub_u32 s84, s84, L_pc-{KN}")
            A("s_subb_u32 s85, s85, 0")
            A("v_lshlrev_b32 v2, 7, v1")
            A("v_and_b32 v3, 31, v0")
            A("v_lshlrev_b32 v3, 2, v3")
            A("v_add_u32 v2, v2, v3")
            if s.opt.cpf == 2:
                A("v_and_b32 v3, 32, v0")
                A("v_lshlrev_b32 v3, 10, v3")
                A("v_add_u32 v2, v2, v3")
            A("s_lshl_b32 s72, s71, 10")
            A("v_add_u32 v2, s72, v2")
            A(f"v_min_u32 v2, L_end-{KN}, v2")
            if s.opt.pro2:
                A("v_and_b32 v25, 63, v0")
                A("global_load_dword v0, v2, s[84:85]" + (" ; @dummy" if s.opt.kpb != "[]" else ""))
            else: A("global_load_dword v63, v2, s[84:85]")
        A(f"v_readfirstlane_b32 s{sWAVE}, v1 ; @val=WAVE")
        A(f"s_lshr_b32 s{sBR}, s70, 2")
        A(f"s_and_b32 s{sHG}, s70, 3")
        if s.opt.hgx: A(f"s_xor_b32 s{sHG}, s{sHG}, {s.opt.hgx}")
        A(f"s_and_b32 s{sB}, s71, 7")
        A(f"s_lshr_b32 s{sHP}, s71, 3")
        A(f"s_lshl_b32 s{sH0}, s{sHG}, 3")
        A(f"s_lshl_b32 s70, s{sHP}, 1")
        A(f"s_add_u32 s{sH0}, s{sH0}, s70")
        A(f"s_add_u32 s{sROT}, s{sB}, s70")
        if not s.opt.rot: A(f"s_mov_b32 s{sROT}, 0")
        R_ = f"s{sROT}"
        if s.opt.rot == 2: s.emit([f"s_xor_b32 {R_}, s{sB}, s{sHP}", f"s_and_b32 {R_}, {R_}, 1", f"s_lshl_b32 {R_}, {R_}, 2"])
        if s.opt.rot == 3: s.emit([f"s_add_u32 {R_}, s{sB}, s{sHP}", f"s_and_b32 {R_}, {R_}, 3", f"s_lshl_b32 {R_}, {R_}, 1"])
        if s.opt.rot == 4: s.emit([f"s_and_b32 {R_}, s{sB}, 3", f"s_lshl_b32 {R_}, {R_}, 1"])
        if s.opt.rot == 5: s.emit([f"s_lshl_b32 {R_}, s{sHP}, 1"])
        if s.opt.rot == 6: s.emit([f"s_mov_b32 {R_}, s{sB}"])
        if s.opt.rot == 7: s.emit([f"s_and_b32 {R_}, s{sB}, 1", f"s_lshl_b32 {R_}, {R_}, 2"])
        if s.opt.rot == 8: s.emit([f"s_lshl_b32 {R_}, s{sHP}, 2", f"s_add_u32 {R_}, {R_}, s{sB}"])
        A(f"s_and_b32 s{sW}, s{sWAVE}, 3")
        A(f"s_lshl_b32 s{sW4K}, s{sW}, 12")
        A("v_mov_b32 v1, v25" if (s.opt.pro2 and s.opt.cpf) else "v_and_b32 v1, 63, v0")
        A("v_lshrrev_b32 v19, 4, v1")
        A("v_and_b32 v20, 15, v1")
        A("v_lshlrev_b32 v21, 2, v19")
        A("v_xor_b32 v21, v20, v21")
        A("v_lshlrev_b32 v21, 4, v21")
        A("v_lshrrev_b32 v17, 5, v1")
        A("v_and_b32 v18, 3, v1")
        A("v_lshlrev_b32 v2, 13, v19")
        A("v_add_u32 v2, v2, v21")
        A("v_lshrrev_b32 v22, 3, v1")
        A("v_lshlrev_b32 v22, 10, v22")
        A("v_and_b32 v23, 7, v1")
        A("v_xor_b32 v23, v23, v19")
        A("v_lshlrev_b32 v24, 4, v23")
        A("v_add_u32 v3, v22, v24")
        A("v_xor_b32 v24, 64, v24")
        A("v_add_u32 v4, v22, v24")
        for r, sz in ((sK, 33554432), (sV, 33554432), (sWQ, 4194304), (sWS, 268435456), (sWO, 4194304), (sOUT, 1835008), (sDBG, 256)):
            A(f"s_mov_b32 s{r+2}, {sz}")
            A(f"s_mov_b32 s{r+3}, 0x20000")
        A(f"s_mov_b32 s{sX+3}, 0x20000")
        A(f"s_lshl_b32 s70, s{sW}, 17")
        A(f"s_lshl_b32 s71, s{sH0}, 8")
        A(f"s_add_u32 s{sWQB}, s70, s71")
        A(f"s_mul_i32 s70, s{sB}, 112")
        A(f"s_add_u32 s71, s70, 112")
        A(f"s_lshl_b32 s{sX+2}, s71, 10")
        A(f"s_lshl_b32 s71, s{sW}, 5")
        A("s_add_u32 s70, s70, s71")
        A(f"s_lshl_b32 s{sXB}, s70, 10")
        A(f"s_lshl_b32 s70, s{sB}, 5")
        A(f"s_add_u32 s70, s70, s{sH0}")
        A(f"s_lshl_b32 s{sKV}, s70, 17")
        A(f"s_add_u32 s{sKVW}, s{sKV}, s{sW4K}")
        A(f"s_cmp_eq_u32 s{sBR}, 0")
        A("s_waitcnt lgkmcnt(0)")
        s.stamp("k")
        for r, a, b in ((sX, 36, 46), (sWQ, 42, 52), (sK, 38, 48), (sV, 40, 50), (sWO, 44, 54)):
            A(f"s_cselect_b32 s{r}, s{a}, s{b}")
            A(f"s_cselect_b32 s{r+1}, s{a+1}, s{b+1}")
        for r, a in ((sOUT, 56), (sDBG, 58), (sWS, 60)):
            A(f"s_mov_b32 s{r}, s{a}")
            A(f"s_mov_b32 s{r+1}, s{a+1}")
        kr = s.opt.krot
        if kr == 1: A(f"s_lshl_b32 s52, s{sB}, 14")
        if kr == 2: s.emit([f"s_lshl_b32 s52, s{sHP}, 1", f"s_add_u32 s52, s52, s{sB}", f"s_add_u32 s52, s52, s{sHG}", "s_lshl_b32 s52, s52, 14"])
        if kr == 3: s.emit([f"s_lshl_b32 s52, s{sHP}, 1", f"s_and_b32 s53, s{sHG}, 1", "s_add_u32 s52, s52, s53", "s_lshl_b32 s52, s52, 14"])
        if kr == 4: s.emit([f"s_lshl_b32 s52, s{sHG}, 1", f"s_add_u32 s52, s52, s{sBR}", "s_lshl_b32 s52, s52, 14"])
        if kr == 5: s.emit([f"s_lshl_b32 s52, s{sB}, 1", f"s_lshr_b32 s53, s{sB}, 2", "s_add_u32 s52, s52, s53", f"s_add_u32 s52, s52, s{sHP}", f"s_lshl_b32 s53, s{sHG}, 1", "s_add_u32 s52, s52, s53", "s_lshl_b32 s52, s52, 14"])
        if kr == 7: s.emit([f"s_and_b32 s52, s{sB}, 1", "s_lshl_b32 s52, s52, 17", "s_sub_u32 s53, 131072, s52"])
        if kr == 8: s.emit([f"s_and_b32 s52, s{sHP}, 1", "s_lshl_b32 s52, s52, 17", "s_sub_u32 s53, 131072, s52"])
        if kr == 9: s.emit([f"s_and_b32 s52, s{sHG}, 1", "s_lshl_b32 s52, s52, 17", "s_sub_u32 s53, 131072, s52"])
        if kr == 10: s.emit([f"s_mov_b32 s52, 131072", "s_mov_b32 s53, 0"])
        if kr == 6: s.emit([f"s_and_b32 s52, s{sB}, 1", "s_lshl_b32 s52, s52, 16"])
        A(f"s_cmp_ge_u32 s{sWAVE}, 4")
        A("s_cbranch_scc1 L_B")

    def late_scalars(s):
        A = s.A
        A(f"s_lshl_b32 s70, s{sBR}, 3")
        A(f"s_add_u32 s70, s70, s{sB}")
        A(f"s_lshl_b32 s71, s70, 5")
        A(f"s_add_u32 s71, s71, s{sH0}")
        A(f"s_mul_i32 s{sOBASE}, s71, {UNIT}")
        A(f"s_lshl_b32 s71, s70, 2")
        A(f"s_add_u32 s71, s71, s{sHG}")
        A(f"s_lshl_b32 s{sGRP}, s71, 2")
        A(f"s_add_u32 s{sMYB}, s{sGRP}, s{sHP}")
        A(f"s_cmp_eq_u32 s{sW}, 3")
        A(f"s_cselect_b32 s{sEXLO}, 0xffff, -1")
        A(f"s_mov_b32 s{sEXHI}, s{sEXLO}")

    def kv_voffs(s, vK, vV):
        A = s.A
        A("v_lshlrev_b32 v22, 8, v19")
        A(f"v_add_u32 v{vV}, v22, v21")
        for t in range(4):
            A(f"v_add_u32 v23, {4*t}, v19")
            A(f"v_xor_b32 v23, v20, v23")
            A(f"v_lshlrev_b32 v23, 4, v23")
            A(f"v_add_u32 v{vK+t}, v22, v23")

    def flag_store(s, val, vtmp):
        A = s.A
        A(f"v_mov_b32 v{vtmp}, {val}")
        A("s_mov_b64 exec, 1")
        A(f"buffer_store_byte v{vtmp}, off, {srd(sDBG)}, s{sMYB} sc1")
        A("s_mov_b64 exec, -1")

    def xcc_byte(s, d):
        return [f"s_getreg_b32 s{d}, hwreg(HW_REG_XCC_ID)", f"s_and_b32 s{d}, s{d}, 15", f"s_lshl_b32 s{d}, s{d}, 1", f"s_or_b32 s{d}, s{d}, 1"]
    def kv_addr(s, j):
        if not s.opt.krot: return [f"s_add_u32 s70, s{sKVW}, {j*16384}"]
        if s.opt.krot >= 7: return [f"s_add_u32 s70, s{sKVW}, s{52 + (j >> 3)}", f"s_add_u32 s70, s70, {(j & 7) << 14}"]
        r = [f"s_add_u32 s70, s52, {(j & 7) << 14}", "s_and_b32 s70, s70, 0x1c000", f"s_add_u32 s70, s70, s{sKVW}"]
        if j >= 8: r.append("s_add_u32 s70, s70, 131072")
        return r
    def dma_k(s, j, vK, nt, tag):
        g = []
        for t in range(4):
            pre = [f"s_add_u32 m0, s{sW4K}, {P[j%3]}"] + s.kv_addr(j) if t == 0 else []
            if t and s.opt.ilv: pre = [f"s_add_u32 m0, s{sW4K}, {P[j%3]}", "s_nop 0"]
            g.append((tag, pre + [f"buffer_load_dwordx4 v{vK+t}, {srd(sK)}, s70 offen offset:{t*1024}{nt} lds"]))
        return g
    def dma_v(s, j, vV, nt, tag):
        g = []
        for t in range(4):
            pre = [f"s_add_u32 m0, s{sW4K}, {P[j%3]+16384}"] + s.kv_addr(j - 1) if t == 0 else []
            if t and s.opt.ilv: pre = [f"s_add_u32 m0, s{sW4K}, {P[j%3]+16384}", "s_nop 0"]
            g.append((tag, pre + [f"buffer_load_dwordx4 v{vV}, {srd(sV)}, s70 offen offset:{t*1024}{nt} lds"]))
        return g
    def kc_lines(s, c, dst):
        return [f"s_add_u32 s{dst}, s{sROT}, {c}", f"s_and_b32 s{dst}, s{dst}, 7"]
    def dma_wq(s, c, slot, vW, tag, extra, tmp):
        g = []
        for t in range(4):
            pre = []
            if t == 0:
                pre = s.kc_lines(c, tmp) + [f"s_lshl_b32 s{tmp}, s{tmp}, 19", f"s_add_u32 s{tmp}, s{tmp}, s{sWQB}",
                                            f"s_add_u32 m0, s{sW4K}, {slot}"]
            elif s.opt.ilv: pre = [f"s_add_u32 m0, s{sW4K}, {slot}"]
            g.append((tag, pre + [f"s_add_u32 s71, s{tmp}, {extra + t*31744}",
                                  f"buffer_load_dwordx4 v{vW}, {srd(sWQ)}, s71 offen offset:{t*1024}{' nt' if (tag in eval(s.opt.ntq)) else s.ntw} lds"]))
        return g

    def waveA(s):
        A = s.A; o = s.opt
        nt = " nt" if o.nt else ""
        Q_, SB, Pr, O, WIN, NM = 0, [32, 64], 96, 112, 176, 208
        KA, VA, QA, OV, RL = 224, 232, 236, 237, 238
        LS, AL, T = 240, 242, 244
        vK, vV = 5, 9
        q = Q(63)
        PX = [W[0], W[2], P[2]] if o.r3 else [P[1], P[2], W[0], W[2]]
        NR = len(PX)
        def dma_x(c):
            g = []
            for t in range(4):
                pre = []
                if t == 0:
                    pre = s.kc_lines(c, 87) + ["s_lshl_b32 s87, s87, 7", f"s_add_u32 s87, s87, s{sXB}", f"s_add_u32 m0, s{sW4K}, {PX[c%NR]}"]
                g.append((f"C{c}", pre + [f"s_add_u32 s71, s87, {t*7168}",
                                          f"buffer_load_dwordx4 v{3 + (t&1)}, {srd(sX)}, s71 offen offset:{t*1024}{' nt' if (c in eval(o.ntxc)) else s.ntx} lds"]))
            return g
        def issue(groups):
            for tag, ins in groups:
                q.issue(tag); s.emit(ins)
        def chunk(c): return dma_x(c) + s.dma_wq(c, PX[c % NR] + 16384, 2, f"C{c}", 0, 87)
        issue(chunk(0))
        s.stamp("a0")
        issue(chunk(1))
        for c_ in range(2, o.pdep): issue(chunk(c_))
        kp0 = eval(o.kp0)
        def kp0_issue(pos):
            for (pos_, j) in kp0:
                if pos_ != pos: continue
                pre = [f"s_add_u32 s70, s60, {j * 16384}"]
                issue([("PF", (pre if i_ == 0 else []) + [f"buffer_load_dword v254, v255, s[56:59], s70 offen offset:{128 // o.kpfn * i_}{o.kp0nt} ; @dummy"]) for i_ in range(o.kpfn)])
        if kp0:
            assert not o.kpf and not o.krot
            A(f"s_cmp_lt_u32 s{sW}, 2")
            A(f"s_cselect_b32 s56, s{sK}, s{sV}")
            A(f"s_cselect_b32 s57, s{sK+1}, s{sV+1}")
            A(f"s_cselect_b32 s60, 0, {hex((-16384) & 0xffffffff)}")
            A("s_mov_b32 s58, 33554432")
            A("s_mov_b32 s59, 0x20000")
            A(f"s_add_u32 s60, s60, s{sKV}")
            A(f"s_and_b32 s70, s{sW}, 1")
            A("s_lshl_b32 s70, s70, 13")
            A("s_add_u32 s60, s60, s70")
            A("v_lshlrev_b32 v255, 7, v1")
            kp0_issue(-1)
        if o.k0at < 0:
            s.kv_voffs(vK, vV)
            issue(s.dma_k(0, vK, nt, "K0"))
            if o.p1at < 0: issue(s.dma_k(1, vK, nt, "KV1") + s.dma_v(1, vV, nt, "KV1"))
        segs = []
        capL = s.L
        if o.pro2a: s.L = []
        def cut():
            if o.pro2a:
                segs.append(s.L); s.L = []
        s.late_scalars()
        if o.k0at >= 0: s.kv_voffs(vK, vV)
        cut()
        if o.tail == 12:
            A(f"s_lshl_b32 s70, s{sHG}, 20")
            A(f"s_lshl_b32 s71, s{sW}, 14")
            A("s_add_u32 s70, s70, s71")
            A(f"s_lshl_b32 s71, s{sHP}, 8")
            A("s_add_u32 s46, s70, s71")
            A(f"s_mul_i32 s47, s{sB}, 11")
            A("s_lshr_b32 s47, s47, 5")
            A("s_mul_i32 s47, s47, 3")
            A(f"s_sub_u32 s47, s{sB}, s47")
            if not (o.wrot & 1): A("s_mov_b32 s47, 0")
            A(f"s_lshl_b32 s70, s{sBR}, 3")
            A(f"s_add_u32 s70, s70, s{sB}")
            A("s_lshl_b32 s70, s70, 5")
            A(f"s_add_u32 s70, s70, s{sH0}")
            A(f"s_lshl_b32 s71, s{sHP}, 1")
            A("s_sub_u32 s70, s70, s71")
            A(f"s_mul_i32 s55, s70, {UNIT}")
            for p in range(1, 4):
                A(f"s_add_u32 s70, s47, {p - 1}")
                A("s_sub_u32 s71, s70, 3")
                A("s_cmp_ge_u32 s70, 3")
                A("s_cselect_b32 s70, s71, s70")
                A(f"s_add_u32 s70, s70, s{sHP}")
                A("s_add_u32 s70, s70, 1")
                A("s_and_b32 s70, s70, 3")
                A("s_lshl_b32 s71, s70, 18")
                A(f"s_add_u32 s{40+p}, s46, s71")
                A(f"s_mul_i32 s71, s70, {2*UNIT}")
                A(f"s_add_u32 s{49+p}, s55, s71")
                A(f"s_add_u32 s{49+p}, s{49+p}, {UNIT}")
            A(f"s_lshl_b32 s71, s{sHP}, 18")
            A("s_add_u32 s40, s46, s71")
            A(f"s_and_b32 s70, s{sB}, 1")
            if not (o.wrot & 2): A("s_mov_b32 s70, 0")
            A("s_lshl_b32 s44, s70, 16")
            A("s_sub_u32 s45, 65536, s44")
            A("s_mul_i32 s53, s70, 14336")
            A("s_sub_u32 s54, 14336, s53")
            A(f"s_lshl_b32 s48, s{sW}, 2")
            A(f"s_add_u32 s48, s48, {FLAG_BASE}")
            cut()
        A("v_and_b32 v10, 31, v1")
        A("v_lshlrev_b32 v10, 8, v10")
        A("v_xor_b32 v11, v17, v20")
        for k in range(8):
            A(f"v_xor_b32 v12, {2*k}, v11")
            A(f"v_lshlrev_b32 v12, 4, v12")
            A(f"v_add_u32 v{KA+k}, v10, v12")
        cut()
        A("v_lshrrev_b32 v10, 2, v20")
        A("v_and_b32 v11, 1, v19")
        A("v_lshlrev_b32 v12, 10, v17")
        A("v_lshlrev_b32 v13, 8, v10")
        A("v_add_u32 v12, v12, v13")
        A("v_lshlrev_b32 v13, 5, v11")
        A("v_add_u32 v12, v12, v13")
        A("v_and_b32 v13, 1, v18")
        A("v_lshlrev_b32 v13, 4, v13")
        A("v_add_u32 v12, v12, v13")
        A("v_lshrrev_b32 v13, 1, v18")
        A("v_lshlrev_b32 v13, 3, v13")
        A("v_add_u32 v12, v12, v13")
        A("v_add_u32 v12, 16384, v12")
        for D in range(4):
            A(f"v_xor_b32 v13, {D}, v10")
            A(f"v_lshlrev_b32 v13, 6, v13")
            A(f"v_add_u32 v{VA+D}, v12, v13")
        cut()
        A(f"s_lshl_b32 s70, s{sW}, 13")
        A(f"s_add_u32 s70, s70, {W[0]}")
        A(f"v_lshlrev_b32 v{QA}, 4, v1")
        A(f"v_add_u32 v{QA}, s70, v{QA}")
        A(f"v_mul_u32_u24 v{OV}, 112, v17")
        A(f"v_and_b32 v12, 31, v1")
        A(f"v_add_u32 v{OV}, v{OV}, v12")
        A(f"s_lshl_b32 s70, s{sW}, 5")
        A(f"v_add_u32 v{OV}, s70, v{OV}")
        A(f"v_lshlrev_b32 v{OV}, 4, v{OV}")
        for i in range(8): A(f"v_mov_b64 {vr(NM+2*i,2)}, 0")
        A(f"v_mov_b64 {vr(LS,2)}, 0")
        A(f"s_mov_b32 s{sEV}, {hex((1<<0)|(1<<8)|(1<<1)|(1<<7))}")
        A(f"s_mov_b32 s{sPAT}, {hex(sum(1 << i for i in range(2, 17, 3)))}")
        A(f"s_mov_b32 s{sNEG}, 0xffff0000")
        A(f"s_mov_b32 s{sPOS}, 32768")
        A(f"s_mov_b32 s{sTHR}, {hex(fbits(THR))}")
        A(f"s_mov_b32 s{sSTEP}, 0")
        A(f"s_mov_b32 s{sPEND}, 0")
        A(f"s_add_u32 s{sOBASE}, s{sOBASE}, {UNIT}")
        if o.kpf:
            A(f"s_cmp_lt_u32 s{sW}, 2")
            A(f"s_cselect_b32 s56, s{sK}, s{sV}")
            A(f"s_cselect_b32 s57, s{sK+1}, s{sV+1}")
            A(f"s_cselect_b32 s60, 0, {hex((-16384) & 0xffffffff)}")
            A(f"s_cselect_b32 s61, {15 - 2 - o.kpf + 1}, {16 - 2 - o.kpf + 1}")
            A("s_mov_b32 s58, 33554432")
            A("s_mov_b32 s59, 0x20000")
            A(f"s_add_u32 s60, s60, s{sKV}")
            A(f"s_and_b32 s70, s{sW}, 1")
            A("s_lshl_b32 s70, s70, 13")
            A("s_add_u32 s60, s60, s70")
            A(f"s_add_u32 s60, s60, {(2 + o.kpf) * 16384}")
            A("v_lshlrev_b32 v255, 7, v1")
        if o.xs in (1, 2):
            A("v_lshlrev_b32 v14, 2, v1")
            A(f"s_lshl_b32 s70, s{sMYB}, 7")
            A(f"s_add_u32 s70, s70, {FLAG_BASE}")
            A("s_mov_b64 exec, 0xfff")
            A(f"buffer_store_dword v{NM}, v14, {srd(sWS)}, s70 offen sc1")
            A("s_mov_b64 exec, -1")
        cut()
        if o.pro2a: s.L = capL
        for k in range(8):
            n = q.wait(f"C{k}")
            if n is not None: A(f"s_waitcnt vmcnt({n})")
            s.stamp(f"aw{k}")
            A("s_barrier")
            if o.r3 == 2 and 1 <= k <= 6: A("s_barrier")
            if k + o.pdep < 8: issue(chunk(k + o.pdep))
            kp0_issue(k)
            bkv = eval(o.bkv)
            if k == o.k0at and 0 not in bkv: issue(s.dma_k(0, vK, nt, "K0"))
            if k == o.q0at and 'q' not in bkv: issue(s.dma_wq(0, P[0] + 16384, 2, "Q0", 256, 87))
            apf = eval(o.apf)
            def pf_groups(part):
                g = []
                pre = ["v_lshlrev_b32 v14, 4, v1", "s_lshr_b32 s70, s2, 3", "s_lshr_b32 s71, s70, 3", "s_lshl_b32 s71, s71, 18",
                       "s_and_b32 s70, s70, 7", "s_lshl_b32 s70, s70, 14", "s_add_u32 s70, s70, s71",
                       f"s_lshl_b32 s71, s{sHG}, 20", "s_add_u32 s70, s70, s71", f"s_add_u32 s70, s70, s{sW4K}"]
                if part: pre.append("s_add_u32 s70, s70, 131072")
                for t_ in range(4):
                    g.append(("PF", (pre if t_ == 0 else []) + [f"buffer_load_dwordx4 v[252:255], v14, {srd(sWO)}, s70 offen offset:{t_*1024}{o.apfnt} ; @dummy"]))
                return g
            if o.apfpos == 0:
                for part in apf.get(k, []): issue(pf_groups(part))
            for (kk_, when, j) in eval(o.kpf0):
                if kk_ == k and when == 0:
                    issue([("PF", [f"s_add_u32 s70, s60, {hex(((j - 2 - o.kpf) * 16384) & 0xffffffff)}",
                                   f"buffer_load_dword v254, v255, s[56:59], s70 offen{o.kpfnt} ; @dummy"])] +
                          [("PF", [f"buffer_load_dword v254, v255, s[56:59], s70 offen offset:{128 // o.kpfn * i_}{o.kpfnt} ; @dummy"]) for i_ in range(1, o.kpfn)])
            if k == o.p1at and 1 not in bkv: issue(s.dma_k(1, vK, nt, "KV1") + s.dma_v(1, vV, nt, "KV1"))
            if k == o.p2at: issue(s.dma_k(2, vK, nt, "KV2") + s.dma_v(2, vV, nt, "KV2"))
            for (kk_, when, j) in eval(o.kpf0):
                if kk_ == k and when == 1:
                    issue([("PF", [f"s_add_u32 s70, s60, {hex(((j - 2 - o.kpf) * 16384) & 0xffffffff)}",
                                   f"buffer_load_dword v254, v255, s[56:59], s70 offen{o.kpfnt} ; @dummy"])] +
                          [("PF", [f"buffer_load_dword v254, v255, s[56:59], s70 offen offset:{128 // o.kpfn * i_}{o.kpfnt} ; @dummy"]) for i_ in range(1, o.kpfn)])
            if o.apfpos == 1:
                for part in apf.get(k, []): issue(pf_groups(part))
            if k < len(segs): s.L += segs[k]
            if o.xs in (1, 2) and k == 3: q.issue("CLR")
        n0 = q.wait(["K0", "Q0"])
        if n0 is None: n0 = 63
        assert n0 == 8 or o.apf != "{}" or o.r3 or o.kpf or o.p2at <= 7 or kp0, n0
        if o.kpf:
            for _ in range(o.kpfn): q.issue("PF")
        n1 = q.wait("KV1") if o.kpf else 0
        if n1 is None: n1 = 63
        if o.prioA: A(f"s_setprio {o.prioA}")

        U = T + 4
        def fin_D(D, dst):
            L = [f"v_mul_f32 v{O+16*D+i}, v{AL}, v{O+16*D+i}" for i in range(16)]
            L += [f"v_cvt_pk_bf16_f32 v{dst+8*D+i}, v{O+16*D+2*i}, v{O+16*D+2*i+1}" for i in range(8)]
            return L
        def step(par, last=False):
            cur, prev = SB[par], SB[1 - par]
            lq = Q(15)
            L = []
            def wl(tags):
                n = lq.wait(tags)
                return [f"s_waitcnt lgkmcnt({n})"] if n is not None else []
            def kread(i):
                T_, k = divmod(i, 8); lq.issue(f"K{i}")
                return [f"ds_read_b128 {vr(WIN + 4*(i % 8), 4)}, v{KA+k} offset:{T_*8192}"]
            vorder = [divmod(f, 4) for f in range(16)] if not last else [(t, D) for D in range(4) for t in range(4)]
            def vread(f):
                t, D = vorder[f]; r = []
                for a in range(2):
                    lq.issue(f"V{f}")
                    r.append(f"ds_read_b64_tr_b16 {vr(WIN + 4*(f % 8) + 2*a, 2)}, v{VA+D} offset:{t*4096 + a*2048}")
                return r
            exp = lambda r: [f"v_exp_f32 v{r}, v{r}"]
            add = lambda r: [f"v_add_f32 v{LS + (r & 1)}, v{LS + (r & 1)}, v{r}"]
            cvt = lambda t, i: [f"v_cvt_pk_bf16_f32 v{Pr+4*t+i}, v{prev+8*t+2*i}, v{prev+8*t+2*i+1}"]
            mx = lambda d, a, b, c: [f"v_max3_f32 v{d}, v{a}, v{b}, v{c}"]
            bub = []
            for i in range(4): bub += [cvt(0, i), add(prev + 2*i), add(prev + 2*i + 1)]
            for i in range(4): bub += [cvt(1, i), add(prev + 8 + 2*i), add(prev + 8 + 2*i + 1)]
            F1 = []
            e = [exp(prev + 16 + i) for i in range(16)]
            a_ = [add(prev + 16 + i) for i in range(16)]
            c2 = [cvt(2, i) for i in range(4)]; c3 = [cvt(3, i) for i in range(4)]
            F1 += [e[0], e[1], e[2]]
            for i in range(3, 16):
                F1 += [e[i], a_[i - 3]]
                if i in (5, 7, 9, 11): F1.append(c2[(i - 5) // 2])
                if i in (13, 15): F1.append(c3[(i - 13) // 2])
            F1 += [a_[13], c3[2], a_[14], a_[15], c3[3]]
            def maxT(base, d0, d1):
                return [mx(d0, base, base+1, base+2), mx(d1, base+8, base+9, base+10),
                        mx(d0, d0, base+3, base+4), mx(d1, d1, base+11, base+12),
                        mx(d0, d0, base+5, base+6), mx(d1, d1, base+13, base+14),
                        mx(d0, d0, base+7, base+15)]
            M0 = maxT(cur, U, U+1)
            M1 = maxT(cur+16, U+2, U+3)
            fin = [mx(U, U, U+1, U+2), [f"v_max_f32 v{U}, v{U}, v{U+3}"]]
            tagp = "e" if par == 0 else "o"
            chk = [f"v_cmp_lt_f32 vcc, s{sTHR}, v{U}",
                   f"s_nop 0",
                   f"s_cbranch_vccnz A_resc{tagp} ; @takenif={sTHR}:0xff800000",
                   f"A_resc{tagp}r:"]
            advK = [[f"v_add_u32 v{KA+k}, s70, v{KA+k}"] for k in range(8)]
            advV = [[f"v_add_u32 v{VA+D}, s70, v{VA+D}"] for D in range(4)]
            exps1 = [exp(cur+i) for i in range(16)]

            L += s.ast(1)
            if not last:
                for i in range(8): L += kread(i)
                for it in bub: L += it
                nb = o.nbub
                for it in F1[:nb]: L += it
                gaps = [[] for _ in range(16)]
                spread(gaps, F1[nb:], 0, 14)
                spread(gaps, M0, 10, 16)
                for i in range(16):
                    T_, k = divmod(i, 8)
                    if i % 2 == 0: L += wl([f"K{i}", f"K{i+1}"])
                    srcC = vr(NM, 16) if k == 0 else vr(cur + 16*T_, 16)
                    L.append(f"v_mfma_f32_32x32x16_bf16 {vr(cur+16*T_,16)}, {vr(WIN+4*(i%8),4)}, {vr(Q_+4*k,4)}, {srcC}")
                    if i + 8 < 16: L += kread(i + 8)
                    if i >= 9: L += vread(i - 9)
                    L += gaps[i]
                    if i == 7: L += s.ast(2)
                L += s.ast(3)
                vissued = 7
                gaps = [[] for _ in range(16)]
                spread(gaps, advK[:4], 0, 2)
                spread(gaps, M1 + fin, 2, 5)
                gaps[5] += chk
                spread(gaps, exps1, 5, 16)
                spread(gaps, advK[4:], 6, 10)
                spread(gaps, advV, 10, 14)
                L += [f"s_bitcmp1_b32 s{sPAT}, s{sSTEP}", f"s_cselect_b32 s70, s{sNEG}, s{sPOS}"]
            else:
                L += s.stamp_lines("a16")
                for f in range(7): L += vread(f)
                vissued = 7
                for it in bub: L += it
                for it in F1: L += it
                L += rl_lines(AL)
                L += s.stamp_lines("a16v")
                L.append(f"v_add_u32 v{QA}, {hex((P[0] - W[1]) & 0xffffffff)}, v{QA}")
                gaps = [[] for _ in range(16)]
                for D in range(3):
                    items = [[x] for x in fin_D(D, cur)] + [out_D(D, cur)]
                    spread(gaps, items, 4*D + 6 if D < 2 else 14, 4*D + 10 if D < 2 else 16)
            for f in range(16):
                t, D = vorder[f]
                if f % 2 == 0: L += wl([f"V{f}", f"V{f+1}"])
                L.append(f"v_mfma_f32_32x32x16_bf16 {vr(O+16*D,16)}, {vr(WIN+4*(f%8),4)}, {vr(Pr+4*t,4)}, {vr(O+16*D,16)}")
                if vissued < 16:
                    L += vread(vissued); vissued += 1
                L += gaps[f]
                if f == 6 and not last: L += s.ast(4)
            if not last:
                L += s.ast(5)
                L += [f"s_cmp_lg_u32 s{sPEND}, 0", f"s_cbranch_scc1 A_pend{tagp}", f"A_pend{tagp}r:"]
                L += s.ast(6)
                if s.opt.astamp >= 0:
                    L += ["s_waitcnt lgkmcnt(0)", f"s_cmp_eq_u32 s{sSTEP}, {s.opt.astamp}"]
                    L += [f"s_cselect_b32 s{50+i}, s{36+2*i}, s{50+i}" for i in range(7)]
            else:
                L += s.stamp_lines("a16m")
                L += fin_D(3, cur) + out_D(3, cur)
                L += s.stamp_lines("a16s")
            return L
        def out_D(D, src):
            L = []
            if o.tail == 12: L.append(f"s_mov_b64 exec, s[{sEXLO}:{sEXHI}]")
            for h in range(2):
                L.append(f"ds_write_b128 v{QA}, {vr(src+8*D+4*h,4)} offset:{(2*D+h)*1024}")
            if o.tail != 12: L.append(f"s_mov_b64 exec, s[{sEXLO}:{sEXHI}]")
            for h in range(2):
                L.append(f"s_add_u32 s71, s{sOBASE}, {(4*D+2*h)*1792}")
                L.append(f"buffer_store_dwordx4 {vr(src+8*D+4*h,4)}, v{OV}, {srd(sWS)}, s71 offen{s.ost1}{s.nths}")
            L.append("s_mov_b64 exec, -1")
            return L
        def rl_lines(dst):
            return [f"v_add_f32 v{T}, v{LS}, v{LS+1}", f"v_mov_b32 v{T+1}, v{T}", f"v_permlane32_swap_b32 v{T}, v{T+1}",
                    f"v_add_f32 v{T}, v{T}, v{T+1}", f"v_rcp_f32 v{dst}, v{T}"]

        s.lab("A_loop")
        for par in range(2):
            tagp = "e" if par == 0 else "o"
            if par == 1 and o.s0q: s.lab("A_par1")
            s.emit(s.ast(0))
            A(f"s_bitcmp1_b32 s{sEV}, s{sSTEP}")
            A(f"s_cbranch_scc1 A_top{tagp}")
            A("s_barrier")
            s.lab(f"A_top{tagp}r")
            if o.kpf:
                A(f"s_cmp_lt_u32 s{sSTEP}, s61")
                A(f"s_cbranch_scc0 A_npf{tagp}")
                for i_ in range(o.kpfn):
                    A(f"buffer_load_dword v254, v255, s[56:59], s60 offen offset:{128 // o.kpfn * i_}{o.kpfnt} ; @dummy")
                A("s_add_u32 s60, s60, 16384")
                s.lab(f"A_npf{tagp}")
            s.emit(step(par))
            A(f"s_add_u32 s{sSTEP}, s{sSTEP}, 1")
        A(f"s_cmp_lt_u32 s{sSTEP}, 16")
        A("s_cbranch_scc1 A_loop")
        A("s_barrier")
        s.emit(step(0, last=True))
        A("s_waitcnt lgkmcnt(0)")
        A("s_barrier")
        if o.tail in (6, 8, 9, 10, 11, 12):
            aWP, aH = [40, 41, 42, 43], (44, 45)
            A("v_mbcnt_lo_u32_b32 v1, -1, 0")
            A("v_mbcnt_hi_u32_b32 v1, -1, v1")
            A("v_lshrrev_b32 v2, 4, v1")
            A("v_and_b32 v3, 15, v1")
            A("v_lshlrev_b32 v7, 2, v2")
            A("v_xor_b32 v7, v3, v7")
            A("v_lshlrev_b32 v7, 4, v7")
            A("v_lshlrev_b32 v4, 10, v2")
            A("v_add_u32 v4, v4, v7")
            A(f"v_add_u32 v5, s{sHP}, v1")
            A("v_add_u32 v5, 1, v5")
            A("v_and_b32 v5, 3, v5")
            A(f"v_add_u32 v5, s{sGRP}, v5")
            A("v_lshlrev_b32 v5, 7, v5")
        if o.tail == 12: pass
        elif o.tail in (6, 8, 9, 10, 11):
            A(f"s_lshl_b32 s70, s{sHG}, 20")
            A(f"s_lshl_b32 s71, s{sW}, 14")
            A("s_add_u32 s70, s70, s71")
            A(f"s_lshl_b32 s71, s{sHP}, 8")
            A("s_add_u32 s46, s70, s71")
            if o.wrot:
                A(f"s_mul_i32 s47, s{sB}, 11")
                A("s_lshr_b32 s47, s47, 5")
                A("s_mul_i32 s47, s47, 3")
                A(f"s_sub_u32 s47, s{sB}, s47")
                if not (o.wrot & 1): A("s_mov_b32 s47, 0")
            for p in range(1, 4) if not o.t6o else range(4):
                if o.wrot and p > 0:
                    A(f"s_add_u32 s70, s47, {p - 1}")
                    A("s_sub_u32 s71, s70, 3")
                    A("s_cmp_ge_u32 s70, 3")
                    A("s_cselect_b32 s70, s71, s70")
                    A(f"s_add_u32 s70, s70, s{sHP}")
                    A("s_add_u32 s70, s70, 1")
                else:
                    A(f"s_add_u32 s70, s{sHP}, {p}")
                A("s_and_b32 s70, s70, 3")
                A(f"s_lshl_b32 s71, s70, 18")
                A(f"s_add_u32 s{aWP[p]}, s46, s71")
            A(f"s_lshl_b32 s71, s{sHP}, 18")
            A(f"s_add_u32 s{aWP[0]}, s46, s71")
            A(f"s_and_b32 s70, s{sB}, 1")
            if not (o.wrot & 2): A("s_mov_b32 s70, 0")
            A(f"s_lshl_b32 s{aH[0]}, s70, 16")
            A(f"s_sub_u32 s{aH[1]}, 65536, s{aH[0]}")
            A(f"s_lshl_b32 s48, s{sW}, 2")
            A(f"s_add_u32 s48, s48, {FLAG_BASE}")
        A(f"s_lshl_b32 s70, s{sMYB}, 7")
        A(f"s_add_u32 s70, s70, {FLAG_BASE}")
        A(f"s_lshl_b32 s71, s{sW}, 2")
        A("s_add_u32 s70, s70, s71")
        A(f"v_mov_b32 v{T}, 1")
        s.stamp("aE")
        if o.xs:
            s.emit(s.xcc_byte(87))
            if o.xs < 3: A("s_mul_i32 s87, s87, 0x01010101")
            else: A("s_mov_b64 exec, 15")
        def a_wo10(p, half, slot, off=131072):
            for t_ in range(4):
                if t_ == 0:
                    A(f"s_add_u32 m0, s{sW4K}, {slot}")
                    A(f"s_add_u32 s72, s{aWP[p]}, s{aH[half]}")
                A(f"s_add_u32 s71, s72, {off + t_*3072}")
                A(f"buffer_load_dwordx4 v4, {srd(sWO)}, s71 offen offset:{t_*1024}{s.nto} lds")
        if o.tail == 10:
            a_wo10(0, 1, P[1] + 16384)
            A("s_waitcnt vmcnt(4)")
        elif o.tail == 12 and o.t12v == 3:
            A("s_waitcnt vmcnt(0)")
        elif o.tail == 12:
            a_wo10(0, 1, P[1] + 16384)
            A("s_waitcnt vmcnt(4)")
        elif o.tail == 11:
            for (pp_, hh_, sl_) in eval(o.t11a): a_wo10(pp_, hh_, sl_)
        else: A("s_waitcnt vmcnt(0)")
        s.stamp("adr")
        if o.xs in (1, 2):
            A("v_readfirstlane_b32 s71, v252")
            A("s_cmp_eq_u32 s71, s87")
            A("s_cbranch_scc0 A_wb ; @nottaken" if o.xs == 1 else "s_branch A_wb")
            s.lab("A_wbr")
        elif o.xs:
            A("v_cmp_eq_u32 vcc, s87, v252")
            A("s_cmp_eq_u32 vcc_lo, 15")
            A("s_cbranch_scc0 A_wb ; @nottaken" if o.xs == 3 else "s_branch A_wb")
            s.lab("A_wbr")
        if o.tail != 11:
            A("s_mov_b64 exec, 1")
            A(f"buffer_store_dword v{T}, off, {srd(sWS)}, s70{s.ofl1}")
            A("s_mov_b64 exec, -1")
        if o.apre:
            A(f"s_mov_b64 exec, s[{sEXLO}:{sEXHI}]")
            for D in range(4):
                for h in range(2):
                    A(f"s_add_u32 s71, s{sOBASE}, {(4*D+2*h)*1792}")
                    A(f"buffer_load_dwordx4 {vr(32+8*D+4*h,4)}, v{OV}, {srd(sWS)}, s71 offen{['', '', ' sc1', ' nt'][o.apre]} ; @dummy")
            A("s_mov_b64 exec, -1")
        if o.tail == 12:
            SY = P[0] + 3*8192 + 256
            A("v_lshrrev_b32 v8, 5, v1")
            A("v_mul_u32_u24 v12, 448, v8")
            A("v_and_b32 v9, 31, v1")
            A("v_add_u32 v12, v12, v9")
            A(f"s_lshl_b32 s70, s{sW}, 5")
            A("v_add_u32 v12, s70, v12")
            A("v_lshlrev_b32 v12, 4, v12")
            A("v_add_u32 v13, 3584, v12")
            A(f"v_mov_b32 v14, {SY}")
            A(f"s_lshl_b32 s70, s{sW}, 2")
            A(f"s_add_u32 s70, s70, {SY + 16}")
            A("v_mov_b32 v15, s70")
            nb_ = [0]
            def a_sig(level):
                A(f"v_mov_b32 v16, {level}")
                A("s_mov_b64 exec, 1")
                A("ds_write_b32 v15, v16")
                A("s_mov_b64 exec, -1")
            def a_need(level):
                n = nb_[0]; nb_[0] += 1
                A(f"s_mov_b32 s{sSPIN}, 0")
                s.lab(f"A_n{n}")
                A("ds_read_b128 v[8:11], v14")
                A(f"s_add_u32 s{sSPIN}, s{sSPIN}, 1")
                A("s_waitcnt lgkmcnt(0)")
                A("v_min3_u32 v8, v8, v9, v10")
                A("v_min_u32 v8, v8, v11")
                A("v_readfirstlane_b32 s70, v8")
                A(f"s_cmp_ge_u32 s70, {level}")
                A(f"s_cbranch_scc1 A_n{n}d ; @taken")
                A(f"s_cmp_lt_u32 s{sSPIN}, {o.spin * 8}")
                A(f"s_cbranch_scc1 A_n{n}")
                s.lab(f"A_n{n}d")
            def a_g(p, region):
                A(f"s_mov_b64 exec, s[{sEXLO}:{sEXHI}]")
                for half in range(2):
                    A(f"s_lshl_b32 s70, s{sW}, 13")
                    A(f"s_add_u32 m0, s70, {region + half*4096}")
                    A(f"s_add_u32 s72, s{49+p}, s{53+half}")
                    for j in range(4):
                        d_ = (j & 1) * 1792 - j * 1024
                        if d_ >= 0: A(f"s_add_u32 s71, s72, {d_}")
                        else: A(f"s_sub_u32 s71, s72, {-d_}")
                        A(f"buffer_load_dwordx4 v{12 + (j >> 1)}, {srd(sWS)}, s71 offen offset:{j*1024} sc1 lds")
                A("s_mov_b64 exec, -1")
            if o.t12v == 4:
                a_need(2)
                a_wo10(1, 0, W[0]); a_wo10(1, 1, W[1])
                a_need(3)
                a_wo10(2, 0, W[2]); a_wo10(2, 1, W[3])
                A("s_waitcnt vmcnt(16)")
                a_sig(1)
                a_need(4)
                a_wo10(3, 0, P[1]); a_wo10(3, 1, P[2])
                A("s_waitcnt vmcnt(16)")
                a_sig(2)
                A("s_waitcnt vmcnt(8)")
                a_sig(3)
                A("s_waitcnt vmcnt(0)")
                a_sig(4)
            elif o.t12v == 3:
                A("v_lshlrev_b32 v17, 4, v1")
                A(f"v_add_u32 v17, s{sW4K}, v17")
                A(f"v_add_u32 v18, {W[0]}, v17")
                A(f"v_add_u32 v19, {P[2]}, v17")
                A("v_lshlrev_b32 v20, 4, v1")
                A(f"s_lshl_b32 s70, s{sW}, 13")
                A("v_add_u32 v20, s70, v20")
                A(f"v_add_u32 v21, {W[2]}, v20")
                RW = {(0, 1): 32, (1, 0): 48, (1, 1): 64, (2, 0): 80, (2, 1): 96, (3, 0): 112, (3, 1): 128}
                RG = {1: 144, 2: 176, 3: 208}
                def ldW(p, half):
                    for t_ in range(4):
                        if t_ == 0: A(f"s_add_u32 s72, s{aWP[p]}, s{aH[half]}")
                        A(f"s_add_u32 s71, s72, {131072 + t_*3072}")
                        A(f"buffer_load_dwordx4 {vr(RW[(p, half)] + 4*t_, 4)}, v4, {srd(sWO)}, s71 offen offset:{t_*1024}{s.nto}")
                def wrW(p, half, slot):
                    if slot >= W[0]: vb, off = 18, slot - W[0]
                    elif slot >= P[2]: vb, off = 19, slot - P[2]
                    else: vb, off = 17, slot
                    for t_ in range(4):
                        A(f"ds_write_b128 v{vb}, {vr(RW[(p, half)] + 4*t_, 4)} offset:{off + t_*1024}")
                def ldG(p):
                    A(f"s_mov_b64 exec, s[{sEXLO}:{sEXHI}]")
                    for half in range(2):
                        A(f"s_add_u32 s72, s{49+p}, s{53+half}")
                        for j in range(4):
                            A(f"buffer_load_dwordx4 {vr(RG[p] + 16*half + 4*j, 4)}, v{12 + (j >> 1)}, {srd(sWS)}, s72 offen offset:{(j & 1)*1792} sc1")
                    A("s_mov_b64 exec, -1")
                def wrG(p, vb):
                    A(f"s_mov_b64 exec, s[{sEXLO}:{sEXHI}]")
                    for k in range(8):
                        A(f"ds_write_b128 v{vb}, {vr(RG[p] + 4*k, 4)} offset:{k*1024}")
                    A("s_mov_b64 exec, -1")
                def sigw(level):
                    A("s_waitcnt lgkmcnt(0)"); a_sig(level)
                def poll_iss():
                    A("s_mov_b64 exec, 7")
                    A(f"buffer_load_dword v6, v5, {srd(sWS)}, s48 offen sc1")
                    A("s_mov_b64 exec, -1")
                def poll_chk():
                    A("s_mov_b64 exec, 7")
                    A("v_cmp_ne_u32 vcc, 0, v6")
                    A("s_mov_b64 exec, -1")
                    A("s_cmp_eq_u32 vcc_lo, 7")
                poll_iss()
                ldW(0, 1); ldW(1, 0); ldW(1, 1)
                A("s_waitcnt vmcnt(12)")
                poll_chk()
                A("s_cbranch_scc0 A_pf ; @hook=GSLOW")
                s.stamp("apl")
                ldG(1)
                A("s_waitcnt vmcnt(16)")
                wrW(0, 1, P[1] + 16384); sigw(1)
                a_need(2)
                A("s_waitcnt vmcnt(8)")
                wrW(1, 0, W[0]); wrW(1, 1, W[1]); sigw(2)
                A("s_branch A_pj")
                s.lab("A_pf")
                A("s_waitcnt vmcnt(8)")
                wrW(0, 1, P[1] + 16384); sigw(1)
                a_need(2)
                A("s_waitcnt vmcnt(0)")
                wrW(1, 0, W[0]); wrW(1, 1, W[1]); sigw(2)
                A(f"s_mov_b32 s{sSPIN}, 0")
                s.lab("A_poll")
                poll_iss()
                A(f"s_add_u32 s{sSPIN}, s{sSPIN}, 1")
                A("s_waitcnt vmcnt(0)")
                poll_chk()
                A("s_cbranch_scc1 A_polld ; @taken")
                A(f"s_cmp_lt_u32 s{sSPIN}, {o.spin}")
                A("s_cbranch_scc1 A_poll")
                s.lab("A_polld")
                s.stamp("apl")
                ldG(1)
                s.lab("A_pj")
                ldW(2, 0); ldW(2, 1)
                A("s_waitcnt vmcnt(8)")
                s.stamp("ag1")
                wrG(1, 20); sigw(3)
                ldG(2)
                a_need(4)
                A("s_waitcnt vmcnt(8)")
                wrW(2, 0, P[1]); wrW(2, 1, P[2]); sigw(4)
                ldW(3, 0); ldW(3, 1)
                A("s_waitcnt vmcnt(8)")
                s.stamp("ag2")
                wrG(2, 21); sigw(5)
                ldG(3)
                a_need(5)
                A("s_waitcnt vmcnt(0)")
                wrG(3, 20); sigw(6)
                a_need(6)
                wrW(3, 0, W[2]); wrW(3, 1, W[3]); sigw(7)
            else:
              pass
            if o.t12v == 0:
                a_need(2)
                a_wo10(1, 0, W[0]); a_wo10(1, 1, W[1])
            def dma_version():
                A(f"s_mov_b32 s{sSPIN}, 0")
                s.lab("A_poll")
                A("s_mov_b64 exec, 7")
                A(f"buffer_load_dword v6, v5, {srd(sWS)}, s48 offen sc1")
                A(f"s_add_u32 s{sSPIN}, s{sSPIN}, 1")
                A("s_waitcnt vmcnt(0)")
                A("v_cmp_ne_u32 vcc, 0, v6")
                A("s_mov_b64 exec, -1")
                A("s_mov_b32 s49, vcc_lo")
                a_sig(3 if o.t12v == 0 else 1)
                A("s_cmp_eq_u32 s49, 7")
                A("s_cbranch_scc1 A_polld ; @taken")
                A(f"s_cmp_lt_u32 s{sSPIN}, {o.spin}")
                A("s_cbranch_scc1 A_poll")
                s.lab("A_polld")
                s.stamp("apl")
                if o.t12v == 0:
                    a_g(1, P[0])
                    a_need(3)
                    a_g(2, W[2])
                    A("s_waitcnt vmcnt(8)")
                    s.stamp("ag1")
                    a_sig(4)
                    a_need(4)
                    a_wo10(2, 0, P[1]); a_wo10(2, 1, P[2])
                    A("s_waitcnt vmcnt(8)")
                    a_sig(5)
                else:
                    a_need(2)
                    a_g(1, P[0])
                    a_wo10(1, 0, W[0]); a_wo10(1, 1, W[1])
                    if o.t12v == 1:
                        A("s_waitcnt vmcnt(8)")
                        s.stamp("ag1")
                        a_sig(2)
                        a_need(3)
                        a_g(2, W[2])
                        A("s_waitcnt vmcnt(8)")
                    else:
                        a_need(3)
                        a_g(2, W[2])
                        A("s_waitcnt vmcnt(16)")
                        s.stamp("ag1")
                        a_sig(2)
                        A("s_waitcnt vmcnt(8)")
                    s.stamp("aw1")
                    a_sig(3)
                    a_need(4)
                    a_wo10(2, 0, P[1]); a_wo10(2, 1, P[2])
                    A("s_waitcnt vmcnt(8)")
                    s.stamp("ag2")
                    a_sig(5)
                a_need(5)
                a_g(3, P[0])
                A("s_waitcnt vmcnt(8)")
                a_sig(6)
                a_need(6)
                a_wo10(3, 0, W[2]); a_wo10(3, 1, W[3])
                A("s_waitcnt vmcnt(8)")
                a_sig(7)
                A("s_waitcnt vmcnt(0)")
                a_sig(8)
            if o.t12v not in (3, 4): dma_version()
            A("s_waitcnt lgkmcnt(0)")
        elif o.tail == 11:
            for seq in eval(o.t11b):
                ib_ = eval(o.t11b).index(seq)
                s.stamp(f"ab{ib_}")
                if seq[0] is not None: A(f"s_waitcnt vmcnt({seq[0]})")
                s.stamp(f"aw{ib_}_")
                A("s_barrier")
                for (pp_, hh_, sl_) in seq[1]: a_wo10(pp_, hh_, sl_)
        elif o.tail == 10:
            A(f"s_bitcmp1_b32 s{sHG}, 0")
            A("s_cbranch_scc1 A_t10o ; @hook=ODD")
            A("s_barrier")
            a_wo10(1, 0, W[0]); a_wo10(1, 1, W[1])
            a_wo10(3, 0, P[0], 1 << 20); a_wo10(3, 1, P[0] + 16384, 1 << 20)
            A("s_barrier")
            a_wo10(2, 0, W[2]); a_wo10(2, 1, W[3])
            A("s_waitcnt vmcnt(25)")
            A("s_barrier")
            a_wo10(3, 0, P[1]); a_wo10(3, 1, P[2])
            A("s_waitcnt vmcnt(16)")
            A("s_barrier")
            A("s_waitcnt vmcnt(0)")
            A("s_barrier")
            A("s_branch A_t10j")
            s.lab("A_t10o")
            A("s_waitcnt vmcnt(1)")
            A("s_barrier")
            a_wo10(1, 0, W[0]); a_wo10(1, 1, W[1])
            a_wo10(2, 0, P[0]); a_wo10(2, 1, P[0] + 16384)
            A("s_waitcnt vmcnt(8)")
            A("s_barrier")
            A("s_waitcnt vmcnt(0)")
            A("s_barrier")
            s.lab("A_t10j")
        elif o.tail in (8, 9):
            T8 = {(0,1): P[1] + 16384, (1,0): W[0], (1,1): W[1], (2,0): W[2], (2,1): W[3], (3,0): P[1], (3,1): P[2]}
            def a_wo8(p, half):
                for t_ in range(4):
                    if t_ == 0:
                        A(f"s_add_u32 m0, s{sW4K}, {T8[(p, half)]}")
                        A(f"s_add_u32 s72, s{aWP[p]}, s{aH[half]}")
                    A(f"s_add_u32 s71, s72, {131072 + t_*3072}")
                    A(f"buffer_load_dwordx4 v4, {srd(sWO)}, s71 offen offset:{t_*1024}{s.nto} lds")
            if o.t8a == 0: a_wo8(0, 1)
            A("s_barrier")
            if o.t8a == 1: a_wo8(0, 1)
            a_wo8(1, 0); a_wo8(1, 1)
            A("s_barrier")
            a_wo8(2, 0); a_wo8(2, 1)
            A("s_waitcnt vmcnt(16)")
            A("s_barrier")
            a_wo8(3, 0); a_wo8(3, 1)
            A("s_waitcnt vmcnt(0)")
            A("s_barrier")
        elif o.tail == 6:
            T6 = {(0,1): P[1] + 16384, (1,0): W[0], (1,1): W[1], (2,0): W[2], (2,1): W[3], (3,0): P[0], (3,1): P[0] + 16384}
            def a_wo(p, half):
                for t_ in range(4):
                    if t_ == 0:
                        A(f"s_add_u32 m0, s{sW4K}, {T6[(p, half)]}")
                        A(f"s_add_u32 s72, s{aWP[p]}, s{aH[half]}")
                    A(f"s_add_u32 s71, s72, {131072 + t_*3072}")
                    A(f"buffer_load_dwordx4 v4, {srd(sWO)}, s71 offen offset:{t_*1024}{s.nto} lds")
            a_wo(0, 1)
            A("s_barrier")
            a_wo(1, 0); a_wo(1, 1)
            if o.t6v == 1: a_wo(3, 0); a_wo(3, 1)
            A(f"s_waitcnt vmcnt({16 if o.t6v == 1 else 8})")
            s.stamp("aTa")
            A("s_barrier")
            A("s_mov_b64 exec, 7")
            A(f"buffer_load_dword v6, v5, {srd(sWS)}, s48 offen sc1")
            A("s_mov_b64 exec, -1")
            if o.t6v != 3: a_wo(2, 0); a_wo(2, 1)
            A(f"s_mov_b32 s{sSPIN}, 0")
            A(f"s_waitcnt vmcnt({8 if o.t6v != 3 else 0})")
            A("s_mov_b64 exec, 7")
            s.lab("A_poll")
            A("v_cmp_ne_u32 vcc, 0, v6")
            A("s_cmp_eq_u32 vcc_lo, 7")
            A("s_cbranch_scc1 A_polld ; @taken")
            A(f"buffer_load_dword v6, v5, {srd(sWS)}, s48 offen sc1")
            A(f"s_add_u32 s{sSPIN}, s{sSPIN}, 1")
            A("s_waitcnt vmcnt(0)")
            A(f"s_cmp_lt_u32 s{sSPIN}, {o.spin}")
            A("s_cbranch_scc1 A_poll")
            s.lab("A_polld")
            A("s_mov_b64 exec, -1")
            s.stamp("apl")
            A("s_barrier")
            if o.t6v == 1:
                A("s_waitcnt vmcnt(0)")
                A("s_barrier")
            else:
                if o.t6v == 3: a_wo(2, 0); a_wo(2, 1)
                a_wo(3, 0); a_wo(3, 1)
                A("s_waitcnt vmcnt(8)")
                A("s_barrier")
                A("s_waitcnt vmcnt(0)")
                A("s_barrier")
        else:
            for _ in range(o.abar): A("s_barrier")
        if o.wb:
            if o.wb == 1: A(f"s_cmp_eq_u32 s{sW}, 0")
            elif o.wb == 2:
                A(f"s_or_b32 s70, s{sW}, s{sHP}"); A("s_cmp_eq_u32 s70, 0")
            elif o.wb == 3:
                A(f"s_or_b32 s70, s{sW}, s{sHP}"); A(f"s_or_b32 s70, s70, s{sB}"); A("s_cmp_eq_u32 s70, 0")
            A("s_cbranch_scc0 A_nowb")
            for _ in range(o.wbn): A("s_barrier")
            A("buffer_wbl2 sc1")
            s.lab("A_nowb")
        if o.astamp >= 0:
            A(f"s_cmp_lg_u32 s{sW}, 0")
            A("s_cbranch_scc1 L_end")
            A("s_lshl_b32 s70, s2, 8")
            A(f"s_add_u32 s70, s70, {STAMP_BASE + 65536}")
            A("s_mov_b64 exec, 1")
            for i in range(7):
                A(f"v_mov_b32 v32, s{50+i}")
                A(f"buffer_store_dword v32, off, {srd(sWS)}, s70 offset:{4*i}")
                A("s_nop 1")
        if o.stamp and not o.dbgst and o.astamp < 0:
            A("s_waitcnt vmcnt(0) lgkmcnt(0)")
            A(f"s_cmp_lg_u32 s{sW}, {o.stw}")
            A("s_cbranch_scc1 L_end")
            n = len(o.stamps.split(","))
            A("s_lshl_b32 s70, s2, 8")
            A(f"s_add_u32 s70, s70, {STAMP_BASE + 65536}")
            A("s_mov_b64 exec, 1")
            for i in range(n):
                r = STAMP_REGS[i]
                A(f"v_mov_b32 v32, s{r}"); A(f"v_mov_b32 v33, s{r+1}")
                A(f"buffer_store_dwordx2 v[32:33], off, {srd(sWS)}, s70 offset:{8*i}")
                A("s_nop 1")
        A("s_endpgm")
        if o.xs:
            s.lab("A_wb")
            A("buffer_wbl2 sc1")
            A("s_waitcnt vmcnt(0)")
            A("s_branch A_wbr")
        s.lab("A_tope")
        A(f"s_cmp_eq_u32 s{sSTEP}, 0")
        A("s_cbranch_scc0 A_top8")
        A(f"s_waitcnt vmcnt({n0})")
        s.stamp("a0w")
        A("s_barrier")
        s.stamp("a0b")
        for i in range(8):
            A(f"ds_read_b128 {vr(Q_+4*i,4)}, v{QA} offset:{i*1024}")
        if o.s0q:
            cur = SB[0]
            def kr0(i): return f"ds_read_b128 {vr(WIN + 4*(i % 8), 4)}, v{KA + i % 8} offset:{(i // 8)*8192}"
            mx0 = lambda d, a, b, c: [f"v_max3_f32 v{d}, v{a}, v{b}, v{c}"]
            def maxT0(base, d0, d1):
                return [mx0(d0, base, base+1, base+2), mx0(d1, base+8, base+9, base+10),
                        mx0(d0, d0, base+3, base+4), mx0(d1, d1, base+11, base+12),
                        mx0(d0, d0, base+5, base+6), mx0(d1, d1, base+13, base+14),
                        mx0(d0, d0, base+7, base+15)]
            for i in range(7): A(kr0(i))
            A(f"v_add_u32 v{QA}, 16384, v{QA}")
            zer = [[f"v_mov_b64 {vr(O+2*i,2)}, 0"] for i in range(32)]
            for it in zer[:o.s0z]: s.emit(it)
            gaps = [[] for _ in range(16)]
            spread(gaps, zer[o.s0z:], 0, 9)
            spread(gaps, maxT0(cur, U, U+1), 10, 16)
            pend = list(range(7))
            for i in range(16):
                T_, k = divmod(i, 8)
                if i % 2 == 0:
                    need = max(j_ for j_ in (i, i + 1) if j_ in pend) if any(j_ in pend for j_ in (i, i + 1)) else None
                    if i == 6:
                        pass
                    if need is not None:
                        n_ = len(pend) - 1 - pend.index(need)
                        A(f"s_waitcnt lgkmcnt({n_})")
                        pend = pend[pend.index(need) + 1:]
                if i == 0:
                    A(kr0(7)); pend.append(7)
                srcC = vr(NM, 16) if k == 0 else vr(cur + 16*T_, 16)
                A(f"v_mfma_f32_32x32x16_bf16 {vr(cur+16*T_,16)}, {vr(WIN+4*(i%8),4)}, {vr(Q_+4*k,4)}, {srcC}")
                if i + 8 < 16:
                    A(kr0(i + 8)); pend.append(i + 8)
                s.emit(gaps[i])
            A(f"s_bitcmp1_b32 s{sPAT}, s{sSTEP}")
            A(f"s_cselect_b32 s70, s{sNEG}, s{sPOS}")
            for k in range(8): A(f"v_add_u32 v{KA+k}, s70, v{KA+k}")
            for D in range(4): A(f"v_add_u32 v{VA+D}, s70, v{VA+D}")
            for it in maxT0(cur + 16, U+2, U+3): s.emit(it)
            A(f"v_max3_f32 v{U}, v{U}, v{U+1}, v{U+2}")
            A(f"v_max_f32 v{U}, v{U}, v{U+3}")
            A(f"v_mov_b32 v{U+1}, v{U}")
            A(f"v_permlane32_swap_b32 v{U}, v{U+1}")
            A(f"v_max_f32 v{U}, v{U}, v{U+1}")
            for i in range(16):
                A(f"v_sub_f32 v{cur+i}, v{cur+i}, v{U}")
            for i in range(16):
                A(f"v_exp_f32 v{cur+i}, v{cur+i}")
                A(f"v_sub_f32 v{cur+16+i}, v{cur+16+i}, v{U}")
                A(f"v_sub_f32 v{NM+i}, v{NM+i}, v{U}")
            A(f"s_mov_b32 s{sSTEP}, 1")
            A("s_branch A_par1")
            s.lab("A_top8")
        else:
            A(f"v_add_u32 v{QA}, 16384, v{QA}")
            A("s_branch A_top8b")
            s.lab("A_top8")
        A("s_barrier")
        if o.xs in (1, 2): A(f"buffer_load_dword v252, off, {srd(sDBG)}, s{sGRP} sc1")
        elif o.xs:
            A("v_mbcnt_lo_u32_b32 v253, -1, 0")
            A("v_lshlrev_b32 v253, 7, v253")
            A(f"s_lshl_b32 s70, s{sGRP}, 7")
            A(f"s_add_u32 s70, s70, {FLAG_BASE + 64}")
            A("s_mov_b64 exec, 15")
            A(f"buffer_load_dword v252, v253, {srd(sWS)}, s70 offen sc1")
            A("s_mov_b64 exec, -1")
        for i in range(8):
            A(f"ds_read_b128 {vr(Q_+4*i,4)}, v{QA} offset:{i*1024}")
        s.lab("A_top8b")
        A(f"s_mov_b32 s{sTHR}, 0xff800000")
        A("s_waitcnt lgkmcnt(0)")
        A("s_branch A_toper")
        s.lab("A_topo")
        A(f"s_cmp_eq_u32 s{sSTEP}, 1")
        A("s_cbranch_scc0 A_top7")
        s.stamp("a1p")
        A(f"s_waitcnt vmcnt({n1})")
        s.stamp("a1w")
        A("s_barrier")
        if o.xs in (1, 2):
            A(f"s_cmp_lg_u32 s{sW}, 0")
            A("s_cbranch_scc1 A_topor")
            s.emit(s.xcc_byte(70))
            A("v_mov_b32 v252, s70")
            A("s_mov_b64 exec, 1")
            A(f"buffer_store_byte v252, off, {srd(sDBG)}, s{sMYB} sc1")
            A("s_mov_b64 exec, -1")
        A("s_branch A_topor")
        s.lab("A_top7")
        A(f"s_or_b32 s{sPEND}, s{sPEND}, 4")
        A("s_barrier")
        A("s_branch A_topor")
        for par in range(2):
            tagp = "e" if par == 0 else "o"; cur = SB[par]
            s.lab(f"A_resc{tagp}")
            A(f"v_mov_b32 v{U+1}, v{U}")
            A(f"v_permlane32_swap_b32 v{U}, v{U+1}")
            A(f"v_max_f32 v{U}, v{U}, v{U+1}")
            if par == 0:
                A(f"s_and_b32 s71, s{sSTEP}, 7")
                A("s_cmp_eq_u32 s71, 0")
                A("s_cbranch_scc1 A_hsw")
            A(f"v_max_f32 v{U}, 0, v{U}")
            A(f"v_sub_f32 v{U+1}, 0, v{U}")
            A(f"v_exp_f32 v{AL}, v{U+1}")
            A(f"s_or_b32 s{sPEND}, s{sPEND}, 1")
            A(f"v_mul_f32 v{LS}, v{AL}, v{LS}")
            A(f"v_mul_f32 v{LS+1}, v{AL}, v{LS+1}")
            if par == 0: s.lab("A_hswj")
            for i in range(32): A(f"v_sub_f32 v{cur+i}, v{cur+i}, v{U}")
            for i in range(16): A(f"v_sub_f32 v{NM+i}, v{NM+i}, v{U}")
            A(f"s_branch A_resc{tagp}r")
        s.lab("A_hsw")
        s.emit(rl_lines(RL))
        A(f"v_mov_b64 {vr(LS,2)}, 0")
        A(f"s_mov_b32 s{sTHR}, {hex(fbits(THR))}")
        A(f"s_lshr_b32 s{sPEND}, s{sSTEP}, 3")
        A(f"s_add_u32 s{sPEND}, s{sPEND}, 2")
        A(f"s_lshl_b32 s{sPEND}, s{sPEND}, 3")
        A("s_branch A_hswj")
        for par in range(2):
            tagp = "e" if par == 0 else "o"
            s.lab(f"A_pend{tagp}")
            if par == 0:
                A(f"s_cmp_ge_u32 s{sPEND}, 16")
                A("s_cbranch_scc1 A_pz")
            A(f"s_bitcmp1_b32 s{sPEND}, 0")
            A(f"s_cbranch_scc0 A_pn{tagp}")
            for i in range(32):
                A(f"v_pk_mul_f32 {vr(O+2*i,2)}, {vr(O+2*i,2)}, {vr(AL,2)} op_sel_hi:[1,0]")
            s.lab(f"A_pn{tagp}")
            if par == 1:
                A(f"s_bitcmp1_b32 s{sPEND}, 2")
                A(f"s_cbranch_scc0 A_pm{tagp}")
                for i in range(8): A(f"v_mov_b64 {vr(NM+2*i,2)}, 0")
                s.lab(f"A_pm{tagp}")
            A(f"s_mov_b32 s{sPEND}, 0")
            A(f"s_branch A_pend{tagp}r")
        s.lab("A_pz")
        A(f"s_cmp_eq_u32 s{sPEND}, 24")
        A("s_cbranch_scc0 A_pz2")
        A(f"v_mov_b32 v{AL}, v{RL}")
        for D in range(4):
            s.emit(fin_D(D, WIN))
            for h in range(2):
                A(f"ds_write_b128 v{QA}, {vr(WIN+8*D+4*h,4)} offset:{(2*D+h)*1024}")
        A("s_waitcnt lgkmcnt(0)")
        s.lab("A_pz2")
        for i in range(32): A(f"v_mov_b64 {vr(O+2*i,2)}, 0")
        A(f"s_mov_b32 s{sPEND}, 0")
        A(f"s_branch A_pender")

    def waveB(s):
        A = s.A; o = s.opt
        vV, vW, vK, WA, vWO, vO, vQW, vWB = 2, 3, 4, 8, 12, 13, 14, 15
        Y, vR, vOL, VP = 16, 17, 18, 20
        XA = 24
        WIN, X, ACC = 32, 64, 192
        q = Q(63)
        nt = " nt" if o.nt else ""
        PX = [W[0], W[2], P[2]] if o.r3 else [P[1], P[2], W[0], W[2]]
        NR = len(PX)
        s.lab("L_B")
        s.stamp("b0")
        for j_ in eval(o.kpb):
            if j_ == eval(o.kpb)[0]: A(f"v_mul_u32_u24 v28, {o.kpbs}, v1")
            A(f"s_add_u32 s70, s{sKVW}, {j_ * 16384}")
            A(f"buffer_load_dword v0, v28, {srd(sK)}, s70 offen{o.kp0nt} ; @dummy"); q.issue("PF")
            if j_ >= 1:
                A(f"s_add_u32 s70, s{sKVW}, {(j_ - 1) * 16384}")
                A(f"buffer_load_dword v0, v28, {srd(sV)}, s70 offen{o.kp0nt} ; @dummy"); q.issue("PF")
        capL = s.L
        if o.pro2: s.L = []
        def mark(n):
            if o.pro2: s.L.append("@@" + n)
        A(f"v_mov_b32 v{vW}, v2")
        s.late_scalars()
        mark("clr0")
        if o.xs in (1, 2): pass
        elif o.lead:
            A(f"s_or_b32 s70, s{sW}, s{sHG}")
            A(f"s_or_b32 s70, s70, s{sHP}")
            A("s_cmp_lg_u32 s70, 0")
            A("s_cbranch_scc1 B_nclr")
            A("v_mov_b64 v[28:29], 0")
            A("v_mov_b64 v[30:31], 0")
            A("v_lshlrev_b32 v23, 4, v1")
            A(f"s_lshl_b32 s70, s{sGRP}, 7")
            A(f"s_add_u32 s70, s70, {FLAG_BASE}")
            A(f"buffer_store_dwordx4 v[28:31], v23, {srd(sWS)}, s70 offen sc1")
            A(f"buffer_store_dwordx4 v[28:31], v23, {srd(sWS)}, s70 offen offset:1024 sc1")
            A("s_nop 1")
        else:
            A(f"s_cmp_lg_u32 s{sW}, 0")
            A("s_cbranch_scc1 B_nclr")
            A("v_mov_b32 v28, 0")
            A("v_lshlrev_b32 v29, 2, v1")
            A(f"s_lshl_b32 s70, s{sMYB}, 7")
            A(f"s_add_u32 s70, s70, {FLAG_BASE}")
            A("s_mov_b64 exec, 0xfff")
            A(f"buffer_store_dword v28, v29, {srd(sWS)}, s70 offen sc1")
            A("s_mov_b64 exec, -1")
        if o.xs not in (1, 2): s.lab("B_nclr")
        mark("clr1")
        s.kv_voffs(vK, vV)
        A("v_lshlrev_b32 v23, 10, v19")
        A(f"v_add_u32 v{vWO}, v23, v21")
        mark("early0")
        A("v_lshrrev_b32 v22, 2, v20")
        A("v_and_b32 v23, 1, v19")
        A("v_lshlrev_b32 v28, 13, v17")
        A("v_lshlrev_b32 v29, 8, v22")
        A("v_add_u32 v28, v28, v29")
        A("v_lshlrev_b32 v29, 5, v23")
        A("v_add_u32 v28, v28, v29")
        A("v_and_b32 v29, 1, v18")
        A("v_lshlrev_b32 v29, 4, v29")
        A("v_add_u32 v28, v28, v29")
        A("v_lshrrev_b32 v29, 1, v18")
        A("v_lshlrev_b32 v29, 3, v29")
        A(f"v_add_u32 v{vWB}, v28, v29")
        A(f"v_add_u32 v28, {PX[0]}, v{vWB}")
        for D in range(4):
            A(f"v_xor_b32 v29, {D}, v22")
            A(f"v_lshlrev_b32 v29, 6, v29")
            A(f"v_add_u32 v{WA+D}, v28, v29")
        A("v_and_b32 v28, 31, v1")
        A("v_lshrrev_b32 v29, 1, v28")
        A("v_and_b32 v29, 7, v29")
        A("v_lshlrev_b32 v30, 2, v17")
        A("v_xor_b32 v29, v29, v30")
        A("v_lshlrev_b32 v28, 7, v28")
        A(f"s_add_u32 s70, s{sW4K}, {PX[0]}")
        A("v_add_u32 v28, s70, v28")
        for j in range(4):
            A(f"v_xor_b32 v30, {j}, v29")
            A(f"v_lshlrev_b32 v30, 4, v30")
            A(f"v_add_u32 v{XA+j}, v28, v30")
        mark("early1")
        if o.pro2: A("v_lshrrev_b32 v22, 2, v20")
        A(f"v_mul_u32_u24 v{vO}, 448, v17")
        A("v_and_b32 v29, 31, v1")
        A(f"v_add_u32 v{vO}, v{vO}, v29")
        A(f"s_lshl_b32 s70, s{sW}, 5")
        A(f"v_add_u32 v{vO}, s70, v{vO}")
        A(f"v_lshlrev_b32 v{vO}, 4, v{vO}")
        A(f"s_lshl_b32 s70, s{sW}, 13")
        A(f"s_add_u32 s70, s70, {W[0]}")
        A(f"v_lshlrev_b32 v{vQW}, 4, v1")
        A(f"v_add_u32 v{vQW}, s70, v{vQW}")
        A(f"v_lshlrev_b32 v30, 11, v17")
        A(f"v_lshlrev_b32 v29, 4, v29")
        A(f"v_add_u32 v30, v30, v29")
        A(f"s_add_u32 s70, s70, 16384")
        A(f"v_add_u32 v31, s70, v30")
        A(f"v_mov_b32 v{vOL}, v31")
        A(f"v_mov_b32 v{vR}, v22")
        A(f"v_add_u32 v{Y}, 3584, v{vO}")
        A(f"s_lshl_b32 s70, s{sHG}, 20")
        A(f"s_lshl_b32 s71, s{sW}, 14")
        A("s_add_u32 s70, s70, s71")
        A(f"s_lshl_b32 s71, s{sHP}, 8")
        A(f"s_add_u32 s{sWOB}, s70, s71")
        A(f"s_lshl_b32 s70, s{sBR}, 3")
        A(f"s_add_u32 s70, s70, s{sB}")
        A(f"s_lshl_b32 s70, s70, 5")
        A(f"s_lshl_b32 s71, s{sHG}, 3")
        A(f"s_add_u32 s70, s70, s71")
        A(f"s_mul_i32 s73, s70, {UNIT}")
        sH = (77, 79); sOH = (76, 3)
        if o.wrot:
            A(f"s_mul_i32 s76, s{sB}, 11")
            A("s_lshr_b32 s76, s76, 5")
            A("s_mul_i32 s76, s76, 3")
            A(f"s_sub_u32 s76, s{sB}, s76")
            if not (o.wrot & 1): A("s_mov_b32 s76, 0")
        for p in range(4):
            if o.wrot and p > 0:
                A(f"s_add_u32 s70, s76, {p - 1}")
                A("s_sub_u32 s71, s70, 3")
                A("s_cmp_ge_u32 s70, 3")
                A("s_cselect_b32 s70, s71, s70")
                A(f"s_add_u32 s70, s70, s{sHP}")
                A("s_add_u32 s70, s70, 1")
            else:
                A(f"s_add_u32 s70, s{sHP}, {p}")
            A("s_and_b32 s70, s70, 3")
            A(f"s_lshl_b32 s71, s70, 18")
            A(f"s_add_u32 s{sWP+p}, s{sWOB}, s71")
            A(f"s_mul_i32 s71, s70, {2*UNIT}")
            A(f"s_add_u32 s{sOP+p}, s73, s71")
            if o.tail == 10 and p == 3:
                A(f"s_add_u32 s52, s70, s{sGRP}")
                A("s_add_u32 s52, s52, 4")
                A("s_lshl_b32 s52, s52, 7")
        vOL2 = 19
        if o.wrot:
            A(f"s_and_b32 s70, s{sB}, 1")
            if not (o.wrot & 2): A("s_mov_b32 s70, 0")
            A(f"s_lshl_b32 s{sH[0]}, s70, 16")
            A(f"s_sub_u32 s{sH[1]}, 65536, s{sH[0]}")
            A(f"s_mul_i32 s{sOH[0]}, s70, 14336")
            A(f"s_sub_u32 s{sOH[1]}, 14336, s{sOH[0]}")
            A("s_lshl_b32 s70, s70, 12")
            A("s_sub_u32 s71, 4096, s70")
            A(f"v_add_u32 v{vOL2}, s71, v{vOL}")
            A(f"v_add_u32 v{vOL}, s70, v{vOL}")
        A(f"s_mov_b32 s74, {hex(fbits(CSCALE))}")
        sCS = 74
        sPF = 75

        def wait_vm(tags):
            n = q.wait(tags)
            if n is not None: A(f"s_waitcnt vmcnt({n})")
        def mat(groups):
            out = []
            for tag, ins in groups:
                q.issue(tag); out.append(ins)
            return out
        def dma_wo(rr, p, half, slot, xoff=None):
            g = []
            tagp, tagh = p, half
            if (o.abl & 64) and rr == 0 and p >= 1: p, half = 1, 1
            if (o.abl & 128) and rr == 0 and p >= 1: p, half = 0, 1
            for t in range(4):
                pre = [f"s_add_u32 m0, s{sW4K}, {slot}"] if (t == 0 or o.ilv) else []
                if o.wrot:
                    if t == 0: pre.append(f"s_add_u32 s72, s{sWP+p}, s{sH[half]}")
                    if t == 0 and o.tail == 10 and rr == 0 and p == 3 and xoff is None: pre.append("s_add_u32 s72, s72, s53")
                    if t == 0 and xoff: pre.append(f"s_add_u32 s72, s72, {xoff}")
                    addr = f"s_add_u32 s71, s72, {rr*131072 + t*3072}"
                else:
                    addr = f"s_add_u32 s71, s{sWP+p}, {(rr*128 + 64*half)*1024 + t*3072}"
                g.append((f"O{rr}{tagp}{tagh}", pre + [addr,
                          f"buffer_load_dwordx4 v{vWO}, {srd(sWO)}, s71 offen offset:{t*1024}{' nt' if ((rr, p, half) in eval(o.ntoc)) else s.nto} lds"]))
            return g
        def of_mem(rr, p, half, tag, store=False, clean=False, blk=None, xoff=0):
            g = []
            xb = 2*p + half if blk is None else blk + half
            for jj in range(2):
                va = vO if jj == 0 else Y
                if o.wrot:
                    ins = [f"s_add_u32 s72, s{sOP+p}, s{sOH[half]}"] + ([f"s_add_u32 s72, s72, {rr*UNIT + xoff}"] if (rr or xoff) else []) + [f"s_mov_b64 exec, s[{sEXLO}:{sEXHI}]"]
                else:
                    ins = [f"s_add_u32 s72, s{sOP+p}, {rr*UNIT + half*8*1792}", f"s_mov_b64 exec, s[{sEXLO}:{sEXHI}]"]
                for j in (2*jj, 2*jj+1):
                    op = "buffer_store_dwordx4" if store else "buffer_load_dwordx4"
                    ins.append(f"{op} {vr(X+16*xb+4*j,4)}, v{va}, {srd(sWS)}, s72 offen offset:{(j&1)*1792}{(' sc1' if clean else s.ost0) if store else [' sc1', '', ' sc0'][o.fgl]}{s.nths if (store and not clean) else s.nthl if not store else ''}")
                ins.append("s_mov_b64 exec, -1")
                if o.nox and not store: ins = [l for l in ins if not l.startswith("s_mov_b64 exec")]
                g.append(((tag, tag), ins))
            return g
        def mat2(groups):
            out = []
            for tag, ins in groups:
                if isinstance(tag, tuple):
                    for t_ in tag: q.issue(t_)
                else: q.issue(tag)
                out.append(ins)
            return out

        s.wbase = PX[0]; s.xbase = PX[0]
        def rebase_lines(regs, cur, nb):
            d = (nb - cur) & 0xffffffff
            return [f"v_add_u32 v{r}, {hex(d)}, v{r}" for r in regs]
        def base_for(slot, cur):
            if 0 <= slot - cur <= 49152: return cur
            for b in (P[1], W[0], P[0], P[2]):
                if 0 <= slot - b <= 49152: return b
            raise ValueError
        LA = o.la
        def frags_c(lst):
            fr = []
            for ci, (slot, xb, first) in enumerate(lst):
                fr += [(slot, xb, first and j == 0, j, D, ci) for j in range(4) for D in range(4)]
            return fr
        def stream(fr, fillers=None, prologue=False, gapfill=None, LA=LA, prerd=None, premf=None):
            n = len(fr)
            lq = Q(15)
            def xrd(ci, j):
                slot = PX[ci % NR]; r = []
                nb = base_for(slot, s.xbase)
                if nb != s.xbase:
                    r += rebase_lines(range(XA, XA+4), s.xbase, nb); s.xbase = nb
                lq.issue(f"X{ci}_{j}")
                r.append(f"ds_read_b128 {vr(X+16*ci+4*j,4)}, v{XA+j} offset:{slot - s.xbase}")
                return r
            def rd(f):
                slot, xb, zero, j, D, ci = fr[f]; r = []
                if prerd and f in prerd: r += prerd[f]
                if prologue and j == 0 and D == 0 and ci > 0:
                    r += s.stamp_lines(f"x{ci}")
                    r.append("s_barrier")
                    r += s.stamp_lines(f"p{ci}")
                nb = base_for(slot, s.wbase)
                if nb != s.wbase:
                    r += rebase_lines(range(WA, WA+4), s.wbase, nb); s.wbase = nb
                if prologue and D == 0: r += xrd(ci, j)
                for a in range(2):
                    lq.issue(f)
                    r.append(f"ds_read_b64_tr_b16 {vr(WIN+4*(f%8)+2*a,2)}, v{WA+D} offset:{slot-s.wbase + j*2048 + a*1024}")
                return r
            gaps = gapfill if gapfill is not None else [[] for _ in range(n)]
            if fillers: spread(gaps, fillers, 0, n)
            for f in range(min(LA, n)): s.emit(rd(f))
            issued = min(LA, n)
            for f in range(n):
                slot, xb, zero, j, D, ci = fr[f]
                k = lq.wait([f, f + 1] if (f % 2 == 0 and f + 1 < issued) else [f])
                if k is not None: A(f"s_waitcnt lgkmcnt({k})")
                srcC = "0" if zero else vr(ACC+16*D, 16)
                if premf and f in premf: s.emit(premf[f])
                A(f"v_mfma_f32_32x32x16_bf16 {vr(ACC+16*D,16)}, {vr(WIN+4*(f%8),4)}, {vr(X+16*xb+4*j,4)}, {srcC}")
                if issued < n:
                    s.emit(rd(issued)); issued += 1
                s.emit(gaps[f])
        def write_q(base_off):
            for D in range(4):
                for i in range(16):
                    A(f"v_mul_f32 v{ACC+16*D+i}, s{sCS}, v{ACC+16*D+i}")
                for h in range(2):
                    f = 2*D + h
                    for i in range(4):
                        A(f"v_cvt_pk_bf16_f32 v{WIN+4*f+i}, v{ACC+16*D+8*h+2*i}, v{ACC+16*D+8*h+2*i+1}")
                    A(f"ds_write_b128 v{vQW}, {vr(WIN+4*f,4)} offset:{base_off + f*1024}")
            A("s_waitcnt lgkmcnt(0)")
        def pair(j):
            a = s.dma_k(j, vK, nt, f"KV{j}") if j <= 15 else []
            b = s.dma_v(j, vV, nt, f"KV{j}") if j >= 1 else []
            return a + b
        def own_frags():
            for half in range(2):
                for j in range(4):
                    if o.wrot: A(f"ds_read_b128 {vr(X+16*half+4*j,4)}, v{(vOL, vOL2)[half]} offset:{j*512}")
                    else: A(f"ds_read_b128 {vr(X+16*half+4*j,4)}, v{vOL} offset:{half*4096 + j*512}")
            A("s_waitcnt lgkmcnt(0)")

        A(f"v_add_u32 v21, s{sHP}, v1")
        A("v_add_u32 v21, 1, v21")
        A("v_and_b32 v21, 3, v21")
        A(f"v_add_u32 v21, s{sGRP}, v21")
        A("v_lshlrev_b32 v21, 7, v21")
        if o.tail == 10:
            A("v_writelane_b32 v21, s52, 3")
            A(f"s_bitcmp1_b32 s{sHG}, 0")
            A("s_cselect_b32 s52, 7, 15")
            A("s_cselect_b32 s53, 131072, 0")
        A(f"v_add_u32 v22, s{sHG}, v1")
        A("v_add_u32 v22, 1, v22")
        A("v_and_b32 v22, 3, v22")
        A("v_lshlrev_b32 v22, 2, v22")
        A(f"s_and_b32 s71, s{sGRP}, {hex(0xfffffff0)}")
        A(f"s_add_u32 s71, s71, s{sHP}")
        A("v_add_u32 v22, s71, v22")
        A("v_lshlrev_b32 v22, 7, v22")
        A("v_lshlrev_b32 v23, 4, v1")
        A(f"s_lshl_b32 s{sPF}, s{sHG}, 20")
        A("s_lshr_b32 s70, s2, 3")
        A("s_lshl_b32 s70, s70, 15")
        A(f"s_add_u32 s{sPF}, s{sPF}, s70")
        A(f"s_lshl_b32 s70, s{sW}, 13")
        A(f"s_add_u32 s{sPF}, s{sPF}, s70")
        def wq_pieces(D, base_off):
            L = [f"v_pk_mul_f32 {vr(ACC+16*D+2*i,2)}, {vr(ACC+16*D+2*i,2)}, s[{sCS}:{sCS+1}] op_sel_hi:[1,0]" for i in range(8)]
            for h in range(2):
                L += [f"v_cvt_pk_bf16_f32 v{ACC+16*D+4*h+i}, v{ACC+16*D+8*h+2*i}, v{ACC+16*D+8*h+2*i+1}" for i in range(4)]
                L.append(f"ds_write_b128 v{vQW}, {vr(ACC+16*D+4*h,4)} offset:{base_off + (2*D+h)*1024}")
            return L
        def douter(fr):
            last = fr[-16:]
            return fr[:-16] + sorted(last, key=lambda f: (f[4], f[3]))
        def dq_gaps(gaps, base_off):
            n = len(gaps); b = n - 16
            for D in range(3):
                spread(gaps, [[x] for x in wq_pieces(D, base_off)], b + 4*D + 5, min(b + 4*D + 9, n))
        def dq_end(base_off):
            s.emit(wq_pieces(3, base_off))
            A("s_waitcnt lgkmcnt(0)")
        fr0 = frags_c([(PX[c % NR] + 16384, c, c == 0) for c in range(8)])
        gaps0 = [[] for _ in fr0]
        if o.r3 == 2:
            for c in range(1, 7): gaps0[16*c - 1].append("s_barrier")
        if o.pro2:
            setup = s.L; s.L = capL
            sec = {"pre": [], "clr": [], "mid": [], "early": [], "post": []}
            cur = "pre"
            nxt = {"@@clr0": "clr", "@@clr1": "mid", "@@early0": "early", "@@early1": "post"}
            for l in setup:
                if l in nxt: cur = nxt[l]
                else: sec[cur].append(l if l.endswith(":") else l.strip())
            s.emit(sec["early"])
            fill = [[l] for l in sec["pre"]] + [sec["clr"]] + [[l] for l in sec["mid"] + sec["post"]]
            if o.pro2 == 1: spread(gaps0, fill, 2, 108)
            else:
                for g_ in fill: s.emit(g_)
            s.stamp("bs")
        else:
            s.stamp("bs")
            A("s_waitcnt vmcnt(0)")
        s.stamp("x0")
        A("s_barrier")
        s.stamp("p0")
        if o.dq:
            fr0 = douter(fr0); dq_gaps(gaps0, 0)
        bkv = eval(o.bkv)
        if o.r3 and 2 not in bkv and o.p2at > 7: bkv[2] = 96 + o.p2g
        for key, pos in sorted(bkv.items(), key=lambda z: z[1]):
            if key == 'q': g_ = s.dma_wq(0, P[0] + 16384, vW, "Q0", 256, 72)
            else: g_ = (s.dma_k(key, vK, nt, f"KV{key}") + (s.dma_v(key, vV, nt, f"KV{key}") if key else []))
            assert key != 2 or pos >= 96
            spread(gaps0, mat(g_), pos, pos + len(g_))
        stream(fr0, None, prologue=True, gapfill=gaps0, LA=(min(LA, 5) if o.dq else LA))
        if o.dq: dq_end(0)
        else: write_q(0)
        s.stamp("pro")
        def poll_check(vsrc, shift):
            A(f"v_readfirstlane_b32 s70, v{vsrc} ; @val=POLL")
            if shift == 0:
                A("s_lshr_b32 s71, s70, 1"); A("s_or_b32 s70, s70, s71")
            else:
                A(f"s_lshr_b32 s70, s70, {shift}")
            A("s_and_b32 s70, s70, 0x01010101")
            A("s_cmp_eq_u32 s70, 0x01010101")
        def mid_poll(slow=False):
            if o.lead:
                return [f"s_and_b32 s71, s{sGRP}, {hex(0xfffffff0)}",
                        f"buffer_load_dword v24, off, {srd(sDBG)}, s71{' sc1' if (slow or o.lead == 2) else ''}"]
            return [f"s_and_b32 s71, s{sGRP}, {hex(0xfffffff0)}",
                    f"buffer_load_dwordx4 v[24:27], off, {srd(sDBG)}, s71 sc1"] + \
                   ([f"buffer_load_dword v29, off, {srd(sDBG)}, s{sGRP} sc1"] if o.xs in (1, 2) else [])
        def mid_check():
            if o.lead:
                return [f"v_readfirstlane_b32 s70, v24 ; @val=POLL",
                        "s_and_b32 s70, s70, 0x01010101", "s_cmp_eq_u32 s70, 0x01010101"]
            return [f"v_and_b32 v24, v24, v25", f"v_and_b32 v26, v26, v27",
                    f"v_and_b32 v24, v24, v26",
                    "s_nop 0",
                    f"v_readfirstlane_b32 s70, v24 ; @val=POLL",
                    "s_and_b32 s70, s70, 0x01010101", "s_cmp_eq_u32 s70, 0x01010101"]
        sNC = 69
        sTG = [82, 84, 78, 80]
        def nonce_addr(d):
            return [f"s_lshr_b32 s{d}, s{sGRP}, 4", f"s_lshl_b32 s{d}, s{d}, 2", f"s_add_u32 s{d}, s{d}, s{sHP}", f"s_lshl_b32 s{d}, s{d}, 7",
                    f"s_lshl_b32 s71, s{sW}, 2", f"s_add_u32 s{d}, s{d}, s71", f"s_add_u32 s{d}, s{d}, {NONCE_BASE}"]
        def wave_poll(vaddr, nm, drain=True, mask=None):
            A(f"s_mov_b32 s{sSPIN}, 0")
            if mask: s.emit([f"s_mov_b32 exec_lo, s{mask}", "s_mov_b32 exec_hi, 0"])
            else: A("s_mov_b64 exec, 7")
            s.lab(f"B_{nm}")
            A(f"buffer_load_dword v{VP}, v{vaddr}, {srd(sWS)}, s72 offen sc1")
            A("s_waitcnt vmcnt(0)")
            A(f"v_cmp_ne_u32 vcc, 0, v{VP}")
            A(f"s_cmp_eq_u32 vcc_lo, {('s%d' % mask) if mask else 7}")
            A(f"s_cbranch_scc1 B_{nm}d ; @taken")
            A(f"s_add_u32 s{sSPIN}, s{sSPIN}, 1")
            A(f"s_cmp_lt_u32 s{sSPIN}, {o.spin}")
            A(f"s_cbranch_scc1 B_{nm}")
            s.lab(f"B_{nm}d")
            A("s_mov_b64 exec, -1")
            if drain: q.drain()
        wq_slot = lambda c: (P[0] + 16384) if c == 0 else W[(c + 1) % 4]
        wq_issue = {0: [1, 2], 1: [3], 2: [4], 3: [5], 4: [6], 5: [7]}
        wo0_slot = {(0,0): W[3], (0,1): W[0], (1,0): W[0], (1,1): W[1], (2,0): W[2], (2,1): W[3], (3,0): P[1], (3,1): P[2]}
        wo0_issue = eval(o.w0i)
        wo0_use = eval(o.w0u)
        ords = eval(o.ords)
        of0_issue = eval(o.f0)
        pf_issue = {1: [0, 1], 2: [2, 3], 3: [4], 4: [5], 5: [6], 6: [7]}
        wo1_slot = {(0,0): P[2] + 16384, (0,1): P[1] + 16384, (1,0): W[0], (1,1): W[1], (2,0): W[2], (2,1): W[3], (3,0): P[1], (3,1): P[2]}
        if o.tail == 11: wo1_slot.update(eval(o.w1s))
        wo1_issue = eval(o.w1i)
        FL0AT = o.fl0at if o.fl0at else o.s0at + 1
        PO0 = o.po0
        def flag_check(nm, mask=None, sfx=""):
            if mask: s.emit([f"s_mov_b32 exec_lo, s{mask}", "s_mov_b32 exec_hi, 0"])
            else: A("s_mov_b64 exec, 7")
            A(f"v_cmp_ne_u32 vcc, 0, v{VP}")
            A("s_mov_b64 exec, -1")
            A(f"s_cmp_eq_u32 vcc_lo, {('s%d' % mask) if mask else 7}")
            A(f"s_cbranch_scc0 B_slow{nm}{sfx} ; @nottaken")
            s.lab(f"B_slow{nm}{sfx}r")
        for st in range(17):
            s.stamp(f"c{st}")
            tags = [f"KV{st}"]
            if 0 <= st <= 7: tags.append(f"Q{st}")
            for (p, h) in wo0_use.get(st, []):
                tags += [f"O0{p}{h}", f"F{p}"]
            if st == FL0AT: tags.append("S0")
            if st == PO0 + o.pod: tags.append("POLL")
            if st == o.mp + o.mpd: tags.append("POLL0")
            if st == 9 and o.xs >= 3: tags.append("XQ")
            if st == 8: tags.append("PF")
            wait_vm(tags)
            s.stamp(f"w{st}")
            A("s_barrier")
            s.stamp(f"s{st}")
            if st in eval(o.prioB): A(f"s_setprio {eval(o.prioB)[st]}")
            if st == 8:
                for d in range(4):
                    A(f"s_add_u32 s70, s{sHG}, {1 + d}")
                    A("s_and_b32 s70, s70, 3")
                    A(f"v_xor_b32 v29, s70, v{vR}")
                    A("v_lshlrev_b32 v29, 6, v29")
                    A(f"v_add_u32 v29, v29, v{vWB}")
                    A(f"v_add_u32 v{WA+d}, {s.wbase}, v29")
            pre_groups = []
            if st == 9:
                own_frags()
            g_s = []
            s0sp = eval(o.s0sp) if o.s0sp else {o.s0at: [0, 1, 2, 3]}
            assert max(s0sp) == o.s0at
            if st in s0sp:
                g_s = of_mem(0, 0, 0, "S0", store=True) + of_mem(0, 0, 1, "S0", store=True)
                g_s = [g_s[i] for i in s0sp[st]]
                if "s" not in ords.get(st, o.order): pre_groups = g_s
            if st == 2 and not (o.abl & 16) and o.xs not in (1, 2):
                if o.lead:
                    A(f"s_or_b32 s70, s{sW}, s{sHG}")
                    A(f"s_or_b32 s70, s70, s{sHP}")
                    A("s_cmp_lg_u32 s70, 0")
                    A(f"s_cbranch_scc1 B_nf{st}")
                    A("v_mov_b32 v28, 0x01010101")
                    A("s_mov_b64 exec, 1")
                    A(f"buffer_store_dword v28, off, {srd(sDBG)}, s{sGRP} sc1")
                    A("s_mov_b64 exec, -1")
                else:
                    A(f"s_cmp_lg_u32 s{sW}, 0")
                    A(f"s_cbranch_scc1 B_nf{st}")
                    s.flag_store(1, 28)
                s.lab(f"B_nf{st}")
            if st == o.mp and not (o.abl & 32):
                s.emit(mid_poll()); q.issue("POLL0")
                if o.xs in (1, 2): q.issue("POLL0")
                if o.tg:
                    s.emit(nonce_addr(72))
                    A(f"buffer_load_dword v25, off, {srd(sWS)}, s72 sc1"); q.issue("POLL0")
            if st == 8 and o.xs >= 3:
                A(f"s_mov_b32 s72, {FLAG_BASE + 64}")
                A("s_mov_b64 exec, 15")
                A(f"buffer_load_dword v29, v21, {srd(sWS)}, s72 offen sc1"); q.issue("XQ")
                A("s_mov_b64 exec, -1")
            if st == 9 and o.xs >= 3:
                s.emit(s.xcc_byte(71))
                A("s_mov_b64 exec, 15")
                A("v_cmp_eq_u32 vcc, s71, v29")
                A("s_mov_b64 exec, -1")
                A("s_cmp_eq_u32 vcc_lo, 15")
                A(f"s_cselect_b32 s{sOBASE}, 1, 0")
            if st == o.mp + o.mpd and not (o.abl & 32):
                s.emit(mid_check())
                A("s_cbranch_scc0 B_slow0 ; @nottaken")
                s.lab("B_slow0r")
                if o.tg:
                    s.emit([f"v_readfirstlane_b32 s{sNC}, v25", f"s_add_u32 s{sNC}, s{sNC}, 1", f"s_mul_i32 s70, s{sNC}, 0x9E3779B1",
                            f"s_and_b32 s{sTG[0]}, s70, 0xff", f"s_bfe_u32 s{sTG[1]}, s70, 0x80008", f"s_bfe_u32 s{sTG[2]}, s70, 0x80010",
                            f"s_lshr_b32 s{sTG[3]}, s70, 24",
                            f"s_or_b32 s{sTG[1]}, s{sTG[1]}, 1", f"s_xor_b32 s{sTG[1]}, s{sTG[1]}, s{sTG[0]}"])
                if o.xs >= 3:
                    A(f"s_cmp_lg_u32 s{sW}, 0")
                    A("s_cbranch_scc1 B_nx")
                    s.emit(s.xcc_byte(71))
                    A(f"s_lshl_b32 s70, s{sMYB}, 7")
                    A(f"s_add_u32 s70, s70, {FLAG_BASE + 64}")
                    A("v_mov_b32 v28, s71")
                    A("s_mov_b64 exec, 1")
                    A(f"buffer_store_dword v28, off, {srd(sWS)}, s70 sc1")
                    A("s_mov_b64 exec, -1")
                    s.lab("B_nx")
                if o.xs in (1, 2):
                    s.emit(["v_readfirstlane_b32 s70, v29"] + s.xcc_byte(71) + ["s_mul_i32 s71, s71, 0x01010101", "s_cmp_eq_u32 s70, s71",
                            f"s_cselect_b32 s{sOBASE}, 1, 0"])
                s.stamp("chk0")
            if st == FL0AT and not (o.abl & 4):
                if o.xs:
                    A(f"s_cmp_eq_u32 s{sOBASE}, 0")
                    A("s_cbranch_scc1 B_wb ; @nottaken" if o.xs in (1, 3) else "s_branch B_wb")
                    s.lab("B_wbr")
                A(f"s_lshl_b32 s70, s{sMYB}, 7")
                A(f"s_lshl_b32 s71, s{sW}, 2")
                A(f"s_add_u32 s71, s71, {FLAG_BASE + 32}")
                A("s_add_u32 s70, s70, s71")
                A("v_mov_b32 v28, 1")
                A("s_mov_b64 exec, 1")
                A(f"buffer_store_dword v28, off, {srd(sWS)}, s70{s.ofl0}")
                A("s_mov_b64 exec, -1")
                q.issue("FL0")
            if st == PO0 and not (o.abl & 4):
                A(f"s_lshl_b32 s72, s{sW}, 2")
                A(f"s_add_u32 s72, s72, {FLAG_BASE + 32}")
                if o.tail == 10: s.emit(["s_mov_b32 exec_lo, s52", "s_mov_b32 exec_hi, 0"])
                else: A("s_mov_b64 exec, 7")
                A(f"buffer_load_dword v{VP}, v21, {srd(sWS)}, s72 offen sc1"); q.issue("POLL")
                A("s_mov_b64 exec, -1")
            if st == PO0 + o.pod and not (o.abl & 4):
                flag_check("1", mask=(52 if o.tail == 10 else None))
                s.stamp("chk")
            g_x = []
            for par_ in eval(o.wpf).get(st, []):
                g_x.append(("PF", ["v_lshlrev_b32 v31, 6, v1", f"s_lshl_b32 s71, s{sHP}, 18", f"s_lshl_b32 s70, s{sHG}, 20", "s_add_u32 s71, s71, s70",
                                   f"s_lshl_b32 s70, s{sB}, 14", "s_add_u32 s71, s71, s70", f"s_add_u32 s71, s71, s{sW4K}",
                                   f"s_add_u32 s71, s71, {par_ * 131072}",
                                   f"buffer_load_dword v30, v31, {srd(sWO)}, s71 offen ; @dummy"]))
            if st == o.fpf:
                assert st >= FL0AT
                g_x.append(("PF", ["v_lshrrev_b32 v31, 2, v1", "v_mul_u32_u24 v31, 1792, v31", "v_and_b32 v29, 3, v1", "v_lshlrev_b32 v29, 7, v29",
                                   "v_add_u32 v31, v31, v29", f"s_lshl_b32 s71, s{sW}, 9", f"s_add_u32 s71, s71, s{sOP}",
                                   f"s_cmp_eq_u32 s{sW}, 3", "s_cselect_b32 s70, 0x33333333, -1", "s_mov_b32 exec_lo, s70", "s_mov_b32 exec_hi, s70",
                                   f"buffer_load_dword v30, v31, {srd(sWS)}, s71 offen{o.fpfm} ; @dummy", "s_mov_b64 exec, -1"]))
            for tag_, ins_ in g_x:
                if o.xpos == 0:
                    q.issue(tag_); s.emit(ins_)
            if st == o.pz:
                gz = []
                for half in range(2):
                    for jj in range(2):
                        va = vO if jj == 0 else Y
                        ins = ([f"v_mov_b32 v{28+i}, -1" for i in range(4)] if not gz else []) + \
                              [f"s_add_u32 s72, s{sOP}, s{sOH[half]}", f"s_add_u32 s72, s72, {UNIT}", f"s_mov_b64 exec, s[{sEXLO}:{sEXHI}]"]
                        for j in range(2):
                            ins.append(f"buffer_store_dwordx4 v[28:31], v{va}, {srd(sWS)}, s72 offen offset:{j*1792} sc1")
                        ins.append("s_mov_b64 exec, -1")
                        gz.append((("PZ", "PZ"), ins))
                g_x = g_x + gz
                assert o.xpos == 1 and st < o.s0at
            g_kv = pair(st + 2) if st + 2 <= 16 else []
            if (o.r3 or 2 in eval(o.bkv) or o.p2at <= 7) and st == 0: g_kv = []
            g_w = []
            for c in wq_issue.get(st, []): g_w += s.dma_wq(c, wq_slot(c), vW, f"Q{c}", 256, 72)
            for (p, h) in wo0_issue.get(st, []): g_w += dma_wo(0, p, h, wo0_slot[(p, h)])
            g_f = []
            for p in of0_issue.get(st, []): g_f += of_mem(0, p, 0, f"F{p}") + of_mem(0, p, 1, f"F{p}")
            g_1 = []
            for (p, h) in wo1_issue.get(st, []): g_1 += dma_wo(1, p, h, wo1_slot[(p, h)])
            g_p = []
            if o.pf:
                for t in pf_issue.get(st, []):
                    g_p.append(("PF", [f"s_add_u32 s71, s{sPF}, {t*1024}",
                                       f"buffer_load_dwordx4 v[24:27], v23, {srd(sWO)}, s71 offen ; @dummy"]))
            if (o.abl & 1) and 10 <= st <= 13: g_w = []
            if st in eval(o.ablw): g_w = []
            if o.abl & 2: pre_groups = []
            if (o.abl & 8) and 8 <= st <= 13: g_kv = g_kv[:4]
            gm = {"w": g_w + g_1, "f": g_f, "k": g_kv, "p": g_p, "s": g_s}
            groups = pre_groups + sum((gm[c] for c in ords.get(st, o.order)), []) + (g_x if o.xpos else [])
            if o.ilv and st >= o.ilv0:
                oth = (pre_groups if o.ilv & 2 else []) + sum((gm[c] for c in o.order if c != "k"), [])
                def pos(lst, ph):
                    w = [2 if isinstance(g[0], tuple) else 1 for g in lst]; tot = sum(w); acc = 0; r = []
                    for g, x in zip(lst, w):
                        r.append(((acc + ph * x) / tot, g)); acc += x
                    return r
                a_ = pos(g_kv, 0.0) if g_kv else []
                b_ = pos(oth, 0.5) if oth else []
                merged = sorted([(x, 0, i, g) for i, (x, g) in enumerate(a_)] + [(x, 1, i, g) for i, (x, g) in enumerate(b_)], key=lambda z: (z[0], z[1], z[2]))
                groups = ([] if o.ilv & 2 else pre_groups) + [z[3] for z in merged]
            mem = mat2(groups)
            use = ([(wq_slot(st), st, st == 0)] if st <= 7 else []) + \
                  [(wo0_slot[(p, h)], 2*p + h, (p, h) == (0, 0)) for (p, h) in wo0_use.get(st, [])]
            if use and st == 7 and o.dq:
                fr7 = douter(frags_c(use)); g7 = [[] for _ in fr7]
                if not o.s7f: spread(g7, mem, 0, 16)
                if o.s7f == 2:
                    assert ords.get(st, o.order).startswith("k") and len(mem) == 12, len(mem)
                    for g_ in mem[:8]: s.emit(g_)
                    mem = mem[8:]
                if o.s7f == 3:
                    assert ords.get(st, o.order).startswith("k") and len(mem) == 12, len(mem)
                    for g_ in mem[:8]: s.emit(g_)
                    spread(g7, mem[8:], 0, 16); mem = []
                dq_gaps(g7, 16384)
                stream(fr7, None, gapfill=g7)
                s.stamp("q7a")
                dq_end(16384)
                s.stamp("q7b")
                if o.s7f:
                    for g_ in mem: s.emit(g_)
            elif use:
                if st in eval(o.mf):
                    nk = len(g_kv)
                    assert ords.get(st, o.order).replace("p", "").startswith("k") and not pre_groups
                    for g_ in mem[:nk]: s.emit(g_)
                    mem = mem[nk:]
                stream(frags_c(use), mem)
                if st == 7: write_q(16384)
            else:
                for gi, g_ in enumerate(mem):
                    s.emit(g_); s.stamp(f"m{st}_{gi}")
            s.stamp(f"d{st}")
        sPD = [sWP, sWP + 1, sWP + 2] if o.tail in (1, 3, 5, 6, 7, 8, 9, 10, 11, 12) else [82, 83, 84]
        def addr_prep():
            A("v_lshrrev_b32 v17, 5, v1")
            A("v_mul_u32_u24 v23, 112, v17")
            A("v_and_b32 v18, 31, v1")
            A("v_add_u32 v23, v23, v18")
            A(f"s_lshl_b32 s70, s{sW}, 5")
            A("v_add_u32 v23, s70, v23")
            A("v_add_u32 v19, s70, v18")
            A("v_lshlrev_b32 v23, 4, v23")
            A(f"s_lshl_b32 s70, s{sBR}, 3")
            A(f"s_add_u32 s70, s70, s{sB}")
            A(f"s_lshl_b32 s70, s70, 2")
            A(f"s_add_u32 s70, s70, s{sHP}")
            A(f"s_mul_i32 s73, s70, {12*PSZ}")
            A(f"s_add_u32 s73, s73, {PART_BASE}")
            for d in range(3):
                A(f"s_add_u32 s70, s{sHG}, {1 + d}")
                A("s_and_b32 s70, s70, 3")
                A(f"s_mul_i32 s70, s70, {3*PSZ}")
                A(f"s_add_u32 s70, s70, s73")
                A(f"s_add_u32 s{sPD[d]}, s70, {(2-d)*PSZ}")
            A("v_lshlrev_b32 v19, 11, v19")
            A("v_lshlrev_b32 v17, 4, v17")
            A("v_add_u32 v19, v19, v17")
            if o.tg: A("v_mov_b32 v24, 0xff")
        def pub(d):
            r = []
            for rq in range(4):
                tg = [f"v_bfi_b32 v{ACC+16*d+4*rq+i}, v24, s{sTG[i]}, v{ACC+16*d+4*rq+i}" for i in range(4)] if o.tg else []
                r.append(tg + [f"s_add_u32 s70, s{sPD[d]}, {rq*3584}", f"s_mov_b64 exec, s[{sEXLO}:{sEXHI}]",
                          f"buffer_store_dwordx4 {vr(ACC+16*d+4*rq,4)}, v23, {srd(sWS)}, s70 offen sc1{s.nths}", "s_mov_b64 exec, -1"])
            return r
        def part_ld(src, dst, rq):
            return [f"s_add_u32 s70, s73, {src*PSZ + rq*3584}",
                    f"buffer_load_dwordx4 {vr(dst+4*rq,4)}, v23, {srd(sWS)}, s70 offen sc1{s.nthl}"]
        def tail1():
            used0 = set(x for v in wo0_use.values() for x in v)
            tail0 = [(p, h) for p in range(4) for h in range(2) if (p, h) not in used0]
            tailF = sorted(set(p for p, h in tail0))
            assert all((p, 0) in tail0 or (p, 0) in used0 for p in tailF)
            issued1 = set(x for v in wo1_issue.values() for x in v)
            def ftags(p): return [f"O0{p}{h}" for h in range(2) if (p, h) in tail0] + ([f"F{p}"] if p else [])
            s.stamp("preE")
            wait_vm(ftags(tailF[0]) + ["O100"])
            s.stamp("wE")
            A(f"v_add_u32 v{vOL}, {hex((P[0] - W[1]) & 0xffffffff)}, v{vOL}")
            if o.wrot: A(f"v_add_u32 v{vOL2}, {hex((P[0] - W[1]) & 0xffffffff)}, v{vOL2}")
            A("s_barrier")
            s.stamp("E")
            busy = set(wo0_slot[c] for c in tail0)
            avail = [c for c in [(0, 1), (1, 0), (1, 1), (2, 0), (2, 1), (3, 0), (3, 1)] if c not in issued1 and wo1_slot[c] not in busy]
            for i, p in enumerate(tailF):
                fl = mat2(sum((dma_wo(1, pp, hh, wo1_slot[(pp, hh)]) for (pp, hh) in avail), []))
                issued1 |= set(avail)
                stream(frags_c([(wo0_slot[(p, h)], 2*p + h, False) for h in range(2) if (p, h) in tail0]), fl)
                for h in range(2): busy.discard(wo0_slot[(p, h)])
                avail = [c for c in [(0, 1), (1, 0), (1, 1), (2, 0), (2, 1), (3, 0), (3, 1)] if c not in issued1 and wo1_slot[c] not in busy]
                s.stamp(f"U{i}")
                if i + 1 < len(tailF):
                    wait_vm(ftags(tailF[i + 1]))
                    s.stamp(f"V{i}")
                    A("s_barrier")
                    s.stamp(f"T{i}")
            own_frags()
            wait_vm("O101")
            A("s_barrier")
            s.stamp("Ta")
            if o.t1p:
                A(f"s_lshl_b32 s72, s{sW}, 2")
                A(f"s_add_u32 s72, s72, {FLAG_BASE}")
                A("s_mov_b64 exec, 7")
                A(f"buffer_load_dword v{VP}, v21, {srd(sWS)}, s72 offen sc1"); q.issue("POLL1")
                A("s_mov_b64 exec, -1")
            fl = mat2(sum((dma_wo(1, pp, hh, wo1_slot[(pp, hh)]) for (pp, hh) in avail), []))
            issued1 |= set(avail)
            assert len(issued1) == 8, issued1
            stream(frags_c([(wo1_slot[(0, 0)], 0, False), (wo1_slot[(0, 1)], 1, False)]), fl)
            s.stamp("own")
            addr_prep()
            if o.t1p:
                wait_vm("POLL1")
                flag_check("2")
            else:
                A(f"s_lshl_b32 s72, s{sW}, 2")
                A(f"s_add_u32 s72, s72, {FLAG_BASE}")
                wave_poll(21, "poll1")
            s.stamp("poll1")
            gl = lambda p: of_mem(1, p, 0, f"G{p}") + of_mem(1, p, 1, f"G{p}")
            for g_ in mat2(gl(1) + gl(2)): s.emit(g_)
            A("s_barrier")
            ND = 3 if o.defer else 4
            for p in (1, 2):
                wait_vm(f"G{p}")
                if p == 1: s.stamp("g1")
                fl = mat2(gl(3)) if p == 1 else None
                stream([f for f in frags_c([(wo1_slot[(p, 0)], 2*p, False), (wo1_slot[(p, 1)], 2*p + 1, False)]) if f[4] < ND], fl)
            wait_vm("G3")
            if o.t1p: A("s_barrier")
            fr = []
            for d in range(ND):
                for half in range(2):
                    for j in range(4):
                        fr.append((wo1_slot[(3, half)], 6 + half, False, j, d, half))
            for p in ((1, 2, 3) if o.defer else ()):
                for half in range(2):
                    for j in range(4):
                        fr.append((wo1_slot[(p, half)], 2*p + half, False, j, 3, half))
            gaps = [[] for _ in range(len(fr))]
            for d in range(3):
                spread(gaps, pub(d), 8*d + 8 + 3, 8*d + 8 + 7)
            if o.tg == 2:
                gaps[0] = [f"s_mul_i32 s71, s{sHG}, {3*PSZ}", "s_add_u32 s73, s73, s71"] + gaps[0]
                if o.tge >= 0:
                    assert o.tge >= 31
                    for rq in range(4):
                        gaps[min(o.tge + rq, len(fr) - 1)] += [f"s_mov_b64 exec, s[{sEXLO}:{sEXHI}]"] + part_ld(2, 64, rq) + ["s_mov_b64 exec, -1"]
            stream(fr, None, gapfill=gaps)
        def tail2():
            used0 = set(x for v in wo0_use.values() for x in v)
            assert used0 == {(0, 0), (0, 1)}
            fdone = set(p for v in of0_issue.values() for p in v)
            assert wo1_issue == {15: [(0, 0)]}
            gb = lambda p: 2 * (p - 1)
            gl = lambda p: of_mem(1, p, 0, f"G{p}", blk=gb(p)) + of_mem(1, p, 1, f"G{p}", blk=gb(p))
            w1 = lambda cs: sum((dma_wo(1, pp, hh, wo1_slot[(pp, hh)]) for (pp, hh) in cs), [])
            fw = lambda p: frags_c([(wo0_slot[(p, 0)], 2*p, False), (wo0_slot[(p, 1)], 2*p + 1, False)])
            tags = [f"O0{p}{h}" for p in (1, 2, 3) for h in range(2)] + ["O100"]
            if PO0 == 16: tags.append("POLL")
            wait_vm(tags)
            A(f"v_add_u32 v{vOL}, {hex((P[0] - W[1]) & 0xffffffff)}, v{vOL}")
            if o.wrot: A(f"v_add_u32 v{vOL2}, {hex((P[0] - W[1]) & 0xffffffff)}, v{vOL2}")
            if PO0 == 16:
                flag_check("1")
                s.stamp("chk")
            rest = [p for p in (1, 2, 3) if p not in fdone]
            if o.fpre and PO0 == 16:
                for p in rest:
                    for g_ in mat2(of_mem(0, p, 0, f"F{p}") + of_mem(0, p, 1, f"F{p}")): s.emit(g_)
                rest = []
            A("s_barrier")
            s.stamp("E")
            for g_ in mat2(w1([(0, 1)])): s.emit(g_)
            for p in rest:
                for g_ in mat2(of_mem(0, p, 0, f"F{p}") + of_mem(0, p, 1, f"F{p}")): s.emit(g_)
            own_frags()
            stream(frags_c([(wo1_slot[(0, 0)], 0, False)]), None)
            addr_prep()
            wait_vm("O101")
            A("s_barrier")
            s.stamp("Ta")
            stream(frags_c([(wo1_slot[(0, 1)], 1, False)]), None)
            s.stamp("own")
            wait_vm("F1")
            s.stamp("f1")
            stream(fw(1), None)
            wait_vm("F2")
            A("s_barrier")
            A(f"s_lshl_b32 s72, s{sW}, 2")
            A(f"s_add_u32 s72, s72, {FLAG_BASE}")
            A("s_mov_b64 exec, 7")
            A(f"buffer_load_dword v{VP}, v21, {srd(sWS)}, s72 offen sc1"); q.issue("POLL1")
            A("s_mov_b64 exec, -1")
            s.stamp("f2")
            stream(fw(2), mat2(w1([(1, 0), (1, 1)])))
            wait_vm(["POLL1", "F3"])
            A("s_barrier")
            flag_check("2")
            s.stamp("poll1")
            for g_ in mat2(gl(1)): s.emit(g_)
            stream(fw(3), mat2(gl(2) + w1([(2, 0), (2, 1)]) + gl(3)))
            wait_vm(["O110", "O111"])
            A("s_barrier")
            s.stamp("f3")
            for g_ in mat2(w1([(3, 0), (3, 1)])): s.emit(g_)
            ND = 3 if o.defer else 4
            for p in (1, 2):
                if p == 2:
                    wait_vm(["O120", "O121", "G2"])
                    A("s_barrier")
                else:
                    wait_vm("G1")
                    s.stamp("g1")
                stream([f for f in frags_c([(wo1_slot[(p, 0)], gb(p), False), (wo1_slot[(p, 1)], gb(p) + 1, False)]) if f[4] < ND], None)
            wait_vm(["G3", "O130", "O131"])
            A("s_barrier")
            fr = []
            for d in range(ND):
                for half in range(2):
                    for j in range(4):
                        fr.append((wo1_slot[(3, half)], gb(3) + half, False, j, d, half))
            for p in ((1, 2, 3) if o.defer else ()):
                for half in range(2):
                    for j in range(4):
                        fr.append((wo1_slot[(p, half)], gb(p) + half, False, j, 3, half))
            gaps = [[] for _ in range(len(fr))]
            for d in range(3):
                spread(gaps, pub(d), 8*d + 8 + 3, 8*d + 8 + 7)
            stream(fr, None, gapfill=gaps)
        def tail3():
            used0 = set(x for v in wo0_use.values() for x in v)
            assert used0 == {(0, 0), (0, 1)}
            assert wo1_issue == {15: [(0, 0)]}
            gl = lambda p: of_mem(1, p, 0, f"G{p}") + of_mem(1, p, 1, f"G{p}")
            w1 = lambda cs: sum((dma_wo(1, pp, hh, wo1_slot[(pp, hh)]) for (pp, hh) in cs), [])
            fw = lambda p: frags_c([(wo0_slot[(p, 0)], 2*p, False), (wo0_slot[(p, 1)], 2*p + 1, False)])
            ft = lambda p: [f"O0{p}0", f"O0{p}1", f"F{p}"]
            def poll_issue():
                A(f"s_lshl_b32 s72, s{sW}, 2")
                A(f"s_add_u32 s72, s72, {FLAG_BASE}")
                A("s_mov_b64 exec, 7")
                A(f"buffer_load_dword v{VP}, v21, {srd(sWS)}, s72 offen sc1"); q.issue("POLL1")
                A("s_mov_b64 exec, -1")
            wait_vm(ft(1) + ["O100"])
            A(f"v_add_u32 v{vOL}, {hex((P[0] - W[1]) & 0xffffffff)}, v{vOL}")
            if o.wrot: A(f"v_add_u32 v{vOL2}, {hex((P[0] - W[1]) & 0xffffffff)}, v{vOL2}")
            A("s_barrier")
            s.stamp("E")
            if o.t3a == 0: stream(fw(1), mat2(w1([(0, 1)])))
            else:
                stream(fw(1), None)
                for g_ in mat2(w1([(0, 1)])): s.emit(g_)
            wait_vm(ft(2))
            A("s_barrier")
            s.stamp("T0")
            if o.t3p == 0: poll_issue()
            stream(fw(2), mat2(w1([(1, 0), (1, 1)])))
            if o.t3p == 1: poll_issue()
            wait_vm(ft(3) + (["POLL1"] if o.t3p == 0 else []))
            A("s_barrier")
            s.stamp("T1")
            if o.t3p == 0:
                flag_check("2")
                s.stamp("poll1")
                stream(fw(3), mat2(gl(1) + w1([(2, 0), (2, 1)]) + gl(2)))
            else:
                stream(fw(3), mat2(w1([(2, 0), (2, 1)])))
                wait_vm("POLL1")
                flag_check("2")
                s.stamp("poll1")
                for g_ in mat2(gl(1)): s.emit(g_)
            own_frags()
            wait_vm("O101")
            A("s_barrier")
            s.stamp("Ta")
            stream(frags_c([(wo1_slot[(0, 0)], 0, False), (wo1_slot[(0, 1)], 1, False)]),
                   mat2((gl(2) if o.t3p == 1 else []) + (gl(3) + w1([(3, 0), (3, 1)]) if o.t3g == 0 else w1([(3, 0), (3, 1)]) + gl(3))))
            s.stamp("own")
            addr_prep()
            ND = 3 if o.defer else 4
            for p in (1, 2):
                wait_vm([f"O1{p}0", f"O1{p}1", f"G{p}"])
                A("s_barrier")
                if p == 1: s.stamp("g1")
                stream([f for f in frags_c([(wo1_slot[(p, 0)], 2*p, False), (wo1_slot[(p, 1)], 2*p + 1, False)]) if f[4] < ND], None)
            wait_vm(["G3", "O130", "O131"])
            A("s_barrier")
            fr = []
            for d in range(ND):
                for half in range(2):
                    for j in range(4):
                        fr.append((wo1_slot[(3, half)], 6 + half, False, j, d, half))
            for p in ((1, 2, 3) if o.defer else ()):
                for half in range(2):
                    for j in range(4):
                        fr.append((wo1_slot[(p, half)], 2*p + half, False, j, 3, half))
            gaps = [[] for _ in range(len(fr))]
            for d in range(3):
                spread(gaps, pub(d), 8*d + 8 + 3, 8*d + 8 + 7)
            if o.tg == 2:
                gaps[0] = [f"s_mul_i32 s71, s{sHG}, {3*PSZ}", "s_add_u32 s73, s73, s71"] + gaps[0]
            stream(fr, None, gapfill=gaps)
        def tail5():
            used0 = set(x for v in wo0_use.values() for x in v)
            assert used0 == {(0, 0), (0, 1)}
            assert wo1_issue == {15: [(0, 0)]}
            gl = lambda p: of_mem(1, p, 0, f"G{p}") + of_mem(1, p, 1, f"G{p}")
            fl = lambda p: of_mem(0, p, 0, f"F{p}") + of_mem(0, p, 1, f"F{p}")
            w1 = lambda cs: sum((dma_wo(1, pp, hh, wo1_slot[(pp, hh)]) for (pp, hh) in cs), [])
            w0 = lambda cs: sum((dma_wo(0, pp, hh, wo0_slot[(pp, hh)]) for (pp, hh) in cs), [])
            fw = lambda p: frags_c([(wo0_slot[(p, 0)], 2*p, False), (wo0_slot[(p, 1)], 2*p + 1, False)])
            ft = lambda p: [f"O0{p}0", f"O0{p}1", f"F{p}"]
            in_loop_w = set(x for v in wo0_issue.values() for x in v)
            in_loop_f = set(x for v in of0_issue.values() for x in v)
            late_w = [(3, h) for h in range(2) if (3, h) not in in_loop_w]
            late_f = [] if 3 in in_loop_f else [3]
            s.stamp("preE")
            wait_vm(ft(1) + ["O100"])
            s.stamp("wE")
            A(f"v_add_u32 v{vOL}, {hex((P[0] - W[1]) & 0xffffffff)}, v{vOL}")
            if o.wrot: A(f"v_add_u32 v{vOL2}, {hex((P[0] - W[1]) & 0xffffffff)}, v{vOL2}")
            A("s_barrier")
            s.stamp("E")
            stream(fw(1), mat2(w1([(0, 1)]) + w0(late_w)))
            s.stamp("U0")
            wait_vm(ft(2))
            A("s_barrier")
            s.stamp("T0")
            stream(fw(2), mat2(sum((fl(p) for p in late_f), []) + w1([(1, 0), (1, 1)])))
            s.stamp("U1")
            own_frags()
            wait_vm(["O101", "O030", "O031"])
            A("s_barrier")
            s.stamp("Ta")
            stream(frags_c([(wo1_slot[(0, 0)], 0, False), (wo1_slot[(0, 1)], 1, False)]), mat2(w1([(2, 0), (2, 1)])))
            s.stamp("own")
            addr_prep()
            A(f"s_lshl_b32 s72, s{sW}, 2")
            A(f"s_add_u32 s72, s72, {FLAG_BASE}")
            wave_poll(21, "poll1")
            s.stamp("poll1")
            for g_ in mat2(gl(1) + gl(2)): s.emit(g_)
            stream(fw(3), None)
            s.stamp("U2")
            A("s_barrier")
            s.stamp("Tb")
            ND = 3 if o.defer else 4
            for p in (1, 2):
                wait_vm(f"G{p}")
                if p == 1: s.stamp("g1")
                f_ = mat2(w1([(3, 0), (3, 1)]) + gl(3) if o.t5g == 0 else gl(3) + w1([(3, 0), (3, 1)])) if p == 1 else None
                stream([f for f in frags_c([(wo1_slot[(p, 0)], 2*p, False), (wo1_slot[(p, 1)], 2*p + 1, False)]) if f[4] < ND], f_)
            wait_vm(["G3", "O130", "O131"])
            A("s_barrier")
            s.stamp("Tc")
            fr = []
            for d in range(ND):
                for half in range(2):
                    for j in range(4):
                        fr.append((wo1_slot[(3, half)], 6 + half, False, j, d, half))
            for p in ((1, 2, 3) if o.defer else ()):
                for half in range(2):
                    for j in range(4):
                        fr.append((wo1_slot[(p, half)], 2*p + half, False, j, 3, half))
            gaps = [[] for _ in range(len(fr))]
            for d in range(3):
                spread(gaps, pub(d), 8*d + 8 + 3, 8*d + 8 + 7)
            if o.tg == 2:
                gaps[0] = [f"s_mul_i32 s71, s{sHG}, {3*PSZ}", "s_add_u32 s73, s73, s71"] + gaps[0]
            stream(fr, None, gapfill=gaps)
        def tail6():
            used0 = set(x for v in wo0_use.values() for x in v)
            assert used0 == {(0, 0), (0, 1)}
            assert wo1_issue == {15: [(0, 0)]}
            T6 = dict(wo1_slot); T6[(3, 0)] = P[0]; T6[(3, 1)] = P[0] + 16384
            gl = lambda p: of_mem(1, p, 0, f"G{p}") + of_mem(1, p, 1, f"G{p}")
            fw = lambda p: frags_c([(wo0_slot[(p, 0)], 2*p, False), (wo0_slot[(p, 1)], 2*p + 1, False)])
            ft = lambda p: [f"O0{p}0", f"O0{p}1", f"F{p}"]
            s.stamp("preE")
            wait_vm(ft(1) + ["O100"])
            s.stamp("wE")
            A(f"v_add_u32 v{vOL}, {hex((P[0] - W[1]) & 0xffffffff)}, v{vOL}")
            if o.wrot: A(f"v_add_u32 v{vOL2}, {hex((P[0] - W[1]) & 0xffffffff)}, v{vOL2}")
            A("s_barrier")
            s.stamp("E")
            f1 = fw(1); gaps = [[] for _ in f1]
            rd_ = []
            for half in range(2):
                for j in range(4):
                    if o.wrot: rd_.append([f"ds_read_b128 {vr(X+16*half+4*j,4)}, v{(vOL, vOL2)[half]} offset:{j*512} ; @own"])
                    else: rd_.append([f"ds_read_b128 {vr(X+16*half+4*j,4)}, v{vOL} offset:{half*4096 + j*512} ; @own"])
            spread(gaps, rd_, 8, 24)
            stream(f1, None, gapfill=gaps)
            s.stamp("U0")
            A("s_waitcnt lgkmcnt(0)")
            wait_vm(ft(2))
            A("s_barrier")
            s.stamp("T0")
            stream(fw(2), None)
            s.stamp("U1")
            wait_vm(["O030", "O031"])
            A("s_barrier")
            s.stamp("Ta")
            stream(frags_c([(T6[(0, 0)], 0, False), (T6[(0, 1)], 1, False)]), None)
            s.stamp("own")
            addr_prep()
            wait_vm("F3")
            A("s_barrier")
            s.stamp("poll1")
            f3 = fw(3); gaps = [[] for _ in f3]
            g1e, g2e = eval(o.t6g)
            spread(gaps, mat2(gl(1)), 0, g1e)
            spread(gaps, mat2(gl(2)), g1e, g2e)
            stream(f3, None, gapfill=gaps)
            s.stamp("U2")
            ND = 3 if o.defer else 4
            for p in (1, 2):
                wait_vm(f"G{p}")
                if p == 2: A("s_barrier")
                if p == 1: s.stamp("g1")
                fr_ = [f for f in frags_c([(T6[(p, 0)], 2*p, False), (T6[(p, 1)], 2*p + 1, False)]) if f[4] < ND]
                gaps = [[] for _ in fr_]
                if p == 1: spread(gaps, mat2(gl(3)), 0, o.t6h)
                stream(fr_, None, gapfill=gaps)
            wait_vm("G3")
            if o.t6v != 1: A("s_barrier")
            s.stamp("Tc")
            fr = []
            for d in range(ND):
                for half in range(2):
                    for j in range(4):
                        fr.append((T6[(3, half)], 6 + half, False, j, d, half))
            for p in ((1, 2, 3) if o.defer else ()):
                for half in range(2):
                    for j in range(4):
                        fr.append((T6[(p, half)], 2*p + half, False, j, 3, half))
            gaps = [[] for _ in range(len(fr))]
            for d in range(3):
                spread(gaps, pub(d), 8*d + 8 + 3, 8*d + 8 + 7)
            if o.tg == 2:
                gaps[0] = [f"s_mul_i32 s71, s{sHG}, {3*PSZ}", "s_add_u32 s73, s73, s71"] + gaps[0]
            stream(fr, None, gapfill=gaps)
        def tail7():
            used0 = set(x for v in wo0_use.values() for x in v)
            assert used0 == {(0, 0), (0, 1)}
            assert wo1_issue == {15: [(0, 0)]}
            gl = lambda p: of_mem(1, p, 0, f"G{p}") + of_mem(1, p, 1, f"G{p}")
            fl = lambda p: of_mem(0, p, 0, f"F{p}") + of_mem(0, p, 1, f"F{p}")
            w1 = lambda cs: sum((dma_wo(1, pp, hh, wo1_slot[(pp, hh)]) for (pp, hh) in cs), [])
            fw = lambda p: frags_c([(wo0_slot[(p, 0)], 2*p, False), (wo0_slot[(p, 1)], 2*p + 1, False)])
            ft = lambda p: [f"O0{p}0", f"O0{p}1", f"F{p}"]
            in_loop_f = set(x for v in of0_issue.values() for x in v)
            late_f = [p for p in (2, 3) if p not in in_loop_f]
            s.stamp("preE")
            wait_vm(ft(1) + ["O100"])
            s.stamp("wE")
            A(f"v_add_u32 v{vOL}, {hex((P[0] - W[1]) & 0xffffffff)}, v{vOL}")
            if o.wrot: A(f"v_add_u32 v{vOL2}, {hex((P[0] - W[1]) & 0xffffffff)}, v{vOL2}")
            A("s_barrier")
            s.stamp("E")
            stream(fw(1), mat2(sum((fl(p) for p in late_f), []) + w1([(0, 1)])))
            s.stamp("U0")
            wait_vm(ft(2))
            A("s_barrier")
            s.stamp("T0")
            stream(fw(2), mat2(w1([(1, 0), (1, 1)])))
            s.stamp("U1")
            wait_vm(ft(3))
            A("s_barrier")
            s.stamp("T1")
            f3 = fw(3); gaps = [[] for _ in f3]
            pl = [f"s_lshl_b32 s72, s{sW}, 2", f"s_add_u32 s72, s72, {FLAG_BASE}", "s_mov_b64 exec, 7",
                  f"buffer_load_dword v{VP}, v21, {srd(sWS)}, s72 offen sc1", "s_mov_b64 exec, -1"]
            ga = w1([(2, 0)]); gb = w1([(2, 1)])
            if o.t7p < 0:
                q.issue("POLL1"); s.emit(pl)
                spread(gaps, mat2(ga + gb), 0, 32)
            else:
                assert o.t7p in (8, 16, 24)
                if o.t7p == 8:
                    spread(gaps, mat2(ga), 0, 8); q.issue("POLL1"); gaps[8] += pl; spread(gaps, mat2(gb), 10, 26)
                elif o.t7p == 16:
                    spread(gaps, mat2(ga), 0, 16); q.issue("POLL1"); gaps[16] += pl; spread(gaps, mat2(gb), 18, 32)
                else:
                    spread(gaps, mat2(ga + gb), 0, 24); q.issue("POLL1"); gaps[24] += pl
            stream(f3, None, gapfill=gaps)
            s.stamp("U2")
            own_frags()
            wait_vm(["O101", "POLL1"])
            A("s_barrier")
            s.stamp("Ta")
            own = frags_c([(wo1_slot[(0, 0)], 0, False), (wo1_slot[(0, 1)], 1, False)])
            old_ = s.L; s.L = []; addr_prep(); ap_ = [[l.strip()] for l in s.L]; s.L = old_
            A("s_mov_b64 exec, 7")
            A(f"v_cmp_ne_u32 vcc, 0, v{VP}")
            A("s_mov_b64 exec, -1")
            A("s_cmp_eq_u32 vcc_lo, 7")
            A("s_cbranch_scc0 B_t7slow ; @hook=SLOW7")
            st_q = list(q.q); st_w = s.wbase
            gaps = [[] for _ in own]
            w3 = mat2(w1([(3, 0), (3, 1)]))
            g1_ = mat2(gl(1)); g2_ = mat2(gl(2)) if o.t7g else None
            if o.t7g:
                spread(gaps, w3, 0, 8); spread(gaps, g1_, 8, 18); spread(gaps, g2_, 18, 30)
            else:
                spread(gaps, w3, 0, 12); spread(gaps, g1_, 12, 28)
            spread(gaps, ap_, 4, 30)
            stream(own, None, gapfill=gaps)
            s.stamp("own")
            s.stamp("poll1")
            s.lab("B_t7m")
            fin_q = list(q.q); fin_w = s.wbase
            q.q = list(st_q); s.wbase = st_w
            old_ = s.L; s.L = []
            s.lab("B_t7slow")
            gaps = [[] for _ in own]
            spread(gaps, mat2(w1([(3, 0), (3, 1)])), 0, 24)
            spread(gaps, ap_, 4, 30)
            stream(own, None, gapfill=gaps)
            s.stamp("own")
            A(f"s_lshl_b32 s72, s{sW}, 2")
            A(f"s_add_u32 s72, s72, {FLAG_BASE}")
            wave_poll(21, "poll1")
            s.stamp("poll1")
            for g_ in mat2(gl(1) + (gl(2) if o.t7g else [])): s.emit(g_)
            A("s_branch B_t7m")
            assert s.wbase == fin_w
            t7_slow.extend(s.L); s.L = old_
            q.q = list(fin_q)
            wait_vm(["O130", "O131"])
            A("s_barrier")
            ND = 3 if o.defer else 4
            for p in (1, 2):
                wait_vm(f"G{p}")
                if p == 1: s.stamp("g1")
                fr_ = [f for f in frags_c([(wo1_slot[(p, 0)], 2*p, False), (wo1_slot[(p, 1)], 2*p + 1, False)]) if f[4] < ND]
                gaps = [[] for _ in fr_]
                if o.t7g:
                    if p == 1: spread(gaps, mat2(gl(3)), 0, o.t7h)
                else:
                    spread(gaps, mat2(gl(p + 1)), 0, o.t7h)
                stream(fr_, None, gapfill=gaps)
            wait_vm("G3")
            s.stamp("Tc")
            fr = []
            for d in range(ND):
                for half in range(2):
                    for j in range(4):
                        fr.append((wo1_slot[(3, half)], 6 + half, False, j, d, half))
            for p in ((1, 2, 3) if o.defer else ()):
                for half in range(2):
                    for j in range(4):
                        fr.append((wo1_slot[(p, half)], 2*p + half, False, j, 3, half))
            gaps = [[] for _ in range(len(fr))]
            for d in range(3):
                spread(gaps, pub(d), 8*d + 8 + 3, 8*d + 8 + 7)
            if o.tg == 2:
                gaps[0] = [f"s_mul_i32 s71, s{sHG}, {3*PSZ}", "s_add_u32 s73, s73, s71"] + gaps[0]
            stream(fr, None, gapfill=gaps)
        def tail8():
            used0 = set(x for v in wo0_use.values() for x in v)
            assert used0 == {(0, 0), (0, 1)}
            assert wo1_issue == {15: [(0, 0)]}
            gl = lambda p: of_mem(1, p, 0, f"G{p}") + of_mem(1, p, 1, f"G{p}")
            fl = lambda p: of_mem(0, p, 0, f"F{p}") + of_mem(0, p, 1, f"F{p}")
            fw = lambda p: frags_c([(wo0_slot[(p, 0)], 2*p, False), (wo0_slot[(p, 1)], 2*p + 1, False)])
            ft = lambda p: [f"O0{p}0", f"O0{p}1", f"F{p}"]
            in_loop_f = set(x for v in of0_issue.values() for x in v)
            late_f = [p for p in (2, 3) if p not in in_loop_f]
            s.stamp("preE")
            wait_vm(ft(1) + ["O100"])
            s.stamp("wE")
            A(f"v_add_u32 v{vOL}, {hex((P[0] - W[1]) & 0xffffffff)}, v{vOL}")
            if o.wrot: A(f"v_add_u32 v{vOL2}, {hex((P[0] - W[1]) & 0xffffffff)}, v{vOL2}")
            A("s_barrier")
            s.stamp("E")
            f1 = fw(1); gaps = [[] for _ in f1]
            if late_f: spread(gaps, mat2(sum((fl(p) for p in late_f), [])), 0, o.t8f)
            stream(f1, None, gapfill=gaps)
            s.stamp("U0")
            wait_vm(ft(2))
            A("s_barrier")
            s.stamp("T0")
            stream(fw(2), None)
            s.stamp("U1")
            wait_vm(ft(3))
            A("s_barrier")
            s.stamp("T1")
            f3 = fw(3); gaps = [[] for _ in f3]
            rd_ = []
            for half in range(2):
                for j in range(4):
                    if o.wrot: rd_.append([f"ds_read_b128 {vr(X+16*half+4*j,4)}, v{(vOL, vOL2)[half]} offset:{j*512} ; @own"])
                    else: rd_.append([f"ds_read_b128 {vr(X+16*half+4*j,4)}, v{vOL} offset:{half*4096 + j*512} ; @own"])
            spread(gaps, rd_, 8, 24)
            stream(f3, None, gapfill=gaps)
            s.stamp("U2")
            A("s_waitcnt lgkmcnt(0)")
            A("s_barrier")
            s.stamp("Ta")
            own = frags_c([(wo1_slot[(0, 0)], 0, False), (wo1_slot[(0, 1)], 1, False)])
            old_ = s.L; s.L = []; addr_prep(); ap_ = [[l.strip()] for l in s.L]; s.L = old_
            gaps = [[] for _ in own]
            spread(gaps, ap_, 2, 30)
            pl = [f"s_lshl_b32 s72, s{sW}, 2", f"s_add_u32 s72, s72, {FLAG_BASE}", "s_mov_b64 exec, 7",
                  f"buffer_load_dword v{VP}, v21, {srd(sWS)}, s72 offen sc1", "s_mov_b64 exec, -1"]
            if o.t8p >= 0:
                q.issue("POLL1"); gaps[o.t8p] += pl
            stream(own, None, gapfill=gaps)
            s.stamp("own")
            if o.t8p >= 0:
                wait_vm("POLL1")
                flag_check("2")
            else:
                A(f"s_lshl_b32 s72, s{sW}, 2")
                A(f"s_add_u32 s72, s72, {FLAG_BASE}")
                wave_poll(21, "poll1")
            s.stamp("poll1")
            for g_ in mat2(gl(1) + gl(2)): s.emit(g_)
            A("s_barrier")
            ND = 3 if o.defer else 4
            for p in (1, 2):
                wait_vm(f"G{p}")
                if p == 1: s.stamp("g1")
                fr_ = [f for f in frags_c([(wo1_slot[(p, 0)], 2*p, False), (wo1_slot[(p, 1)], 2*p + 1, False)]) if f[4] < ND]
                gaps = [[] for _ in fr_]
                if p == 1: spread(gaps, mat2(gl(3)), 0, o.t7h)
                stream(fr_, None, gapfill=gaps)
            wait_vm("G3")
            s.stamp("Tc")
            fr = []
            for d in range(ND):
                for half in range(2):
                    for j in range(4):
                        fr.append((wo1_slot[(3, half)], 6 + half, False, j, d, half))
            for p in ((1, 2, 3) if o.defer else ()):
                for half in range(2):
                    for j in range(4):
                        fr.append((wo1_slot[(p, half)], 2*p + half, False, j, 3, half))
            gaps = [[] for _ in range(len(fr))]
            for d in range(3):
                spread(gaps, pub(d), 8*d + 8 + 3, 8*d + 8 + 7)
            if o.tg == 2:
                gaps[0] = [f"s_mul_i32 s71, s{sHG}, {3*PSZ}", "s_add_u32 s73, s73, s71"] + gaps[0]
            stream(fr, None, gapfill=gaps)
        def tail9():
            used0 = set(x for v in wo0_use.values() for x in v)
            assert used0 == {(0, 0), (0, 1)}
            assert wo1_issue == {15: [(0, 0)]}
            gl = lambda p: of_mem(1, p, 0, f"G{p}") + of_mem(1, p, 1, f"G{p}")
            fl = lambda p: of_mem(0, p, 0, f"F{p}") + of_mem(0, p, 1, f"F{p}")
            fw = lambda p: frags_c([(wo0_slot[(p, 0)], 2*p, False), (wo0_slot[(p, 1)], 2*p + 1, False)])
            in_loop_f = set(x for v in of0_issue.values() for x in v)
            late_f = [p for p in (2, 3) if p not in in_loop_f]
            def wl_vm(tags):
                n = q.wait(tags)
                return [f"s_waitcnt vmcnt({n})"] if n is not None else []
            s.stamp("preE")
            wait_vm([f"O0{p}{h}" for p in (1, 2, 3) for h in range(2)] + ["F1", "O100"])
            s.stamp("wE")
            A(f"v_add_u32 v{vOL}, {hex((P[0] - W[1]) & 0xffffffff)}, v{vOL}")
            if o.wrot: A(f"v_add_u32 v{vOL2}, {hex((P[0] - W[1]) & 0xffffffff)}, v{vOL2}")
            A("s_barrier")
            s.stamp("E")
            own = frags_c([(wo1_slot[(0, 0)], 0, False), (wo1_slot[(0, 1)], 1, False)])
            fr = fw(1) + fw(2) + fw(3) + own
            gaps = [[] for _ in fr]
            if late_f: spread(gaps, mat2(sum((fl(p) for p in late_f), [])), 0, o.t8f)
            gaps[31] += wl_vm("F2") + s.stamp_lines("U0") + ["s_barrier"] + s.stamp_lines("T0")
            gaps[63] += wl_vm("F3") + s.stamp_lines("U1") + ["s_barrier"] + s.stamp_lines("T1")
            rd_ = []
            for half in range(2):
                for j in range(4):
                    if o.wrot: rd_.append([f"ds_read_b128 {vr(X+16*half+4*j,4)}, v{(vOL, vOL2)[half]} offset:{j*512} ; @own"])
                    else: rd_.append([f"ds_read_b128 {vr(X+16*half+4*j,4)}, v{vOL} offset:{half*4096 + j*512} ; @own"])
            spread(gaps, rd_, 68, 84)
            gaps[95] += s.stamp_lines("U2") + ["s_barrier"] + s.stamp_lines("Ta")
            old_ = s.L; s.L = []; addr_prep(); ap_ = [[l.strip()] for l in s.L]; s.L = old_
            spread(gaps, ap_, 98, 126)
            pl = [f"s_lshl_b32 s72, s{sW}, 2", f"s_add_u32 s72, s72, {FLAG_BASE}", "s_mov_b64 exec, 7",
                  f"buffer_load_dword v{VP}, v21, {srd(sWS)}, s72 offen sc1", "s_mov_b64 exec, -1"]
            if o.t8p >= 0:
                q.issue("POLL1"); gaps[96 + o.t8p] += pl
            stream(fr, None, gapfill=gaps)
            s.stamp("own")
            if o.t8p >= 0:
                wait_vm("POLL1")
                flag_check("2")
            else:
                A(f"s_lshl_b32 s72, s{sW}, 2")
                A(f"s_add_u32 s72, s72, {FLAG_BASE}")
                wave_poll(21, "poll1")
            s.stamp("poll1")
            if o.t9g == 0: iss = gl(1) + gl(2)
            elif o.t9g == 1: iss = gl(1)
            else: iss = gl(1) + gl(2) + gl(3)
            for g_ in mat2(iss): s.emit(g_)
            A("s_barrier")
            ND = 3 if o.defer else 4
            assert o.defer
            fr = []
            for p in (1, 2):
                fr += [f for f in frags_c([(wo1_slot[(p, 0)], 2*p, False), (wo1_slot[(p, 1)], 2*p + 1, False)]) if f[4] < ND]
            for d in range(ND):
                for half in range(2):
                    for j in range(4):
                        fr.append((wo1_slot[(3, half)], 6 + half, False, j, d, half))
            for p in (1, 2, 3):
                for half in range(2):
                    for j in range(4):
                        fr.append((wo1_slot[(p, half)], 2*p + half, False, j, 3, half))
            gaps = [[] for _ in range(len(fr))]
            g1w = wl_vm("G1")
            if o.t9g == 1:
                spread(gaps, mat2(gl(2)), 0, 8);
                w2 = wl_vm("G2")
                raise NotImplementedError
            if o.t9g == 0:
                spread(gaps, mat2(gl(3)), 0, o.t7h)
            gaps[23] += wl_vm("G2")
            gaps[47] += wl_vm("G3") + s.stamp_lines("Tc")
            for d in range(3):
                spread(gaps, pub(d), 48 + 8*d + 8 + 3, 48 + 8*d + 8 + 7)
            if o.tg == 2:
                gaps[48] = [f"s_mul_i32 s71, s{sHG}, {3*PSZ}", "s_add_u32 s73, s73, s71"] + gaps[48]
            first = [True]
            stream(fr, None, gapfill=gaps, premf={0: g1w + s.stamp_lines("g1")})
        def tail10():
            used0 = set(x for v in wo0_use.values() for x in v)
            assert used0 == {(0, 0), (0, 1)}
            assert wo1_issue == {15: [(0, 0)]}
            assert set(x for v in of0_issue.values() for x in v) == {1}
            assert o.defer and o.tg == 2
            gl = lambda p, blk: of_mem(1, p, 0, f"G{p}", blk=blk) + of_mem(1, p, 1, f"G{p}", blk=blk)
            fl = lambda p: of_mem(0, p, 0, f"F{p}") + of_mem(0, p, 1, f"F{p}")
            two = lambda s0, s1, blk: frags_c([(s0, blk, False), (s1, blk + 1, False)])
            def wl_vm(tags):
                n = q.wait(tags)
                return [f"s_waitcnt vmcnt({n})"] if n is not None else []
            rd_ = []
            for half in range(2):
                for j in range(4):
                    rd_.append([f"ds_read_b128 {vr(X+16*half+4*j,4)}, v{(vOL, vOL2)[half]} offset:{j*512} ; @own"])
            def ap_lines():
                old_ = s.L; s.L = []; addr_prep(); r = [[l.strip()] for l in s.L]; s.L = old_
                return r
            pl = [f"s_lshl_b32 s72, s{sW}, 2", f"s_add_u32 s72, s72, {FLAG_BASE}", "s_mov_b64 exec, 7",
                  f"buffer_load_dword v{VP}, v21, {srd(sWS)}, s72 offen sc1", "s_mov_b64 exec, -1"]
            def head(late):
                for g_ in mat2(sum((fl(p) for p in late), [])): s.emit(g_)
                s.stamp("preE")
                wait_vm(["O011", "O010", "O020", "O021", "O030", "O031", "F1", "O100"])
                s.stamp("wE")
                A(f"v_add_u32 v{vOL}, {hex((P[0] - W[1]) & 0xffffffff)}, v{vOL}")
                A(f"v_add_u32 v{vOL2}, {hex((P[0] - W[1]) & 0xffffffff)}, v{vOL2}")
                A("s_barrier")
                s.stamp("E")
            def second(stg, fill, barr, waits, first_wait):
                fr = []
                for (s0, s1, blk, df) in stg[:-1]:
                    fr += [f for f in two(s0, s1, blk) if (f[4] < 3 or not df)]
                base = len(fr)
                s0, s1, blk, df = stg[-1]
                for d in range(3):
                    for half in range(2):
                        for j in range(4):
                            fr.append(((s0, s1)[half], blk + half, False, j, d, half))
                for (s0, s1, blk, df) in stg:
                    if not df: continue
                    for half in range(2):
                        for j in range(4):
                            fr.append(((s0, s1)[half], blk + half, False, j, 3, half))
                gaps = [[] for _ in fr]
                for (a, b, grp) in fill: spread(gaps, mat2(grp()), a, b)
                for (at, tags, nm, bar) in sorted(barr + waits):
                    gaps[at] += (wl_vm(tags) if tags else []) + (s.stamp_lines(nm) if nm else []) + (["s_barrier"] if bar else [])
                for d in range(3):
                    spread(gaps, pub(d), base + 8*d + 8 + 3, base + 8*d + 8 + 7)
                gaps[base] = [f"s_mul_i32 s71, s{sHG}, {3*PSZ}", "s_add_u32 s73, s73, s71"] + gaps[base]
                stream(fr, None, gapfill=gaps, premf={0: first_wait})
            def slow2(sfx):
                t7_slow.extend([f"B_slow2{sfx}:", f"s_lshl_b32 s72, s{sW}, 2", f"s_add_u32 s72, s72, {FLAG_BASE}"])
                t7_slow.extend(s.capture(lambda: wave_poll(21, "slow2l" + sfx, drain=False)))
                t7_slow.append(f"s_branch B_slow2{sfx}r")
            q0 = list(q.q); wb0, xb0 = s.wbase, s.xbase
            A(f"s_bitcmp1_b32 s{sHG}, 0")
            A("s_cbranch_scc1 B_t10o ; @hook=ODD")
            head([2, 3])
            fr = two(W[0], W[1], 2) + two(W[2], W[3], 4) + two(P[1], P[2], 6) + two(P[2] + 16384, P[1] + 16384, 0)
            gaps = [[] for _ in fr]
            spread(gaps, rd_, 4, 20)
            gaps[31] += wl_vm("F2") + s.stamp_lines("U0") + ["s_barrier"] + s.stamp_lines("T0")
            fx = of_mem(0, 3, 0, "FX", blk=2, xoff=8*UNIT) + of_mem(0, 3, 1, "FX", blk=2, xoff=8*UNIT)
            spread(gaps, mat2(fx), 33, 49)
            gaps[63] += wl_vm("F3") + s.stamp_lines("U1") + ["s_barrier"] + s.stamp_lines("T1")
            gaps[95] += s.stamp_lines("U2") + ["s_barrier"] + s.stamp_lines("Ta")
            q.issue("POLL1"); gaps[96 + o.t8p] += pl
            spread(gaps, ap_lines(), 110, 127)
            stream(fr, None, gapfill=gaps)
            s.stamp("own")
            wait_vm("POLL1")
            flag_check("2", sfx="e"); slow2("e")
            s.stamp("poll1")
            for g_ in mat2(gl(1, 4) + gl(2, 6)): s.emit(g_)
            A("s_barrier")
            second([(P[0], P[0] + 16384, 2, False), (W[0], W[1], 4, True), (W[2], W[3], 6, True), (P[1], P[2], 0, True)],
                   [(0, o.t7h, lambda: gl(3, 0))], [(48, None, "Tc", True)], [(31, ["G1"], "g1", False), (55, ["G2"], None, False), (79, ["G3"], None, False)],
                   wl_vm("FX"))
            A("s_branch B_fin")
            qe = list(q.q)
            q.q = list(q0); s.wbase, s.xbase = wb0, xb0
            s.lab("B_t10o")
            head([2])
            fr = two(W[0], W[1], 2) + two(P[2] + 16384, P[1] + 16384, 0)
            gaps = [[] for _ in fr]
            spread(gaps, rd_, 4, 20)
            q.issue("POLL1"); gaps[32 + o.t10p] += pl
            gaps[40] += s.stamp_lines("U0") + ["s_barrier"] + s.stamp_lines("T0")
            spread(gaps, ap_lines(), 44, 62)
            stream(fr, None, gapfill=gaps)
            s.stamp("own")
            wait_vm("POLL1")
            flag_check("2", sfx="o"); slow2("o")
            s.stamp("poll1")
            for g_ in mat2(gl(1, 2)): s.emit(g_)
            second([(W[2], W[3], 4, bool(o.t10d)), (W[0], W[1], 2, True), (P[0], P[0] + 16384, 6, True), (P[1], P[2], 0, True)],
                   [(0, o.t7h, lambda: gl(2, 6) + gl(3, 0))],
                   [(24 - 8*o.t10d, None, None, True), (48 - 8*o.t10d, None, "Tc", True)],
                   [(31 - 8*o.t10d, ["G1"], "g1", False), (55 - 8*o.t10d, ["G2"], None, False), (79 - 8*o.t10d, ["G3"], None, False)],
                   wl_vm("F2"))
            s.lab("B_fin")
            q.q = ["PUB"] * 12
        def tail11():
            assert o.defer and o.tg == 2 and o.pz >= 0 and o.wrot
            used0 = set(x for v in wo0_use.values() for x in v)
            rest = [p for p in (1, 2, 3) if (p, 0) not in used0]
            in_loop_f = set(x for v in of0_issue.values() for x in v)
            late_f = [p for p in rest if p not in in_loop_f]
            issued1 = [c for v in wo1_issue.values() for c in v]
            gpos = eval(o.t11g)
            def chk(p, h):
                r0 = X + 16*(2*p + h)
                L = [f"v_max3_u32 v25, v{r0}, v{r0+1}, v{r0+2}", f"v_max3_u32 v26, v{r0+3}, v{r0+4}, v{r0+5}"]
                for i in range(6, 14, 2): L.append(f"v_max3_u32 v{25 + ((i//2 + 1) & 1)}, v{25 + ((i//2 + 1) & 1)}, v{r0+i}, v{r0+i+1}")
                L += [f"v_max3_u32 v25, v25, v{r0+14}, v{r0+15}", "v_max_u32 v25, v25, v26",
                      "v_cmp_eq_u32 vcc, -1, v25", f"s_and_b64 vcc, vcc, s[{sEXLO}:{sEXHI}]"]
                return L
            def gld(p, h): return of_mem(1, p, h, f"G{p}{h}")
            def slow(p, h):
                n = f"B_gs{p}{h}"
                L = [f"{n}:", f"s_mov_b32 s{sSPIN}, 0", f"{n}l:"]
                for (_, ins) in gld(p, h): L += ins
                L += ["s_waitcnt vmcnt(0)"] + chk(p, h) + [f"s_cbranch_scc0 {n}r ; @taken", f"{n}p:",
                      f"s_add_u32 s{sSPIN}, s{sSPIN}, 1", f"s_cmp_ge_u32 s{sSPIN}, {min(o.spin, 8192)}", f"s_cbranch_scc1 {n}r ; @nottaken",
                      f"s_lshl_b32 s70, s{sW}, 9", f"s_add_u32 s72, s{sOP+p}, s{sOH[h]}", "s_add_u32 s72, s72, s70", f"s_add_u32 s72, s72, {UNIT + 6*1792}",
                      f"buffer_load_dword v{VP}, off, {srd(sWS)}, s72 sc1", "s_waitcnt vmcnt(0)", f"v_readfirstlane_b32 s70, v{VP}",
                      "s_cmp_eq_u32 s70, -1", f"s_cbranch_scc1 {n}p ; @nottaken", f"s_branch {n}l"]
                t7_slow.extend(L)
            sSTAG = 53
            if o.stag > 1:
                A(f"s_and_b32 s70, s{sW}, {o.stag - 1}")
                A(f"s_lshl_b32 s{sSTAG}, 1, s70")
            s.stamp("preE")
            pre = [p for p in (1, 2, 3) if gpos[p-1][0] < 0]
            wtags = [f"O1{p}{h}" for (p, h) in issued1] + [f"O0{p}{h}" for p in rest for h in range(2)] + [f"F{p}" for p in rest[:1]]
            if o.t11w == 0: wait_vm(wtags)
            for p in pre:
                assert p not in rest
                for g_ in mat2(gld(p, 0) + gld(p, 1)): s.emit(g_)
            if o.t11w == 1: wait_vm(wtags)
            s.stamp("wE")
            A(f"v_add_u32 v{vOL}, {hex((P[0] - W[1]) & 0xffffffff)}, v{vOL}")
            A(f"v_add_u32 v{vOL2}, {hex((P[0] - W[1]) & 0xffffffff)}, v{vOL2}")
            A("s_barrier")
            s.stamp("E")
            rd_ = []
            for half in range(2):
                for j in range(4):
                    rd_.append([f"ds_read_b128 {vr(X+16*half+4*j,4)}, v{(vOL, vOL2)[half]} offset:{j*512} ; @own"])
            fr = []
            for p in rest: fr += frags_c([(wo0_slot[(p, 0)], 2*p, False), (wo0_slot[(p, 1)], 2*p + 1, False)])
            u_end = len(fr)
            own = frags_c([(wo1_slot[(0, 0)], 0, False), (wo1_slot[(0, 1)], 1, False)])
            fr += own
            g0 = len(fr)
            for p in (1, 2):
                fr += [f for f in frags_c([(wo1_slot[(p, 0)], 2*p, False), (wo1_slot[(p, 1)], 2*p + 1, False)]) if f[4] < 3]
            base = len(fr)
            for d in range(3):
                for half in range(2):
                    for j in range(4):
                        fr.append((wo1_slot[(3, half)], 6 + half, False, j, d, half))
            for p in (1, 2, 3):
                for half in range(2):
                    for j in range(4):
                        fr.append((wo1_slot[(p, half)], 2*p + half, False, j, 3, half))
            n = len(fr)
            ev = []
            def add(at, kind, pay): ev.append((at, len(ev), kind, pay))
            premf = {}
            if u_end == 0:
                for r_ in rd_: s.emit(r_)
                premf[0] = ["s_waitcnt lgkmcnt(0)"] if not o.t11l else []
            else:
                for i, r_ in enumerate(rd_): add(4 + 2*i, "txt", r_)
            if late_f:
                lf = sum((of_mem(0, p, 0, f"F{p}") + of_mem(0, p, 1, f"F{p}") for p in late_f), [])
                for i, g_ in enumerate(lf): add((i * o.t8f) // len(lf), "ld", g_)
            for i, p in enumerate(rest):
                if i: add(32*i - 1, "wait", [f"F{p}"])
            ap_ = s.capture(addr_prep)
            a0 = max(u_end, 24 if u_end else 0) + 2
            for i, l in enumerate(ap_): add(a0 + (i * o.t11p) // len(ap_), "txt", [l])
            for p in (1, 2, 3):
                a, b = gpos[p-1]
                if a < 0: continue
                gl_ = gld(p, 0) + gld(p, 1)
                assert p not in rest or a >= 32*(rest.index(p) + 1)
                if o.stag:
                    k_ = 0
                    for (tg_, ins) in gl_:
                        pre_ = [l for l in ins if l.startswith("s_add")]
                        lds_ = [l for l in ins if l.startswith("buffer_load")]
                        for l in lds_:
                            body = pre_ + ([l] if o.nox else [f"s_mov_b64 exec, s[{sEXLO}:{sEXHI}]", l, "s_mov_b64 exec, -1"])
                            g_at = a + (k_ * (b - a)) // 8
                            for ph in range(o.stag):
                                if o.stag == 1: add(g_at, "txt", body)
                                else:
                                    lb = f"B_sg{p}_{k_}_{ph}"
                                    add(g_at + ph, "txt", [f"s_bitcmp1_b32 s{sSTAG}, {ph}", f"s_cbranch_scc0 {lb} ; @hook=STG{ph}n"] + body + [f"{lb}:"])
                            add(g_at + o.stag - 1, "cnt", tg_[0])
                            k_ += 1
                else:
                    for i, g_ in enumerate(gl_): add(a + (i * (b - a)) // len(gl_), "ld", g_)
            need = {(1, 0): g0, (1, 1): g0 + 12, (2, 0): g0 + 24, (2, 1): g0 + 36, (3, 0): base, (3, 1): base}
            for (p, h), at in need.items():
                at -= 1
                if (p, h) == (3, 0): at -= o.t11c + 1
                c = chk(p, h)
                add(at - o.t11c, "wait", [f"G{p}{h}"])
                if (p, h) == (1, 0): add(at - o.t11c, "txt", s.stamp_lines("g1"))
                for i, l in enumerate(c[:-2]): add(at - o.t11c + (i * (o.t11c + 1)) // len(c[:-2]), "txt", [l])
                add(at, "txt", c[-2:] + [f"s_cbranch_scc1 B_gs{p}{h} ; @hook=GSLOW", f"B_gs{p}{h}r:"] + s.stamp_lines(f"k{p}{h}"))
                slow(p, h)
            for (at, nm) in eval(o.t11s):
                add(at, "txt", s.stamp_lines(nm + "a") + ["s_barrier"] + s.stamp_lines(nm))
            gaps = [[] for _ in range(n)]
            for (at, _, kind, pay) in sorted(ev, key=lambda e: (e[0], e[1])):
                if kind == "txt": gaps[at] += pay
                elif kind == "ld": gaps[at] += mat2([pay])[0]
                elif kind == "cnt": q.issue(pay)
                else:
                    k = q.wait(pay)
                    if k is not None: gaps[at].append(f"s_waitcnt vmcnt({k})")
            gaps[g0 - 1] += s.stamp_lines("own")
            for d in range(3):
                spread(gaps, pub(d), base + 8*d + 8 + 3, base + 8*d + 8 + 7)
            gaps[base] = [f"s_mul_i32 s71, s{sHG}, {3*PSZ}", "s_add_u32 s73, s73, s71"] + gaps[base]
            stream(fr, None, gapfill=gaps, premf=premf)
        def tail12():
            used0 = set(x for v in wo0_use.values() for x in v)
            assert used0 == {(0, 0), (0, 1)} and wo1_issue == {15: [(0, 0)]}
            assert o.defer and o.tg == 2 and o.wrot
            assert set(x for v in of0_issue.values() for x in v) == {1, 2, 3}
            SY = P[0] + 3*8192 + 256
            vS0, vSY, vSG = (12, 13, 16) if o.t12v != 4 else (12, 2, 3)
            fw = lambda p: frags_c([(wo0_slot[(p, 0)], 2*p, False), (wo0_slot[(p, 1)], 2*p + 1, False)])
            def wl_vm(tags):
                n = q.wait(tags)
                return [f"s_waitcnt vmcnt({n})"] if n is not None else []
            A(f"v_mov_b32 v{vSY}, {SY}")
            A(f"s_lshl_b32 s70, s{sW}, 2")
            A(f"s_add_u32 s70, s70, {SY}")
            A(f"v_mov_b32 v{vSG}, s70")
            A(f"v_add_u32 v{vS0}, {hex((-W[0]) & 0xffffffff)}, v{vQW}")
            A("v_mov_b32 v28, 0")
            A("s_mov_b64 exec, 1")
            A(f"ds_write_b32 v{vSG}, v28")
            A(f"ds_write_b32 v{vSG}, v28 offset:16")
            A("s_mov_b64 exec, -1")
            s.stamp("preE")
            wait_vm([f"O0{p}{h}" for p in (1, 2, 3) for h in range(2)] + ["F1", "O100"])
            s.stamp("wE")
            A(f"v_add_u32 v{vOL}, {hex((P[0] - W[1]) & 0xffffffff)}, v{vOL}")
            A(f"v_add_u32 v{vOL2}, {hex((P[0] - W[1]) & 0xffffffff)}, v{vOL2}")
            A("s_waitcnt lgkmcnt(0)")
            A("s_barrier")
            s.stamp("E")
            W1S = {(1, 0): W[0], (1, 1): W[1], (2, 0): P[1], (2, 1): P[2], (3, 0): W[2], (3, 1): W[3]}
            if o.t12v == 4: W1S = dict(wo1_slot)
            own = frags_c([(wo1_slot[(0, 0)], 0, False), (wo1_slot[(0, 1)], 1, False)])
            if o.t12o: own_d3 = [f for f in own if f[4] == 3]; own = [f for f in own if f[4] < 3]
            else: own_d3 = []
            fr = fw(1) + fw(2) + fw(3) + own
            g0 = len(fr)
            for p in (1, 2):
                fr += [f for f in frags_c([(W1S[(p, 0)], 2*p, False), (W1S[(p, 1)], 2*p + 1, False)]) if f[4] < 3]
            base = len(fr)
            for d in range(3):
                for half in range(2):
                    for j in range(4):
                        fr.append((W1S[(3, half)], 6 + half, False, j, d, half))
            fr += own_d3
            for p in (1, 2, 3):
                for half in range(2):
                    for j in range(4):
                        fr.append((W1S[(p, half)], 2*p + half, False, j, 3, half))
            gaps = [[] for _ in fr]
            def sig(at, level):
                gaps[at] += [f"v_mov_b32 v27, {level}", "s_mov_b64 exec, 1", f"ds_write_b32 v{vSG}, v27", "s_mov_b64 exec, -1"]
            nchk = [0]
            def need(at, level, nm=None):
                n = nchk[0]; nchk[0] += 1
                test = ["v_min3_u32 v28, v28, v29, v30", "v_min_u32 v28, v28, v31", "v_readfirstlane_b32 s70, v28", f"s_cmp_ge_u32 s70, {level}"]
                gaps[at - 3] += [f"ds_read_b128 v[28:31], v{vSY} offset:16"]
                gaps[at] += ["s_waitcnt lgkmcnt(6)"] + test + [f"s_cbranch_scc0 B_n{n} ; @hook=GSLOW", f"B_n{n}r:"] + (s.stamp_lines(nm) if nm else [])
                t7_slow.extend([f"B_n{n}:", f"s_mov_b32 s{sSPIN}, 0", f"B_n{n}l:", f"ds_read_b128 v[28:31], v{vSY} offset:16",
                                f"s_add_u32 s{sSPIN}, s{sSPIN}, 1", "s_waitcnt lgkmcnt(0)"] + test +
                               [f"s_cbranch_scc1 B_n{n}r ; @taken", f"s_cmp_lt_u32 s{sSPIN}, {o.spin * 8}", f"s_cbranch_scc1 B_n{n}l ; @nottaken", f"s_branch B_n{n}r"])
            def unit_reads(p, vaddr, off, a, b):
                rd = [[f"ds_read_b128 {vr(X + 16*(2*p + (k >> 2)) + 4*(k & 3), 4)}, v{vaddr} offset:{off + k*1024} ; @own"] for k in range(8)]
                spread(gaps, rd, a, b)
            rd_ = []
            for half in range(2):
                for j in range(4):
                    rd_.append([f"ds_read_b128 {vr(X+16*half+4*j,4)}, v{(vOL, vOL2)[half]} offset:{j*512} ; @own"])
            spread(gaps, rd_, 2, 14)
            gaps[31] += wl_vm("F2") + s.stamp_lines("U0"); sig(31, 2)
            gaps[63] += wl_vm("F3") + s.stamp_lines("U1"); sig(63, 3)
            gaps[95] += s.stamp_lines("U2"); sig(95, 4)
            ap_ = [[l] for l in s.capture(addr_prep)]
            spread(gaps, ap_, 66, 92)
            h1 = 96 + len(own) // 2
            c = eval(o.t12c)
            if o.t12v == 4:
                gl = lambda p: of_mem(1, p, 0, f"G{p}") + of_mem(1, p, 1, f"G{p}")
                need(h1 - 7, 1, "n2")
                pl = [f"s_lshl_b32 s72, s{sW}, 2", f"s_add_u32 s72, s72, {FLAG_BASE}", "s_mov_b64 exec, 7",
                      f"buffer_load_dword v{VP}, v21, {srd(sWS)}, s72 offen sc1", "s_mov_b64 exec, -1"]
                q.issue("POLL1"); gaps[96 + o.t8p] += pl
                gaps[g0 - 1] += s.stamp_lines("own")
                stream(fr[:g0], None, gapfill=gaps[:g0])
                wait_vm("POLL1")
                flag_check("2")
                s.stamp("poll1")
                for g_ in mat2(gl(1) + gl(2)): s.emit(g_)
                fr2 = fr[g0:]; gaps = gaps[g0:]; base -= g0
                for g_ in gaps: assert not g_
                n = nchk[0]; nchk[0] += 1
                test = ["v_min3_u32 v28, v28, v29, v30", "v_min_u32 v28, v28, v31", "v_readfirstlane_b32 s70, v28", "s_cmp_ge_u32 s70, 2"]
                s.emit([f"ds_read_b128 v[28:31], v{vSY} offset:16", "s_waitcnt lgkmcnt(0)"] + test + [f"s_cbranch_scc0 B_n{n} ; @hook=GSLOW", f"B_n{n}r:"])
                t7_slow.extend([f"B_n{n}:", f"s_mov_b32 s{sSPIN}, 0", f"B_n{n}l:", f"ds_read_b128 v[28:31], v{vSY} offset:16",
                                f"s_add_u32 s{sSPIN}, s{sSPIN}, 1", "s_waitcnt lgkmcnt(0)"] + test +
                               [f"s_cbranch_scc1 B_n{n}r ; @taken", f"s_cmp_lt_u32 s{sSPIN}, {o.spin * 8}", f"s_cbranch_scc1 B_n{n}l ; @nottaken", f"s_branch B_n{n}r"])
                g1w = wl_vm("G1")
                spread(gaps, mat2(gl(3)), 0, o.t7h)
                need(24 - 7, 3, "n5")
                gaps[23] += wl_vm("G2")
                need(48 - 7, 4, "n7")
                gaps[47] += wl_vm("G3") + s.stamp_lines("Tc")
                for d in range(3):
                    spread(gaps, pub(d), base + 8*d + 8 + 3, base + 8*d + 8 + 7)
                gaps[base] = [f"s_mul_i32 s71, s{sHG}, {3*PSZ}", "s_add_u32 s73, s73, s71"] + gaps[base]
                stream(fr2, None, gapfill=gaps, premf={0: g1w + s.stamp_lines("g1")})
                return
            if o.t12v == 3:
                assert g0 + c[0] <= g0 - 7 and g0 + c[1] <= g0 + 24 - 7
                need(h1 - 7, 1, "n2")
                need(g0 + c[0], 3, "n3"); unit_reads(1, vS0, 0, g0 + c[0] + 1, g0 + c[0] + 7); sig(g0 + c[0] + 8, 5)
                need(g0 + c[1], 5, "n4"); unit_reads(2, vQW, W[2] - W[0], g0 + c[1] + 1, g0 + c[1] + 7); sig(g0 + c[1] + 8, 6)
                need(base + c[2], 6, "n6"); unit_reads(3, vS0, 0, base + c[2] + 1, base + c[2] + 7)
                need(base - 7, 7, "n7")
            elif o.t12v == 0:
                need(h1 - 7, 3, "n2")
                need(g0 + c[0], 4, "n3")
            else:
                need(h1 - 7, 1, "n2")
                need(g0 + c[0], 2, "n3")
            if o.t12v != 3:
                unit_reads(1, vS0, 0, g0 + c[0] + 1, g0 + c[0] + 7); sig(g0 + c[0] + 8, 5)
                if o.t12v: need(g0 - 7, 3, "nw1")
                need(g0 + c[1], 5, "n4"); unit_reads(2, vQW, W[2] - W[0], g0 + c[1] + 1, g0 + c[1] + 7); sig(g0 + c[1] + 8, 6)
                need(g0 + 24 - 7, 6, "n5")
                need(base + c[2], 7, "n6"); unit_reads(3, vS0, 0, base + c[2] + 1, base + c[2] + 7)
                need(base - 7, 8, "n7")
            gaps[g0 - 1] += s.stamp_lines("own")
            for d in range(3):
                spread(gaps, pub(d), base + 8*d + 8 + 3, base + 8*d + 8 + 7)
            gaps[base] = [f"s_mul_i32 s71, s{sHG}, {3*PSZ}", "s_add_u32 s73, s73, s71"] + gaps[base]
            stream(fr, None, gapfill=gaps)
        t7_slow = []
        {12: tail12, 11: tail11, 10: tail10, 9: tail9, 8: tail8, 1: tail1, 2: tail2, 3: tail3, 5: tail5, 6: tail6, 7: tail7}[o.tail]()
        s.stamp("oproj")
        if not o.tg:
            A(f"s_lshl_b32 s70, s{sMYB}, 7")
            A(f"s_lshl_b32 s72, s{sW}, 2")
            A(f"s_add_u32 s72, s72, {FLAG_BASE + 16}")
            A("s_add_u32 s70, s70, s72")
            A("v_mov_b32 v20, 1")
            A("s_waitcnt vmcnt(0)")
            s.stamp("pst")
            A("s_mov_b64 exec, 1")
            A(f"buffer_store_dword v20, off, {srd(sWS)}, s70 sc1")
        if o.cl & 2:
            A("s_mov_b64 exec, -1")
            for g_ in mat2(of_mem(1, 3, 0, "CL1", store=True, clean=True) + of_mem(1, 3, 1, "CL1", store=True, clean=True)): s.emit(g_)
            A(f"s_lshl_b32 s72, s{sW}, 2")
            A(f"s_add_u32 s72, s72, {FLAG_BASE + 16}")
        if not o.tg:
            wave_poll(22, "poll2")
            s.stamp("poll2")
        if o.tg != 2:
            A(f"s_mul_i32 s71, s{sHG}, {3*PSZ}")
            A("s_add_u32 s73, s73, s71")
        R = 64
        OWN = ACC + 48
        A(f"s_mov_b64 exec, s[{sEXLO}:{sEXHI}]")
        def part_iss(src, dst): return sum((part_ld(src, dst, rq) for rq in range(4)), [])
        def part_chk(dst):
            r = [f"v_xor_b32 v25, s{sTG[0]}, v{dst}", f"v_xor_b32 v26, s{sTG[1]}, v{dst+1}"]
            r += [f"v_bitop3_b32 v{25 + (i & 1)}, v{25 + (i & 1)}, v{dst+i}, s{sTG[i % 4]} bitop3:0xf6" for i in range(2, 16)]
            return r + ["v_or_b32 v25, v25, v26", "v_and_b32 v25, v24, v25", "v_cmp_ne_u32 vcc, 0, v25", "s_nop 0"]
        def part_add(dst): return [f"v_pk_add_f32 {vr(OWN+2*i,2)}, {vr(OWN+2*i,2)}, {vr(dst+2*i,2)}" for i in range(8)]
        def out_addr():
            A(f"s_mul_i32 s72, s{sB}, {112*2048}")
            A(f"s_lshl_b32 s71, s{sBR}, 10")
            A("s_add_u32 s72, s72, s71")
            A(f"s_lshl_b32 s71, s{sHP}, 8")
            A("s_add_u32 s72, s72, s71")
            A(f"s_lshl_b32 s71, s{sHG}, 6")
            A("s_add_u32 s72, s72, s71")
        tg2_slow = []
        if o.tg == 2:
            order = [(2, R), (1, R + 16), (0, R + 32)]
            A(f"s_mov_b32 s{sSPIN}, 0")
            if o.tge < 0: s.emit(part_iss(2, R))
            s.emit(part_iss(1, R + 16))
            if o.tgd == 0: s.emit(part_iss(0, R + 32))
            out_addr()
            for k_, (src, dst) in enumerate(order):
                later = {0: 4 + (4 if o.tgd == 0 else 0), 1: (4 if o.tgd <= 1 else 0), 2: 0}[k_]
                A(f"s_waitcnt vmcnt({later})")
                if k_ == 0: s.stamp("l2")
                if k_ == 1: s.stamp("l1")
                if o.tgd == k_ + 1: s.emit(part_iss(0, R + 32))
                s.emit(part_chk(dst))
                A(f"s_cbranch_vccnz B_r{src} ; @nottaken")
                s.lab(f"B_r{src}r")
                s.emit(part_add(dst))
                tg2_slow += [f"B_r{src}:", f"s_add_u32 s{sSPIN}, s{sSPIN}, 1", f"s_cmp_ge_u32 s{sSPIN}, {min(o.spin, 4096)}",
                             f"s_cbranch_scc1 B_r{src}r ; @nottaken"] + part_iss(src, dst) + ["s_waitcnt vmcnt(0)"] + part_chk(dst) + \
                            [f"s_cbranch_vccnz B_r{src} ; @nottaken", f"s_branch B_r{src}r"]
            s.stamp("poll2")
            if o.stamp and "nrt" in o.stamps.split(","):
                r_ = STAMP_REGS[o.stamps.split(",").index("nrt")]
                s.emit(["s_waitcnt lgkmcnt(0)", f"s_mul_i32 s70, s{sSPIN}, 1000", f"s_add_u32 s{r_}, s90, s70", f"s_addc_u32 s{r_+1}, s91, 0"])
            q.drain()
            A("s_mov_b32 s70, s72")
        if o.tg == 1:
            A(f"s_mov_b32 s{sSPIN}, 0")
            s.lab("B_rt")
        for src in (range(3) if o.tg != 2 else ()):
            for rq in range(4):
                A(f"s_add_u32 s70, s73, {src*PSZ + rq*3584}")
                A(f"buffer_load_dwordx4 {vr(R+16*src+4*rq,4)}, v23, {srd(sWS)}, s70 offen sc1{s.nthl}")
        if o.tg == 1:
            for src in range(3):
                A(f"s_waitcnt vmcnt({8 - 4*src})")
                for i in range(16):
                    acc = 25 + (i & 1)
                    if src == 0 and i < 2: A(f"v_xor_b32 v{acc}, s{sTG[i % 4]}, v{R+16*src+i}")
                    else: A(f"v_bitop3_b32 v{acc}, v{acc}, v{R+16*src+i}, s{sTG[i % 4]} bitop3:0xf6")
            A("v_or_b32 v25, v25, v26")
            A("v_and_b32 v25, v24, v25")
            A("v_cmp_ne_u32 vcc, 0, v25")
            A("s_nop 0")
            A("s_cbranch_vccz B_rtd ; @taken")
            A(f"s_add_u32 s{sSPIN}, s{sSPIN}, 1")
            A(f"s_cmp_lt_u32 s{sSPIN}, {min(o.spin, 4096)}")
            A("s_cbranch_scc1 B_rt")
            s.lab("B_rtd")
            s.stamp("poll2")
            if o.stamp and "nrt" in o.stamps.split(","):
                r_ = STAMP_REGS[o.stamps.split(",").index("nrt")]
                s.emit(["s_waitcnt lgkmcnt(0)", f"s_mul_i32 s70, s{sSPIN}, 1000", f"s_add_u32 s{r_}, s90, s70", f"s_addc_u32 s{r_+1}, s91, 0"])
            q.drain()
        if o.tg != 2:
            out_addr()
            A("s_mov_b32 s70, s72")
            A("s_waitcnt vmcnt(8)")
            s.emit(part_add(R))
            A("s_waitcnt vmcnt(4)")
            s.emit(part_add(R + 16))
            A("s_waitcnt vmcnt(0)")
            s.emit(part_add(R + 32))
        for i in range(8):
            A(f"v_cvt_pk_bf16_f32 v{32+i}, v{OWN+2*i}, v{OWN+2*i+1}")
        for h in range(2):
            A(f"buffer_store_dwordx4 {vr(32+4*h,4)}, v19, {srd(sOUT)}, s70 offen offset:{h*32}{['', ' sc1', ' sc0 sc1', ' nt', ' sc1 nt'][o.outsc]}")
        if o.tg:
            A(f"s_cmp_lg_u32 s{sHG}, 0")
            A("s_cbranch_scc1 B_ncell")
            s.emit(nonce_addr(72))
            A(f"v_mov_b32 v20, s{sNC}")
            A("s_mov_b64 exec, 1")
            A(f"buffer_store_dword v20, off, {srd(sWS)}, s72 sc1")
            s.lab("B_ncell")
        A("s_mov_b64 exec, -1")
        if o.dbgst:
            A("s_waitcnt vmcnt(0)")
            A(f"s_or_b32 s70, s{sW}, s{sHG}")
            A(f"s_or_b32 s70, s70, s{sHP}")
            A("s_cmp_lg_u32 s70, 0")
            A("s_cbranch_scc1 L_end")
            s.stamp("end"); s.stamp("cend", True)
            A("s_waitcnt lgkmcnt(0)")
            r = STAMP_REGS
            A(f"s_sub_u32 s70, s{r[5]}, s{r[1]}")
            A(f"s_sub_u32 s71, s{r[4]}, s{r[0]}")
            A(f"s_sub_u32 s72, s{r[2]}, s{r[1]}")
            A(f"s_sub_u32 s73, s{r[3]}, s{r[1]}")
            for i in range(4): A(f"v_mov_b32 v{32+i}, s{70+i}")
            A(f"s_and_b32 s71, s{sGRP}, {hex(0xfffffff0)}")
            A("s_mov_b64 exec, 1")
            A(f"buffer_store_dwordx4 v[32:35], off, {srd(sDBG)}, s71 sc1")
            A("s_endpgm")
        if o.stamp and not o.dbgst:
            A("s_waitcnt vmcnt(0)")
            A(f"s_cmp_lg_u32 s{sW}, {o.stw}")
            A("s_cbranch_scc1 L_end")
            s.stamp("end"); s.stamp("cend", True)
            A("s_waitcnt lgkmcnt(0)")
            n = len(o.stamps.split(","))
            assert n <= len(STAMP_REGS)
            if o.diagd:
                na, nb, kk = o.diagd.split(",")
                nm = o.stamps.split(",")
                ra, rb, re_ = (STAMP_REGS[nm.index(x)] for x in (na, nb, "end"))
                A(f"s_sub_u32 s70, s{rb}, s{ra}")
                A(f"s_mul_i32 s70, s70, {kk}")
                A("s_min_u32 s70, s70, 50000")
                s.lab("L_dg")
                A("s_memrealtime s[72:73]")
                A("s_waitcnt lgkmcnt(0)")
                A(f"s_sub_u32 s71, s72, s{re_}")
                A("s_cmp_lt_u32 s71, s70")
                A("s_cbranch_scc1 L_dg ; @nottaken")
            A("s_lshl_b32 s70, s2, 8")
            A(f"s_add_u32 s70, s70, {STAMP_BASE}")
            A("s_mov_b64 exec, 1")
            for i in range(n):
                r = STAMP_REGS[i]
                A(f"v_mov_b32 v32, s{r}"); A(f"v_mov_b32 v33, s{r+1}")
                A(f"buffer_store_dwordx2 v[32:33], off, {srd(sWS)}, s70 offset:{8*i}")
                A("s_nop 1")
        A("s_endpgm")
        s.emit(tg2_slow)
        s.L += t7_slow
        if o.xs:
            s.lab("B_wb")
            A("buffer_wbl2 sc1")
            A("s_waitcnt vmcnt(0)")
            A("s_branch B_wbr")
        s.lab("B_slow0")
        A(f"s_mov_b32 s{sSPIN}, 0")
        s.lab("B_slow0l")
        s.emit(mid_poll(True))
        A("s_waitcnt vmcnt(0)")
        s.emit(mid_check())
        A("s_cbranch_scc1 B_slow0r ; @taken" if not (o.abl & 32) else "s_nop 0")
        A(f"s_add_u32 s{sSPIN}, s{sSPIN}, 1")
        A(f"s_cmp_lt_u32 s{sSPIN}, {o.spin}")
        A("s_cbranch_scc1 B_slow0l")
        A("s_branch B_slow0r" if not (o.abl & 32) else "s_endpgm")
        s.lab("B_slow1")
        A(f"s_lshl_b32 s72, s{sW}, 2")
        A(f"s_add_u32 s72, s72, {FLAG_BASE + 32}")
        wave_poll(21, "slow1l", drain=False, mask=(52 if o.tail == 10 else None))
        A("s_branch B_slow1r" if not (o.abl & 4) else "s_endpgm")
        if o.tail in (2, 3) or o.t1p or (o.tail in (8, 9) and o.t8p >= 0) or (o.tail == 12 and o.t12v == 4):
            s.lab("B_slow2")
            A(f"s_lshl_b32 s72, s{sW}, 2")
            A(f"s_add_u32 s72, s72, {FLAG_BASE}")
            wave_poll(21, "slow2l", drain=False)
            A("s_branch B_slow2r")

    def build(s):
        s.common()
        s.waveA()
        s.waveB()
        s.lab("L_end")
        s.A("s_endpgm")
        lines = [l for l in s.L if l is not None]
        cfgs = []
        for wave in (0, 1, 3, 4, 5, 7):
            cfgs.append((f"wg5w{wave}", {2: 5}, {"WAVE": wave, "POLL": 0x03030303, "POLL3": 0x03030303}))
        if s.opt.tail == 10:
            for wave in (0, 3, 4, 7):
                cfgs.append((f"wg5odd{wave}", {2: 5}, {"WAVE": wave, "POLL": 0x03030303, "POLL3": 0x03030303, "ODD": 1}))
        if s.opt.tail in (11, 12):
            for wave in (0, 3, 4, 7):
                cfgs.append((f"gslow{wave}", {2: 5}, {"WAVE": wave, "POLL": 0x03030303, "POLL3": 0x03030303, "GSLOW": 1}))
        cfgs.append(("allresc", {2: 5}, {"WAVE": 1, "ALLRESC": 1}))
        cfgs.append(("slow7", {2: 5}, {"WAVE": 5, "POLL": 0x03030303, "POLL3": 0x03030303, "SLOW7": 1}))
        cfgs.append(("extra", {2: 256}, {"WAVE": 0}))
        if s.opt.stag > 1:
            for (nm_, i_, h_) in cfgs:
                if "WAVE" in h_:
                    for ph in range(s.opt.stag): h_[f"STG{ph}n"] = 0 if (h_["WAVE"] & (s.opt.stag - 1)) == ph else 1
            for wave in (6,):
                h_ = {"WAVE": wave, "POLL": 0x03030303, "POLL3": 0x03030303}
                for ph in range(s.opt.stag): h_[f"STG{ph}n"] = 0 if (wave & (s.opt.stag - 1)) == ph else 1
                cfgs.append((f"wg5w{wave}", {2: 5}, h_))
        lines = asmlib.finalize(lines, cfgs, verbose=True)
        return "\n".join(lines)

if __name__ == "__main__":
    ap = argparse.ArgumentParser()
    ap.add_argument("-o", default="k8.s")
    ap.add_argument("--stamp", action="store_true")
    ap.add_argument("--cyc", action="store_true")
    ap.add_argument("--stamps", default="start,pro,s8,E,poll1,oproj,pst,poll2,end")
    ap.add_argument("--nt", type=int, default=1)
    ap.add_argument("--prioA", type=int, default=0)
    for n_ in ("ntw", "ntx", "nto", "nths", "nthl"): ap.add_argument("--" + n_, type=int, default=0)
    ap.add_argument("--astamp", type=int, default=-1)
    ap.add_argument("--la", type=int, default=6)
    ap.add_argument("--nbub", type=int, default=3)
    ap.add_argument("--rot", type=int, default=1)
    ap.add_argument("--k0at", type=int, default=5)
    ap.add_argument("--p1at", type=int, default=7)
    ap.add_argument("--pf", type=int, default=0)
    ap.add_argument("--f0", default="{13: [1], 14: [2], 15: [3]}")
    ap.add_argument("--po0", type=int, default=11)
    ap.add_argument("--defer", type=int, default=1)
    ap.add_argument("--cpf", type=int, default=1)
    ap.add_argument("--dbgst", type=int, default=0)
    ap.add_argument("--g2at", type=int, default=8)
    ap.add_argument("--order", default="wfkp")
    ap.add_argument("--spin", type=int, default=131072)
    ap.add_argument("--outsc", type=int, default=0)
    ap.add_argument("--osc", type=int, default=15)
    ap.add_argument("--wb", type=int, default=0)
    ap.add_argument("--ntq", default="[]")
    ap.add_argument("--ntxc", default="[]")
    ap.add_argument("--ntoc", default="[]")
    ap.add_argument("--ablw", default="[]")
    ap.add_argument("--fl0at", type=int, default=0)
    ap.add_argument("--s0sp", default="")
    ap.add_argument("--tail", type=int, default=1)
    ap.add_argument("--s0at", type=int, default=9)
    ap.add_argument("--fpre", type=int, default=0)
    ap.add_argument("--abl", type=int, default=0)
    ap.add_argument("--w0i", default="{7: [(0,0)], 8: [(0,1)], 11: [(1,0)], 12: [(1,1), (2,0)], 13: [(2,1)], 14: [(3,0)], 15: [(3,1)]}")
    ap.add_argument("--w0u", default="{9: [(0,0)], 10: [(0,1)], 15: [(1,0), (1,1)], 16: [(2,0), (2,1)]}")
    ap.add_argument("--w1i", default="{15: [(0,0)], 16: [(1,0), (1,1)]}")
    ap.add_argument("--ords", default="{}")
    ap.add_argument("--ilv", type=int, default=0)
    ap.add_argument("--ilv0", type=int, default=1)
    ap.add_argument("--wrot", type=int, default=0)
    ap.add_argument("--cl", type=int, default=0)
    ap.add_argument("--fgl", type=int, default=0)
    ap.add_argument("--pro2", type=int, default=0)
    ap.add_argument("--dq", type=int, default=0)
    ap.add_argument("--apf", default="{}")
    ap.add_argument("--apfpos", type=int, default=0)
    ap.add_argument("--apfnt", default="")
    ap.add_argument("--t3a", type=int, default=0)
    ap.add_argument("--t3p", type=int, default=0)
    ap.add_argument("--t3g", type=int, default=0)
    ap.add_argument("--lead", type=int, default=0)
    ap.add_argument("--pro2a", type=int, default=0)
    ap.add_argument("--s7f", type=int, default=0)
    ap.add_argument("--r3", type=int, default=0)
    ap.add_argument("--q0at", type=int, default=5)
    ap.add_argument("--p2g", type=int, default=0)
    ap.add_argument("--bkv", default="{}")
    ap.add_argument("--p2at", type=int, default=99)
    ap.add_argument("--wbn", type=int, default=0)
    ap.add_argument("--kpf", type=int, default=0)
    ap.add_argument("--kpf0", default="[]")
    ap.add_argument("--kpfnt", default=" nt")
    ap.add_argument("--kpfn", type=int, default=1)
    ap.add_argument("--tg", type=int, default=0)
    ap.add_argument("--krot", type=int, default=0)
    ap.add_argument("--tge", type=int, default=-1)
    ap.add_argument("--tgd", type=int, default=1)
    ap.add_argument("--apre", type=int, default=0)
    ap.add_argument("--pdep", type=int, default=2)
    ap.add_argument("--kp0", default="[]")
    ap.add_argument("--kp0nt", default="")
    ap.add_argument("--s0q", type=int, default=0)
    ap.add_argument("--s0z", type=int, default=16)
    ap.add_argument("--kpb", default="[]")
    ap.add_argument("--kpbs", type=int, default=64)
    ap.add_argument("--t1p", type=int, default=0)
    ap.add_argument("--abar", type=int, default=0)
    ap.add_argument("--stw", type=int, default=0)
    ap.add_argument("--mf", default="[]")
    ap.add_argument("--prioB", default="{}")
    ap.add_argument("--xs", type=int, default=0)
    ap.add_argument("--mp", type=int, default=8)
    ap.add_argument("--diagx", type=int, default=0)
    ap.add_argument("--diagd", default="")
    ap.add_argument("--hgx", type=int, default=0)
    ap.add_argument("--t5g", type=int, default=0)
    ap.add_argument("--t9g", type=int, default=0)
    ap.add_argument("--t8a", type=int, default=0)
    ap.add_argument("--t8p", type=int, default=-1)
    ap.add_argument("--t8f", type=int, default=16)
    ap.add_argument("--t7p", type=int, default=16)
    ap.add_argument("--t7g", type=int, default=1)
    ap.add_argument("--t7h", type=int, default=12)
    ap.add_argument("--t6v", type=int, default=1)
    ap.add_argument("--pod", type=int, default=1)
    ap.add_argument("--mpd", type=int, default=1)
    ap.add_argument("--wpf", default="{}")
    ap.add_argument("--fpf", type=int, default=-1)
    ap.add_argument("--fpfm", default="")
    ap.add_argument("--xpos", type=int, default=1)
    ap.add_argument("--t6g", default="(8, 24)")
    ap.add_argument("--t6h", type=int, default=12)
    ap.add_argument("--t6o", type=int, default=0)
    ap.add_argument("--pz", type=int, default=-1)
    ap.add_argument("--t12o", type=int, default=0)
    ap.add_argument("--t12v", type=int, default=0)
    ap.add_argument("--t12c", default="[-20, -10, -18]")
    ap.add_argument("--nox", type=int, default=0)
    ap.add_argument("--stag", type=int, default=0)
    ap.add_argument("--w1s", default="{}")
    ap.add_argument("--t11a", default="[]")
    ap.add_argument("--t11b", default="[]")
    ap.add_argument("--t11s", default="[]")
    ap.add_argument("--t11g", default="[(0, 8), (12, 24), (30, 44)]")
    ap.add_argument("--t11c", type=int, default=2)
    ap.add_argument("--t11p", type=int, default=20)
    ap.add_argument("--t11w", type=int, default=0)
    ap.add_argument("--t11l", type=int, default=1)
    ap.add_argument("--t10p", type=int, default=12)
    ap.add_argument("--t10d", type=int, default=0)
    o = ap.parse_args()
    if o.xs:
        if o.xs < 3: o.lead = 0
        o.osc &= ~3
    g = Gen(o)
    body = g.build()
    k = kernel_text(NAME + "_kernel", body, vgpr=256)
    hdr = ["; @launch grid=(256,1,1) block=(512,1,1) lds=163840"]
    if o.stamp and not o.dbgst: hdr.append("; STAMPS " + o.stamps)
    if o.astamp >= 0: hdr.append("; ASTAMP")
    if o.cyc: hdr.append("; STAMPCYC")
    open(o.o, "w").write(file_text(hdr, [k]))
    print("wrote", o.o, len(body.splitlines()), "lines")
```

```python
import re

def _regs(tok):
    tok = tok.strip()
    neg = tok.lstrip('-')
    if neg.startswith('abs(') and neg.endswith(')'): neg = neg[4:-1]
    if neg.startswith('|') and neg.endswith('|'): neg = neg[1:-1]
    m = re.fullmatch(r'([vsa])(\d+)', neg)
    if m: return [(m.group(1), int(m.group(2)))]
    m = re.fullmatch(r'([vsa])\[(\d+):(\d+)\]', neg)
    if m: return [(m.group(1), i) for i in range(int(m.group(2)), int(m.group(3)) + 1)]
    if neg == 'vcc': return [('s', 106), ('s', 107)]
    if neg == 'vcc_lo': return [('s', 106)]
    if neg == 'vcc_hi': return [('s', 107)]
    if neg == 'exec': return [('s', 126), ('s', 127)]
    if neg == 'exec_lo': return [('s', 126)]
    if neg == 'exec_hi': return [('s', 127)]
    if neg == 'm0': return [('s', 124)]
    if neg == 'scc': return []
    return []

TRANS = ('v_exp_f32', 'v_log_f32', 'v_rcp_f32', 'v_rsq_f32', 'v_sqrt_f32', 'v_sin_f32', 'v_cos_f32')
MFMA_PASSES = {'v_mfma_f32_32x32x16_bf16': 8, 'v_mfma_f32_16x16x32_bf16': 4}

class Inst:
    __slots__ = ('text', 'op', 'ops', 'mods', 'kind', 'rd', 'wr', 'label', 'dpp', 'note', 'passes', 'srcC', 'lds', 'nbytes')
    def __repr__(self): return self.text

def split_ops(s):
    out = []; depth = 0; cur = ''
    for ch in s:
        if ch in '[(': depth += 1
        if ch in '])': depth -= 1
        if ch == ',' and depth == 0: out.append(cur.strip()); cur = ''
        else: cur += ch
    if cur.strip(): out.append(cur.strip())
    return out

def parse(line):
    I = Inst(); I.text = line; I.label = None; I.dpp = False; I.note = ''; I.passes = 0; I.srcC = []; I.lds = False
    code = line.split(';')[0].strip()
    if ';' in line: I.note = line.split(';', 1)[1]
    I.rd = []; I.wr = []; I.ops = []; I.mods = ''; I.op = ''
    if not code: I.kind = 'empty'; return I
    if code.endswith(':'): I.kind = 'label'; I.label = code[:-1]; return I
    if code.startswith('.'): I.kind = 'directive'; return I
    parts = code.split(None, 1); op = parts[0]; rest = parts[1] if len(parts) > 1 else ''
    I.op = op
    ops = split_ops(rest)
    if ops:
        last = ops[-1].split()
        ops[-1] = last[0]; I.mods = ' '.join(last[1:])
    I.ops = ops
    base = re.sub(r'_(e32|e64|dpp|sdwa)$', '', op)
    R = lambda t: _regs(t)
    if 'quad_perm' in I.mods or 'row_' in I.mods or op.endswith('_dpp') or 'row_' in rest or 'quad_perm' in rest: I.dpp = True
    if op.startswith('v_mfma'):
        I.kind = 'mfma'; I.passes = MFMA_PASSES[op]
        I.wr = R(ops[0]); I.rd = R(ops[1]) + R(ops[2]) + R(ops[3]); I.srcC = R(ops[3])
    elif op.startswith('v_cmp'):
        I.kind = 'valu'; I.wr = R(ops[0]); I.rd = sum((R(o) for o in ops[1:]), [])
    elif base in ('v_readfirstlane_b32', 'v_readlane_b32'):
        I.kind = 'valu'; I.wr = R(ops[0]); I.rd = sum((R(o) for o in ops[1:]), [])
    elif base.startswith('v_permlane') and 'swap' in base:
        I.kind = 'valu'; I.wr = R(ops[0]) + R(ops[1]); I.rd = R(ops[0]) + R(ops[1])
    elif base in ('v_add_co_u32', 'v_sub_co_u32'):
        I.kind = 'valu'; I.wr = R(ops[0]) + R(ops[1]); I.rd = sum((R(o) for o in ops[2:]), [])
    elif base in ('v_addc_co_u32',):
        I.kind = 'valu'; I.wr = R(ops[0]) + R(ops[1]); I.rd = sum((R(o) for o in ops[2:]), [])
    elif op.startswith('v_'):
        I.kind = 'valu'; I.wr = R(ops[0]); I.rd = sum((R(o) for o in ops[1:]), [])
        if base in ('v_fmac_f32', 'v_pk_fmac_f32', 'v_writelane_b32'): I.rd += R(ops[0])
        if base == 'v_cndmask_b32' and len(ops) == 3: I.rd += R('vcc')
        if base == 'v_nop': I.wr = []; I.rd = []
    elif op.startswith('ds_read') or op.startswith('ds_bpermute') or op.startswith('ds_swizzle'):
        I.kind = 'ds_read'; I.wr = R(ops[0]); I.rd = sum((R(o) for o in ops[1:]), [])
    elif op.startswith('ds_write') or op.startswith('ds_add'):
        I.kind = 'ds_write'; I.rd = sum((R(o) for o in ops), [])
    elif op.startswith('buffer_load') or op.startswith('global_load'):
        if ' lds' in (' ' + I.mods) or 'load_lds' in op:
            I.kind = 'vm_dma'; I.lds = True; I.rd = sum((R(o) for o in ops), []) + R('m0')
        else:
            I.kind = 'vm_load'; I.wr = R(ops[0]); I.rd = sum((R(o) for o in ops[1:]), [])
    elif op.startswith('buffer_store') or op.startswith('global_store'):
        I.kind = 'vm_store'; I.rd = sum((R(o) for o in ops), [])
    elif op.startswith('buffer_atomic') or op.startswith('global_atomic'):
        I.kind = 'vm_store'; I.rd = sum((R(o) for o in ops), [])
        if 'sc0' in I.mods: I.kind = 'vm_load'; I.wr = R(ops[0])
    elif op.startswith('buffer_inv') or op.startswith('buffer_wbl2'):
        I.kind = 'vm_store'
    elif op.startswith('s_load') or op.startswith('s_memrealtime') or op.startswith('s_memtime') or op.startswith('s_buffer_load'):
        I.kind = 'smem'; I.wr = R(ops[0]); I.rd = sum((R(o) for o in ops[1:]), [])
    elif op == 's_waitcnt': I.kind = 'waitcnt'; I.mods = rest
    elif op == 's_nop': I.kind = 'nop'
    elif op == 's_barrier': I.kind = 'barrier'
    elif op == 's_endpgm': I.kind = 'end'
    elif op.startswith('s_cbranch') or op == 's_branch': I.kind = 'branch'
    elif op.startswith('s_cmp') or op.startswith('s_bitcmp'):
        I.kind = 'salu'; I.rd = sum((R(o) for o in ops), [])
    elif op in ('s_setprio', 's_sleep', 's_setreg_b32', 's_setreg_imm32_b32'): I.kind = 'salu'
    elif op.startswith('s_'):
        I.kind = 'salu'; I.wr = R(ops[0]); I.rd = sum((R(o) for o in ops[1:]), [])
        if op in ('s_addk_i32', 's_mulk_i32'): I.rd += R(ops[0])
        if op.endswith('saveexec_b64'): I.wr += R('exec'); I.rd += R('exec')
    else:
        raise ValueError('unknown instruction: ' + line)
    return I

M32 = 0xffffffff
def _imm(tok):
    tok = tok.strip()
    try:
        if tok.startswith('0x') or tok.startswith('-0x'): return int(tok, 16) & M32
        return int(tok) & M32
    except ValueError:
        pass
    fl = {'1.0': 0x3f800000, '0.5': 0x3f000000, '2.0': 0x40000000, '4.0': 0x40800000, '-1.0': 0xbf800000}
    if tok in fl: return fl[tok]
    return None

class Trace:
    pass

def run_trace(insts, labels, init_s, hooks=None, maxn=2000000):
    S = dict(init_s); scc = None; pc = 0; out = []
    hooks = hooks or {}
    def val(tok):
        r = _regs(tok)
        if r:
            if r[0][0] != 's': return None
            if len(r) == 1: return S.get(r[0][1])
            lo, hi = S.get(r[0][1]), S.get(r[1][1])
            return None if lo is None or hi is None else lo | (hi << 32)
        return _imm(tok)
    def put(tok, v):
        r = _regs(tok)
        if len(r) == 1: S[r[0][1]] = None if v is None else v & M32
        elif len(r) == 2:
            S[r[0][1]] = None if v is None else v & M32; S[r[1][1]] = None if v is None else (v >> 32) & M32
        else:
            for x in r: S[x[1]] = None
    n = 0
    while True:
        n += 1
        if n > maxn: raise RuntimeError('trace too long')
        I = insts[pc]
        if I.kind in ('empty', 'label', 'directive'): pc += 1; continue
        out.append(pc)
        op = I.op; o = I.ops
        if I.kind == 'end': break
        if I.kind == 'branch':
            tgt = labels[o[0]]
            if op == 's_branch': pc = tgt; continue
            if op in ('s_cbranch_scc0', 's_cbranch_scc1'):
                mh_ = re.search(r'@hook=(\w+)', I.note)
                if mh_: t = bool(hooks.get(mh_.group(1)))
                elif '@taken' in I.note: t = True
                elif '@nottaken' in I.note: t = False
                elif scc is None: raise RuntimeError('branch on unknown scc: ' + I.text + f' at {pc}')
                else: t = (scc == 1) == op.endswith('1')
            else:
                m_ = re.search(r'@takenif=(\d+):(0x[0-9a-f]+)', I.note)
                if m_: t = bool(hooks.get('ALLRESC')) or S.get(int(m_.group(1))) == int(m_.group(2), 16)
                elif '@taken' in I.note: t = True
                elif '@nottaken' in I.note or op in ('s_cbranch_execz',): t = False
                else: raise RuntimeError('branch needs hint: ' + I.text)
            pc = tgt if t else pc + 1; continue
        if I.kind == 'smem':
            for x in I.wr: S[x[1]] = None
        elif I.kind == 'valu':
            for x in I.wr:
                if x[0] == 's': S[x[1]] = None
            m = re.search(r'@val=(\w+)', I.note)
            if m and I.wr and I.wr[0][0] == 's': S[I.wr[0][1]] = hooks[m.group(1)]
        elif I.kind == 'salu':
            a = val(o[1]) if len(o) > 1 else None; b = val(o[2]) if len(o) > 2 else None
            def bin(f, sccf=None):
                nonlocal scc
                if a is None or b is None: put(o[0], None); scc = None if sccf else scc
                else:
                    r = f(a, b); put(o[0], r)
                    if sccf: scc = sccf(r)
            if op in ('s_mov_b32', 's_mov_b64', 's_movk_i32'):
                v = val(o[1])
                if op == 's_mov_b64' and not _regs(o[1]) and v is not None and o[1].strip().startswith('-'): v = v | (M32 << 32)
                put(o[0], v)
            elif op in ('s_add_u32', 's_add_i32'): bin(lambda x, y: x + y, lambda r: 1 if r > M32 else 0)
            elif op == 's_addc_u32': put(o[0], None if (a is None or b is None or scc is None) else a + b + scc); scc = None
            elif op in ('s_sub_u32', 's_sub_i32'): bin(lambda x, y: x - y, lambda r: 1 if r < 0 else 0)
            elif op == 's_mul_i32': bin(lambda x, y: x * y)
            elif op == 's_lshl_b32': bin(lambda x, y: (x << (y & 31)) & M32, lambda r: 1 if r else 0)
            elif op == 's_lshr_b32': bin(lambda x, y: x >> (y & 31), lambda r: 1 if r else 0)
            elif op in ('s_and_b32', 's_and_b64'): bin(lambda x, y: x & y, lambda r: 1 if r else 0)
            elif op in ('s_or_b32', 's_or_b64'): bin(lambda x, y: x | y, lambda r: 1 if r else 0)
            elif op in ('s_xor_b32', 's_xor_b64'): bin(lambda x, y: x ^ y, lambda r: 1 if r else 0)
            elif op == 's_min_u32': bin(min, None); scc = None
            elif op == 's_max_u32': bin(max, None); scc = None
            elif op == 's_addk_i32':
                x = val(o[0]); y = val(o[1]); put(o[0], None if x is None else x + y); scc = None
            elif op == 's_cselect_b32' or op == 's_cselect_b64':
                put(o[0], None if scc is None else (a if scc else b))
            elif op.startswith('s_cmp'):
                x = val(o[0]); y = val(o[1])
                if x is None or y is None: scc = None
                else:
                    c = op.split('_')[2]; sg = op.endswith('i32')
                    if sg:
                        x = x - (1 << 32) if x & 0x80000000 else x; y = y - (1 << 32) if y & 0x80000000 else y
                    scc = int({'eq': x == y, 'lg': x != y, 'lt': x < y, 'le': x <= y, 'gt': x > y, 'ge': x >= y}[c])
            elif op.startswith('s_bitcmp'):
                x = val(o[0]); y = val(o[1])
                scc = None if x is None or y is None else int(((x >> y) & 1) == (1 if 'bitcmp1' in op else 0))
            elif op.endswith('saveexec_b64'):
                put(o[0], None); scc = None
            elif op in ('s_setprio', 's_sleep'): pass
            elif op in ('s_getreg_b32', 's_getpc_b64'): put(o[0], None)
            else:
                if o: put(o[0], None)
                scc = None
        pc += 1
    return out

def _states(I):
    if I.kind == 'nop': return int(I.ops[0], 0) + 1
    return 1

def hazard_need(P, C):
    need = 0
    Pw = set(P.wr); Cr = set(C.rd); Cw = set(C.wr)
    Pwv = {x for x in Pw if x[0] in 'va'}; Pws = {x for x in Pw if x[0] == 's'}
    if P.kind == 'valu':
        if C.kind == 'mfma' and Pwv & Cr: need = max(need, 2)
        if C.kind == 'valu':
            if C.dpp and Pwv & {x for x in Cr}: need = max(need, 2)
            cb = re.sub(r'_(e32|e64|dpp|sdwa)$', '', C.op)
            if cb.startswith('v_permlane') and Pwv & (Cr | Cw): need = max(need, 2)
            if cb in ('v_readfirstlane_b32', 'v_readlane_b32') and Pwv & Cr: need = max(need, 1)
            pb = re.sub(r'_(e32|e64|dpp|sdwa)$', '', P.op)
            if pb in TRANS and C.op.replace('_e32', '').replace('_e64', '') not in TRANS and Pwv & Cr: need = max(need, 1)
            if Pws & Cr: need = max(need, 2)
        if C.kind == 'mfma':
            pb = re.sub(r'_(e32|e64|dpp|sdwa)$', '', P.op)
        if C.kind in ('vm_load', 'vm_store', 'vm_dma') and Pws & Cr: need = max(need, 5)
        if C.kind in ('salu', 'branch') and Pws & Cr: need = max(need, 1)
    if P.kind == 'mfma':
        n = {4: 8, 8: 12}[P.passes]
        if C.kind == 'mfma':
            srcAB = set(C.rd) - set(C.srcC)
            ab = set(_regs(C.ops[1]) + _regs(C.ops[2]))
            if Pw & ab: need = max(need, n)
            if Pw & set(C.srcC):
                if not (set(C.srcC) == Pw and C.passes == P.passes): need = max(need, {4: 6, 8: 10}[P.passes])
            if Pw & Cw and not (Cw == Pw and set(C.srcC) == Pw):
                need = max(need, {4: 6, 8: 10}[P.passes])
        elif C.kind in ('valu', 'ds_read', 'ds_write', 'vm_load', 'vm_store', 'vm_dma'):
            if Pw & (Cr | Cw): need = max(need, n)
        if C.kind in ('valu', 'ds_read', 'vm_load') and set(P.srcC) & Cw: need = max(need, {4: 3, 8: 7}[P.passes])
    if P.kind == 'salu' and ('s', 124) in Pw and C.kind == 'vm_dma': need = max(need, 1)
    if P.kind == 'vm_store' and ('x4' in P.op or 'x3' in P.op):
        data = set(_regs(P.ops[0])) if P.op.startswith('buffer') else set(_regs(P.ops[1]))
        if data & Cw: need = max(need, 2 if C.kind == 'valu' else 1)
    return need

MAXWIN = 14
CLUSTER = False
def check_trace_hazards(insts, tr):
    fix = {}
    n = len(tr)
    for k in range(n):
        C = insts[tr[k]]
        if C.kind in ('nop', 'waitcnt', 'barrier', 'end'): continue
        dist = 0; j = k - 1
        while j >= 0 and dist < MAXWIN:
            P = insts[tr[j]]
            need = hazard_need(P, C)
            if need > dist:
                fix[tr[k]] = max(fix.get(tr[k], 0), need - dist)
            dist += _states(P); j -= 1
    return fix

def check_trace_waits(insts, tr, name=''):
    errs = []; lg = []; vm = []; nb = 0
    smem_out = []
    for k in tr:
        I = insts[k]
        touched = set(I.rd) | set(I.wr)
        if I.kind == 'waitcnt':
            m = re.search(r'vmcnt\((\d+)\)', I.mods)
            if m:
                N = int(m.group(1));
                while len(vm) > N: vm.pop(0)
            m = re.search(r'lgkmcnt\((\d+)\)', I.mods)
            if m:
                N = int(m.group(1))
                if smem_out and N != 0: pass
                while len(lg) > N: lg.pop(0)
                if N == 0: smem_out = []
            continue
        if I.kind == 'barrier': nb += 1
        for (dst, src) in lg + vm:
            if dst & touched and not ('@dummy' in I.note and '@dummy' in src.note):
                errs.append(f'{name}: "{I.text.strip()}" touches regs of outstanding "{src.text.strip()}"')
        for (dst, src) in smem_out:
            if dst & touched: errs.append(f'{name}: "{I.text.strip()}" touches regs of outstanding smem "{src.text.strip()}"')
        if I.kind == 'ds_read': lg.append((set(I.wr), I))
        elif I.kind == 'ds_write': lg.append((set(), I))
        elif I.kind == 'smem': smem_out.append((set(I.wr), I)); lg.append((set(), I))
        elif I.kind == 'vm_load': vm.append((set(I.wr), I))
        elif I.kind in ('vm_store', 'vm_dma'): vm.append((set(), I))
        if len(vm) > 63: errs.append(f'{name}: vmcnt overflow at {I.text}')
    return errs, nb

def finalize(lines, configs, verbose=True):
    lines = list(lines)
    for it in range(400 if CLUSTER else 50):
        insts = [parse(l) for l in lines]
        labels = {I.label: i for i, I in enumerate(insts) if I.kind == 'label'}
        fixes = {}
        traces = []
        for name, init_s, hooks in configs:
            tr = run_trace(insts, labels, init_s, hooks); traces.append((name, tr))
            for k, v in check_trace_hazards(insts, tr).items(): fixes[k] = max(fixes.get(k, 0), v)
        if not fixes: break
        if CLUSTER:
            keep = {}; last = -100
            for k in sorted(fixes):
                if k - last > 16: keep[k] = fixes[k]
                last = k if k - last > 16 else last
            fixes = keep
        for k in sorted(fixes, reverse=True):
            v = fixes[k]
            ins = []
            while v > 0:
                t = min(v, 16); ins.append(f'  s_nop {t-1} ; hz'); v -= t
            lines[k:k] = ins
    else:
        raise RuntimeError('hazard fixing did not converge')
    allerr = []
    for name, tr in traces:
        errs, nb = check_trace_waits(insts, tr, name)
        cnt = {}
        for k in tr: cnt[insts[k].kind] = cnt.get(insts[k].kind, 0) + 1
        if verbose: print(f'  trace {name}: {len(tr)} insts, barriers={nb}, ' + ', '.join(f'{a}={b}' for a, b in sorted(cnt.items())))
        allerr += errs
    seen = set()
    for e in allerr:
        if e not in seen: print('WAITERR', e); seen.add(e)
    if allerr: raise RuntimeError('waitcnt errors')
    return lines
```

```python
import sys, argparse, struct
from gen_common import *
import asmlib

P = [0, 32768, 65536]
W = [98304, 114688, 131072, 147456]
UNIT = 28672
PART_BASE = 16 << 20
PSZ = 14336
STAMP_BASE = 128 << 20
FLAG_BASE = 32 << 20
NONCE_BASE = FLAG_BASE + 65536
THR = 12.0

sK, sV, sWQ, sX, sWS, sWO, sOUT, sDBG = 4, 8, 12, 16, 20, 24, 28, 32
sWAVE, sW, sBR, sHG, sB, sHP, sH0, sKV = 62, 63, 64, 65, 66, 67, 68, 69
sXB, sPEND = 72, 73
sEV, sTHR, sPAT = 74, 75, 76
sSTEP, sROT, sNEG, sOBASE = 77, 78, 79, 80
sW4K, sWQB, sKVW, sWOB, sGRP, sMYB = 81, 82, 83, 84, 85, 86
sSPIN = 87
sEXLO, sEXHI = 88, 89
sPOS = 3
sWP, sOP = 54, 58
STAMP_REGS = [90, 92, 94, 96, 98, 100] + list(range(36, 52, 2))

def srd(r): return f"s[{r}:{r+3}]"
def vr(a, n=1): return f"v{a}" if n == 1 else f"v[{a}:{a+n-1}]"
def fbits(x): return struct.unpack('<I', struct.pack('<f', x))[0]
CSCALE = (128 ** -0.5) * 1.4426950408889634

class Q:
    def __init__(s, maxn): s.q = []; s.maxn = maxn
    def issue(s, tag):
        s.q.append(tag)
        assert len(s.q) <= s.maxn, ("counter overflow", s.q)
    def wait(s, tags):
        if isinstance(tags, str): tags = [tags]
        last = -1
        for i, t in enumerate(s.q):
            if t in tags: last = i
        if last < 0: return None
        n = len(s.q) - 1 - last
        s.q = s.q[last + 1:]
        return n
    def drain(s): s.q = []

def spread(slots, items, start=0, end=None):
    if end is None: end = len(slots)
    n = end - start
    m = len(items)
    for i, it in enumerate(items):
        k = start + (i * n) // m
        slots[k].extend(it)

class Gen:
    def __init__(s, opt):
        s.L = []; s.opt = opt
        f = lambda b: " nt" if b else ""
        s.ntw, s.ntx, s.nto, s.nths, s.nthl = f(opt.ntw), f(opt.ntx), f(opt.nto), f(opt.nths), f(opt.nthl)
        c = lambda b: " sc1" if b else ""
        s.ost0, s.ost1, s.ofl0, s.ofl1 = c(opt.osc & 1), c(opt.osc & 2), c(opt.osc & 4), c(opt.osc & 8)
    def A(s, t): s.L.append("  " + t)
    def lab(s, n): s.L.append(n + ":")
    def emit(s, lines):
        for l in lines:
            if l.endswith(":"): s.L.append(l)
            else: s.L.append("  " + l)
    def stamp_lines(s, name, cyc=False):
        if not s.opt.stamp: return []
        names = s.opt.stamps.split(",")
        if name not in names: return []
        r = STAMP_REGS[names.index(name)]
        if name == "hwid": return [f"s_getreg_b32 s{r}, hwreg(HW_REG_XCC_ID)", f"s_getreg_b32 s{r+1}, hwreg(HW_REG_HW_ID)"]
        cyc = cyc or s.opt.cyc or (s.opt.dbgst and name not in ("start", "end"))
        return [f"s_mem{'time' if cyc else 'realtime'} s[{r}:{r+1}]"]
    def stamp(s, name, cyc=False): s.emit(s.stamp_lines(name, cyc))
    def capture(s, fn):
        old = s.L; s.L = []
        fn()
        out = [l if l.endswith(":") else l.strip() for l in s.L]; s.L = old
        return out
    def ast(s, i):
        return [f"s_memtime s[{36+2*i}:{37+2*i}]"] if s.opt.astamp >= 0 else []

    def common(s):
        A = s.A
        A("s_cmp_ge_u32 s2, 256")
        A("s_cbranch_scc1 L_end")
        s.stamp("start"); s.stamp("cstart", True); s.stamp("hwid")
        if s.opt.diagx:
            A("s_getreg_b32 s70, hwreg(HW_REG_XCC_ID)")
            A("s_and_b32 s70, s70, 15")
            A("s_and_b32 s71, s2, 7")
            A("s_cmp_eq_u32 s70, s71")
            A("s_cbranch_scc1 L_diag ; @taken")
            for _ in range(s.opt.diagx): A("s_sleep 127")
            s.lab("L_diag")
        A("s_load_dwordx16 s[36:51], s[0:1], 0")
        A("s_load_dwordx8 s[52:59], s[0:1], 64")
        A("s_load_dwordx2 s[60:61], s[0:1], 96")
        A("v_lshrrev_b32 v1, 6, v0")
        A("s_and_b32 s70, s2, 7")
        A("s_lshr_b32 s71, s2, 3")
        if s.opt.cpf:
            KN = NAME + "_kernel"
            A("s_getpc_b64 s[84:85]")
            s.lab("L_pc")
            A(f"s_sub_u32 s84, s84, L_pc-{KN}")
            A("s_subb_u32 s85, s85, 0")
            A("v_lshlrev_b32 v2, 7, v1")
            A("v_and_b32 v3, 31, v0")
            A("v_lshlrev_b32 v3, 2, v3")
            A("v_add_u32 v2, v2, v3")
            if s.opt.cpf == 2:
                A("v_and_b32 v3, 32, v0")
                A("v_lshlrev_b32 v3, 10, v3")
                A("v_add_u32 v2, v2, v3")
            A("s_lshl_b32 s72, s71, 10")
            A("v_add_u32 v2, s72, v2")
            A(f"v_min_u32 v2, L_end-{KN}, v2")
            if s.opt.pro2:
                A("v_and_b32 v25, 63, v0")
                A("global_load_dword v0, v2, s[84:85]" + (" ; @dummy" if s.opt.kpb != "[]" else ""))
            else: A("global_load_dword v63, v2, s[84:85]")
        A(f"v_readfirstlane_b32 s{sWAVE}, v1 ; @val=WAVE")
        A(f"s_lshr_b32 s{sBR}, s70, 2")
        A(f"s_and_b32 s{sHG}, s70, 3")
        if s.opt.hgx: A(f"s_xor_b32 s{sHG}, s{sHG}, {s.opt.hgx}")
        A(f"s_and_b32 s{sB}, s71, 7")
        A(f"s_lshr_b32 s{sHP}, s71, 3")
        A(f"s_lshl_b32 s{sH0}, s{sHG}, 3")
        A(f"s_lshl_b32 s70, s{sHP}, 1")
        A(f"s_add_u32 s{sH0}, s{sH0}, s70")
        A(f"s_add_u32 s{sROT}, s{sB}, s70")
        if not s.opt.rot: A(f"s_mov_b32 s{sROT}, 0")
        R_ = f"s{sROT}"
        if s.opt.rot == 2: s.emit([f"s_xor_b32 {R_}, s{sB}, s{sHP}", f"s_and_b32 {R_}, {R_}, 1", f"s_lshl_b32 {R_}, {R_}, 2"])
        if s.opt.rot == 3: s.emit([f"s_add_u32 {R_}, s{sB}, s{sHP}", f"s_and_b32 {R_}, {R_}, 3", f"s_lshl_b32 {R_}, {R_}, 1"])
        if s.opt.rot == 4: s.emit([f"s_and_b32 {R_}, s{sB}, 3", f"s_lshl_b32 {R_}, {R_}, 1"])
        if s.opt.rot == 5: s.emit([f"s_lshl_b32 {R_}, s{sHP}, 1"])
        if s.opt.rot == 6: s.emit([f"s_mov_b32 {R_}, s{sB}"])
        if s.opt.rot == 7: s.emit([f"s_and_b32 {R_}, s{sB}, 1", f"s_lshl_b32 {R_}, {R_}, 2"])
        if s.opt.rot == 8: s.emit([f"s_lshl_b32 {R_}, s{sHP}, 2", f"s_add_u32 {R_}, {R_}, s{sB}"])
        A(f"s_and_b32 s{sW}, s{sWAVE}, 3")
        A(f"s_lshl_b32 s{sW4K}, s{sW}, 12")
        A("v_mov_b32 v1, v25" if (s.opt.pro2 and s.opt.cpf) else "v_and_b32 v1, 63, v0")
        A("v_lshrrev_b32 v19, 4, v1")
        A("v_and_b32 v20, 15, v1")
        A("v_lshlrev_b32 v21, 2, v19")
        A("v_xor_b32 v21, v20, v21")
        A("v_lshlrev_b32 v21, 4, v21")
        A("v_lshrrev_b32 v17, 5, v1")
        A("v_and_b32 v18, 3, v1")
        A("v_lshlrev_b32 v2, 13, v19")
        A("v_add_u32 v2, v2, v21")
        A("v_lshrrev_b32 v22, 3, v1")
        A("v_lshlrev_b32 v22, 10, v22")
        A("v_and_b32 v23, 7, v1")
        A("v_xor_b32 v23, v23, v19")
        A("v_lshlrev_b32 v24, 4, v23")
        A("v_add_u32 v3, v22, v24")
        A("v_xor_b32 v24, 64, v24")
        A("v_add_u32 v4, v22, v24")
        for r, sz in ((sK, 33554432), (sV, 33554432), (sWQ, 4194304), (sWS, 268435456), (sWO, 4194304), (sOUT, 1835008), (sDBG, 256)):
            A(f"s_mov_b32 s{r+2}, {sz}")
            A(f"s_mov_b32 s{r+3}, 0x20000")
        A(f"s_mov_b32 s{sX+3}, 0x20000")
        A(f"s_lshl_b32 s70, s{sW}, 17")
        A(f"s_lshl_b32 s71, s{sH0}, 8")
        A(f"s_add_u32 s{sWQB}, s70, s71")
        A(f"s_mul_i32 s70, s{sB}, 112")
        A(f"s_add_u32 s71, s70, 112")
        A(f"s_lshl_b32 s{sX+2}, s71, 10")
        A(f"s_lshl_b32 s71, s{sW}, 5")
        A("s_add_u32 s70, s70, s71")
        A(f"s_lshl_b32 s{sXB}, s70, 10")
        A(f"s_lshl_b32 s70, s{sB}, 5")
        A(f"s_add_u32 s70, s70, s{sH0}")
        A(f"s_lshl_b32 s{sKV}, s70, 17")
        A(f"s_add_u32 s{sKVW}, s{sKV}, s{sW4K}")
        A(f"s_cmp_eq_u32 s{sBR}, 0")
        A("s_waitcnt lgkmcnt(0)")
        s.stamp("k")
        for r, a, b in ((sX, 36, 46), (sWQ, 42, 52), (sK, 38, 48), (sV, 40, 50), (sWO, 44, 54)):
            A(f"s_cselect_b32 s{r}, s{a}, s{b}")
            A(f"s_cselect_b32 s{r+1}, s{a+1}, s{b+1}")
        for r, a in ((sOUT, 56), (sDBG, 58), (sWS, 60)):
            A(f"s_mov_b32 s{r}, s{a}")
            A(f"s_mov_b32 s{r+1}, s{a+1}")
        kr = s.opt.krot
        if kr == 1: A(f"s_lshl_b32 s52, s{sB}, 14")
        if kr == 2: s.emit([f"s_lshl_b32 s52, s{sHP}, 1", f"s_add_u32 s52, s52, s{sB}", f"s_add_u32 s52, s52, s{sHG}", "s_lshl_b32 s52, s52, 14"])
        if kr == 3: s.emit([f"s_lshl_b32 s52, s{sHP}, 1", f"s_and_b32 s53, s{sHG}, 1", "s_add_u32 s52, s52, s53", "s_lshl_b32 s52, s52, 14"])
        if kr == 4: s.emit([f"s_lshl_b32 s52, s{sHG}, 1", f"s_add_u32 s52, s52, s{sBR}", "s_lshl_b32 s52, s52, 14"])
        if kr == 5: s.emit([f"s_lshl_b32 s52, s{sB}, 1", f"s_lshr_b32 s53, s{sB}, 2", "s_add_u32 s52, s52, s53", f"s_add_u32 s52, s52, s{sHP}", f"s_lshl_b32 s53, s{sHG}, 1", "s_add_u32 s52, s52, s53", "s_lshl_b32 s52, s52, 14"])
        if kr == 7: s.emit([f"s_and_b32 s52, s{sB}, 1", "s_lshl_b32 s52, s52, 17", "s_sub_u32 s53, 131072, s52"])
        if kr == 8: s.emit([f"s_and_b32 s52, s{sHP}, 1", "s_lshl_b32 s52, s52, 17", "s_sub_u32 s53, 131072, s52"])
        if kr == 9: s.emit([f"s_and_b32 s52, s{sHG}, 1", "s_lshl_b32 s52, s52, 17", "s_sub_u32 s53, 131072, s52"])
        if kr == 10: s.emit([f"s_mov_b32 s52, 131072", "s_mov_b32 s53, 0"])
        if kr == 6: s.emit([f"s_and_b32 s52, s{sB}, 1", "s_lshl_b32 s52, s52, 16"])
        A(f"s_cmp_ge_u32 s{sWAVE}, 4")
        A("s_cbranch_scc1 L_B")

    def late_scalars(s):
        A = s.A
        A(f"s_lshl_b32 s70, s{sBR}, 3")
        A(f"s_add_u32 s70, s70, s{sB}")
        A(f"s_lshl_b32 s71, s70, 5")
        A(f"s_add_u32 s71, s71, s{sH0}")
        A(f"s_mul_i32 s{sOBASE}, s71, {UNIT}")
        A(f"s_lshl_b32 s71, s70, 2")
        A(f"s_add_u32 s71, s71, s{sHG}")
        A(f"s_lshl_b32 s{sGRP}, s71, 2")
        A(f"s_add_u32 s{sMYB}, s{sGRP}, s{sHP}")
        A(f"s_cmp_eq_u32 s{sW}, 3")
        A(f"s_cselect_b32 s{sEXLO}, 0xffff, -1")
        A(f"s_mov_b32 s{sEXHI}, s{sEXLO}")

    def kv_voffs(s, vK, vV):
        A = s.A
        A("v_lshlrev_b32 v22, 8, v19")
        A(f"v_add_u32 v{vV}, v22, v21")
        for t in range(4):
            A(f"v_add_u32 v23, {4*t}, v19")
            A(f"v_xor_b32 v23, v20, v23")
            A(f"v_lshlrev_b32 v23, 4, v23")
            A(f"v_add_u32 v{vK+t}, v22, v23")

    def flag_store(s, val, vtmp):
        A = s.A
        A(f"v_mov_b32 v{vtmp}, {val}")
        A("s_mov_b64 exec, 1")
        A(f"buffer_store_byte v{vtmp}, off, {srd(sDBG)}, s{sMYB} sc1")
        A("s_mov_b64 exec, -1")

    def xcc_byte(s, d):
        return [f"s_getreg_b32 s{d}, hwreg(HW_REG_XCC_ID)", f"s_and_b32 s{d}, s{d}, 15", f"s_lshl_b32 s{d}, s{d}, 1", f"s_or_b32 s{d}, s{d}, 1"]
    def kv_addr(s, j):
        if not s.opt.krot: return [f"s_add_u32 s70, s{sKVW}, {j*16384}"]
        if s.opt.krot >= 7: return [f"s_add_u32 s70, s{sKVW}, s{52 + (j >> 3)}", f"s_add_u32 s70, s70, {(j & 7) << 14}"]
        r = [f"s_add_u32 s70, s52, {(j & 7) << 14}", "s_and_b32 s70, s70, 0x1c000", f"s_add_u32 s70, s70, s{sKVW}"]
        if j >= 8: r.append("s_add_u32 s70, s70, 131072")
        return r
    def dma_k(s, j, vK, nt, tag):
        g = []
        for t in range(4):
            pre = [f"s_add_u32 m0, s{sW4K}, {P[j%3]}"] + s.kv_addr(j) if t == 0 else []
            if t and s.opt.ilv: pre = [f"s_add_u32 m0, s{sW4K}, {P[j%3]}", "s_nop 0"]
            g.append((tag, pre + [f"buffer_load_dwordx4 v{vK+t}, {srd(sK)}, s70 offen offset:{t*1024}{nt} lds"]))
        return g
    def dma_v(s, j, vV, nt, tag):
        g = []
        for t in range(4):
            pre = [f"s_add_u32 m0, s{sW4K}, {P[j%3]+16384}"] + s.kv_addr(j - 1) if t == 0 else []
            if t and s.opt.ilv: pre = [f"s_add_u32 m0, s{sW4K}, {P[j%3]+16384}", "s_nop 0"]
            g.append((tag, pre + [f"buffer_load_dwordx4 v{vV}, {srd(sV)}, s70 offen offset:{t*1024}{nt} lds"]))
        return g
    def kc_lines(s, c, dst):
        return [f"s_add_u32 s{dst}, s{sROT}, {c}", f"s_and_b32 s{dst}, s{dst}, 7"]
    def dma_wq(s, c, slot, vW, tag, extra, tmp):
        g = []
        for t in range(4):
            pre = []
            if t == 0:
                pre = s.kc_lines(c, tmp) + [f"s_lshl_b32 s{tmp}, s{tmp}, 19", f"s_add_u32 s{tmp}, s{tmp}, s{sWQB}",
                                            f"s_add_u32 m0, s{sW4K}, {slot}"]
            elif s.opt.ilv: pre = [f"s_add_u32 m0, s{sW4K}, {slot}"]
            g.append((tag, pre + [f"s_add_u32 s71, s{tmp}, {extra + t*31744}",
                                  f"buffer_load_dwordx4 v{vW}, {srd(sWQ)}, s71 offen offset:{t*1024}{' nt' if (tag in eval(s.opt.ntq)) else s.ntw} lds"]))
        return g

    def waveA(s):
        A = s.A; o = s.opt
        nt = " nt" if o.nt else ""
        Q_, SB, Pr, O, WIN, NM = 0, [32, 64], 96, 112, 176, 208
        KA, VA, QA, OV, RL = 224, 232, 236, 237, 238
        LS, AL, T = 240, 242, 244
        vK, vV = 5, 9
        q = Q(63)
        PX = [W[0], W[2], P[2]] if o.r3 else [P[1], P[2], W[0], W[2]]
        NR = len(PX)
        def dma_x(c):
            g = []
            for t in range(4):
                pre = []
                if t == 0:
                    pre = s.kc_lines(c, 87) + ["s_lshl_b32 s87, s87, 7", f"s_add_u32 s87, s87, s{sXB}", f"s_add_u32 m0, s{sW4K}, {PX[c%NR]}"]
                g.append((f"C{c}", pre + [f"s_add_u32 s71, s87, {t*7168}",
                                          f"buffer_load_dwordx4 v{3 + (t&1)}, {srd(sX)}, s71 offen offset:{t*1024}{' nt' if (c in eval(o.ntxc)) else s.ntx} lds"]))
            return g
        def issue(groups):
            for tag, ins in groups:
                q.issue(tag); s.emit(ins)
        def chunk(c): return dma_x(c) + s.dma_wq(c, PX[c % NR] + 16384, 2, f"C{c}", 0, 87)
        issue(chunk(0))
        s.stamp("a0")
        issue(chunk(1))
        for c_ in range(2, o.pdep): issue(chunk(c_))
        kp0 = eval(o.kp0)
        def kp0_issue(pos):
            for (pos_, j) in kp0:
                if pos_ != pos: continue
                pre = [f"s_add_u32 s70, s60, {j * 16384}"]
                issue([("PF", (pre if i_ == 0 else []) + [f"buffer_load_dword v254, v255, s[56:59], s70 offen offset:{128 // o.kpfn * i_}{o.kp0nt} ; @dummy"]) for i_ in range(o.kpfn)])
        if kp0:
            assert not o.kpf and not o.krot
            A(f"s_cmp_lt_u32 s{sW}, 2")
            A(f"s_cselect_b32 s56, s{sK}, s{sV}")
            A(f"s_cselect_b32 s57, s{sK+1}, s{sV+1}")
            A(f"s_cselect_b32 s60, 0, {hex((-16384) & 0xffffffff)}")
            A("s_mov_b32 s58, 33554432")
            A("s_mov_b32 s59, 0x20000")
            A(f"s_add_u32 s60, s60, s{sKV}")
            A(f"s_and_b32 s70, s{sW}, 1")
            A("s_lshl_b32 s70, s70, 13")
            A("s_add_u32 s60, s60, s70")
            A("v_lshlrev_b32 v255, 7, v1")
            kp0_issue(-1)
        if o.k0at < 0:
            s.kv_voffs(vK, vV)
            issue(s.dma_k(0, vK, nt, "K0"))
            if o.p1at < 0: issue(s.dma_k(1, vK, nt, "KV1") + s.dma_v(1, vV, nt, "KV1"))
        segs = []
        capL = s.L
        if o.pro2a: s.L = []
        def cut():
            if o.pro2a:
                segs.append(s.L); s.L = []
        s.late_scalars()
        if o.k0at >= 0: s.kv_voffs(vK, vV)
        cut()
        if o.tail == 12:
            A(f"s_lshl_b32 s70, s{sHG}, 20")
            A(f"s_lshl_b32 s71, s{sW}, 14")
            A("s_add_u32 s70, s70, s71")
            A(f"s_lshl_b32 s71, s{sHP}, 8")
            A("s_add_u32 s46, s70, s71")
            A(f"s_mul_i32 s47, s{sB}, 11")
            A("s_lshr_b32 s47, s47, 5")
            A("s_mul_i32 s47, s47, 3")
            A(f"s_sub_u32 s47, s{sB}, s47")
            if not (o.wrot & 1): A("s_mov_b32 s47, 0")
            A(f"s_lshl_b32 s70, s{sBR}, 3")
            A(f"s_add_u32 s70, s70, s{sB}")
            A("s_lshl_b32 s70, s70, 5")
            A(f"s_add_u32 s70, s70, s{sH0}")
            A(f"s_lshl_b32 s71, s{sHP}, 1")
            A("s_sub_u32 s70, s70, s71")
            A(f"s_mul_i32 s55, s70, {UNIT}")
            for p in range(1, 4):
                A(f"s_add_u32 s70, s47, {p - 1}")
                A("s_sub_u32 s71, s70, 3")
                A("s_cmp_ge_u32 s70, 3")
                A("s_cselect_b32 s70, s71, s70")
                A(f"s_add_u32 s70, s70, s{sHP}")
                A("s_add_u32 s70, s70, 1")
                A("s_and_b32 s70, s70, 3")
                A("s_lshl_b32 s71, s70, 18")
                A(f"s_add_u32 s{40+p}, s46, s71")
                A(f"s_mul_i32 s71, s70, {2*UNIT}")
                A(f"s_add_u32 s{49+p}, s55, s71")
                A(f"s_add_u32 s{49+p}, s{49+p}, {UNIT}")
            A(f"s_lshl_b32 s71, s{sHP}, 18")
            A("s_add_u32 s40, s46, s71")
            A(f"s_and_b32 s70, s{sB}, 1")
            if not (o.wrot & 2): A("s_mov_b32 s70, 0")
            A("s_lshl_b32 s44, s70, 16")
            A("s_sub_u32 s45, 65536, s44")
            A("s_mul_i32 s53, s70, 14336")
            A("s_sub_u32 s54, 14336, s53")
            A(f"s_lshl_b32 s48, s{sW}, 2")
            A(f"s_add_u32 s48, s48, {FLAG_BASE}")
            cut()
        A("v_and_b32 v10, 31, v1")
        A("v_lshlrev_b32 v10, 8, v10")
        A("v_xor_b32 v11, v17, v20")
        for k in range(8):
            A(f"v_xor_b32 v12, {2*k}, v11")
            A(f"v_lshlrev_b32 v12, 4, v12")
            A(f"v_add_u32 v{KA+k}, v10, v12")
        cut()
        A("v_lshrrev_b32 v10, 2, v20")
        A("v_and_b32 v11, 1, v19")
        A("v_lshlrev_b32 v12, 10, v17")
        A("v_lshlrev_b32 v13, 8, v10")
        A("v_add_u32 v12, v12, v13")
        A("v_lshlrev_b32 v13, 5, v11")
        A("v_add_u32 v12, v12, v13")
        A("v_and_b32 v13, 1, v18")
        A("v_lshlrev_b32 v13, 4, v13")
        A("v_add_u32 v12, v12, v13")
        A("v_lshrrev_b32 v13, 1, v18")
        A("v_lshlrev_b32 v13, 3, v13")
        A("v_add_u32 v12, v12, v13")
        A("v_add_u32 v12, 16384, v12")
        for D in range(4):
            A(f"v_xor_b32 v13, {D}, v10")
            A(f"v_lshlrev_b32 v13, 6, v13")
            A(f"v_add_u32 v{VA+D}, v12, v13")
        cut()
        A(f"s_lshl_b32 s70, s{sW}, 13")
        A(f"s_add_u32 s70, s70, {W[0]}")
        A(f"v_lshlrev_b32 v{QA}, 4, v1")
        A(f"v_add_u32 v{QA}, s70, v{QA}")
        A(f"v_mul_u32_u24 v{OV}, 112, v17")
        A(f"v_and_b32 v12, 31, v1")
        A(f"v_add_u32 v{OV}, v{OV}, v12")
        A(f"s_lshl_b32 s70, s{sW}, 5")
        A(f"v_add_u32 v{OV}, s70, v{OV}")
        A(f"v_lshlrev_b32 v{OV}, 4, v{OV}")
        for i in range(8): A(f"v_mov_b64 {vr(NM+2*i,2)}, 0")
        A(f"v_mov_b64 {vr(LS,2)}, 0")
        A(f"s_mov_b32 s{sEV}, {hex((1<<0)|(1<<8)|(1<<1)|(1<<7))}")
        A(f"s_mov_b32 s{sPAT}, {hex(sum(1 << i for i in range(2, 17, 3)))}")
        A(f"s_mov_b32 s{sNEG}, 0xffff0000")
        A(f"s_mov_b32 s{sPOS}, 32768")
        A(f"s_mov_b32 s{sTHR}, {hex(fbits(THR))}")
        A(f"s_mov_b32 s{sSTEP}, 0")
        A(f"s_mov_b32 s{sPEND}, 0")
        A(f"s_add_u32 s{sOBASE}, s{sOBASE}, {UNIT}")
        if o.kpf:
            A(f"s_cmp_lt_u32 s{sW}, 2")
            A(f"s_cselect_b32 s56, s{sK}, s{sV}")
            A(f"s_cselect_b32 s57, s{sK+1}, s{sV+1}")
            A(f"s_cselect_b32 s60, 0, {hex((-16384) & 0xffffffff)}")
            A(f"s_cselect_b32 s61, {15 - 2 - o.kpf + 1}, {16 - 2 - o.kpf + 1}")
            A("s_mov_b32 s58, 33554432")
            A("s_mov_b32 s59, 0x20000")
            A(f"s_add_u32 s60, s60, s{sKV}")
            A(f"s_and_b32 s70, s{sW}, 1")
            A("s_lshl_b32 s70, s70, 13")
            A("s_add_u32 s60, s60, s70")
            A(f"s_add_u32 s60, s60, {(2 + o.kpf) * 16384}")
            A("v_lshlrev_b32 v255, 7, v1")
        if o.xs in (1, 2):
            A("v_lshlrev_b32 v14, 2, v1")
            A(f"s_lshl_b32 s70, s{sMYB}, 7")
            A(f"s_add_u32 s70, s70, {FLAG_BASE}")
            A("s_mov_b64 exec, 0xfff")
            A(f"buffer_store_dword v{NM}, v14, {srd(sWS)}, s70 offen sc1")
            A("s_mov_b64 exec, -1")
        cut()
        if o.pro2a: s.L = capL
        for k in range(8):
            n = q.wait(f"C{k}")
            if n is not None: A(f"s_waitcnt vmcnt({n})")
            s.stamp(f"aw{k}")
            A("s_barrier")
            if o.r3 == 2 and 1 <= k <= 6: A("s_barrier")
            if k + o.pdep < 8: issue(chunk(k + o.pdep))
            kp0_issue(k)
            bkv = eval(o.bkv)
            if k == o.k0at and 0 not in bkv: issue(s.dma_k(0, vK, nt, "K0"))
            if k == o.q0at and 'q' not in bkv: issue(s.dma_wq(0, P[0] + 16384, 2, "Q0", 256, 87))
            apf = eval(o.apf)
            def pf_groups(part):
                g = []
                pre = ["v_lshlrev_b32 v14, 4, v1", "s_lshr_b32 s70, s2, 3", "s_lshr_b32 s71, s70, 3", "s_lshl_b32 s71, s71, 18",
                       "s_and_b32 s70, s70, 7", "s_lshl_b32 s70, s70, 14", "s_add_u32 s70, s70, s71",
                       f"s_lshl_b32 s71, s{sHG}, 20", "s_add_u32 s70, s70, s71", f"s_add_u32 s70, s70, s{sW4K}"]
                if part: pre.append("s_add_u32 s70, s70, 131072")
                for t_ in range(4):
                    g.append(("PF", (pre if t_ == 0 else []) + [f"buffer_load_dwordx4 v[252:255], v14, {srd(sWO)}, s70 offen offset:{t_*1024}{o.apfnt} ; @dummy"]))
                return g
            if o.apfpos == 0:
                for part in apf.get(k, []): issue(pf_groups(part))
            for (kk_, when, j) in eval(o.kpf0):
                if kk_ == k and when == 0:
                    issue([("PF", [f"s_add_u32 s70, s60, {hex(((j - 2 - o.kpf) * 16384) & 0xffffffff)}",
                                   f"buffer_load_dword v254, v255, s[56:59], s70 offen{o.kpfnt} ; @dummy"])] +
                          [("PF", [f"buffer_load_dword v254, v255, s[56:59], s70 offen offset:{128 // o.kpfn * i_}{o.kpfnt} ; @dummy"]) for i_ in range(1, o.kpfn)])
            if k == o.p1at and 1 not in bkv: issue(s.dma_k(1, vK, nt, "KV1") + s.dma_v(1, vV, nt, "KV1"))
            if k == o.p2at: issue(s.dma_k(2, vK, nt, "KV2") + s.dma_v(2, vV, nt, "KV2"))
            for (kk_, when, j) in eval(o.kpf0):
                if kk_ == k and when == 1:
                    issue([("PF", [f"s_add_u32 s70, s60, {hex(((j - 2 - o.kpf) * 16384) & 0xffffffff)}",
                                   f"buffer_load_dword v254, v255, s[56:59], s70 offen{o.kpfnt} ; @dummy"])] +
                          [("PF", [f"buffer_load_dword v254, v255, s[56:59], s70 offen offset:{128 // o.kpfn * i_}{o.kpfnt} ; @dummy"]) for i_ in range(1, o.kpfn)])
            if o.apfpos == 1:
                for part in apf.get(k, []): issue(pf_groups(part))
            if k < len(segs): s.L += segs[k]
            if o.xs in (1, 2) and k == 3: q.issue("CLR")
        n0 = q.wait(["K0", "Q0"])
        if n0 is None: n0 = 63
        assert n0 == 8 or o.apf != "{}" or o.r3 or o.kpf or o.p2at <= 7 or kp0 or o.p1at != 7, n0
        if o.kpf:
            for _ in range(o.kpfn): q.issue("PF")
        n1 = q.wait("KV1") if o.kpf else 0
        if n1 is None: n1 = 63
        if o.prioA: A(f"s_setprio {o.prioA}")

        U = T + 4
        def fin_D(D, dst):
            L = [f"v_mul_f32 v{O+16*D+i}, v{AL}, v{O+16*D+i}" for i in range(16)]
            L += [f"v_cvt_pk_bf16_f32 v{dst+8*D+i}, v{O+16*D+2*i}, v{O+16*D+2*i+1}" for i in range(8)]
            return L
        def fin_Dp(D, dst):
            L = [f"v_pk_mul_f32 {vr(O+16*D+2*i,2)}, {vr(O+16*D+2*i,2)}, {vr(AL,2)} op_sel_hi:[1,0]" for i in range(8)]
            L += [f"v_cvt_pk_bf16_f32 v{dst+8*D+i}, v{O+16*D+2*i}, v{O+16*D+2*i+1}" for i in range(8)]
            return L
        def step(par, last=False):
            cur, prev = SB[par], SB[1 - par]
            lq = Q(15)
            L = []
            def wl(tags):
                n = lq.wait(tags)
                return [f"s_waitcnt lgkmcnt({n})"] if n is not None else []
            def kread(i):
                T_, k = divmod(i, 8); lq.issue(f"K{i}")
                return [f"ds_read_b128 {vr(WIN + 4*(i % 8), 4)}, v{KA+k} offset:{T_*8192}"]
            vorder = [divmod(f, 4) for f in range(16)] if not last else [(t, D) for D in range(4) for t in range(4)]
            if last and o.l16: vorder = [(t, D) for t in range(2) for D in range(4)] + [(t, D) for D in range(4) for t in (2, 3)]
            def vread(f):
                t, D = vorder[f]; r = []
                for a in range(2):
                    lq.issue(f"V{f}")
                    r.append(f"ds_read_b64_tr_b16 {vr(WIN + 4*(f % 8) + 2*a, 2)}, v{VA+D} offset:{t*4096 + a*2048}")
                return r
            exp = lambda r: [f"v_exp_f32 v{r}, v{r}"]
            add = lambda r: [f"v_add_f32 v{LS + (r & 1)}, v{LS + (r & 1)}, v{r}"]
            cvt = lambda t, i: [f"v_cvt_pk_bf16_f32 v{Pr+4*t+i}, v{prev+8*t+2*i}, v{prev+8*t+2*i+1}"]
            mx = lambda d, a, b, c: [f"v_max3_f32 v{d}, v{a}, v{b}, v{c}"]
            bub = []
            for i in range(4): bub += [cvt(0, i), add(prev + 2*i), add(prev + 2*i + 1)]
            for i in range(4): bub += [cvt(1, i), add(prev + 8 + 2*i), add(prev + 8 + 2*i + 1)]
            F1 = []
            e = [exp(prev + 16 + i) for i in range(16)]
            a_ = [add(prev + 16 + i) for i in range(16)]
            c2 = [cvt(2, i) for i in range(4)]; c3 = [cvt(3, i) for i in range(4)]
            F1 += [e[0], e[1], e[2]]
            for i in range(3, 16):
                F1 += [e[i], a_[i - 3]]
                if i in (5, 7, 9, 11): F1.append(c2[(i - 5) // 2])
                if i in (13, 15): F1.append(c3[(i - 13) // 2])
            F1 += [a_[13], c3[2], a_[14], a_[15], c3[3]]
            def maxT(base, d0, d1):
                return [mx(d0, base, base+1, base+2), mx(d1, base+8, base+9, base+10),
                        mx(d0, d0, base+3, base+4), mx(d1, d1, base+11, base+12),
                        mx(d0, d0, base+5, base+6), mx(d1, d1, base+13, base+14),
                        mx(d0, d0, base+7, base+15)]
            M0 = maxT(cur, U, U+1)
            M1 = maxT(cur+16, U+2, U+3)
            fin = [mx(U, U, U+1, U+2), [f"v_max_f32 v{U}, v{U}, v{U+3}"]]
            tagp = "e" if par == 0 else "o"
            chk = [f"v_cmp_lt_f32 vcc, s{sTHR}, v{U}",
                   f"s_nop 0",
                   f"s_cbranch_vccnz A_resc{tagp} ; @takenif={sTHR}:0xff800000",
                   f"A_resc{tagp}r:"]
            advK = [[f"v_add_u32 v{KA+k}, s70, v{KA+k}"] for k in range(8)]
            advV = [[f"v_add_u32 v{VA+D}, s70, v{VA+D}"] for D in range(4)]
            exps1 = [exp(cur+i) for i in range(16)]

            L += s.ast(1)
            if not last:
                for i in range(8): L += kread(i)
                for it in bub: L += it
                nb = o.nbub
                for it in F1[:nb]: L += it
                gaps = [[] for _ in range(16)]
                spread(gaps, F1[nb:], 0, 14)
                spread(gaps, M0, 10, 16)
                for i in range(16):
                    T_, k = divmod(i, 8)
                    if i % 2 == 0: L += wl([f"K{i}", f"K{i+1}"])
                    srcC = vr(NM, 16) if k == 0 else vr(cur + 16*T_, 16)
                    L.append(f"v_mfma_f32_32x32x16_bf16 {vr(cur+16*T_,16)}, {vr(WIN+4*(i%8),4)}, {vr(Q_+4*k,4)}, {srcC}")
                    if i + 8 < 16: L += kread(i + 8)
                    if i >= 9: L += vread(i - 9)
                    L += gaps[i]
                    if i == 7: L += s.ast(2)
                L += s.ast(3)
                vissued = 7
                gaps = [[] for _ in range(16)]
                spread(gaps, advK[:4], 0, 2)
                spread(gaps, M1 + fin, 2, 5)
                gaps[5] += chk
                spread(gaps, exps1, 5, 16)
                spread(gaps, advK[4:], 6, 10)
                spread(gaps, advV, 10, 14)
                L += [f"s_bitcmp1_b32 s{sPAT}, s{sSTEP}", f"s_cselect_b32 s70, s{sNEG}, s{sPOS}"]
            else:
                L += s.stamp_lines("a16")
                for f in range(7): L += vread(f)
                vissued = 7
                if o.l16:
                    for it in bub[:12]: L += it
                    L += s.stamp_lines("a16v")
                    L.append(f"v_add_u32 v{QA}, {hex((P[0] - W[1]) & 0xffffffff)}, v{QA}")
                    gaps = [[] for _ in range(16)]
                    spread(gaps, bub[12:], 0, 2)
                    spread(gaps, F1, 2, 8)
                    gaps[o.l16r] += rl_lines(AL)
                    g0 = o.l16
                    for D in range(3):
                        items = [[x] for x in fin_Dp(D, cur)] + [out_D(D, cur)]
                        spread(gaps, items, min(g0 + 2*D, 15), min(g0 + 2*D + 2, 16))
                else:
                    for it in bub: L += it
                    for it in F1: L += it
                    L += rl_lines(AL)
                    L += s.stamp_lines("a16v")
                    L.append(f"v_add_u32 v{QA}, {hex((P[0] - W[1]) & 0xffffffff)}, v{QA}")
                    gaps = [[] for _ in range(16)]
                    for D in range(3):
                        items = [[x] for x in fin_D(D, cur)] + [out_D(D, cur)]
                        spread(gaps, items, 4*D + 6 if D < 2 else 14, 4*D + 10 if D < 2 else 16)
            for f in range(16):
                t, D = vorder[f]
                if f % 2 == 0: L += wl([f"V{f}", f"V{f+1}"])
                L.append(f"v_mfma_f32_32x32x16_bf16 {vr(O+16*D,16)}, {vr(WIN+4*(f%8),4)}, {vr(Pr+4*t,4)}, {vr(O+16*D,16)}")
                if vissued < 16:
                    L += vread(vissued); vissued += 1
                L += gaps[f]
                if f == 6 and not last: L += s.ast(4)
            if not last:
                L += s.ast(5)
                L += [f"s_cmp_lg_u32 s{sPEND}, 0", f"s_cbranch_scc1 A_pend{tagp}", f"A_pend{tagp}r:"]
                L += s.ast(6)
                if s.opt.astamp >= 0:
                    L += ["s_waitcnt lgkmcnt(0)", f"s_cmp_eq_u32 s{sSTEP}, {s.opt.astamp}"]
                    L += [f"s_cselect_b32 s{50+i}, s{36+2*i}, s{50+i}" for i in range(7)]
            else:
                L += s.stamp_lines("a16m")
                L += (fin_Dp(3, cur) if o.l16 else fin_D(3, cur)) + out_D(3, cur)
                L += s.stamp_lines("a16s")
            return L
        def out_D(D, src):
            L = []
            if o.tail == 12: L.append(f"s_mov_b64 exec, s[{sEXLO}:{sEXHI}]")
            for h in range(2):
                L.append(f"ds_write_b128 v{QA}, {vr(src+8*D+4*h,4)} offset:{(2*D+h)*1024}")
            if o.tail != 12: L.append(f"s_mov_b64 exec, s[{sEXLO}:{sEXHI}]")
            for h in range(2):
                L.append(f"s_add_u32 s71, s{sOBASE}, {(4*D+2*h)*1792}")
                L.append(f"buffer_store_dwordx4 {vr(src+8*D+4*h,4)}, v{OV}, {srd(sWS)}, s71 offen{s.ost1}{s.nths}")
            L.append("s_mov_b64 exec, -1")
            return L
        def rl_lines(dst):
            return [f"v_add_f32 v{T}, v{LS}, v{LS+1}", f"v_mov_b32 v{T+1}, v{T}", f"v_permlane32_swap_b32 v{T}, v{T+1}",
                    f"v_add_f32 v{T}, v{T}, v{T+1}", f"v_rcp_f32 v{dst}, v{T}"]

        s.lab("A_loop")
        for par in range(2):
            tagp = "e" if par == 0 else "o"
            if par == 1 and o.s0q: s.lab("A_par1")
            s.emit(s.ast(0))
            A(f"s_bitcmp1_b32 s{sEV}, s{sSTEP}")
            A(f"s_cbranch_scc1 A_top{tagp}")
            A("s_barrier")
            s.lab(f"A_top{tagp}r")
            if o.kpf:
                A(f"s_cmp_lt_u32 s{sSTEP}, s61")
                A(f"s_cbranch_scc0 A_npf{tagp}")
                for i_ in range(o.kpfn):
                    A(f"buffer_load_dword v254, v255, s[56:59], s60 offen offset:{128 // o.kpfn * i_}{o.kpfnt} ; @dummy")
                A("s_add_u32 s60, s60, 16384")
                s.lab(f"A_npf{tagp}")
            s.emit(step(par))
            A(f"s_add_u32 s{sSTEP}, s{sSTEP}, 1")
        A(f"s_cmp_lt_u32 s{sSTEP}, 16")
        A("s_cbranch_scc1 A_loop")
        A("s_barrier")
        s.emit(step(0, last=True))
        A("s_waitcnt lgkmcnt(0)")
        if o.t9e < 2: A("s_barrier")
        if o.tail in (6, 8, 9, 10, 11, 12):
            aWP, aH = [40, 41, 42, 43], (44, 45)
            A("v_mbcnt_lo_u32_b32 v1, -1, 0")
            A("v_mbcnt_hi_u32_b32 v1, -1, v1")
            A("v_lshrrev_b32 v2, 4, v1")
            A("v_and_b32 v3, 15, v1")
            A("v_lshlrev_b32 v7, 2, v2")
            A("v_xor_b32 v7, v3, v7")
            A("v_lshlrev_b32 v7, 4, v7")
            A("v_lshlrev_b32 v4, 10, v2")
            A("v_add_u32 v4, v4, v7")
            A(f"v_add_u32 v5, s{sHP}, v1")
            A("v_add_u32 v5, 1, v5")
            A("v_and_b32 v5, 3, v5")
            A(f"v_add_u32 v5, s{sGRP}, v5")
            A("v_lshlrev_b32 v5, 7, v5")
        if o.tail == 12: pass
        elif o.tail in (6, 8, 9, 10, 11):
            A(f"s_lshl_b32 s70, s{sHG}, 20")
            A(f"s_lshl_b32 s71, s{sW}, 14")
            A("s_add_u32 s70, s70, s71")
            A(f"s_lshl_b32 s71, s{sHP}, 8")
            A("s_add_u32 s46, s70, s71")
            if o.wrot:
                A(f"s_mul_i32 s47, s{sB}, 11")
                A("s_lshr_b32 s47, s47, 5")
                A("s_mul_i32 s47, s47, 3")
                A(f"s_sub_u32 s47, s{sB}, s47")
                if not (o.wrot & 1): A("s_mov_b32 s47, 0")
            for p in range(1, 4) if not o.t6o else range(4):
                if o.wrot and p > 0:
                    A(f"s_add_u32 s70, s47, {p - 1}")
                    A("s_sub_u32 s71, s70, 3")
                    A("s_cmp_ge_u32 s70, 3")
                    A("s_cselect_b32 s70, s71, s70")
                    A(f"s_add_u32 s70, s70, s{sHP}")
                    A("s_add_u32 s70, s70, 1")
                else:
                    A(f"s_add_u32 s70, s{sHP}, {p}")
                A("s_and_b32 s70, s70, 3")
                A(f"s_lshl_b32 s71, s70, 18")
                A(f"s_add_u32 s{aWP[p]}, s46, s71")
            A(f"s_lshl_b32 s71, s{sHP}, 18")
            A(f"s_add_u32 s{aWP[0]}, s46, s71")
            A(f"s_and_b32 s70, s{sB}, 1")
            if not (o.wrot & 2): A("s_mov_b32 s70, 0")
            A(f"s_lshl_b32 s{aH[0]}, s70, 16")
            A(f"s_sub_u32 s{aH[1]}, 65536, s{aH[0]}")
            A(f"s_lshl_b32 s48, s{sW}, 2")
            A(f"s_add_u32 s48, s48, {FLAG_BASE}")
        A(f"s_lshl_b32 s70, s{sMYB}, 7")
        A(f"s_add_u32 s70, s70, {FLAG_BASE}")
        A(f"s_lshl_b32 s71, s{sW}, 2")
        A("s_add_u32 s70, s70, s71")
        A(f"v_mov_b32 v{T}, 1")
        s.stamp("aE")
        if o.xs:
            s.emit(s.xcc_byte(87))
            if o.xs < 3: A("s_mul_i32 s87, s87, 0x01010101")
            else: A("s_mov_b64 exec, 15")
        def a_wo10(p, half, slot, off=131072):
            for t_ in range(4):
                if t_ == 0:
                    A(f"s_add_u32 m0, s{sW4K}, {slot}")
                    A(f"s_add_u32 s72, s{aWP[p]}, s{aH[half]}")
                A(f"s_add_u32 s71, s72, {off + t_*3072}")
                A(f"buffer_load_dwordx4 v4, {srd(sWO)}, s71 offen offset:{t_*1024}{s.nto} lds")
        if o.tail == 10:
            a_wo10(0, 1, P[1] + 16384)
            A("s_waitcnt vmcnt(4)")
        elif o.tail == 12 and o.t12v == 3:
            A("s_waitcnt vmcnt(0)")
        elif o.tail == 12:
            a_wo10(0, 1, P[1] + 16384)
            A("s_waitcnt vmcnt(4)")
        elif o.tail == 11:
            for (pp_, hh_, sl_) in eval(o.t11a): a_wo10(pp_, hh_, sl_)
        else: A("s_waitcnt vmcnt(0)")
        s.stamp("adr")
        if o.xs in (1, 2):
            A("v_readfirstlane_b32 s71, v252")
            A("s_cmp_eq_u32 s71, s87")
            A("s_cbranch_scc0 A_wb ; @nottaken" if o.xs == 1 else "s_branch A_wb")
            s.lab("A_wbr")
        elif o.xs:
            A("v_cmp_eq_u32 vcc, s87, v252")
            A("s_cmp_eq_u32 vcc_lo, 15")
            A("s_cbranch_scc0 A_wb ; @nottaken" if o.xs == 3 else "s_branch A_wb")
            s.lab("A_wbr")
        if o.tail != 11:
            A("s_mov_b64 exec, 1")
            A(f"buffer_store_dword v{T}, off, {srd(sWS)}, s70{s.ofl1}")
            A("s_mov_b64 exec, -1")
        if o.apre:
            A(f"s_mov_b64 exec, s[{sEXLO}:{sEXHI}]")
            for D in range(4):
                for h in range(2):
                    A(f"s_add_u32 s71, s{sOBASE}, {(4*D+2*h)*1792}")
                    A(f"buffer_load_dwordx4 {vr(32+8*D+4*h,4)}, v{OV}, {srd(sWS)}, s71 offen{['', '', ' sc1', ' nt'][o.apre]} ; @dummy")
            A("s_mov_b64 exec, -1")
        if o.tail == 12:
            SY = P[0] + 3*8192 + 256
            A("v_lshrrev_b32 v8, 5, v1")
            A("v_mul_u32_u24 v12, 448, v8")
            A("v_and_b32 v9, 31, v1")
            A("v_add_u32 v12, v12, v9")
            A(f"s_lshl_b32 s70, s{sW}, 5")
            A("v_add_u32 v12, s70, v12")
            A("v_lshlrev_b32 v12, 4, v12")
            A("v_add_u32 v13, 3584, v12")
            A(f"v_mov_b32 v14, {SY}")
            A(f"s_lshl_b32 s70, s{sW}, 2")
            A(f"s_add_u32 s70, s70, {SY + 16}")
            A("v_mov_b32 v15, s70")
            nb_ = [0]
            def a_sig(level):
                A(f"v_mov_b32 v16, {level}")
                A("s_mov_b64 exec, 1")
                A("ds_write_b32 v15, v16")
                A("s_mov_b64 exec, -1")
            def a_need(level):
                n = nb_[0]; nb_[0] += 1
                A(f"s_mov_b32 s{sSPIN}, 0")
                s.lab(f"A_n{n}")
                A("ds_read_b128 v[8:11], v14")
                A(f"s_add_u32 s{sSPIN}, s{sSPIN}, 1")
                A("s_waitcnt lgkmcnt(0)")
                A("v_min3_u32 v8, v8, v9, v10")
                A("v_min_u32 v8, v8, v11")
                A("v_readfirstlane_b32 s70, v8")
                A(f"s_cmp_ge_u32 s70, {level}")
                A(f"s_cbranch_scc1 A_n{n}d ; @taken")
                A(f"s_cmp_lt_u32 s{sSPIN}, {o.spin * 8}")
                A(f"s_cbranch_scc1 A_n{n}")
                s.lab(f"A_n{n}d")
            def a_g(p, region):
                A(f"s_mov_b64 exec, s[{sEXLO}:{sEXHI}]")
                for half in range(2):
                    A(f"s_lshl_b32 s70, s{sW}, 13")
                    A(f"s_add_u32 m0, s70, {region + half*4096}")
                    A(f"s_add_u32 s72, s{49+p}, s{53+half}")
                    for j in range(4):
                        d_ = (j & 1) * 1792 - j * 1024
                        if d_ >= 0: A(f"s_add_u32 s71, s72, {d_}")
                        else: A(f"s_sub_u32 s71, s72, {-d_}")
                        A(f"buffer_load_dwordx4 v{12 + (j >> 1)}, {srd(sWS)}, s71 offen offset:{j*1024} sc1 lds")
                A("s_mov_b64 exec, -1")
            if o.t12v == 4:
                a_need(2)
                a_wo10(1, 0, W[0]); a_wo10(1, 1, W[1])
                a_need(3)
                a_wo10(2, 0, W[2]); a_wo10(2, 1, W[3])
                A("s_waitcnt vmcnt(16)")
                a_sig(1)
                a_need(4)
                a_wo10(3, 0, P[1]); a_wo10(3, 1, P[2])
                A("s_waitcnt vmcnt(16)")
                a_sig(2)
                A("s_waitcnt vmcnt(8)")
                a_sig(3)
                A("s_waitcnt vmcnt(0)")
                a_sig(4)
            elif o.t12v == 3:
                A("v_lshlrev_b32 v17, 4, v1")
                A(f"v_add_u32 v17, s{sW4K}, v17")
                A(f"v_add_u32 v18, {W[0]}, v17")
                A(f"v_add_u32 v19, {P[2]}, v17")
                A("v_lshlrev_b32 v20, 4, v1")
                A(f"s_lshl_b32 s70, s{sW}, 13")
                A("v_add_u32 v20, s70, v20")
                A(f"v_add_u32 v21, {W[2]}, v20")
                RW = {(0, 1): 32, (1, 0): 48, (1, 1): 64, (2, 0): 80, (2, 1): 96, (3, 0): 112, (3, 1): 128}
                RG = {1: 144, 2: 176, 3: 208}
                def ldW(p, half):
                    for t_ in range(4):
                        if t_ == 0: A(f"s_add_u32 s72, s{aWP[p]}, s{aH[half]}")
                        A(f"s_add_u32 s71, s72, {131072 + t_*3072}")
                        A(f"buffer_load_dwordx4 {vr(RW[(p, half)] + 4*t_, 4)}, v4, {srd(sWO)}, s71 offen offset:{t_*1024}{s.nto}")
                def wrW(p, half, slot):
                    if slot >= W[0]: vb, off = 18, slot - W[0]
                    elif slot >= P[2]: vb, off = 19, slot - P[2]
                    else: vb, off = 17, slot
                    for t_ in range(4):
                        A(f"ds_write_b128 v{vb}, {vr(RW[(p, half)] + 4*t_, 4)} offset:{off + t_*1024}")
                def ldG(p):
                    A(f"s_mov_b64 exec, s[{sEXLO}:{sEXHI}]")
                    for half in range(2):
                        A(f"s_add_u32 s72, s{49+p}, s{53+half}")
                        for j in range(4):
                            A(f"buffer_load_dwordx4 {vr(RG[p] + 16*half + 4*j, 4)}, v{12 + (j >> 1)}, {srd(sWS)}, s72 offen offset:{(j & 1)*1792} sc1")
                    A("s_mov_b64 exec, -1")
                def wrG(p, vb):
                    A(f"s_mov_b64 exec, s[{sEXLO}:{sEXHI}]")
                    for k in range(8):
                        A(f"ds_write_b128 v{vb}, {vr(RG[p] + 4*k, 4)} offset:{k*1024}")
                    A("s_mov_b64 exec, -1")
                def sigw(level):
                    A("s_waitcnt lgkmcnt(0)"); a_sig(level)
                def poll_iss():
                    A("s_mov_b64 exec, 7")
                    A(f"buffer_load_dword v6, v5, {srd(sWS)}, s48 offen sc1")
                    A("s_mov_b64 exec, -1")
                def poll_chk():
                    A("s_mov_b64 exec, 7")
                    A("v_cmp_ne_u32 vcc, 0, v6")
                    A("s_mov_b64 exec, -1")
                    A("s_cmp_eq_u32 vcc_lo, 7")
                poll_iss()
                ldW(0, 1); ldW(1, 0); ldW(1, 1)
                A("s_waitcnt vmcnt(12)")
                poll_chk()
                A("s_cbranch_scc0 A_pf ; @hook=GSLOW")
                s.stamp("apl")
                ldG(1)
                A("s_waitcnt vmcnt(16)")
                wrW(0, 1, P[1] + 16384); sigw(1)
                a_need(2)
                A("s_waitcnt vmcnt(8)")
                wrW(1, 0, W[0]); wrW(1, 1, W[1]); sigw(2)
                A("s_branch A_pj")
                s.lab("A_pf")
                A("s_waitcnt vmcnt(8)")
                wrW(0, 1, P[1] + 16384); sigw(1)
                a_need(2)
                A("s_waitcnt vmcnt(0)")
                wrW(1, 0, W[0]); wrW(1, 1, W[1]); sigw(2)
                A(f"s_mov_b32 s{sSPIN}, 0")
                s.lab("A_poll")
                poll_iss()
                A(f"s_add_u32 s{sSPIN}, s{sSPIN}, 1")
                A("s_waitcnt vmcnt(0)")
                poll_chk()
                A("s_cbranch_scc1 A_polld ; @taken")
                A(f"s_cmp_lt_u32 s{sSPIN}, {o.spin}")
                A("s_cbranch_scc1 A_poll")
                s.lab("A_polld")
                s.stamp("apl")
                ldG(1)
                s.lab("A_pj")
                ldW(2, 0); ldW(2, 1)
                A("s_waitcnt vmcnt(8)")
                s.stamp("ag1")
                wrG(1, 20); sigw(3)
                ldG(2)
                a_need(4)
                A("s_waitcnt vmcnt(8)")
                wrW(2, 0, P[1]); wrW(2, 1, P[2]); sigw(4)
                ldW(3, 0); ldW(3, 1)
                A("s_waitcnt vmcnt(8)")
                s.stamp("ag2")
                wrG(2, 21); sigw(5)
                ldG(3)
                a_need(5)
                A("s_waitcnt vmcnt(0)")
                wrG(3, 20); sigw(6)
                a_need(6)
                wrW(3, 0, W[2]); wrW(3, 1, W[3]); sigw(7)
            else:
              pass
            if o.t12v == 0:
                a_need(2)
                a_wo10(1, 0, W[0]); a_wo10(1, 1, W[1])
            def dma_version():
                A(f"s_mov_b32 s{sSPIN}, 0")
                s.lab("A_poll")
                A("s_mov_b64 exec, 7")
                A(f"buffer_load_dword v6, v5, {srd(sWS)}, s48 offen sc1")
                A(f"s_add_u32 s{sSPIN}, s{sSPIN}, 1")
                A("s_waitcnt vmcnt(0)")
                A("v_cmp_ne_u32 vcc, 0, v6")
                A("s_mov_b64 exec, -1")
                A("s_mov_b32 s49, vcc_lo")
                a_sig(3 if o.t12v == 0 else 1)
                A("s_cmp_eq_u32 s49, 7")
                A("s_cbranch_scc1 A_polld ; @taken")
                A(f"s_cmp_lt_u32 s{sSPIN}, {o.spin}")
                A("s_cbranch_scc1 A_poll")
                s.lab("A_polld")
                s.stamp("apl")
                if o.t12v == 0:
                    a_g(1, P[0])
                    a_need(3)
                    a_g(2, W[2])
                    A("s_waitcnt vmcnt(8)")
                    s.stamp("ag1")
                    a_sig(4)
                    a_need(4)
                    a_wo10(2, 0, P[1]); a_wo10(2, 1, P[2])
                    A("s_waitcnt vmcnt(8)")
                    a_sig(5)
                else:
                    a_need(2)
                    a_g(1, P[0])
                    a_wo10(1, 0, W[0]); a_wo10(1, 1, W[1])
                    if o.t12v == 1:
                        A("s_waitcnt vmcnt(8)")
                        s.stamp("ag1")
                        a_sig(2)
                        a_need(3)
                        a_g(2, W[2])
                        A("s_waitcnt vmcnt(8)")
                    else:
                        a_need(3)
                        a_g(2, W[2])
                        A("s_waitcnt vmcnt(16)")
                        s.stamp("ag1")
                        a_sig(2)
                        A("s_waitcnt vmcnt(8)")
                    s.stamp("aw1")
                    a_sig(3)
                    a_need(4)
                    a_wo10(2, 0, P[1]); a_wo10(2, 1, P[2])
                    A("s_waitcnt vmcnt(8)")
                    s.stamp("ag2")
                    a_sig(5)
                a_need(5)
                a_g(3, P[0])
                A("s_waitcnt vmcnt(8)")
                a_sig(6)
                a_need(6)
                a_wo10(3, 0, W[2]); a_wo10(3, 1, W[3])
                A("s_waitcnt vmcnt(8)")
                a_sig(7)
                A("s_waitcnt vmcnt(0)")
                a_sig(8)
            if o.t12v not in (3, 4): dma_version()
            A("s_waitcnt lgkmcnt(0)")
        elif o.tail == 11:
            for seq in eval(o.t11b):
                ib_ = eval(o.t11b).index(seq)
                s.stamp(f"ab{ib_}")
                if seq[0] is not None: A(f"s_waitcnt vmcnt({seq[0]})")
                s.stamp(f"aw{ib_}_")
                A("s_barrier")
                for (pp_, hh_, sl_) in seq[1]: a_wo10(pp_, hh_, sl_)
        elif o.tail == 10:
            A(f"s_bitcmp1_b32 s{sHG}, 0")
            A("s_cbranch_scc1 A_t10o ; @hook=ODD")
            A("s_barrier")
            a_wo10(1, 0, W[0]); a_wo10(1, 1, W[1])
            a_wo10(3, 0, P[0], 1 << 20); a_wo10(3, 1, P[0] + 16384, 1 << 20)
            A("s_barrier")
            a_wo10(2, 0, W[2]); a_wo10(2, 1, W[3])
            A("s_waitcnt vmcnt(25)")
            A("s_barrier")
            a_wo10(3, 0, P[1]); a_wo10(3, 1, P[2])
            A("s_waitcnt vmcnt(16)")
            A("s_barrier")
            A("s_waitcnt vmcnt(0)")
            A("s_barrier")
            A("s_branch A_t10j")
            s.lab("A_t10o")
            A("s_waitcnt vmcnt(1)")
            A("s_barrier")
            a_wo10(1, 0, W[0]); a_wo10(1, 1, W[1])
            a_wo10(2, 0, P[0]); a_wo10(2, 1, P[0] + 16384)
            A("s_waitcnt vmcnt(8)")
            A("s_barrier")
            A("s_waitcnt vmcnt(0)")
            A("s_barrier")
            s.lab("A_t10j")
        elif o.tail in (8, 9):
            T8 = {(0,1): P[1] + 16384, (1,0): W[0], (1,1): W[1], (2,0): W[2], (2,1): W[3], (3,0): P[1], (3,1): P[2]}
            def a_wo8(p, half):
                for t_ in range(4):
                    if t_ == 0:
                        A(f"s_add_u32 m0, s{sW4K}, {T8[(p, half)]}")
                        A(f"s_add_u32 s72, s{aWP[p]}, s{aH[half]}")
                    A(f"s_add_u32 s71, s72, {131072 + t_*3072}")
                    A(f"buffer_load_dwordx4 v4, {srd(sWO)}, s71 offen offset:{t_*1024}{s.nto} lds")
            if o.t9e >= 2: A("s_barrier")
            if o.t8a == 0 or o.t9e: a_wo8(0, 1)
            if not o.t9e: A("s_barrier")
            if o.t8a == 1 and not o.t9e: a_wo8(0, 1)
            a_wo8(1, 0); a_wo8(1, 1)
            A("s_barrier")
            a_wo8(2, 0); a_wo8(2, 1)
            A("s_waitcnt vmcnt(16)")
            A("s_barrier")
            a_wo8(3, 0); a_wo8(3, 1)
            A("s_waitcnt vmcnt(0)")
            A("s_barrier")
        elif o.tail == 6:
            T6 = {(0,1): P[1] + 16384, (1,0): W[0], (1,1): W[1], (2,0): W[2], (2,1): W[3], (3,0): P[0], (3,1): P[0] + 16384}
            def a_wo(p, half):
                for t_ in range(4):
                    if t_ == 0:
                        A(f"s_add_u32 m0, s{sW4K}, {T6[(p, half)]}")
                        A(f"s_add_u32 s72, s{aWP[p]}, s{aH[half]}")
                    A(f"s_add_u32 s71, s72, {131072 + t_*3072}")
                    A(f"buffer_load_dwordx4 v4, {srd(sWO)}, s71 offen offset:{t_*1024}{s.nto} lds")
            a_wo(0, 1)
            A("s_barrier")
            a_wo(1, 0); a_wo(1, 1)
            if o.t6v == 1: a_wo(3, 0); a_wo(3, 1)
            A(f"s_waitcnt vmcnt({16 if o.t6v == 1 else 8})")
            s.stamp("aTa")
            A("s_barrier")
            A("s_mov_b64 exec, 7")
            A(f"buffer_load_dword v6, v5, {srd(sWS)}, s48 offen sc1")
            A("s_mov_b64 exec, -1")
            if o.t6v != 3: a_wo(2, 0); a_wo(2, 1)
            A(f"s_mov_b32 s{sSPIN}, 0")
            A(f"s_waitcnt vmcnt({8 if o.t6v != 3 else 0})")
            A("s_mov_b64 exec, 7")
            s.lab("A_poll")
            A("v_cmp_ne_u32 vcc, 0, v6")
            A("s_cmp_eq_u32 vcc_lo, 7")
            A("s_cbranch_scc1 A_polld ; @taken")
            A(f"buffer_load_dword v6, v5, {srd(sWS)}, s48 offen sc1")
            A(f"s_add_u32 s{sSPIN}, s{sSPIN}, 1")
            A("s_waitcnt vmcnt(0)")
            A(f"s_cmp_lt_u32 s{sSPIN}, {o.spin}")
            A("s_cbranch_scc1 A_poll")
            s.lab("A_polld")
            A("s_mov_b64 exec, -1")
            s.stamp("apl")
            A("s_barrier")
            if o.t6v == 1:
                A("s_waitcnt vmcnt(0)")
                A("s_barrier")
            else:
                if o.t6v == 3: a_wo(2, 0); a_wo(2, 1)
                a_wo(3, 0); a_wo(3, 1)
                A("s_waitcnt vmcnt(8)")
                A("s_barrier")
                A("s_waitcnt vmcnt(0)")
                A("s_barrier")
        else:
            for _ in range(o.abar): A("s_barrier")
        if o.wb:
            if o.wb == 1: A(f"s_cmp_eq_u32 s{sW}, 0")
            elif o.wb == 2:
                A(f"s_or_b32 s70, s{sW}, s{sHP}"); A("s_cmp_eq_u32 s70, 0")
            elif o.wb == 3:
                A(f"s_or_b32 s70, s{sW}, s{sHP}"); A(f"s_or_b32 s70, s70, s{sB}"); A("s_cmp_eq_u32 s70, 0")
            A("s_cbranch_scc0 A_nowb")
            for _ in range(o.wbn): A("s_barrier")
            A("buffer_wbl2 sc1")
            s.lab("A_nowb")
        if o.astamp >= 0:
            A(f"s_cmp_lg_u32 s{sW}, 0")
            A("s_cbranch_scc1 L_end")
            A("s_lshl_b32 s70, s2, 8")
            A(f"s_add_u32 s70, s70, {STAMP_BASE + 65536}")
            A("s_mov_b64 exec, 1")
            for i in range(7):
                A(f"v_mov_b32 v32, s{50+i}")
                A(f"buffer_store_dword v32, off, {srd(sWS)}, s70 offset:{4*i}")
                A("s_nop 1")
        if o.stamp and not o.dbgst and o.astamp < 0:
            A("s_waitcnt vmcnt(0) lgkmcnt(0)")
            A(f"s_cmp_lg_u32 s{sW}, {o.stw}")
            A("s_cbranch_scc1 L_end")
            n = len(o.stamps.split(","))
            A("s_lshl_b32 s70, s2, 8")
            A(f"s_add_u32 s70, s70, {STAMP_BASE + 65536}")
            A("s_mov_b64 exec, 1")
            for i in range(n):
                r = STAMP_REGS[i]
                A(f"v_mov_b32 v32, s{r}"); A(f"v_mov_b32 v33, s{r+1}")
                A(f"buffer_store_dwordx2 v[32:33], off, {srd(sWS)}, s70 offset:{8*i}")
                A("s_nop 1")
        A("s_endpgm")
        if o.xs:
            s.lab("A_wb")
            A("buffer_wbl2 sc1")
            A("s_waitcnt vmcnt(0)")
            A("s_branch A_wbr")
        s.lab("A_tope")
        A(f"s_cmp_eq_u32 s{sSTEP}, 0")
        A("s_cbranch_scc0 A_top8")
        A(f"s_waitcnt vmcnt({n0})")
        s.stamp("a0w")
        A("s_barrier")
        s.stamp("a0b")
        for i in range(8):
            A(f"ds_read_b128 {vr(Q_+4*i,4)}, v{QA} offset:{i*1024}")
        if o.s0q:
            cur = SB[0]
            def kr0(i): return f"ds_read_b128 {vr(WIN + 4*(i % 8), 4)}, v{KA + i % 8} offset:{(i // 8)*8192}"
            mx0 = lambda d, a, b, c: [f"v_max3_f32 v{d}, v{a}, v{b}, v{c}"]
            def maxT0(base, d0, d1):
                return [mx0(d0, base, base+1, base+2), mx0(d1, base+8, base+9, base+10),
                        mx0(d0, d0, base+3, base+4), mx0(d1, d1, base+11, base+12),
                        mx0(d0, d0, base+5, base+6), mx0(d1, d1, base+13, base+14),
                        mx0(d0, d0, base+7, base+15)]
            for i in range(7): A(kr0(i))
            A(f"v_add_u32 v{QA}, 16384, v{QA}")
            zer = [[f"v_mov_b64 {vr(O+2*i,2)}, 0"] for i in range(32)]
            for it in zer[:o.s0z]: s.emit(it)
            gaps = [[] for _ in range(16)]
            spread(gaps, zer[o.s0z:], 0, 9)
            spread(gaps, maxT0(cur, U, U+1), 10, 16)
            pend = list(range(7))
            for i in range(16):
                T_, k = divmod(i, 8)
                if i % 2 == 0:
                    need = max(j_ for j_ in (i, i + 1) if j_ in pend) if any(j_ in pend for j_ in (i, i + 1)) else None
                    if i == 6:
                        pass
                    if need is not None:
                        n_ = len(pend) - 1 - pend.index(need)
                        A(f"s_waitcnt lgkmcnt({n_})")
                        pend = pend[pend.index(need) + 1:]
                if i == 0:
                    A(kr0(7)); pend.append(7)
                srcC = vr(NM, 16) if k == 0 else vr(cur + 16*T_, 16)
                A(f"v_mfma_f32_32x32x16_bf16 {vr(cur+16*T_,16)}, {vr(WIN+4*(i%8),4)}, {vr(Q_+4*k,4)}, {srcC}")
                if i + 8 < 16:
                    A(kr0(i + 8)); pend.append(i + 8)
                s.emit(gaps[i])
            A(f"s_bitcmp1_b32 s{sPAT}, s{sSTEP}")
            A(f"s_cselect_b32 s70, s{sNEG}, s{sPOS}")
            for k in range(8): A(f"v_add_u32 v{KA+k}, s70, v{KA+k}")
            for D in range(4): A(f"v_add_u32 v{VA+D}, s70, v{VA+D}")
            for it in maxT0(cur + 16, U+2, U+3): s.emit(it)
            A(f"v_max3_f32 v{U}, v{U}, v{U+1}, v{U+2}")
            A(f"v_max_f32 v{U}, v{U}, v{U+3}")
            A(f"v_mov_b32 v{U+1}, v{U}")
            A(f"v_permlane32_swap_b32 v{U}, v{U+1}")
            A(f"v_max_f32 v{U}, v{U}, v{U+1}")
            for i in range(16):
                A(f"v_sub_f32 v{cur+i}, v{cur+i}, v{U}")
            for i in range(16):
                A(f"v_exp_f32 v{cur+i}, v{cur+i}")
                A(f"v_sub_f32 v{cur+16+i}, v{cur+16+i}, v{U}")
                A(f"v_sub_f32 v{NM+i}, v{NM+i}, v{U}")
            A(f"s_mov_b32 s{sSTEP}, 1")
            A("s_branch A_par1")
            s.lab("A_top8")
        else:
            A(f"v_add_u32 v{QA}, 16384, v{QA}")
            A("s_branch A_top8b")
            s.lab("A_top8")
        A("s_barrier")
        if o.xs in (1, 2): A(f"buffer_load_dword v252, off, {srd(sDBG)}, s{sGRP} sc1")
        elif o.xs:
            A("v_mbcnt_lo_u32_b32 v253, -1, 0")
            A("v_lshlrev_b32 v253, 7, v253")
            A(f"s_lshl_b32 s70, s{sGRP}, 7")
            A(f"s_add_u32 s70, s70, {FLAG_BASE + 64}")
            A("s_mov_b64 exec, 15")
            A(f"buffer_load_dword v252, v253, {srd(sWS)}, s70 offen sc1")
            A("s_mov_b64 exec, -1")
        for i in range(8):
            A(f"ds_read_b128 {vr(Q_+4*i,4)}, v{QA} offset:{i*1024}")
        s.lab("A_top8b")
        A(f"s_mov_b32 s{sTHR}, 0xff800000")
        A("s_waitcnt lgkmcnt(7)" if (o.s8f & 1 and o.s0q) else "s_waitcnt lgkmcnt(0)")
        A("s_branch A_toper")
        s.lab("A_topo")
        A(f"s_cmp_eq_u32 s{sSTEP}, 1")
        A("s_cbranch_scc0 A_top7")
        s.stamp("a1p")
        A(f"s_waitcnt vmcnt({n1})")
        s.stamp("a1w")
        A("s_barrier")
        if o.xs in (1, 2):
            A(f"s_cmp_lg_u32 s{sW}, 0")
            A("s_cbranch_scc1 A_topor")
            s.emit(s.xcc_byte(70))
            A("v_mov_b32 v252, s70")
            A("s_mov_b64 exec, 1")
            A(f"buffer_store_byte v252, off, {srd(sDBG)}, s{sMYB} sc1")
            A("s_mov_b64 exec, -1")
        A("s_branch A_topor")
        s.lab("A_top7")
        A(f"s_or_b32 s{sPEND}, s{sPEND}, 4")
        A("s_barrier")
        A("s_branch A_topor")
        for par in range(2):
            tagp = "e" if par == 0 else "o"; cur = SB[par]
            s.lab(f"A_resc{tagp}")
            A(f"v_mov_b32 v{U+1}, v{U}")
            A(f"v_permlane32_swap_b32 v{U}, v{U+1}")
            A(f"v_max_f32 v{U}, v{U}, v{U+1}")
            if par == 0:
                A(f"s_and_b32 s71, s{sSTEP}, 7")
                A("s_cmp_eq_u32 s71, 0")
                A("s_cbranch_scc1 A_hsw")
            A(f"v_max_f32 v{U}, 0, v{U}")
            A(f"v_sub_f32 v{U+1}, 0, v{U}")
            A(f"v_exp_f32 v{AL}, v{U+1}")
            A(f"s_or_b32 s{sPEND}, s{sPEND}, 1")
            A(f"v_mul_f32 v{LS}, v{AL}, v{LS}")
            A(f"v_mul_f32 v{LS+1}, v{AL}, v{LS+1}")
            if par == 0: s.lab("A_hswj")
            for i in range(32): A(f"v_sub_f32 v{cur+i}, v{cur+i}, v{U}")
            for i in range(16): A(f"v_sub_f32 v{NM+i}, v{NM+i}, v{U}")
            A(f"s_branch A_resc{tagp}r")
        s.lab("A_hsw")
        s.emit(rl_lines(RL))
        A(f"v_mov_b64 {vr(LS,2)}, 0")
        A(f"s_mov_b32 s{sTHR}, {hex(fbits(THR))}")
        A(f"s_lshr_b32 s{sPEND}, s{sSTEP}, 3")
        A(f"s_add_u32 s{sPEND}, s{sPEND}, 2")
        A(f"s_lshl_b32 s{sPEND}, s{sPEND}, 3")
        A("s_branch A_hswj")
        for par in range(2):
            tagp = "e" if par == 0 else "o"
            s.lab(f"A_pend{tagp}")
            if par == 0:
                A(f"s_cmp_ge_u32 s{sPEND}, 16")
                A("s_cbranch_scc1 A_pz")
            A(f"s_bitcmp1_b32 s{sPEND}, 0")
            A(f"s_cbranch_scc0 A_pn{tagp}")
            for i in range(32):
                A(f"v_pk_mul_f32 {vr(O+2*i,2)}, {vr(O+2*i,2)}, {vr(AL,2)} op_sel_hi:[1,0]")
            s.lab(f"A_pn{tagp}")
            if par == 1:
                A(f"s_bitcmp1_b32 s{sPEND}, 2")
                A(f"s_cbranch_scc0 A_pm{tagp}")
                for i in range(8): A(f"v_mov_b64 {vr(NM+2*i,2)}, 0")
                s.lab(f"A_pm{tagp}")
            A(f"s_mov_b32 s{sPEND}, 0")
            A(f"s_branch A_pend{tagp}r")
        s.lab("A_pz")
        A(f"s_cmp_eq_u32 s{sPEND}, 24")
        A("s_cbranch_scc0 A_pz2")
        if o.s8f & 2 and o.s0q:
            for D in range(4):
                for i in range(8): A(f"v_pk_mul_f32 {vr(O+16*D+2*i,2)}, {vr(O+16*D+2*i,2)}, {vr(RL,2)} op_sel_hi:[1,0]")
                for h in range(2):
                    for i in range(4*h, 4*h + 4): A(f"v_cvt_pk_bf16_f32 v{WIN+8*D+i}, v{O+16*D+2*i}, v{O+16*D+2*i+1}")
                    A(f"ds_write_b128 v{QA}, {vr(WIN+8*D+4*h,4)} offset:{(2*D+h)*1024}")
            for i in range(32): A(f"v_mov_b64 {vr(O+2*i,2)}, 0")
            A("s_waitcnt lgkmcnt(0)")
            s.lab("A_pz2")
            A(f"s_mov_b32 s{sPEND}, 0")
            A(f"s_branch A_pender")
        else:
            A(f"v_mov_b32 v{AL}, v{RL}")
            for D in range(4):
                s.emit(fin_D(D, WIN))
                for h in range(2):
                    A(f"ds_write_b128 v{QA}, {vr(WIN+8*D+4*h,4)} offset:{(2*D+h)*1024}")
            A("s_waitcnt lgkmcnt(0)")
            s.lab("A_pz2")
            for i in range(32): A(f"v_mov_b64 {vr(O+2*i,2)}, 0")
            A(f"s_mov_b32 s{sPEND}, 0")
            A(f"s_branch A_pender")

    def waveB(s):
        A = s.A; o = s.opt
        vV, vW, vK, WA, vWO, vO, vQW, vWB = 2, 3, 4, 8, 12, 13, 14, 15
        Y, vR, vOL, VP = 16, 17, 18, 20
        XA = 24
        WIN, X, ACC = 32, 64, 192
        q = Q(63)
        nt = " nt" if o.nt else ""
        PX = [W[0], W[2], P[2]] if o.r3 else [P[1], P[2], W[0], W[2]]
        NR = len(PX)
        s.lab("L_B")
        s.stamp("b0")
        for j_ in eval(o.kpb):
            if j_ == eval(o.kpb)[0]: A(f"v_mul_u32_u24 v28, {o.kpbs}, v1")
            A(f"s_add_u32 s70, s{sKVW}, {j_ * 16384}")
            A(f"buffer_load_dword v0, v28, {srd(sK)}, s70 offen{o.kp0nt} ; @dummy"); q.issue("PF")
            if j_ >= 1:
                A(f"s_add_u32 s70, s{sKVW}, {(j_ - 1) * 16384}")
                A(f"buffer_load_dword v0, v28, {srd(sV)}, s70 offen{o.kp0nt} ; @dummy"); q.issue("PF")
        capL = s.L
        if o.pro2: s.L = []
        def mark(n):
            if o.pro2: s.L.append("@@" + n)
        A(f"v_mov_b32 v{vW}, v2")
        s.late_scalars()
        mark("clr0")
        if o.xs in (1, 2): pass
        elif o.lead:
            A(f"s_or_b32 s70, s{sW}, s{sHG}")
            A(f"s_or_b32 s70, s70, s{sHP}")
            A("s_cmp_lg_u32 s70, 0")
            A("s_cbranch_scc1 B_nclr")
            A("v_mov_b64 v[28:29], 0")
            A("v_mov_b64 v[30:31], 0")
            A("v_lshlrev_b32 v23, 4, v1")
            A(f"s_lshl_b32 s70, s{sGRP}, 7")
            A(f"s_add_u32 s70, s70, {FLAG_BASE}")
            A(f"buffer_store_dwordx4 v[28:31], v23, {srd(sWS)}, s70 offen sc1")
            A(f"buffer_store_dwordx4 v[28:31], v23, {srd(sWS)}, s70 offen offset:1024 sc1")
            A("s_nop 1")
        else:
            A(f"s_cmp_lg_u32 s{sW}, 0")
            A("s_cbranch_scc1 B_nclr")
            A("v_mov_b32 v28, 0")
            A("v_lshlrev_b32 v29, 2, v1")
            A(f"s_lshl_b32 s70, s{sMYB}, 7")
            A(f"s_add_u32 s70, s70, {FLAG_BASE}")
            A("s_mov_b64 exec, 0xfff")
            A(f"buffer_store_dword v28, v29, {srd(sWS)}, s70 offen sc1")
            A("s_mov_b64 exec, -1")
        if o.xs not in (1, 2): s.lab("B_nclr")
        mark("clr1")
        s.kv_voffs(vK, vV)
        A("v_lshlrev_b32 v23, 10, v19")
        A(f"v_add_u32 v{vWO}, v23, v21")
        mark("early0")
        A("v_lshrrev_b32 v22, 2, v20")
        A("v_and_b32 v23, 1, v19")
        A("v_lshlrev_b32 v28, 13, v17")
        A("v_lshlrev_b32 v29, 8, v22")
        A("v_add_u32 v28, v28, v29")
        A("v_lshlrev_b32 v29, 5, v23")
        A("v_add_u32 v28, v28, v29")
        A("v_and_b32 v29, 1, v18")
        A("v_lshlrev_b32 v29, 4, v29")
        A("v_add_u32 v28, v28, v29")
        A("v_lshrrev_b32 v29, 1, v18")
        A("v_lshlrev_b32 v29, 3, v29")
        A(f"v_add_u32 v{vWB}, v28, v29")
        A(f"v_add_u32 v28, {PX[0]}, v{vWB}")
        for D in range(4):
            A(f"v_xor_b32 v29, {D}, v22")
            A(f"v_lshlrev_b32 v29, 6, v29")
            A(f"v_add_u32 v{WA+D}, v28, v29")
        A("v_and_b32 v28, 31, v1")
        A("v_lshrrev_b32 v29, 1, v28")
        A("v_and_b32 v29, 7, v29")
        A("v_lshlrev_b32 v30, 2, v17")
        A("v_xor_b32 v29, v29, v30")
        A("v_lshlrev_b32 v28, 7, v28")
        A(f"s_add_u32 s70, s{sW4K}, {PX[0]}")
        A("v_add_u32 v28, s70, v28")
        for j in range(4):
            A(f"v_xor_b32 v30, {j}, v29")
            A(f"v_lshlrev_b32 v30, 4, v30")
            A(f"v_add_u32 v{XA+j}, v28, v30")
        mark("early1")
        if o.pro2: A("v_lshrrev_b32 v22, 2, v20")
        A(f"v_mul_u32_u24 v{vO}, 448, v17")
        A("v_and_b32 v29, 31, v1")
        A(f"v_add_u32 v{vO}, v{vO}, v29")
        A(f"s_lshl_b32 s70, s{sW}, 5")
        A(f"v_add_u32 v{vO}, s70, v{vO}")
        A(f"v_lshlrev_b32 v{vO}, 4, v{vO}")
        A(f"s_lshl_b32 s70, s{sW}, 13")
        A(f"s_add_u32 s70, s70, {W[0]}")
        A(f"v_lshlrev_b32 v{vQW}, 4, v1")
        A(f"v_add_u32 v{vQW}, s70, v{vQW}")
        A(f"v_lshlrev_b32 v30, 11, v17")
        A(f"v_lshlrev_b32 v29, 4, v29")
        A(f"v_add_u32 v30, v30, v29")
        A(f"s_add_u32 s70, s70, 16384")
        A(f"v_add_u32 v31, s70, v30")
        A(f"v_mov_b32 v{vOL}, v31")
        A(f"v_mov_b32 v{vR}, v22")
        A(f"v_add_u32 v{Y}, 3584, v{vO}")
        A(f"s_lshl_b32 s70, s{sHG}, 20")
        A(f"s_lshl_b32 s71, s{sW}, 14")
        A("s_add_u32 s70, s70, s71")
        A(f"s_lshl_b32 s71, s{sHP}, 8")
        A(f"s_add_u32 s{sWOB}, s70, s71")
        A(f"s_lshl_b32 s70, s{sBR}, 3")
        A(f"s_add_u32 s70, s70, s{sB}")
        A(f"s_lshl_b32 s70, s70, 5")
        A(f"s_lshl_b32 s71, s{sHG}, 3")
        A(f"s_add_u32 s70, s70, s71")
        A(f"s_mul_i32 s73, s70, {UNIT}")
        sH = (77, 79); sOH = (76, 3)
        if o.wrot:
            A(f"s_mul_i32 s76, s{sB}, 11")
            A("s_lshr_b32 s76, s76, 5")
            A("s_mul_i32 s76, s76, 3")
            A(f"s_sub_u32 s76, s{sB}, s76")
            if not (o.wrot & 1): A("s_mov_b32 s76, 0")
        for p in range(4):
            if o.wrot and p > 0:
                A(f"s_add_u32 s70, s76, {p - 1}")
                A("s_sub_u32 s71, s70, 3")
                A("s_cmp_ge_u32 s70, 3")
                A("s_cselect_b32 s70, s71, s70")
                A(f"s_add_u32 s70, s70, s{sHP}")
                A("s_add_u32 s70, s70, 1")
            else:
                A(f"s_add_u32 s70, s{sHP}, {p}")
            A("s_and_b32 s70, s70, 3")
            A(f"s_lshl_b32 s71, s70, 18")
            A(f"s_add_u32 s{sWP+p}, s{sWOB}, s71")
            A(f"s_mul_i32 s71, s70, {2*UNIT}")
            A(f"s_add_u32 s{sOP+p}, s73, s71")
            if o.tail == 10 and p == 3:
                A(f"s_add_u32 s52, s70, s{sGRP}")
                A("s_add_u32 s52, s52, 4")
                A("s_lshl_b32 s52, s52, 7")
        vOL2 = 19
        if o.wrot:
            A(f"s_and_b32 s70, s{sB}, 1")
            if not (o.wrot & 2): A("s_mov_b32 s70, 0")
            A(f"s_lshl_b32 s{sH[0]}, s70, 16")
            A(f"s_sub_u32 s{sH[1]}, 65536, s{sH[0]}")
            A(f"s_mul_i32 s{sOH[0]}, s70, 14336")
            A(f"s_sub_u32 s{sOH[1]}, 14336, s{sOH[0]}")
            A("s_lshl_b32 s70, s70, 12")
            A("s_sub_u32 s71, 4096, s70")
            A(f"v_add_u32 v{vOL2}, s71, v{vOL}")
            A(f"v_add_u32 v{vOL}, s70, v{vOL}")
        A(f"s_mov_b32 s74, {hex(fbits(CSCALE))}")
        sCS = 74
        sPF = 75

        def wait_vm(tags):
            n = q.wait(tags)
            if n is not None: A(f"s_waitcnt vmcnt({n})")
        def mat(groups):
            out = []
            for tag, ins in groups:
                q.issue(tag); out.append(ins)
            return out
        def dma_wo(rr, p, half, slot, xoff=None):
            g = []
            tagp, tagh = p, half
            if (o.abl & 64) and rr == 0 and p >= 1: p, half = 1, 1
            if (o.abl & 128) and rr == 0 and p >= 1: p, half = 0, 1
            for t in range(4):
                pre = [f"s_add_u32 m0, s{sW4K}, {slot}"] if (t == 0 or o.ilv) else []
                if o.wrot:
                    if t == 0: pre.append(f"s_add_u32 s72, s{sWP+p}, s{sH[half]}")
                    if t == 0 and o.tail == 10 and rr == 0 and p == 3 and xoff is None: pre.append("s_add_u32 s72, s72, s53")
                    if t == 0 and xoff: pre.append(f"s_add_u32 s72, s72, {xoff}")
                    addr = f"s_add_u32 s71, s72, {rr*131072 + t*3072}"
                else:
                    addr = f"s_add_u32 s71, s{sWP+p}, {(rr*128 + 64*half)*1024 + t*3072}"
                g.append((f"O{rr}{tagp}{tagh}", pre + [addr,
                          f"buffer_load_dwordx4 v{vWO}, {srd(sWO)}, s71 offen offset:{t*1024}{' nt' if ((rr, p, half) in eval(o.ntoc)) else s.nto} lds"]))
            return g
        def of_mem(rr, p, half, tag, store=False, clean=False, blk=None, xoff=0):
            g = []
            xb = 2*p + half if blk is None else blk + half
            for jj in range(2):
                va = vO if jj == 0 else Y
                if o.wrot:
                    ins = [f"s_add_u32 s72, s{sOP+p}, s{sOH[half]}"] + ([f"s_add_u32 s72, s72, {rr*UNIT + xoff}"] if (rr or xoff) else []) + [f"s_mov_b64 exec, s[{sEXLO}:{sEXHI}]"]
                else:
                    ins = [f"s_add_u32 s72, s{sOP+p}, {rr*UNIT + half*8*1792}", f"s_mov_b64 exec, s[{sEXLO}:{sEXHI}]"]
                for j in (2*jj, 2*jj+1):
                    op = "buffer_store_dwordx4" if store else "buffer_load_dwordx4"
                    ins.append(f"{op} {vr(X+16*xb+4*j,4)}, v{va}, {srd(sWS)}, s72 offen offset:{(j&1)*1792}{(' sc1' if clean else s.ost0) if store else [' sc1', '', ' sc0'][o.fgl]}{s.nths if (store and not clean) else s.nthl if not store else ''}")
                ins.append("s_mov_b64 exec, -1")
                if o.nox and not store: ins = [l for l in ins if not l.startswith("s_mov_b64 exec")]
                g.append(((tag, tag), ins))
            return g
        def mat2(groups):
            out = []
            for tag, ins in groups:
                if isinstance(tag, tuple):
                    for t_ in tag: q.issue(t_)
                else: q.issue(tag)
                out.append(ins)
            return out

        s.wbase = PX[0]; s.xbase = PX[0]
        def rebase_lines(regs, cur, nb):
            d = (nb - cur) & 0xffffffff
            return [f"v_add_u32 v{r}, {hex(d)}, v{r}" for r in regs]
        def base_for(slot, cur):
            if 0 <= slot - cur <= 49152: return cur
            for b in (P[1], W[0], P[0], P[2]):
                if 0 <= slot - b <= 49152: return b
            raise ValueError
        LA = o.la
        def frags_c(lst):
            fr = []
            for ci, (slot, xb, first) in enumerate(lst):
                fr += [(slot, xb, first and j == 0, j, D, ci) for j in range(4) for D in range(4)]
            return fr
        def stream(fr, fillers=None, prologue=False, gapfill=None, LA=LA, prerd=None, premf=None):
            n = len(fr)
            lq = Q(15)
            def xrd(ci, j):
                slot = PX[ci % NR]; r = []
                nb = base_for(slot, s.xbase)
                if nb != s.xbase:
                    r += rebase_lines(range(XA, XA+4), s.xbase, nb); s.xbase = nb
                lq.issue(f"X{ci}_{j}")
                r.append(f"ds_read_b128 {vr(X+16*ci+4*j,4)}, v{XA+j} offset:{slot - s.xbase}")
                return r
            def rd(f):
                slot, xb, zero, j, D, ci = fr[f]; r = []
                if prerd and f in prerd: r += prerd[f]
                if prologue and j == 0 and D == 0 and ci > 0:
                    r += s.stamp_lines(f"x{ci}")
                    r.append("s_barrier")
                    r += s.stamp_lines(f"p{ci}")
                nb = base_for(slot, s.wbase)
                if nb != s.wbase:
                    r += rebase_lines(range(WA, WA+4), s.wbase, nb); s.wbase = nb
                if prologue and D == 0: r += xrd(ci, j)
                for a in range(2):
                    lq.issue(f)
                    r.append(f"ds_read_b64_tr_b16 {vr(WIN+4*(f%8)+2*a,2)}, v{WA+D} offset:{slot-s.wbase + j*2048 + a*1024}")
                return r
            gaps = gapfill if gapfill is not None else [[] for _ in range(n)]
            if fillers: spread(gaps, fillers, 0, n)
            for f in range(min(LA, n)): s.emit(rd(f))
            issued = min(LA, n)
            for f in range(n):
                slot, xb, zero, j, D, ci = fr[f]
                k = lq.wait([f, f + 1] if (f % 2 == 0 and f + 1 < issued) else [f])
                if k is not None: A(f"s_waitcnt lgkmcnt({k})")
                srcC = "0" if zero else vr(ACC+16*D, 16)
                if premf and f in premf: s.emit(premf[f])
                A(f"v_mfma_f32_32x32x16_bf16 {vr(ACC+16*D,16)}, {vr(WIN+4*(f%8),4)}, {vr(X+16*xb+4*j,4)}, {srcC}")
                if issued < n:
                    s.emit(rd(issued)); issued += 1
                s.emit(gaps[f])
        def write_q(base_off):
            for D in range(4):
                for i in range(16):
                    A(f"v_mul_f32 v{ACC+16*D+i}, s{sCS}, v{ACC+16*D+i}")
                for h in range(2):
                    f = 2*D + h
                    for i in range(4):
                        A(f"v_cvt_pk_bf16_f32 v{WIN+4*f+i}, v{ACC+16*D+8*h+2*i}, v{ACC+16*D+8*h+2*i+1}")
                    A(f"ds_write_b128 v{vQW}, {vr(WIN+4*f,4)} offset:{base_off + f*1024}")
            A("s_waitcnt lgkmcnt(0)")
        def pair(j):
            a = s.dma_k(j, vK, nt, f"KV{j}") if j <= 15 else []
            b = s.dma_v(j, vV, nt, f"KV{j}") if j >= 1 else []
            return a + b
        def own_frags():
            for half in range(2):
                for j in range(4):
                    if o.wrot: A(f"ds_read_b128 {vr(X+16*half+4*j,4)}, v{(vOL, vOL2)[half]} offset:{j*512}")
                    else: A(f"ds_read_b128 {vr(X+16*half+4*j,4)}, v{vOL} offset:{half*4096 + j*512}")
            A("s_waitcnt lgkmcnt(0)")

        A(f"v_add_u32 v21, s{sHP}, v1")
        A("v_add_u32 v21, 1, v21")
        A("v_and_b32 v21, 3, v21")
        A(f"v_add_u32 v21, s{sGRP}, v21")
        A("v_lshlrev_b32 v21, 7, v21")
        if o.tail == 10:
            A("v_writelane_b32 v21, s52, 3")
            A(f"s_bitcmp1_b32 s{sHG}, 0")
            A("s_cselect_b32 s52, 7, 15")
            A("s_cselect_b32 s53, 131072, 0")
        A(f"v_add_u32 v22, s{sHG}, v1")
        A("v_add_u32 v22, 1, v22")
        A("v_and_b32 v22, 3, v22")
        A("v_lshlrev_b32 v22, 2, v22")
        A(f"s_and_b32 s71, s{sGRP}, {hex(0xfffffff0)}")
        A(f"s_add_u32 s71, s71, s{sHP}")
        A("v_add_u32 v22, s71, v22")
        A("v_lshlrev_b32 v22, 7, v22")
        A("v_lshlrev_b32 v23, 4, v1")
        A(f"s_lshl_b32 s{sPF}, s{sHG}, 20")
        A("s_lshr_b32 s70, s2, 3")
        A("s_lshl_b32 s70, s70, 15")
        A(f"s_add_u32 s{sPF}, s{sPF}, s70")
        A(f"s_lshl_b32 s70, s{sW}, 13")
        A(f"s_add_u32 s{sPF}, s{sPF}, s70")
        def wq_pieces(D, base_off):
            L = [f"v_pk_mul_f32 {vr(ACC+16*D+2*i,2)}, {vr(ACC+16*D+2*i,2)}, s[{sCS}:{sCS+1}] op_sel_hi:[1,0]" for i in range(8)]
            for h in range(2):
                L += [f"v_cvt_pk_bf16_f32 v{ACC+16*D+4*h+i}, v{ACC+16*D+8*h+2*i}, v{ACC+16*D+8*h+2*i+1}" for i in range(4)]
                L.append(f"ds_write_b128 v{vQW}, {vr(ACC+16*D+4*h,4)} offset:{base_off + (2*D+h)*1024}")
            return L
        def douter(fr):
            last = fr[-16:]
            return fr[:-16] + sorted(last, key=lambda f: (f[4], f[3]))
        def dq_gaps(gaps, base_off):
            n = len(gaps); b = n - 16
            for D in range(3):
                spread(gaps, [[x] for x in wq_pieces(D, base_off)], b + 4*D + 5, min(b + 4*D + 9, n))
        def dq_end(base_off):
            s.emit(wq_pieces(3, base_off))
            A("s_waitcnt lgkmcnt(0)")
        fr0 = frags_c([(PX[c % NR] + 16384, c, c == 0) for c in range(8)])
        gaps0 = [[] for _ in fr0]
        if o.r3 == 2:
            for c in range(1, 7): gaps0[16*c - 1].append("s_barrier")
        if o.pro2:
            setup = s.L; s.L = capL
            sec = {"pre": [], "clr": [], "mid": [], "early": [], "post": []}
            cur = "pre"
            nxt = {"@@clr0": "clr", "@@clr1": "mid", "@@early0": "early", "@@early1": "post"}
            for l in setup:
                if l in nxt: cur = nxt[l]
                else: sec[cur].append(l if l.endswith(":") else l.strip())
            s.emit(sec["early"])
            fill = [[l] for l in sec["pre"]] + [sec["clr"]] + [[l] for l in sec["mid"] + sec["post"]]
            if o.pro2 == 1: spread(gaps0, fill, 2, 108)
            else:
                for g_ in fill: s.emit(g_)
            s.stamp("bs")
        else:
            s.stamp("bs")
            A("s_waitcnt vmcnt(0)")
        s.stamp("x0")
        A("s_barrier")
        s.stamp("p0")
        if o.dq:
            fr0 = douter(fr0); dq_gaps(gaps0, 0)
        bkv = eval(o.bkv)
        if o.r3 and 2 not in bkv and o.p2at > 7: bkv[2] = 96 + o.p2g
        for key, pos in sorted(bkv.items(), key=lambda z: z[1]):
            if key == 'q': g_ = s.dma_wq(0, P[0] + 16384, vW, "Q0", 256, 72)
            else: g_ = (s.dma_k(key, vK, nt, f"KV{key}") + (s.dma_v(key, vV, nt, f"KV{key}") if key else []))
            assert key != 2 or pos >= 96
            spread(gaps0, mat(g_), pos, pos + len(g_))
        stream(fr0, None, prologue=True, gapfill=gaps0, LA=(min(LA, 5) if o.dq else LA))
        if o.dq: dq_end(0)
        else: write_q(0)
        s.stamp("pro")
        def poll_check(vsrc, shift):
            A(f"v_readfirstlane_b32 s70, v{vsrc} ; @val=POLL")
            if shift == 0:
                A("s_lshr_b32 s71, s70, 1"); A("s_or_b32 s70, s70, s71")
            else:
                A(f"s_lshr_b32 s70, s70, {shift}")
            A("s_and_b32 s70, s70, 0x01010101")
            A("s_cmp_eq_u32 s70, 0x01010101")
        def mid_poll(slow=False):
            if o.lead:
                return [f"s_and_b32 s71, s{sGRP}, {hex(0xfffffff0)}",
                        f"buffer_load_dword v24, off, {srd(sDBG)}, s71{' sc1' if (slow or o.lead == 2) else ''}"]
            return [f"s_and_b32 s71, s{sGRP}, {hex(0xfffffff0)}",
                    f"buffer_load_dwordx4 v[24:27], off, {srd(sDBG)}, s71 sc1"] + \
                   ([f"buffer_load_dword v29, off, {srd(sDBG)}, s{sGRP} sc1"] if o.xs in (1, 2) else [])
        def mid_check():
            if o.lead:
                return [f"v_readfirstlane_b32 s70, v24 ; @val=POLL",
                        "s_and_b32 s70, s70, 0x01010101", "s_cmp_eq_u32 s70, 0x01010101"]
            return [f"v_and_b32 v24, v24, v25", f"v_and_b32 v26, v26, v27",
                    f"v_and_b32 v24, v24, v26",
                    "s_nop 0",
                    f"v_readfirstlane_b32 s70, v24 ; @val=POLL",
                    "s_and_b32 s70, s70, 0x01010101", "s_cmp_eq_u32 s70, 0x01010101"]
        sNC = 69
        sTG = [82, 84, 78, 80]
        def nonce_addr(d):
            return [f"s_lshr_b32 s{d}, s{sGRP}, 4", f"s_lshl_b32 s{d}, s{d}, 2", f"s_add_u32 s{d}, s{d}, s{sHP}", f"s_lshl_b32 s{d}, s{d}, 7",
                    f"s_lshl_b32 s71, s{sW}, 2", f"s_add_u32 s{d}, s{d}, s71", f"s_add_u32 s{d}, s{d}, {NONCE_BASE}"]
        def wave_poll(vaddr, nm, drain=True, mask=None):
            A(f"s_mov_b32 s{sSPIN}, 0")
            if mask: s.emit([f"s_mov_b32 exec_lo, s{mask}", "s_mov_b32 exec_hi, 0"])
            else: A("s_mov_b64 exec, 7")
            s.lab(f"B_{nm}")
            A(f"buffer_load_dword v{VP}, v{vaddr}, {srd(sWS)}, s72 offen sc1")
            A("s_waitcnt vmcnt(0)")
            A(f"v_cmp_ne_u32 vcc, 0, v{VP}")
            A(f"s_cmp_eq_u32 vcc_lo, {('s%d' % mask) if mask else 7}")
            A(f"s_cbranch_scc1 B_{nm}d ; @taken")
            A(f"s_add_u32 s{sSPIN}, s{sSPIN}, 1")
            A(f"s_cmp_lt_u32 s{sSPIN}, {o.spin}")
            A(f"s_cbranch_scc1 B_{nm}")
            s.lab(f"B_{nm}d")
            A("s_mov_b64 exec, -1")
            if drain: q.drain()
        wq_slot = lambda c: (P[0] + 16384) if c == 0 else W[(c + 1) % 4]
        wq_issue = {0: [1, 2], 1: [3], 2: [4], 3: [5], 4: [6], 5: [7]}
        wo0_slot = {(0,0): W[3], (0,1): W[0], (1,0): W[0], (1,1): W[1], (2,0): W[2], (2,1): W[3], (3,0): P[1], (3,1): P[2]}
        wo0_issue = eval(o.w0i)
        wo0_use = eval(o.w0u)
        ords = eval(o.ords)
        of0_issue = eval(o.f0)
        pf_issue = {1: [0, 1], 2: [2, 3], 3: [4], 4: [5], 5: [6], 6: [7]}
        wo1_slot = {(0,0): P[2] + 16384, (0,1): P[1] + 16384, (1,0): W[0], (1,1): W[1], (2,0): W[2], (2,1): W[3], (3,0): P[1], (3,1): P[2]}
        if o.tail == 11: wo1_slot.update(eval(o.w1s))
        wo1_issue = eval(o.w1i)
        FL0AT = o.fl0at if o.fl0at else o.s0at + 1
        PO0 = o.po0
        def flag_check(nm, mask=None, sfx=""):
            if mask: s.emit([f"s_mov_b32 exec_lo, s{mask}", "s_mov_b32 exec_hi, 0"])
            else: A("s_mov_b64 exec, 7")
            A(f"v_cmp_ne_u32 vcc, 0, v{VP}")
            A("s_mov_b64 exec, -1")
            A(f"s_cmp_eq_u32 vcc_lo, {('s%d' % mask) if mask else 7}")
            A(f"s_cbranch_scc0 B_slow{nm}{sfx} ; @nottaken")
            s.lab(f"B_slow{nm}{sfx}r")
        for st in range(17):
            s.stamp(f"c{st}")
            tags = [f"KV{st}"]
            if 0 <= st <= 7: tags.append(f"Q{st}")
            for (p, h) in wo0_use.get(st, []):
                tags += [f"O0{p}{h}", f"F{p}"]
            if st == FL0AT: tags.append("S0")
            if st == PO0 + o.pod: tags.append("POLL")
            if st == o.mp + o.mpd: tags.append("POLL0")
            if st == 9 and o.xs >= 3: tags.append("XQ")
            if st == 8: tags.append("PF")
            wait_vm(tags)
            s.stamp(f"w{st}")
            A("s_barrier")
            s.stamp(f"s{st}")
            if st in eval(o.prioB): A(f"s_setprio {eval(o.prioB)[st]}")
            if st == 8:
                for d in range(4):
                    A(f"s_add_u32 s70, s{sHG}, {1 + d}")
                    A("s_and_b32 s70, s70, 3")
                    A(f"v_xor_b32 v29, s70, v{vR}")
                    A("v_lshlrev_b32 v29, 6, v29")
                    A(f"v_add_u32 v29, v29, v{vWB}")
                    A(f"v_add_u32 v{WA+d}, {s.wbase}, v29")
            pre_groups = []
            if st == 9:
                own_frags()
            g_s = []
            s0sp = eval(o.s0sp) if o.s0sp else {o.s0at: [0, 1, 2, 3]}
            assert max(s0sp) == o.s0at
            if st in s0sp:
                g_s = of_mem(0, 0, 0, "S0", store=True) + of_mem(0, 0, 1, "S0", store=True)
                g_s = [g_s[i] for i in s0sp[st]]
                if "s" not in ords.get(st, o.order): pre_groups = g_s
            if st == 2 and not (o.abl & 16) and o.xs not in (1, 2):
                if o.lead:
                    A(f"s_or_b32 s70, s{sW}, s{sHG}")
                    A(f"s_or_b32 s70, s70, s{sHP}")
                    A("s_cmp_lg_u32 s70, 0")
                    A(f"s_cbranch_scc1 B_nf{st}")
                    A("v_mov_b32 v28, 0x01010101")
                    A("s_mov_b64 exec, 1")
                    A(f"buffer_store_dword v28, off, {srd(sDBG)}, s{sGRP} sc1")
                    A("s_mov_b64 exec, -1")
                else:
                    A(f"s_cmp_lg_u32 s{sW}, 0")
                    A(f"s_cbranch_scc1 B_nf{st}")
                    s.flag_store(1, 28)
                s.lab(f"B_nf{st}")
            if st == o.mp and not (o.abl & 32):
                s.emit(mid_poll()); q.issue("POLL0")
                if o.xs in (1, 2): q.issue("POLL0")
                if o.tg:
                    s.emit(nonce_addr(72))
                    A(f"buffer_load_dword v25, off, {srd(sWS)}, s72 sc1"); q.issue("POLL0")
            if st == 8 and o.xs >= 3:
                A(f"s_mov_b32 s72, {FLAG_BASE + 64}")
                A("s_mov_b64 exec, 15")
                A(f"buffer_load_dword v29, v21, {srd(sWS)}, s72 offen sc1"); q.issue("XQ")
                A("s_mov_b64 exec, -1")
            if st == 9 and o.xs >= 3:
                s.emit(s.xcc_byte(71))
                A("s_mov_b64 exec, 15")
                A("v_cmp_eq_u32 vcc, s71, v29")
                A("s_mov_b64 exec, -1")
                A("s_cmp_eq_u32 vcc_lo, 15")
                A(f"s_cselect_b32 s{sOBASE}, 1, 0")
            if st == o.mp + o.mpd and not (o.abl & 32):
                s.emit(mid_check())
                A("s_cbranch_scc0 B_slow0 ; @nottaken")
                s.lab("B_slow0r")
                if o.tg:
                    s.emit([f"v_readfirstlane_b32 s{sNC}, v25", f"s_add_u32 s{sNC}, s{sNC}, 1", f"s_mul_i32 s70, s{sNC}, 0x9E3779B1",
                            f"s_and_b32 s{sTG[0]}, s70, 0xff", f"s_bfe_u32 s{sTG[1]}, s70, 0x80008", f"s_bfe_u32 s{sTG[2]}, s70, 0x80010",
                            f"s_lshr_b32 s{sTG[3]}, s70, 24",
                            f"s_or_b32 s{sTG[1]}, s{sTG[1]}, 1", f"s_xor_b32 s{sTG[1]}, s{sTG[1]}, s{sTG[0]}"])
                if o.xs >= 3:
                    A(f"s_cmp_lg_u32 s{sW}, 0")
                    A("s_cbranch_scc1 B_nx")
                    s.emit(s.xcc_byte(71))
                    A(f"s_lshl_b32 s70, s{sMYB}, 7")
                    A(f"s_add_u32 s70, s70, {FLAG_BASE + 64}")
                    A("v_mov_b32 v28, s71")
                    A("s_mov_b64 exec, 1")
                    A(f"buffer_store_dword v28, off, {srd(sWS)}, s70 sc1")
                    A("s_mov_b64 exec, -1")
                    s.lab("B_nx")
                if o.xs in (1, 2):
                    s.emit(["v_readfirstlane_b32 s70, v29"] + s.xcc_byte(71) + ["s_mul_i32 s71, s71, 0x01010101", "s_cmp_eq_u32 s70, s71",
                            f"s_cselect_b32 s{sOBASE}, 1, 0"])
                s.stamp("chk0")
            if st == FL0AT and not (o.abl & 4):
                if o.xs:
                    A(f"s_cmp_eq_u32 s{sOBASE}, 0")
                    A("s_cbranch_scc1 B_wb ; @nottaken" if o.xs in (1, 3) else "s_branch B_wb")
                    s.lab("B_wbr")
                A(f"s_lshl_b32 s70, s{sMYB}, 7")
                A(f"s_lshl_b32 s71, s{sW}, 2")
                A(f"s_add_u32 s71, s71, {FLAG_BASE + 32}")
                A("s_add_u32 s70, s70, s71")
                A("v_mov_b32 v28, 1")
                A("s_mov_b64 exec, 1")
                A(f"buffer_store_dword v28, off, {srd(sWS)}, s70{s.ofl0}")
                A("s_mov_b64 exec, -1")
                q.issue("FL0")
            if st == PO0 and not (o.abl & 4):
                A(f"s_lshl_b32 s72, s{sW}, 2")
                A(f"s_add_u32 s72, s72, {FLAG_BASE + 32}")
                if o.tail == 10: s.emit(["s_mov_b32 exec_lo, s52", "s_mov_b32 exec_hi, 0"])
                else: A("s_mov_b64 exec, 7")
                A(f"buffer_load_dword v{VP}, v21, {srd(sWS)}, s72 offen sc1"); q.issue("POLL")
                A("s_mov_b64 exec, -1")
            if st == PO0 + o.pod and not (o.abl & 4):
                flag_check("1", mask=(52 if o.tail == 10 else None))
                s.stamp("chk")
            g_x = []
            for par_ in eval(o.wpf).get(st, []):
                g_x.append(("PF", ["v_lshlrev_b32 v31, 6, v1", f"s_lshl_b32 s71, s{sHP}, 18", f"s_lshl_b32 s70, s{sHG}, 20", "s_add_u32 s71, s71, s70",
                                   f"s_lshl_b32 s70, s{sB}, 14", "s_add_u32 s71, s71, s70", f"s_add_u32 s71, s71, s{sW4K}",
                                   f"s_add_u32 s71, s71, {par_ * 131072}",
                                   f"buffer_load_dword v30, v31, {srd(sWO)}, s71 offen ; @dummy"]))
            if st == o.fpf:
                assert st >= FL0AT
                g_x.append(("PF", ["v_lshrrev_b32 v31, 2, v1", "v_mul_u32_u24 v31, 1792, v31", "v_and_b32 v29, 3, v1", "v_lshlrev_b32 v29, 7, v29",
                                   "v_add_u32 v31, v31, v29", f"s_lshl_b32 s71, s{sW}, 9", f"s_add_u32 s71, s71, s{sOP}",
                                   f"s_cmp_eq_u32 s{sW}, 3", "s_cselect_b32 s70, 0x33333333, -1", "s_mov_b32 exec_lo, s70", "s_mov_b32 exec_hi, s70",
                                   f"buffer_load_dword v30, v31, {srd(sWS)}, s71 offen{o.fpfm} ; @dummy", "s_mov_b64 exec, -1"]))
            for tag_, ins_ in g_x:
                if o.xpos == 0:
                    q.issue(tag_); s.emit(ins_)
            if st == o.pz:
                gz = []
                for half in range(2):
                    for jj in range(2):
                        va = vO if jj == 0 else Y
                        ins = ([f"v_mov_b32 v{28+i}, -1" for i in range(4)] if not gz else []) + \
                              [f"s_add_u32 s72, s{sOP}, s{sOH[half]}", f"s_add_u32 s72, s72, {UNIT}", f"s_mov_b64 exec, s[{sEXLO}:{sEXHI}]"]
                        for j in range(2):
                            ins.append(f"buffer_store_dwordx4 v[28:31], v{va}, {srd(sWS)}, s72 offen offset:{j*1792} sc1")
                        ins.append("s_mov_b64 exec, -1")
                        gz.append((("PZ", "PZ"), ins))
                g_x = g_x + gz
                assert o.xpos == 1 and st < o.s0at
            g_kv = pair(st + 2) if st + 2 <= 16 else []
            if (o.r3 or 2 in eval(o.bkv) or o.p2at <= 7) and st == 0: g_kv = []
            g_w = []
            for c in wq_issue.get(st, []): g_w += s.dma_wq(c, wq_slot(c), vW, f"Q{c}", 256, 72)
            for (p, h) in wo0_issue.get(st, []): g_w += dma_wo(0, p, h, wo0_slot[(p, h)])
            g_f = []
            for p in of0_issue.get(st, []): g_f += of_mem(0, p, 0, f"F{p}") + of_mem(0, p, 1, f"F{p}")
            g_1 = []
            for (p, h) in wo1_issue.get(st, []): g_1 += dma_wo(1, p, h, wo1_slot[(p, h)])
            g_p = []
            if o.pf:
                for t in pf_issue.get(st, []):
                    g_p.append(("PF", [f"s_add_u32 s71, s{sPF}, {t*1024}",
                                       f"buffer_load_dwordx4 v[24:27], v23, {srd(sWO)}, s71 offen ; @dummy"]))
            if (o.abl & 1) and 10 <= st <= 13: g_w = []
            if st in eval(o.ablw): g_w = []
            if o.abl & 2: pre_groups = []
            if (o.abl & 8) and 8 <= st <= 13: g_kv = g_kv[:4]
            gm = {"w": g_w + g_1, "f": g_f, "k": g_kv, "p": g_p, "s": g_s}
            groups = pre_groups + sum((gm[c] for c in ords.get(st, o.order)), []) + (g_x if o.xpos else [])
            if o.ilv and st >= o.ilv0:
                oth = (pre_groups if o.ilv & 2 else []) + sum((gm[c] for c in o.order if c != "k"), [])
                def pos(lst, ph):
                    w = [2 if isinstance(g[0], tuple) else 1 for g in lst]; tot = sum(w); acc = 0; r = []
                    for g, x in zip(lst, w):
                        r.append(((acc + ph * x) / tot, g)); acc += x
                    return r
                a_ = pos(g_kv, 0.0) if g_kv else []
                b_ = pos(oth, 0.5) if oth else []
                merged = sorted([(x, 0, i, g) for i, (x, g) in enumerate(a_)] + [(x, 1, i, g) for i, (x, g) in enumerate(b_)], key=lambda z: (z[0], z[1], z[2]))
                groups = ([] if o.ilv & 2 else pre_groups) + [z[3] for z in merged]
            mem = mat2(groups)
            use = ([(wq_slot(st), st, st == 0)] if st <= 7 else []) + \
                  [(wo0_slot[(p, h)], 2*p + h, (p, h) == (0, 0)) for (p, h) in wo0_use.get(st, [])]
            if use and st == 7 and o.dq:
                fr7 = douter(frags_c(use)); g7 = [[] for _ in fr7]
                if not o.s7f: spread(g7, mem, 0, 16)
                if o.s7f == 2:
                    assert ords.get(st, o.order).startswith("k") and len(mem) == 12, len(mem)
                    for g_ in mem[:8]: s.emit(g_)
                    mem = mem[8:]
                if o.s7f == 3:
                    assert ords.get(st, o.order).startswith("k") and len(mem) == 12, len(mem)
                    for g_ in mem[:8]: s.emit(g_)
                    spread(g7, mem[8:], 0, 16); mem = []
                dq_gaps(g7, 16384)
                stream(fr7, None, gapfill=g7)
                s.stamp("q7a")
                dq_end(16384)
                s.stamp("q7b")
                if o.s7f:
                    for g_ in mem: s.emit(g_)
            elif use:
                if st in eval(o.mf):
                    nk = len(g_kv)
                    assert ords.get(st, o.order).replace("p", "").startswith("k") and not pre_groups
                    for g_ in mem[:nk]: s.emit(g_)
                    mem = mem[nk:]
                stream(frags_c(use), mem)
                if st == 7: write_q(16384)
            else:
                for gi, g_ in enumerate(mem):
                    s.emit(g_); s.stamp(f"m{st}_{gi}")
            s.stamp(f"d{st}")
        sPD = [sWP, sWP + 1, sWP + 2] if o.tail in (1, 3, 5, 6, 7, 8, 9, 10, 11, 12) else [82, 83, 84]
        def addr_prep():
            A("v_lshrrev_b32 v17, 5, v1")
            A("v_mul_u32_u24 v23, 112, v17")
            A("v_and_b32 v18, 31, v1")
            A("v_add_u32 v23, v23, v18")
            A(f"s_lshl_b32 s70, s{sW}, 5")
            A("v_add_u32 v23, s70, v23")
            A("v_add_u32 v19, s70, v18")
            A("v_lshlrev_b32 v23, 4, v23")
            A(f"s_lshl_b32 s70, s{sBR}, 3")
            A(f"s_add_u32 s70, s70, s{sB}")
            A(f"s_lshl_b32 s70, s70, 2")
            A(f"s_add_u32 s70, s70, s{sHP}")
            A(f"s_mul_i32 s73, s70, {12*PSZ}")
            A(f"s_add_u32 s73, s73, {PART_BASE}")
            for d in range(3):
                A(f"s_add_u32 s70, s{sHG}, {1 + d}")
                A("s_and_b32 s70, s70, 3")
                A(f"s_mul_i32 s70, s70, {3*PSZ}")
                A(f"s_add_u32 s70, s70, s73")
                A(f"s_add_u32 s{sPD[d]}, s70, {(2-d)*PSZ}")
            A("v_lshlrev_b32 v19, 11, v19")
            A("v_lshlrev_b32 v17, 4, v17")
            A("v_add_u32 v19, v19, v17")
            if o.tg: A("v_mov_b32 v24, 0xff")
        def pub(d):
            r = []
            for rq in range(4):
                tg = [f"v_bfi_b32 v{ACC+16*d+4*rq+i}, v24, s{sTG[i]}, v{ACC+16*d+4*rq+i}" for i in range(4)] if o.tg else []
                r.append(tg + [f"s_add_u32 s70, s{sPD[d]}, {rq*3584}", f"s_mov_b64 exec, s[{sEXLO}:{sEXHI}]",
                          f"buffer_store_dwordx4 {vr(ACC+16*d+4*rq,4)}, v23, {srd(sWS)}, s70 offen sc1{s.nths}", "s_mov_b64 exec, -1"])
            return r
        def part_ld(src, dst, rq):
            return [f"s_add_u32 s70, s73, {src*PSZ + rq*3584}",
                    f"buffer_load_dwordx4 {vr(dst+4*rq,4)}, v23, {srd(sWS)}, s70 offen sc1{s.nthl}"]
        def tail1():
            used0 = set(x for v in wo0_use.values() for x in v)
            tail0 = [(p, h) for p in range(4) for h in range(2) if (p, h) not in used0]
            tailF = sorted(set(p for p, h in tail0))
            assert all((p, 0) in tail0 or (p, 0) in used0 for p in tailF)
            issued1 = set(x for v in wo1_issue.values() for x in v)
            def ftags(p): return [f"O0{p}{h}" for h in range(2) if (p, h) in tail0] + ([f"F{p}"] if p else [])
            s.stamp("preE")
            wait_vm(ftags(tailF[0]) + ["O100"])
            s.stamp("wE")
            A(f"v_add_u32 v{vOL}, {hex((P[0] - W[1]) & 0xffffffff)}, v{vOL}")
            if o.wrot: A(f"v_add_u32 v{vOL2}, {hex((P[0] - W[1]) & 0xffffffff)}, v{vOL2}")
            A("s_barrier")
            s.stamp("E")
            busy = set(wo0_slot[c] for c in tail0)
            avail = [c for c in [(0, 1), (1, 0), (1, 1), (2, 0), (2, 1), (3, 0), (3, 1)] if c not in issued1 and wo1_slot[c] not in busy]
            for i, p in enumerate(tailF):
                fl = mat2(sum((dma_wo(1, pp, hh, wo1_slot[(pp, hh)]) for (pp, hh) in avail), []))
                issued1 |= set(avail)
                stream(frags_c([(wo0_slot[(p, h)], 2*p + h, False) for h in range(2) if (p, h) in tail0]), fl)
                for h in range(2): busy.discard(wo0_slot[(p, h)])
                avail = [c for c in [(0, 1), (1, 0), (1, 1), (2, 0), (2, 1), (3, 0), (3, 1)] if c not in issued1 and wo1_slot[c] not in busy]
                s.stamp(f"U{i}")
                if i + 1 < len(tailF):
                    wait_vm(ftags(tailF[i + 1]))
                    s.stamp(f"V{i}")
                    A("s_barrier")
                    s.stamp(f"T{i}")
            own_frags()
            wait_vm("O101")
            A("s_barrier")
            s.stamp("Ta")
            if o.t1p:
                A(f"s_lshl_b32 s72, s{sW}, 2")
                A(f"s_add_u32 s72, s72, {FLAG_BASE}")
                A("s_mov_b64 exec, 7")
                A(f"buffer_load_dword v{VP}, v21, {srd(sWS)}, s72 offen sc1"); q.issue("POLL1")
                A("s_mov_b64 exec, -1")
            fl = mat2(sum((dma_wo(1, pp, hh, wo1_slot[(pp, hh)]) for (pp, hh) in avail), []))
            issued1 |= set(avail)
            assert len(issued1) == 8, issued1
            stream(frags_c([(wo1_slot[(0, 0)], 0, False), (wo1_slot[(0, 1)], 1, False)]), fl)
            s.stamp("own")
            addr_prep()
            if o.t1p:
                wait_vm("POLL1")
                flag_check("2")
            else:
                A(f"s_lshl_b32 s72, s{sW}, 2")
                A(f"s_add_u32 s72, s72, {FLAG_BASE}")
                wave_poll(21, "poll1")
            s.stamp("poll1")
            gl = lambda p: of_mem(1, p, 0, f"G{p}") + of_mem(1, p, 1, f"G{p}")
            for g_ in mat2(gl(1) + gl(2)): s.emit(g_)
            A("s_barrier")
            ND = 3 if o.defer else 4
            for p in (1, 2):
                wait_vm(f"G{p}")
                if p == 1: s.stamp("g1")
                fl = mat2(gl(3)) if p == 1 else None
                stream([f for f in frags_c([(wo1_slot[(p, 0)], 2*p, False), (wo1_slot[(p, 1)], 2*p + 1, False)]) if f[4] < ND], fl)
            wait_vm("G3")
            if o.t1p: A("s_barrier")
            fr = []
            for d in range(ND):
                for half in range(2):
                    for j in range(4):
                        fr.append((wo1_slot[(3, half)], 6 + half, False, j, d, half))
            for p in ((1, 2, 3) if o.defer else ()):
                for half in range(2):
                    for j in range(4):
                        fr.append((wo1_slot[(p, half)], 2*p + half, False, j, 3, half))
            gaps = [[] for _ in range(len(fr))]
            for d in range(3):
                spread(gaps, pub(d), 8*d + 8 + 3, 8*d + 8 + 7)
            if o.tg == 2:
                gaps[0] = [f"s_mul_i32 s71, s{sHG}, {3*PSZ}", "s_add_u32 s73, s73, s71"] + gaps[0]
                if o.tge >= 0:
                    assert o.tge >= 31
                    for rq in range(4):
                        gaps[min(o.tge + rq, len(fr) - 1)] += [f"s_mov_b64 exec, s[{sEXLO}:{sEXHI}]"] + part_ld(2, 64, rq) + ["s_mov_b64 exec, -1"]
            stream(fr, None, gapfill=gaps)
        def tail2():
            used0 = set(x for v in wo0_use.values() for x in v)
            assert used0 == {(0, 0), (0, 1)}
            fdone = set(p for v in of0_issue.values() for p in v)
            assert wo1_issue == {15: [(0, 0)]}
            gb = lambda p: 2 * (p - 1)
            gl = lambda p: of_mem(1, p, 0, f"G{p}", blk=gb(p)) + of_mem(1, p, 1, f"G{p}", blk=gb(p))
            w1 = lambda cs: sum((dma_wo(1, pp, hh, wo1_slot[(pp, hh)]) for (pp, hh) in cs), [])
            fw = lambda p: frags_c([(wo0_slot[(p, 0)], 2*p, False), (wo0_slot[(p, 1)], 2*p + 1, False)])
            tags = [f"O0{p}{h}" for p in (1, 2, 3) for h in range(2)] + ["O100"]
            if PO0 == 16: tags.append("POLL")
            wait_vm(tags)
            A(f"v_add_u32 v{vOL}, {hex((P[0] - W[1]) & 0xffffffff)}, v{vOL}")
            if o.wrot: A(f"v_add_u32 v{vOL2}, {hex((P[0] - W[1]) & 0xffffffff)}, v{vOL2}")
            if PO0 == 16:
                flag_check("1")
                s.stamp("chk")
            rest = [p for p in (1, 2, 3) if p not in fdone]
            if o.fpre and PO0 == 16:
                for p in rest:
                    for g_ in mat2(of_mem(0, p, 0, f"F{p}") + of_mem(0, p, 1, f"F{p}")): s.emit(g_)
                rest = []
            A("s_barrier")
            s.stamp("E")
            for g_ in mat2(w1([(0, 1)])): s.emit(g_)
            for p in rest:
                for g_ in mat2(of_mem(0, p, 0, f"F{p}") + of_mem(0, p, 1, f"F{p}")): s.emit(g_)
            own_frags()
            stream(frags_c([(wo1_slot[(0, 0)], 0, False)]), None)
            addr_prep()
            wait_vm("O101")
            A("s_barrier")
            s.stamp("Ta")
            stream(frags_c([(wo1_slot[(0, 1)], 1, False)]), None)
            s.stamp("own")
            wait_vm("F1")
            s.stamp("f1")
            stream(fw(1), None)
            wait_vm("F2")
            A("s_barrier")
            A(f"s_lshl_b32 s72, s{sW}, 2")
            A(f"s_add_u32 s72, s72, {FLAG_BASE}")
            A("s_mov_b64 exec, 7")
            A(f"buffer_load_dword v{VP}, v21, {srd(sWS)}, s72 offen sc1"); q.issue("POLL1")
            A("s_mov_b64 exec, -1")
            s.stamp("f2")
            stream(fw(2), mat2(w1([(1, 0), (1, 1)])))
            wait_vm(["POLL1", "F3"])
            A("s_barrier")
            flag_check("2")
            s.stamp("poll1")
            for g_ in mat2(gl(1)): s.emit(g_)
            stream(fw(3), mat2(gl(2) + w1([(2, 0), (2, 1)]) + gl(3)))
            wait_vm(["O110", "O111"])
            A("s_barrier")
            s.stamp("f3")
            for g_ in mat2(w1([(3, 0), (3, 1)])): s.emit(g_)
            ND = 3 if o.defer else 4
            for p in (1, 2):
                if p == 2:
                    wait_vm(["O120", "O121", "G2"])
                    A("s_barrier")
                else:
                    wait_vm("G1")
                    s.stamp("g1")
                stream([f for f in frags_c([(wo1_slot[(p, 0)], gb(p), False), (wo1_slot[(p, 1)], gb(p) + 1, False)]) if f[4] < ND], None)
            wait_vm(["G3", "O130", "O131"])
            A("s_barrier")
            fr = []
            for d in range(ND):
                for half in range(2):
                    for j in range(4):
                        fr.append((wo1_slot[(3, half)], gb(3) + half, False, j, d, half))
            for p in ((1, 2, 3) if o.defer else ()):
                for half in range(2):
                    for j in range(4):
                        fr.append((wo1_slot[(p, half)], gb(p) + half, False, j, 3, half))
            gaps = [[] for _ in range(len(fr))]
            for d in range(3):
                spread(gaps, pub(d), 8*d + 8 + 3, 8*d + 8 + 7)
            stream(fr, None, gapfill=gaps)
        def tail3():
            used0 = set(x for v in wo0_use.values() for x in v)
            assert used0 == {(0, 0), (0, 1)}
            assert wo1_issue == {15: [(0, 0)]}
            gl = lambda p: of_mem(1, p, 0, f"G{p}") + of_mem(1, p, 1, f"G{p}")
            w1 = lambda cs: sum((dma_wo(1, pp, hh, wo1_slot[(pp, hh)]) for (pp, hh) in cs), [])
            fw = lambda p: frags_c([(wo0_slot[(p, 0)], 2*p, False), (wo0_slot[(p, 1)], 2*p + 1, False)])
            ft = lambda p: [f"O0{p}0", f"O0{p}1", f"F{p}"]
            def poll_issue():
                A(f"s_lshl_b32 s72, s{sW}, 2")
                A(f"s_add_u32 s72, s72, {FLAG_BASE}")
                A("s_mov_b64 exec, 7")
                A(f"buffer_load_dword v{VP}, v21, {srd(sWS)}, s72 offen sc1"); q.issue("POLL1")
                A("s_mov_b64 exec, -1")
            wait_vm(ft(1) + ["O100"])
            A(f"v_add_u32 v{vOL}, {hex((P[0] - W[1]) & 0xffffffff)}, v{vOL}")
            if o.wrot: A(f"v_add_u32 v{vOL2}, {hex((P[0] - W[1]) & 0xffffffff)}, v{vOL2}")
            A("s_barrier")
            s.stamp("E")
            if o.t3a == 0: stream(fw(1), mat2(w1([(0, 1)])))
            else:
                stream(fw(1), None)
                for g_ in mat2(w1([(0, 1)])): s.emit(g_)
            wait_vm(ft(2))
            A("s_barrier")
            s.stamp("T0")
            if o.t3p == 0: poll_issue()
            stream(fw(2), mat2(w1([(1, 0), (1, 1)])))
            if o.t3p == 1: poll_issue()
            wait_vm(ft(3) + (["POLL1"] if o.t3p == 0 else []))
            A("s_barrier")
            s.stamp("T1")
            if o.t3p == 0:
                flag_check("2")
                s.stamp("poll1")
                stream(fw(3), mat2(gl(1) + w1([(2, 0), (2, 1)]) + gl(2)))
            else:
                stream(fw(3), mat2(w1([(2, 0), (2, 1)])))
                wait_vm("POLL1")
                flag_check("2")
                s.stamp("poll1")
                for g_ in mat2(gl(1)): s.emit(g_)
            own_frags()
            wait_vm("O101")
            A("s_barrier")
            s.stamp("Ta")
            stream(frags_c([(wo1_slot[(0, 0)], 0, False), (wo1_slot[(0, 1)], 1, False)]),
                   mat2((gl(2) if o.t3p == 1 else []) + (gl(3) + w1([(3, 0), (3, 1)]) if o.t3g == 0 else w1([(3, 0), (3, 1)]) + gl(3))))
            s.stamp("own")
            addr_prep()
            ND = 3 if o.defer else 4
            for p in (1, 2):
                wait_vm([f"O1{p}0", f"O1{p}1", f"G{p}"])
                A("s_barrier")
                if p == 1: s.stamp("g1")
                stream([f for f in frags_c([(wo1_slot[(p, 0)], 2*p, False), (wo1_slot[(p, 1)], 2*p + 1, False)]) if f[4] < ND], None)
            wait_vm(["G3", "O130", "O131"])
            A("s_barrier")
            fr = []
            for d in range(ND):
                for half in range(2):
                    for j in range(4):
                        fr.append((wo1_slot[(3, half)], 6 + half, False, j, d, half))
            for p in ((1, 2, 3) if o.defer else ()):
                for half in range(2):
                    for j in range(4):
                        fr.append((wo1_slot[(p, half)], 2*p + half, False, j, 3, half))
            gaps = [[] for _ in range(len(fr))]
            for d in range(3):
                spread(gaps, pub(d), 8*d + 8 + 3, 8*d + 8 + 7)
            if o.tg == 2:
                gaps[0] = [f"s_mul_i32 s71, s{sHG}, {3*PSZ}", "s_add_u32 s73, s73, s71"] + gaps[0]
            stream(fr, None, gapfill=gaps)
        def tail5():
            used0 = set(x for v in wo0_use.values() for x in v)
            assert used0 == {(0, 0), (0, 1)}
            assert wo1_issue == {15: [(0, 0)]}
            gl = lambda p: of_mem(1, p, 0, f"G{p}") + of_mem(1, p, 1, f"G{p}")
            fl = lambda p: of_mem(0, p, 0, f"F{p}") + of_mem(0, p, 1, f"F{p}")
            w1 = lambda cs: sum((dma_wo(1, pp, hh, wo1_slot[(pp, hh)]) for (pp, hh) in cs), [])
            w0 = lambda cs: sum((dma_wo(0, pp, hh, wo0_slot[(pp, hh)]) for (pp, hh) in cs), [])
            fw = lambda p: frags_c([(wo0_slot[(p, 0)], 2*p, False), (wo0_slot[(p, 1)], 2*p + 1, False)])
            ft = lambda p: [f"O0{p}0", f"O0{p}1", f"F{p}"]
            in_loop_w = set(x for v in wo0_issue.values() for x in v)
            in_loop_f = set(x for v in of0_issue.values() for x in v)
            late_w = [(3, h) for h in range(2) if (3, h) not in in_loop_w]
            late_f = [] if 3 in in_loop_f else [3]
            s.stamp("preE")
            wait_vm(ft(1) + ["O100"])
            s.stamp("wE")
            A(f"v_add_u32 v{vOL}, {hex((P[0] - W[1]) & 0xffffffff)}, v{vOL}")
            if o.wrot: A(f"v_add_u32 v{vOL2}, {hex((P[0] - W[1]) & 0xffffffff)}, v{vOL2}")
            A("s_barrier")
            s.stamp("E")
            stream(fw(1), mat2(w1([(0, 1)]) + w0(late_w)))
            s.stamp("U0")
            wait_vm(ft(2))
            A("s_barrier")
            s.stamp("T0")
            stream(fw(2), mat2(sum((fl(p) for p in late_f), []) + w1([(1, 0), (1, 1)])))
            s.stamp("U1")
            own_frags()
            wait_vm(["O101", "O030", "O031"])
            A("s_barrier")
            s.stamp("Ta")
            stream(frags_c([(wo1_slot[(0, 0)], 0, False), (wo1_slot[(0, 1)], 1, False)]), mat2(w1([(2, 0), (2, 1)])))
            s.stamp("own")
            addr_prep()
            A(f"s_lshl_b32 s72, s{sW}, 2")
            A(f"s_add_u32 s72, s72, {FLAG_BASE}")
            wave_poll(21, "poll1")
            s.stamp("poll1")
            for g_ in mat2(gl(1) + gl(2)): s.emit(g_)
            stream(fw(3), None)
            s.stamp("U2")
            A("s_barrier")
            s.stamp("Tb")
            ND = 3 if o.defer else 4
            for p in (1, 2):
                wait_vm(f"G{p}")
                if p == 1: s.stamp("g1")
                f_ = mat2(w1([(3, 0), (3, 1)]) + gl(3) if o.t5g == 0 else gl(3) + w1([(3, 0), (3, 1)])) if p == 1 else None
                stream([f for f in frags_c([(wo1_slot[(p, 0)], 2*p, False), (wo1_slot[(p, 1)], 2*p + 1, False)]) if f[4] < ND], f_)
            wait_vm(["G3", "O130", "O131"])
            A("s_barrier")
            s.stamp("Tc")
            fr = []
            for d in range(ND):
                for half in range(2):
                    for j in range(4):
                        fr.append((wo1_slot[(3, half)], 6 + half, False, j, d, half))
            for p in ((1, 2, 3) if o.defer else ()):
                for half in range(2):
                    for j in range(4):
                        fr.append((wo1_slot[(p, half)], 2*p + half, False, j, 3, half))
            gaps = [[] for _ in range(len(fr))]
            for d in range(3):
                spread(gaps, pub(d), 8*d + 8 + 3, 8*d + 8 + 7)
            if o.tg == 2:
                gaps[0] = [f"s_mul_i32 s71, s{sHG}, {3*PSZ}", "s_add_u32 s73, s73, s71"] + gaps[0]
            stream(fr, None, gapfill=gaps)
        def tail6():
            used0 = set(x for v in wo0_use.values() for x in v)
            assert used0 == {(0, 0), (0, 1)}
            assert wo1_issue == {15: [(0, 0)]}
            T6 = dict(wo1_slot); T6[(3, 0)] = P[0]; T6[(3, 1)] = P[0] + 16384
            gl = lambda p: of_mem(1, p, 0, f"G{p}") + of_mem(1, p, 1, f"G{p}")
            fw = lambda p: frags_c([(wo0_slot[(p, 0)], 2*p, False), (wo0_slot[(p, 1)], 2*p + 1, False)])
            ft = lambda p: [f"O0{p}0", f"O0{p}1", f"F{p}"]
            s.stamp("preE")
            wait_vm(ft(1) + ["O100"])
            s.stamp("wE")
            A(f"v_add_u32 v{vOL}, {hex((P[0] - W[1]) & 0xffffffff)}, v{vOL}")
            if o.wrot: A(f"v_add_u32 v{vOL2}, {hex((P[0] - W[1]) & 0xffffffff)}, v{vOL2}")
            A("s_barrier")
            s.stamp("E")
            f1 = fw(1); gaps = [[] for _ in f1]
            rd_ = []
            for half in range(2):
                for j in range(4):
                    if o.wrot: rd_.append([f"ds_read_b128 {vr(X+16*half+4*j,4)}, v{(vOL, vOL2)[half]} offset:{j*512} ; @own"])
                    else: rd_.append([f"ds_read_b128 {vr(X+16*half+4*j,4)}, v{vOL} offset:{half*4096 + j*512} ; @own"])
            spread(gaps, rd_, 8, 24)
            stream(f1, None, gapfill=gaps)
            s.stamp("U0")
            A("s_waitcnt lgkmcnt(0)")
            wait_vm(ft(2))
            A("s_barrier")
            s.stamp("T0")
            stream(fw(2), None)
            s.stamp("U1")
            wait_vm(["O030", "O031"])
            A("s_barrier")
            s.stamp("Ta")
            stream(frags_c([(T6[(0, 0)], 0, False), (T6[(0, 1)], 1, False)]), None)
            s.stamp("own")
            addr_prep()
            wait_vm("F3")
            A("s_barrier")
            s.stamp("poll1")
            f3 = fw(3); gaps = [[] for _ in f3]
            g1e, g2e = eval(o.t6g)
            spread(gaps, mat2(gl(1)), 0, g1e)
            spread(gaps, mat2(gl(2)), g1e, g2e)
            stream(f3, None, gapfill=gaps)
            s.stamp("U2")
            ND = 3 if o.defer else 4
            for p in (1, 2):
                wait_vm(f"G{p}")
                if p == 2: A("s_barrier")
                if p == 1: s.stamp("g1")
                fr_ = [f for f in frags_c([(T6[(p, 0)], 2*p, False), (T6[(p, 1)], 2*p + 1, False)]) if f[4] < ND]
                gaps = [[] for _ in fr_]
                if p == 1: spread(gaps, mat2(gl(3)), 0, o.t6h)
                stream(fr_, None, gapfill=gaps)
            wait_vm("G3")
            if o.t6v != 1: A("s_barrier")
            s.stamp("Tc")
            fr = []
            for d in range(ND):
                for half in range(2):
                    for j in range(4):
                        fr.append((T6[(3, half)], 6 + half, False, j, d, half))
            for p in ((1, 2, 3) if o.defer else ()):
                for half in range(2):
                    for j in range(4):
                        fr.append((T6[(p, half)], 2*p + half, False, j, 3, half))
            gaps = [[] for _ in range(len(fr))]
            for d in range(3):
                spread(gaps, pub(d), 8*d + 8 + 3, 8*d + 8 + 7)
            if o.tg == 2:
                gaps[0] = [f"s_mul_i32 s71, s{sHG}, {3*PSZ}", "s_add_u32 s73, s73, s71"] + gaps[0]
            stream(fr, None, gapfill=gaps)
        def tail7():
            used0 = set(x for v in wo0_use.values() for x in v)
            assert used0 == {(0, 0), (0, 1)}
            assert wo1_issue == {15: [(0, 0)]}
            gl = lambda p: of_mem(1, p, 0, f"G{p}") + of_mem(1, p, 1, f"G{p}")
            fl = lambda p: of_mem(0, p, 0, f"F{p}") + of_mem(0, p, 1, f"F{p}")
            w1 = lambda cs: sum((dma_wo(1, pp, hh, wo1_slot[(pp, hh)]) for (pp, hh) in cs), [])
            fw = lambda p: frags_c([(wo0_slot[(p, 0)], 2*p, False), (wo0_slot[(p, 1)], 2*p + 1, False)])
            ft = lambda p: [f"O0{p}0", f"O0{p}1", f"F{p}"]
            in_loop_f = set(x for v in of0_issue.values() for x in v)
            late_f = [p for p in (2, 3) if p not in in_loop_f]
            s.stamp("preE")
            wait_vm(ft(1) + ["O100"])
            s.stamp("wE")
            A(f"v_add_u32 v{vOL}, {hex((P[0] - W[1]) & 0xffffffff)}, v{vOL}")
            if o.wrot: A(f"v_add_u32 v{vOL2}, {hex((P[0] - W[1]) & 0xffffffff)}, v{vOL2}")
            A("s_barrier")
            s.stamp("E")
            stream(fw(1), mat2(sum((fl(p) for p in late_f), []) + w1([(0, 1)])))
            s.stamp("U0")
            wait_vm(ft(2))
            A("s_barrier")
            s.stamp("T0")
            stream(fw(2), mat2(w1([(1, 0), (1, 1)])))
            s.stamp("U1")
            wait_vm(ft(3))
            A("s_barrier")
            s.stamp("T1")
            f3 = fw(3); gaps = [[] for _ in f3]
            pl = [f"s_lshl_b32 s72, s{sW}, 2", f"s_add_u32 s72, s72, {FLAG_BASE}", "s_mov_b64 exec, 7",
                  f"buffer_load_dword v{VP}, v21, {srd(sWS)}, s72 offen sc1", "s_mov_b64 exec, -1"]
            ga = w1([(2, 0)]); gb = w1([(2, 1)])
            if o.t7p < 0:
                q.issue("POLL1"); s.emit(pl)
                spread(gaps, mat2(ga + gb), 0, 32)
            else:
                assert o.t7p in (8, 16, 24)
                if o.t7p == 8:
                    spread(gaps, mat2(ga), 0, 8); q.issue("POLL1"); gaps[8] += pl; spread(gaps, mat2(gb), 10, 26)
                elif o.t7p == 16:
                    spread(gaps, mat2(ga), 0, 16); q.issue("POLL1"); gaps[16] += pl; spread(gaps, mat2(gb), 18, 32)
                else:
                    spread(gaps, mat2(ga + gb), 0, 24); q.issue("POLL1"); gaps[24] += pl
            stream(f3, None, gapfill=gaps)
            s.stamp("U2")
            own_frags()
            wait_vm(["O101", "POLL1"])
            A("s_barrier")
            s.stamp("Ta")
            own = frags_c([(wo1_slot[(0, 0)], 0, False), (wo1_slot[(0, 1)], 1, False)])
            old_ = s.L; s.L = []; addr_prep(); ap_ = [[l.strip()] for l in s.L]; s.L = old_
            A("s_mov_b64 exec, 7")
            A(f"v_cmp_ne_u32 vcc, 0, v{VP}")
            A("s_mov_b64 exec, -1")
            A("s_cmp_eq_u32 vcc_lo, 7")
            A("s_cbranch_scc0 B_t7slow ; @hook=SLOW7")
            st_q = list(q.q); st_w = s.wbase
            gaps = [[] for _ in own]
            w3 = mat2(w1([(3, 0), (3, 1)]))
            g1_ = mat2(gl(1)); g2_ = mat2(gl(2)) if o.t7g else None
            if o.t7g:
                spread(gaps, w3, 0, 8); spread(gaps, g1_, 8, 18); spread(gaps, g2_, 18, 30)
            else:
                spread(gaps, w3, 0, 12); spread(gaps, g1_, 12, 28)
            spread(gaps, ap_, 4, 30)
            stream(own, None, gapfill=gaps)
            s.stamp("own")
            s.stamp("poll1")
            s.lab("B_t7m")
            fin_q = list(q.q); fin_w = s.wbase
            q.q = list(st_q); s.wbase = st_w
            old_ = s.L; s.L = []
            s.lab("B_t7slow")
            gaps = [[] for _ in own]
            spread(gaps, mat2(w1([(3, 0), (3, 1)])), 0, 24)
            spread(gaps, ap_, 4, 30)
            stream(own, None, gapfill=gaps)
            s.stamp("own")
            A(f"s_lshl_b32 s72, s{sW}, 2")
            A(f"s_add_u32 s72, s72, {FLAG_BASE}")
            wave_poll(21, "poll1")
            s.stamp("poll1")
            for g_ in mat2(gl(1) + (gl(2) if o.t7g else [])): s.emit(g_)
            A("s_branch B_t7m")
            assert s.wbase == fin_w
            t7_slow.extend(s.L); s.L = old_
            q.q = list(fin_q)
            wait_vm(["O130", "O131"])
            A("s_barrier")
            ND = 3 if o.defer else 4
            for p in (1, 2):
                wait_vm(f"G{p}")
                if p == 1: s.stamp("g1")
                fr_ = [f for f in frags_c([(wo1_slot[(p, 0)], 2*p, False), (wo1_slot[(p, 1)], 2*p + 1, False)]) if f[4] < ND]
                gaps = [[] for _ in fr_]
                if o.t7g:
                    if p == 1: spread(gaps, mat2(gl(3)), 0, o.t7h)
                else:
                    spread(gaps, mat2(gl(p + 1)), 0, o.t7h)
                stream(fr_, None, gapfill=gaps)
            wait_vm("G3")
            s.stamp("Tc")
            fr = []
            for d in range(ND):
                for half in range(2):
                    for j in range(4):
                        fr.append((wo1_slot[(3, half)], 6 + half, False, j, d, half))
            for p in ((1, 2, 3) if o.defer else ()):
                for half in range(2):
                    for j in range(4):
                        fr.append((wo1_slot[(p, half)], 2*p + half, False, j, 3, half))
            gaps = [[] for _ in range(len(fr))]
            for d in range(3):
                spread(gaps, pub(d), 8*d + 8 + 3, 8*d + 8 + 7)
            if o.tg == 2:
                gaps[0] = [f"s_mul_i32 s71, s{sHG}, {3*PSZ}", "s_add_u32 s73, s73, s71"] + gaps[0]
            stream(fr, None, gapfill=gaps)
        def tail8():
            used0 = set(x for v in wo0_use.values() for x in v)
            assert used0 == {(0, 0), (0, 1)}
            assert wo1_issue == {15: [(0, 0)]}
            gl = lambda p: of_mem(1, p, 0, f"G{p}") + of_mem(1, p, 1, f"G{p}")
            fl = lambda p: of_mem(0, p, 0, f"F{p}") + of_mem(0, p, 1, f"F{p}")
            fw = lambda p: frags_c([(wo0_slot[(p, 0)], 2*p, False), (wo0_slot[(p, 1)], 2*p + 1, False)])
            ft = lambda p: [f"O0{p}0", f"O0{p}1", f"F{p}"]
            in_loop_f = set(x for v in of0_issue.values() for x in v)
            late_f = [p for p in (2, 3) if p not in in_loop_f]
            s.stamp("preE")
            wait_vm(ft(1) + ["O100"])
            s.stamp("wE")
            A(f"v_add_u32 v{vOL}, {hex((P[0] - W[1]) & 0xffffffff)}, v{vOL}")
            if o.wrot: A(f"v_add_u32 v{vOL2}, {hex((P[0] - W[1]) & 0xffffffff)}, v{vOL2}")
            A("s_barrier")
            s.stamp("E")
            f1 = fw(1); gaps = [[] for _ in f1]
            if late_f: spread(gaps, mat2(sum((fl(p) for p in late_f), [])), 0, o.t8f)
            stream(f1, None, gapfill=gaps)
            s.stamp("U0")
            wait_vm(ft(2))
            A("s_barrier")
            s.stamp("T0")
            stream(fw(2), None)
            s.stamp("U1")
            wait_vm(ft(3))
            A("s_barrier")
            s.stamp("T1")
            f3 = fw(3); gaps = [[] for _ in f3]
            rd_ = []
            for half in range(2):
                for j in range(4):
                    if o.wrot: rd_.append([f"ds_read_b128 {vr(X+16*half+4*j,4)}, v{(vOL, vOL2)[half]} offset:{j*512} ; @own"])
                    else: rd_.append([f"ds_read_b128 {vr(X+16*half+4*j,4)}, v{vOL} offset:{half*4096 + j*512} ; @own"])
            spread(gaps, rd_, 8, 24)
            stream(f3, None, gapfill=gaps)
            s.stamp("U2")
            A("s_waitcnt lgkmcnt(0)")
            A("s_barrier")
            s.stamp("Ta")
            own = frags_c([(wo1_slot[(0, 0)], 0, False), (wo1_slot[(0, 1)], 1, False)])
            old_ = s.L; s.L = []; addr_prep(); ap_ = [[l.strip()] for l in s.L]; s.L = old_
            gaps = [[] for _ in own]
            spread(gaps, ap_, 2, 30)
            pl = [f"s_lshl_b32 s72, s{sW}, 2", f"s_add_u32 s72, s72, {FLAG_BASE}", "s_mov_b64 exec, 7",
                  f"buffer_load_dword v{VP}, v21, {srd(sWS)}, s72 offen sc1", "s_mov_b64 exec, -1"]
            if o.t8p >= 0:
                q.issue("POLL1"); gaps[o.t8p] += pl
            stream(own, None, gapfill=gaps)
            s.stamp("own")
            if o.t8p >= 0:
                wait_vm("POLL1")
                flag_check("2")
            else:
                A(f"s_lshl_b32 s72, s{sW}, 2")
                A(f"s_add_u32 s72, s72, {FLAG_BASE}")
                wave_poll(21, "poll1")
            s.stamp("poll1")
            for g_ in mat2(gl(1) + gl(2)): s.emit(g_)
            A("s_barrier")
            ND = 3 if o.defer else 4
            for p in (1, 2):
                wait_vm(f"G{p}")
                if p == 1: s.stamp("g1")
                fr_ = [f for f in frags_c([(wo1_slot[(p, 0)], 2*p, False), (wo1_slot[(p, 1)], 2*p + 1, False)]) if f[4] < ND]
                gaps = [[] for _ in fr_]
                if p == 1: spread(gaps, mat2(gl(3)), 0, o.t7h)
                stream(fr_, None, gapfill=gaps)
            wait_vm("G3")
            s.stamp("Tc")
            fr = []
            for d in range(ND):
                for half in range(2):
                    for j in range(4):
                        fr.append((wo1_slot[(3, half)], 6 + half, False, j, d, half))
            for p in ((1, 2, 3) if o.defer else ()):
                for half in range(2):
                    for j in range(4):
                        fr.append((wo1_slot[(p, half)], 2*p + half, False, j, 3, half))
            gaps = [[] for _ in range(len(fr))]
            for d in range(3):
                spread(gaps, pub(d), 8*d + 8 + 3, 8*d + 8 + 7)
            if o.tg == 2:
                gaps[0] = [f"s_mul_i32 s71, s{sHG}, {3*PSZ}", "s_add_u32 s73, s73, s71"] + gaps[0]
            stream(fr, None, gapfill=gaps)
        def tail9():
            used0 = set(x for v in wo0_use.values() for x in v)
            assert used0 == {(0, 0), (0, 1)}
            assert wo1_issue == {15: [(0, 0)]}
            gl = lambda p: of_mem(1, p, 0, f"G{p}") + of_mem(1, p, 1, f"G{p}")
            fl = lambda p: of_mem(0, p, 0, f"F{p}") + of_mem(0, p, 1, f"F{p}")
            fw = lambda p: frags_c([(wo0_slot[(p, 0)], 2*p, False), (wo0_slot[(p, 1)], 2*p + 1, False)])
            in_loop_f = set(x for v in of0_issue.values() for x in v)
            late_f = [p for p in (2, 3) if p not in in_loop_f]
            def wl_vm(tags):
                n = q.wait(tags)
                return [f"s_waitcnt vmcnt({n})"] if n is not None else []
            s.stamp("preE")
            late_w = []
            if o.t9e:
                wait_vm(["F1", "O010", "O011"])
                late_w = [f"O0{p}{h}" for p in (2, 3) for h in range(2)] + ["O100"]
            else: wait_vm([f"O0{p}{h}" for p in (1, 2, 3) for h in range(2)] + ["F1", "O100"])
            s.stamp("wE")
            A(f"v_add_u32 v{vOL}, {hex((P[0] - W[1]) & 0xffffffff)}, v{vOL}")
            if o.wrot: A(f"v_add_u32 v{vOL2}, {hex((P[0] - W[1]) & 0xffffffff)}, v{vOL2}")
            qsave = list(q.q)
            if not o.t9e:
                A("s_barrier")
                s.stamp("E")
            own = frags_c([(wo1_slot[(0, 0)], 0, False), (wo1_slot[(0, 1)], 1, False)])
            fr = fw(1) + fw(2) + fw(3) + own
            gaps = [[] for _ in fr]
            if late_f and o.t9e:
                if 2 in late_f: spread(gaps, mat2(fl(2)), o.t9a, o.t9b)
                if 3 in late_f: spread(gaps, mat2(fl(3)), o.t9c, o.t9d)
                assert o.t9b <= o.t9c
            elif late_f: spread(gaps, mat2(sum((fl(p) for p in late_f), [])), 0, o.t8f)
            if o.t9e:
                pendw = [t_ for t_ in late_w if t_ in q.q]
                wpre = []
                if pendw:
                    if o.t9c >= 32 and 3 in late_f:
                        f3 = [t_ for t_ in q.q if t_ == "F3"]; q.q = [t_ for t_ in q.q if t_ != "F3"]
                        wpre = wl_vm(pendw); q.q = q.q + f3
                    else: wpre = wl_vm(pendw)
                if o.t9c >= 32 and 3 in late_f:
                    qq = q.q; w2 = [f"s_waitcnt vmcnt(0)"]; q.q = [t_ for t_ in qq if t_ == "F3"]
                else: w2 = wl_vm("F2")
                gaps[31] += wpre + s.stamp_lines("U0") + ["s_barrier"] + s.stamp_lines("E") + w2 + s.stamp_lines("T0")
            else:
                gaps[31] += wl_vm("F2") + s.stamp_lines("U0") + ["s_barrier"] + s.stamp_lines("T0")
            gaps[63] += wl_vm("F3") + s.stamp_lines("U1") + ["s_barrier"] + s.stamp_lines("T1")
            rd_ = []
            for half in range(2):
                for j in range(4):
                    if o.wrot: rd_.append([f"ds_read_b128 {vr(X+16*half+4*j,4)}, v{(vOL, vOL2)[half]} offset:{j*512} ; @own"])
                    else: rd_.append([f"ds_read_b128 {vr(X+16*half+4*j,4)}, v{vOL} offset:{half*4096 + j*512} ; @own"])
            spread(gaps, rd_, 68, 84)
            gaps[95] += s.stamp_lines("U2") + ["s_barrier"] + s.stamp_lines("Ta")
            old_ = s.L; s.L = []; addr_prep(); ap_ = [[l.strip()] for l in s.L]; s.L = old_
            spread(gaps, ap_, 98, 126)
            pl = [f"s_lshl_b32 s72, s{sW}, 2", f"s_add_u32 s72, s72, {FLAG_BASE}", "s_mov_b64 exec, 7",
                  f"buffer_load_dword v{VP}, v21, {srd(sWS)}, s72 offen sc1", "s_mov_b64 exec, -1"]
            if o.t8p >= 0:
                q.issue("POLL1"); gaps[96 + o.t8p] += pl
            stream(fr, None, gapfill=gaps)
            s.stamp("own")
            if o.t8p >= 0:
                wait_vm("POLL1")
                flag_check("2")
            else:
                A(f"s_lshl_b32 s72, s{sW}, 2")
                A(f"s_add_u32 s72, s72, {FLAG_BASE}")
                wave_poll(21, "poll1")
            s.stamp("poll1")
            if o.t9g == 0: iss = gl(1) + gl(2)
            elif o.t9g == 1: iss = gl(1)
            else: iss = gl(1) + gl(2) + gl(3)
            for g_ in mat2(iss): s.emit(g_)
            A("s_barrier")
            ND = 3 if o.defer else 4
            assert o.defer
            fr = []
            for p in (1, 2):
                fr += [f for f in frags_c([(wo1_slot[(p, 0)], 2*p, False), (wo1_slot[(p, 1)], 2*p + 1, False)]) if f[4] < ND]
            for d in range(ND):
                for half in range(2):
                    for j in range(4):
                        fr.append((wo1_slot[(3, half)], 6 + half, False, j, d, half))
            for p in (1, 2, 3):
                for half in range(2):
                    for j in range(4):
                        fr.append((wo1_slot[(p, half)], 2*p + half, False, j, 3, half))
            gaps = [[] for _ in range(len(fr))]
            g1w = wl_vm("G1")
            if o.t9g == 1:
                spread(gaps, mat2(gl(2)), 0, 8);
                w2 = wl_vm("G2")
                raise NotImplementedError
            if o.t9g == 0:
                spread(gaps, mat2(gl(3)), 0, o.t7h)
            gaps[23] += wl_vm("G2")
            gaps[47] += wl_vm("G3") + s.stamp_lines("Tc")
            for d in range(3):
                spread(gaps, pub(d), 48 + 8*d + 8 + 3, 48 + 8*d + 8 + 7)
            if o.tg == 2:
                gaps[48] = [f"s_mul_i32 s71, s{sHG}, {3*PSZ}", "s_add_u32 s73, s73, s71"] + gaps[48]
            first = [True]
            stream(fr, None, gapfill=gaps, premf={0: g1w + s.stamp_lines("g1")})
        def tail10():
            used0 = set(x for v in wo0_use.values() for x in v)
            assert used0 == {(0, 0), (0, 1)}
            assert wo1_issue == {15: [(0, 0)]}
            assert set(x for v in of0_issue.values() for x in v) == {1}
            assert o.defer and o.tg == 2
            gl = lambda p, blk: of_mem(1, p, 0, f"G{p}", blk=blk) + of_mem(1, p, 1, f"G{p}", blk=blk)
            fl = lambda p: of_mem(0, p, 0, f"F{p}") + of_mem(0, p, 1, f"F{p}")
            two = lambda s0, s1, blk: frags_c([(s0, blk, False), (s1, blk + 1, False)])
            def wl_vm(tags):
                n = q.wait(tags)
                return [f"s_waitcnt vmcnt({n})"] if n is not None else []
            rd_ = []
            for half in range(2):
                for j in range(4):
                    rd_.append([f"ds_read_b128 {vr(X+16*half+4*j,4)}, v{(vOL, vOL2)[half]} offset:{j*512} ; @own"])
            def ap_lines():
                old_ = s.L; s.L = []; addr_prep(); r = [[l.strip()] for l in s.L]; s.L = old_
                return r
            pl = [f"s_lshl_b32 s72, s{sW}, 2", f"s_add_u32 s72, s72, {FLAG_BASE}", "s_mov_b64 exec, 7",
                  f"buffer_load_dword v{VP}, v21, {srd(sWS)}, s72 offen sc1", "s_mov_b64 exec, -1"]
            def head(late):
                for g_ in mat2(sum((fl(p) for p in late), [])): s.emit(g_)
                s.stamp("preE")
                wait_vm(["O011", "O010", "O020", "O021", "O030", "O031", "F1", "O100"])
                s.stamp("wE")
                A(f"v_add_u32 v{vOL}, {hex((P[0] - W[1]) & 0xffffffff)}, v{vOL}")
                A(f"v_add_u32 v{vOL2}, {hex((P[0] - W[1]) & 0xffffffff)}, v{vOL2}")
                A("s_barrier")
                s.stamp("E")
            def second(stg, fill, barr, waits, first_wait):
                fr = []
                for (s0, s1, blk, df) in stg[:-1]:
                    fr += [f for f in two(s0, s1, blk) if (f[4] < 3 or not df)]
                base = len(fr)
                s0, s1, blk, df = stg[-1]
                for d in range(3):
                    for half in range(2):
                        for j in range(4):
                            fr.append(((s0, s1)[half], blk + half, False, j, d, half))
                for (s0, s1, blk, df) in stg:
                    if not df: continue
                    for half in range(2):
                        for j in range(4):
                            fr.append(((s0, s1)[half], blk + half, False, j, 3, half))
                gaps = [[] for _ in fr]
                for (a, b, grp) in fill: spread(gaps, mat2(grp()), a, b)
                for (at, tags, nm, bar) in sorted(barr + waits):
                    gaps[at] += (wl_vm(tags) if tags else []) + (s.stamp_lines(nm) if nm else []) + (["s_barrier"] if bar else [])
                for d in range(3):
                    spread(gaps, pub(d), base + 8*d + 8 + 3, base + 8*d + 8 + 7)
                gaps[base] = [f"s_mul_i32 s71, s{sHG}, {3*PSZ}", "s_add_u32 s73, s73, s71"] + gaps[base]
                stream(fr, None, gapfill=gaps, premf={0: first_wait})
            def slow2(sfx):
                t7_slow.extend([f"B_slow2{sfx}:", f"s_lshl_b32 s72, s{sW}, 2", f"s_add_u32 s72, s72, {FLAG_BASE}"])
                t7_slow.extend(s.capture(lambda: wave_poll(21, "slow2l" + sfx, drain=False)))
                t7_slow.append(f"s_branch B_slow2{sfx}r")
            q0 = list(q.q); wb0, xb0 = s.wbase, s.xbase
            A(f"s_bitcmp1_b32 s{sHG}, 0")
            A("s_cbranch_scc1 B_t10o ; @hook=ODD")
            head([2, 3])
            fr = two(W[0], W[1], 2) + two(W[2], W[3], 4) + two(P[1], P[2], 6) + two(P[2] + 16384, P[1] + 16384, 0)
            gaps = [[] for _ in fr]
            spread(gaps, rd_, 4, 20)
            gaps[31] += wl_vm("F2") + s.stamp_lines("U0") + ["s_barrier"] + s.stamp_lines("T0")
            fx = of_mem(0, 3, 0, "FX", blk=2, xoff=8*UNIT) + of_mem(0, 3, 1, "FX", blk=2, xoff=8*UNIT)
            spread(gaps, mat2(fx), 33, 49)
            gaps[63] += wl_vm("F3") + s.stamp_lines("U1") + ["s_barrier"] + s.stamp_lines("T1")
            gaps[95] += s.stamp_lines("U2") + ["s_barrier"] + s.stamp_lines("Ta")
            q.issue("POLL1"); gaps[96 + o.t8p] += pl
            spread(gaps, ap_lines(), 110, 127)
            stream(fr, None, gapfill=gaps)
            s.stamp("own")
            wait_vm("POLL1")
            flag_check("2", sfx="e"); slow2("e")
            s.stamp("poll1")
            for g_ in mat2(gl(1, 4) + gl(2, 6)): s.emit(g_)
            A("s_barrier")
            second([(P[0], P[0] + 16384, 2, False), (W[0], W[1], 4, True), (W[2], W[3], 6, True), (P[1], P[2], 0, True)],
                   [(0, o.t7h, lambda: gl(3, 0))], [(48, None, "Tc", True)], [(31, ["G1"], "g1", False), (55, ["G2"], None, False), (79, ["G3"], None, False)],
                   wl_vm("FX"))
            A("s_branch B_fin")
            qe = list(q.q)
            q.q = list(q0); s.wbase, s.xbase = wb0, xb0
            s.lab("B_t10o")
            head([2])
            fr = two(W[0], W[1], 2) + two(P[2] + 16384, P[1] + 16384, 0)
            gaps = [[] for _ in fr]
            spread(gaps, rd_, 4, 20)
            q.issue("POLL1"); gaps[32 + o.t10p] += pl
            gaps[40] += s.stamp_lines("U0") + ["s_barrier"] + s.stamp_lines("T0")
            spread(gaps, ap_lines(), 44, 62)
            stream(fr, None, gapfill=gaps)
            s.stamp("own")
            wait_vm("POLL1")
            flag_check("2", sfx="o"); slow2("o")
            s.stamp("poll1")
            for g_ in mat2(gl(1, 2)): s.emit(g_)
            second([(W[2], W[3], 4, bool(o.t10d)), (W[0], W[1], 2, True), (P[0], P[0] + 16384, 6, True), (P[1], P[2], 0, True)],
                   [(0, o.t7h, lambda: gl(2, 6) + gl(3, 0))],
                   [(24 - 8*o.t10d, None, None, True), (48 - 8*o.t10d, None, "Tc", True)],
                   [(31 - 8*o.t10d, ["G1"], "g1", False), (55 - 8*o.t10d, ["G2"], None, False), (79 - 8*o.t10d, ["G3"], None, False)],
                   wl_vm("F2"))
            s.lab("B_fin")
            q.q = ["PUB"] * 12
        def tail11():
            assert o.defer and o.tg == 2 and o.pz >= 0 and o.wrot
            used0 = set(x for v in wo0_use.values() for x in v)
            rest = [p for p in (1, 2, 3) if (p, 0) not in used0]
            in_loop_f = set(x for v in of0_issue.values() for x in v)
            late_f = [p for p in rest if p not in in_loop_f]
            issued1 = [c for v in wo1_issue.values() for c in v]
            gpos = eval(o.t11g)
            def chk(p, h):
                r0 = X + 16*(2*p + h)
                L = [f"v_max3_u32 v25, v{r0}, v{r0+1}, v{r0+2}", f"v_max3_u32 v26, v{r0+3}, v{r0+4}, v{r0+5}"]
                for i in range(6, 14, 2): L.append(f"v_max3_u32 v{25 + ((i//2 + 1) & 1)}, v{25 + ((i//2 + 1) & 1)}, v{r0+i}, v{r0+i+1}")
                L += [f"v_max3_u32 v25, v25, v{r0+14}, v{r0+15}", "v_max_u32 v25, v25, v26",
                      "v_cmp_eq_u32 vcc, -1, v25", f"s_and_b64 vcc, vcc, s[{sEXLO}:{sEXHI}]"]
                return L
            def gld(p, h): return of_mem(1, p, h, f"G{p}{h}")
            def slow(p, h):
                n = f"B_gs{p}{h}"
                L = [f"{n}:", f"s_mov_b32 s{sSPIN}, 0", f"{n}l:"]
                for (_, ins) in gld(p, h): L += ins
                L += ["s_waitcnt vmcnt(0)"] + chk(p, h) + [f"s_cbranch_scc0 {n}r ; @taken", f"{n}p:",
                      f"s_add_u32 s{sSPIN}, s{sSPIN}, 1", f"s_cmp_ge_u32 s{sSPIN}, {min(o.spin, 8192)}", f"s_cbranch_scc1 {n}r ; @nottaken",
                      f"s_lshl_b32 s70, s{sW}, 9", f"s_add_u32 s72, s{sOP+p}, s{sOH[h]}", "s_add_u32 s72, s72, s70", f"s_add_u32 s72, s72, {UNIT + 6*1792}",
                      f"buffer_load_dword v{VP}, off, {srd(sWS)}, s72 sc1", "s_waitcnt vmcnt(0)", f"v_readfirstlane_b32 s70, v{VP}",
                      "s_cmp_eq_u32 s70, -1", f"s_cbranch_scc1 {n}p ; @nottaken", f"s_branch {n}l"]
                t7_slow.extend(L)
            sSTAG = 53
            if o.stag > 1:
                A(f"s_and_b32 s70, s{sW}, {o.stag - 1}")
                A(f"s_lshl_b32 s{sSTAG}, 1, s70")
            s.stamp("preE")
            pre = [p for p in (1, 2, 3) if gpos[p-1][0] < 0]
            wtags = [f"O1{p}{h}" for (p, h) in issued1] + [f"O0{p}{h}" for p in rest for h in range(2)] + [f"F{p}" for p in rest[:1]]
            if o.t11w == 0: wait_vm(wtags)
            for p in pre:
                assert p not in rest
                for g_ in mat2(gld(p, 0) + gld(p, 1)): s.emit(g_)
            if o.t11w == 1: wait_vm(wtags)
            s.stamp("wE")
            A(f"v_add_u32 v{vOL}, {hex((P[0] - W[1]) & 0xffffffff)}, v{vOL}")
            A(f"v_add_u32 v{vOL2}, {hex((P[0] - W[1]) & 0xffffffff)}, v{vOL2}")
            A("s_barrier")
            s.stamp("E")
            rd_ = []
            for half in range(2):
                for j in range(4):
                    rd_.append([f"ds_read_b128 {vr(X+16*half+4*j,4)}, v{(vOL, vOL2)[half]} offset:{j*512} ; @own"])
            fr = []
            for p in rest: fr += frags_c([(wo0_slot[(p, 0)], 2*p, False), (wo0_slot[(p, 1)], 2*p + 1, False)])
            u_end = len(fr)
            own = frags_c([(wo1_slot[(0, 0)], 0, False), (wo1_slot[(0, 1)], 1, False)])
            fr += own
            g0 = len(fr)
            for p in (1, 2):
                fr += [f for f in frags_c([(wo1_slot[(p, 0)], 2*p, False), (wo1_slot[(p, 1)], 2*p + 1, False)]) if f[4] < 3]
            base = len(fr)
            for d in range(3):
                for half in range(2):
                    for j in range(4):
                        fr.append((wo1_slot[(3, half)], 6 + half, False, j, d, half))
            for p in (1, 2, 3):
                for half in range(2):
                    for j in range(4):
                        fr.append((wo1_slot[(p, half)], 2*p + half, False, j, 3, half))
            n = len(fr)
            ev = []
            def add(at, kind, pay): ev.append((at, len(ev), kind, pay))
            premf = {}
            if u_end == 0:
                for r_ in rd_: s.emit(r_)
                premf[0] = ["s_waitcnt lgkmcnt(0)"] if not o.t11l else []
            else:
                for i, r_ in enumerate(rd_): add(4 + 2*i, "txt", r_)
            if late_f:
                lf = sum((of_mem(0, p, 0, f"F{p}") + of_mem(0, p, 1, f"F{p}") for p in late_f), [])
                for i, g_ in enumerate(lf): add((i * o.t8f) // len(lf), "ld", g_)
            for i, p in enumerate(rest):
                if i: add(32*i - 1, "wait", [f"F{p}"])
            ap_ = s.capture(addr_prep)
            a0 = max(u_end, 24 if u_end else 0) + 2
            for i, l in enumerate(ap_): add(a0 + (i * o.t11p) // len(ap_), "txt", [l])
            for p in (1, 2, 3):
                a, b = gpos[p-1]
                if a < 0: continue
                gl_ = gld(p, 0) + gld(p, 1)
                assert p not in rest or a >= 32*(rest.index(p) + 1)
                if o.stag:
                    k_ = 0
                    for (tg_, ins) in gl_:
                        pre_ = [l for l in ins if l.startswith("s_add")]
                        lds_ = [l for l in ins if l.startswith("buffer_load")]
                        for l in lds_:
                            body = pre_ + ([l] if o.nox else [f"s_mov_b64 exec, s[{sEXLO}:{sEXHI}]", l, "s_mov_b64 exec, -1"])
                            g_at = a + (k_ * (b - a)) // 8
                            for ph in range(o.stag):
                                if o.stag == 1: add(g_at, "txt", body)
                                else:
                                    lb = f"B_sg{p}_{k_}_{ph}"
                                    add(g_at + ph, "txt", [f"s_bitcmp1_b32 s{sSTAG}, {ph}", f"s_cbranch_scc0 {lb} ; @hook=STG{ph}n"] + body + [f"{lb}:"])
                            add(g_at + o.stag - 1, "cnt", tg_[0])
                            k_ += 1
                else:
                    for i, g_ in enumerate(gl_): add(a + (i * (b - a)) // len(gl_), "ld", g_)
            need = {(1, 0): g0, (1, 1): g0 + 12, (2, 0): g0 + 24, (2, 1): g0 + 36, (3, 0): base, (3, 1): base}
            for (p, h), at in need.items():
                at -= 1
                if (p, h) == (3, 0): at -= o.t11c + 1
                c = chk(p, h)
                add(at - o.t11c, "wait", [f"G{p}{h}"])
                if (p, h) == (1, 0): add(at - o.t11c, "txt", s.stamp_lines("g1"))
                for i, l in enumerate(c[:-2]): add(at - o.t11c + (i * (o.t11c + 1)) // len(c[:-2]), "txt", [l])
                add(at, "txt", c[-2:] + [f"s_cbranch_scc1 B_gs{p}{h} ; @hook=GSLOW", f"B_gs{p}{h}r:"] + s.stamp_lines(f"k{p}{h}"))
                slow(p, h)
            for (at, nm) in eval(o.t11s):
                add(at, "txt", s.stamp_lines(nm + "a") + ["s_barrier"] + s.stamp_lines(nm))
            gaps = [[] for _ in range(n)]
            for (at, _, kind, pay) in sorted(ev, key=lambda e: (e[0], e[1])):
                if kind == "txt": gaps[at] += pay
                elif kind == "ld": gaps[at] += mat2([pay])[0]
                elif kind == "cnt": q.issue(pay)
                else:
                    k = q.wait(pay)
                    if k is not None: gaps[at].append(f"s_waitcnt vmcnt({k})")
            gaps[g0 - 1] += s.stamp_lines("own")
            for d in range(3):
                spread(gaps, pub(d), base + 8*d + 8 + 3, base + 8*d + 8 + 7)
            gaps[base] = [f"s_mul_i32 s71, s{sHG}, {3*PSZ}", "s_add_u32 s73, s73, s71"] + gaps[base]
            stream(fr, None, gapfill=gaps, premf=premf)
        def tail12():
            used0 = set(x for v in wo0_use.values() for x in v)
            assert used0 == {(0, 0), (0, 1)} and wo1_issue == {15: [(0, 0)]}
            assert o.defer and o.tg == 2 and o.wrot
            assert set(x for v in of0_issue.values() for x in v) == {1, 2, 3}
            SY = P[0] + 3*8192 + 256
            vS0, vSY, vSG = (12, 13, 16) if o.t12v != 4 else (12, 2, 3)
            fw = lambda p: frags_c([(wo0_slot[(p, 0)], 2*p, False), (wo0_slot[(p, 1)], 2*p + 1, False)])
            def wl_vm(tags):
                n = q.wait(tags)
                return [f"s_waitcnt vmcnt({n})"] if n is not None else []
            A(f"v_mov_b32 v{vSY}, {SY}")
            A(f"s_lshl_b32 s70, s{sW}, 2")
            A(f"s_add_u32 s70, s70, {SY}")
            A(f"v_mov_b32 v{vSG}, s70")
            A(f"v_add_u32 v{vS0}, {hex((-W[0]) & 0xffffffff)}, v{vQW}")
            A("v_mov_b32 v28, 0")
            A("s_mov_b64 exec, 1")
            A(f"ds_write_b32 v{vSG}, v28")
            A(f"ds_write_b32 v{vSG}, v28 offset:16")
            A("s_mov_b64 exec, -1")
            s.stamp("preE")
            wait_vm([f"O0{p}{h}" for p in (1, 2, 3) for h in range(2)] + ["F1", "O100"])
            s.stamp("wE")
            A(f"v_add_u32 v{vOL}, {hex((P[0] - W[1]) & 0xffffffff)}, v{vOL}")
            A(f"v_add_u32 v{vOL2}, {hex((P[0] - W[1]) & 0xffffffff)}, v{vOL2}")
            A("s_waitcnt lgkmcnt(0)")
            A("s_barrier")
            s.stamp("E")
            W1S = {(1, 0): W[0], (1, 1): W[1], (2, 0): P[1], (2, 1): P[2], (3, 0): W[2], (3, 1): W[3]}
            if o.t12v == 4: W1S = dict(wo1_slot)
            own = frags_c([(wo1_slot[(0, 0)], 0, False), (wo1_slot[(0, 1)], 1, False)])
            if o.t12o: own_d3 = [f for f in own if f[4] == 3]; own = [f for f in own if f[4] < 3]
            else: own_d3 = []
            fr = fw(1) + fw(2) + fw(3) + own
            g0 = len(fr)
            for p in (1, 2):
                fr += [f for f in frags_c([(W1S[(p, 0)], 2*p, False), (W1S[(p, 1)], 2*p + 1, False)]) if f[4] < 3]
            base = len(fr)
            for d in range(3):
                for half in range(2):
                    for j in range(4):
                        fr.append((W1S[(3, half)], 6 + half, False, j, d, half))
            fr += own_d3
            for p in (1, 2, 3):
                for half in range(2):
                    for j in range(4):
                        fr.append((W1S[(p, half)], 2*p + half, False, j, 3, half))
            gaps = [[] for _ in fr]
            def sig(at, level):
                gaps[at] += [f"v_mov_b32 v27, {level}", "s_mov_b64 exec, 1", f"ds_write_b32 v{vSG}, v27", "s_mov_b64 exec, -1"]
            nchk = [0]
            def need(at, level, nm=None):
                n = nchk[0]; nchk[0] += 1
                test = ["v_min3_u32 v28, v28, v29, v30", "v_min_u32 v28, v28, v31", "v_readfirstlane_b32 s70, v28", f"s_cmp_ge_u32 s70, {level}"]
                gaps[at - 3] += [f"ds_read_b128 v[28:31], v{vSY} offset:16"]
                gaps[at] += ["s_waitcnt lgkmcnt(6)"] + test + [f"s_cbranch_scc0 B_n{n} ; @hook=GSLOW", f"B_n{n}r:"] + (s.stamp_lines(nm) if nm else [])
                t7_slow.extend([f"B_n{n}:", f"s_mov_b32 s{sSPIN}, 0", f"B_n{n}l:", f"ds_read_b128 v[28:31], v{vSY} offset:16",
                                f"s_add_u32 s{sSPIN}, s{sSPIN}, 1", "s_waitcnt lgkmcnt(0)"] + test +
                               [f"s_cbranch_scc1 B_n{n}r ; @taken", f"s_cmp_lt_u32 s{sSPIN}, {o.spin * 8}", f"s_cbranch_scc1 B_n{n}l ; @nottaken", f"s_branch B_n{n}r"])
            def unit_reads(p, vaddr, off, a, b):
                rd = [[f"ds_read_b128 {vr(X + 16*(2*p + (k >> 2)) + 4*(k & 3), 4)}, v{vaddr} offset:{off + k*1024} ; @own"] for k in range(8)]
                spread(gaps, rd, a, b)
            rd_ = []
            for half in range(2):
                for j in range(4):
                    rd_.append([f"ds_read_b128 {vr(X+16*half+4*j,4)}, v{(vOL, vOL2)[half]} offset:{j*512} ; @own"])
            spread(gaps, rd_, 2, 14)
            gaps[31] += wl_vm("F2") + s.stamp_lines("U0"); sig(31, 2)
            gaps[63] += wl_vm("F3") + s.stamp_lines("U1"); sig(63, 3)
            gaps[95] += s.stamp_lines("U2"); sig(95, 4)
            ap_ = [[l] for l in s.capture(addr_prep)]
            spread(gaps, ap_, 66, 92)
            h1 = 96 + len(own) // 2
            c = eval(o.t12c)
            if o.t12v == 4:
                gl = lambda p: of_mem(1, p, 0, f"G{p}") + of_mem(1, p, 1, f"G{p}")
                need(h1 - 7, 1, "n2")
                pl = [f"s_lshl_b32 s72, s{sW}, 2", f"s_add_u32 s72, s72, {FLAG_BASE}", "s_mov_b64 exec, 7",
                      f"buffer_load_dword v{VP}, v21, {srd(sWS)}, s72 offen sc1", "s_mov_b64 exec, -1"]
                q.issue("POLL1"); gaps[96 + o.t8p] += pl
                gaps[g0 - 1] += s.stamp_lines("own")
                stream(fr[:g0], None, gapfill=gaps[:g0])
                wait_vm("POLL1")
                flag_check("2")
                s.stamp("poll1")
                for g_ in mat2(gl(1) + gl(2)): s.emit(g_)
                fr2 = fr[g0:]; gaps = gaps[g0:]; base -= g0
                for g_ in gaps: assert not g_
                n = nchk[0]; nchk[0] += 1
                test = ["v_min3_u32 v28, v28, v29, v30", "v_min_u32 v28, v28, v31", "v_readfirstlane_b32 s70, v28", "s_cmp_ge_u32 s70, 2"]
                s.emit([f"ds_read_b128 v[28:31], v{vSY} offset:16", "s_waitcnt lgkmcnt(0)"] + test + [f"s_cbranch_scc0 B_n{n} ; @hook=GSLOW", f"B_n{n}r:"])
                t7_slow.extend([f"B_n{n}:", f"s_mov_b32 s{sSPIN}, 0", f"B_n{n}l:", f"ds_read_b128 v[28:31], v{vSY} offset:16",
                                f"s_add_u32 s{sSPIN}, s{sSPIN}, 1", "s_waitcnt lgkmcnt(0)"] + test +
                               [f"s_cbranch_scc1 B_n{n}r ; @taken", f"s_cmp_lt_u32 s{sSPIN}, {o.spin * 8}", f"s_cbranch_scc1 B_n{n}l ; @nottaken", f"s_branch B_n{n}r"])
                g1w = wl_vm("G1")
                spread(gaps, mat2(gl(3)), 0, o.t7h)
                need(24 - 7, 3, "n5")
                gaps[23] += wl_vm("G2")
                need(48 - 7, 4, "n7")
                gaps[47] += wl_vm("G3") + s.stamp_lines("Tc")
                for d in range(3):
                    spread(gaps, pub(d), base + 8*d + 8 + 3, base + 8*d + 8 + 7)
                gaps[base] = [f"s_mul_i32 s71, s{sHG}, {3*PSZ}", "s_add_u32 s73, s73, s71"] + gaps[base]
                stream(fr2, None, gapfill=gaps, premf={0: g1w + s.stamp_lines("g1")})
                return
            if o.t12v == 3:
                assert g0 + c[0] <= g0 - 7 and g0 + c[1] <= g0 + 24 - 7
                need(h1 - 7, 1, "n2")
                need(g0 + c[0], 3, "n3"); unit_reads(1, vS0, 0, g0 + c[0] + 1, g0 + c[0] + 7); sig(g0 + c[0] + 8, 5)
                need(g0 + c[1], 5, "n4"); unit_reads(2, vQW, W[2] - W[0], g0 + c[1] + 1, g0 + c[1] + 7); sig(g0 + c[1] + 8, 6)
                need(base + c[2], 6, "n6"); unit_reads(3, vS0, 0, base + c[2] + 1, base + c[2] + 7)
                need(base - 7, 7, "n7")
            elif o.t12v == 0:
                need(h1 - 7, 3, "n2")
                need(g0 + c[0], 4, "n3")
            else:
                need(h1 - 7, 1, "n2")
                need(g0 + c[0], 2, "n3")
            if o.t12v != 3:
                unit_reads(1, vS0, 0, g0 + c[0] + 1, g0 + c[0] + 7); sig(g0 + c[0] + 8, 5)
                if o.t12v: need(g0 - 7, 3, "nw1")
                need(g0 + c[1], 5, "n4"); unit_reads(2, vQW, W[2] - W[0], g0 + c[1] + 1, g0 + c[1] + 7); sig(g0 + c[1] + 8, 6)
                need(g0 + 24 - 7, 6, "n5")
                need(base + c[2], 7, "n6"); unit_reads(3, vS0, 0, base + c[2] + 1, base + c[2] + 7)
                need(base - 7, 8, "n7")
            gaps[g0 - 1] += s.stamp_lines("own")
            for d in range(3):
                spread(gaps, pub(d), base + 8*d + 8 + 3, base + 8*d + 8 + 7)
            gaps[base] = [f"s_mul_i32 s71, s{sHG}, {3*PSZ}", "s_add_u32 s73, s73, s71"] + gaps[base]
            stream(fr, None, gapfill=gaps)
        t7_slow = []
        {12: tail12, 11: tail11, 10: tail10, 9: tail9, 8: tail8, 1: tail1, 2: tail2, 3: tail3, 5: tail5, 6: tail6, 7: tail7}[o.tail]()
        s.stamp("oproj")
        if not o.tg:
            A(f"s_lshl_b32 s70, s{sMYB}, 7")
            A(f"s_lshl_b32 s72, s{sW}, 2")
            A(f"s_add_u32 s72, s72, {FLAG_BASE + 16}")
            A("s_add_u32 s70, s70, s72")
            A("v_mov_b32 v20, 1")
            A("s_waitcnt vmcnt(0)")
            s.stamp("pst")
            A("s_mov_b64 exec, 1")
            A(f"buffer_store_dword v20, off, {srd(sWS)}, s70 sc1")
        if o.cl & 2:
            A("s_mov_b64 exec, -1")
            for g_ in mat2(of_mem(1, 3, 0, "CL1", store=True, clean=True) + of_mem(1, 3, 1, "CL1", store=True, clean=True)): s.emit(g_)
            A(f"s_lshl_b32 s72, s{sW}, 2")
            A(f"s_add_u32 s72, s72, {FLAG_BASE + 16}")
        if not o.tg:
            wave_poll(22, "poll2")
            s.stamp("poll2")
        if o.tg != 2:
            A(f"s_mul_i32 s71, s{sHG}, {3*PSZ}")
            A("s_add_u32 s73, s73, s71")
        R = 64
        OWN = ACC + 48
        A(f"s_mov_b64 exec, s[{sEXLO}:{sEXHI}]")
        def part_iss(src, dst): return sum((part_ld(src, dst, rq) for rq in range(4)), [])
        def part_chk(dst):
            r = [f"v_xor_b32 v25, s{sTG[0]}, v{dst}", f"v_xor_b32 v26, s{sTG[1]}, v{dst+1}"]
            r += [f"v_bitop3_b32 v{25 + (i & 1)}, v{25 + (i & 1)}, v{dst+i}, s{sTG[i % 4]} bitop3:0xf6" for i in range(2, 16)]
            return r + ["v_or_b32 v25, v25, v26", "v_and_b32 v25, v24, v25", "v_cmp_ne_u32 vcc, 0, v25", "s_nop 0"]
        def part_add(dst): return [f"v_pk_add_f32 {vr(OWN+2*i,2)}, {vr(OWN+2*i,2)}, {vr(dst+2*i,2)}" for i in range(8)]
        def out_addr():
            A(f"s_mul_i32 s72, s{sB}, {112*2048}")
            A(f"s_lshl_b32 s71, s{sBR}, 10")
            A("s_add_u32 s72, s72, s71")
            A(f"s_lshl_b32 s71, s{sHP}, 8")
            A("s_add_u32 s72, s72, s71")
            A(f"s_lshl_b32 s71, s{sHG}, 6")
            A("s_add_u32 s72, s72, s71")
        tg2_slow = []
        if o.tg == 2:
            order = [(2, R), (1, R + 16), (0, R + 32)]
            A(f"s_mov_b32 s{sSPIN}, 0")
            if o.tge < 0: s.emit(part_iss(2, R))
            s.emit(part_iss(1, R + 16))
            if o.tgd == 0: s.emit(part_iss(0, R + 32))
            out_addr()
            for k_, (src, dst) in enumerate(order):
                later = {0: 4 + (4 if o.tgd == 0 else 0), 1: (4 if o.tgd <= 1 else 0), 2: 0}[k_]
                A(f"s_waitcnt vmcnt({later})")
                if k_ == 0: s.stamp("l2")
                if k_ == 1: s.stamp("l1")
                if o.tgd == k_ + 1: s.emit(part_iss(0, R + 32))
                s.emit(part_chk(dst))
                A(f"s_cbranch_vccnz B_r{src} ; @nottaken")
                s.lab(f"B_r{src}r")
                s.emit(part_add(dst))
                tg2_slow += [f"B_r{src}:", f"s_add_u32 s{sSPIN}, s{sSPIN}, 1", f"s_cmp_ge_u32 s{sSPIN}, {min(o.spin, 4096)}",
                             f"s_cbranch_scc1 B_r{src}r ; @nottaken"] + part_iss(src, dst) + ["s_waitcnt vmcnt(0)"] + part_chk(dst) + \
                            [f"s_cbranch_vccnz B_r{src} ; @nottaken", f"s_branch B_r{src}r"]
            s.stamp("poll2")
            if o.stamp and "nrt" in o.stamps.split(","):
                r_ = STAMP_REGS[o.stamps.split(",").index("nrt")]
                s.emit(["s_waitcnt lgkmcnt(0)", f"s_mul_i32 s70, s{sSPIN}, 1000", f"s_add_u32 s{r_}, s90, s70", f"s_addc_u32 s{r_+1}, s91, 0"])
            q.drain()
            A("s_mov_b32 s70, s72")
        if o.tg == 1:
            A(f"s_mov_b32 s{sSPIN}, 0")
            s.lab("B_rt")
        for src in (range(3) if o.tg != 2 else ()):
            for rq in range(4):
                A(f"s_add_u32 s70, s73, {src*PSZ + rq*3584}")
                A(f"buffer_load_dwordx4 {vr(R+16*src+4*rq,4)}, v23, {srd(sWS)}, s70 offen sc1{s.nthl}")
        if o.tg == 1:
            for src in range(3):
                A(f"s_waitcnt vmcnt({8 - 4*src})")
                for i in range(16):
                    acc = 25 + (i & 1)
                    if src == 0 and i < 2: A(f"v_xor_b32 v{acc}, s{sTG[i % 4]}, v{R+16*src+i}")
                    else: A(f"v_bitop3_b32 v{acc}, v{acc}, v{R+16*src+i}, s{sTG[i % 4]} bitop3:0xf6")
            A("v_or_b32 v25, v25, v26")
            A("v_and_b32 v25, v24, v25")
            A("v_cmp_ne_u32 vcc, 0, v25")
            A("s_nop 0")
            A("s_cbranch_vccz B_rtd ; @taken")
            A(f"s_add_u32 s{sSPIN}, s{sSPIN}, 1")
            A(f"s_cmp_lt_u32 s{sSPIN}, {min(o.spin, 4096)}")
            A("s_cbranch_scc1 B_rt")
            s.lab("B_rtd")
            s.stamp("poll2")
            if o.stamp and "nrt" in o.stamps.split(","):
                r_ = STAMP_REGS[o.stamps.split(",").index("nrt")]
                s.emit(["s_waitcnt lgkmcnt(0)", f"s_mul_i32 s70, s{sSPIN}, 1000", f"s_add_u32 s{r_}, s90, s70", f"s_addc_u32 s{r_+1}, s91, 0"])
            q.drain()
        if o.tg != 2:
            out_addr()
            A("s_mov_b32 s70, s72")
            A("s_waitcnt vmcnt(8)")
            s.emit(part_add(R))
            A("s_waitcnt vmcnt(4)")
            s.emit(part_add(R + 16))
            A("s_waitcnt vmcnt(0)")
            s.emit(part_add(R + 32))
        for i in range(8):
            A(f"v_cvt_pk_bf16_f32 v{32+i}, v{OWN+2*i}, v{OWN+2*i+1}")
        for h in range(2):
            A(f"buffer_store_dwordx4 {vr(32+4*h,4)}, v19, {srd(sOUT)}, s70 offen offset:{h*32}{['', ' sc1', ' sc0 sc1', ' nt', ' sc1 nt'][o.outsc]}")
        if o.tg:
            A(f"s_cmp_lg_u32 s{sHG}, 0")
            A("s_cbranch_scc1 B_ncell")
            s.emit(nonce_addr(72))
            A(f"v_mov_b32 v20, s{sNC}")
            A("s_mov_b64 exec, 1")
            A(f"buffer_store_dword v20, off, {srd(sWS)}, s72 sc1")
            s.lab("B_ncell")
        A("s_mov_b64 exec, -1")
        if o.dbgst:
            A("s_waitcnt vmcnt(0)")
            A(f"s_or_b32 s70, s{sW}, s{sHG}")
            A(f"s_or_b32 s70, s70, s{sHP}")
            A("s_cmp_lg_u32 s70, 0")
            A("s_cbranch_scc1 L_end")
            s.stamp("end"); s.stamp("cend", True)
            A("s_waitcnt lgkmcnt(0)")
            r = STAMP_REGS
            A(f"s_sub_u32 s70, s{r[5]}, s{r[1]}")
            A(f"s_sub_u32 s71, s{r[4]}, s{r[0]}")
            A(f"s_sub_u32 s72, s{r[2]}, s{r[1]}")
            A(f"s_sub_u32 s73, s{r[3]}, s{r[1]}")
            for i in range(4): A(f"v_mov_b32 v{32+i}, s{70+i}")
            A(f"s_and_b32 s71, s{sGRP}, {hex(0xfffffff0)}")
            A("s_mov_b64 exec, 1")
            A(f"buffer_store_dwordx4 v[32:35], off, {srd(sDBG)}, s71 sc1")
            A("s_endpgm")
        if o.stamp and not o.dbgst:
            A("s_waitcnt vmcnt(0)")
            A(f"s_cmp_lg_u32 s{sW}, {o.stw}")
            A("s_cbranch_scc1 L_end")
            s.stamp("end"); s.stamp("cend", True)
            A("s_waitcnt lgkmcnt(0)")
            n = len(o.stamps.split(","))
            assert n <= len(STAMP_REGS)
            if o.diagd:
                na, nb, kk = o.diagd.split(",")
                nm = o.stamps.split(",")
                ra, rb, re_ = (STAMP_REGS[nm.index(x)] for x in (na, nb, "end"))
                A(f"s_sub_u32 s70, s{rb}, s{ra}")
                A(f"s_mul_i32 s70, s70, {kk}")
                A("s_min_u32 s70, s70, 50000")
                s.lab("L_dg")
                A("s_memrealtime s[72:73]")
                A("s_waitcnt lgkmcnt(0)")
                A(f"s_sub_u32 s71, s72, s{re_}")
                A("s_cmp_lt_u32 s71, s70")
                A("s_cbranch_scc1 L_dg ; @nottaken")
            A("s_lshl_b32 s70, s2, 8")
            A(f"s_add_u32 s70, s70, {STAMP_BASE}")
            A("s_mov_b64 exec, 1")
            for i in range(n):
                r = STAMP_REGS[i]
                A(f"v_mov_b32 v32, s{r}"); A(f"v_mov_b32 v33, s{r+1}")
                A(f"buffer_store_dwordx2 v[32:33], off, {srd(sWS)}, s70 offset:{8*i}")
                A("s_nop 1")
        A("s_endpgm")
        s.emit(tg2_slow)
        s.L += t7_slow
        if o.xs:
            s.lab("B_wb")
            A("buffer_wbl2 sc1")
            A("s_waitcnt vmcnt(0)")
            A("s_branch B_wbr")
        s.lab("B_slow0")
        A(f"s_mov_b32 s{sSPIN}, 0")
        s.lab("B_slow0l")
        s.emit(mid_poll(True))
        A("s_waitcnt vmcnt(0)")
        s.emit(mid_check())
        A("s_cbranch_scc1 B_slow0r ; @taken" if not (o.abl & 32) else "s_nop 0")
        A(f"s_add_u32 s{sSPIN}, s{sSPIN}, 1")
        A(f"s_cmp_lt_u32 s{sSPIN}, {o.spin}")
        A("s_cbranch_scc1 B_slow0l")
        A("s_branch B_slow0r" if not (o.abl & 32) else "s_endpgm")
        s.lab("B_slow1")
        A(f"s_lshl_b32 s72, s{sW}, 2")
        A(f"s_add_u32 s72, s72, {FLAG_BASE + 32}")
        wave_poll(21, "slow1l", drain=False, mask=(52 if o.tail == 10 else None))
        A("s_branch B_slow1r" if not (o.abl & 4) else "s_endpgm")
        if o.tail in (2, 3) or o.t1p or (o.tail in (8, 9) and o.t8p >= 0) or (o.tail == 12 and o.t12v == 4):
            s.lab("B_slow2")
            A(f"s_lshl_b32 s72, s{sW}, 2")
            A(f"s_add_u32 s72, s72, {FLAG_BASE}")
            wave_poll(21, "slow2l", drain=False)
            A("s_branch B_slow2r")

    def build(s):
        s.common()
        s.waveA()
        s.waveB()
        s.lab("L_end")
        s.A("s_endpgm")
        lines = [l for l in s.L if l is not None]
        cfgs = []
        for wave in (0, 1, 3, 4, 5, 7):
            cfgs.append((f"wg5w{wave}", {2: 5}, {"WAVE": wave, "POLL": 0x03030303, "POLL3": 0x03030303}))
        if s.opt.tail == 10:
            for wave in (0, 3, 4, 7):
                cfgs.append((f"wg5odd{wave}", {2: 5}, {"WAVE": wave, "POLL": 0x03030303, "POLL3": 0x03030303, "ODD": 1}))
        if s.opt.tail in (11, 12):
            for wave in (0, 3, 4, 7):
                cfgs.append((f"gslow{wave}", {2: 5}, {"WAVE": wave, "POLL": 0x03030303, "POLL3": 0x03030303, "GSLOW": 1}))
        cfgs.append(("allresc", {2: 5}, {"WAVE": 1, "ALLRESC": 1}))
        cfgs.append(("slow7", {2: 5}, {"WAVE": 5, "POLL": 0x03030303, "POLL3": 0x03030303, "SLOW7": 1}))
        cfgs.append(("extra", {2: 256}, {"WAVE": 0}))
        if s.opt.stag > 1:
            for (nm_, i_, h_) in cfgs:
                if "WAVE" in h_:
                    for ph in range(s.opt.stag): h_[f"STG{ph}n"] = 0 if (h_["WAVE"] & (s.opt.stag - 1)) == ph else 1
            for wave in (6,):
                h_ = {"WAVE": wave, "POLL": 0x03030303, "POLL3": 0x03030303}
                for ph in range(s.opt.stag): h_[f"STG{ph}n"] = 0 if (wave & (s.opt.stag - 1)) == ph else 1
                cfgs.append((f"wg5w{wave}", {2: 5}, h_))
        lines = asmlib.finalize(lines, cfgs, verbose=True)
        return "\n".join(lines)

if __name__ == "__main__":
    ap = argparse.ArgumentParser()
    ap.add_argument("-o", default="k8.s")
    ap.add_argument("--stamp", action="store_true")
    ap.add_argument("--cyc", action="store_true")
    ap.add_argument("--stamps", default="start,pro,s8,E,poll1,oproj,pst,poll2,end")
    ap.add_argument("--nt", type=int, default=1)
    ap.add_argument("--prioA", type=int, default=0)
    for n_ in ("ntw", "ntx", "nto", "nths", "nthl"): ap.add_argument("--" + n_, type=int, default=0)
    ap.add_argument("--astamp", type=int, default=-1)
    ap.add_argument("--la", type=int, default=6)
    ap.add_argument("--nbub", type=int, default=3)
    ap.add_argument("--rot", type=int, default=1)
    ap.add_argument("--k0at", type=int, default=5)
    ap.add_argument("--p1at", type=int, default=7)
    ap.add_argument("--pf", type=int, default=0)
    ap.add_argument("--f0", default="{13: [1], 14: [2], 15: [3]}")
    ap.add_argument("--po0", type=int, default=11)
    ap.add_argument("--defer", type=int, default=1)
    ap.add_argument("--cpf", type=int, default=1)
    ap.add_argument("--dbgst", type=int, default=0)
    ap.add_argument("--g2at", type=int, default=8)
    ap.add_argument("--order", default="wfkp")
    ap.add_argument("--spin", type=int, default=131072)
    ap.add_argument("--outsc", type=int, default=0)
    ap.add_argument("--osc", type=int, default=15)
    ap.add_argument("--wb", type=int, default=0)
    ap.add_argument("--ntq", default="[]")
    ap.add_argument("--ntxc", default="[]")
    ap.add_argument("--ntoc", default="[]")
    ap.add_argument("--ablw", default="[]")
    ap.add_argument("--fl0at", type=int, default=0)
    ap.add_argument("--s0sp", default="")
    ap.add_argument("--tail", type=int, default=1)
    ap.add_argument("--s0at", type=int, default=9)
    ap.add_argument("--fpre", type=int, default=0)
    ap.add_argument("--abl", type=int, default=0)
    ap.add_argument("--w0i", default="{7: [(0,0)], 8: [(0,1)], 11: [(1,0)], 12: [(1,1), (2,0)], 13: [(2,1)], 14: [(3,0)], 15: [(3,1)]}")
    ap.add_argument("--w0u", default="{9: [(0,0)], 10: [(0,1)], 15: [(1,0), (1,1)], 16: [(2,0), (2,1)]}")
    ap.add_argument("--w1i", default="{15: [(0,0)], 16: [(1,0), (1,1)]}")
    ap.add_argument("--ords", default="{}")
    ap.add_argument("--ilv", type=int, default=0)
    ap.add_argument("--ilv0", type=int, default=1)
    ap.add_argument("--wrot", type=int, default=0)
    ap.add_argument("--cl", type=int, default=0)
    ap.add_argument("--fgl", type=int, default=0)
    ap.add_argument("--pro2", type=int, default=0)
    ap.add_argument("--dq", type=int, default=0)
    ap.add_argument("--apf", default="{}")
    ap.add_argument("--apfpos", type=int, default=0)
    ap.add_argument("--apfnt", default="")
    ap.add_argument("--t3a", type=int, default=0)
    ap.add_argument("--t3p", type=int, default=0)
    ap.add_argument("--t3g", type=int, default=0)
    ap.add_argument("--lead", type=int, default=0)
    ap.add_argument("--pro2a", type=int, default=0)
    ap.add_argument("--s7f", type=int, default=0)
    ap.add_argument("--r3", type=int, default=0)
    ap.add_argument("--q0at", type=int, default=5)
    ap.add_argument("--p2g", type=int, default=0)
    ap.add_argument("--bkv", default="{}")
    ap.add_argument("--p2at", type=int, default=99)
    ap.add_argument("--wbn", type=int, default=0)
    ap.add_argument("--kpf", type=int, default=0)
    ap.add_argument("--kpf0", default="[]")
    ap.add_argument("--kpfnt", default=" nt")
    ap.add_argument("--kpfn", type=int, default=1)
    ap.add_argument("--tg", type=int, default=0)
    ap.add_argument("--krot", type=int, default=0)
    ap.add_argument("--tge", type=int, default=-1)
    ap.add_argument("--tgd", type=int, default=1)
    ap.add_argument("--apre", type=int, default=0)
    ap.add_argument("--pdep", type=int, default=2)
    ap.add_argument("--kp0", default="[]")
    ap.add_argument("--kp0nt", default="")
    ap.add_argument("--s0q", type=int, default=0)
    ap.add_argument("--s8f", type=int, default=0)
    ap.add_argument("--l16", type=int, default=0)
    ap.add_argument("--t9e", type=int, default=0)
    ap.add_argument("--t9a", type=int, default=0)
    ap.add_argument("--t9b", type=int, default=16)
    ap.add_argument("--t9c", type=int, default=16)
    ap.add_argument("--t9d", type=int, default=31)
    ap.add_argument("--nopfix", type=int, default=0)
    ap.add_argument("--l16r", type=int, default=10)
    ap.add_argument("--s0z", type=int, default=16)
    ap.add_argument("--kpb", default="[]")
    ap.add_argument("--kpbs", type=int, default=64)
    ap.add_argument("--t1p", type=int, default=0)
    ap.add_argument("--abar", type=int, default=0)
    ap.add_argument("--stw", type=int, default=0)
    ap.add_argument("--mf", default="[]")
    ap.add_argument("--prioB", default="{}")
    ap.add_argument("--xs", type=int, default=0)
    ap.add_argument("--mp", type=int, default=8)
    ap.add_argument("--diagx", type=int, default=0)
    ap.add_argument("--diagd", default="")
    ap.add_argument("--hgx", type=int, default=0)
    ap.add_argument("--t5g", type=int, default=0)
    ap.add_argument("--t9g", type=int, default=0)
    ap.add_argument("--t8a", type=int, default=0)
    ap.add_argument("--t8p", type=int, default=-1)
    ap.add_argument("--t8f", type=int, default=16)
    ap.add_argument("--t7p", type=int, default=16)
    ap.add_argument("--t7g", type=int, default=1)
    ap.add_argument("--t7h", type=int, default=12)
    ap.add_argument("--t6v", type=int, default=1)
    ap.add_argument("--pod", type=int, default=1)
    ap.add_argument("--mpd", type=int, default=1)
    ap.add_argument("--wpf", default="{}")
    ap.add_argument("--fpf", type=int, default=-1)
    ap.add_argument("--fpfm", default="")
    ap.add_argument("--xpos", type=int, default=1)
    ap.add_argument("--t6g", default="(8, 24)")
    ap.add_argument("--t6h", type=int, default=12)
    ap.add_argument("--t6o", type=int, default=0)
    ap.add_argument("--pz", type=int, default=-1)
    ap.add_argument("--t12o", type=int, default=0)
    ap.add_argument("--t12v", type=int, default=0)
    ap.add_argument("--t12c", default="[-20, -10, -18]")
    ap.add_argument("--nox", type=int, default=0)
    ap.add_argument("--stag", type=int, default=0)
    ap.add_argument("--w1s", default="{}")
    ap.add_argument("--t11a", default="[]")
    ap.add_argument("--t11b", default="[]")
    ap.add_argument("--t11s", default="[]")
    ap.add_argument("--t11g", default="[(0, 8), (12, 24), (30, 44)]")
    ap.add_argument("--t11c", type=int, default=2)
    ap.add_argument("--t11p", type=int, default=20)
    ap.add_argument("--t11w", type=int, default=0)
    ap.add_argument("--t11l", type=int, default=1)
    ap.add_argument("--t10p", type=int, default=12)
    ap.add_argument("--t10d", type=int, default=0)
    o = ap.parse_args()
    if o.xs:
        if o.xs < 3: o.lead = 0
        o.osc &= ~3
    g = Gen(o)
    asmlib.CLUSTER = bool(o.nopfix)
    body = g.build()
    k = kernel_text(NAME + "_kernel", body, vgpr=256)
    hdr = ["; @launch grid=(256,1,1) block=(512,1,1) lds=163840"]
    if o.stamp and not o.dbgst: hdr.append("; STAMPS " + o.stamps)
    if o.astamp >= 0: hdr.append("; ASTAMP")
    if o.cyc: hdr.append("; STAMPCYC")
    open(o.o, "w").write(file_text(hdr, [k]))
    print("wrote", o.o, len(body.splitlines()), "lines")
```
